```python
import torch

def _softmax(x, axis=-1):
    return torch.softmax(x, dim=axis)
def _gelu(x):
    return torch.nn.functional.gelu(x, approximate="tanh")
def _silu(x):
    return torch.nn.functional.silu(x)
def _sigmoid(x):
    return torch.sigmoid(x)
def _layernorm(x, axis=-1, eps=1e-5):
    m = x.mean(dim=axis, keepdim=True)
    v = x.var(dim=axis, keepdim=True, unbiased=False)
    return (x - m) / torch.sqrt(v + eps)
def _scatter_add(tgt, idx, src, axis=0):
    return tgt.clone().index_add_(axis, idx, src)
def _segment_sum(src, seg, n):
    out = torch.zeros((n,) + src.shape[1:], dtype=src.dtype)
    return out.index_add_(0, seg, src)
def _pad(x, pw):
    flat = tuple(v for pair in reversed(pw) for v in pair)
    return torch.nn.functional.pad(x, flat)

kernel_name = 'parallel_sum__sliding_block__glu_gated_bilinear__prompt'

def setup_inputs():

    _w = (lambda a: (lambda t: t.to(torch.bfloat16) if t.is_floating_point() else t)(torch.as_tensor(a)))
    def _A_setup():
        B, S, D = 1, 2048, 576
        return {
            "x": _w((lambda *s: torch.randn(*s, dtype=torch.bfloat16) * 0.05)(B, S, D)),
            "wqkv": _w((lambda *s: torch.randn(*s, dtype=torch.bfloat16) * 0.05)(D, 3 * D)),
            "wo": _w((lambda *s: torch.randn(*s, dtype=torch.bfloat16) * 0.05)(D, D)),
        }
    _A_in = _A_setup()

    def _B_setup():
        B, S, D, F = 1, 2048, 576, 4608
        return {
            "x": _w((lambda *s: torch.randn(*s, dtype=torch.bfloat16) * 0.05)(B, S, D)),
            "w_gate": _w((lambda *s: torch.randn(*s, dtype=torch.bfloat16) * 0.8)(D, F) * (D ** -0.5)),
            "w_up": _w((lambda *s: torch.randn(*s, dtype=torch.bfloat16) * 0.8)(D, F) * (D ** -0.5)),
            "w_down": _w((lambda *s: torch.randn(*s, dtype=torch.bfloat16) * 0.8)(F, D) * (F ** -0.5)),
        }
    _B_in = _B_setup()

    return {
        "A_x": _A_in["x"],
        "A_wqkv": _A_in["wqkv"],
        "A_wo": _A_in["wo"],
        "B_x": _B_in["x"],
        "B_w_gate": _B_in["w_gate"],
        "B_w_up": _B_in["w_up"],
        "B_w_down": _B_in["w_down"],
    }

def reference(A_x, A_wqkv, A_wo, B_x, B_w_gate, B_w_up, B_w_down):
    def _A_ref(x, wqkv, wo):
        B, S, D = x.shape
        H = 32; Dh = D // H; W = 256
        qkv = (lambda x, *d: x.permute(*d))((x @ wqkv).reshape(B, S, 3, H, Dh), 2, 0, 3, 1, 4)
        q, k, v = qkv[0], qkv[1], qkv[2]
        scores = torch.einsum("bhqd,bhkd->bhqk", q, k) * (Dh ** -0.5)
        idx = torch.arange(S)
        mask = (idx[:, None] - idx[None, :] >= 0) & (idx[:, None] - idx[None, :] < W)
        scores = torch.where(mask[None, None], scores, -1e9)
        p = _softmax(scores, axis=-1)
        o = torch.einsum("bhqk,bhkd->bhqd", p, v)
        return (lambda x, *d: x.permute(*d))(o, 0, 2, 1, 3).reshape(B, S, D) @ wo

    def _B_ref(x, w_gate, w_up, w_down):
        g = torch.einsum("bsd,df->bsf", x, w_gate)
        u = torch.einsum("bsd,df->bsf", x, w_up)
        h = g * u
        return torch.einsum("bsf,fd->bsd", h, w_down)

    x = A_x
    xn = _layernorm(x, axis=-1)
    return x + _A_ref(xn, A_wqkv, A_wo) + _B_ref(xn, B_w_gate, B_w_up, B_w_down)
```

```python
import sys, struct, math
from asmlib import *
from collections import deque

SLOT = 24576; NS = 6
LDS_BYTES = 163840
XS = 98304
TAG_LDS = 147456
QKV_BASE = 0x2400000
FLAG_BASE = 0x2C00000
EPOCH_OFF = 0x2D00000
STAMP_OFF = 0x4000000
WS_BYTES = 268435456
OOB = 0x20000000
GS = 1056; RS = 20 * GS; TBASE = 3 * SLOT
TAGC = 0x9E3779B8
def f2u(f): return "0x%08x" % struct.unpack("<I", struct.pack("<f", f))[0]

def gen(D=6, stamps=None, do_align=True, gap=3, rt=False):
    a = Asm()
    SX, SG, SU, SD, SWS, SQKV, SO, SDBG = 4, 8, 12, 16, 20, 24, 28, 32
    sColTab = 36
    sSc = [45, 46, 47]
    sKV = [48, 49, 50]
    sTag = 51; sE = 52; sBound = 53; sQst = 54; sQld = 55
    sW, sS, sR = 56, 57, 58
    sPair = [59, 60, 61, 62]; sSing = 63
    sM6, sM3, sM2 = 64, 65, 73
    sOff, sT0, sT1, sT2, sT3 = 66, 67, 68, 69, 70
    sXrow = 71; sPst = 72
    sPC = 74
    sC0, sC1 = 76, 77
    sQcol = 78; sM4 = 79
    sStamp = 80
    KA = 84
    XN = 0
    ACC = [144, 176, 208]
    vRd = [240, 241, 242]
    vA = [243, 244, 245]
    vS = [246, 247, 248]
    vRq = [249, 250, 251]
    vT0, vT1, vT3 = 252, 253, 254
    vLane = 255
    H = 0
    aD = 84
    FR = 96
    KVS = 128
    aQ = 188
    aSt = 200
    KY = 208
    NB = D + 1
    nst = [0]
    def stamp(name):
        if stamps is None or name not in stamps: return
        assert nst[0] < 2
        a.i(f"s_memtime s[{sStamp+2*nst[0]}:{sStamp+2*nst[0]+1}]"); nst[0] += 1
    stl = []
    def astamp(name):
        if stamps is None or name.split(":")[0] not in stamps: return
        n = len(stl); assert n < 10
        a.i("s_waitcnt lgkmcnt(0)"); a.lg_done = a.lg_issued
        a.i(f"{'s_memrealtime' if rt else 's_memtime'} s[{sStamp}:{sStamp+1}]")
        a.i("s_waitcnt lgkmcnt(0)")
        a.i(f"v_accvgpr_write_b32 a{244+n}, s{sStamp}")
        stl.append(name)

    def srd(d, p, nbytes):
        a.i(f"s_mov_b32 s{d}, s{p}"); a.i(f"s_mov_b32 s{d+1}, s{p+1}")
        a.i(f"s_mov_b32 s{d+2}, {nbytes}"); a.i(f"s_mov_b32 s{d+3}, 0x00020000")

    a.i("s_cmp_ge_u32 s2, 256")
    a.i("s_cbranch_scc1 L_end")
    a.i(f"s_load_dwordx16 s[{KA}:{KA+15}], s[0:1], 0")
    a.i(f"s_load_dwordx4 s[80:83], s[0:1], 64")
    a.i(f"s_getpc_b64 s[{sPC}:{sPC+1}]")
    a.i(f"s_lshr_b32 s{sT0}, s2, 3")
    a.i(f"s_lshl_b32 s{sT0}, s{sT0}, 12")
    a.i(f"v_lshlrev_b32 v{vT0}, 4, v0")
    a.i(f"v_add_u32 v{vT0}, s{sT0}, v{vT0}")
    a.i(f"v_min_u32 v{vT0}, CODE_LAST, v{vT0}")
    a.vm(f"global_load_dwordx4 a[{KVS}:{KVS+3}], v{vT0}, s[{sPC}:{sPC+1}]")
    a.i(f"v_lshrrev_b32 v{vT1}, 6, v0")
    a.i(f"v_and_b32 v{vLane}, 63, v0")
    a.i(f"v_readfirstlane_b32 s{sW}, v{vT1}")
    a.i(f"s_and_b32 s{sS}, s2, 7")
    a.i(f"s_lshl_b32 s{sS}, s{sS}, 1")
    a.i(f"s_bfe_u32 s{sT0}, s2, 0x10003")
    a.i(f"s_add_u32 s{sS}, s{sS}, s{sT0}")
    a.i(f"s_lshr_b32 s{sR}, s2, 4")
    vX = [ACC[2]+i for i in range(4)]; vXr = [ACC[2]+4+i for i in range(4)]
    t0, t1, t2, t3 = ACC[2]+8, ACC[2]+9, ACC[2]+10, ACC[2]+11
    a.i(f"v_lshrrev_b32 v{t0}, 3, v{vLane}")
    a.i(f"v_and_b32 v{t1}, 7, v{vLane}")
    for j in range(4):
        a.i(f"v_add_u32 v{t2}, {8*j}, v{t0}")
        a.i(f"v_bfe_u32 v{t3}, v{t2}, 1, 3")
        a.i(f"v_xor_b32 v{t3}, v{t3}, v{t1}")
        a.i(f"v_mul_u32_u24 v{t2}, 1152, v{t2}")
        a.i(f"v_lshl_add_u32 v{vX[j]}, v{t3}, 4, v{t2}")
        if j: a.i(f"v_subrev_u32 v{vX[j]}, {1024*j}, v{vX[j]}")
    a.i(f"s_lshl_b32 s{sXrow}, s{sR}, 2")
    a.i(f"s_add_u32 s{sXrow}, s{sXrow}, s{sW}")
    a.i(f"s_mul_i32 s{sXrow}, s{sXrow}, {32*1152}")
    a.i(f"s_lshl_b32 s{sM4}, s{sW}, 12")
    a.i("s_waitcnt lgkmcnt(0)")
    srd(SX, KA+0, 2048*1152)
    xtok = {}
    def xdma(ch):
        a.i(f"s_add_u32 s{sOff}, s{sXrow}, {128*ch}")
        a.i(f"s_add_u32 m0, s{sM4}, {XS + 16384*(ch%4)}")
        a.i("s_nop 0")
        for j in range(4):
            xtok[ch] = a.vm(f"buffer_load_dwordx4 v{vX[j]}, s[{SX}:{SX+3}], s{sOff} offen offset:{1024*j} lds")
    for ch in range(4): xdma(ch)
    srd(SQKV, KA+2, 576*3456); srd(SO, KA+4, 576*1152)
    srd(SG, KA+8, 576*9216); srd(SU, KA+10, 576*9216); srd(SD, KA+12, 4608*1152)
    srd(SDBG, 80, 256); srd(SWS, 82, WS_BYTES)
    a.i(f"s_add_u32 s82, s82, {EPOCH_OFF}"); a.i("s_addc_u32 s83, s83, 0")
    a.i(f"s_load_dword s{sE}, s[82:83], 0")
    astamp("P:start")
    if stamps:
        a.i("s_memrealtime s[80:81]"); a.i("s_waitcnt lgkmcnt(0)"); a.i("v_accvgpr_write_b32 a254, s80")
    a.i(f"v_and_b32 v{t0}, 31, v{vLane}")
    a.i(f"v_bfe_u32 v{t1}, v{vLane}, 1, 3")
    a.i(f"v_lshrrev_b32 v{t2}, 5, v{vLane}")
    a.i(f"v_xor_b32 v{t1}, v{t1}, v{t2}")
    a.i(f"v_lshlrev_b32 v{t0}, 7, v{t0}")
    a.i(f"s_add_u32 s{sT0}, s{sM4}, {XS}")
    a.i(f"v_add_u32 v{t0}, s{sT0}, v{t0}")
    for b in range(4):
        a.i(f"v_xor_b32 v{t3}, {2*b}, v{t1}")
        a.i(f"v_lshl_add_u32 v{vXr[b]}, v{t3}, 4, v{t0}")
    a.i(f"s_mul_i32 s{sT1}, s{sS}, 288")
    a.i(f"s_and_b32 s{sT2}, s{sS}, 1")
    a.i(f"s_lshl_b32 s{sT3}, s{sT2}, 5")
    a.i(f"s_add_u32 s{sT3}, s{sT3}, s{sT1}")
    for j in range(4):
        a.i(f"s_add_u32 s{sOff}, s{sR}, {j}")
        a.i(f"s_and_b32 s{sOff}, s{sOff}, 3")
        a.i(f"s_lshl_b32 s{sOff}, s{sOff}, 6")
        a.i(f"s_add_u32 s{sPair[j]}, s{sOff}, s{sT3}")
    a.i(f"s_xor_b32 s{sT2}, s{sT2}, 1")
    a.i(f"s_lshl_b32 s{sT2}, s{sT2}, 8")
    a.i(f"s_add_u32 s{sSing}, s{sT2}, s{sT1}")
    a.i(f"s_mul_i32 s{sM6}, s{sW}, 6144")
    a.i(f"s_mul_i32 s{sM3}, s{sW}, 3072")
    a.i(f"s_lshl_b32 s{sM2}, s{sW}, 11")
    a.i(f"s_mul_i32 s{sQcol}, s{sS}, 216")
    rho, tt, pc = ACC[2]+12, ACC[2]+13, ACC[2]+14
    a.i(f"v_bfe_u32 v{rho}, v{vLane}, 2, 3")
    a.i(f"v_lshrrev_b32 v{tt}, 5, v{vLane}")
    a.i(f"v_and_b32 v{pc}, 3, v{vLane}")
    a.i(f"v_lshlrev_b32 v{pc}, 4, v{pc}")
    a.i(f"s_and_b32 s{sT0}, s{sW}, 1"); a.i(f"s_mul_i32 s{sT0}, s{sT0}, {8*3456}")
    a.i(f"s_lshr_b32 s{sT1}, s{sW}, 1"); a.i(f"s_lshl_b32 s{sT1}, s{sT1}, 7")
    a.i(f"v_lshl_add_u32 v{t0}, v{tt}, 6, v{pc}")
    a.i(f"v_add_u32 v{t0}, s{sT1}, v{t0}")
    a.i(f"v_min_u32 v{t0}, 208, v{t0}")
    a.i(f"v_mul_u32_u24 v{t1}, 3456, v{rho}")
    a.i(f"v_add3_u32 v{vS[0]}, v{t0}, v{t1}, s{sT0}")
    a.i(f"v_add_u32 v{vS[1]}, {16*3456-1024}, v{vS[0]}")
    a.i(f"v_add_u32 v{vS[2]}, {32*3456-2048}, v{vS[0]}")
    a.i(f"s_mul_i32 s{sT1}, s{sW}, {48*9216}")
    a.i(f"v_mul_u32_u24 v{vA[0]}, 9216, v{rho}")
    a.i(f"v_lshl_add_u32 v{vA[0]}, v{tt}, 6, v{vA[0]}")
    a.i(f"v_add3_u32 v{vA[0]}, v{vA[0]}, v{pc}, s{sT1}")
    a.i(f"v_add_u32 v{vA[1]}, {8*9216-1024}, v{vA[0]}")
    a.i(f"v_add_u32 v{vA[2]}, {16*9216-2048}, v{vA[0]}")
    a.i(f"v_lshl_add_u32 v{t0}, v{tt}, 4, v{rho}")
    a.i(f"v_mul_u32_u24 v{t0}, 9216, v{t0}")
    a.i(f"v_add_u32 v{t0}, v{t0}, v{pc}")
    for i in range(3):
        a.i(f"s_mul_i32 s{sT1}, s{sW}, 3")
        a.i(f"s_add_u32 s{sT1}, s{sT1}, {i}")
        a.i(f"s_and_b32 s{sT2}, s{sT1}, 1")
        a.i(f"s_lshr_b32 s{sT1}, s{sT1}, 1")
        a.i(f"s_lshl_b32 s{sT1}, s{sT1}, 2")
        a.i(f"s_add_u32 s{sT1}, s{sT1}, s{sT2}")
        a.i(f"s_mul_i32 s{sT1}, s{sT1}, {8*9216}")
        a.i(f"s_sub_u32 s{sT1}, s{sT1}, {1024*i}")
        a.i(f"v_add_u32 v{t1}, s{sT1}, v{t0}")
        a.i(f"v_accvgpr_write_b32 a{aSt+i}, v{t1}")
    a.i(f"v_and_b32 v{t0}, 3, v{rho}")
    a.i(f"v_lshrrev_b32 v{t1}, 2, v{rho}")
    a.i(f"v_lshl_add_u32 v{t0}, v{t1}, 3, v{t0}")
    a.i(f"v_mul_u32_u24 v{t0}, 1152, v{t0}")
    a.i(f"v_lshl_add_u32 v{t0}, v{tt}, 6, v{t0}")
    a.i(f"v_add_u32 v{t0}, v{t0}, v{pc}")
    for i in range(9):
        if i < 6:
            a.i(f"s_mul_i32 s{sT0}, s{sW}, 6"); a.i(f"s_add_u32 s{sT0}, s{sT0}, {i}")
        else:
            a.i(f"s_mul_i32 s{sT0}, s{sW}, 3"); a.i(f"s_add_u32 s{sT0}, s{sT0}, {24+i-6}")
        a.i(f"s_lshr_b32 s{sT1}, s{sT0}, 3")
        a.i(f"s_add_u32 s{sT1}, s{sT1}, s{sR}")
        a.i(f"s_and_b32 s{sT1}, s{sT1}, 3")
        a.i(f"s_lshl_b32 s{sT1}, s{sT1}, 6")
        a.i(f"s_add_u32 s{sT1}, s{sT1}, s{sT3}")
        a.i(f"s_cmp_ge_u32 s{sT0}, 32")
        a.i(f"s_cselect_b32 s{sT1}, s{sSing}, s{sT1}")
        a.i(f"s_bfe_u32 s{sT2}, s{sT0}, 0x20001")
        a.i(f"s_lshl_b32 s{sT2}, s{sT2}, 4")
        a.i(f"s_add_u32 s{sT1}, s{sT1}, s{sT2}")
        a.i(f"s_and_b32 s{sT2}, s{sT0}, 1")
        a.i(f"s_lshl_b32 s{sT2}, s{sT2}, 2")
        a.i(f"s_add_u32 s{sT1}, s{sT1}, s{sT2}")
        a.i(f"s_mul_i32 s{sT1}, s{sT1}, 1152")
        a.i(f"s_sub_u32 s{sT1}, s{sT1}, {1024*(i%3)}")
        a.i(f"v_add_u32 v{t1}, s{sT1}, v{t0}")
        a.i(f"v_accvgpr_write_b32 a{aD+i}, v{t1}")
    a.i(f"s_cmp_eq_u32 s{sW}, 1"); a.i(f"s_cselect_b32 s{sT1}, 20, 16")
    a.i(f"s_cmp_eq_u32 s{sW}, 0"); a.i(f"s_cselect_b32 s{sT1}, 0, s{sT1}")
    a.i(f"s_mul_i32 s{sT2}, s{sS}, 36"); a.i(f"s_add_u32 s{sT1}, s{sT1}, s{sT2}")
    a.i(f"s_mul_i32 s{sT1}, s{sT1}, 1152")
    a.i(f"v_add_u32 v{t1}, s{sT1}, v{t0}")
    a.i(f"v_accvgpr_write_b32 a{aD+9}, v{t1}")
    a.i(f"v_add_u32 v{t1}, {4*1152-1024}, v{t1}")
    a.i(f"v_accvgpr_write_b32 a{aD+10}, v{t1}")
    a.i(f"v_bfe_u32 v{t0}, v{vLane}, 2, 2")
    a.i(f"v_lshlrev_b32 v{t1}, 6, v{t0}")
    a.i(f"v_bfe_u32 v{t0}, v{vLane}, 4, 1")
    a.i(f"v_lshl_add_u32 v{t1}, v{t0}, 5, v{t1}")
    a.i(f"v_and_b32 v{t0}, 3, v{vLane}")
    a.i(f"v_lshl_add_u32 v{t1}, v{t0}, 3, v{t1}")
    a.i(f"v_lshl_add_u32 v{vRd[0]}, v{tt}, 10, v{t1}")
    a.i(f"v_add_u32 v{vRd[1]}, {2*SLOT}, v{vRd[0]}")
    a.i(f"v_add_u32 v{vRd[2]}, {4*SLOT}, v{vRd[0]}")
    a.i(f"v_mul_u32_u24 v{t0}, 6144, v{tt}")
    a.i(f"v_add_u32 v{vRq[0]}, v{t0}, v{t1}")
    a.i(f"v_add_u32 v{vRq[1]}, {2*SLOT}, v{vRq[0]}")
    a.i(f"v_add_u32 v{vRq[2]}, {4*SLOT}, v{vRq[0]}")
    for j in range(4): a.i(f"s_lshl_b32 s{sPair[j]}, s{sPair[j]}, 1")
    a.i(f"s_lshl_b32 s{sSing}, s{sSing}, 1")
    a.i(f"s_cmp_ge_u32 s{sS}, 9")
    a.i(f"s_cselect_b32 s{sT0}, 9, 0")
    a.i(f"s_sub_u32 s{sT0}, s{sS}, s{sT0}")
    for c in range(9):
        a.i(f"s_add_u32 s{sT1}, s{sT0}, {c}")
        a.i(f"s_cmp_ge_u32 s{sT1}, 9")
        a.i(f"s_cselect_b32 s{sT2}, 9, 0")
        a.i(f"s_sub_u32 s{sT1}, s{sT1}, s{sT2}")
        a.i(f"s_lshl_b32 s{sColTab+c}, s{sT1}, 7")
    qc = 18 ** -0.5 * math.log2(math.e)
    a.i(f"s_mul_i32 s{sT0}, s{sS}, 3")
    a.i(f"s_mov_b32 s{sT1}, {f2u(qc)}")
    for bb in range(3):
        a.i(f"s_cmp_lt_u32 s{sT0}, {16-bb}")
        a.i(f"s_cselect_b32 s{sSc[bb]}, s{sT1}, 1.0")
    a.i(f"v_mov_b32 v{t0}, s{sSc[0]}")
    a.i(f"v_mov_b32 v{t1}, s{sSc[1]}")
    a.i(f"v_cmp_eq_u32 vcc, 1, v{tt}")
    a.i("s_nop 1")
    a.i(f"v_cndmask_b32 v{t0}, v{t0}, v{t1}, vcc")
    a.i(f"v_accvgpr_write_b32 a{aSt+7}, v{t0}")
    a.i(f"v_and_b32 v{t0}, 31, v{vLane}")
    a.i(f"s_lshl_b32 s{sT0}, s{sW}, 8")
    a.i(f"v_lshlrev_b32 v{t0}, 3, v{t0}")
    a.i(f"v_add_u32 v{t0}, s{sT0}, v{t0}")
    a.i(f"v_lshl_add_u32 v{t1}, v{tt}, 10, v{t0}")
    a.i(f"v_accvgpr_write_b32 a{aSt+4}, v{t1}")
    a.i(f"v_lshl_add_u32 v{t1}, v{tt}, 29, v{t0}")
    a.i(f"v_accvgpr_write_b32 a{aSt+5}, v{t1}")
    a.i(f"s_mul_i32 s{sT0}, s{sR}, 432")
    a.i(f"s_mul_i32 s{sT1}, s{sS}, 27"); a.i(f"s_add_u32 s{sT1}, s{sT1}, s{sT0}")
    a.i(f"s_lshl_b32 s{sT1}, s{sT1}, 10"); a.i(f"s_add_u32 s{sQst}, s{sT1}, {QKV_BASE}")
    a.i(f"s_mul_i32 s{sT1}, s{sS}, 9"); a.i(f"s_add_u32 s{sT1}, s{sT1}, s{sT0}")
    a.i(f"s_lshl_b32 s{sT1}, s{sT1}, 10"); a.i(f"s_add_u32 s{sQld}, s{sT1}, {QKV_BASE}")
    a.i(f"s_lshr_b32 s{sT2}, s{sW}, 1"); a.i(f"s_add_u32 s{sT2}, s{sT2}, 1"); a.i(f"s_mul_i32 s{sT2}, s{sT2}, 144")
    a.i(f"s_and_b32 s{sT3}, s{sW}, 1"); a.i(f"s_add_u32 s{sT2}, s{sT2}, s{sT3}")
    a.i(f"s_lshl_b32 s{sT2}, s{sT2}, 10"); a.i(f"s_add_u32 s{sT2}, s{sT2}, s{sQld}")
    for r2 in range(3):
        a.i(f"s_sub_u32 s{sT1}, s{sT2}, {(2-r2)*432*1024}")
        a.i(f"s_cmp_ge_u32 s{sR}, {2-r2}")
        a.i(f"s_cselect_b32 s{sKV[r2]}, s{sT1}, {OOB}")
    a.i(f"s_lshr_b32 s{sT2}, s{sW}, 1"); a.i(f"s_mul_i32 s{sT2}, s{sT2}, 10"); a.i(f"s_add_u32 s{sT2}, s{sT2}, s{sT3}")
    a.i(f"s_mul_i32 s{sT2}, s{sT2}, {GS}"); a.i(f"s_add_u32 s{sT2}, s{sT2}, {TBASE}")
    a.i(f"v_lshlrev_b32 v{t0}, 4, v{vLane}")
    a.i(f"v_add_u32 v{t0}, s{sT2}, v{t0}")
    a.i(f"v_accvgpr_write_b32 a{aSt+6}, v{t0}")
    a.i(f"s_mov_b32 s{sC0}, 0x55555556")
    def flagoff(dst, badd, dr):
        a.i(f"s_add_u32 s{sT0}, s{sS}, {badd}")
        a.i(f"s_mul_hi_u32 s{sT0}, s{sT0}, s{sC0}")
        a.i(f"s_sub_u32 s{sT1}, s{sR}, {dr}")
        a.i(f"s_cmp_ge_u32 s{sR}, {dr}")
        a.i(f"s_cselect_b32 s{sT1}, s{sT1}, s{sR}")
        a.i(f"s_lshl_b32 s{sT1}, s{sT1}, 4")
        a.i(f"s_add_u32 s{sT0}, s{sT0}, s{sT1}")
        a.i(f"s_lshl_b32 s{sT0}, s{sT0}, 7")
        a.i(f"s_add_u32 s{dst}, s{sT0}, {FLAG_BASE}")
    flagoff(sT2, 0, 0)
    a.i(f"v_mov_b32 v{t0}, s{sT2}")
    ln = 1
    for badd in (16, 32):
        for dr in range(3):
            flagoff(sT2, badd, dr)
            a.i(f"v_writelane_b32 v{t0}, s{sT2}, {ln}"); ln += 1
    a.i(f"v_accvgpr_write_b32 a{aSt+3}, v{t0}")
    a.i(f"s_mov_b32 s{sBound}, 0x400000")
    a.i("s_waitcnt lgkmcnt(0)")
    vCs = ACC[2]+16
    a.i(f"s_add_u32 s{sE}, s{sE}, {TAGC}")
    a.i(f"s_or_b32 s{sE}, s{sE}, 1")
    a.i(f"v_mov_b32 v{vCs}, s{sE}")
    a.i(f"v_mov_b32 v{vCs+1}, 0")
    a.i(f"v_mov_b32 v{vCs+2}, 0")
    a.i(f"s_cmp_lg_u32 s{sW}, 0")
    a.i("s_cbranch_scc1 L_nocas")
    a.i("s_mov_b64 exec, 1")
    a.i(f"buffer_atomic_cmpswap v[{vCs}:{vCs+1}], v{vCs+2}, s[{SDBG}:{SDBG+3}], 0 offen sc0")
    a.i("s_mov_b64 exec, -1")
    a.label("L_nocas")

    stages = {}
    post = {}
    k = 0
    for st in range(6):
        groups = [(SQKV, ("add", sQcol, (96*st + 48*g)*3456), (sM6, 3072*g), vS, "v") for g in range(2)]
        mf = []
        for uu in range(6):
            s = 6*st + uu
            for t in range(4):
                mf.append((ACC[t//2] + 16*(t%2), f"v[{XN+4*s}:{XN+4*s+3}]", vRq, 12288*(t//2) + 1024*uu + 512*(t%2), s == 0))
        stages[k] = dict(dma=groups, mf=mf); k += 1
    post[k-1] = ("q", [ACC[0], ACC[1]])
    rot = 2
    for j in range(4):
        ag = ACC[rot % 3]; au = ACC[(rot + 1) % 3]; rot += 2
        for (srdreg, acc) in ((SG, ag), (SU, au)):
            for st in range(3):
                groups = [(srdreg, ("add", sPair[j], (192*st + 24*g)*9216), (sM6, 3072*g), vA, "v") for g in range(2)]
                mf = []
                for uu in range(12):
                    s = 12*st + uu
                    for t in range(2):
                        mf.append((acc + 16*t, f"v[{XN+4*s}:{XN+4*s+3}]", vRd, 2048*uu + 512*t, s == 0))
                stages[k] = dict(dma=groups, mf=mf); k += 1
        post[k-1] = ("h", [ag, au], [4*j, 4*j+2])
    ag = ACC[rot % 3]; rot += 1
    for st in range(3):
        groups = [(SG, ("add", sSing, 192*st*9216), (sM3, 0), vS, "v"),
                  (SU, ("add", sSing, 192*st*9216), (sM3, 12288), vS, "v")]
        mf = []
        for uu in range(12):
            s = 12*st + uu
            for t in range(2):
                mf.append((ag + 16*t, f"v[{XN+4*s}:{XN+4*s+3}]", vRd, 12288*t + 2048*(uu//2) + 512*(uu%2), s == 0))
        stages[k] = dict(dma=groups, mf=mf); k += 1
    post[k-1] = ("hs", [ag], [16])
    assert k == 33
    KB0 = 36
    k = KB0
    vD = list(range(0, 11))
    for c in range(9):
        acc = ACC[c % 3]
        g1 = [(SD, ("col", c), (sM6, 0), [0,1,2], "a"), (SD, ("col", c), (sM6, 3072), [3,4,5], "a")]
        mf = [(acc + 16*t, f"a[{H+4*u}:{H+4*u+3}]", vRd, 2048*u + 512*t, u == 0) for u in range(12) for t in range(2)]
        stages[k] = dict(dma=g1, mf=mf); k += 1
        g2 = [(SD, ("col", c), (sM3, 0), [6,7,8], "a"), (SO, ("col", c), (sM2, 12288), [9,10], "a")]
        mf = [(acc + 16*t, f"a[{H+4*u}:{H+4*u+3}]", vRd, 2048*(u-12) + 512*t, False) for u in range(12, 21) for t in range(2)]
        stages[k] = dict(dma=g2, mf=mf); k += 1
        post[k-1] = ("p", [acc], c)
    KEND = k

    def dma_instrs(k):
        out = []
        slot = (k % NS) * SLOT
        for (srdreg, soff, (sm, moff), vregs, where) in stages[k]["dma"]:
            out.append(("s", f"s_add_u32 m0, s{sm}, {slot + moff}"))
            if soff[0] == "add":
                out.append(("s", f"s_add_u32 s{sOff}, s{soff[1]}, {soff[2]}")); so = sOff
            else: so = sColTab + soff[1]
            first = True
            for i, v in enumerate(vregs):
                if where == "a":
                    out.append(("v", f"v_accvgpr_read_b32 v{vT3}, a{aD + v}"))
                    out.append(("m", f"buffer_load_dwordx4 v{vT3}, s[{srdreg}:{srdreg+3}], s{so} offen offset:{1024*i} lds"))
                else:
                    out.append(("m", f"buffer_load_dwordx4 v{v}, s[{srdreg}:{srdreg+3}], s{so} offen offset:{1024*i} lds"))
                first = False
        return out
    dma_tok = {}
    def emit_dma_item(k, it):
        kind, txt = it
        if kind == "m": dma_tok[k] = a.vm(txt)
        else: a.i(txt)
    def emit_dma(k):
        for it in dma_instrs(k): emit_dma_item(k, it)

    a.i(f"s_mov_b32 s{sC0}, 0x3f803f80"); a.i(f"s_mov_b32 s{sC1}, 0xffff0000")
    S1 = [ACC[0], ACC[0]+1]; S2 = [ACC[0]+2, ACC[0]+3]
    for r in S1 + S2: a.i(f"v_mov_b32 v{r}, 0")
    def stats(ch):
        for s in range(4*ch, 4*ch+4):
            for i in range(4):
                x = XN + 4*s + i
                a.i(f"v_dot2_f32_bf16 v{S1[i%2]}, v{x}, s{sC0}, v{S1[i%2]}")
                a.i(f"v_dot2_f32_bf16 v{S2[i%2]}, v{x}, v{x}, v{S2[i%2]}")
    for ch in range(9):
        a.wait(vm=xtok[ch])
        for b in range(4):
            s = 4*ch + b
            tk = a.ds(f"ds_read_b128 v[{XN+4*s}:{XN+4*s+3}], v{vXr[b]} offset:{16384*(ch%4)}")
        if ch: stats(ch-1)
        a.wait(lg=tk)
        if ch + 4 < 9: xdma(ch + 4)
        else: emit_dma(ch - 5)
    stats(8)
    astamp("P:stats")
    m, q, u1, u2 = ACC[0]+4, ACC[0]+5, ACC[0]+6, ACC[0]+7
    a.i("s_nop 2")
    a.i(f"v_add_f32 v{m}, v{S1[0]}, v{S1[1]}")
    a.i(f"v_add_f32 v{q}, v{S2[0]}, v{S2[1]}")
    a.i(f"v_mov_b32 v{u1}, v{m}")
    a.i(f"v_mov_b32 v{u2}, v{q}")
    a.i("s_nop 1")
    a.i(f"v_permlane32_swap_b32 v{m}, v{u1}")
    a.i(f"v_permlane32_swap_b32 v{q}, v{u2}")
    a.i("s_nop 1")
    a.i(f"v_add_f32 v{m}, v{m}, v{u1}")
    a.i(f"v_add_f32 v{q}, v{q}, v{u2}")
    inv = 1.0/576.0
    a.i(f"v_mul_f32 v{m}, {f2u(inv)}, v{m}")
    a.i(f"v_mul_f32 v{q}, {f2u(inv)}, v{q}")
    a.i(f"v_fma_f32 v{q}, -v{m}, v{m}, v{q}")
    a.i(f"v_max_f32 v{q}, 0, v{q}")
    def rbf(r):
        a.i(f"v_cvt_pk_bf16_f32 v{r}, v{r}, v{r}")
        a.i(f"v_lshlrev_b32 v{r}, 16, v{r}")
    rbf(m); rbf(q)
    a.i(f"v_add_f32 v{q}, {f2u(1e-5)}, v{q}")
    rbf(q)
    a.i(f"v_sqrt_f32 v{q}, v{q}")
    a.i("s_nop 0")
    rbf(q)
    a.i(f"v_rcp_f32 v{q}, v{q}")
    a.i("s_nop 0")
    RSr = ACC[2]+20; NM = ACC[2]+22
    a.i(f"v_mov_b32 v{RSr}, v{q}"); a.i(f"v_mov_b32 v{RSr+1}, v{q}")
    a.i(f"v_mul_f32 v{NM}, v{m}, v{q}")
    a.i(f"v_sub_f32 v{NM}, 0, v{NM}")
    a.i(f"v_mov_b32 v{NM+1}, v{NM}")
    TP = [ACC[2]+24, ACC[2]+26, ACC[2]+28, ACC[2]+30]
    def norm_instrs(s):
        o = []
        for i in range(4):
            x = XN + 4*s + i; tp = TP[i]
            o.append(f"v_lshlrev_b32 v{tp}, 16, v{x}")
            o.append(f"v_and_b32 v{tp+1}, s{sC1}, v{x}")
        for i in range(4):
            tp = TP[i]
            o.append(f"v_pk_fma_f32 v[{tp}:{tp+1}], v[{tp}:{tp+1}], v[{RSr}:{RSr+1}], v[{NM}:{NM+1}]")
        for i in range(4):
            x = XN + 4*s + i; tp = TP[i]
            o.append(f"v_cvt_pk_bf16_f32 v{x}, v{tp}, v{tp+1}")
        return o
    for s in range(36):
        for t in norm_instrs(s): a.i(t)
    a.i(f"s_cmp_lg_u32 s{sW}, 0")
    a.i("s_cbranch_scc1 L_notag")
    a.i(f"v_readfirstlane_b32 s{sT0}, v{vCs}")
    a.i("s_nop 3")
    a.i(f"s_cmp_eq_u32 s{sT0}, 0")
    a.i(f"s_cselect_b32 s{sTag}, s{sE}, s{sT0}")
    a.i(f"v_mov_b32 v{vCs}, s{sTag}")
    a.i(f"v_mov_b32 v{vCs+1}, {EPOCH_OFF}")
    a.i("s_cbranch_scc0 L_notwin")
    a.i(f"buffer_store_dword v{vCs}, v{vCs+1}, s[{SWS}:{SWS+3}], 0 offen sc1")
    a.label("L_notwin")
    a.label("L_notag")
    astamp("P:ln"); astamp("Q:ln")

    fill = deque()
    spin_blocks = []
    pub = []
    def emit_fill(it):
        kind, txt = it[1], it[2]
        if kind == "m": return a.vm(txt)
        if kind == "d": return a.ds(txt)
        if kind == "f": return txt()
        a.i(txt)
    hooks = {}
    def stream(ks, dma_after, first_barrier=True):
        mfs = [(k,) + tuple(m) for k in ks for m in stages[k]["mf"]]
        N = len(mfs)
        first_of = {}
        for i, mm in enumerate(mfs): first_of.setdefault(mm[0], i)
        rd_tok = {}
        dmaq = deque()
        def issue_reads(i):
            k, acc, b, vr, off, first = mfs[i]
            o = (k % NS) * SLOT + off
            base = vr[o // (2*SLOT)]; oo = o % (2*SLOT)
            fb = FR + 4*(i % NB)
            a.ds(f"ds_read_b64_tr_b16 a[{fb}:{fb+1}], v{base} offset:{oo}")
            rd_tok[i] = a.ds(f"ds_read_b64_tr_b16 a[{fb+2}:{fb+3}], v{base} offset:{oo+256}")
        def pre_read(i, cur):
            k = mfs[i][0]
            if first_of[k] == i:
                while dmaq:
                    kk, it = dmaq.popleft(); emit_dma_item(kk, it)
                a.wait(vm=dma_tok[k])
                if k in prebar: prebar[k]()
                a.i("s_barrier")
                for p in list(pub):
                    if p[0]() is not None and p[0]() <= a.vm_done:
                        p[1](); pub.remove(p)
                for kk in dma_after(k):
                    for it in dma_instrs(kk): dmaq.append((kk, it))
                if k in hooks: hooks[k](cur)
        for i in range(min(D, N)):
            pre_read(i, 0); issue_reads(i)
        since = 0
        for i in range(N):
            k, acc, b, vr, off, first = mfs[i]
            if first_of[k] == i: astamp_stage(k)
            a.wait(lg=rd_tok[min(i+1, N-1)] if i % 2 == 0 else rd_tok[i])
            fb = FR + 4*(i % NB)
            c = "0" if first else f"v[{acc}:{acc+15}]"
            if first:
                nd = 0
                while any(any(x <= acc < x + 32 for x in it[3]) for it in fill):
                    emit_fill(fill.popleft()); nd += 1
                if nd: print("drained", nd, "at stage", k, file=sys.stderr); a.i("s_nop 1")
            a.i(f"v_mfma_f32_32x32x16_bf16 v[{acc}:{acc+15}], a[{fb}:{fb+3}], {b}, {c}")
            if i + D < N:
                pre_read(i + D, i); issue_reads(i + D)
            budget = 2; since += 1
            if dmaq and since >= gap:
                while dmaq:
                    kk, it = dmaq.popleft(); emit_dma_item(kk, it); budget -= 1
                    if it[0] == "m": break
                since = 0
            while budget > 0 and fill and fill[0][0] <= i:
                emit_fill(fill.popleft()); budget -= 1
            if (i + 1 == N or mfs[i+1][0] != k) and k in post:
                do_post(post[k], i + 4)
        while dmaq:
            kk, it = dmaq.popleft(); emit_dma_item(kk, it)
        a.i("s_nop 7"); a.i("s_nop 3")
        while fill: emit_fill(fill.popleft())
    prebar = {}
    def astamp_stage(k):
        if k == 6: astamp("P:qend")
        if 6 <= k < 33 and k % 3 == 0: astamp(f"A:{k}")
        if k < 6: astamp(f"Q:{k}")
        if k >= 36 and k % 2 == 0: astamp(f"B:{k}")
    st_tok = {}
    def do_post(p, nb):
        if p[0] in ("h", "hs"):
            sets, us = p[1], p[2]
            for ti, u0 in enumerate(us):
                if p[0] == "h": g = sets[0] + 16*ti; u = sets[1] + 16*ti
                else: g = sets[0]; u = sets[0] + 16
                for r in range(0, 16, 2):
                    fill.append((nb, "v", f"v_mul_f32 v{g+r}, v{g+r}, v{u+r}", sets))
                    fill.append((nb, "v", f"v_mul_f32 v{g+r+1}, v{g+r+1}, v{u+r+1}", sets))
                    fill.append((nb, "v", f"v_cvt_pk_bf16_f32 v{g+r}, v{g+r}, v{g+r+1}", sets))
                    fill.append((nb, "v", f"v_accvgpr_write_b32 a{H + 4*(u0 + r//8) + (r%8)//2}, v{g+r}", sets))
        elif p[0] == "q":
            sets = p[1]
            q0, q1, q2 = vRq
            fill.append((nb, "v", f"v_accvgpr_read_b32 v{q0}, a{aSt+4}", sets))
            fill.append((nb, "v", f"v_accvgpr_read_b32 v{q1}, a{aSt+5}", sets))
            fill.append((nb, "v", f"v_accvgpr_read_b32 v{q2}, a{aSt+7}", sets))
            for G0 in range(0, 28, 2):
                t = G0 // 8; jj = (G0 % 8) // 2
                base = ACC[t//2] + 16*(t%2) + 4*jj
                sc = f"v{q2}" if G0 == 8 else f"s{sSc[G0//9]}"
                for r in range(4):
                    fill.append((nb, "v", f"v_mul_f32 v{base+r}, {sc}, v{base+r}", sets))
                fill.append((nb, "v", f"v_cvt_pk_bf16_f32 v{base}, v{base}, v{base+1}", sets))
                fill.append((nb, "v", f"v_cvt_pk_bf16_f32 v{base+1}, v{base+2}, v{base+3}", sets))
                if G0 % 4 == 0:
                    fill.append((nb, "s", f"s_add_u32 s{sPst}, s{sQst}, {G0*1024}", sets))
                va = q1 if G0 == 26 else q0
                def stq(base=base, va=va, G0=G0):
                    st_tok["q"] = a.vm(f"buffer_store_dwordx2 v[{base}:{base+1}], v{va}, s[{SWS}:{SWS+3}], s{sPst} offen offset:{(G0%4)*1024} sc1")
                    if G0 == 26: st_tok["qdone"] = st_tok["q"]
                fill.append((nb, "f", stq, sets))
            for i in range(3):
                fill.append((nb, "v", f"v_accvgpr_read_b32 v{vS[i]}, a{aSt+i}", sets))
            def pubq():
                q0, q1, q2 = vRq
                a.i(f"s_lshl_b32 s{sT0}, s{sR}, 4"); a.i(f"s_add_u32 s{sT0}, s{sT0}, s{sS}")
                a.i(f"s_lshl_b32 s{sT0}, s{sT0}, 7"); a.i(f"s_add_u32 s{sT0}, s{sT0}, {FLAG_BASE}")
                a.i(f"v_mov_b32 v{q0}, s{sTag}"); a.i(f"v_mov_b32 v{q1}, 0")
                a.vm(f"buffer_store_dword v{q0}, v{q1}, s[{SWS}:{SWS+3}], s{sT0} offen sc1")
            pub.append((lambda: st_tok.get("qdone"), pubq))
        else:
            acc2, c2 = p[1][0], p[2]; sets = p[1]
            for txt in (f"s_mul_i32 s{sT0}, s{sR}, {9*128}", f"s_add_u32 s{sT0}, s{sT0}, s{sColTab+c2}",
                        f"s_lshl_b32 s{sT0}, s{sT0}, 11", f"s_lshl_b32 s{sT1}, s{sW}, 4", f"s_add_u32 s{sT1}, s{sT1}, s{sS}",
                        f"s_lshl_b32 s{sT1}, s{sT1}, 11", f"s_add_u32 s{sPst}, s{sT0}, s{sT1}"):
                fill.append((nb, "s", txt, sets))
            for q in range(4):
                if q == 2: fill.append((nb, "s", f"s_add_u32 s{sPst}, s{sPst}, {4*16*2048}", sets))
                for r in range(4):
                    fill.append((nb, "v", f"v_cvt_pk_bf16_f32 v{acc2+8*q+r}, v{acc2+8*q+2*r}, v{acc2+8*q+2*r+1}", sets))
                fill.append((nb, "m", f"buffer_store_dwordx4 v[{acc2+8*q}:{acc2+8*q+3}], v{vT0}, s[{SWS}:{SWS+3}], s{sPst} offen offset:{1024*(q%2)}", sets))

    def hook0(cur):
        a.i(f"v_mov_b32 v{vT0}, {TAG_LDS}")
        a.i(f"s_cmp_lg_u32 s{sW}, 0")
        a.i("s_cbranch_scc1 L_notagw")
        a.i(f"ds_write_b32 v{vT0}, v{vCs}")
        a.label("L_notagw")
    hooks[0] = hook0
    tagtok = {}
    def hook2(cur):
        tagtok[0] = a.ds(f"ds_read_b32 v{vT1}, v{vT0}")
    hooks[2] = hook2
    def hook3(cur):
        a.wait(lg=tagtok[0])
        a.i(f"v_readfirstlane_b32 s{sTag}, v{vT1}")
    hooks[3] = hook3
    ktok = {}
    def hook_poll_issue(cur):
        q0, q1, q2 = vRq
        a.i(f"v_accvgpr_read_b32 v{q0}, a{aSt+3}")
        ktok["poll"] = a.vm(f"buffer_load_dword v{q1}, v{q0}, s[{SWS}:{SWS+3}], 0 offen sc1")
    def hook_poll_check(cur):
        q0, q1, q2 = vRq
        a.wait(vm=ktok["poll"])
        a.i(f"v_cmp_ne_u32 vcc, s{sTag}, v{q1}")
        a.i("s_nop 0")
        a.i("s_cmp_lg_u64 vcc, 0")
        a.i("s_cbranch_scc1 L_spin1")
        a.label("L_back1")
        spin_blocks.append(("L_spin1", "L_back1", q0, q1))
        nb = cur
        fill.append((nb, "v", f"v_lshlrev_b32 v{q2}, 4, v{vLane}", []))
        for r2 in range(3):
            for ii in range(5):
                if ii % 2 == 0: fill.append((nb, "s", f"s_add_u32 s{sPst}, s{sKV[r2]}, {2048*ii}", []))
                d = KVS + 4*(5*r2 + ii)
                def ld(d=d, ii=ii):
                    ktok["kv"] = a.vm(f"buffer_load_dwordx4 a[{d}:{d+3}], v{q2}, s[{SWS}:{SWS+3}], s{sPst} offen offset:{2048*(ii%2)} sc1")
                fill.append((nb, "f", ld, []))
        fill.append((nb, "v", f"v_accvgpr_read_b32 v{q0}, a{aSt+4}", []))
        fill.append((nb, "v", f"v_and_b32 v{q1}, 0x3ff, v{q0}", []))
        fill.append((nb, "v", f"v_lshlrev_b32 v{q0}, 1, v{q0}", []))
        fill.append((nb, "v", f"v_sub_u32 v{q0}, v{q0}, v{q1}", []))
        fill.append((nb, "m", f"buffer_load_dwordx2 a[{aQ}:{aQ+1}], v{q0}, s[{SWS}:{SWS+3}], s{sQld} offen sc1", []))
        fill.append((nb, "m", f"buffer_load_dwordx2 a[{aQ+2}:{aQ+3}], v{q0}, s[{SWS}:{SWS+3}], s{sQld} offen offset:1024 sc1", []))
        fill.append((nb, "s", f"s_add_u32 s{sPst}, s{sQld}, 4096", []))
        fill.append((nb, "m", f"buffer_load_dwordx2 a[{aQ+4}:{aQ+5}], v{q0}, s[{SWS}:{SWS+3}], s{sPst} offen offset:1024 sc1", []))
        fill.append((nb, "m", f"buffer_load_dwordx2 a[{aQ+6}:{aQ+7}], v{q0}, s[{SWS}:{SWS+3}], s{sPst} offen offset:2048 sc1", []))
        def ldy():
            ktok["q"] = a.vm(f"buffer_load_dwordx2 a[{aQ+8}:{aQ+9}], v{q1}, s[{SWS}:{SWS+3}], s{sPst} offen sc1")
        fill.append((nb, "f", ldy, []))
    hooks[22] = hook_poll_issue
    hooks[25] = hook_poll_check
    def hook_kvwrite(cur):
        q0, q1, q2 = vRq
        assert "q" in ktok
        a.wait(vm=ktok["q"])
        a.i(f"s_bitcmp1_b32 s{sW}, 0")
        a.i("s_cbranch_scc0 L_nospec")
        for r2 in range(3):
            d = KVS + 4*(5*r2 + 4)
            a.i(f"s_cmp_ge_u32 s{sR}, {2-r2}")
            a.i(f"s_cselect_b32 s{sT0}, 0, 0xf149")
            a.i(f"s_cmp_ge_u32 s{sW}, 2")
            a.i(f"s_cselect_b32 s{sT0}, 0x3f803f80, s{sT0}")
            a.i(f"s_cselect_b32 s{sT1}, 0x3f803f80, 0")
            a.i(f"v_accvgpr_write_b32 a{d}, s{sT0}"); a.i(f"v_accvgpr_write_b32 a{d+1}, s{sT1}")
            a.i(f"v_accvgpr_write_b32 a{d+2}, s{sT0}"); a.i(f"v_accvgpr_write_b32 a{d+3}, s{sT1}")
        a.label("L_nospec")
        a.i(f"v_accvgpr_read_b32 v{q0}, a{aSt+6}")
        for r2 in range(3):
            for ii in range(5):
                d = KVS + 4*(5*r2 + ii)
                fill.append((cur, "d", f"ds_write_b128 v{q0}, a[{d}:{d+3}] offset:{r2*RS + 2*ii*GS}", []))
    hooks[31] = hook_kvwrite

    def dma_after_QA(k):
        if k + 4 <= 32: return [k + 4]
        if k == 32: return [36]
        return []
    stream(list(range(33)), dma_after_QA)
    astamp("P:aend"); astamp("A:end"); astamp("T:0")

    a.i("s_waitcnt lgkmcnt(0)"); a.lg_done = a.lg_issued
    a.i("s_barrier")
    astamp("T:bar")
    emit_dma(37); emit_dma(38)
    astamp("T:dma")
    S = 0
    OA, OB = ACC[0], ACC[0]+16
    MF, ML = ACC[1], ACC[1]+16
    TB = ACC[2]
    aKX = [TB+0, TB+1, TB+2, TB+3]; aKY = [TB+4, TB+5, TB+6, TB+7]
    aVA = [TB+8, TB+9, TB+10, TB+11]; aVB = [TB+12, TB+13, TB+14, TB+15]
    QYA = TB+16; QYB = TB+20
    mx = TB+24; nmx = TB+26
    w0, w1, w2, w3 = TB+28, TB+29, TB+30, TB+31
    a.i(f"v_and_b32 v{w0}, 31, v{vLane}")
    a.i(f"v_lshrrev_b32 v{w1}, 5, v{vLane}")
    a.i(f"v_lshlrev_b32 v{w2}, 3, v{w0}")
    a.i(f"v_mul_u32_u24 v{w3}, {2*GS}, v{w1}")
    a.i(f"v_add_u32 v{aKX[0]}, v{w2}, v{w3}")
    a.i(f"v_mul_u32_u24 v{w3}, {5*GS}, v{w1}")
    a.i(f"v_add3_u32 v{aKY[0]}, v{w2}, v{w3}, 0")
    a.i(f"v_add_u32 v{aKY[0]}, {4*GS}, v{aKY[0]}")
    a.i(f"v_bfe_u32 v{w2}, v{vLane}, 4, 1")
    a.i(f"v_and_b32 v{w3}, 3, v{vLane}")
    a.i(f"v_lshl_add_u32 v{w2}, v{w2}, 2, v{w3}")
    a.i(f"v_cmp_gt_u32 vcc, 5, v{w2}")
    a.i(f"v_mov_b32 v{w3}, 9")
    a.i("s_nop 0")
    a.i(f"v_cndmask_b32 v{aVA[0]}, v{w3}, v{w2}, vcc")
    a.i(f"v_cmp_gt_u32 vcc, 4, v{w2}")
    a.i(f"v_add_u32 v{w3}, 5, v{w2}")
    a.i("s_nop 0")
    a.i(f"v_cndmask_b32 v{aVB[0]}, v{aVA[0]}, v{w3}, vcc")
    a.i(f"v_bfe_u32 v{w2}, v{vLane}, 2, 2")
    a.i(f"v_lshl_add_u32 v{w2}, v{w1}, 2, v{w2}")
    a.i(f"v_lshlrev_b32 v{w2}, 3, v{w2}")
    a.i(f"v_add_u32 v{w2}, {10*GS}, v{w2}")
    a.i(f"v_mul_u32_u24 v{aVA[0]}, {GS}, v{aVA[0]}"); a.i(f"v_add_u32 v{aVA[0]}, v{aVA[0]}, v{w2}")
    a.i(f"v_mul_u32_u24 v{aVB[0]}, {GS}, v{aVB[0]}"); a.i(f"v_add_u32 v{aVB[0]}, v{aVB[0]}, v{w2}")
    for b in (3, 2, 1, 0):
        a.i(f"s_add_u32 s{sT0}, s{sW}, {b}")
        a.i(f"s_lshr_b32 s{sT1}, s{sT0}, 2"); a.i(f"s_mul_i32 s{sT1}, s{sT1}, {RS}")
        a.i(f"s_and_b32 s{sT0}, s{sT0}, 3"); a.i(f"s_lshl_b32 s{sT0}, s{sT0}, 8")
        a.i(f"s_add_u32 s{sT0}, s{sT0}, s{sT1}"); a.i(f"s_add_u32 s{sT0}, s{sT0}, {TBASE}")
        for arr in (aKX, aKY, aVA, aVB):
            a.i(f"v_add_u32 v{arr[b]}, s{sT0}, v{arr[0]}")
    kyt = {}
    for j in range(9):
        kyt[j] = a.ds(f"ds_read_b64 a[{KY+4*j}:{KY+4*j+1}], v{aKY[j%4]} offset:{(j//4)*RS}")
    for j in range(9):
        a.i(f"v_accvgpr_write_b32 a{KY+4*j+2}, 0"); a.i(f"v_accvgpr_write_b32 a{KY+4*j+3}, 0")
    a.i(f"v_lshlrev_b32 v{w2}, 2, v{w1}")
    a.i(f"v_sub_u32 v{w2}, v{w0}, v{w2}")
    a.i(f"v_mov_b32 v{w3}, {f2u(-1e30)}")
    for r in range(16):
        c = 8*(r//4) + r % 4
        a.i(f"v_cmp_le_i32 vcc, {c}, v{w2}")
        a.i("s_nop 1")
        a.i(f"v_cndmask_b32 v{MF+r}, 0, v{w3}, vcc")
        a.i(f"v_cndmask_b32_e64 v{ML+r}, v{w3}, 0, vcc")
    a.i(f"v_accvgpr_read_b32 v{w2}, a{aQ+8}"); a.i(f"v_accvgpr_read_b32 v{w3}, a{aQ+9}")
    a.i(f"v_cmp_eq_u32 vcc, 0, v{w1}")
    a.i(f"v_mov_b32 v{QYA+1}, 0x3f80")
    a.i("s_nop 0")
    a.i(f"v_cndmask_b32 v{QYA}, v{QYA+1}, v{w2}, vcc")
    a.i(f"v_cndmask_b32_e64 v{QYB}, v{QYA+1}, 0, vcc")
    a.i(f"v_cndmask_b32 v{QYB+1}, 0, v{w3}, vcc")
    for r in (QYA+1, QYA+2, QYA+3, QYB+2, QYB+3): a.i(f"v_mov_b32 v{r}, 0")
    fbn = [0]
    def nextfb():
        fb = FR + 4*(fbn[0] % 8); fbn[0] += 1; return fb
    def rd_kx(hd, j):
        fb = nextfb(); o = (j//4)*RS + (5*GS if hd else 0)
        a.ds(f"ds_read_b64 a[{fb}:{fb+1}], v{aKX[j%4]} offset:{o}")
        return fb, a.ds(f"ds_read_b64 a[{fb+2}:{fb+3}], v{aKX[j%4]} offset:{o+GS}")
    def rd_v(hd, j, sp):
        fb = nextfb(); o = (j//4)*RS + 128*sp
        v = (aVB if hd else aVA)[j%4]
        a.ds(f"ds_read_b64_tr_b16 a[{fb}:{fb+1}], v{v} offset:{o}")
        return fb, a.ds(f"ds_read_b64_tr_b16 a[{fb+2}:{fb+3}], v{v} offset:{o+64}")
    def qk(hd, j, fr):
        fb, tk = fr
        a.wait(lg=max(tk, kyt[j]))
        c = f"v[{MF}:{MF+15}]" if j == 0 else (f"v[{ML}:{ML+15}]" if j == 8 else "0")
        d = f"v[{S+16*j}:{S+16*j+15}]"
        qx = aQ + (4 if hd else 0); qy = QYB if hd else QYA
        a.i(f"v_mfma_f32_32x32x16_bf16 {d}, a[{fb}:{fb+3}], a[{qx}:{qx+3}], {c}")
        a.i(f"v_mfma_f32_32x32x16_bf16 {d}, a[{KY+4*j}:{KY+4*j+3}], v[{qy}:{qy+3}], {d}")
    def maxtile(j, dst):
        b = S + 16*j
        o = []
        if j == 0:
            o.append(f"v_max3_f32 v{dst}, v{b}, v{b+1}, v{b+2}")
            o.append(f"v_max_f32 v{dst+1}, v{b+3}, v{b+4}")
            rest = list(range(5, 16))
            o.append(f"v_max_f32 v{dst+1}, v{dst+1}, v{b+15}"); rest = list(range(5, 15))
        else: rest = list(range(16))
        for n in range(0, len(rest), 2):
            dd = dst + (n//2) % 2
            o.append(f"v_max3_f32 v{dd}, v{b+rest[n]}, v{b+rest[n+1]}, v{dd}")
        return o
    def finmax(dst):
        a.i(f"v_max_f32 v{dst}, v{dst}, v{dst+1}")
        a.i(f"v_mov_b32 v{dst+1}, v{dst}")
        a.i("s_nop 1")
        a.i(f"v_permlane32_swap_b32 v{dst}, v{dst+1}")
        a.i("s_nop 1")
        a.i(f"v_max_f32 v{dst}, v{dst}, v{dst+1}")
        a.i(f"v_sub_f32 v{nmx}, 0, v{dst}")
        a.i(f"v_mov_b32 v{nmx+1}, v{nmx}")
    def exptile(j):
        b = S + 16*j
        for r in range(0, 16, 2):
            a.i(f"v_pk_add_f32 v[{b+r}:{b+r+1}], v[{b+r}:{b+r+1}], v[{nmx}:{nmx+1}]")
        for r in range(16):
            a.i(f"v_exp_f32 v{b+r}, v{b+r}")
        a.i("s_nop 0")
        for r in range(8):
            a.i(f"v_cvt_pk_bf16_f32 v{b+r}, v{b+2*r}, v{b+2*r+1}")
    def pv(hd, j, frs):
        o = OB if hd else OA
        for sp in range(2):
            fb, tk = frs[sp]
            a.wait(lg=tk)
            c = "0" if (j == 0 and sp == 0) else f"v[{o}:{o+15}]"
            b = S + 16*j + 4*sp
            a.i(f"v_mfma_f32_32x32x16_bf16 v[{o}:{o+15}], a[{fb}:{fb+3}], v[{b}:{b+3}], {c}")
    astamp("T:setup")
    fr = {}
    for j in range(3): fr[j] = rd_kx(0, j)
    a.i("s_nop 1")
    for j in range(9):
        qk(0, j, fr[j])
        if j + 3 < 9: fr[j+3] = rd_kx(0, j+3)
        if j >= 2:
            for t in maxtile(j-2, mx): a.i(t)
    a.i("s_nop 7")
    for t in maxtile(7, mx): a.i(t)
    a.i("s_nop 3")
    for t in maxtile(8, mx): a.i(t)
    finmax(mx)
    astamp("T:qkA")
    for j in range(9):
        vf = [rd_v(0, j, 0), rd_v(0, j, 1)]
        kf = rd_kx(1, j)
        exptile(j)
        if j >= 1:
            for t in maxtile(j-1, mx): a.i(t)
        else: a.i("s_nop 1")
        pv(0, j, vf)
        qk(1, j, kf)
    a.i("s_nop 7"); a.i("s_nop 3")
    for t in maxtile(8, mx): a.i(t)
    finmax(mx)
    astamp("T:expA")
    for j in range(9):
        vf = [rd_v(1, j, 0), rd_v(1, j, 1)]
        exptile(j)
        a.i("s_nop 1")
        pv(1, j, vf)
    a.i("s_nop 7"); a.i("s_nop 3")
    a.i(f"v_rcp_f32 v{w2}, v{OA+12}"); a.i(f"v_rcp_f32 v{w3}, v{OB+12}")
    a.i("s_nop 0")
    for r in list(range(10)): a.i(f"v_mul_f32 v{OA+r}, v{w2}, v{OA+r}")
    for r in list(range(8)) + [10, 11]: a.i(f"v_mul_f32 v{OB+r}, v{w3}, v{OB+r}")
    for i in range(4):
        a.i(f"v_cvt_pk_bf16_f32 v{OA+i}, v{OA+2*i}, v{OA+2*i+1}")
        a.i(f"v_cvt_pk_bf16_f32 v{OB+i}, v{OB+2*i}, v{OB+2*i+1}")
        a.i(f"v_accvgpr_write_b32 a{H+72+i}, v{OA+i}")
        a.i(f"v_accvgpr_write_b32 a{H+76+i}, v{OB+i}")
    a.i(f"v_cvt_pk_bf16_f32 v{OA+8}, v{OA+8}, v{OA+9}")
    a.i(f"v_cvt_pk_bf16_f32 v{OB+10}, v{OB+10}, v{OB+11}")
    a.i(f"v_cmp_eq_u32 vcc, 0, v{w1}")
    a.i("s_nop 1")
    a.i(f"v_cndmask_b32 v{OA+8}, 0, v{OA+8}, vcc")
    a.i(f"v_cndmask_b32 v{OB+10}, 0, v{OB+10}, vcc")
    a.i(f"v_accvgpr_write_b32 a{H+80}, v{OA+8}"); a.i(f"v_accvgpr_write_b32 a{H+81}, v{OB+10}")
    a.i(f"v_accvgpr_write_b32 a{H+82}, 0"); a.i(f"v_accvgpr_write_b32 a{H+83}, 0")
    a.i(f"v_lshlrev_b32 v{vT0}, 4, v{vLane}")
    astamp("P:tend"); astamp("T:end")

    def dma_after_B(k):
        if k == 36: return [39, 40]
        return [k + 4] if k + 4 < KEND else []
    stream(list(range(KB0, KEND)), dma_after_B)
    astamp("P:bend"); astamp("B:end")
    a.i("s_waitcnt vmcnt(0)")
    astamp("P:done")
    if stamps:
        a.i(f"s_lshl_b32 s{sT0}, s2, 2"); a.i(f"s_add_u32 s{sT0}, s{sT0}, s{sW}"); a.i(f"s_lshl_b32 s{sT0}, s{sT0}, 6")
        a.i(f"s_add_u32 s{sT0}, s{sT0}, {STAMP_OFF}")
        a.i(f"v_mov_b32 v1, 0")
        for n in range(len(stl)):
            a.i(f"buffer_store_dword a{244+n}, v1, s[{SWS}:{SWS+3}], s{sT0} offen offset:{4*n}")
        a.i("s_memrealtime s[80:81]"); a.i("s_waitcnt lgkmcnt(0)"); a.i("v_accvgpr_write_b32 a255, s80")
        a.i(f"buffer_store_dword a254, v1, s[{SWS}:{SWS+3}], s{sT0} offen offset:56")
        a.i(f"buffer_store_dword a255, v1, s[{SWS}:{SWS+3}], s{sT0} offen offset:60")
        print("stamps:", stl, file=sys.stderr)
    a.label("L_end")
    a.i("s_endpgm")
    for (ls, lb, va, vf) in spin_blocks:
        a.label(ls)
        a.i("s_sleep 2")
        a.i(f"buffer_load_dword v{vf}, v{va}, s[{SWS}:{SWS+3}], 0 offen sc1")
        a.i(f"s_sub_u32 s{sBound}, s{sBound}, 1")
        a.i(f"s_cbranch_scc1 {lb}")
        a.i("s_waitcnt vmcnt(0)")
        a.i(f"v_cmp_ne_u32 vcc, s{sTag}, v{vf}")
        a.i("s_nop 0")
        a.i("s_cmp_lg_u64 vcc, 0")
        a.i(f"s_cbranch_scc1 {ls}")
        a.i(f"s_branch {lb}")
    body = [l.replace("CODE_LAST", "0x1000") for l in a.lines]
    if do_align: body, nf, nn, size = align8(body)
    else: size = sum(sizes_of(body)); nf = nn = 0
    body = [l.replace("v_min_u32 v%d, 0x1000," % vT0, "v_min_u32 v%d, %d," % (vT0, (size - 64) & ~15)) for l in body]
    print(f"main: code {size} bytes, e64 fixes {nf}, nops {nn}", file=sys.stderr)
    return body

def gen_reduce():
    a = Asm()
    a.i("s_cmp_ge_u32 s2, 576"); a.i("s_cbranch_scc1 L_end2")
    a.i("s_load_dwordx2 s[4:5], s[0:1], 0")
    a.i("s_load_dwordx2 s[6:7], s[0:1], 56")
    a.i("s_load_dwordx2 s[8:9], s[0:1], 72")
    a.i("v_lshrrev_b32 v3, 7, v0")
    a.i("v_and_b32 v1, 127, v0")
    a.i("v_readfirstlane_b32 s30, v3")
    a.i("v_lshlrev_b32 v1, 4, v1")
    a.i("s_lshl_b32 s31, s2, 1"); a.i("s_add_u32 s31, s31, s30")
    a.i("s_lshl_b32 s3, s31, 15")
    a.i("s_waitcnt lgkmcnt(0)")
    for d, p, n in ((12, 4, 2048*1152), (16, 6, 2048*1152), (20, 8, WS_BYTES)):
        a.i(f"s_mov_b32 s{d}, s{p}"); a.i(f"s_mov_b32 s{d+1}, s{p+1}"); a.i(f"s_mov_b32 s{d+2}, {n}"); a.i(f"s_mov_b32 s{d+3}, 0x00020000")
    toks = []
    for s in range(16):
        a.i(f"s_add_u32 s24, s3, {s*2048}")
        toks.append(a.vm(f"buffer_load_dwordx4 v[{16+4*s}:{19+4*s}], v1, s[20:23], s24 offen"))
    a.i("s_lshr_b32 s25, s31, 2")
    a.i("s_and_b32 s26, s31, 3")
    a.i("s_mul_hi_u32 s27, s25, 0x0e38e38f")
    a.i("s_mul_i32 s28, s27, 18")
    a.i("s_sub_u32 s28, s25, s28")
    a.i("s_lshl_b32 s27, s27, 2"); a.i("s_add_u32 s27, s27, s26"); a.i(f"s_mul_i32 s27, s27, {32*1152}")
    a.i("s_lshl_b32 s28, s28, 6"); a.i("s_add_u32 s27, s27, s28")
    a.i("v_and_b32 v2, 31, v0"); a.i("v_mul_u32_u24 v2, 1152, v2")
    a.i("v_bfe_u32 v3, v0, 6, 1"); a.i("v_lshl_add_u32 v2, v3, 5, v2")
    a.i("v_bfe_u32 v3, v0, 5, 1"); a.i("v_lshl_add_u32 v2, v3, 3, v2")
    tx0 = a.vm("buffer_load_dwordx2 v[4:5], v2, s[12:15], s27 offen")
    tx1 = a.vm("buffer_load_dwordx2 v[6:7], v2, s[12:15], s27 offen offset:16")
    a.i("s_mov_b32 s29, 0xffff0000")
    for s in range(16):
        a.wait(vm=toks[s])
        for i in range(4):
            x = 16 + 4*s + i
            if s == 0:
                a.i(f"v_lshlrev_b32 v{8+2*i}, 16, v{x}"); a.i(f"v_and_b32 v{9+2*i}, s29, v{x}")
            else:
                a.i(f"v_lshlrev_b32 v80, 16, v{x}"); a.i(f"v_and_b32 v81, s29, v{x}")
                a.i(f"v_add_f32 v{8+2*i}, v{8+2*i}, v80"); a.i(f"v_add_f32 v{9+2*i}, v{9+2*i}, v81")
    a.wait(vm=tx1)
    for i in range(4):
        x = 4 + i
        a.i(f"v_lshlrev_b32 v80, 16, v{x}"); a.i(f"v_and_b32 v81, s29, v{x}")
        a.i(f"v_add_f32 v{8+2*i}, v{8+2*i}, v80"); a.i(f"v_add_f32 v{9+2*i}, v{9+2*i}, v81")
        a.i(f"v_cvt_pk_bf16_f32 v{x}, v{8+2*i}, v{9+2*i}")
    a.vm("buffer_store_dwordx2 v[4:5], v2, s[16:19], s27 offen")
    a.vm("buffer_store_dwordx2 v[6:7], v2, s[16:19], s27 offen offset:16")
    a.label("L_end2")
    a.i("s_endpgm")
    return a.lines

def kd(name, nv, acc, ns=102):
    return f""".amdhsa_kernel {name}
  .amdhsa_next_free_vgpr {nv}
  .amdhsa_next_free_sgpr {ns}
  .amdhsa_accum_offset {acc}
  .amdhsa_group_segment_fixed_size 0
  .amdhsa_kernarg_size 80
  .amdhsa_user_sgpr_count 2
  .amdhsa_user_sgpr_kernarg_segment_ptr 1
  .amdhsa_system_sgpr_workgroup_id_x 1
  .amdhsa_float_denorm_mode_32 3
.end_amdhsa_kernel
"""

def whole(**kw):
    m = gen(**kw); r = gen_reduce()
    s = f"; @launch kernel=main_kernel grid=(256,1,1) block=(256,1,1) lds={LDS_BYTES}\n"
    s += f"; @launch kernel=red_kernel grid=(576,1,1) block=(256,1,1) lds=0\n"
    s += '.amdgcn_target "amdgcn-amd-amdhsa--gfx950"\n.text\n'
    s += ".globl main_kernel\n.p2align 8\n.type main_kernel,@function\nmain_kernel:\n" + "\n".join(m) + "\n"
    s += ".globl red_kernel\n.p2align 8\n.type red_kernel,@function\nred_kernel:\n" + "\n".join(r) + "\n"
    s += '.section .rodata,"a"\n.p2align 6\n' + kd("main_kernel", 512, 256) + ".p2align 6\n" + kd("red_kernel", 88, 88, 40)
    return s

if __name__ == "__main__":
    kw = {}
    for x in sys.argv[2:]:
        k, v = x.split("="); kw[k] = eval(v)
    open(sys.argv[1], "w").write(whole(**kw))
```

```python
import sys, struct, math
from asmlib import *
from collections import deque

KN = "parallel_sum__sliding_block__glu_gated_bilinear__prompt_kernel"
QS = 6176; SLOT = 4 * QS; NS = 6
LDS_BYTES = 163840
XS = 98304
TAG_LDS = NS * SLOT + 64
QKV_BASE = 0x2400000
QF_BASE = 0x2C00000; HF_BASE = 0x2C10000; PF_BASE = 0x2C40000
EPOCH_OFF = 0x2D00000
HX_BASE = 0x3000000; HXS = 21504
STAMP_OFF = 0x6000000
WS_BYTES = 268435456
OOB = 0x20000000
GS = 3136; TBASE = 3 * SLOT
TAGC = 0x9E3779B8
def f2u(f): return "0x%08x" % struct.unpack("<I", struct.pack("<f", f))[0]
MF = "v_mfma_f32_16x16x32_bf16"

def gen(D=6, stamps=None, rt=False, gap=7, lg_rpx=4, krot=True, normil=True, l2pf=True, pfs=6, pd3=30, ep=(3, 11)):
    a = Asm()
    SX, SG, SU, SD, SWS, SQKV, SO, SDBG, SOUT = 4, 8, 12, 16, 20, 24, 28, 32, 36
    sPF = 3
    sCol = [40, 41, 42, 43, 44]
    sSc = [45, 46, 47]; sKV = [48, 49, 50]
    sTag, sE, sBound, sQst, sQld = 51, 52, 53, 54, 55
    sW, sS, sR = 56, 57, 58
    sPair = [59, 60, 61, 62]; sSing = 63
    sMq, sI = 64, 65
    sOff, sT0, sT1, sT2, sT3 = 66, 67, 68, 69, 70
    sXrow, sPst, sM4 = 71, 72, 73
    sOff2 = 73
    sPC = 74; sHst, sHld = 74, 75
    sC0, sC1, sQcol, sPbase = 76, 77, 78, 79
    sStamp = 80; sPo = [82, 83]
    KA = 84
    sKo = [84, 85, 86, 87, 88]; sKp = [89, 90, 91, 92, 93]; sAo, sAp = 94, 95
    sKr9 = [96, 97, 98]; sKr3 = [99, 100, 101]
    XN = 0; ACC = [144, 176, 208]
    vRd = [240, 241, 242]; vA = [243, 244, 245]; vS = [246, 247, 248]
    q0, q1, q2 = 249, 250, 251
    vT0, vT1, vL16, vLane = 252, 253, 254, 255
    H, HP, HB, FR = 0, 80, 160, 168
    KVS, aQ = 128, 136
    NB = 8; assert D <= 7
    stash = {}
    def st(name, n=1):
        if name not in stash:
            stash[name] = st.next; st.next += n; assert st.next <= 238
        return stash[name]
    st.next = 200
    SEL = 238
    stl = []
    def astamp(name):
        if stamps is None or name.split(":")[0] not in stamps: return
        n = len(stl); assert n < 10
        a.i("s_waitcnt lgkmcnt(0)"); a.lg_done = a.lg_issued
        a.i(f"{'s_memrealtime' if rt else 's_memtime'} s[{sStamp}:{sStamp+1}]")
        a.i("s_waitcnt lgkmcnt(0)")
        a.i(f"v_accvgpr_write_b32 a{244+n}, s{sStamp}")
        stl.append(name)
    def srd(d, p, nbytes, back=0):
        if back:
            a.i(f"s_sub_u32 s{d}, s{p}, {back}"); a.i(f"s_subb_u32 s{d+1}, s{p+1}, 0")
        else:
            a.i(f"s_mov_b32 s{d}, s{p}"); a.i(f"s_mov_b32 s{d+1}, s{p+1}")
        a.i(f"s_mov_b32 s{d+2}, {nbytes + back}"); a.i(f"s_mov_b32 s{d+3}, 0x00020000")
    WS = f"s[{SWS}:{SWS+3}]"

    a.i("s_cmp_ge_u32 s2, 256")
    a.i("s_cbranch_scc1 L_end")
    if stamps: a.i("s_memrealtime s[36:37]")
    a.i(f"s_load_dwordx16 s[{KA}:{KA+15}], s[0:1], 0")
    a.i(f"s_load_dwordx4 s[80:83], s[0:1], 64")
    a.i(f"s_getpc_b64 s[{sPC}:{sPC+1}]")
    a.i(f"s_lshr_b32 s{sT0}, s2, 3")
    a.i(f"s_lshl_b32 s{sT0}, s{sT0}, 12")
    a.i(f"v_lshlrev_b32 v{vT0}, 4, v0")
    a.i(f"v_add_u32 v{vT0}, s{sT0}, v{vT0}")
    a.i(f"v_min_u32 v{vT0}, CODE_LAST, v{vT0}")
    a.vm(f"global_load_dwordx4 a[{KVS}:{KVS+3}], v{vT0}, s[{sPC}:{sPC+1}]")
    a.i(f"v_lshrrev_b32 v{vT1}, 6, v0")
    a.i(f"v_and_b32 v{vLane}, 63, v0")
    a.i(f"v_readfirstlane_b32 s{sW}, v{vT1}")
    lg = lg_rpx; nsl = 32 >> lg
    a.i(f"s_and_b32 s{sR}, s2, {(16 >> lg) - 1}"); a.i(f"s_lshl_b32 s{sR}, s{sR}, {lg}")
    a.i(f"s_lshr_b32 s{sT0}, s2, {8 - lg}"); a.i(f"s_add_u32 s{sR}, s{sR}, s{sT0}")
    a.i(f"s_bfe_u32 s{sS}, s2, {hex(((lg - 1) << 16) | (4 - lg))}"); a.i(f"s_lshl_b32 s{sS}, s{sS}, {5 - lg}")
    a.i(f"s_bfe_u32 s{sT0}, s2, {hex(((5 - lg) << 16) | 3)}"); a.i(f"s_add_u32 s{sS}, s{sS}, s{sT0}")
    sRot = sT3
    if krot:
        a.i(f"s_lshr_b32 s{sT0}, s{sR}, 2"); a.i(f"s_add_u32 s{sT0}, s{sT0}, s{sS}")
        a.i(f"s_mul_hi_u32 s{sT1}, s{sT0}, 0x55555556"); a.i(f"s_mul_i32 s{sT1}, s{sT1}, 3"); a.i(f"s_sub_u32 s{sRot}, s{sT0}, s{sT1}")
    else: a.i(f"s_mov_b32 s{sRot}, 0")
    sRk = [45, 46, 47]
    for stg in range(3):
        a.i(f"s_add_u32 s{sRk[stg]}, s{sRot}, {stg}")
        a.i(f"s_cmp_ge_u32 s{sRk[stg]}, 3"); a.i(f"s_cselect_b32 s{sT0}, 3, 0"); a.i(f"s_sub_u32 s{sRk[stg]}, s{sRk[stg]}, s{sT0}")
    vX = [ACC[2]+i for i in range(4)]; vXr = [ACC[2]+4, ACC[2]+5]
    t0, t1, t2, t3 = ACC[2]+8, ACC[2]+9, ACC[2]+10, ACC[2]+11
    a.i(f"v_lshrrev_b32 v{t0}, 3, v{vLane}")
    a.i(f"v_and_b32 v{t1}, 7, v{vLane}")
    for j in range(4):
        a.i(f"v_add_u32 v{t2}, {8*j}, v{t0}")
        a.i(f"v_bfe_u32 v{t3}, v{t2}, 1, 3")
        a.i(f"v_xor_b32 v{t3}, v{t3}, v{t1}")
        a.i(f"v_mul_u32_u24 v{t2}, 1152, v{t2}")
        a.i(f"v_lshl_add_u32 v{vX[j]}, v{t3}, 4, v{t2}")
        if j: a.i(f"v_subrev_u32 v{vX[j]}, {1024*j}, v{vX[j]}")
    a.i(f"s_lshl_b32 s{sXrow}, s{sR}, 2")
    a.i(f"s_add_u32 s{sXrow}, s{sXrow}, s{sW}")
    a.i(f"s_mul_i32 s{sXrow}, s{sXrow}, {32*1152}")
    sXk = [40, 41, 42]
    for stg in range(3):
        a.i(f"s_mul_i32 s{sXk[stg]}, s{sRk[stg]}, 384"); a.i(f"s_add_u32 s{sXk[stg]}, s{sXk[stg]}, s{sXrow}")
    a.i(f"s_lshl_b32 s{sM4}, s{sW}, 12")
    a.i("s_waitcnt lgkmcnt(0)")
    if stamps: a.i("v_accvgpr_write_b32 a254, s36")
    srd(SX, KA+0, 2048*1152)
    xtok = {}
    def xdma(ch):
        a.i(f"s_add_u32 m0, s{sM4}, {XS + 16384*(ch%4)}")
        a.i(f"s_add_u32 s{sOff}, s{sXk[ch//3]}, {128*(ch%3)}")
        for j in range(4):
            xtok[ch] = a.vm(f"buffer_load_dwordx4 v{vX[j]}, s[{SX}:{SX+3}], s{sOff} offen offset:{1024*j} lds")
    for ch in range(3): xdma(ch)
    srd(SQKV, KA+2, 576*3456); srd(SO, KA+4, 576*1152, back=2048)
    srd(SG, KA+8, 576*9216); srd(SU, KA+10, 576*9216); srd(SD, KA+12, 4608*1152, back=2048)
    srd(SOUT, KA+14, 2048*1152)
    srd(SDBG, 80, 256); srd(SWS, 82, WS_BYTES)
    a.i(f"s_add_u32 s82, s82, {EPOCH_OFF}"); a.i("s_addc_u32 s83, s83, 0")
    a.i(f"s_load_dword s{sE}, s[82:83], 0")
    xdma(3)
    astamp("P:start")
    vn, vq, rho, tt, pc = ACC[2]+12, ACC[2]+13, ACC[2]+14, ACC[2]+15, ACC[2]+16
    vCs = ACC[2]+18
    a.i(f"v_and_b32 v{vn}, 15, v{vLane}"); a.i(f"v_lshrrev_b32 v{vq}, 4, v{vLane}")
    a.i(f"v_bfe_u32 v{rho}, v{vLane}, 2, 3"); a.i(f"v_lshrrev_b32 v{tt}, 5, v{vLane}")
    a.i(f"v_and_b32 v{pc}, 3, v{vLane}"); a.i(f"v_lshlrev_b32 v{pc}, 4, v{pc}")
    a.i(f"v_lshlrev_b32 v{vL16}, 4, v{vLane}")
    a.i(f"v_lshrrev_b32 v{t1}, 1, v{vn}"); a.i(f"v_xor_b32 v{t1}, v{t1}, v{vq}")
    a.i(f"v_lshlrev_b32 v{t0}, 7, v{vn}")
    a.i(f"s_add_u32 s{sT0}, s{sM4}, {XS}"); a.i(f"v_add_u32 v{t0}, s{sT0}, v{t0}")
    a.i(f"v_lshl_add_u32 v{vXr[0]}, v{t1}, 4, v{t0}")
    a.i(f"v_xor_b32 v{t1}, 4, v{t1}"); a.i(f"v_lshl_add_u32 v{vXr[1]}, v{t1}, 4, v{t0}")
    for stg in range(3):
        a.i(f"s_mul_i32 s{sKr9[stg]}, s{sRk[stg]}, {192*9216}"); a.i(f"s_mul_i32 s{sKr3[stg]}, s{sRk[stg]}, {192*3456}")
    a.i(f"s_mul_i32 s{sQcol}, s{sS}, 216")
    for stg in range(3): a.i(f"s_add_u32 s{sKr3[stg]}, s{sKr3[stg]}, s{sQcol}")
    a.i(f"s_mul_i32 s{sMq}, s{sW}, {QS}")
    a.i(f"s_lshr_b32 s{sI}, s{sS}, 1")
    a.i(f"s_lshl_b32 s{sT0}, s{sW}, 3"); a.i(f"v_add_u32 v{t2}, s{sT0}, v{rho}")
    a.i(f"v_lshl_add_u32 v{t3}, v{tt}, 6, v{pc}")
    a.i(f"v_mul_u32_u24 v{vS[0]}, 3456, v{t2}"); a.i(f"v_add_u32 v{vS[0]}, v{vS[0]}, v{t3}")
    a.i(f"v_add_u32 v{vS[1]}, {32*3456-1024}, v{vS[0]}"); a.i(f"v_add_u32 v{vS[2]}, {64*3456-2048}, v{vS[0]}")
    a.i(f"v_mul_u32_u24 v{t0}, 9216, v{t2}"); a.i(f"v_add_u32 v{vA[0]}, v{t0}, v{t3}")
    a.i(f"v_add_u32 v{vA[1]}, {32*9216-1024}, v{vA[0]}"); a.i(f"v_add_u32 v{vA[2]}, {64*9216-2048}, v{vA[0]}")
    a.i("s_waitcnt lgkmcnt(0)")
    a.i(f"s_add_u32 s{sE}, s{sE}, {TAGC}"); a.i(f"s_or_b32 s{sE}, s{sE}, 1")
    a.i(f"v_mov_b32 v{vCs}, s{sE}"); a.i(f"v_mov_b32 v{vCs+1}, 0"); a.i(f"v_mov_b32 v{vCs+2}, 0")
    a.i(f"s_cmp_lg_u32 s{sW}, 0")
    a.i("s_cbranch_scc1 L_nocas")
    a.i("s_mov_b64 exec, 1")
    a.i(f"buffer_atomic_cmpswap v[{vCs}:{vCs+1}], v{vCs+2}, s[{SDBG}:{SDBG+3}], 0 offen sc0")
    a.i("s_mov_b64 exec, -1")
    a.label("L_nocas")

    setup = []
    def S_(fn): setup.append(fn)
    def su_single():
        a.i(f"v_mul_u32_u24 v{t1}, {32*9216}, v{tt}")
        a.i(f"v_add3_u32 v{t1}, v{t1}, v{t0}, v{pc}")
        for i in range(3):
            if i: a.i(f"v_add_u32 v{t1}, {64*9216-1024}, v{t1}")
            a.i(f"v_accvgpr_write_b32 a{st('sing',3)+i}, v{t1}")
        a.i(f"v_bfe_u32 v{t0}, v{vLane}, 2, 2"); a.i(f"v_lshlrev_b32 v{t1}, 6, v{t0}")
        a.i(f"v_and_b32 v{t0}, 3, v{vLane}"); a.i(f"v_lshl_add_u32 v{t1}, v{t0}, 3, v{t1}")
        a.i(f"v_mul_u32_u24 v{t0}, {QS}, v{vq}"); a.i(f"v_add_u32 v{vRd[0]}, v{t0}, v{t1}")
        a.i(f"v_add_u32 v{vRd[1]}, {2*SLOT}, v{vRd[0]}"); a.i(f"v_add_u32 v{vRd[2]}, {4*SLOT}, v{vRd[0]}")
    S_(su_single)
    def frows(sreg_s, dst):
        a.i(f"s_mul_i32 s{sT1}, s{sreg_s}, 288")
        a.i(f"s_and_b32 s{sT2}, s{sreg_s}, 1")
        a.i(f"s_lshl_b32 s{sT3}, s{sT2}, 5"); a.i(f"s_add_u32 s{sT3}, s{sT3}, s{sT1}")
        for j in range(4):
            a.i(f"s_add_u32 s{dst[j]}, s{sR}, {j}"); a.i(f"s_and_b32 s{dst[j]}, s{dst[j]}, 3")
            a.i(f"s_lshl_b32 s{dst[j]}, s{dst[j]}, 6"); a.i(f"s_add_u32 s{dst[j]}, s{dst[j]}, s{sT3}")
        a.i(f"s_xor_b32 s{sT2}, s{sT2}, 1"); a.i(f"s_lshl_b32 s{sT2}, s{sT2}, 8"); a.i(f"s_add_u32 s{dst[4]}, s{sT2}, s{sT1}")
    def su_rows():
        frows(sS, sKo)
        for j in range(4): a.i(f"s_lshl_b32 s{sPair[j]}, s{sKo[j]}, 1")
        a.i(f"s_lshl_b32 s{sSing}, s{sKo[4]}, 1")
        a.i(f"s_xor_b32 s{sT0}, s{sS}, 1")
        frows(sT0, sKp)
        for j in range(5):
            a.i(f"s_mul_i32 s{sKo[j]}, s{sKo[j]}, 1152"); a.i(f"s_mul_i32 s{sKp[j]}, s{sKp[j]}, 1152")
        a.i(f"s_mul_i32 s{sAo}, s{sS}, {36*1152}"); a.i(f"s_mul_i32 s{sAp}, s{sT0}, {36*1152}")
    S_(su_rows)
    def su_B():
        a.i(f"s_and_b32 s{sT0}, s{sI}, 1"); a.i(f"s_xor_b32 s{sT0}, s{sT0}, 1")
        a.i(f"v_xor_b32 v{t3}, s{sT0}, v{tt}"); a.i(f"v_lshlrev_b32 v{t3}, 6, v{t3}")
        a.i(f"v_and_b32 v{t0}, 3, v{rho}"); a.i(f"v_lshrrev_b32 v{t1}, 2, v{rho}")
        a.i(f"s_lshl_b32 s{sT1}, s{sW}, 2"); a.i(f"v_add_u32 v{t0}, s{sT1}, v{t0}")
        for name, hi in (("D", 16), ("Oa", 20)):
            a.i(f"v_mul_u32_u24 v{t2}, {hi}, v{t1}"); a.i(f"v_add_u32 v{t2}, v{t2}, v{t0}")
            a.i(f"v_mul_u32_u24 v{t2}, 1152, v{t2}"); a.i(f"v_add_u32 v{t2}, v{t2}, v{pc}")
            a.i(f"v_accvgpr_write_b32 a{st(name+'m')}, v{t2}")
            a.i(f"v_add_u32 v{t2}, v{t2}, v{t3}")
            a.i(f"v_accvgpr_write_b32 a{st(name)}, v{t2}")
        a.i(f"v_xor_b32 v{t2}, s{sS}, v{t1}"); a.i(f"v_mul_u32_u24 v{t2}, 36, v{t2}")
        a.i(f"v_and_b32 v{t0}, 3, v{rho}"); a.i(f"v_add3_u32 v{t2}, v{t2}, v{t0}, 16")
        a.i(f"v_mul_u32_u24 v{t2}, 1152, v{t2}"); a.i(f"v_add_u32 v{t2}, v{t2}, v{pc}")
        a.i(f"v_accvgpr_write_b32 a{st('Obm')}, v{t2}")
        a.i(f"v_add_u32 v{t2}, v{t2}, v{t3}")
        a.i(f"v_accvgpr_write_b32 a{st('Ob')}, v{t2}")
        a.i(f"s_and_b32 s{sT2}, s{sS}, 1")
        a.i(f"s_lshl_b32 s{sT1}, s{sR}, 1"); a.i(f"s_add_u32 s{sT1}, s{sT1}, s{sT2}")
        a.i(f"s_mul_i32 s{sPF}, s{sT1}, 20"); a.i(f"s_add_u32 s{sPF}, s{sPF}, s{sW}")
        a.i(f"s_lshl_b32 s{sPF}, s{sPF}, 6"); a.i(f"s_add_u32 s{sPF}, s{sPF}, {PF_BASE}")
        a.i(f"s_lshl_b32 s{sT1}, s{sR}, 4"); a.i(f"s_add_u32 s{sT1}, s{sT1}, s{sS}")
        a.i(f"s_lshl_b32 s{sT3}, s{sT1}, 2"); a.i(f"s_add_u32 s{sT3}, s{sT3}, s{sW}")
        a.i(f"s_mul_i32 s{sHst}, s{sT3}, {HXS}"); a.i(f"s_add_u32 s{sHst}, s{sHst}, {HX_BASE}")
        a.i(f"s_lshl_b32 s{sT1}, s{sT3}, 6"); a.i(f"s_add_u32 s{sT1}, s{sT1}, {HF_BASE}")
        a.i(f"v_accvgpr_write_b32 a{st('hfo')}, s{sT1}")
        a.i(f"s_xor_b32 s{sT3}, s{sT3}, 4")
        a.i(f"s_mul_i32 s{sHld}, s{sT3}, {HXS}"); a.i(f"s_add_u32 s{sHld}, s{sHld}, {HX_BASE}")
        a.i(f"s_lshl_b32 s{sT1}, s{sT3}, 6"); a.i(f"s_add_u32 s{sT1}, s{sT1}, {HF_BASE}")
        a.i(f"v_accvgpr_write_b32 a{st('hfp')}, s{sT1}")
        a.i(f"s_add_u32 s{sQcol}, s{sT1}, 8")
        a.i(f"s_mul_i32 s{sT3}, s{sT2}, {640 << 5}"); a.i(f"s_sub_u32 s{sT1}, s{sHld}, s{sT3}")
        a.i(f"s_lshl_b32 s{sT3}, s{sT0}, 11"); a.i(f"s_add_u32 s{sPo[0]}, s{sT1}, s{sT3}")
        a.i(f"s_xor_b32 s{sT3}, s{sT3}, 0x800"); a.i(f"s_add_u32 s{sPo[1]}, s{sT1}, s{sT3}")
        a.i(f"s_mul_i32 s{sT3}, s{sI}, {8*HXS}"); a.i(f"s_sub_u32 s{sPbase}, s{sHld}, s{sT3}")
        a.i(f"v_min_u32 v{t2}, 4, v{vLane}"); a.i(f"v_lshlrev_b32 v{t2}, 8, v{t2}"); a.i(f"v_add_u32 v{t2}, s{sPF}, v{t2}")
        a.i(f"s_lshl_b32 s{sT1}, s{sR}, 4"); a.i(f"s_add_u32 s{sT1}, s{sT1}, s{sS}")
        a.i(f"s_lshl_b32 s{sT3}, s{sT1}, 7"); a.i(f"s_add_u32 s{sT3}, s{sT3}, {QF_BASE}"); a.i(f"v_writelane_b32 v{t2}, s{sT3}, 6")
        a.i(f"s_lshl_b32 s{sT3}, s{sT1}, 8"); a.i(f"s_add_u32 s{sT3}, s{sT3}, {HF_BASE}"); a.i(f"v_writelane_b32 v{t2}, s{sT3}, 7")
        a.i(f"s_add_u32 s{sT3}, s{sT3}, 128"); a.i(f"v_writelane_b32 v{t2}, s{sT3}, 8")
        a.i(f"v_accvgpr_write_b32 a{st('pt')}, v{t2}")
    S_(su_B)
    def su_q():
        qc = 18 ** -0.5 * math.log2(math.e)
        a.i(f"s_mul_i32 s{sT0}, s{sS}, 3"); a.i(f"s_mov_b32 s{sT1}, {f2u(qc)}")
        for bb in range(3):
            a.i(f"s_cmp_lt_u32 s{sT0}, {16-bb}"); a.i(f"s_cselect_b32 s{sSc[bb]}, s{sT1}, 1.0")
        for name, lo, thr in (("sc2", 0, 1), ("sc4", 1, 2)):
            a.i(f"v_mov_b32 v{t0}, s{sSc[lo]}"); a.i(f"v_mov_b32 v{t1}, s{sSc[lo+1]}")
            a.i(f"v_cmp_le_u32 vcc, {thr}, v{vq}"); a.i("s_nop 1")
            a.i(f"v_cndmask_b32 v{t0}, v{t0}, v{t1}, vcc")
            a.i(f"v_accvgpr_write_b32 a{st(name)}, v{t0}")
        a.i(f"s_lshl_b32 s{sT0}, s{sW}, 8"); a.i(f"v_lshlrev_b32 v{t0}, 3, v{vn}"); a.i(f"v_add_u32 v{t0}, s{sT0}, v{t0}")
        a.i(f"v_lshl_add_u32 v{t1}, v{vq}, 10, v{t0}"); a.i(f"v_accvgpr_write_b32 a{st('stq')}, v{t1}")
        a.i(f"v_cmp_eq_u32 vcc, 3, v{vq}"); a.i(f"v_mov_b32 v{t2}, {OOB}"); a.i("s_nop 0")
        a.i(f"v_cndmask_b32 v{t1}, v{t1}, v{t2}, vcc"); a.i(f"v_accvgpr_write_b32 a{st('stq2')}, v{t1}")
        a.i(f"v_lshl_add_u32 v{t1}, v{vq}, 11, v{t0}"); a.i(f"v_accvgpr_write_b32 a{st('qA')}, v{t1}")
        a.i(f"v_lshl_add_u32 v{t1}, v{vq}, 1, 5")
        a.i(f"v_cmp_gt_u32 vcc, 2, v{vq}"); a.i(f"v_mov_b32 v{t2}, 4"); a.i("s_nop 0")
        a.i(f"v_cndmask_b32 v{t1}, v{t2}, v{t1}, vcc")
        a.i(f"v_lshl_add_u32 v{t1}, v{t1}, 10, v{t0}"); a.i(f"v_accvgpr_write_b32 a{st('qB')}, v{t1}")
        a.i(f"s_mul_i32 s{sT0}, s{sR}, 432")
        a.i(f"s_mul_i32 s{sT1}, s{sS}, 27"); a.i(f"s_add_u32 s{sT1}, s{sT1}, s{sT0}")
        a.i(f"s_lshl_b32 s{sT1}, s{sT1}, 10"); a.i(f"s_add_u32 s{sQst}, s{sT1}, {QKV_BASE}")
        a.i(f"s_mul_i32 s{sT1}, s{sS}, 9"); a.i(f"s_add_u32 s{sT1}, s{sT1}, s{sT0}")
        a.i(f"s_lshl_b32 s{sT1}, s{sT1}, 10"); a.i(f"s_add_u32 s{sQld}, s{sT1}, {QKV_BASE}")
        a.i(f"s_add_u32 s{sT2}, s{sW}, 144"); a.i(f"s_lshl_b32 s{sT2}, s{sT2}, 10"); a.i(f"s_add_u32 s{sT2}, s{sT2}, s{sQld}")
        for r2 in range(3):
            a.i(f"s_sub_u32 s{sT1}, s{sT2}, {(2-r2)*432*1024 + 1024*r2}")
            a.i(f"s_cmp_ge_u32 s{sR}, {2-r2}"); a.i(f"s_cselect_b32 s{sKV[r2]}, s{sT1}, {OOB}")
    S_(su_q)
    def su_flags():
        def flagoff(dst, badd, dr):
            a.i(f"s_add_u32 s{sT0}, s{sS}, {badd}"); a.i(f"s_mul_hi_u32 s{sT0}, s{sT0}, 0x55555556")
            a.i(f"s_sub_u32 s{sT1}, s{sR}, {dr}"); a.i(f"s_cmp_ge_u32 s{sR}, {dr}"); a.i(f"s_cselect_b32 s{sT1}, s{sT1}, s{sR}")
            a.i(f"s_lshl_b32 s{sT1}, s{sT1}, 4"); a.i(f"s_add_u32 s{sT0}, s{sT0}, s{sT1}")
            a.i(f"s_lshl_b32 s{sT0}, s{sT0}, 7"); a.i(f"s_add_u32 s{dst}, s{sT0}, {QF_BASE}")
        flagoff(sT2, 0, 0)
        a.i(f"v_mov_b32 v{t0}, s{sT2}")
        ln = 1
        for badd in (16, 32):
            for dr in range(3):
                flagoff(sT2, badd, dr); a.i(f"v_writelane_b32 v{t0}, s{sT2}, {ln}"); ln += 1
        a.i(f"v_writelane_b32 v{t0}, s{sQcol}, 7")
        a.i(f"v_accvgpr_write_b32 a{st('qf')}, v{t0}")
        a.i(f"s_mov_b32 s{sBound}, 0x40000")
    S_(su_flags)
    def su_T():
        a.i(f"s_lshl_b32 s{sT0}, s{sW}, 8"); a.i(f"s_add_u32 s{sT0}, s{sT0}, {TBASE}")
        a.i(f"v_lshlrev_b32 v{t0}, 3, v{vn}"); a.i(f"v_add_u32 v{t0}, s{sT0}, v{t0}")
        a.i(f"v_mul_u32_u24 v{t1}, {2*GS}, v{vq}"); a.i(f"v_add_u32 v{t1}, v{t1}, v{t0}")
        a.i(f"v_accvgpr_write_b32 a{st('KA')}, v{t1}")
        a.i(f"v_lshl_add_u32 v{t1}, v{vq}, 1, 6")
        a.i(f"v_cmp_gt_u32 vcc, 2, v{vq}"); a.i(f"v_mov_b32 v{t2}, 4"); a.i("s_nop 0")
        a.i(f"v_cndmask_b32 v{t1}, v{t2}, v{t1}, vcc")
        a.i(f"v_mul_u32_u24 v{t1}, {GS}, v{t1}"); a.i(f"v_add_u32 v{t1}, v{t1}, v{t0}")
        a.i(f"v_accvgpr_write_b32 a{st('KB')}, v{t1}")
        a.i(f"v_lshrrev_b32 v{t0}, 2, v{vLane}"); a.i(f"v_lshlrev_b32 v{t0}, 3, v{t0}")
        a.i(f"s_add_u32 s{sT0}, s{sT0}, {10*GS}"); a.i(f"v_add_u32 v{t0}, s{sT0}, v{t0}")
        a.i(f"v_and_b32 v{t1}, 3, v{vLane}")
        a.i(f"v_mul_u32_u24 v{t2}, {GS}, v{t1}"); a.i(f"v_add_u32 v{t2}, v{t2}, v{t0}")
        a.i(f"v_accvgpr_write_b32 a{st('V0')}, v{t2}")
        a.i(f"v_min_u32 v{t1}, 1, v{t1}"); a.i(f"v_add_u32 v{t1}, 4, v{t1}")
        a.i(f"v_mul_u32_u24 v{t2}, {GS}, v{t1}"); a.i(f"v_add_u32 v{t2}, v{t2}, v{t0}")
        a.i(f"v_accvgpr_write_b32 a{st('V1')}, v{t2}")
        a.i(f"v_lshlrev_b32 v{t0}, 2, v{vq}"); a.i(f"v_sub_u32 v{t0}, v{vn}, v{t0}")
        a.i(f"v_mov_b32 v{t1}, {f2u(-1e30)}")
        for r in range(4):
            a.i(f"v_cmp_le_i32 vcc, {r}, v{t0}"); a.i("s_nop 1")
            a.i(f"v_cndmask_b32 v{t2}, 0, v{t1}, vcc"); a.i(f"v_cndmask_b32_e64 v{t3}, v{t1}, 0, vcc")
            a.i(f"v_accvgpr_write_b32 a{st('mf',4)+r}, v{t2}"); a.i(f"v_accvgpr_write_b32 a{st('ml',4)+r}, v{t3}")
        a.i(f"v_mov_b32 v{t1}, 0x3f80"); a.i(f"v_mov_b32 v{t2}, 1.0")
        for hf in range(2):
            a.i(f"v_cmp_eq_u32 vcc, {2*hf}, v{t0}"); a.i("s_nop 1"); a.i(f"v_cndmask_b32 v{t3}, 0, v{t1}, vcc")
            a.i(f"v_cmp_eq_u32 vcc, {2*hf+1}, v{t0}"); a.i("s_nop 1"); a.i(f"v_cndmask_b32 v{t3}, v{t3}, v{t2}, vcc")
            a.i(f"v_accvgpr_write_b32 a{SEL+2+hf}, v{t3}")
        for r in (0, 1, 4, 5): a.i(f"v_accvgpr_write_b32 a{SEL+r}, 0")
        a.i(f"v_mul_u32_u24 v{t0}, 1152, v{vn}"); a.i(f"v_lshl_add_u32 v{t0}, v{vq}, 3, v{t0}")
        a.i(f"v_accvgpr_write_b32 a{st('ov')}, v{t0}")
    S_(su_T)
    def su_col():
        a.i(f"s_and_b32 s{sT2}, s{sS}, 1")
        a.i(f"s_lshl_b32 s{sT0}, s{sT2}, 6"); a.i(f"s_add_u32 s{sCol[0]}, s{sT0}, 512")
        a.i(f"s_mul_i32 s{sT2}, s{sT2}, 640"); a.i(f"s_lshr_b32 s{sT1}, s{sI}, 1")
        for p in range(1, 5):
            a.i(f"s_add_u32 s{sT0}, s{sT1}, {p}"); a.i(f"s_and_b32 s{sT0}, s{sT0}, 3")
            a.i(f"s_lshl_b32 s{sT0}, s{sT0}, 7"); a.i(f"s_add_u32 s{sCol[p]}, s{sT0}, s{sT2}")

    stages = {}
    post = {}
    def X(S, t): return f"v[{XN+8*S+4*t}:{XN+8*S+4*t+3}]"
    def grp(k, g, srdreg, soffs, vregs):
        slot = (k % NS) * SLOT
        out = [("s", f"s_add_u32 m0, s{sMq}, {slot + 3072*g}")]
        out += [("s", t) for t in soffs]
        for i, v in enumerate(vregs):
            out.append(("m", f"buffer_load_dwordx4 v{v}, s[{srdreg}:{srdreg+3}], s{sOff} offen offset:{1024*i} lds"))
        return out
    k = 0
    QACC = ACC[0]
    for stg in range(6):
        dma = []
        for P in range(2):
            dma += grp(k, P, SQKV, [f"s_add_u32 s{sOff}, s{sKr3[stg//2]}, {(stg%2)*96*3456 + 128*P}"], vS)
        fr = []
        for uu in range(3):
            S = 3*stg + uu
            for tau in range(7):
                P = tau // 4; off = 1024*(3*P + uu) + 512*((tau % 4)//2) + 32*(tau % 2)
                fr.append((off, QACC + 8*tau, X(S, 0), X(S, 1), S == 0, S))
        stages[k] = dict(dma=dma, fr=fr); k += 1
    post[k-1] = ("q", [ACC[0], ACC[1]])
    rot = 2
    for j in range(4):
        ag = ACC[rot % 3]; au = ACC[(rot + 1) % 3]; rot += 2
        for (srdreg, acc) in ((SG, ag), (SU, au)):
            for stg in range(3):
                dma = grp(k, 0, srdreg, [f"s_add_u32 s{sOff}, s{sPair[j]}, s{sKr9[stg]}"], vA)
                dma += grp(k, 1, srdreg, [f"s_add_u32 s{sOff}, s{sOff}, {96*9216}"], vA)
                fr = []
                for uu in range(6):
                    S = 6*stg + uu
                    for tau in range(4):
                        fr.append((1024*uu + 512*(tau//2) + 32*(tau%2), acc + 8*tau, X(S, 0), X(S, 1), S == 0, None))
                stages[k] = dict(dma=dma, fr=fr); k += 1
        post[k-1] = ("h", [ag, au], [(ag, au, 2*j), (ag+16, au+16, 2*j+1)])
    ag = ACC[rot % 3]
    for stg in range(3):
        dma = grp(k, 0, SG, [f"s_add_u32 s{sOff}, s{sSing}, s{sKr9[stg]}"], vS) + grp(k, 1, SU, ["s_nop 0"], vS)
        fr = []
        for uu in range(6):
            S = 6*stg + uu
            for m in range(2):
                for c in range(2):
                    fr.append((3072*m + 1024*(uu//2) + 512*(uu%2) + 32*c, ag + 16*m + 8*c, X(S, 0), X(S, 1), S == 0, None))
        stages[k] = dict(dma=dma, fr=fr); k += 1
    post[k-1] = ("h", [ag], [(ag, ag+16, 8)])
    assert k == 33
    KB0 = 36
    ent = [(p, ks) for ks in range(21) for p in (1, 0)]
    for p in (2, 3, 4): ent += [(p, ks) for ks in range(21)]
    BACC = {0: 144, 1: 176, 2: 208, 3: 144, 4: 176}
    def Hop(ks, t):
        if ks < 10: b = H + 8*ks + 4*t
        elif ks < 20: b = HP + 8*(ks-10) + 4*t
        else: b = HB + 4*t
        return f"a[{b}:{b+3}]"
    nBst = (len(ent) + 5) // 6
    last_fr = [[], []]
    bpost = {}
    for sb in range(nBst):
        k = KB0 + sb; slot = (k % NS) * SLOT
        dma = []; fr = []
        for u, (p, ks) in enumerate(ent[6*sb:6*sb+6]):
            i = u % 3
            if i == 0: dma.append(("s", f"s_add_u32 m0, s{sMq}, {slot + 3072*(u//3)}"))
            kk = ks % 10
            if ks == 20:
                dma.append(("v", f"v_accvgpr_read_b32 v{vT1}, a{st('Obm' if p == 0 else 'Ob')}"))
                dma.append(("v", f"v_add_u32 v{vT1}, {2048-1024*i}, v{vT1}"))
                dma.append(("m", f"buffer_load_dwordx4 v{vT1}, s[{SO}:{SO+3}], s{sCol[p]} offen offset:{1024*i} lds"))
            elif kk == 9:
                dma.append(("v", f"v_accvgpr_read_b32 v{vT1}, a{st('Oam' if p == 0 else 'Oa')}"))
                dma.append(("v", f"v_add_u32 v{vT1}, {2048-1024*i}, v{vT1}"))
                dma.append(("s", f"s_add_u32 s{sOff}, s{sAo if ks < 10 else sAp}, s{sCol[p]}"))
                dma.append(("m", f"buffer_load_dwordx4 v{vT1}, s[{SO}:{SO+3}], s{sOff} offen offset:{1024*i} lds"))
            else:
                tab = sKo if ks < 10 else sKp
                so = sOff2 if p == 0 else sOff
                if kk % 2 == 0: dma.append(("s", f"s_add_u32 s{so}, s{tab[kk//2]}, s{sCol[p]}"))
                else: dma.append(("s", f"s_add_u32 s{so}, s{so}, {32*1152}"))
                v = (vA if p == 0 else vS)[i]
                dma.append(("m", f"buffer_load_dwordx4 v{v}, s[{SD}:{SD+3}], s{so} offen offset:{1024*i} lds"))
            for tau in range(2 if p == 0 else 4):
                f = (1024*u + 512*(tau//2) + 32*(tau%2), BACC[p] + 8*tau, Hop(ks, 0), Hop(ks, 1), ks == 0, ("B", p, ks, tau))
                if p == 4 and tau >= 2: last_fr[1].append((k,) + f)
                else: fr.append(f)
        stages[k] = dict(dma=dma, fr=fr)
    KEND = KB0 + nBst

    dma_tok = {}
    def emit_dma_item(k, it):
        if it[0] == "m": dma_tok[k] = a.vm(it[1])
        elif it[0] == "d": a.ds(it[1])
        else: a.i(it[1])
    def emit_dma(k):
        for it in stages[k]["dma"]: emit_dma_item(k, it)

    a.i(f"s_mov_b32 s{sC0}, 0x3f803f80"); a.i(f"s_mov_b32 s{sC1}, 0xffff0000")
    S1 = [ACC[1], ACC[1]+1]; S2 = [ACC[1]+2, ACC[1]+3]
    for r in S1 + S2: a.i(f"v_mov_b32 v{r}, 0")
    def stats(ch):
        for S in (2*ch, 2*ch+1):
            for i in range(4):
                for t in range(2):
                    x = XN + 8*S + 4*t + i
                    a.i(f"v_dot2_f32_bf16 v{S1[t]}, v{x}, s{sC0}, v{S1[t]}")
                    a.i(f"v_dot2_f32_bf16 v{S2[t]}, v{x}, v{x}, v{S2[t]}")
    for fn in setup[:2]: fn()
    rest = setup[2:]
    for ch in range(9):
        a.wait(vm=xtok[ch])
        for Sb in range(2):
            for t in range(2):
                S = 2*ch + Sb
                tk = a.ds(f"ds_read_b128 {X(S, t)}, v{vXr[Sb]} offset:{16384*(ch%4) + 2048*t}")
        if ch: stats(ch-1)
        a.wait(lg=tk)
        if ch + 4 < 9: xdma(ch + 4)
        if ch == 5: emit_dma(0)
        if rest and ch < 5: rest.pop(0)()
    assert not rest
    su_col()
    stats(8)
    astamp("P:stats")
    RSr = [ACC[2]+0, ACC[2]+2]; NM = [ACC[2]+4, ACC[2]+6]
    inv = 1.0/576.0
    u = [ACC[1]+4+i for i in range(4)]
    vals = S1 + S2
    a.i("s_nop 2")
    for sw in ("v_permlane32_swap_b32", "v_permlane16_swap_b32"):
        for i in range(4): a.i(f"v_mov_b32 v{u[i]}, v{vals[i]}")
        a.i("s_nop 0")
        for i in range(4): a.i(f"{sw} v{vals[i]}, v{u[i]}")
        a.i("s_nop 0")
        for i in range(4): a.i(f"v_add_f32 v{vals[i]}, v{vals[i]}, v{u[i]}")
    def both(fmt):
        for t in range(2): a.i(fmt.format(m=S1[t], q=S2[t], rs=RSr[t], nm=NM[t]))
    both("v_mul_f32 v{m}, %s, v{m}" % f2u(inv)); both("v_mul_f32 v{q}, %s, v{q}" % f2u(inv))
    both("v_fma_f32 v{q}, -v{m}, v{m}, v{q}"); both("v_max_f32 v{q}, 0, v{q}")
    both("v_cvt_pk_bf16_f32 v{m}, v{m}, v{m}"); both("v_lshlrev_b32 v{m}, 16, v{m}")
    def rq(): both("v_cvt_pk_bf16_f32 v{q}, v{q}, v{q}"); both("v_lshlrev_b32 v{q}, 16, v{q}")
    rq(); both("v_add_f32 v{q}, %s, v{q}" % f2u(1e-5)); rq()
    both("v_sqrt_f32 v{q}, v{q}"); a.i("s_nop 0"); rq()
    both("v_rcp_f32 v{rs}, v{q}"); a.i("s_nop 0")
    for t in range(2): a.i(f"v_mov_b32 v{RSr[t]+1}, v{RSr[t]}")
    both("v_mul_f32 v{nm}, v{m}, v{rs}"); both("v_sub_f32 v{nm}, 0, v{nm}")
    for t in range(2): a.i(f"v_mov_b32 v{NM[t]+1}, v{NM[t]}")
    TP = [ACC[2]+22+2*i for i in range(4)]
    def norm_instrs(S):
        o = []
        for t in range(2):
            for i in range(4):
                x = XN + 8*S + 4*t + i; tp = TP[i]
                o.append(f"v_lshlrev_b32 v{tp}, 16, v{x}"); o.append(f"v_and_b32 v{tp+1}, s{sC1}, v{x}")
            for i in range(4):
                tp = TP[i]
                if normil:
                    o.append(f"v_fma_f32 v{tp}, v{tp}, v{RSr[t]}, v{NM[t]}"); o.append(f"v_fma_f32 v{tp+1}, v{tp+1}, v{RSr[t]}, v{NM[t]}")
                else:
                    o.append(f"v_pk_fma_f32 v[{tp}:{tp+1}], v[{tp}:{tp+1}], v[{RSr[t]}:{RSr[t]+1}], v[{NM[t]}:{NM[t]+1}]")
            for i in range(4):
                x = XN + 8*S + 4*t + i; tp = TP[i]
                o.append(f"v_cvt_pk_bf16_f32 v{x}, v{tp}, v{tp+1}")
        return o
    normil_sav = normil; normil = False
    dq = deque(stages[1]["dma"]); dq2 = deque(stages[2]["dma"])
    for S in range(18):
        for t in norm_instrs(S): a.i(t)
        q_, kk = (dq, 1) if dq else (dq2, 2)
        while q_:
            it = q_.popleft(); emit_dma_item(kk, it)
            if it[0] == "m": break
    assert not dq and not dq2
    a.i(f"s_cmp_lg_u32 s{sW}, 0")
    a.i("s_cbranch_scc1 L_notag")
    a.i(f"v_readfirstlane_b32 s{sT0}, v{vCs}")
    a.i("s_nop 3")
    a.i(f"s_cmp_eq_u32 s{sT0}, 0")
    a.i(f"s_cselect_b32 s{sTag}, s{sE}, s{sT0}")
    a.i(f"v_mov_b32 v{vCs}, s{sTag}")
    a.i(f"v_mov_b32 v{vCs+1}, {EPOCH_OFF}")
    a.i("s_cbranch_scc0 L_notag")
    a.i(f"buffer_store_dword v{vCs}, v{vCs+1}, {WS}, 0 offen sc1")
    a.label("L_notag")
    astamp("P:ln"); astamp("Q:ln")

    fill = deque(); spin_blocks = []; pubs = []; toks = {}
    hooks = {}; ihooks = {}
    def emit_fill(it):
        kind, txt = it[1], it[2]
        if kind == "m": return a.vm(txt)
        if kind == "d": return a.ds(txt)
        if kind == "f": return txt()
        a.i(txt)
    def F(nb, kind, txt, sets=(), space=0): fill.append((nb, kind, txt, list(sets), space))
    def Fm(nb, name, txt, sets=(), space=0):
        def fn(): toks[name] = a.vm(txt)
        fill.append((nb, "f", fn, list(sets), space))
    def poll_check(name, va, vf, soff="0", offs=0):
        a.wait(vm=toks[name])
        a.i(f"v_cmp_ne_u32 vcc, s{sTag}, v{vf}")
        a.i("s_nop 0")
        a.i("s_cmp_lg_u64 vcc, 0")
        a.i(f"s_cbranch_scc1 L_spin_{name}")
        a.label(f"L_back_{name}")
        spin_blocks.append((name, va, vf, soff, offs))
    def stream(frs, dma_after):
        N = len(frs); first_of = {}
        for i, f in enumerate(frs): first_of.setdefault(f[0], i)
        rd = {}; dmaq = deque(); nextbar = [0]
        def rd_half(i, hf):
            k, off = frs[i][0], frs[i][1]
            o = (k % NS) * SLOT + off; base = vRd[o // (2*SLOT)]; oo = o % (2*SLOT)
            fb = FR + 4*(i % NB) + 2*hf
            rd[i] = a.ds(f"ds_read_b64_tr_b16 a[{fb}:{fb+1}], v{base} offset:{oo + 256*hf}")
        def pre_read(i, cur):
            k = frs[i][0]
            if first_of[k] == i:
                while dmaq:
                    kk, it = dmaq.popleft(); emit_dma_item(kk, it)
                a.wait(vm=dma_tok[k])
                a.i("s_barrier")
                for p in list(pubs):
                    if p[3] and toks.get(p[0]) is not None and toks[p[0]] <= a.vm_done:
                        p[1](); pubs.remove(p); print("pub", p[0], "at barrier", k, file=sys.stderr)
                for kk in dma_after(k):
                    for it in stages[kk]["dma"]: dmaq.append((kk, it))
                if k in hooks: hooks[k](cur)
                nextbar[0] = first_of.get(k + 1, N + D) - D
                return True
            return False
        for i in range(min(D, N)):
            pre_read(i, 0); rd_half(i, 0); rd_half(i, 1)
        a.wait(lg=rd[1])
        gi = 0; lastm = -100
        def other(i):
            nonlocal lastm
            for p in list(pubs):
                if not p[3] and toks.get(p[0]) is not None:
                    if toks[p[0]] <= a.vm_done or (p[2][0] is not None and i >= p[2][0]):
                        print("pub", p[0], "at frag", i, "stage", frs[i][0], "forced" if toks[p[0]] > a.vm_done else "", file=sys.stderr); a.wait(vm=toks[p[0]]); p[1](); pubs.remove(p); return
                    if p[2][0] is None: p[2][0] = i + p[2][1]
            nm = sum(1 for x in dmaq if x[1][0] == "m")
            left = 2 * (nextbar[0] - i)
            g_eff = min(gap, max(2, left // (nm + 1))) if nm else gap
            if dmaq and (dmaq[0][1][0] != "m" or gi - lastm >= g_eff):
                kk, it = dmaq.popleft(); emit_dma_item(kk, it)
                if it[1].startswith("s_cmp"):
                    kk, it = dmaq.popleft(); emit_dma_item(kk, it)
                if it[0] == "m": lastm = gi
                return
            if fill and fill[0][0] <= i and (fill[0][4] == 0 or gi - lastm >= fill[0][4]):
                it = fill.popleft(); emit_fill(it)
                if it[4]: lastm = gi
        for i in range(N):
            k, off, acc, b0, b1, first, tag = frs[i]
            if first_of[k] == i: astamp_stage(k)
            if i in ihooks: ihooks.pop(i)(i)
            if tag in ihooks: ihooks.pop(tag)(i)
            assert rd[i] <= a.lg_done
            fb = FR + 4*(i % NB)
            if first:
                nd = 0
                while any(any((x <= acc < x + 32) if isinstance(x, int) else (x[0] <= acc < x[1]) for x in it[3]) for it in fill):
                    emit_fill(fill.popleft()); nd += 1
                if nd: print("drained", nd, "at stage", k, file=sys.stderr); a.i("s_nop 1")
            for t, b in enumerate((b0, b1)):
                d = f"v[{acc+4*t}:{acc+4*t+3}]"
                a.i(f"{MF} {d}, a[{fb}:{fb+3}], {b}, {'0' if first else d}")
                used = False
                if i + D < N:
                    if t == 0: used = pre_read(i + D, i)
                    rd_half(i + D, t)
                if t == 1 and i + 1 < N and rd[i+1] > a.lg_done:
                    a.wait(lg=rd[min(i+2, N-1)]); used = True
                if not used: other(i)
                gi += 1
            if tag in bpost: bpost[tag](i + 3)
            if (i + 1 == N or frs[i+1][0] != k) and k in post: do_post(post.pop(k), i + 3)
        while dmaq:
            kk, it = dmaq.popleft(); emit_dma_item(kk, it)
        a.i("s_nop 7")
        while fill: emit_fill(fill.popleft())
    def astamp_stage(k):
        if k == 6: astamp("P:qend")
        if 6 <= k < 33 and k % 3 == 0: astamp(f"A:{k}")
        if k < 6: astamp(f"Q:{k}")
        if k >= 36 and k % 2 == 0: astamp(f"B:{k}")
    def pack4(nb, d, e, sets):
        F(nb, "v", f"v_cvt_pk_bf16_f32 v{d}, v{d}, v{d+1}", sets); F(nb, "v", f"v_cvt_pk_bf16_f32 v{d+1}, v{d+2}, v{d+3}", sets)
        F(nb, "v", f"v_cvt_pk_bf16_f32 v{d+2}, v{e}, v{e+1}", sets); F(nb, "v", f"v_cvt_pk_bf16_f32 v{d+3}, v{e+2}, v{e+3}", sets)
    def flag_store(voff_txts, soff, offs=0):
        for t in voff_txts: a.i(t)
        a.i(f"v_mov_b32 v{q1}, s{sTag}")
        a.vm(f"buffer_store_dword v{q1}, v{q0}, {WS}, {soff} offen offset:{offs} sc1")
    def do_post(p, nb):
        if p[0] == "h":
            sets = p[1]
            for (g, u_, ks) in p[2]:
                F(nb, "s", f"s_add_u32 s{sPst}, s{sHst}, {2048*ks}", sets)
                for t in range(2):
                    for c in range(2):
                        for r in range(4):
                            o = 8*c + 4*t + r
                            F(nb, "v", f"v_mul_f32 v{g+o}, v{g+o}, v{u_+o}", sets)
                    pack4(nb, g + 4*t, g + 8 + 4*t, sets)
                    for r in range(4):
                        F(nb, "v", f"v_accvgpr_write_b32 a{H+8*ks+4*t+r}, v{g+4*t+r}", sets)
                    Fm(nb, "h1st" if (ks, t) == (3, 1) else "hst", f"buffer_store_dwordx4 v[{g+4*t}:{g+4*t+3}], v{vL16}, {WS}, s{sPst} offen offset:{1024*t} sc1", sets, 3)
            if p[2][-1][2] == 3:
                pubs.append(("h1st", lambda: flag_store([f"v_accvgpr_read_b32 v{q0}, a{st('hfo')}"], "0", 8), [None, 70], False))
        elif p[0] == "q":
            sets = p[1]
            F(nb, "v", f"v_accvgpr_read_b32 v{q0}, a{st('stq')}", sets)
            for tau in range(7):
                if tau in (2, 4): F(nb, "v", f"v_accvgpr_read_b32 v{q2}, a{st('sc%d' % tau)}", sets)
                if tau == 6: F(nb, "v", f"v_accvgpr_read_b32 v{q0}, a{st('stq2')}", sets)
                sc = f"v{q2}" if tau in (2, 4) else f"s{sSc[(4*tau)//9]}"
                F(nb, "s", f"s_add_u32 s{sPst}, s{sQst}, {4096*tau}", sets)
                for t in range(2):
                    b = QACC + 8*tau + 4*t
                    for r in range(4): F(nb, "v", f"v_mul_f32 v{b+r}, {sc}, v{b+r}", sets)
                    F(nb, "v", f"v_cvt_pk_bf16_f32 v{b}, v{b}, v{b+1}", sets); F(nb, "v", f"v_cvt_pk_bf16_f32 v{b+1}, v{b+2}, v{b+3}", sets)
                    Fm(nb, "qdone" if (tau, t) == (6, 1) else "qst", f"buffer_store_dwordx2 v[{b}:{b+1}], v{q0}, {WS}, s{sPst} offen offset:{128*t} sc1", sets, 3)
            for i in range(3): F(nb, "v", f"v_accvgpr_read_b32 v{vS[i]}, a{st('sing')+i}", sets)
            def pubq():
                a.i(f"s_lshl_b32 s{sT0}, s{sR}, 4"); a.i(f"s_add_u32 s{sT0}, s{sT0}, s{sS}")
                a.i(f"s_lshl_b32 s{sT0}, s{sT0}, 7"); a.i(f"s_add_u32 s{sT0}, s{sT0}, {QF_BASE}")
                flag_store([f"v_mov_b32 v{q0}, 0"], f"s{sT0}")
            pubs.append(("qdone", pubq, [None, 0], True))

    def hook0(cur):
        a.i(f"v_mov_b32 v{vT0}, {TAG_LDS}")
        a.i(f"s_cmp_lg_u32 s{sW}, 0"); a.i("s_cbranch_scc1 L_notagw")
        a.i(f"ds_write_b32 v{vT0}, v{vCs}")
        a.label("L_notagw")
    hooks[0] = hook0
    def hook2(cur): toks["tag"] = a.ds(f"ds_read_b32 v{vT1}, v{vT0}")
    hooks[2] = hook2
    def hook3(cur):
        a.wait(lg=toks["tag"]); a.i(f"v_readfirstlane_b32 s{sTag}, v{vT1}")
    hooks[3] = hook3
    DUM = f"a[{HP+76}:{HP+79}]"
    def wid_code(cur):
        F(cur, "s", f"s_and_b32 s{sT3}, s{sR}, {(1 << lg_rpx) - 1}"); F(cur, "s", f"s_lshl_b32 s{sT3}, s{sT3}, 1")
        F(cur, "s", f"s_and_b32 s{sT1}, s{sS}, 1"); F(cur, "s", f"s_add_u32 s{sT3}, s{sT3}, s{sT1}")
        F(cur, "s", f"s_lshl_b32 s{sT3}, s{sT3}, 2"); F(cur, "s", f"s_add_u32 s{sT3}, s{sT3}, s{sW}")
    nw = 8 << lg_rpx
    def hook_pf1(cur):
        if not l2pf: return
        wid_code(cur)
        F(cur, "v", f"v_accvgpr_read_b32 v{q2}, a{st('pt')}")
        F(cur, "m", f"buffer_load_dword a{HP+75}, v{q2}, {WS}, 0 offen sc1", (), pfs)
        F(cur, "s", f"s_add_u32 s{sT2}, s{sHst}, {18*1024}")
        for j in range(3): F(cur, "m", f"buffer_load_dwordx4 {DUM}, v{vL16}, {WS}, s{sT2} offen offset:{1024*j} sc1", (), pfs)
        per = (18 * 4 + nw - 1) // nw
        F(cur, "s", f"s_lshr_b32 s{sT0}, s{sT3}, 2")
        F(cur, "s", f"s_and_b32 s{sT1}, s{sSing}, 0xffffff80")
        for j in range(per):
            F(cur, "s", f"s_add_u32 s{sT2}, s{sT0}, {j * (nw // 4)}"); F(cur, "s", f"s_mul_i32 s{sT2}, s{sT2}, {32*9216}")
            F(cur, "s", f"s_add_u32 s{sT2}, s{sT2}, s{sT1}")
            F(cur, "m", f"buffer_load_dwordx4 {DUM}, v{vA[0]}, s[{SG}:{SG+3}], s{sT2} offen", (), pfs)
            F(cur, "m", f"buffer_load_dwordx4 {DUM}, v{vA[0]}, s[{SU}:{SU+3}], s{sT2} offen", (), pfs)
        for j in range((81 + nw - 1) // nw):
            F(cur, "s", f"s_add_u32 s{sT2}, s{sT3}, {j * nw + 2}"); F(cur, "s", f"s_min_u32 s{sT2}, s{sT2}, 82")
            F(cur, "s", f"s_lshl_b32 s{sT2}, s{sT2}, 10"); F(cur, "s", f"s_mul_i32 s{sT1}, s{sI}, {72*1152}")
            F(cur, "s", f"s_add_u32 s{sT2}, s{sT2}, s{sT1}")
            F(cur, "m", f"buffer_load_dwordx4 {DUM}, v{vL16}, s[{SO}:{SO+3}], s{sT2} offen", (), pfs)
    def hook_pf2(cur):
        if not l2pf: return
        wid_code(cur)
        per_wave = 576 * 1152 // nw
        n = (per_wave + 1023) // 1024
        F(cur, "s", f"s_mul_i32 s{sT0}, s{sT3}, {per_wave}"); F(cur, "s", f"s_mul_i32 s{sT1}, s{sI}, {576*1152}")
        F(cur, "s", f"s_add_u32 s{sT0}, s{sT0}, s{sT1}"); F(cur, "s", f"s_add_u32 s{sT0}, s{sT0}, 2048")
        for j in range(n):
            F(cur, "m", f"buffer_load_dwordx4 {DUM}, v{vL16}, s[{SD}:{SD+3}], s{sT0} offen", (), pfs)
            F(cur, "s", f"s_add_u32 s{sT0}, s{sT0}, 1024")
    hooks[15] = hook_pf1
    hooks[21] = hook_pf2
    def hook_poll_issue(cur):
        a.i(f"v_accvgpr_read_b32 v{q0}, a{st('qf')}")
        toks["kv"] = a.vm(f"buffer_load_dword v{q1}, v{q0}, {WS}, 0 offen sc1")
    def hook_poll_check(cur):
        poll_check("kv", q0, q1)
        for ks in range(4):
            for t in range(2):
                o = 2048*ks + 1024*t; d = HP + 8*ks + 4*t
                if o % 4096 == 0: F(cur, "s", f"s_add_u32 s{sT3}, s{sHld}, {o}")
                F(cur, "m", f"buffer_load_dwordx4 a[{d}:{d+3}], v{vL16}, {WS}, s{sT3} offen offset:{o % 4096} sc1", (), 5)
        for hd, nm in enumerate(("qA", "qB")):
            F(cur, "v", f"v_accvgpr_read_b32 v{q0}, a{st(nm)}")
            for t in range(2):
                for hf in range(2):
                    d = aQ + 8*hd + 4*t + 2*hf
                    Fm(cur, "qld", f"buffer_load_dwordx2 a[{d}:{d+1}], v{q0}, {WS}, s{sQld} offen offset:{128*t + 1024*hf} sc1", (), 4)
    hooks[26] = hook_poll_issue
    hooks[28] = hook_poll_check
    def hook27(cur):
        for i in range(3):
            F(cur, "v", f"v_accvgpr_read_b32 v{vA[i]}, a{st('Dm')}"); F(cur, "v", f"v_add_u32 v{vA[i]}, {2048-1024*i}, v{vA[i]}")
    hooks[27] = hook27
    def hook30(cur):
        for i in range(3):
            F(cur, "v", f"v_accvgpr_read_b32 v{vS[i]}, a{st('D')}"); F(cur, "v", f"v_add_u32 v{vS[i]}, {2048-1024*i}, v{vS[i]}")
    hooks[30] = hook30
    def kv_dma(cur, mat):
        base = TBASE + mat*10*GS; go = mat*144*1024
        L = []
        L.append(("s", f"s_mul_i32 s{sT2}, s{sW}, {GS}"))
        L.append(("s", f"s_add_u32 m0, s{sT2}, {base}"))
        for r2 in range(3):
            L.append(("s", f"s_add_u32 s{sT0}, s{sKV[r2]}, {go}"))
            L.append(("m", f"buffer_load_dwordx4 v{vL16}, {WS}, s{sT0} offen offset:{1024*r2} sc1 lds"))
        L.append(("s", f"s_min_u32 s{sT1}, s{sT2}, {GS}"))
        L.append(("s", f"s_add_u32 s{sT1}, s{sT1}, s{sT2}"))
        L.append(("s", f"s_add_u32 m0, s{sT1}, {base + 4*GS}"))
        for r2 in range(3):
            L.append(("s", f"s_add_u32 s{sT0}, s{sKV[r2]}, {go + 4096}"))
            L.append(("m", f"buffer_load_dwordx4 v{vL16}, {WS}, s{sT0} offen offset:{1024*r2} sc1 lds"))
        L.append(("s", f"s_cmp_eq_u32 s{sW}, 1")); L.append(("s", f"s_cselect_b32 s{sT0}, s{sKV[1]}, s{sKV[2]}"))
        L.append(("s", f"s_cmp_eq_u32 s{sW}, 0")); L.append(("s", f"s_cselect_b32 s{sT0}, s{sKV[0]}, s{sT0}"))
        L.append(("s", f"s_min_u32 s{sT1}, s{sW}, 2")); L.append(("s", f"s_sub_u32 s{sT2}, s{sT1}, s{sW}"))
        L.append(("s", f"s_lshl_b32 s{sT2}, s{sT2}, 10")); L.append(("s", f"s_add_u32 s{sT0}, s{sT0}, s{sT2}"))
        L.append(("s", f"s_lshl_b32 s{sT1}, s{sT1}, 10"))
        L.append(("s", f"s_add_u32 m0, s{sT1}, {base + 9*GS}"))
        L.append(("s", f"s_add_u32 s{sT0}, s{sT0}, {go + 8192}"))
        L.append(("m", f"buffer_load_dwordx4 v{vL16}, {WS}, s{sT0} offen sc1 lds"))
        L.append(("v", f"v_add_u32 v{q2}, s{sT1}, v{vL16}"))
        d = KVS + 4*mat
        if mat == 0:
            L.append(("s", f"s_cmp_ge_u32 s{sT0}, {OOB}")); L.append(("s", f"s_cselect_b32 s{sT0}, 0xf149, 0"))
            L += [("v", f"v_accvgpr_write_b32 a{d}, s{sT0}"), ("v", f"v_accvgpr_write_b32 a{d+1}, 0"),
                  ("v", f"v_accvgpr_write_b32 a{d+2}, s{sT0}"), ("v", f"v_accvgpr_write_b32 a{d+3}, 0")]
        else:
            L += [("v", f"v_accvgpr_write_b32 a{d+r}, s{sC0}") for r in range(4)]
        L.append(("v", f"v_add_u32 v{q2}, {base + 5*GS}, v{q2}"))
        L.append(("d", f"ds_write_b128 v{q2}, a[{d}:{d+3}]"))
        return L
    stages[34] = dict(dma=kv_dma(0, 0), fr=[]); stages[35] = dict(dma=kv_dma(0, 1), fr=[])
    def dma_after_QA(k):
        if k == 0: return [3, 4]
        if k + 4 <= 32: return [k + 4]
        if k == 30: return [34]
        if k == 31: return [35]
        if k == 32: return [36]
        return []
    stream([(k,) + f for k in range(33) for f in stages[k]["fr"]], dma_after_QA)
    astamp("P:aend"); astamp("A:end"); astamp("T:0")

    a.wait(vm=max(dma_tok[34], toks["qld"]), lg=a.lg_issued)
    a.i("s_barrier")
    SS = 0; OA = 144; QO = 176; MFi = 192; MLa = 196
    aKA, aKB, aV0, aV1 = 200, 201, 202, 203
    mx = [204, 206]; nmx = [208, 210]; w0, w1, w2, w3 = 212, 213, 214, 215
    def Sr(t, kt): return SS + 72*t + 4*kt
    side = deque()
    for kk in (37, 38):
        for it in stages[kk]["dma"]: side.append((lambda kk=kk, it=it: emit_dma_item(kk, it)))
    for nm, r in (("KA", aKA), ("KB", aKB), ("V0", aV0), ("V1", aV1)): a.i(f"v_accvgpr_read_b32 v{r}, a{st(nm)}")
    fbn = [0]
    def nextfb():
        fb = FR + 4*(fbn[0] % 8); fbn[0] += 1; return fb
    def rd_k(hd, kt, lazy=None):
        fb = nextfb(); v = aKB if hd else aKA
        o = [f"ds_read_b64 a[{fb}:{fb+1}], v{v} offset:{128*kt}", f"ds_read_b64 a[{fb+2}:{fb+3}], v{v} offset:{128*kt + GS}"]
        if lazy is not None: lazy += o; return fb, None
        a.ds(o[0]); return fb, a.ds(o[1])
    def rd_v(hd, kap, tile, lazy):
        fb = nextfb(); v = aV1 if tile else aV0; o = 256*kap + (6*GS if (hd and not tile) else 0)
        lazy += [f"ds_read_b64_tr_b16 a[{fb}:{fb+1}], v{v} offset:{o}", f"ds_read_b64_tr_b16 a[{fb+2}:{fb+3}], v{v} offset:{o+128}"]
        return fb, None
    kf = {}
    for kt in range(6): kf[kt] = rd_k(0, kt)
    for r in range(4):
        a.i(f"v_accvgpr_read_b32 v{MFi+r}, a{st('mf')+r}"); a.i(f"v_accvgpr_read_b32 v{MLa+r}, a{st('ml')+r}")
    a.i(f"v_lshrrev_b32 v{w0}, 4, v{vLane}")
    a.i(f"v_cmp_gt_u32 vcc, 2, v{w0}"); a.i("s_nop 1"); a.i(f"v_cndmask_b32_e64 v{w1}, 0, -1, vcc")
    a.i(f"v_cmp_gt_u32 vcc, 3, v{w0}"); a.i("s_nop 1"); a.i(f"v_cndmask_b32_e64 v{w2}, 0, -1, vcc")
    a.i(f"v_xor_b32 v{w3}, v{w1}, v{w2}"); a.i(f"v_and_b32 v{w3}, 0x3f80, v{w3}")
    for hd in range(2):
        for t in range(2):
            b = QO + 8*hd + 4*t
            for r in range(4): a.i(f"v_accvgpr_read_b32 v{b+r}, a{aQ+8*hd+4*t+r}")
            a.i(f"v_and_b32 v{b}, v{w1 if hd else w2}, v{b}"); a.i(f"v_and_b32 v{b+1}, v{w2 if hd else w1}, v{b+1}")
            a.i(f"v_and_or_b32 v{b+2}, v{b+2}, v{w1}, v{w3}"); a.i(f"v_and_b32 v{b+3}, v{w1}, v{b+3}")
    astamp("T:setup")
    def qk_ops(hd, kt, fr):
        fb, tk = fr; o = []
        for t in range(2):
            j = kt - t
            if not 0 <= j <= 16: continue
            c = f"v[{MFi}:{MFi+3}]" if j == 0 else (f"v[{MLa}:{MLa+3}]" if j == 16 else "0")
            d = Sr(t, kt); b = QO + 8*hd + 4*t
            o.append((tk, f"{MF} v[{d}:{d+3}], a[{fb}:{fb+3}], v[{b}:{b+3}], {c}"))
        return o
    def max_ops(kt):
        o = []
        for t in range(2):
            j = kt - t
            if not 0 <= j <= 16: continue
            b = Sr(t, kt); m = mx[t]
            if j == 0:
                o.append(f"v_max_f32 v{m}, v{b}, v{b+1}"); o.append(f"v_max_f32 v{m+1}, v{b+2}, v{b+3}")
            else:
                o.append(f"v_max3_f32 v{m}, v{b}, v{b+1}, v{m}"); o.append(f"v_max3_f32 v{m+1}, v{b+2}, v{b+3}, v{m+1}")
        return o
    def finmax():
        for t in range(2): a.i(f"v_max_f32 v{mx[t]}, v{mx[t]}, v{mx[t]+1}")
        for sw in ("v_permlane32_swap_b32", "v_permlane16_swap_b32"):
            for t in range(2): a.i(f"v_mov_b32 v{mx[t]+1}, v{mx[t]}")
            a.i("s_nop 1")
            for t in range(2): a.i(f"{sw} v{mx[t]}, v{mx[t]+1}")
            a.i("s_nop 0")
            for t in range(2): a.i(f"v_max_f32 v{mx[t]}, v{mx[t]}, v{mx[t]+1}")
        for t in range(2): a.i(f"v_sub_f32 v{nmx[t]}, 0, v{mx[t]}")
        for t in range(2): a.i(f"v_mov_b32 v{nmx[t]+1}, v{nmx[t]}")
    def exp_ops(kap):
        o1, o2, o3 = [], [], []
        for t in range(2):
            d = Sr(t, 2*kap)
            for hf in range(2):
                kt = 2*kap + hf; b = Sr(t, kt)
                if 0 <= kt - t <= 16:
                    for r in (0, 2): o1.append(f"v_pk_add_f32 v[{b+r}:{b+r+1}], v[{b+r}:{b+r+1}], v[{nmx[t]}:{nmx[t]+1}]")
                    for r in range(4): o2.append(f"v_exp_f32 v{b+r}, v{b+r}")
                    o3.append(f"v_cvt_pk_bf16_f32 v{d+2*hf}, v{b}, v{b+1}"); o3.append(f"v_cvt_pk_bf16_f32 v{d+2*hf+1}, v{b+2}, v{b+3}")
                else:
                    o3.append(f"v_mov_b32 v{d+2*hf}, 0"); o3.append(f"v_mov_b32 v{d+2*hf+1}, 0")
        return o1, o2 + o3
    def pv_ops(hd, kap, frs):
        o = []
        for tile in range(2):
            fb, tk = frs[tile]
            for t in range(2):
                d = OA + 16*hd + 8*t + 4*tile; b = Sr(t, 2*kap)
                o.append((tk, f"{MF} v[{d}:{d+3}], a[{fb}:{fb+3}], v[{b}:{b+3}], {'0' if kap == 0 else f'v[{d}:{d+3}]'}"))
        return o
    def merge(valu, mfs, lead=2, tailgap=1, reads=(), nside=2):
        n = len(valu); m = len(mfs); pos = {}; reads = list(reads)
        a.wait(lg=a.lg_issued)
        while len(reads) > m: a.ds(reads.pop(0))
        for j in range(m): pos.setdefault(lead + (j * max(n - lead - tailgap, 1)) // max(m, 1), []).append(mfs[j])
        cnt = 0
        def one(txt):
            nonlocal cnt
            a.i(txt)
            if reads: a.ds(reads.pop(0))
            cnt += 1
            if side and cnt % nside == 0: side.popleft()()
        for i, v in enumerate(valu):
            for (tk, txt) in pos.pop(i, []): one(txt)
            a.i(v)
        for kq in sorted(pos):
            for (tk, txt) in pos[kq]: one(txt)
    a.i("s_nop 1")
    for kt in range(18):
        lz = []
        if kt + 6 < 18: fbx, _ = rd_k(0, kt+6, lz)
        mo = max_ops(kt-3) if kt >= 3 else []
        if kt % 2 == 0: a.wait(lg=kf[kt+1][1])
        for (tk, txt) in qk_ops(0, kt, kf[kt]):
            a.wait(lg=tk); a.i(txt)
            if lz: tkx = a.ds(lz.pop(0))
            for t in mo[:2]: a.i(t)
            mo = mo[2:]
        while lz: tkx = a.ds(lz.pop(0))
        if kt + 6 < 18: kf[kt+6] = (fbx, tkx)
        for t in mo: a.i(t)
    for kt in (15, 16):
        for t in max_ops(kt): a.i(t)
    a.i("s_nop 3")
    for t in max_ops(17): a.i(t)
    finmax()
    a.wait(vm=max(toks["hst"], dma_tok[35]))
    a.i("s_barrier")
    flag_store([f"v_accvgpr_read_b32 v{q0}, a{st('hfo')}"], "0", 0)
    astamp("T:qkA")
    pend = []
    for kap in range(9):
        lz = []
        vf = [rd_v(0, kap, 0, lz), rd_v(0, kap, 1, lz)]
        k2 = [rd_k(1, 2*kap, lz), rd_k(1, 2*kap+1, lz)]
        o1, v = exp_ops(kap)
        for t in o1: a.i(t)
        if kap >= 2: v = v[:8] + max_ops(2*kap-4) + max_ops(2*kap-3) + v[8:]
        merge(v, pend, lead=0, tailgap=5, reads=lz)
        pend = pv_ops(0, kap, vf) + qk_ops(1, 2*kap, k2[0]) + qk_ops(1, 2*kap+1, k2[1])
        if kap == 6:
            a.i(f"v_accvgpr_read_b32 v{q0}, a{st('hfp')}")
            toks["hp"] = a.vm(f"buffer_load_dword v{q1}, v{q0}, {WS}, 0 offen sc1")
    merge(max_ops(14) + max_ops(15), pend)
    a.i("s_nop 7")
    for t in max_ops(16) + max_ops(17): a.i(t)
    finmax()
    while side: side.popleft()()
    poll_check("hp", q0, q1)
    for ks in range(4, 9):
        for t in range(2):
            def ld(ks=ks, t=t):
                o = 2048*ks + 1024*t
                if o % 4096 == 0: a.i(f"s_add_u32 s{sPst}, s{sHld}, {o}")
                d = HP + 8*ks + 4*t
                toks["hld"] = a.vm(f"buffer_load_dwordx4 a[{d}:{d+3}], v{vL16}, {WS}, s{sPst} offen offset:{o % 4096} sc1")
            side.append(ld)
    astamp("T:expA")
    pend = []
    for kap in range(9):
        lz = []
        vf = [rd_v(1, kap, 0, lz), rd_v(1, kap, 1, lz)]
        o1, v = exp_ops(kap)
        for t in o1: a.i(t)
        merge(v, pend, lead=0, tailgap=5, reads=lz, nside=3)
        pend = pv_ops(1, kap, vf)
    a.i("s_nop 1")
    merge([], pend)
    while side: side.popleft()()
    a.i("s_nop 7")
    L = [216, 217, 218, 219]; L2 = [220, 221, 222, 223]; BT = 224
    idx = [(hd, t) for hd in range(2) for t in range(2)]
    for n, (hd, t) in enumerate(idx):
        d = OA + 16*hd + 8*t + 4
        a.i(f"v_mov_b32 v{L[n]}, v{d}"); a.i(f"v_mov_b32 v{L2[n]}, v{d}")
    a.i("s_nop 1")
    for n in range(4): a.i(f"v_permlane16_swap_b32 v{L2[n]}, v{L[n]}")
    a.i("s_nop 0")
    for n in range(4): a.i(f"v_rcp_f32 v{L[n]}, v{L[n]}")
    a.i(f"v_cmp_eq_u32 vcc, 0, v{w0}")
    for n, (hd, t) in enumerate(idx):
        d = OA + 16*hd + 8*t
        for r in range(4): a.i(f"v_mul_f32 v{d+r}, v{L[n]}, v{d+r}")
        for r in ((6, 7) if hd else (4, 5)): a.i(f"v_mul_f32 v{d+r}, v{L[n]}, v{d+r}")
    a.i(f"s_add_u32 s{sPst}, s{sHst}, {18*1024}")
    for t in range(2):
        d = OA + 8*t; e = OA + 16 + 8*t
        a.i(f"v_cvt_pk_bf16_f32 v{BT+2*t}, v{d+4}, v{d+5}"); a.i(f"v_cvt_pk_bf16_f32 v{BT+2*t+1}, v{e+6}, v{e+7}")
        a.i(f"v_cvt_pk_bf16_f32 v{d}, v{d}, v{d+1}"); a.i(f"v_cvt_pk_bf16_f32 v{d+1}, v{d+2}, v{d+3}")
        a.i(f"v_cvt_pk_bf16_f32 v{d+2}, v{e}, v{e+1}"); a.i(f"v_cvt_pk_bf16_f32 v{d+3}, v{e+2}, v{e+3}")
        a.i(f"v_cndmask_b32 v{BT+2*t}, 0, v{BT+2*t}, vcc"); a.i(f"v_cndmask_b32 v{BT+2*t+1}, 0, v{BT+2*t+1}, vcc")
        a.vm(f"buffer_store_dwordx4 v[{d}:{d+3}], v{vL16}, {WS}, s{sPst} offen offset:{1024*t} sc1")
    toks["ost"] = a.vm(f"buffer_store_dwordx4 v[{BT}:{BT+3}], v{vL16}, {WS}, s{sPst} offen offset:2048 sc1")
    for t in range(2):
        d = OA + 8*t
        for r in range(4): a.i(f"v_accvgpr_write_b32 a{H+72+4*t+r}, v{d+r}")
        a.i(f"v_accvgpr_write_b32 a{HB+4*t}, v{BT+2*t}"); a.i(f"v_accvgpr_write_b32 a{HB+4*t+1}, v{BT+2*t+1}")
    pubs.append(("ost", lambda: flag_store([f"v_accvgpr_read_b32 v{q0}, a{st('hfo')}"], "0", 4), [None, 40], False))
    astamp("P:tend"); astamp("T:end")

    PL = 0
    SQ = 96
    def pstore(p, halves):
        def fn(nb):
            acc = BACC[p]; sets = [(acc, acc + 16*len(halves))]
            for hf in halves:
                if p == 0:
                    F(nb, "s", f"s_add_u32 s{sPst}, s{sHld}, {8*2048}", sets)
                else:
                    F(nb, "s", f"s_lshl_b32 s{sPst}, s{sCol[p]}, 5", sets); F(nb, "s", f"s_add_u32 s{sPst}, s{sPst}, s{sPo[hf]}", sets)
                for t in range(2):
                    d = acc + 16*hf + 4*t
                    pack4(nb, d, d + 8, sets)
                    last = (hf == halves[-1] and t == 1)
                    Fm(nb, f"pst{p}" if last else "pstx", f"buffer_store_dwordx4 v[{d}:{d+3}], v{vL16}, {WS}, s{sPst} offen offset:{1024*t} sc1", sets, 2)
            def pub():
                if p == 0: a.i(f"s_add_u32 s{sT0}, s{sPF}, 1024")
                else:
                    a.i(f"s_lshr_b32 s{sT0}, s{sI}, 1"); a.i(f"s_add_u32 s{sT0}, s{sT0}, {p}"); a.i(f"s_and_b32 s{sT0}, s{sT0}, 3")
                    a.i(f"s_lshl_b32 s{sT0}, s{sT0}, 8"); a.i(f"s_add_u32 s{sT0}, s{sT0}, s{sPF}")
                a.i(f"s_lshl_b32 s{sT1}, s{sI}, 2")
                flag_store([f"v_mov_b32 v{q0}, s{sT1}"], f"s{sT0}")
            pubs.append((f"pst{p}", pub, [None, 60 if p < 3 else pd3], False))
        return fn
    def sib_store(nb):
        acc = BACC[4]; sets = [(acc, acc + 16)]
        src = []
        for t in range(2):
            for c in range(2):
                src += [(acc + 8*c + 4*t, acc + 8*c + 4*t + 1), (acc + 8*c + 4*t + 2, acc + 8*c + 4*t + 3)]
        dst = [0, 1, 2, 4, 5, 6, 8, 9]
        for n in range(8):
            F(nb, "v", f"v_cvt_pk_bf16_f32 v{SQ+dst[n]}, v{src[n][0]}, v{src[n][1]}", sets)
            if n in (2, 5, 7):
                j = (2, 5, 7).index(n)
                F(nb, "m", f"buffer_store_dwordx4 v[{SQ+4*j}:{SQ+4*j+3}], v{vL16}, {WS}, s{sSibS} offen offset:{1024*j} sc1", sets)
    bpost[("B", 0, 20, 1)] = pstore(0, [0])
    for p in (1, 2, 3): bpost[("B", p, 20, 3)] = pstore(p, [0, 1])
    bpost[("B", 4, 20, 1)] = sib_store
    vP0, vP1 = 80, 81
    def h_wait(i): a.wait(vm=toks["hld"])
    ihooks[("B", 1, 14, 0)] = h_wait
    def o_poll(i):
        a.i(f"v_accvgpr_read_b32 v{vP0}, a{st('hfp')}")
        toks["op"] = a.vm(f"buffer_load_dword v{vP1}, v{vP0}, {WS}, 0 offen offset:4 sc1")
    ihooks[("B", 1, 11, 0)] = o_poll
    def o_check(i):
        poll_check("op", vP0, vP1, "0", 4)
        a.i(f"s_add_u32 s{sT0}, s{sHld}, {18*1024}")
        for t in range(2):
            a.vm(f"buffer_load_dwordx4 a[{HP+72+4*t}:{HP+75+4*t}], v{vL16}, {WS}, s{sT0} offen offset:{1024*t} sc1")
        for t in range(2):
            toks["old"] = a.vm(f"buffer_load_dwordx2 a[{HB+4*t+2}:{HB+4*t+3}], v{vL16}, {WS}, s{sT0} offen offset:{2048+8*t} sc1")
    ihooks[("B", 1, 15, 0)] = o_check
    ihooks[("B", 1, 19, 0)] = lambda i: a.wait(vm=toks["old"])
    sOwn, sSibS, sSibL = sQst, sQld, sQcol
    sPFo = sKV[0]; sXo = [sKV[1], sKV[2]]; sMf, sMo, sMl = sSc
    def polladdr(minx):
        a.i(f"v_and_b32 v{vP0}, 7, v{vLane}"); a.i(f"v_max_u32 v{vP0}, {minx}, v{vP0}")
        a.i(f"v_xor_b32 v{vP0}, s{sI}, v{vP0}"); a.i(f"v_lshlrev_b32 v{vP0}, 2, v{vP0}")
    MA, MB, MX, MD, vM0, vM1 = 120, 124, 132, 136, 134, 135
    def m_prep(i):
        L = [f"v_and_b32 v{MD}, 15, v{vLane}", f"v_lshrrev_b32 v{MD+1}, 4, v{vLane}",
             f"v_mul_u32_u24 v{vM0}, {8*HXS}, v{MD+1}", f"v_lshl_add_u32 v{vM0}, v{MD}, 4, v{vM0}",
             f"s_lshl_b32 s{sMl}, s{sI}, 8", f"s_add_u32 s{sMl}, s{sMl}, s{sPbase}", f"s_add_u32 s{sMl}, s{sMl}, {8*2048}",
             f"v_mul_u32_u24 v{vM1}, 1152, v{MD}", f"v_lshl_add_u32 v{vM1}, v{MD+1}, 5, v{vM1}",
             f"v_lshrrev_b32 v{MD+2}, 1, v{MD+1}", f"v_lshl_add_u32 v{vM1}, v{MD+2}, 29, v{vM1}",
             f"s_lshr_b32 s{sT2}, s{sI}, 2", f"s_mul_i32 s{sMo}, s{sT2}, {16*1152}", f"s_and_b32 s{sT2}, s{sI}, 3", f"s_lshl_b32 s{sT2}, s{sT2}, 3",
             f"s_add_u32 s{sMo}, s{sMo}, s{sT2}", f"s_add_u32 s{sMo}, s{sMo}, s{sCol[0]}", f"s_add_u32 s{sMo}, s{sMo}, s{sXrow}",
             f"s_add_u32 s{sMf}, s{sPF}, 1024",
             f"v_and_b32 v{MD+2}, 1, v{MD}", f"v_lshlrev_b32 v{MD+2}, 4, v{MD+2}", f"v_mov_b32 v{MD+3}, 0x3f80",
             f"v_lshlrev_b32 v{MD+3}, v{MD+2}, v{MD+3}", f"v_lshrrev_b32 v{MD+2}, 1, v{MD}"]
        for t in L: F(i, "v", t)
        for r in range(4):
            F(i, "v", f"v_cmp_eq_u32 vcc, {r}, v{MD+2}"); F(i, "v", f"v_cndmask_b32 v{MA+r}, 0, v{MD+3}, vcc")
        F(i, "m", f"buffer_load_dwordx2 v[{MX}:{MX+1}], v{vM1}, s[{SX}:{SX+3}], s{sMo} offen")
    ihooks[("B", 2, 12, 0)] = m_prep
    def m_poll(i):
        polladdr(0)
        toks["mp"] = a.vm(f"buffer_load_dword v{vP1}, v{vP0}, {WS}, s{sMf} offen sc1")
    ihooks[("B", 3, 6, 0)] = m_poll
    def m_check(i):
        poll_check("mp", vP0, vP1, f"s{sMf}", 0)
        a.vm(f"buffer_load_dwordx4 v[{MB}:{MB+3}], v{vM0}, {WS}, s{sMl} offen sc1")
        a.i(f"s_add_u32 s{sMl}, s{sMl}, {32*HXS}")
        toks["ml"] = a.vm(f"buffer_load_dwordx4 v[{MB+4}:{MB+7}], v{vM0}, {WS}, s{sMl} offen sc1")
        for t in (f"v_lshlrev_b32 v{MD}, 16, v{MX}", f"v_and_b32 v{MD+1}, s{sC1}, v{MX}", f"v_lshlrev_b32 v{MD+2}, 16, v{MX+1}", f"v_and_b32 v{MD+3}, s{sC1}, v{MX+1}"):
            F(i, "v", t)
    ihooks[("B", 3, 13, 0)] = m_check
    def m_fin(i):
        a.wait(vm=toks["ml"])
        for j in range(2): a.i(f"{MF} v[{MD}:{MD+3}], v[{MA}:{MA+3}], v[{MB+4*j}:{MB+4*j+3}], v[{MD}:{MD+3}]")
        F(i + 3, "v", f"v_cvt_pk_bf16_f32 v{MD}, v{MD}, v{MD+1}"); F(i + 3, "v", f"v_cvt_pk_bf16_f32 v{MD+1}, v{MD+2}, v{MD+3}")
        F(i + 3, "m", f"buffer_store_dwordx2 v[{MD}:{MD+1}], v{vM1}, s[{SOUT}:{SOUT+3}], s{sMo} offen")
    ihooks[("B", 4, 12, 0)] = m_fin
    def e_poll(i):
        polladdr(2)
        toks["ep"] = a.vm(f"buffer_load_dword v{vP1}, v{vP0}, {WS}, s{sPFo} offen sc1")
    def prep_own(i):
        L = [f"v_accvgpr_read_b32 v{vT0}, a{st('ov')}",
             f"s_lshl_b32 s{sOwn}, s{sI}, 11", f"s_add_u32 s{sOwn}, s{sOwn}, s{sPbase}",
             f"s_and_b32 s{sT2}, s{sS}, 1", f"s_mul_i32 s{sT2}, s{sT2}, 640", f"s_lshl_b32 s{sT3}, s{sI}, 6",
             f"s_add_u32 s{sT2}, s{sT2}, s{sT3}", f"s_add_u32 s{sXo[0]}, s{sT2}, s{sXrow}", f"s_add_u32 s{sXo[1]}, s{sXo[0]}, {16*1152}",
             f"s_lshr_b32 s{sPFo}, s{sI}, 1", f"s_lshl_b32 s{sT2}, s{sPFo}, 12", f"s_lshl_b32 s{sPFo}, s{sPFo}, 8", f"s_add_u32 s{sPFo}, s{sPFo}, s{sPF}",
             f"s_add_u32 s{sSibS}, s{sHld}, s{sT2}",
             f"s_xor_b32 s{sT3}, s{sI}, 1", f"s_mul_i32 s{sT3}, s{sT3}, {8*HXS}", f"s_add_u32 s{sT3}, s{sT3}, s{sPbase}", f"s_add_u32 s{sSibL}, s{sT3}, s{sT2}",
             f"v_mov_b32 v{SQ+3}, s{sTag}", f"v_mov_b32 v{SQ+7}, s{sTag}", f"v_mov_b32 v{SQ+10}, s{sTag}", f"v_mov_b32 v{SQ+11}, s{sTag}"]
        for t in L: F(i, "v", t)
        for t in range(2):
            for c in range(2):
                F(i, "m", f"buffer_load_dwordx2 v[{64+4*t+2*c}:{64+4*t+2*c+1}], v{vT0}, s[{SX}:{SX+3}], s{sXo[t]} offen offset:{32*c}", (), 3)
    ihooks[("B", 3, 14, 0)] = prep_own
    def pload(x, base, dst, name):
        a.i(f"s_xor_b32 s{sT0}, s{sI}, {x}"); a.i(f"s_mul_i32 s{sT0}, s{sT0}, {8*HXS}"); a.i(f"s_add_u32 s{sT0}, s{sT0}, s{base}")
        for t in range(2):
            toks[name] = a.vm(f"buffer_load_dwordx4 v[{dst+4*t}:{dst+4*t+3}], v{vL16}, {WS}, s{sT0} offen offset:{1024*t} sc1")
    ihooks[("B", 4, ep[0], 2)] = e_poll
    def e_check(i):
        poll_check("ep", vP0, vP1, f"s{sPFo}", 0)
        for x in range(2, 8): F(i, "f", (lambda x=x: pload(x, sOwn, PL + 8*x, "pl")))
    ihooks[("B", 4, ep[1], 2)] = e_check
    def dma_after_B(k):
        if k == 36: return [39, 40]
        return [k + 4] if k + 4 < KEND else []
    stream([(k,) + f for k in range(KB0, KEND) for f in stages[k]["fr"]] + last_fr[1], dma_after_B)
    assert not pubs
    astamp("P:bend"); astamp("B:end")
    def accum(acc, src):
        for c in range(2):
            for t in range(2):
                d = acc + 8*c + 4*t; s0 = SEL + (0 if c else 2)
                a.i(f"{MF} v[{d}:{d+3}], a[{s0}:{s0+3}], v[{src+4*t}:{src+4*t+3}], v[{d}:{d+3}]")
    OWN = BACC[4] + 16
    SI = SQ + 12
    def sib_loads():
        for j in range(3): a.vm(f"buffer_load_dwordx4 v[{SI+4*j}:{SI+4*j+3}], v{vL16}, {WS}, s{sSibL} offen offset:{1024*j} sc1")
    sib_loads()
    a.wait(vm=toks["pl"])
    accum(OWN, 64)
    for x in range(2, 8): accum(OWN, PL + 8*x)
    a.label("L_sibchk")
    a.i("s_waitcnt vmcnt(0)")
    a.i(f"v_cmp_ne_u32 vcc, s{sTag}, v{SI+3}")
    a.i(f"v_cmp_ne_u32 s[{sT1}:{sT1+1}], s{sTag}, v{SI+7}")
    a.i(f"v_cmp_ne_u32 s[{sT3}:{sT3+1}], s{sTag}, v{SI+11}")
    for n, (d, sr) in enumerate(zip(range(8), [0, 1, 2, 4, 5, 6, 8, 9])): a.i(f"v_mov_b32 v{PL+8+d}, v{SI+sr}")
    a.i(f"s_or_b64 vcc, vcc, s[{sT1}:{sT1+1}]")
    a.i(f"s_or_b64 vcc, vcc, s[{sT3}:{sT3+1}]")
    a.i("s_cbranch_scc0 L_sibok")
    a.i(f"s_cmp_eq_u32 s{sBound}, 0"); a.i("s_cbranch_scc1 L_sibok")
    a.i(f"s_sub_u32 s{sBound}, s{sBound}, 1")
    sib_loads()
    a.i("s_branch L_sibchk")
    a.label("L_sibok")
    accum(OWN, PL + 8)
    a.i("s_nop 4")
    for c in range(2):
        for t in range(2):
            d = OWN + 8*c + 4*t
            a.i(f"v_cvt_pk_bf16_f32 v{d}, v{d}, v{d+1}"); a.i(f"v_cvt_pk_bf16_f32 v{d+1}, v{d+2}, v{d+3}")
            a.vm(f"buffer_store_dwordx2 v[{d}:{d+1}], v{vT0}, s[{SOUT}:{SOUT+3}], s{sXo[t]} offen offset:{32*c}")
    astamp("P:done")
    if stamps:
        a.i(f"s_lshl_b32 s{sT0}, s2, 2"); a.i(f"s_add_u32 s{sT0}, s{sT0}, s{sW}"); a.i(f"s_lshl_b32 s{sT0}, s{sT0}, 6")
        a.i(f"s_add_u32 s{sT0}, s{sT0}, {STAMP_OFF}")
        a.i(f"v_mov_b32 v1, 0")
        for n in range(len(stl)):
            a.i(f"buffer_store_dword a{244+n}, v1, {WS}, s{sT0} offen offset:{4*n}")
        a.i("s_waitcnt vmcnt(0)")
        a.i("s_memrealtime s[80:81]"); a.i("s_waitcnt lgkmcnt(0)"); a.i("v_accvgpr_write_b32 a255, s80")
        a.i(f"buffer_store_dword a254, v1, {WS}, s{sT0} offen offset:56")
        a.i(f"buffer_store_dword a255, v1, {WS}, s{sT0} offen offset:60")
        print("stamps:", stl, file=sys.stderr)
    a.label("L_end")
    a.i("s_endpgm")
    for (name, va, vf, soff, offs) in spin_blocks:
        a.label(f"L_spin_{name}")
        a.i(f"s_cmp_eq_u32 s{sBound}, 0")
        a.i(f"s_cbranch_scc1 L_back_{name}")
        a.i(f"s_sub_u32 s{sBound}, s{sBound}, 1")
        a.i("s_sleep 1")
        a.i(f"buffer_load_dword v{vf}, v{va}, {WS}, {soff} offen offset:{offs} sc1")
        a.i("s_waitcnt vmcnt(0)")
        a.i(f"v_cmp_ne_u32 vcc, s{sTag}, v{vf}")
        a.i("s_nop 0")
        a.i("s_cmp_lg_u64 vcc, 0")
        a.i(f"s_cbranch_scc1 L_spin_{name}")
        a.i(f"s_branch L_back_{name}")
    assert not ihooks, ihooks.keys()
    body = [l.replace("CODE_LAST", "0x1000") for l in a.lines]
    body, nf, nn, size = align8(body, nops=False)
    body = [l.replace("v_min_u32 v%d, 0x1000," % vT0, "v_min_u32 v%d, %d," % (vT0, (size - 64) & ~15)) for l in body]
    print(f"main: code {size} bytes, stash {st.next}", file=sys.stderr)
    return body

from gen1 import kd
def whole(**kw):
    m = gen(**kw)
    hdr = [l for l in open("parallel_sum__sliding_block__glu_gated_bilinear__prompt.s.ref").read().split("\n")[:11]]
    s = "\n".join(hdr) + "\n"
    s += f"; @launch grid=(256,1,1) block=(256,1,1) lds={LDS_BYTES}\n"
    s += '.amdgcn_target "amdgcn-amd-amdhsa--gfx950"\n.text\n'
    s += f".globl {KN}\n.p2align 8\n.type {KN},@function\n{KN}:\n" + "\n".join(m) + "\n"
    s += '.section .rodata,"a"\n.p2align 6\n' + kd(KN, 512, 256)
    return s

if __name__ == "__main__":
    kw = {}
    for x in sys.argv[2:]:
        k, v = x.split("="); kw[k] = eval(v)
    open(sys.argv[1], "w").write(whole(**kw))
```

```python
import sys, struct, math
from asmlib import *
from collections import deque

KN = "parallel_sum__sliding_block__glu_gated_bilinear__prompt_kernel"
QS = 6176; SLOT = 4 * QS; NS = 6
LDS_BYTES = 163840
XS = 4 * SLOT
TAG_LDS = NS * SLOT + 64
QKV_BASE = 0x2400000
QF_BASE = 0x2C00000; HF_BASE = 0x2C10000; PF_BASE = 0x2C40000
EPOCH_OFF = 0x2D00000
HX_BASE = 0x3000000; HXS = 21504
STAMP_OFF = 0x6000000
WS_BYTES = 268435456
OOB = 0x20000000
GS = 3136; TBASE = 3 * SLOT
TAGC = 0x9E3779B8
def f2u(f): return "0x%08x" % struct.unpack("<I", struct.pack("<f", f))[0]
QC = 18 ** -0.5 * math.log2(math.e)
MF = "v_mfma_f32_16x16x32_bf16"

def gen(D=6, stamps=None, rt=False, gap=6, lg_rpx=4, krot=True, normil=True, l2pf=True, pfs=6, pd3=30, ep=(3, 11), trace=None, nraw=0, iwarm=True, pd=30, lead=70, hold=90, pfk=16, lnpre=2, od=50, warmat=1, gupf="U", hold0=40, gu_at=28):
    a = Asm()
    SX, SG, SU, SD, SWS, SQKV, SO, SDBG, SOUT = 4, 8, 12, 16, 20, 24, 28, 32, 36
    sPF = 3
    sCol = [40, 41, 42, 43, 44]
    sSc = [45, 46, 47]; sKV = [48, 49, 50]
    sTag, sE, sBound, sQst, sQld = 51, 52, 53, 54, 55
    sW, sS, sR = 56, 57, 58
    sPair = [59, 60, 61, 62]; sSing = 63
    sMq, sI = 64, 65
    sOff, sT0, sT1, sT2, sT3 = 66, 67, 68, 69, 70
    sXrow, sPst, sM4 = 71, 72, 73
    sOff2 = 73
    sM4x = 59
    sPC = 74; sHst, sHld = 74, 75
    sC0, sC1, sQcol, sPbase = 76, 77, 78, 79
    sStamp = 80; sPo = [82, 83]
    KA = 84
    sKo = [84, 85, 86, 87, 88]; sKp = [89, 90, 91, 92, 93]; sAo, sAp = 94, 95
    sKr9 = [96, 97, 98]; sKr3 = [99, 100, 101]
    XN = 0; ACC = [144, 176, 208]
    vRd = [240, 241, 242]; vA = [243, 244, 245]; vS = [246, 247, 248]
    q0, q1, q2 = 249, 250, 251
    vT0, vT1, vL16, vLane = 252, 253, 254, 255
    H, HP, HB, FR = 0, 80, 160, 168
    KVS, aQ = 128, 136
    NB = 8; assert D <= 7
    stash = {}
    def st(name, n=1):
        if name not in stash:
            stash[name] = st.next; st.next += n; assert st.next <= 238
        return stash[name]
    st.next = 200
    SEL = 238
    stl = []
    def astamp(name):
        if stamps is None or name.split(":")[0] not in stamps: return
        n = len(stl); assert n < 10
        a.i("s_waitcnt lgkmcnt(0)"); a.lg_done = a.lg_issued
        a.i(f"{'s_memrealtime' if rt else 's_memtime'} s[{sStamp}:{sStamp+1}]")
        a.i("s_waitcnt lgkmcnt(0)")
        a.i(f"v_accvgpr_write_b32 a{244+n}, s{sStamp}")
        stl.append(name)
    trl = []; trp = []
    TRS = [46, 80, 0]
    def tr(name):
        if trace is None or not (trace[0] <= tr.stage < trace[1]) or len(trl) >= 64: return
        if len(trp) >= 2:
            n0, p0 = trp.pop(0); a.i(f"v_writelane_b32 v{vLane}, s{p0}, {n0}")
        p = TRS[len(trl) % 3]
        a.i(f"s_memtime s[{p}:{p+1}]")
        trp.append((len(trl), p)); trl.append(name)
    tr.stage = 0
    def srd(d, p, nbytes, back=0):
        if back:
            a.i(f"s_sub_u32 s{d}, s{p}, {back}"); a.i(f"s_subb_u32 s{d+1}, s{p+1}, 0")
        else:
            a.i(f"s_mov_b32 s{d}, s{p}"); a.i(f"s_mov_b32 s{d+1}, s{p+1}")
        a.i(f"s_mov_b32 s{d+2}, {nbytes + back}"); a.i(f"s_mov_b32 s{d+3}, 0x00020000")
    WS = f"s[{SWS}:{SWS+3}]"

    a.i("s_cmp_ge_u32 s2, 256")
    a.i("s_cbranch_scc1 L_end")
    if stamps: a.i("s_memrealtime s[36:37]")
    a.i(f"s_load_dwordx16 s[{KA}:{KA+15}], s[0:1], 0")
    a.i(f"s_load_dwordx4 s[80:83], s[0:1], 64")
    a.i(f"s_getpc_b64 s[{sPC}:{sPC+1}]")
    a.i(f"s_lshr_b32 s{sT0}, s2, 3")
    a.i(f"s_lshl_b32 s{sT0}, s{sT0}, 12")
    a.i(f"v_lshlrev_b32 v{vT0}, 4, v0")
    a.i(f"v_add_u32 v{vT0}, s{sT0}, v{vT0}")
    a.i(f"v_min_u32 v{vT0}, CODE_LAST, v{vT0}")
    a.vm(f"global_load_dwordx4 a[{HP+76}:{HP+79}], v{vT0}, s[{sPC}:{sPC+1}]")
    a.i(f"v_lshrrev_b32 v{vT1}, 6, v0")
    a.i(f"v_and_b32 v{vLane}, 63, v0")
    a.i(f"v_readfirstlane_b32 s{sW}, v{vT1}")
    lg = lg_rpx; nsl = 32 >> lg
    a.i(f"s_and_b32 s{sR}, s2, {(16 >> lg) - 1}"); a.i(f"s_lshl_b32 s{sR}, s{sR}, {lg}")
    a.i(f"s_lshr_b32 s{sT0}, s2, {8 - lg}"); a.i(f"s_add_u32 s{sR}, s{sR}, s{sT0}")
    a.i(f"s_bfe_u32 s{sS}, s2, {hex(((lg - 1) << 16) | (4 - lg))}"); a.i(f"s_lshl_b32 s{sS}, s{sS}, {5 - lg}")
    a.i(f"s_bfe_u32 s{sT0}, s2, {hex(((5 - lg) << 16) | 3)}"); a.i(f"s_add_u32 s{sS}, s{sS}, s{sT0}")
    sRot = sT3
    if krot:
        a.i(f"s_lshr_b32 s{sT0}, s{sR}, 2"); a.i(f"s_add_u32 s{sT0}, s{sT0}, s{sS}")
        a.i(f"s_mul_hi_u32 s{sT1}, s{sT0}, 0x55555556"); a.i(f"s_mul_i32 s{sT1}, s{sT1}, 3"); a.i(f"s_sub_u32 s{sRot}, s{sT0}, s{sT1}")
    else: a.i(f"s_mov_b32 s{sRot}, 0")
    sRk = [45, 46, 47]
    for stg in range(3):
        a.i(f"s_add_u32 s{sRk[stg]}, s{sRot}, {stg}")
        a.i(f"s_cmp_ge_u32 s{sRk[stg]}, 3"); a.i(f"s_cselect_b32 s{sT0}, 3, 0"); a.i(f"s_sub_u32 s{sRk[stg]}, s{sRk[stg]}, s{sT0}")
    QACC = 144; D2 = 200
    vX = [228, 229, 230, 231]; vXr = [232, 233]
    S1 = [234, 235]; S2 = [236, 237]; vCs = 238
    t0, t1, t2, t3 = 144, 145, 146, 147
    ONES = 128
    a.i(f"v_lshrrev_b32 v{t0}, 3, v{vLane}")
    a.i(f"v_and_b32 v{t1}, 7, v{vLane}")
    for j in range(4):
        a.i(f"v_add_u32 v{t2}, {8*j}, v{t0}")
        a.i(f"v_bfe_u32 v{t3}, v{t2}, 1, 3")
        a.i(f"v_xor_b32 v{t3}, v{t3}, v{t1}")
        a.i(f"v_mul_u32_u24 v{t2}, 1152, v{t2}")
        a.i(f"v_lshl_add_u32 v{vX[j]}, v{t3}, 4, v{t2}")
        if j: a.i(f"v_subrev_u32 v{vX[j]}, {1024*j}, v{vX[j]}")
    a.i(f"s_lshl_b32 s{sXrow}, s{sR}, 2")
    a.i(f"s_add_u32 s{sXrow}, s{sXrow}, s{sW}")
    a.i(f"s_mul_i32 s{sXrow}, s{sXrow}, {32*1152}")
    sXk = [40, 41, 42]
    for stg in range(3):
        a.i(f"s_mul_i32 s{sXk[stg]}, s{sRk[stg]}, 384"); a.i(f"s_add_u32 s{sXk[stg]}, s{sXk[stg]}, s{sXrow}")
    a.i(f"s_lshl_b32 s{sM4}, s{sW}, 12")
    a.i("s_waitcnt lgkmcnt(0)")
    if stamps: a.i("v_accvgpr_write_b32 a254, s36")
    srd(SX, KA+0, 2048*1152)
    xtok = {}
    def xdma_items(ch):
        o = [("s", f"s_add_u32 m0, s{sM4}, {XS + 16384*(ch%3)}"), ("s", f"s_add_u32 s{sOff}, s{sXk[ch//3]}, {128*(ch%3)}")]
        return o + [("m", f"buffer_load_dwordx4 v{vX[j]}, s[{SX}:{SX+3}], s{sOff} offen offset:{1024*j} lds") for j in range(4)]
    dma_tok = {}
    def emit_dma_item(k, it):
        if it[0] == "m": dma_tok[k] = a.vm(it[1])
        elif it[0] == "d": a.ds(it[1])
        elif it[0] == "h": pass
        else: a.i(it[1])
    def xdma(ch):
        for it in xdma_items(ch): emit_dma_item(("x", ch), it)
    xdma(0)
    srd(SQKV, KA+2, 576*3456); srd(SO, KA+4, 576*1152, back=2048)
    srd(SG, KA+8, 576*9216); srd(SU, KA+10, 576*9216); srd(SD, KA+12, 4608*1152, back=2048)
    srd(SOUT, KA+14, 2048*1152)
    srd(SDBG, 80, 256); srd(SWS, 82, WS_BYTES)
    a.i(f"s_add_u32 s82, s82, {EPOCH_OFF}"); a.i("s_addc_u32 s83, s83, 0")
    a.i(f"s_load_dword s{sE}, s[82:83], 0")
    astamp("P:start")
    vn, vq, rho, tt, pc = 148, 149, 150, 151, 152
    a.i(f"v_and_b32 v{vn}, 15, v{vLane}"); a.i(f"v_lshrrev_b32 v{vq}, 4, v{vLane}")
    a.i(f"v_bfe_u32 v{rho}, v{vLane}, 2, 3"); a.i(f"v_lshrrev_b32 v{tt}, 5, v{vLane}")
    a.i(f"v_and_b32 v{pc}, 3, v{vLane}"); a.i(f"v_lshlrev_b32 v{pc}, 4, v{pc}")
    a.i(f"v_lshlrev_b32 v{vL16}, 4, v{vLane}")
    a.i(f"v_lshrrev_b32 v{t1}, 1, v{vn}"); a.i(f"v_xor_b32 v{t1}, v{t1}, v{vq}")
    a.i(f"v_lshlrev_b32 v{t0}, 7, v{vn}")
    a.i(f"s_add_u32 s{sT0}, s{sM4}, {XS}"); a.i(f"v_add_u32 v{t0}, s{sT0}, v{t0}")
    a.i(f"v_lshl_add_u32 v{vXr[0]}, v{t1}, 4, v{t0}")
    a.i(f"v_xor_b32 v{t1}, 4, v{t1}"); a.i(f"v_lshl_add_u32 v{vXr[1]}, v{t1}, 4, v{t0}")
    for stg in range(3):
        a.i(f"s_mul_i32 s{sKr9[stg]}, s{sRk[stg]}, {192*9216}"); a.i(f"s_mul_i32 s{sKr3[stg]}, s{sRk[stg]}, {192*3456}")
    a.i(f"s_mul_i32 s{sQcol}, s{sS}, 216")
    for stg in range(3): a.i(f"s_add_u32 s{sKr3[stg]}, s{sKr3[stg]}, s{sQcol}")
    a.i(f"s_mul_i32 s{sMq}, s{sW}, {QS}")
    a.i(f"s_lshr_b32 s{sI}, s{sS}, 1")
    a.i(f"s_lshl_b32 s{sT0}, s{sW}, 3"); a.i(f"v_add_u32 v{t2}, s{sT0}, v{rho}")
    a.i(f"v_lshl_add_u32 v{t3}, v{tt}, 6, v{pc}")
    a.i(f"v_mul_u32_u24 v{vS[0]}, 3456, v{t2}"); a.i(f"v_add_u32 v{vS[0]}, v{vS[0]}, v{t3}")
    a.i(f"v_add_u32 v{vS[1]}, {32*3456-1024}, v{vS[0]}"); a.i(f"v_add_u32 v{vS[2]}, {64*3456-2048}, v{vS[0]}")
    a.i(f"v_mul_u32_u24 v{t0}, 9216, v{t2}"); a.i(f"v_add_u32 v{vA[0]}, v{t0}, v{t3}")
    a.i(f"v_add_u32 v{vA[1]}, {32*9216-1024}, v{vA[0]}"); a.i(f"v_add_u32 v{vA[2]}, {64*9216-2048}, v{vA[0]}")
    def su_cas():
        a.i("s_waitcnt lgkmcnt(0)")
        a.i(f"s_or_b32 s{sT0}, s2, s{sW}")
        a.i("s_cbranch_scc1 L_nocas")
        a.i(f"s_add_u32 s{sE}, s{sE}, {TAGC}"); a.i(f"s_or_b32 s{sE}, s{sE}, 1")
        a.i(f"v_mov_b32 v{vCs}, s{sE}"); a.i(f"v_mov_b32 v{vCs+1}, {EPOCH_OFF}")
        a.i(f"buffer_store_dword v{vCs}, off, s[{SDBG}:{SDBG+3}], 0 sc1")
        a.i(f"buffer_store_dword v{vCs}, v{vCs+1}, {WS}, 0 offen sc1")
        a.label("L_nocas")

    setup = []
    def S_(fn): setup.append(fn)
    def su_single():
        a.i(f"v_mul_u32_u24 v{t1}, {32*9216}, v{tt}")
        a.i(f"v_add3_u32 v{t1}, v{t1}, v{t0}, v{pc}")
        for i in range(3):
            if i: a.i(f"v_add_u32 v{t1}, {64*9216-1024}, v{t1}")
            a.i(f"v_accvgpr_write_b32 a{st('sing',3)+i}, v{t1}")
        a.i(f"v_bfe_u32 v{t0}, v{vLane}, 2, 2"); a.i(f"v_lshlrev_b32 v{t1}, 6, v{t0}")
        a.i(f"v_and_b32 v{t0}, 3, v{vLane}"); a.i(f"v_lshl_add_u32 v{t1}, v{t0}, 3, v{t1}")
        a.i(f"v_mul_u32_u24 v{t0}, {QS}, v{vq}"); a.i(f"v_add_u32 v{vRd[0]}, v{t0}, v{t1}")
        a.i(f"v_add_u32 v{vRd[1]}, {2*SLOT}, v{vRd[0]}"); a.i(f"v_add_u32 v{vRd[2]}, {4*SLOT}, v{vRd[0]}")
    S_(su_single)
    def frows(sreg_s, dst):
        a.i(f"s_mul_i32 s{sT1}, s{sreg_s}, 288")
        a.i(f"s_and_b32 s{sT2}, s{sreg_s}, 1")
        a.i(f"s_lshl_b32 s{sT3}, s{sT2}, 5"); a.i(f"s_add_u32 s{sT3}, s{sT3}, s{sT1}")
        for j in range(4):
            a.i(f"s_add_u32 s{dst[j]}, s{sR}, {j}"); a.i(f"s_and_b32 s{dst[j]}, s{dst[j]}, 3")
            a.i(f"s_lshl_b32 s{dst[j]}, s{dst[j]}, 6"); a.i(f"s_add_u32 s{dst[j]}, s{dst[j]}, s{sT3}")
        a.i(f"s_xor_b32 s{sT2}, s{sT2}, 1"); a.i(f"s_lshl_b32 s{sT2}, s{sT2}, 8"); a.i(f"s_add_u32 s{dst[4]}, s{sT2}, s{sT1}")
    def su_rows():
        frows(sS, sKo)
        for j in range(4): a.i(f"s_lshl_b32 s{sPair[j]}, s{sKo[j]}, 1")
        a.i(f"s_lshl_b32 s{sSing}, s{sKo[4]}, 1")
        a.i(f"s_xor_b32 s{sT0}, s{sS}, 1")
        frows(sT0, sKp)
        for j in range(5):
            a.i(f"s_mul_i32 s{sKo[j]}, s{sKo[j]}, 1152"); a.i(f"s_mul_i32 s{sKp[j]}, s{sKp[j]}, 1152")
        a.i(f"s_mul_i32 s{sAo}, s{sS}, {36*1152}"); a.i(f"s_mul_i32 s{sAp}, s{sT0}, {36*1152}")
    S_(su_rows)
    def su_B():
        a.i(f"s_and_b32 s{sT0}, s{sI}, 1"); a.i(f"s_xor_b32 s{sT0}, s{sT0}, 1")
        a.i(f"v_xor_b32 v{t3}, s{sT0}, v{tt}"); a.i(f"v_lshlrev_b32 v{t3}, 6, v{t3}")
        a.i(f"v_and_b32 v{t0}, 3, v{rho}"); a.i(f"v_lshrrev_b32 v{t1}, 2, v{rho}")
        a.i(f"s_lshl_b32 s{sT1}, s{sW}, 2"); a.i(f"v_add_u32 v{t0}, s{sT1}, v{t0}")
        for name, hi in (("D", 16), ("Oa", 20)):
            a.i(f"v_mul_u32_u24 v{t2}, {hi}, v{t1}"); a.i(f"v_add_u32 v{t2}, v{t2}, v{t0}")
            a.i(f"v_mul_u32_u24 v{t2}, 1152, v{t2}"); a.i(f"v_add_u32 v{t2}, v{t2}, v{pc}")
            a.i(f"v_accvgpr_write_b32 a{st(name+'m')}, v{t2}")
            a.i(f"v_add_u32 v{t2}, v{t2}, v{t3}")
            a.i(f"v_accvgpr_write_b32 a{st(name)}, v{t2}")
        a.i(f"v_xor_b32 v{t2}, s{sS}, v{t1}"); a.i(f"v_mul_u32_u24 v{t2}, 36, v{t2}")
        a.i(f"v_and_b32 v{t0}, 3, v{rho}"); a.i(f"v_add3_u32 v{t2}, v{t2}, v{t0}, 16")
        a.i(f"v_mul_u32_u24 v{t2}, 1152, v{t2}"); a.i(f"v_add_u32 v{t2}, v{t2}, v{pc}")
        a.i(f"v_accvgpr_write_b32 a{st('Obm')}, v{t2}")
        a.i(f"v_add_u32 v{t2}, v{t2}, v{t3}")
        a.i(f"v_accvgpr_write_b32 a{st('Ob')}, v{t2}")
        a.i(f"s_and_b32 s{sT2}, s{sS}, 1")
        a.i(f"s_lshl_b32 s{sT1}, s{sR}, 1"); a.i(f"s_add_u32 s{sT1}, s{sT1}, s{sT2}")
        a.i(f"s_mul_i32 s{sPF}, s{sT1}, 20"); a.i(f"s_add_u32 s{sPF}, s{sPF}, s{sW}")
        a.i(f"s_lshl_b32 s{sPF}, s{sPF}, 6"); a.i(f"s_add_u32 s{sPF}, s{sPF}, {PF_BASE}")
        a.i(f"s_lshl_b32 s{sT1}, s{sR}, 4"); a.i(f"s_add_u32 s{sT1}, s{sT1}, s{sS}")
        a.i(f"s_lshl_b32 s{sT3}, s{sT1}, 2"); a.i(f"s_add_u32 s{sT3}, s{sT3}, s{sW}")
        a.i(f"s_mul_i32 s{sHst}, s{sT3}, {HXS}"); a.i(f"s_add_u32 s{sHst}, s{sHst}, {HX_BASE}")
        a.i(f"s_lshl_b32 s{sT1}, s{sT3}, 6"); a.i(f"s_add_u32 s{sT1}, s{sT1}, {HF_BASE}")
        a.i(f"v_accvgpr_write_b32 a{st('hfo')}, s{sT1}")
        a.i(f"s_xor_b32 s{sT3}, s{sT3}, 4")
        a.i(f"s_mul_i32 s{sHld}, s{sT3}, {HXS}"); a.i(f"s_add_u32 s{sHld}, s{sHld}, {HX_BASE}")
        a.i(f"s_lshl_b32 s{sT1}, s{sT3}, 6"); a.i(f"s_add_u32 s{sT1}, s{sT1}, {HF_BASE}")
        a.i(f"v_accvgpr_write_b32 a{st('hfp')}, s{sT1}")
        a.i(f"s_mul_i32 s{sT3}, s{sT2}, {640 << 5}"); a.i(f"s_sub_u32 s{sT1}, s{sHld}, s{sT3}")
        a.i(f"s_lshl_b32 s{sT3}, s{sT0}, 11"); a.i(f"s_add_u32 s{sPo[0]}, s{sT1}, s{sT3}")
        a.i(f"s_xor_b32 s{sT3}, s{sT3}, 0x800"); a.i(f"s_add_u32 s{sPo[1]}, s{sT1}, s{sT3}")
        a.i(f"s_mul_i32 s{sT3}, s{sI}, {8*HXS}"); a.i(f"s_sub_u32 s{sPbase}, s{sHld}, s{sT3}")
        a.i(f"v_min_u32 v{t2}, 4, v{vLane}"); a.i(f"v_lshlrev_b32 v{t2}, 8, v{t2}"); a.i(f"v_add_u32 v{t2}, s{sPF}, v{t2}")
        a.i(f"s_lshl_b32 s{sT1}, s{sR}, 4"); a.i(f"s_add_u32 s{sT1}, s{sT1}, s{sS}")
        a.i(f"s_lshl_b32 s{sT3}, s{sT1}, 7"); a.i(f"s_add_u32 s{sT3}, s{sT3}, {QF_BASE}"); a.i(f"v_writelane_b32 v{t2}, s{sT3}, 6")
        a.i(f"s_lshl_b32 s{sT3}, s{sT1}, 8"); a.i(f"s_add_u32 s{sT3}, s{sT3}, {HF_BASE}"); a.i(f"v_writelane_b32 v{t2}, s{sT3}, 7")
        a.i(f"s_add_u32 s{sT3}, s{sT3}, 128"); a.i(f"v_writelane_b32 v{t2}, s{sT3}, 8")
        a.i(f"v_accvgpr_write_b32 a{st('pt')}, v{t2}")
    S_(su_B)
    def su_q():
        a.i(f"s_lshl_b32 s{sT0}, s{sW}, 8"); a.i(f"v_lshlrev_b32 v{t0}, 3, v{vn}"); a.i(f"v_add_u32 v{t0}, s{sT0}, v{t0}")
        a.i(f"v_lshl_add_u32 v{t1}, v{vq}, 10, v{t0}"); a.i(f"v_accvgpr_write_b32 a{st('stq')}, v{t1}")
        a.i(f"v_cmp_eq_u32 vcc, 3, v{vq}"); a.i(f"v_mov_b32 v{t2}, {OOB}"); a.i("s_nop 0")
        a.i(f"v_cndmask_b32 v{t1}, v{t1}, v{t2}, vcc"); a.i(f"v_accvgpr_write_b32 a{st('stq2')}, v{t1}")
        a.i(f"v_lshl_add_u32 v{t1}, v{vq}, 11, v{t0}"); a.i(f"v_accvgpr_write_b32 a{st('qA')}, v{t1}")
        a.i(f"v_lshl_add_u32 v{t1}, v{vq}, 1, 5")
        a.i(f"v_cmp_gt_u32 vcc, 2, v{vq}"); a.i(f"v_mov_b32 v{t2}, 4"); a.i("s_nop 0")
        a.i(f"v_cndmask_b32 v{t1}, v{t2}, v{t1}, vcc")
        a.i(f"v_lshl_add_u32 v{t1}, v{t1}, 10, v{t0}"); a.i(f"v_accvgpr_write_b32 a{st('qB')}, v{t1}")
        a.i(f"s_mul_i32 s{sT0}, s{sR}, 432")
        a.i(f"s_mul_i32 s{sT1}, s{sS}, 27"); a.i(f"s_add_u32 s{sT1}, s{sT1}, s{sT0}")
        a.i(f"s_lshl_b32 s{sT1}, s{sT1}, 10"); a.i(f"s_add_u32 s{sQst}, s{sT1}, {QKV_BASE}")
        a.i(f"s_mul_i32 s{sT1}, s{sS}, 9"); a.i(f"s_add_u32 s{sT1}, s{sT1}, s{sT0}")
        a.i(f"s_lshl_b32 s{sT1}, s{sT1}, 10"); a.i(f"s_add_u32 s{sQld}, s{sT1}, {QKV_BASE}")
        a.i(f"s_add_u32 s{sT2}, s{sW}, 144"); a.i(f"s_lshl_b32 s{sT2}, s{sT2}, 10"); a.i(f"s_add_u32 s{sT2}, s{sT2}, s{sQld}")
        for r2 in range(3):
            a.i(f"s_sub_u32 s{sT1}, s{sT2}, {(2-r2)*432*1024 + 1024*r2}")
            a.i(f"s_cmp_ge_u32 s{sR}, {2-r2}"); a.i(f"s_cselect_b32 s{sKV[r2]}, s{sT1}, {OOB}")
    S_(su_q)
    def su_flags():
        def flagoff(dst, badd, dr):
            a.i(f"s_add_u32 s{sT0}, s{sS}, {badd}"); a.i(f"s_mul_hi_u32 s{sT0}, s{sT0}, 0x55555556")
            a.i(f"s_sub_u32 s{sT1}, s{sR}, {dr}"); a.i(f"s_cmp_ge_u32 s{sR}, {dr}"); a.i(f"s_cselect_b32 s{sT1}, s{sT1}, s{sR}")
            a.i(f"s_lshl_b32 s{sT1}, s{sT1}, 4"); a.i(f"s_add_u32 s{sT0}, s{sT0}, s{sT1}")
            a.i(f"s_lshl_b32 s{sT0}, s{sT0}, 7"); a.i(f"s_add_u32 s{dst}, s{sT0}, {QF_BASE}")
        flagoff(sT2, 0, 0)
        a.i(f"v_mov_b32 v{t0}, s{sT2}")
        ln = 1
        for badd in (16, 32):
            for dr in range(3):
                flagoff(sT2, badd, dr); a.i(f"v_writelane_b32 v{t0}, s{sT2}, {ln}"); ln += 1
        a.i(f"v_accvgpr_write_b32 a{st('qf')}, v{t0}")
        a.i(f"s_mov_b32 s{sBound}, 0x40000")
    S_(su_flags)
    def su_T():
        a.i(f"s_lshl_b32 s{sT0}, s{sW}, 8"); a.i(f"s_add_u32 s{sT0}, s{sT0}, {TBASE}")
        a.i(f"v_lshlrev_b32 v{t0}, 3, v{vn}"); a.i(f"v_add_u32 v{t0}, s{sT0}, v{t0}")
        a.i(f"v_mul_u32_u24 v{t1}, {2*GS}, v{vq}"); a.i(f"v_add_u32 v{t1}, v{t1}, v{t0}")
        a.i(f"v_accvgpr_write_b32 a{st('KA')}, v{t1}")
        a.i(f"v_lshl_add_u32 v{t1}, v{vq}, 1, 6")
        a.i(f"v_cmp_gt_u32 vcc, 2, v{vq}"); a.i(f"v_mov_b32 v{t2}, 4"); a.i("s_nop 0")
        a.i(f"v_cndmask_b32 v{t1}, v{t2}, v{t1}, vcc")
        a.i(f"v_mul_u32_u24 v{t1}, {GS}, v{t1}"); a.i(f"v_add_u32 v{t1}, v{t1}, v{t0}")
        a.i(f"v_accvgpr_write_b32 a{st('KB')}, v{t1}")
        a.i(f"v_lshrrev_b32 v{t0}, 2, v{vLane}"); a.i(f"v_lshlrev_b32 v{t0}, 3, v{t0}")
        a.i(f"s_add_u32 s{sT0}, s{sT0}, {10*GS}"); a.i(f"v_add_u32 v{t0}, s{sT0}, v{t0}")
        a.i(f"v_and_b32 v{t1}, 3, v{vLane}")
        a.i(f"v_mul_u32_u24 v{t2}, {GS}, v{t1}"); a.i(f"v_add_u32 v{t2}, v{t2}, v{t0}")
        a.i(f"v_accvgpr_write_b32 a{st('V0')}, v{t2}")
        a.i(f"v_min_u32 v{t1}, 1, v{t1}"); a.i(f"v_add_u32 v{t1}, 4, v{t1}")
        a.i(f"v_mul_u32_u24 v{t2}, {GS}, v{t1}"); a.i(f"v_add_u32 v{t2}, v{t2}, v{t0}")
        a.i(f"v_accvgpr_write_b32 a{st('V1')}, v{t2}")
        a.i(f"v_lshlrev_b32 v{t0}, 2, v{vq}"); a.i(f"v_sub_u32 v{t0}, v{vn}, v{t0}")
        a.i(f"v_mov_b32 v{t1}, {f2u(-1e30)}")
        for r in range(4):
            a.i(f"v_cmp_le_i32 vcc, {r}, v{t0}"); a.i("s_nop 1")
            a.i(f"v_cndmask_b32 v{t2}, 0, v{t1}, vcc"); a.i(f"v_cndmask_b32_e64 v{t3}, v{t1}, 0, vcc")
            a.i(f"v_accvgpr_write_b32 a{st('mf',4)+r}, v{t2}"); a.i(f"v_accvgpr_write_b32 a{st('ml',4)+r}, v{t3}")
        a.i(f"v_mov_b32 v{t1}, 0x3f80"); a.i(f"v_mov_b32 v{t2}, 1.0")
        for hf in range(2):
            a.i(f"v_cmp_eq_u32 vcc, {2*hf}, v{t0}"); a.i("s_nop 1"); a.i(f"v_cndmask_b32 v{t3}, 0, v{t1}, vcc")
            a.i(f"v_cmp_eq_u32 vcc, {2*hf+1}, v{t0}"); a.i("s_nop 1"); a.i(f"v_cndmask_b32 v{t3}, v{t3}, v{t2}, vcc")
            a.i(f"v_accvgpr_write_b32 a{SEL+2+hf}, v{t3}")
        for r in (0, 1, 4, 5): a.i(f"v_accvgpr_write_b32 a{SEL+r}, 0")
        a.i(f"v_mul_u32_u24 v{t0}, 1152, v{vn}"); a.i(f"v_lshl_add_u32 v{t0}, v{vq}, 3, v{t0}")
        a.i(f"v_accvgpr_write_b32 a{st('ov')}, v{t0}")
    S_(su_T)
    def su_col():
        a.i(f"s_and_b32 s{sT2}, s{sS}, 1")
        a.i(f"s_lshl_b32 s{sT0}, s{sT2}, 6"); a.i(f"s_add_u32 s{sCol[0]}, s{sT0}, 512")
        a.i(f"s_mul_i32 s{sT2}, s{sT2}, 640"); a.i(f"s_lshr_b32 s{sT1}, s{sI}, 1")
        for p in range(1, 5):
            a.i(f"s_add_u32 s{sT0}, s{sT1}, {p}"); a.i(f"s_and_b32 s{sT0}, s{sT0}, 3")
            a.i(f"s_lshl_b32 s{sT0}, s{sT0}, 7"); a.i(f"s_add_u32 s{sCol[p]}, s{sT0}, s{sT2}")

    stages = {}
    post = {}
    def X(S, t): return f"v[{XN+8*S+4*t}:{XN+8*S+4*t+3}]"
    def slot_of(k): return (k + 2) % 4 if (k < 6 and nraw > 2) else k % NS
    def grp(k, g, srdreg, soffs, vregs):
        slot = slot_of(k) * SLOT
        out = [("s", f"s_add_u32 m0, s{sMq}, {slot + 3072*g}")]
        out += [("s", t) for t in soffs]
        for i, v in enumerate(vregs):
            out.append(("m", f"buffer_load_dwordx4 v{v}, s[{srdreg}:{srdreg+3}], s{sOff} offen offset:{1024*i} lds"))
        return out
    k = 0
    for stg in range(6):
        dma = []
        for P in range(2):
            dma += grp(k, P, SQKV, [f"s_add_u32 s{sOff}, s{sKr3[stg//2]}, {(stg%2)*96*3456 + 128*P}"], vS)
        fr = []
        for uu in range(3):
            S = 3*stg + uu
            for tau in range(7):
                P = tau // 4; off = 1024*(3*P + uu) + 512*((tau % 4)//2) + 32*(tau % 2)
                fr.append((off, QACC + 8*tau, X(S, 0), X(S, 1), S == 0, ("Q", S, tau)) + ((D2 + 4*tau,) if stg < nraw else ()))
        stages[k] = dict(dma=dma, fr=fr); k += 1
    rot = 2
    for j in range(4):
        ag = ACC[rot % 3]; au = ACC[(rot + 1) % 3]; rot += 2
        for (srdreg, acc) in ((SG, ag), (SU, au)):
            for stg in range(3):
                dma = grp(k, 0, srdreg, [f"s_add_u32 s{sOff}, s{sPair[j]}, s{sKr9[stg]}"], vA)
                dma += grp(k, 1, srdreg, [f"s_add_u32 s{sOff}, s{sOff}, {96*9216}"], vA)
                fr = []
                for uu in range(6):
                    S = 6*stg + uu
                    for tau in range(4):
                        fr.append((1024*uu + 512*(tau//2) + 32*(tau%2), acc + 8*tau, X(S, 0), X(S, 1), S == 0, None))
                stages[k] = dict(dma=dma, fr=fr); k += 1
        post[k-1] = ("h", [ag, au], [(ag, au, 2*j), (ag+16, au+16, 2*j+1)])
    ag = ACC[rot % 3]
    for stg in range(3):
        dma = grp(k, 0, SG, [f"s_add_u32 s{sOff}, s{sSing}, s{sKr9[stg]}"], vS) + grp(k, 1, SU, ["s_nop 0"], vS)
        if stg == 0: dma = [("v", f"v_accvgpr_read_b32 v{vS[i]}, a{st('sing',3)+i}") for i in range(3)] + dma
        fr = []
        for uu in range(6):
            S = 6*stg + uu
            for m in range(2):
                for c in range(2):
                    fr.append((3072*m + 1024*(uu//2) + 512*(uu%2) + 32*c, ag + 16*m + 8*c, X(S, 0), X(S, 1), S == 0, None))
        stages[k] = dict(dma=dma, fr=fr); k += 1
    post[k-1] = ("h", [ag], [(ag, ag+16, 8)])
    assert k == 33
    KB0 = 36
    ent = [(p, ks) for ks in range(21) for p in (1, 0)]
    for p in (2, 3, 4): ent += [(p, ks) for ks in range(21)]
    BACC = {0: 144, 1: 176, 2: 208, 3: 144, 4: 176}
    def Hop(ks, t):
        if ks < 10: b = H + 8*ks + 4*t
        elif ks < 20: b = HP + 8*(ks-10) + 4*t
        else: b = HB + 4*t
        return f"a[{b}:{b+3}]"
    nBst = (len(ent) + 5) // 6
    last_fr = [[], []]
    bpost = {}
    for sb in range(nBst):
        k = KB0 + sb; slot = (k % NS) * SLOT
        dma = []; fr = []
        for u, (p, ks) in enumerate(ent[6*sb:6*sb+6]):
            i = u % 3
            if i == 0: dma.append(("s", f"s_add_u32 m0, s{sMq}, {slot + 3072*(u//3)}"))
            kk = ks % 10
            if ks == 20:
                dma.append(("v", f"v_accvgpr_read_b32 v{vT1}, a{st('Obm' if p == 0 else 'Ob')}"))
                dma.append(("v", f"v_add_u32 v{vT1}, {2048-1024*i}, v{vT1}"))
                dma.append(("m", f"buffer_load_dwordx4 v{vT1}, s[{SO}:{SO+3}], s{sCol[p]} offen offset:{1024*i} lds"))
            elif kk == 9:
                dma.append(("v", f"v_accvgpr_read_b32 v{vT1}, a{st('Oam' if p == 0 else 'Oa')}"))
                dma.append(("v", f"v_add_u32 v{vT1}, {2048-1024*i}, v{vT1}"))
                dma.append(("s", f"s_add_u32 s{sOff}, s{sAo if ks < 10 else sAp}, s{sCol[p]}"))
                dma.append(("m", f"buffer_load_dwordx4 v{vT1}, s[{SO}:{SO+3}], s{sOff} offen offset:{1024*i} lds"))
            else:
                tab = sKo if ks < 10 else sKp
                so = sOff2 if p == 0 else sOff
                if kk % 2 == 0: dma.append(("s", f"s_add_u32 s{so}, s{tab[kk//2]}, s{sCol[p]}"))
                else: dma.append(("s", f"s_add_u32 s{so}, s{so}, {32*1152}"))
                v = (vA if p == 0 else vS)[i]
                dma.append(("m", f"buffer_load_dwordx4 v{v}, s[{SD}:{SD+3}], s{so} offen offset:{1024*i} lds"))
            for tau in range(2 if p == 0 else 4):
                f = (1024*u + 512*(tau//2) + 32*(tau%2), BACC[p] + 8*tau, Hop(ks, 0), Hop(ks, 1), ks == 0, ("B", p, ks, tau))
                if p == 4 and tau >= 2: last_fr[1].append((k,) + f)
                else: fr.append(f)
        stages[k] = dict(dma=dma, fr=fr)
    KEND = KB0 + nBst

    def emit_dma(k):
        for it in stages[k]["dma"]: emit_dma_item(k, it)

    fill = deque(); fill2 = deque(); dmaq = deque(); extq = []; spin_blocks = []; pubs = []; toks = {}
    hooks = {}; ihooks = {}
    def emit_fill(it):
        kind, txt = it[1], it[2]
        if kind == "m": return a.vm(txt)
        if kind == "d": return a.ds(txt)
        if kind == "f": return txt()
        a.i(txt)
    def F(nb, kind, txt, sets=(), space=0): fill.append((nb, kind, txt, list(sets), space))
    def Fm(nb, name, txt, sets=(), space=0):
        def fn(): toks[name] = a.vm(txt)
        fill.append((nb, "f", fn, list(sets), space))
    def G(nb, kind, txt, space=0): fill2.append((nb, kind, txt, [], space))
    def Gm(nb, name, txt, space=0):
        def fn(): toks[name] = a.vm(txt)
        fill2.append((nb, "f", fn, [], space))
    def poll_check(name, va, vf, soff="0", offs=0):
        a.wait(vm=toks[name])
        a.i(f"v_cmp_ne_u32 vcc, s{sTag}, v{vf}")
        a.i("s_nop 0")
        a.i("s_cmp_lg_u64 vcc, 0")
        a.i(f"s_cbranch_scc1 L_spin_{name}")
        a.label(f"L_back_{name}")
        spin_blocks.append((name, va, vf, soff, offs))
    def stream(frs, dma_after, flush=True, gap=gap):
        N = len(frs); first_of = {}
        for i, f in enumerate(frs): first_of.setdefault(f[0], i)
        rd = {}; nextbar = [0]; hold_until = [0]; lastd = [-100]; gpf = 3 if len(frs[0]) > 7 else 2
        def rd_half(i, hf):
            k, off = frs[i][0], frs[i][1]
            o = slot_of(k) * SLOT + off; base = vRd[o // (2*SLOT)]; oo = o % (2*SLOT)
            fb = FR + 4*(i % NB) + 2*hf
            rd[i] = a.ds(f"ds_read_b64_tr_b16 a[{fb}:{fb+1}], v{base} offset:{oo + 256*hf}")
        def pre_read(i, cur):
            k = frs[i][0]
            if first_of[k] == i:
                nfl = 0
                while any(kk == k for kk, _ in dmaq):
                    kk, it = dmaq.popleft(); emit_dma_item(kk, it); nfl += 1
                if nfl: print("late flush", nfl, "at", k, file=sys.stderr)
                tr.stage = k; tr(f"w{k}")
                a.wait(vm=dma_tok[k])
                a.i("s_barrier")
                tr(f"b{k}")
                for p in list(pubs):
                    if p[3] and toks.get(p[0]) is not None and toks[p[0]] <= a.vm_done:
                        p[1](); pubs.remove(p); print("pub", p[0], "at barrier", k, file=sys.stderr)
                for kk in dma_after(k):
                    for it in stages[kk]["dma"]: dmaq.append((kk, it))
                if k in hooks: hooks[k](cur)
                nextbar[0] = first_of.get(k + 1, N + D) - D
                return True
            return False
        for i in range(min(D, N)):
            pre_read(i, 0); rd_half(i, 0); rd_half(i, 1)
        a.wait(lg=rd[1])
        gi = 0; lastm = -100
        def other(i):
            nonlocal lastm
            for p in list(pubs):
                if not p[3] and toks.get(p[0]) is not None:
                    if toks[p[0]] <= a.vm_done or (p[2][0] is not None and i >= p[2][0]):
                        print("pub", p[0], "at frag", i, "stage", frs[i][0], "forced" if toks[p[0]] > a.vm_done else "", file=sys.stderr); a.wait(vm=toks[p[0]]); p[1](); pubs.remove(p); return
                    if p[2][0] is None: p[2][0] = i + p[2][1]
            if dmaq:
                kk, it = dmaq[0]
                ok = True
                if it[0] == "h":
                    dmaq.popleft(); hold_until[0] = gi + it[1]; ok = False
                elif it[0] == "m":
                    if kk == "z": ok = gi - lastm >= 2
                    else:
                        g_eff = gap; urgent = False; cnt = 0
                        for k2, it2 in dmaq:
                            if it2[0] != "m": continue
                            cnt += 1
                            if k2 in first_of:
                                dl = gpf * (first_of[k2] - D) - lead
                                if gi + cnt * gap > dl: g_eff = min(g_eff, max(2, (dl - gi) // cnt)); urgent = True
                        ok = gi - lastd[0] >= g_eff and gi - lastm >= 2 and (gi >= hold_until[0] or urgent)
                if ok:
                    dmaq.popleft(); emit_dma_item(kk, it)
                    if isinstance(it[1], str) and it[1].startswith("s_cmp"):
                        kk, it = dmaq.popleft(); emit_dma_item(kk, it)
                    if it[0] == "m": lastm = gi; lastd[0] = gi
                    return
            for q_ in (fill, fill2):
                if q_ and q_[0][0] <= i and (q_[0][4] == 0 or gi - lastm >= q_[0][4]):
                    it = q_.popleft(); emit_fill(it)
                    if it[4]: lastm = gi
                    return
        for i in range(N):
            k, off, acc, b0, b1, first, tag = frs[i][:7]
            if first_of[k] == i: astamp_stage(k)
            if i in ihooks: ihooks.pop(i)(i)
            if tag in ihooks: ihooks.pop(tag)(i)
            while extq: dmaq.append(extq.pop(0))
            assert rd[i] <= a.lg_done
            fb = FR + 4*(i % NB)
            if first:
                nd = 0
                while any(any((x <= acc < x + 32) if isinstance(x, int) else (x[0] <= acc < x[1]) for x in it[3]) for it in fill):
                    emit_fill(fill.popleft()); nd += 1
                if nd: print("drained", nd, "at stage", k, file=sys.stderr); a.i("s_nop 1")
            for t, b in enumerate((b0, b1)):
                d = f"v[{acc+4*t}:{acc+4*t+3}]"
                a.i(f"{MF} {d}, a[{fb}:{fb+3}], {b}, {'0' if first else d}")
                used = False
                if i + D < N:
                    if t == 0: used = pre_read(i + D, i)
                    rd_half(i + D, t)
                if t == 1 and i + 1 < N and rd[i+1] > a.lg_done:
                    a.wait(lg=rd[min(i+2, N-1)]); used = True
                if not used: other(i)
                gi += 1
            if len(frs[i]) > 7:
                d = f"v[{frs[i][7]}:{frs[i][7]+3}]"
                a.i(f"{MF} {d}, a[{fb}:{fb+3}], a[{ONES}:{ONES+3}], {'0' if first else d}")
                other(i); other(i); gi += 1
            if tag in bpost: bpost[tag](i + 3)
            if (i + 1 == N or frs[i+1][0] != k) and k in post: do_post(post.pop(k), i + 3)
        while dmaq:
            kk, it = dmaq.popleft(); emit_dma_item(kk, it)
        a.i("s_nop 7")
        while fill: emit_fill(fill.popleft())
        while fill2: emit_fill(fill2.popleft())
    def astamp_stage(k):
        if k == 6: astamp("P:qend")
        if 6 <= k < 33 and k % 3 == 0: astamp(f"A:{k}")
        if k < 6: astamp(f"Q:{k}")
        if k >= 36 and k % 2 == 0: astamp(f"B:{k}")
    def pack4(nb, d, e, sets):
        F(nb, "v", f"v_cvt_pk_bf16_f32 v{d}, v{d}, v{d+1}", sets); F(nb, "v", f"v_cvt_pk_bf16_f32 v{d+1}, v{d+2}, v{d+3}", sets)
        F(nb, "v", f"v_cvt_pk_bf16_f32 v{d+2}, v{e}, v{e+1}", sets); F(nb, "v", f"v_cvt_pk_bf16_f32 v{d+3}, v{e+2}, v{e+3}", sets)
    def flag_store(voff_txts, soff, offs=0):
        for t in voff_txts: a.i(t)
        a.i(f"v_mov_b32 v{q1}, s{sTag}")
        a.vm(f"buffer_store_dword v{q1}, v{q0}, {WS}, {soff} offen offset:{offs} sc1")
    def do_post(p, nb):
        if p[0] == "h":
            sets = p[1]
            for (g, u_, ks) in p[2]:
                F(nb, "s", f"s_add_u32 s{sPst}, s{sHst}, {2048*ks}", sets)
                for t in range(2):
                    for c in range(2):
                        for r in range(4):
                            o = 8*c + 4*t + r
                            F(nb, "v", f"v_mul_f32 v{g+o}, v{g+o}, v{u_+o}", sets)
                    pack4(nb, g + 4*t, g + 8 + 4*t, sets)
                    for r in range(4):
                        F(nb, "v", f"v_accvgpr_write_b32 a{H+8*ks+4*t+r}, v{g+4*t+r}", sets)
                    Fm(nb, "h1st" if (ks, t) == (3, 1) else "hst", f"buffer_store_dwordx4 v[{g+4*t}:{g+4*t+3}], v{vL16}, {WS}, s{sPst} offen offset:{1024*t} sc1", sets, 3)
            if p[2][-1][2] == 3:
                pubs.append(("h1st", lambda: flag_store([f"v_accvgpr_read_b32 v{q0}, a{st('hfo')}"], "0", 8), [None, 110], False))
        elif p[0] == "q":
            sets = p[1]
            F(nb, "v", f"v_accvgpr_read_b32 v{q0}, a{st('stq')}", sets)
            for tau in range(7):
                if tau == 6: F(nb, "v", f"v_accvgpr_read_b32 v{q0}, a{st('stq2')}", sets)
                F(nb, "s", f"s_add_u32 s{sPst}, s{sQst}, {4096*tau}", sets)
                for t in range(2):
                    b = QACC + 8*tau + 4*t
                    F(nb, "v", f"v_cvt_pk_bf16_f32 v{b}, v{b}, v{b+1}", sets); F(nb, "v", f"v_cvt_pk_bf16_f32 v{b+1}, v{b+2}, v{b+3}", sets)
                    Fm(nb, "qdone" if (tau, t) == (6, 1) else "qst", f"buffer_store_dwordx2 v[{b}:{b+1}], v{q0}, {WS}, s{sPst} offen offset:{128*t} sc1", sets, 3)
            def pubq():
                a.i(f"s_lshl_b32 s{sT0}, s{sR}, 4"); a.i(f"s_add_u32 s{sT0}, s{sT0}, s{sS}")
                a.i(f"s_lshl_b32 s{sT0}, s{sT0}, 7"); a.i(f"s_add_u32 s{sT0}, s{sT0}, {QF_BASE}")
                flag_store([f"v_mov_b32 v{q0}, 0"], f"s{sT0}")
            pubs.append(("qdone", pubq, [None, 0], True))

    def hook7(cur): toks["tag"] = a.vm(f"buffer_load_dword v{vT1}, off, s[{SDBG}:{SDBG+3}], 0 sc1")
    hooks[7] = hook7
    def hook10(cur):
        a.wait(vm=toks["tag"])
        a.label("L_tagchk")
        a.i(f"v_readfirstlane_b32 s{sTag}, v{vT1}")
        a.i("s_nop 0")
        a.i(f"s_cmp_eq_u32 s{sTag}, 0")
        a.i("s_cbranch_scc1 L_tagspin")
        a.label("L_tagok")
    hooks[10] = hook10
    DUM = f"a[{HP+76}:{HP+79}]"
    nw = 8 << lg_rpx
    def wid_code():
        return [("s", f"s_and_b32 s{sT3}, s{sR}, {(1 << lg_rpx) - 1}"), ("s", f"s_lshl_b32 s{sT3}, s{sT3}, 1"),
                ("s", f"s_and_b32 s{sT1}, s{sS}, 1"), ("s", f"s_add_u32 s{sT3}, s{sT3}, s{sT1}"),
                ("s", f"s_lshl_b32 s{sT3}, s{sT3}, 2"), ("s", f"s_add_u32 s{sT3}, s{sT3}, s{sW}")]
    def pf1_items():
        L = wid_code()
        L += [("v", f"v_accvgpr_read_b32 v{q2}, a{st('pt')}"), ("m", f"buffer_load_dword a{HP+75}, v{q2}, {WS}, 0 offen sc1")]
        if gupf is True: return L
        per = (18 * 4 + nw - 1) // nw
        L += [("s", f"s_lshr_b32 s{sT0}, s{sT3}, 2"), ("s", f"s_and_b32 s{sT1}, s{sSing}, 0xffffff80")]
        for j in range(per):
            L += [("s", f"s_add_u32 s{sT2}, s{sT0}, {j * (nw // 4)}"), ("s", f"s_mul_i32 s{sT2}, s{sT2}, {32*9216}"),
                  ("s", f"s_add_u32 s{sT2}, s{sT2}, s{sT1}"),
                  ("m", f"buffer_load_dwordx4 {DUM}, v{vA[0]}, s[{SG}:{SG+3}], s{sT2} offen"),
                  ("m", f"buffer_load_dwordx4 {DUM}, v{vA[0]}, s[{SU}:{SU+3}], s{sT2} offen")]
        return L
    def gu_items():
        assert lg_rpx == 4
        L = [("s", f"s_and_b32 s{sT1}, s{sS}, 1"), ("s", f"s_mul_i32 s{sT2}, s{sI}, 1152"),
             ("s", f"s_mul_i32 s{sT0}, s{sR}, {32*9216}"), ("s", f"s_add_u32 s{sT0}, s{sT0}, s{sT2}"),
             ("s", f"s_lshl_b32 s{sT3}, s{sT1}, 7"), ("s", f"s_add_u32 s{sT0}, s{sT0}, s{sT3}")]
        for j in range(5):
            for sr in ((SU,) if gupf == 'U' else (SG, SU)):
                L.append(("m", f"buffer_load_dwordx4 {DUM}, v{vA[0]}, s[{sr}:{sr+3}], s{sT0} offen offset:{256*j}"))
        L += [("s", f"s_add_u32 s{sT1}, s{sT1}, 16"), ("s", f"s_mul_i32 s{sT1}, s{sT1}, {32*9216}"), ("s", f"s_add_u32 s{sT1}, s{sT1}, s{sT2}"),
              ("s", f"s_min_u32 s{sT3}, s{sR}, 8"), ("s", f"s_lshl_b32 s{sT3}, s{sT3}, 7"), ("s", f"s_add_u32 s{sT1}, s{sT1}, s{sT3}")]
        for sr in ((SU,) if gupf == 'U' else (SG, SU)):
            L.append(("m", f"buffer_load_dwordx4 {DUM}, v{vA[0]}, s[{sr}:{sr+3}], s{sT1} offen"))
        return L
    def pf2_items():
        L = []
        for j in range((81 + nw - 1) // nw):
            L += [("s", f"s_add_u32 s{sT2}, s{sT3}, {j * nw + 2}"), ("s", f"s_min_u32 s{sT2}, s{sT2}, 82"),
                  ("s", f"s_lshl_b32 s{sT2}, s{sT2}, 10"), ("s", f"s_mul_i32 s{sT1}, s{sI}, {72*1152}"), ("s", f"s_add_u32 s{sT2}, s{sT2}, s{sT1}"),
                  ("m", f"buffer_load_dwordx4 {DUM}, v{vL16}, s[{SO}:{SO+3}], s{sT2} offen")]
        per_wave = 576 * 1152 // nw
        L += [("s", f"s_mul_i32 s{sT0}, s{sT3}, {per_wave}"), ("s", f"s_mul_i32 s{sT1}, s{sI}, {576*1152}"),
              ("s", f"s_add_u32 s{sT0}, s{sT0}, s{sT1}"), ("s", f"s_add_u32 s{sT0}, s{sT0}, 2048")]
        for j in range((per_wave + 1023) // 1024):
            if j % 4 == 0 and j: L.append(("s", f"s_add_u32 s{sT0}, s{sT0}, 4096"))
            L.append(("m", f"buffer_load_dwordx4 {DUM}, v{vL16}, s[{SD}:{SD+3}], s{sT0} offen offset:{1024*(j%4)}"))
        return L
    def hook_poll_issue(cur):
        a.i(f"v_accvgpr_read_b32 v{q0}, a{st('qf')}")
        toks["kv"] = a.vm(f"buffer_load_dword v{q1}, v{q0}, {WS}, 0 offen sc1")
    def hook_poll_check(cur):
        poll_check("kv", q0, q1)
        for hd, nm in enumerate(("qA", "qB")):
            G(cur, "v", f"v_accvgpr_read_b32 v{q2}, a{st(nm)}")
            for t in range(2):
                for hf in range(2):
                    d = aQ + 8*hd + 4*t + 2*hf
                    Gm(cur, "qld", f"buffer_load_dwordx2 a[{d}:{d+1}], v{q2}, {WS}, s{sQld} offen offset:{128*t + 1024*hf} sc1", 3)
    hooks[19] = hook_poll_issue
    hooks[21] = hook_poll_check
    def h1_issue(cur):
        assert not any(p[0] == "h1st" for p in pubs) and not fill2
        a.i(f"v_accvgpr_read_b32 v{q0}, a{st('hfp')}")
        toks["h1"] = a.vm(f"buffer_load_dword v{q1}, v{q0}, {WS}, 0 offen offset:8 sc1")
    def h1_check(cur):
        poll_check("h1", q0, q1, "0", 8)
        for ks in range(4):
            for t in range(2):
                o = 2048*ks + 1024*t; d = HP + 8*ks + 4*t
                if o % 4096 == 0: G(cur, "s", f"s_add_u32 s{sT3}, s{sHld}, {o}")
                G(cur, "m", f"buffer_load_dwordx4 a[{d}:{d+3}], v{vL16}, {WS}, s{sT3} offen offset:{o % 4096} sc1", 5)
    hooks[26] = h1_issue
    hooks[28] = h1_check
    def hook_pf(cur):
        if not l2pf: return
        L = [("z", it) for it in pf1_items() + pf2_items()] + [("z", ("h", hold))]
        for it in reversed(L): dmaq.appendleft(it)
    hooks[pfk] = hook_pf
    pre36 = []
    for regs, nm in ((vA, 'Dm'), (vS, 'D')):
        pre36.append(("v", f"v_accvgpr_read_b32 v{regs[2]}, a{st(nm)}"))
        pre36 += [("v", f"v_add_u32 v{regs[i]}, {2048-1024*i}, v{regs[2]}") for i in range(2)]
    stages[36]["dma"] = pre36 + stages[36]["dma"]
    def kv_dma(cur, mat):
        base = TBASE + mat*10*GS; go = mat*144*1024
        L = []
        L.append(("s", f"s_mul_i32 s{sT2}, s{sW}, {GS}"))
        L.append(("s", f"s_add_u32 m0, s{sT2}, {base}"))
        for r2 in range(3):
            L.append(("s", f"s_add_u32 s{sT0}, s{sKV[r2]}, {go}"))
            L.append(("m", f"buffer_load_dwordx4 v{vL16}, {WS}, s{sT0} offen offset:{1024*r2} sc1 lds"))
        L.append(("s", f"s_min_u32 s{sT1}, s{sT2}, {GS}"))
        L.append(("s", f"s_add_u32 s{sT1}, s{sT1}, s{sT2}"))
        L.append(("s", f"s_add_u32 m0, s{sT1}, {base + 4*GS}"))
        for r2 in range(3):
            L.append(("s", f"s_add_u32 s{sT0}, s{sKV[r2]}, {go + 4096}"))
            L.append(("m", f"buffer_load_dwordx4 v{vL16}, {WS}, s{sT0} offen offset:{1024*r2} sc1 lds"))
        L.append(("s", f"s_cmp_eq_u32 s{sW}, 1")); L.append(("s", f"s_cselect_b32 s{sT0}, s{sKV[1]}, s{sKV[2]}"))
        L.append(("s", f"s_cmp_eq_u32 s{sW}, 0")); L.append(("s", f"s_cselect_b32 s{sT0}, s{sKV[0]}, s{sT0}"))
        L.append(("s", f"s_min_u32 s{sT1}, s{sW}, 2")); L.append(("s", f"s_sub_u32 s{sT2}, s{sT1}, s{sW}"))
        L.append(("s", f"s_lshl_b32 s{sT2}, s{sT2}, 10")); L.append(("s", f"s_add_u32 s{sT0}, s{sT0}, s{sT2}"))
        L.append(("s", f"s_lshl_b32 s{sT1}, s{sT1}, 10"))
        L.append(("s", f"s_add_u32 m0, s{sT1}, {base + 9*GS}"))
        L.append(("s", f"s_add_u32 s{sT0}, s{sT0}, {go + 8192}"))
        L.append(("m", f"buffer_load_dwordx4 v{vL16}, {WS}, s{sT0} offen sc1 lds"))
        L.append(("v", f"v_add_u32 v{q2}, s{sT1}, v{vL16}"))
        d = KVS + 4*mat
        if mat == 0:
            L.append(("s", f"s_cmp_ge_u32 s{sT0}, {OOB}")); L.append(("s", f"s_cselect_b32 s{sT0}, 0xf149, 0"))
            L += [("v", f"v_accvgpr_write_b32 a{d}, s{sT0}"), ("v", f"v_accvgpr_write_b32 a{d+1}, 0"),
                  ("v", f"v_accvgpr_write_b32 a{d+2}, s{sT0}"), ("v", f"v_accvgpr_write_b32 a{d+3}, 0")]
        else:
            L += [("v", f"v_accvgpr_write_b32 a{d+r}, s{sC0}") for r in range(4)]
        L.append(("v", f"v_add_u32 v{q2}, {base + 5*GS}, v{q2}"))
        L.append(("d", f"ds_write_b128 v{q2}, a[{d}:{d+3}]"))
        return L
    stages[34] = dict(dma=kv_dma(0, 0), fr=[]); stages[35] = dict(dma=kv_dma(0, 1), fr=[])
    if nraw: emit_dma(0)
    xdma(1)
    a.i(f"s_mov_b32 s{sC0}, 0x3f803f80"); a.i(f"s_mov_b32 s{sC1}, 0xffff0000")
    for r in S1 + S2: a.i(f"v_mov_b32 v{r}, 0")
    for r in range(4): a.i(f"v_accvgpr_write_b32 a{ONES+r}, s{sC0}")
    setup[0]()
    xdma(2)
    su_cas()
    def warm():
        if not iwarm: return
        a.i("s_mov_b64 exec, 0")
        for w in range(3):
            a.i(f"s_cmp_eq_u32 s{sW}, {w}"); a.i(f"s_cbranch_scc1 L_w{w}")
        a.i("s_branch L_w3")
        a.label("L_wret")
        a.i("s_mov_b64 exec, -1")
    rest = setup[1:]; rest.insert(warmat + 2, warm)
    xrd = {}
    def stats(ch):
        for S in (2*ch, 2*ch+1):
            for i in range(4):
                for t in range(2):
                    x = XN + 8*S + 4*t + i
                    a.i(f"v_dot2_f32_bf16 v{S1[t]}, v{x}, s{sC0}, v{S1[t]}")
                    a.i(f"v_dot2_f32_bf16 v{S2[t]}, v{x}, v{x}, v{S2[t]}")
    def xread(ch):
        assert not extq
        while any(kk == ("x", ch) for kk, _ in dmaq):
            kk, it = dmaq.popleft(); emit_dma_item(kk, it)
        a.wait(vm=dma_tok[("x", ch)])
        for Sb in range(2):
            for t in range(2):
                xrd[ch] = a.ds(f"ds_read_b128 {X(2*ch + Sb, t)}, v{vXr[Sb]} offset:{16384*(ch%3) + 2048*t}")
        if ch: stats(ch - 1)
        if ch + 3 < 9:
            a.wait(lg=xrd[ch])
            for it in xdma_items(ch + 3): extq.append((("x", ch + 3), it))
    def flush_ext():
        xq = list(extq); del extq[:]
        for kk, it in xq: emit_dma_item(kk, it)
    issued = set()
    if nraw:
        for fn in rest: fn()
        astamp("Q:setup")
        xread(0); flush_ext(); emit_dma(1)
        nfr = 21 * nraw
        for ch in range(1, 9):
            at = min((ch * nfr) // 9, (2*ch - 1) * 7 + 2)
            S, tau = at // 7, at % 7
            while ("Q", S, tau) in ihooks or tau == 0: tau += 1
            ihooks[("Q", S, tau)] = (lambda i, ch=ch: xread(ch))
            if 2*ch < 3*nraw: ihooks[("Q", 2*ch, 0)] = (lambda i, ch=ch: a.wait(lg=xrd[ch]))
        stream([(k,) + f for k in range(nraw) for f in stages[k]["fr"]], lambda k: [k + 2], gap=2)
        nxt = nraw + 2
    else:
        rest[0](); rest[1](); rest = rest[2:]
        for ch in range(9):
            xread(ch); flush_ext()
            if ch == 6: emit_dma(0)
            if rest: rest.pop(0)()
        assert not rest
        nxt = 1
    su_col()
    a.wait(lg=xrd[8])
    stats(8)
    if nraw: a.i("s_barrier")
    astamp("P:stats"); astamp("Q:end")
    u = vX; vals = S1 + S2; PR = [232, 238]
    inv = 1.0/576.0
    pre = [kk for kk in range(nxt, nraw + 4) if not (kk >= 6 and slot_of(kk) in [slot_of(x) for x in range(nraw, 6)])
           and not (kk < 6 and any(slot_of(kk) == slot_of(x) for x in range(nraw, kk)))]
    pre = pre[:lnpre]
    print("pre-issued in LN:", pre, file=sys.stderr)
    vq_ = deque([(kk, it) for kk in pre for it in stages[kk]["dma"]] + ([("z", it) for it in gu_items()] if gupf else []))
    if gupf: dmaq.append(("z", ("h", hold0)))
    def vside():
        while vq_:
            kk, it = vq_.popleft(); emit_dma_item(kk, it)
            if it[0] == "m": break
    vside()
    a.i("s_nop 1")
    for sw in ("v_permlane32_swap_b32", "v_permlane16_swap_b32"):
        for i in range(4): a.i(f"v_mov_b32 v{u[i]}, v{vals[i]}")
        a.i("s_nop 0")
        for i in range(4): a.i(f"{sw} v{vals[i]}, v{u[i]}")
        a.i("s_nop 0")
        for i in range(4): a.i(f"v_add_f32 v{vals[i]}, v{vals[i]}, v{u[i]}")
    def both(fmt):
        for t in range(2): a.i(fmt.format(m=S1[t], q=S2[t], rs=PR[t], nm=PR[t]+1))
    both("v_mul_f32 v{m}, %s, v{m}" % f2u(inv)); both("v_mul_f32 v{q}, %s, v{q}" % f2u(inv))
    both("v_fma_f32 v{q}, -v{m}, v{m}, v{q}"); both("v_max_f32 v{q}, 0, v{q}")
    both("v_cvt_pk_bf16_f32 v{m}, v{m}, v{m}"); both("v_lshlrev_b32 v{m}, 16, v{m}")
    def rq(): both("v_cvt_pk_bf16_f32 v{q}, v{q}, v{q}"); both("v_lshlrev_b32 v{q}, 16, v{q}")
    rq(); both("v_add_f32 v{q}, %s, v{q}" % f2u(1e-5)); rq()
    both("v_sqrt_f32 v{q}, v{q}"); a.i("s_nop 0"); rq()
    both("v_rcp_f32 v{rs}, v{q}"); a.i("s_nop 0")
    both("v_mul_f32 v{nm}, v{m}, v{rs}"); both("v_sub_f32 v{nm}, 0, v{nm}")
    vside()
    if nraw:
        for tau in range(7):
            for t in range(2):
                for r in (0, 2):
                    b = QACC + 8*tau + 4*t + r
                    a.i(f"v_pk_mul_f32 v[{b}:{b+1}], v[{b}:{b+1}], v[{PR[t]}:{PR[t]+1}] op_sel:[0,0] op_sel_hi:[1,0]")
            for t in range(2):
                for r in (0, 2):
                    b = QACC + 8*tau + 4*t + r; d = D2 + 4*tau + r
                    a.i(f"v_pk_fma_f32 v[{b}:{b+1}], v[{d}:{d+1}], v[{PR[t]}:{PR[t]+1}], v[{b}:{b+1}] op_sel:[0,1,0] op_sel_hi:[1,1,1]")
            if tau % 3 == 2: vside()
    TP = [D2 + 2*i for i in range(4)]
    for S in range(18):
        for t in range(2):
            for i in range(4):
                x = XN + 8*S + 4*t + i; tp = TP[i]
                a.i(f"v_lshlrev_b32 v{tp}, 16, v{x}"); a.i(f"v_and_b32 v{tp+1}, s{sC1}, v{x}")
            for i in range(4):
                tp = TP[i]
                a.i(f"v_pk_fma_f32 v[{tp}:{tp+1}], v[{tp}:{tp+1}], v[{PR[t]}:{PR[t]+1}], v[{PR[t]}:{PR[t]+1}] op_sel:[0,0,1] op_sel_hi:[1,0,1]")
            for i in range(4):
                x = XN + 8*S + 4*t + i; tp = TP[i]
                a.i(f"v_cvt_pk_bf16_f32 v{x}, v{tp}, v{tp+1}")
            n_ = 2*S + t
            if not gupf:
                if n_ % (36 // (6*lnpre)) == 0: vside()
            elif n_ < gu_at:
                if vq_ and vq_[0][0] != "z" and (n_ * (6*lnpre - 2)) // gu_at != ((n_ + 1) * (6*lnpre - 2)) // gu_at: vside()
            else: vside()
    while vq_: vside()
    astamp("P:ln")
    if nraw == 6: do_post(("q", [ACC[0], ACC[1]]), 0)
    else: post[5] = ("q", [ACC[0], ACC[1]])
    todo = [kk for kk in range(nraw, 33) if kk not in dma_tok]
    def dma_after_A(k):
        out = []
        while todo and todo[0] <= k + 4:
            kk = todo[0]
            prev = [x for x in range(nraw, kk) if slot_of(x) == slot_of(kk)]
            if prev and max(prev) > k - 2: break
            out.append(todo.pop(0))
        if k == 30: out.append(34)
        if k == 31: out.append(35)
        if k == 32: out.append(36)
        return out
    stream([(k,) + f for k in range(nraw, 33) for f in stages[k]["fr"]], dma_after_A)
    assert not todo
    astamp("P:aend"); astamp("A:end"); astamp("T:0")

    a.wait(vm=max(dma_tok[34], toks["qld"]), lg=a.lg_issued)
    a.i("s_barrier")
    SS = 0; OA = 144; QO = 176; MFi = 192; MLa = 196
    aKA, aKB, aV0, aV1 = 200, 201, 202, 203
    mx = [204, 206]; nmx = [208, 210]; w0, w1, w2, w3 = 212, 213, 214, 215
    def Sr(t, kt): return SS + 72*t + 4*kt
    side = deque()
    def side_group(kk, items):
        cur = []
        for it in items:
            cur.append(it)
            if it[0] == "m":
                side.append(lambda kk=kk, cur=cur: [emit_dma_item(kk, x) for x in cur]); cur = []
        assert not cur
    side_group(37, stages[37]["dma"])
    side_group(38, stages[38]["dma"])
    for nm, r in (("KA", aKA), ("KB", aKB), ("V0", aV0), ("V1", aV1)): a.i(f"v_accvgpr_read_b32 v{r}, a{st(nm)}")
    fbn = [0]
    def nextfb():
        fb = FR + 4*(fbn[0] % 8); fbn[0] += 1; return fb
    def rd_k(hd, kt, lazy=None):
        fb = nextfb(); v = aKB if hd else aKA
        o = [f"ds_read_b64 a[{fb}:{fb+1}], v{v} offset:{128*kt}", f"ds_read_b64 a[{fb+2}:{fb+3}], v{v} offset:{128*kt + GS}"]
        if lazy is not None: lazy += o; return fb, None
        a.ds(o[0]); return fb, a.ds(o[1])
    def rd_v(hd, kap, tile, lazy):
        fb = nextfb(); v = aV1 if tile else aV0; o = 256*kap + (6*GS if (hd and not tile) else 0)
        lazy += [f"ds_read_b64_tr_b16 a[{fb}:{fb+1}], v{v} offset:{o}", f"ds_read_b64_tr_b16 a[{fb+2}:{fb+3}], v{v} offset:{o+128}"]
        return fb, None
    kf = {}
    for kt in range(6): kf[kt] = rd_k(0, kt)
    for r in range(4):
        a.i(f"v_accvgpr_read_b32 v{MFi+r}, a{st('mf')+r}"); a.i(f"v_accvgpr_read_b32 v{MLa+r}, a{st('ml')+r}")
    for t in range(2): a.i(f"v_mov_b32 v{nmx[t]}, {f2u(QC)}")
    a.i(f"v_lshrrev_b32 v{w0}, 8, v{vL16}")
    a.i(f"v_cmp_gt_u32 vcc, 2, v{w0}"); a.i("s_nop 1"); a.i(f"v_cndmask_b32_e64 v{w1}, 0, -1, vcc")
    a.i(f"v_cmp_gt_u32 vcc, 3, v{w0}"); a.i("s_nop 1"); a.i(f"v_cndmask_b32_e64 v{w2}, 0, -1, vcc")
    a.i(f"v_xor_b32 v{w3}, v{w1}, v{w2}"); a.i(f"v_and_b32 v{w3}, 0x3f80, v{w3}")
    for hd in range(2):
        for t in range(2):
            b = QO + 8*hd + 4*t
            for r in range(4): a.i(f"v_accvgpr_read_b32 v{b+r}, a{aQ+8*hd+4*t+r}")
            a.i(f"v_and_b32 v{b}, v{w1 if hd else w2}, v{b}"); a.i(f"v_and_b32 v{b+1}, v{w2 if hd else w1}, v{b+1}")
            a.i(f"v_and_or_b32 v{b+2}, v{b+2}, v{w1}, v{w3}"); a.i(f"v_and_b32 v{b+3}, v{w1}, v{b+3}")
    astamp("T:setup")
    def qk_ops(hd, kt, fr):
        fb, tk = fr; o = []
        for t in range(2):
            j = kt - t
            if not 0 <= j <= 16: continue
            c = f"v[{MFi}:{MFi+3}]" if j == 0 else (f"v[{MLa}:{MLa+3}]" if j == 16 else "0")
            d = Sr(t, kt); b = QO + 8*hd + 4*t
            o.append((tk, f"{MF} v[{d}:{d+3}], a[{fb}:{fb+3}], v[{b}:{b+3}], {c}"))
        return o
    def max_ops(kt):
        o = []
        for t in range(2):
            j = kt - t
            if not 0 <= j <= 16: continue
            b = Sr(t, kt); m = mx[t]
            if j == 0:
                o.append(f"v_max_f32 v{m}, v{b}, v{b+1}"); o.append(f"v_max_f32 v{m+1}, v{b+2}, v{b+3}")
            else:
                o.append(f"v_max3_f32 v{m}, v{b}, v{b+1}, v{m}"); o.append(f"v_max3_f32 v{m+1}, v{b+2}, v{b+3}, v{m+1}")
        return o
    def finmax():
        for t in range(2): a.i(f"v_max_f32 v{mx[t]}, v{mx[t]}, v{mx[t]+1}")
        for sw in ("v_permlane32_swap_b32", "v_permlane16_swap_b32"):
            for t in range(2): a.i(f"v_mov_b32 v{mx[t]+1}, v{mx[t]}")
            a.i("s_nop 1")
            for t in range(2): a.i(f"{sw} v{mx[t]}, v{mx[t]+1}")
            a.i("s_nop 0")
            for t in range(2): a.i(f"v_max_f32 v{mx[t]}, v{mx[t]}, v{mx[t]+1}")
        for t in range(2): a.i(f"v_mul_f32 v{nmx[t]+1}, {f2u(-QC)}, v{mx[t]}")
    def exp_ops(kap):
        o1, o2, o3 = [], [], []
        for t in range(2):
            d = Sr(t, 2*kap)
            for hf in range(2):
                kt = 2*kap + hf; b = Sr(t, kt)
                if 0 <= kt - t <= 16:
                    for r in (0, 2): o1.append(f"v_pk_fma_f32 v[{b+r}:{b+r+1}], v[{b+r}:{b+r+1}], v[{nmx[t]}:{nmx[t]+1}], v[{nmx[t]}:{nmx[t]+1}] op_sel:[0,0,1] op_sel_hi:[1,0,1]")
                    for r in range(4): o2.append(f"v_exp_f32 v{b+r}, v{b+r}")
                    o3.append(f"v_cvt_pk_bf16_f32 v{d+2*hf}, v{b}, v{b+1}"); o3.append(f"v_cvt_pk_bf16_f32 v{d+2*hf+1}, v{b+2}, v{b+3}")
                else:
                    o3.append(f"v_mov_b32 v{d+2*hf}, 0"); o3.append(f"v_mov_b32 v{d+2*hf+1}, 0")
        return o1, o2 + o3
    def pv_ops(hd, kap, frs):
        o = []
        for tile in range(2):
            fb, tk = frs[tile]
            for t in range(2):
                d = OA + 16*hd + 8*t + 4*tile; b = Sr(t, 2*kap)
                o.append((tk, f"{MF} v[{d}:{d+3}], a[{fb}:{fb+3}], v[{b}:{b+3}], {'0' if kap == 0 else f'v[{d}:{d+3}]'}"))
        return o
    def merge(valu, mfs, lead=2, tailgap=1, reads=(), nside=3):
        n = len(valu); m = len(mfs); pos = {}; reads = list(reads)
        a.wait(lg=a.lg_issued)
        while len(reads) > m: a.ds(reads.pop(0))
        for j in range(m): pos.setdefault(lead + (j * max(n - lead - tailgap, 1)) // max(m, 1), []).append(mfs[j])
        cnt = 0
        def one(txt):
            nonlocal cnt
            a.i(txt)
            if reads: a.ds(reads.pop(0))
            cnt += 1
            if side and cnt % nside == 0: side.popleft()()
        for i, v in enumerate(valu):
            for (tk, txt) in pos.pop(i, []): one(txt)
            a.i(v)
        for kq in sorted(pos):
            for (tk, txt) in pos[kq]: one(txt)
    a.i("s_nop 1")
    for kt in range(18):
        lz = []
        if kt + 6 < 18: fbx, _ = rd_k(0, kt+6, lz)
        mo = max_ops(kt-3) if kt >= 3 else []
        if kt % 2 == 0: a.wait(lg=kf[kt+1][1])
        for (tk, txt) in qk_ops(0, kt, kf[kt]):
            a.wait(lg=tk); a.i(txt)
            if lz: tkx = a.ds(lz.pop(0))
            for t in mo[:2]: a.i(t)
            mo = mo[2:]
        while lz: tkx = a.ds(lz.pop(0))
        if kt + 6 < 18: kf[kt+6] = (fbx, tkx)
        for t in mo: a.i(t)
    for kt in (15, 16):
        for t in max_ops(kt): a.i(t)
    a.i("s_nop 3")
    for t in max_ops(17): a.i(t)
    finmax()
    a.wait(vm=max(toks["hst"], dma_tok[35]))
    a.i("s_barrier")
    flag_store([f"v_accvgpr_read_b32 v{q0}, a{st('hfo')}"], "0", 0)
    astamp("T:qkA")
    pend = []
    for kap in range(9):
        lz = []
        vf = [rd_v(0, kap, 0, lz), rd_v(0, kap, 1, lz)]
        k2 = [rd_k(1, 2*kap, lz), rd_k(1, 2*kap+1, lz)]
        o1, v = exp_ops(kap)
        for t in o1: a.i(t)
        if kap >= 2: v = v[:8] + max_ops(2*kap-4) + max_ops(2*kap-3) + v[8:]
        merge(v, pend, lead=0, tailgap=5, reads=lz)
        pend = pv_ops(0, kap, vf) + qk_ops(1, 2*kap, k2[0]) + qk_ops(1, 2*kap+1, k2[1])
        if kap == 6:
            a.i(f"v_accvgpr_read_b32 v{q0}, a{st('hfp')}")
            toks["hp"] = a.vm(f"buffer_load_dword v{q1}, v{q0}, {WS}, 0 offen sc1")
    merge(max_ops(14) + max_ops(15), pend)
    a.i("s_nop 7")
    for t in max_ops(16) + max_ops(17): a.i(t)
    finmax()
    while side: side.popleft()()
    poll_check("hp", q0, q1)
    for ks in range(4, 9):
        for t in range(2):
            def ld(ks=ks, t=t):
                o = 2048*ks + 1024*t
                if o % 4096 == 0: a.i(f"s_add_u32 s{sPst}, s{sHld}, {o}")
                d = HP + 8*ks + 4*t
                toks["hld"] = a.vm(f"buffer_load_dwordx4 a[{d}:{d+3}], v{vL16}, {WS}, s{sPst} offen offset:{o % 4096} sc1")
            side.append(ld)
    astamp("T:expA")
    pend = []
    for kap in range(9):
        lz = []
        vf = [rd_v(1, kap, 0, lz), rd_v(1, kap, 1, lz)]
        o1, v = exp_ops(kap)
        for t in o1: a.i(t)
        merge(v, pend, lead=0, tailgap=5, reads=lz, nside=3)
        pend = pv_ops(1, kap, vf)
    a.i("s_nop 1")
    merge([], pend)
    while side: side.popleft()()
    a.i("s_nop 7")
    L = [216, 217, 218, 219]; L2 = [220, 221, 222, 223]; BT = 224
    idx = [(hd, t) for hd in range(2) for t in range(2)]
    for n, (hd, t) in enumerate(idx):
        d = OA + 16*hd + 8*t + 4
        a.i(f"v_mov_b32 v{L[n]}, v{d}"); a.i(f"v_mov_b32 v{L2[n]}, v{d}")
    a.i("s_nop 1")
    for n in range(4): a.i(f"v_permlane16_swap_b32 v{L2[n]}, v{L[n]}")
    a.i("s_nop 0")
    for n in range(4): a.i(f"v_rcp_f32 v{L[n]}, v{L[n]}")
    a.i(f"v_cmp_eq_u32 vcc, 0, v{w0}")
    for n, (hd, t) in enumerate(idx):
        d = OA + 16*hd + 8*t
        for r in range(4): a.i(f"v_mul_f32 v{d+r}, v{L[n]}, v{d+r}")
        for r in ((6, 7) if hd else (4, 5)): a.i(f"v_mul_f32 v{d+r}, v{L[n]}, v{d+r}")
    a.i(f"s_add_u32 s{sPst}, s{sHst}, {18*1024}")
    for t in range(2):
        d = OA + 8*t; e = OA + 16 + 8*t
        a.i(f"v_cvt_pk_bf16_f32 v{BT+2*t}, v{d+4}, v{d+5}"); a.i(f"v_cvt_pk_bf16_f32 v{BT+2*t+1}, v{e+6}, v{e+7}")
        a.i(f"v_cvt_pk_bf16_f32 v{d}, v{d}, v{d+1}"); a.i(f"v_cvt_pk_bf16_f32 v{d+1}, v{d+2}, v{d+3}")
        a.i(f"v_cvt_pk_bf16_f32 v{d+2}, v{e}, v{e+1}"); a.i(f"v_cvt_pk_bf16_f32 v{d+3}, v{e+2}, v{e+3}")
        a.i(f"v_cndmask_b32 v{BT+2*t}, 0, v{BT+2*t}, vcc"); a.i(f"v_cndmask_b32 v{BT+2*t+1}, 0, v{BT+2*t+1}, vcc")
        a.vm(f"buffer_store_dwordx4 v[{d}:{d+3}], v{vL16}, {WS}, s{sPst} offen offset:{1024*t} sc1")
    toks["ost"] = a.vm(f"buffer_store_dwordx4 v[{BT}:{BT+3}], v{vL16}, {WS}, s{sPst} offen offset:2048 sc1")
    for t in range(2):
        d = OA + 8*t
        for r in range(4): a.i(f"v_accvgpr_write_b32 a{H+72+4*t+r}, v{d+r}")
        a.i(f"v_accvgpr_write_b32 a{HB+4*t}, v{BT+2*t}"); a.i(f"v_accvgpr_write_b32 a{HB+4*t+1}, v{BT+2*t+1}")
    pubs.append(("ost", lambda: flag_store([f"v_accvgpr_read_b32 v{q0}, a{st('hfo')}"], "0", 4), [None, od], False))
    astamp("P:tend"); astamp("T:end")

    PL = 0
    SQ = 96
    def pstore(p, halves):
        def fn(nb):
            acc = BACC[p]; sets = [(acc, acc + 16*len(halves))]
            for hf in halves:
                if p == 0:
                    F(nb, "s", f"s_add_u32 s{sPst}, s{sHld}, {8*2048}", sets)
                else:
                    F(nb, "s", f"s_lshl_b32 s{sPst}, s{sCol[p]}, 5", sets); F(nb, "s", f"s_add_u32 s{sPst}, s{sPst}, s{sPo[hf]}", sets)
                for t in range(2):
                    d = acc + 16*hf + 4*t
                    pack4(nb, d, d + 8, sets)
                    last = (hf == halves[-1] and t == 1)
                    Fm(nb, f"pst{p}" if last else "pstx", f"buffer_store_dwordx4 v[{d}:{d+3}], v{vL16}, {WS}, s{sPst} offen offset:{1024*t} sc1", sets, 2)
            def pub():
                if p == 0: a.i(f"s_add_u32 s{sT0}, s{sPF}, 1024")
                else:
                    a.i(f"s_lshr_b32 s{sT0}, s{sI}, 1"); a.i(f"s_add_u32 s{sT0}, s{sT0}, {p}"); a.i(f"s_and_b32 s{sT0}, s{sT0}, 3")
                    a.i(f"s_lshl_b32 s{sT0}, s{sT0}, 8"); a.i(f"s_add_u32 s{sT0}, s{sT0}, s{sPF}")
                a.i(f"s_lshl_b32 s{sT1}, s{sI}, 2")
                flag_store([f"v_mov_b32 v{q0}, s{sT1}"], f"s{sT0}")
            pubs.append((f"pst{p}", pub, [None, pd if p < 3 else pd3], False))
        return fn
    def sib_store(nb):
        acc = BACC[4]; sets = [(acc, acc + 16)]
        src = []
        for t in range(2):
            for c in range(2):
                src += [(acc + 8*c + 4*t, acc + 8*c + 4*t + 1), (acc + 8*c + 4*t + 2, acc + 8*c + 4*t + 3)]
        dst = [0, 1, 2, 4, 5, 6, 8, 9]
        for n in range(8):
            F(nb, "v", f"v_cvt_pk_bf16_f32 v{SQ+dst[n]}, v{src[n][0]}, v{src[n][1]}", sets)
            if n in (2, 5, 7):
                j = (2, 5, 7).index(n)
                F(nb, "m", f"buffer_store_dwordx4 v[{SQ+4*j}:{SQ+4*j+3}], v{vL16}, {WS}, s{sSibS} offen offset:{1024*j} sc1", sets)
    bpost[("B", 0, 20, 1)] = pstore(0, [0])
    for p in (1, 2, 3): bpost[("B", p, 20, 3)] = pstore(p, [0, 1])
    bpost[("B", 4, 20, 1)] = sib_store
    vP0, vP1 = 80, 81
    def h_wait(i): a.wait(vm=toks["hld"])
    ihooks[("B", 1, 14, 0)] = h_wait
    def o_poll(i):
        a.i(f"v_accvgpr_read_b32 v{vP0}, a{st('hfp')}")
        toks["op"] = a.vm(f"buffer_load_dword v{vP1}, v{vP0}, {WS}, 0 offen offset:4 sc1")
    ihooks[("B", 1, 12, 0)] = o_poll
    def o_check(i):
        poll_check("op", vP0, vP1, "0", 4)
        a.i(f"s_add_u32 s{sT0}, s{sHld}, {18*1024}")
        for t in range(2):
            a.vm(f"buffer_load_dwordx4 a[{HP+72+4*t}:{HP+75+4*t}], v{vL16}, {WS}, s{sT0} offen offset:{1024*t} sc1")
        for t in range(2):
            toks["old"] = a.vm(f"buffer_load_dwordx2 a[{HB+4*t+2}:{HB+4*t+3}], v{vL16}, {WS}, s{sT0} offen offset:{2048+8*t} sc1")
    ihooks[("B", 1, 16, 0)] = o_check
    ihooks[("B", 1, 19, 0)] = lambda i: a.wait(vm=toks["old"])
    sOwn, sSibS, sSibL = sQst, sQld, sQcol
    sPFo = sKV[0]; sXo = [sKV[1], sKV[2]]; sMf, sMo, sMl = 45, sE, sM4x
    def polladdr(minx):
        a.i(f"v_bfe_u32 v{vP0}, v{vL16}, 4, 3"); a.i(f"v_max_u32 v{vP0}, {minx}, v{vP0}")
        a.i(f"v_xor_b32 v{vP0}, s{sI}, v{vP0}"); a.i(f"v_lshlrev_b32 v{vP0}, 2, v{vP0}")
    MA, MB, MX, MD, vM0, vM1 = 120, 124, 132, 136, 134, 135
    def m_prep(i):
        L = [f"v_bfe_u32 v{MD}, v{vL16}, 4, 4", f"v_lshrrev_b32 v{MD+1}, 8, v{vL16}",
             f"v_mul_u32_u24 v{vM0}, {8*HXS}, v{MD+1}", f"v_lshl_add_u32 v{vM0}, v{MD}, 4, v{vM0}",
             f"s_lshl_b32 s{sMl}, s{sI}, 8", f"s_add_u32 s{sMl}, s{sMl}, s{sPbase}", f"s_add_u32 s{sMl}, s{sMl}, {8*2048}",
             f"v_mul_u32_u24 v{vM1}, 1152, v{MD}", f"v_lshl_add_u32 v{vM1}, v{MD+1}, 5, v{vM1}",
             f"v_lshrrev_b32 v{MD+2}, 1, v{MD+1}", f"v_lshl_add_u32 v{vM1}, v{MD+2}, 29, v{vM1}",
             f"s_lshr_b32 s{sT2}, s{sI}, 2", f"s_mul_i32 s{sMo}, s{sT2}, {16*1152}", f"s_and_b32 s{sT2}, s{sI}, 3", f"s_lshl_b32 s{sT2}, s{sT2}, 3",
             f"s_add_u32 s{sMo}, s{sMo}, s{sT2}", f"s_add_u32 s{sMo}, s{sMo}, s{sCol[0]}", f"s_add_u32 s{sMo}, s{sMo}, s{sXrow}",
             f"s_add_u32 s{sMf}, s{sPF}, 1024",
             f"v_and_b32 v{MD+2}, 1, v{MD}", f"v_lshlrev_b32 v{MD+2}, 4, v{MD+2}", f"v_mov_b32 v{MD+3}, 0x3f80",
             f"v_lshlrev_b32 v{MD+3}, v{MD+2}, v{MD+3}", f"v_lshrrev_b32 v{MD+2}, 1, v{MD}"]
        for t in L: F(i, "v", t)
        for r in range(4):
            F(i, "v", f"v_cmp_eq_u32 vcc, {r}, v{MD+2}"); F(i, "v", f"v_cndmask_b32 v{MA+r}, 0, v{MD+3}, vcc")
        F(i, "m", f"buffer_load_dwordx2 v[{MX}:{MX+1}], v{vM1}, s[{SX}:{SX+3}], s{sMo} offen")
    ihooks[("B", 2, 12, 0)] = m_prep
    def m_poll(i):
        polladdr(0)
        toks["mp"] = a.vm(f"buffer_load_dword v{vP1}, v{vP0}, {WS}, s{sMf} offen sc1")
    ihooks[("B", 3, 16, 0)] = m_poll
    def m_check(i):
        poll_check("mp", vP0, vP1, f"s{sMf}", 0)
        a.vm(f"buffer_load_dwordx4 v[{MB}:{MB+3}], v{vM0}, {WS}, s{sMl} offen sc1")
        a.i(f"s_add_u32 s{sMl}, s{sMl}, {32*HXS}")
        toks["ml"] = a.vm(f"buffer_load_dwordx4 v[{MB+4}:{MB+7}], v{vM0}, {WS}, s{sMl} offen sc1")
        for t in (f"v_lshlrev_b32 v{MD}, 16, v{MX}", f"v_and_b32 v{MD+1}, s{sC1}, v{MX}", f"v_lshlrev_b32 v{MD+2}, 16, v{MX+1}", f"v_and_b32 v{MD+3}, s{sC1}, v{MX+1}"):
            F(i, "v", t)
    ihooks[("B", 4, 3, 0)] = m_check
    def m_fin(i):
        a.wait(vm=toks["ml"])
        for j in range(2): a.i(f"{MF} v[{MD}:{MD+3}], v[{MA}:{MA+3}], v[{MB+4*j}:{MB+4*j+3}], v[{MD}:{MD+3}]")
        F(i + 3, "v", f"v_cvt_pk_bf16_f32 v{MD}, v{MD}, v{MD+1}"); F(i + 3, "v", f"v_cvt_pk_bf16_f32 v{MD+1}, v{MD+2}, v{MD+3}")
        F(i + 3, "m", f"buffer_store_dwordx2 v[{MD}:{MD+1}], v{vM1}, s[{SOUT}:{SOUT+3}], s{sMo} offen")
    ihooks[("B", 4, 17, 0)] = m_fin
    def e_poll(i):
        polladdr(2)
        toks["ep"] = a.vm(f"buffer_load_dword v{vP1}, v{vP0}, {WS}, s{sPFo} offen sc1")
    def prep_own(i):
        L = [f"v_accvgpr_read_b32 v{vT0}, a{st('ov')}",
             f"s_lshl_b32 s{sOwn}, s{sI}, 11", f"s_add_u32 s{sOwn}, s{sOwn}, s{sPbase}",
             f"s_and_b32 s{sT2}, s{sS}, 1", f"s_mul_i32 s{sT2}, s{sT2}, 640", f"s_lshl_b32 s{sT3}, s{sI}, 6",
             f"s_add_u32 s{sT2}, s{sT2}, s{sT3}", f"s_add_u32 s{sXo[0]}, s{sT2}, s{sXrow}", f"s_add_u32 s{sXo[1]}, s{sXo[0]}, {16*1152}",
             f"s_lshr_b32 s{sPFo}, s{sI}, 1", f"s_lshl_b32 s{sT2}, s{sPFo}, 12", f"s_lshl_b32 s{sPFo}, s{sPFo}, 8", f"s_add_u32 s{sPFo}, s{sPFo}, s{sPF}",
             f"s_add_u32 s{sSibS}, s{sHld}, s{sT2}",
             f"s_xor_b32 s{sT3}, s{sI}, 1", f"s_mul_i32 s{sT3}, s{sT3}, {8*HXS}", f"s_add_u32 s{sT3}, s{sT3}, s{sPbase}", f"s_add_u32 s{sSibL}, s{sT3}, s{sT2}",
             f"v_mov_b32 v{SQ+3}, s{sTag}", f"v_mov_b32 v{SQ+7}, s{sTag}", f"v_mov_b32 v{SQ+10}, s{sTag}", f"v_mov_b32 v{SQ+11}, s{sTag}"]
        for t in L: F(i, "v", t)
        for t in range(2):
            for c in range(2):
                F(i, "m", f"buffer_load_dwordx2 v[{64+4*t+2*c}:{64+4*t+2*c+1}], v{vT0}, s[{SX}:{SX+3}], s{sXo[t]} offen offset:{32*c}", (), 3)
    ihooks[("B", 3, 8, 0)] = prep_own
    def pload(x, base, dst, name):
        a.i(f"s_xor_b32 s{sT0}, s{sI}, {x}"); a.i(f"s_mul_i32 s{sT0}, s{sT0}, {8*HXS}"); a.i(f"s_add_u32 s{sT0}, s{sT0}, s{base}")
        for t in range(2):
            toks[name] = a.vm(f"buffer_load_dwordx4 v[{dst+4*t}:{dst+4*t+3}], v{vL16}, {WS}, s{sT0} offen offset:{1024*t} sc1")
    ihooks[("B", 4, ep[0], 2)] = e_poll
    def e_check(i):
        poll_check("ep", vP0, vP1, f"s{sPFo}", 0)
        for x in range(2, 8): F(i, "f", (lambda x=x: pload(x, sOwn, PL + 8*x, "pl")))
    ihooks[("B", 4, ep[1], 2)] = e_check
    def dma_after_B(k):
        if k == 36: return [39, 40]
        return [k + 4] if k + 4 < KEND else []
    stream([(k,) + f for k in range(KB0, KEND) for f in stages[k]["fr"]] + last_fr[1], dma_after_B)
    assert not pubs
    astamp("P:bend"); astamp("B:end")
    def accum(acc, src):
        for c in range(2):
            for t in range(2):
                d = acc + 8*c + 4*t; s0 = SEL + (0 if c else 2)
                a.i(f"{MF} v[{d}:{d+3}], a[{s0}:{s0+3}], v[{src+4*t}:{src+4*t+3}], v[{d}:{d+3}]")
    OWN = BACC[4] + 16
    SI = SQ + 12
    def sib_loads():
        for j in range(3): a.vm(f"buffer_load_dwordx4 v[{SI+4*j}:{SI+4*j+3}], v{vL16}, {WS}, s{sSibL} offen offset:{1024*j} sc1")
    sib_loads()
    a.wait(vm=toks["pl"])
    accum(OWN, 64)
    for x in range(2, 8): accum(OWN, PL + 8*x)
    a.label("L_sibchk")
    a.i("s_waitcnt vmcnt(0)")
    a.i(f"v_cmp_ne_u32 vcc, s{sTag}, v{SI+3}")
    a.i(f"v_cmp_ne_u32 s[{sT1}:{sT1+1}], s{sTag}, v{SI+7}")
    a.i(f"v_cmp_ne_u32 s[{sT3}:{sT3+1}], s{sTag}, v{SI+11}")
    for n, (d, sr) in enumerate(zip(range(8), [0, 1, 2, 4, 5, 6, 8, 9])): a.i(f"v_mov_b32 v{PL+8+d}, v{SI+sr}")
    a.i(f"s_or_b64 vcc, vcc, s[{sT1}:{sT1+1}]")
    a.i(f"s_or_b64 vcc, vcc, s[{sT3}:{sT3+1}]")
    a.i("s_cbranch_scc0 L_sibok")
    a.i(f"s_cmp_eq_u32 s{sBound}, 0"); a.i("s_cbranch_scc1 L_sibok")
    a.i(f"s_sub_u32 s{sBound}, s{sBound}, 1")
    sib_loads()
    a.i("s_branch L_sibchk")
    a.label("L_sibok")
    accum(OWN, PL + 8)
    a.i("s_nop 4")
    for c in range(2):
        for t in range(2):
            d = OWN + 8*c + 4*t
            a.i(f"v_cvt_pk_bf16_f32 v{d}, v{d}, v{d+1}"); a.i(f"v_cvt_pk_bf16_f32 v{d+1}, v{d+2}, v{d+3}")
            a.vm(f"buffer_store_dwordx2 v[{d}:{d+1}], v{vT0}, s[{SOUT}:{SOUT+3}], s{sXo[t]} offen offset:{32*c}")
    astamp("P:done")
    if trace:
        a.i("s_waitcnt lgkmcnt(0)")
        for n0, p0 in trp: a.i(f"v_writelane_b32 v{vLane}, s{p0}, {n0}")
        a.i(f"s_lshl_b32 s{sT0}, s2, 2"); a.i(f"s_add_u32 s{sT0}, s{sT0}, s{sW}"); a.i(f"s_lshl_b32 s{sT0}, s{sT0}, 8")
        a.i(f"s_add_u32 s{sT0}, s{sT0}, {STAMP_OFF}")
        a.i(f"v_lshrrev_b32 v1, 2, v{vL16}")
        a.i(f"buffer_store_dword v{vLane}, v1, {WS}, s{sT0} offen")
        print("trace:", len(trl), " ".join(trl), file=sys.stderr)
    if stamps:
        a.i(f"s_lshl_b32 s{sT0}, s2, 2"); a.i(f"s_add_u32 s{sT0}, s{sT0}, s{sW}"); a.i(f"s_lshl_b32 s{sT0}, s{sT0}, 6")
        a.i(f"s_add_u32 s{sT0}, s{sT0}, {STAMP_OFF}")
        a.i(f"v_mov_b32 v1, 0")
        for n in range(len(stl)):
            a.i(f"buffer_store_dword a{244+n}, v1, {WS}, s{sT0} offen offset:{4*n}")
        a.i("s_waitcnt vmcnt(0)")
        a.i("s_memrealtime s[80:81]"); a.i("s_waitcnt lgkmcnt(0)"); a.i("v_accvgpr_write_b32 a255, s80")
        a.i(f"buffer_store_dword a254, v1, {WS}, s{sT0} offen offset:56")
        a.i(f"buffer_store_dword a255, v1, {WS}, s{sT0} offen offset:60")
        print("stamps:", stl, file=sys.stderr)
    a.label("L_end")
    a.i("s_endpgm")
    a.label("L_tagspin")
    a.i(f"s_cmp_eq_u32 s{sBound}, 0"); a.i("s_cbranch_scc1 L_tagok")
    a.i(f"s_sub_u32 s{sBound}, s{sBound}, 1"); a.i("s_sleep 1")
    a.i(f"buffer_load_dword v{vT1}, off, s[{SDBG}:{SDBG+3}], 0 sc1"); a.i("s_waitcnt vmcnt(0)")
    a.i("s_branch L_tagchk")
    for (name, va, vf, soff, offs) in spin_blocks:
        a.label(f"L_spin_{name}")
        a.i(f"s_cmp_eq_u32 s{sBound}, 0")
        a.i(f"s_cbranch_scc1 L_back_{name}")
        a.i(f"s_sub_u32 s{sBound}, s{sBound}, 1")
        a.i("s_sleep 1")
        a.i(f"buffer_load_dword v{vf}, v{va}, {WS}, {soff} offen offset:{offs} sc1")
        a.i("s_waitcnt vmcnt(0)")
        a.i(f"v_cmp_ne_u32 vcc, s{sTag}, v{vf}")
        a.i("s_nop 0")
        a.i("s_cmp_lg_u64 vcc, 0")
        a.i(f"s_cbranch_scc1 L_spin_{name}")
        a.i(f"s_branch L_back_{name}")
    assert not ihooks, ihooks.keys()
    body = [l.replace("CODE_LAST", "0x1000") for l in a.lines]
    if iwarm:
        tmp = [l for l in body] + [f"L_w{w}:" for w in range(4)] + ["    s_endpgm"]
        tmp, _, _, _ = align8(tmp, nops=False)
        tmp = tmp[:-5]
        sz = sizes_of(tmp + [f"L_w{w}:" for w in range(4)])
        out = []; off = 0; n = 0; j = 0; nextp = 4096; done = False
        for l in tmp:
            if l.startswith("L_end:"): done = True
            if is_instr(l):
                prev = out[-1].strip() if out else ""
                if off >= nextp and not done and not prev.startswith("v_mfma") and not prev.startswith("s_cmp"):
                    out.append(f"L_w{n}:"); out.append(f"    s_cbranch_execz L_w{n+4}"); n += 1; off += 4; nextp += 4096
                off += sz[j]; j += 1
            out.append(l)
        for w in range(4): out.append(f"L_w{n+w}:")
        out.append("    s_branch L_wret")
        body = out; size = off + 4
        print("warm stubs", n, file=sys.stderr)
    else:
        body, nf, nn, size = align8(body, nops=False)
    body = [l.replace("v_min_u32 v%d, 0x1000," % vT0, "v_min_u32 v%d, %d," % (vT0, (size - 64) & ~15)) for l in body]
    print(f"main: code {size} bytes, stash {st.next}", file=sys.stderr)
    return body

from gen1 import kd
def whole(**kw):
    m = gen(**kw)
    hdr = [l for l in open("parallel_sum__sliding_block__glu_gated_bilinear__prompt.s.ref").read().split("\n")[:11]]
    s = "\n".join(hdr) + "\n"
    s += f"; @launch grid=(256,1,1) block=(256,1,1) lds={LDS_BYTES}\n"
    s += '.amdgcn_target "amdgcn-amd-amdhsa--gfx950"\n.text\n'
    s += f".globl {KN}\n.p2align 12\n.type {KN},@function\n{KN}:\n" + "\n".join(m) + "\n"
    s += '.section .rodata,"a"\n.p2align 6\n' + kd(KN, 512, 256)
    return s

if __name__ == "__main__":
    kw = {}
    for x in sys.argv[2:]:
        k, v = x.split("="); kw[k] = eval(v)
    open(sys.argv[1], "w").write(whole(**kw))
```

```python
import sys, struct, math
from asmlib import *
from collections import deque

KN = "parallel_sum__sliding_block__glu_gated_bilinear__prompt_kernel"
QS = 6176; SLOT = 4 * QS; NS = 6
LDS_BYTES = 163840
TAG_LDS = NS * SLOT + 64
QKV_BASE = 0x2400000
QF_BASE = 0x2C00000; HF_BASE = 0x2C10000; PF_BASE = 0x2C40000
EPOCH_OFF = 0x2D00000
HX_BASE = 0x3000000; HXS = 21504
STAMP_OFF = 0x6000000
WS_BYTES = 268435456
OOB = 0x20000000
GS = 3136; TBASE = 3 * SLOT
TAGC = 0x9E3779B8
def f2u(f): return "0x%08x" % struct.unpack("<I", struct.pack("<f", f))[0]
QC = 18 ** -0.5 * math.log2(math.e)
MF = "v_mfma_f32_16x16x32_bf16"

def gen(D=7, wev=3, stamps=None, rt=False, gap=6, lg_rpx=4, krot=True, normil=True, l2pf=True, pfs=6, pd3=24, ep=((2, 0), (13, 0)), tl=(0, None), mp=((3, 6), (3, 14), (4, 12)), trace=None, nraw=0, iwarm=True, pd=30, lead=70, hold=90, pfk=16, lnpre=3, od=50, warmat=1, gupf="U", hold0=40, gu_at=12, dbgout=False, x0=5, w0at=13, hopat=(0, 3, 6, 10), xfast=0, odef=6, op=(13, 18), c3tag=False, e3=(10, None), xrat='T'):
    a = Asm()
    XS = lnpre * SLOT; NXU = (LDS_BYTES - XS) // 8192
    SX, SG, SU, SD, SWS, SQKV, SO, SDBG, SOUT = 4, 8, 12, 16, 20, 24, 28, 32, 36
    sPF = 3
    sCol = [40, 41, 42, 43, 44]
    sSc = [45, 46, 47]; sKV = [48, 49, 50]
    sTag, sE, sBound, sQst, sQld = 51, 52, 53, 54, 55
    sW, sS, sR = 56, 57, 58
    sPair = [59, 60, 61, 62]; sSing = 63
    sMq, sI = 64, 65
    sOff, sT0, sT1, sT2, sT3 = 66, 67, 68, 69, 70
    sXrow, sPst, sM4 = 71, 72, 73
    sOff2 = 73
    sM4x = 59
    sPC = 74; sHst, sHld = 74, 75
    sC0, sC1, sQcol, sPbase = 76, 77, 78, 79
    sStamp = 80; sPo = [82, 83]
    KA = 84
    sKo = [84, 85, 86, 87, 88]; sKp = [89, 90, 91, 92, 93]; sAo, sAp = 94, 95
    sKr9 = [96, 97, 98]; sKr3 = [99, 100, 101]
    sKo2 = [24, 25, 26, 27]; sKp2 = [99, 100, 101, 77]
    XN = 0; ACC = [144, 176, 208]
    vRd = [240, 241, 242]; vA = [243, 244, 245]; vS = [246, 247, 248]
    q0, q1, q2 = 249, 250, 251
    vT0, vT1, vL16, vLane = 252, 253, 254, 255
    H, HP, HB, FR = 0, 80, 160, 168
    KVS, aQ = 128, 136
    NB = 8; assert D <= 7
    stash = {}
    def st(name, n=1):
        if name not in stash:
            stash[name] = st.next; st.next += n; assert st.next <= 228
        return stash[name]
    st.next = 200; stash['pt'] = 236; stash['stq'] = 228; stash['stq2'] = 229
    XR = 228
    SEL = 238
    stl = []
    def astamp(name):
        if stamps is None or name.split(":")[0] not in stamps: return
        n = len(stl); assert n < 10
        a.i("s_waitcnt lgkmcnt(0)"); a.lg_done = a.lg_issued
        a.i(f"{'s_memrealtime' if rt else 's_memtime'} s[{sStamp}:{sStamp+1}]")
        a.i("s_waitcnt lgkmcnt(0)")
        a.i(f"v_accvgpr_write_b32 a{244+n}, s{sStamp}")
        stl.append(name)
    trl = []; trp = []
    TRS = [46, 80, 0]
    def tr(name):
        if trace is None or not (trace[0] <= tr.stage < trace[1]) or len(trl) >= 64: return
        if len(trp) >= 2:
            n0, p0 = trp.pop(0); a.i(f"v_writelane_b32 v{vLane}, s{p0}, {n0}")
        p = TRS[len(trl) % 3]
        a.i(f"s_memtime s[{p}:{p+1}]")
        trp.append((len(trl), p)); trl.append(name)
    tr.stage = 0
    def srd(d, p, nbytes, back=0):
        if back:
            a.i(f"s_sub_u32 s{d}, s{p}, {back}"); a.i(f"s_subb_u32 s{d+1}, s{p+1}, 0")
        else:
            a.i(f"s_mov_b32 s{d}, s{p}"); a.i(f"s_mov_b32 s{d+1}, s{p+1}")
        a.i(f"s_mov_b32 s{d+2}, {nbytes + back}"); a.i(f"s_mov_b32 s{d+3}, 0x00020000")
    WS = f"s[{SWS}:{SWS+3}]"

    a.i("s_cmp_ge_u32 s2, 256")
    a.i("s_cbranch_scc1 L_end")
    if stamps: a.i("s_memrealtime s[36:37]")
    a.i(f"s_load_dwordx16 s[{KA}:{KA+15}], s[0:1], 0")
    a.i(f"s_load_dwordx4 s[80:83], s[0:1], 64")
    a.i(f"s_getpc_b64 s[{sPC}:{sPC+1}]")
    a.i(f"s_lshr_b32 s{sT0}, s2, 3")
    a.i(f"s_lshl_b32 s{sT0}, s{sT0}, 12")
    a.i(f"v_lshlrev_b32 v{vT0}, 4, v0")
    a.i(f"v_add_u32 v{vT0}, s{sT0}, v{vT0}")
    a.i(f"v_min_u32 v{vT0}, CODE_LAST, v{vT0}")
    a.vm(f"global_load_dwordx4 a[{HP+76}:{HP+79}], v{vT0}, s[{sPC}:{sPC+1}]")
    a.i(f"v_lshrrev_b32 v{vT1}, 6, v0")
    a.i(f"v_and_b32 v{vLane}, 63, v0")
    a.i(f"v_readfirstlane_b32 s{sW}, v{vT1}")
    lg = lg_rpx; nsl = 32 >> lg
    a.i(f"s_and_b32 s{sR}, s2, {(16 >> lg) - 1}"); a.i(f"s_lshl_b32 s{sR}, s{sR}, {lg}")
    a.i(f"s_lshr_b32 s{sT0}, s2, {8 - lg}"); a.i(f"s_add_u32 s{sR}, s{sR}, s{sT0}")
    a.i(f"s_bfe_u32 s{sS}, s2, {hex(((lg - 1) << 16) | (4 - lg))}"); a.i(f"s_lshl_b32 s{sS}, s{sS}, {5 - lg}")
    a.i(f"s_bfe_u32 s{sT0}, s2, {hex(((5 - lg) << 16) | 3)}"); a.i(f"s_add_u32 s{sS}, s{sS}, s{sT0}")
    sRot = sT3
    if krot:
        a.i(f"s_lshr_b32 s{sT0}, s{sR}, 2"); a.i(f"s_add_u32 s{sT0}, s{sT0}, s{sS}")
        a.i(f"s_mul_hi_u32 s{sT1}, s{sT0}, 0x55555556"); a.i(f"s_mul_i32 s{sT1}, s{sT1}, 3"); a.i(f"s_sub_u32 s{sRot}, s{sT0}, s{sT1}")
    else: a.i(f"s_mov_b32 s{sRot}, 0")
    sRk = [45, 46, 47]
    for stg in range(3):
        a.i(f"s_add_u32 s{sRk[stg]}, s{sRot}, {stg}")
        a.i(f"s_cmp_ge_u32 s{sRk[stg]}, 3"); a.i(f"s_cselect_b32 s{sT0}, 3, 0"); a.i(f"s_sub_u32 s{sRk[stg]}, s{sRk[stg]}, s{sT0}")
    QACC = 144; D2 = 200
    vX = [228, 229, 230, 231]; vXr = [232, 233]
    S1 = [234, 235]; S2 = [236, 237]; vCs = 238
    t0, t1, t2, t3 = 144, 145, 146, 147
    ONES = 128
    a.i(f"v_lshrrev_b32 v{t0}, 3, v{vLane}")
    a.i(f"v_and_b32 v{t1}, 7, v{vLane}")
    for j in range(2):
        a.i(f"v_add_u32 v{t2}, {8*j}, v{t0}")
        a.i(f"v_bfe_u32 v{t3}, v{t2}, 1, 3")
        a.i(f"v_xor_b32 v{t3}, v{t3}, v{t1}")
        a.i(f"v_mul_u32_u24 v{t2}, 1152, v{t2}")
        a.i(f"v_lshl_add_u32 v{vX[j]}, v{t3}, 4, v{t2}")
        if j: a.i(f"v_subrev_u32 v{vX[j]}, {1024*j}, v{vX[j]}")
    a.i(f"s_lshl_b32 s{sXrow}, s{sR}, 2")
    a.i(f"s_add_u32 s{sXrow}, s{sXrow}, s{sW}")
    a.i(f"s_mul_i32 s{sXrow}, s{sXrow}, {32*1152}")
    sXk = [40, 41, 42]
    for stg in range(3):
        a.i(f"s_mul_i32 s{sXk[stg]}, s{sRk[stg]}, 384"); a.i(f"s_add_u32 s{sXk[stg]}, s{sXk[stg]}, s{sXrow}")
    a.i(f"s_mul_i32 s{sM4}, s{sW}, {2048*NXU}")
    a.i("s_waitcnt lgkmcnt(0)")
    if stamps: a.i("v_accvgpr_write_b32 a254, s36")
    srd(SX, KA+0, 2048*1152)
    xtok = {}
    def xdma_items(n):
        t, ch = n // 9, n % 9
        o = [("s", f"s_add_u32 m0, s{sM4}, {XS + 2048*(n % NXU)}"), ("s", f"s_add_u32 s{sOff}, s{sXk[ch//3]}, {128*(ch%3) + 16*1152*t}")]
        return o + [("m", f"buffer_load_dwordx4 v{vX[j]}, s[{SX}:{SX+3}], s{sOff} offen offset:{1024*j} lds") for j in range(2)]
    dma_tok = {}
    def emit_dma_item(k, it):
        if it[0] == "m": dma_tok[k] = a.vm(it[1])
        elif it[0] == "d": a.ds(it[1])
        elif it[0] == "h": pass
        else: a.i(it[1])
    def xdma(ch):
        for it in xdma_items(ch): emit_dma_item(("x", ch), it)
    for n in range(x0): xdma(n)
    srd(SQKV, KA+2, 576*3456); srd(SO, KA+4, 576*1152, back=2048)
    srd(SG, KA+8, 576*9216); srd(SU, KA+10, 576*9216); srd(SD, KA+12, 4608*1152, back=2048)
    srd(SOUT, KA+14, 2048*1152)
    srd(SDBG, 80, 256); srd(SWS, 82, WS_BYTES)
    a.i(f"s_add_u32 s82, s82, {EPOCH_OFF}"); a.i("s_addc_u32 s83, s83, 0")
    a.i(f"s_load_dword s{sE}, s[82:83], 0")
    astamp("P:start")
    vn, vq, rho, tt, pc = 148, 149, 150, 151, 152
    a.i(f"v_and_b32 v{vn}, 15, v{vLane}"); a.i(f"v_lshrrev_b32 v{vq}, 4, v{vLane}")
    a.i(f"v_bfe_u32 v{rho}, v{vLane}, 2, 3"); a.i(f"v_lshrrev_b32 v{tt}, 5, v{vLane}")
    a.i(f"v_and_b32 v{pc}, 3, v{vLane}"); a.i(f"v_lshlrev_b32 v{pc}, 4, v{pc}")
    a.i(f"v_lshlrev_b32 v{vL16}, 4, v{vLane}")
    a.i(f"v_lshrrev_b32 v{t1}, 1, v{vn}"); a.i(f"v_xor_b32 v{t1}, v{t1}, v{vq}")
    a.i(f"v_lshlrev_b32 v{t0}, 7, v{vn}")
    a.i(f"s_add_u32 s{sT0}, s{sM4}, {XS}"); a.i(f"v_add_u32 v{t0}, s{sT0}, v{t0}")
    a.i(f"v_lshl_add_u32 v{vXr[0]}, v{t1}, 4, v{t0}")
    a.i(f"v_xor_b32 v{t1}, 4, v{t1}"); a.i(f"v_lshl_add_u32 v{vXr[1]}, v{t1}, 4, v{t0}")
    for stg in range(3):
        a.i(f"s_mul_i32 s{sKr9[stg]}, s{sRk[stg]}, {192*9216}"); a.i(f"s_mul_i32 s{sKr3[stg]}, s{sRk[stg]}, {192*3456}")
    a.i(f"s_mul_i32 s{sQcol}, s{sS}, 216")
    for stg in range(3): a.i(f"s_add_u32 s{sKr3[stg]}, s{sKr3[stg]}, s{sQcol}")
    a.i(f"s_mul_i32 s{sMq}, s{sW}, {QS}")
    a.i(f"s_lshr_b32 s{sI}, s{sS}, 1")
    a.i(f"s_lshl_b32 s{sT0}, s{sW}, 3"); a.i(f"v_add_u32 v{t2}, s{sT0}, v{rho}")
    a.i(f"v_lshl_add_u32 v{t3}, v{tt}, 6, v{pc}")
    a.i(f"v_mul_u32_u24 v{vS[0]}, 3456, v{t2}"); a.i(f"v_add_u32 v{vS[0]}, v{vS[0]}, v{t3}")
    a.i(f"v_add_u32 v{vS[1]}, {32*3456-1024}, v{vS[0]}"); a.i(f"v_add_u32 v{vS[2]}, {64*3456-2048}, v{vS[0]}")
    a.i(f"v_mul_u32_u24 v{t0}, 9216, v{t2}"); a.i(f"v_add_u32 v{vA[0]}, v{t0}, v{t3}")
    a.i(f"v_add_u32 v{vA[1]}, {32*9216-1024}, v{vA[0]}"); a.i(f"v_add_u32 v{vA[2]}, {64*9216-2048}, v{vA[0]}")
    def su_cas():
        a.i("s_waitcnt lgkmcnt(0)")
        a.i(f"s_or_b32 s{sT0}, s2, s{sW}")
        a.i("s_cbranch_scc1 L_nocas")
        a.i(f"s_add_u32 s{sE}, s{sE}, {TAGC}"); a.i(f"s_or_b32 s{sE}, s{sE}, 1")
        a.i(f"v_mov_b32 v{vCs}, s{sE}"); a.i(f"v_mov_b32 v{vCs+1}, {EPOCH_OFF}")
        a.i(f"buffer_store_dword v{vCs}, off, s[{SDBG}:{SDBG+3}], 0 sc1")
        a.i(f"buffer_store_dword v{vCs}, v{vCs+1}, {WS}, 0 offen sc1")
        a.label("L_nocas")

    def su_early():
        a.i(f"v_bfe_u32 v{t0}, v{vLane}, 2, 2"); a.i(f"v_lshlrev_b32 v{t1}, 6, v{t0}")
        a.i(f"v_and_b32 v{t0}, 3, v{vLane}"); a.i(f"v_lshl_add_u32 v{t1}, v{t0}, 3, v{t1}")
        a.i(f"v_mul_u32_u24 v{t0}, {QS}, v{vq}"); a.i(f"v_add_u32 v{vRd[0]}, v{t0}, v{t1}")
        a.i(f"v_add_u32 v{vRd[1]}, {2*SLOT}, v{vRd[0]}"); a.i(f"v_add_u32 v{vRd[2]}, {4*SLOT}, v{vRd[0]}")
        a.i(f"s_mul_i32 s{sT1}, s{sS}, 576"); a.i(f"s_and_b32 s{sT2}, s{sS}, 1")
        a.i(f"s_lshl_b32 s{sT3}, s{sT2}, 6"); a.i(f"s_add_u32 s{sT3}, s{sT3}, s{sT1}")
        for j in range(4):
            a.i(f"s_add_u32 s{sPair[j]}, s{sR}, {j}"); a.i(f"s_and_b32 s{sPair[j]}, s{sPair[j]}, 3")
            a.i(f"s_lshl_b32 s{sPair[j]}, s{sPair[j]}, 7"); a.i(f"s_add_u32 s{sPair[j]}, s{sPair[j]}, s{sT3}")
        a.i(f"s_xor_b32 s{sT2}, s{sT2}, 1"); a.i(f"s_lshl_b32 s{sT2}, s{sT2}, 9"); a.i(f"s_add_u32 s{sSing}, s{sT2}, s{sT1}")
        a.i(f"s_mov_b32 s{sBound}, 0x40000")
    U0, U1, U2, U3 = 45, 52, 78, 73
    MK = "s[40:41]"
    def d_q(tb):
        x0_, x1, x2, n, q = tb, tb+1, tb+2, tb+3, tb+4
        return [f"v_bfe_u32 v{n}, v{vL16}, 4, 4", f"v_lshrrev_b32 v{q}, 8, v{vL16}",
            f"s_lshl_b32 s{U0}, s{sW}, 8", f"v_lshlrev_b32 v{x0_}, 3, v{n}", f"v_add_u32 v{x0_}, s{U0}, v{x0_}",
            f"v_lshl_add_u32 v{x1}, v{q}, 10, v{x0_}", f"v_accvgpr_write_b32 a{st('stq')}, v{x1}",
            f"v_add_u32 v{x2}, 1, v{q}", f"v_lshrrev_b32 v{x2}, 2, v{x2}", f"v_lshl_add_u32 v{x1}, v{x2}, 29, v{x1}",
            f"v_accvgpr_write_b32 a{st('stq2')}, v{x1}",
            f"s_mul_i32 s{U0}, s{sR}, 432", f"s_mul_i32 s{U1}, s{sS}, 27", f"s_add_u32 s{U1}, s{U1}, s{U0}",
            f"s_lshl_b32 s{U1}, s{U1}, 10", f"s_add_u32 s{sQst}, s{U1}, {QKV_BASE}",
            f"v_lshl_add_u32 v{x1}, v{q}, 11, v{x0_}", f"v_accvgpr_write_b32 a{st('qA')}, v{x1}",
            f"v_lshl_add_u32 v{x1}, v{q}, 1, 5", f"v_cmp_gt_u32 {MK}, 2, v{q}", "?s_nop 1",
            f"v_cndmask_b32 v{x1}, 4, v{x1}, {MK}", f"v_lshl_add_u32 v{x1}, v{x1}, 10, v{x0_}", f"v_accvgpr_write_b32 a{st('qB')}, v{x1}",
            f"s_mul_i32 s{U1}, s{sS}, 9", f"s_add_u32 s{U1}, s{U1}, s{U0}", f"s_lshl_b32 s{U1}, s{U1}, 10", f"s_add_u32 s{sQld}, s{U1}, {QKV_BASE}",
            f"s_add_u32 s{U2}, s{sW}, 144", f"s_lshl_b32 s{U2}, s{U2}, 10", f"s_add_u32 s{sKV[2]}, s{U2}, s{sQld}",
            f"s_sub_u32 s{sKV[0]}, s{sKV[2]}, {2*432*1024}", f"s_cmp_ge_u32 s{sR}, 2", f"s_cselect_b32 s{sKV[0]}, s{sKV[0]}, {OOB}",
            f"s_sub_u32 s{sKV[1]}, s{sKV[2]}, {432*1024 + 1024}", f"s_cmp_ge_u32 s{sR}, 1", f"s_cselect_b32 s{sKV[1]}, s{sKV[1]}, {OOB}",
            f"s_sub_u32 s{sKV[2]}, s{sKV[2]}, 2048"]
    def d_h(tb):
        x2 = tb
        return [f"s_and_b32 s{U2}, s{sS}, 1", f"s_lshl_b32 s{U1}, s{sR}, 1", f"s_add_u32 s{U1}, s{U1}, s{U2}",
            f"s_mul_i32 s{sPF}, s{U1}, 20", f"s_add_u32 s{sPF}, s{sPF}, s{sW}", f"s_lshl_b32 s{sPF}, s{sPF}, 6", f"s_add_u32 s{sPF}, s{sPF}, {PF_BASE}",
            f"s_lshl_b32 s{U1}, s{sR}, 4", f"s_add_u32 s{U1}, s{U1}, s{sS}", f"s_lshl_b32 s{U3}, s{U1}, 2", f"s_add_u32 s{U3}, s{U3}, s{sW}",
            f"s_mul_i32 s{sHst}, s{U3}, {HXS}", f"s_add_u32 s{sHst}, s{sHst}, {HX_BASE}",
            f"s_lshl_b32 s{U1}, s{U3}, 6", f"s_add_u32 s{U1}, s{U1}, {HF_BASE}", f"v_accvgpr_write_b32 a{st('hfo')}, s{U1}",
            f"v_min_u32 v{x2}, 64, v{vL16}", f"v_lshlrev_b32 v{x2}, 4, v{x2}", f"v_add_u32 v{x2}, s{sPF}, v{x2}",
            f"v_writelane_b32 v{x2}, s{U1}, 7", f"v_accvgpr_write_b32 a{st('pt')}, v{x2}",
            f"s_xor_b32 s{U1}, s{U1}, 256", f"v_accvgpr_write_b32 a{st('hfp')}, s{U1}",
            f"s_xor_b32 s{U3}, s{U3}, 4", f"s_mul_i32 s{sHld}, s{U3}, {HXS}", f"s_add_u32 s{sHld}, s{sHld}, {HX_BASE}",
            f"s_and_b32 s{U0}, s{sI}, 1", f"s_xor_b32 s{U0}, s{U0}, 1",
            f"s_mul_i32 s{U3}, s{U2}, {640 << 5}", f"s_sub_u32 s{U1}, s{sHld}, s{U3}",
            f"s_lshl_b32 s{U3}, s{U0}, 11", f"s_add_u32 s{sPo[0]}, s{U1}, s{U3}", f"s_xor_b32 s{U3}, s{U3}, 0x800", f"s_add_u32 s{sPo[1]}, s{U1}, s{U3}",
            f"s_mul_i32 s{U3}, s{sI}, {8*HXS}", f"s_sub_u32 s{sPbase}, s{sHld}, s{U3}"]
    def d_flags(tb):
        m, d, x = tb, tb+1, tb+2
        return [f"v_bfe_u32 v{m}, v{vL16}, 6, 2", f"v_min_u32 v{m}, 2, v{m}", f"v_bfe_u32 v{d}, v{vL16}, 4, 2", f"v_min_u32 v{d}, 2, v{d}",
            f"v_min_u32 v{x}, 1, v{m}", f"v_mul_u32_u24 v{d}, v{d}, v{x}", f"v_sub_u32 v{d}, s{sR}, v{d}", f"v_max_i32 v{d}, 0, v{d}",
            f"v_lshl_add_u32 v{m}, v{m}, 4, s{sS}", f"v_mul_u32_u24 v{m}, 0x5556, v{m}", f"v_lshrrev_b32 v{m}, 16, v{m}",
            f"v_lshl_add_u32 v{m}, v{d}, 4, v{m}", f"v_lshlrev_b32 v{m}, 7, v{m}", f"v_add_u32 v{m}, {QF_BASE}, v{m}",
            f"v_accvgpr_write_b32 a{st('qf')}, v{m}"]
    def d_B(tb):
        x0_, x1, x2, x3, pc_, tt_ = tb, tb+1, tb+2, tb+3, tb+4, tb+5
        L = [f"v_and_b32 v{pc_}, 48, v{vL16}", f"v_lshrrev_b32 v{tt_}, 9, v{vL16}",
            f"v_mul_u32_u24 v{x1}, {32*9216 - 64}, v{tt_}", f"v_add_u32 v{x1}, v{x1}, v{vA[0]}"]
        for i in range(3):
            if i: L.append(f"v_add_u32 v{x1}, {64*9216-1024}, v{x1}")
            L.append(f"v_accvgpr_write_b32 a{st('sing',3)+i}, v{x1}")
        L += [f"s_and_b32 s{U0}, s{sI}, 1", f"s_xor_b32 s{U0}, s{U0}, 1",
            f"v_xor_b32 v{x3}, s{U0}, v{tt_}", f"v_lshlrev_b32 v{x3}, 6, v{x3}",
            f"v_bfe_u32 v{x0_}, v{vL16}, 6, 2", f"v_bfe_u32 v{x1}, v{vL16}, 8, 1",
            f"v_xor_b32 v{x2}, s{sS}, v{x1}", f"v_mul_u32_u24 v{x2}, 36, v{x2}", f"v_add3_u32 v{x2}, v{x2}, v{x0_}, 16",
            f"v_mul_u32_u24 v{x2}, 1152, v{x2}", f"v_add_u32 v{x2}, v{x2}, v{pc_}", f"v_accvgpr_write_b32 a{st('Obm')}, v{x2}",
            f"v_add_u32 v{x2}, v{x2}, v{x3}", f"v_accvgpr_write_b32 a{st('Ob')}, v{x2}",
            f"s_lshl_b32 s{U1}, s{sW}, 2", f"v_add_u32 v{x0_}, s{U1}, v{x0_}"]
        for name, hi in (("D", 16), ("Oa", 20)):
            L += [f"v_mad_u32_u24 v{x2}, v{x1}, {hi}, v{x0_}", f"v_mul_u32_u24 v{x2}, 1152, v{x2}", f"v_add_u32 v{x2}, v{x2}, v{pc_}",
                  f"v_accvgpr_write_b32 a{st(name+'m')}, v{x2}", f"v_add_u32 v{x2}, v{x2}, v{x3}", f"v_accvgpr_write_b32 a{st(name)}, v{x2}"]
        return L
    def d_rows(tb):
        L = [f"s_mul_i32 s{sKo[j]}, s{sPair[j]}, 576" for j in range(4)] + [f"s_mul_i32 s{sKo[4]}, s{sSing}, 576"]
        L += [f"s_and_b32 s{U0}, s{sS}, 1", f"s_lshl_b32 s{U0}, s{U0}, 1", f"s_sub_u32 s{U0}, 1, s{U0}",
              f"s_mul_i32 s{U1}, s{U0}, {320*1152}"]
        L += [f"s_add_u32 s{sKp[j]}, s{sKo[j]}, s{U1}" for j in range(4)]
        L += [f"s_mul_i32 s{U1}, s{U0}, {32*1152}", f"s_add_u32 s{sKp[4]}, s{sKo[4]}, s{U1}",
              f"s_mul_i32 s{sAo}, s{sS}, {36*1152}", f"s_mul_i32 s{U1}, s{U0}, {36*1152}", f"s_add_u32 s{sAp}, s{sAo}, s{U1}"]
        L += [f"s_add_u32 s{sKo2[j]}, s{sKo[j]}, {32*1152}" for j in range(4)] + [f"s_add_u32 s{sKp2[j]}, s{sKp[j]}, {32*1152}" for j in range(4)]
        return L
    def d_T1(tb):
        x0_, x1, x2, n, q = tb, tb+1, tb+2, tb+3, tb+4
        return [f"v_bfe_u32 v{n}, v{vL16}, 4, 4", f"v_lshrrev_b32 v{q}, 8, v{vL16}",
            f"s_lshl_b32 s{U0}, s{sW}, 8", f"s_add_u32 s{U0}, s{U0}, {TBASE}",
            f"v_lshlrev_b32 v{x0_}, 3, v{n}", f"v_add_u32 v{x0_}, s{U0}, v{x0_}",
            f"v_mul_u32_u24 v{x1}, {2*GS}, v{q}", f"v_add_u32 v{x1}, v{x1}, v{x0_}", f"v_accvgpr_write_b32 a{st('KA')}, v{x1}",
            f"v_lshl_add_u32 v{x1}, v{q}, 1, 6", f"v_cmp_gt_u32 {MK}, 2, v{q}", "?s_nop 1", f"v_cndmask_b32 v{x1}, 4, v{x1}, {MK}",
            f"v_mul_u32_u24 v{x1}, {GS}, v{x1}", f"v_add_u32 v{x1}, v{x1}, v{x0_}", f"v_accvgpr_write_b32 a{st('KB')}, v{x1}",
            f"v_lshrrev_b32 v{x0_}, 6, v{vL16}", f"v_lshlrev_b32 v{x0_}, 3, v{x0_}", f"s_add_u32 s{U0}, s{U0}, {10*GS}", f"v_add_u32 v{x0_}, s{U0}, v{x0_}",
            f"v_bfe_u32 v{x1}, v{vL16}, 4, 2", f"v_mul_u32_u24 v{x2}, {GS}, v{x1}", f"v_add_u32 v{x2}, v{x2}, v{x0_}", f"v_accvgpr_write_b32 a{st('V0')}, v{x2}",
            f"v_min_u32 v{x1}, 1, v{x1}", f"v_add_u32 v{x1}, 4, v{x1}", f"v_mul_u32_u24 v{x2}, {GS}, v{x1}", f"v_add_u32 v{x2}, v{x2}, v{x0_}",
            f"v_accvgpr_write_b32 a{st('V1')}, v{x2}",
            f"v_mul_u32_u24 v{x0_}, 1152, v{n}", f"v_lshl_add_u32 v{x0_}, v{q}, 3, v{x0_}", f"v_accvgpr_write_b32 a{st('ov')}, v{x0_}"]
    def d_T2(tb):
        x0_, x1, x2, x3 = tb, tb+1, tb+2, tb+3
        L = [f"v_bfe_u32 v{x1}, v{vL16}, 4, 4", f"v_lshrrev_b32 v{x0_}, 8, v{vL16}", f"v_lshlrev_b32 v{x0_}, 2, v{x0_}", f"v_sub_u32 v{x0_}, v{x1}, v{x0_}",
             f"v_mov_b32 v{x1}, {f2u(-1e30)}"]
        for r in range(4):
            L += [f"v_cmp_le_i32 {MK}, {r}, v{x0_}", "?s_nop 1", f"v_cndmask_b32 v{x2}, 0, v{x1}, {MK}", f"v_accvgpr_write_b32 a{st('mf',4)+r}, v{x2}",
                  f"v_xor_b32 v{x2}, v{x2}, v{x1}", f"v_accvgpr_write_b32 a{st('ml',4)+r}, v{x2}"]
        L += [f"v_and_b32 v{x2}, 1, v{x0_}", f"v_lshlrev_b32 v{x2}, 4, v{x2}", f"v_mov_b32 v{x1}, 0x3f80", f"v_lshlrev_b32 v{x1}, v{x2}, v{x1}",
              f"v_ashrrev_i32 v{x0_}, 1, v{x0_}"]
        for hf in range(2):
            L += [f"v_cmp_eq_u32 {MK}, {hf}, v{x0_}", "?s_nop 1", f"v_cndmask_b32 v{x3}, 0, v{x1}, {MK}", f"v_accvgpr_write_b32 a{SEL+2+hf}, v{x3}"]
        L += [f"v_accvgpr_write_b32 a{SEL+r}, 0" for r in (0, 1, 4, 5)]
        return L
    def d_col(tb):
        L = [f"s_and_b32 s{U2}, s{sS}, 1", f"s_lshl_b32 s{U0}, s{U2}, 6", f"s_add_u32 s{sCol[0]}, s{U0}, 512",
             f"s_mul_i32 s{U2}, s{U2}, 640", f"s_lshr_b32 s{U1}, s{sI}, 1"]
        for p in range(1, 5):
            L += [f"s_xor_b32 s{U0}, s{U1}, {4-p}", f"s_lshl_b32 s{U0}, s{U0}, 7", f"s_add_u32 s{sCol[p]}, s{U0}, s{U2}"]
        return L

    stages = {}
    post = {}
    def X(S, t): return f"v[{XN+8*S+4*t}:{XN+8*S+4*t+3}]"
    def slot_of(k): return (k + 2) % 4 if (k < 6 and nraw > 2) else k % NS
    def grp(k, g, srdreg, soffs, vregs):
        slot = slot_of(k) * SLOT
        out = [("s", f"s_add_u32 m0, s{sMq}, {slot + 3072*g}")]
        out += [("s", t) for t in soffs]
        for i, v in enumerate(vregs):
            out.append(("m", f"buffer_load_dwordx4 v{v}, s[{srdreg}:{srdreg+3}], s{sOff} offen offset:{1024*i} lds"))
        return out
    k = 0
    for stg in range(6):
        dma = []
        for P in range(2):
            dma += grp(k, P, SQKV, [f"s_add_u32 s{sOff}, s{sKr3[stg//2]}, {(stg%2)*96*3456 + 128*P}"], vS)
        fr = []
        for uu in range(3):
            S = 3*stg + uu
            for tau in range(7):
                P = tau // 4; off = 1024*(3*P + uu) + 512*((tau % 4)//2) + 32*(tau % 2)
                fr.append((off, QACC + 8*tau, X(S, 0), X(S, 1), S == 0, ("Q", S, tau)) + ((D2 + 4*tau,) if stg < nraw else ()))
        stages[k] = dict(dma=dma, fr=fr); k += 1
    rot = 2
    for j in range(4):
        ag = ACC[rot % 3]; au = ACC[(rot + 1) % 3]; rot += 2
        for (srdreg, acc) in ((SG, ag), (SU, au)):
            for stg in range(3):
                dma = grp(k, 0, srdreg, [f"s_add_u32 s{sOff}, s{sPair[j]}, s{sKr9[stg]}"], vA)
                dma += grp(k, 1, srdreg, [f"s_add_u32 s{sOff}, s{sOff}, {96*9216}"], vA)
                fr = []
                for uu in range(6):
                    S = 6*stg + uu
                    for tau in range(4):
                        fr.append((1024*uu + 512*(tau//2) + 32*(tau%2), acc + 8*tau, X(S, 0), X(S, 1), S == 0, None))
                stages[k] = dict(dma=dma, fr=fr); k += 1
        post[k-1] = ("h", [ag, au], [(ag, au, 2*j), (ag+16, au+16, 2*j+1)])
    ag = ACC[rot % 3]
    for stg in range(3):
        dma = grp(k, 0, SG, [f"s_add_u32 s{sOff}, s{sSing}, s{sKr9[stg]}"], vS) + [x if x[1] != "s_nop 0" else ("n", "s_nop 0") for x in grp(k, 1, SU, ["s_nop 0"], vS)]
        if stg == 0: dma = [("v", f"v_accvgpr_read_b32 v{vS[i]}, a{st('sing',3)+i}") for i in range(3)] + dma
        fr = []
        for uu in range(6):
            S = 6*stg + uu
            for m in range(2):
                for c in range(2):
                    fr.append((3072*m + 1024*(uu//2) + 512*(uu%2) + 32*c, ag + 16*m + 8*c, X(S, 0), X(S, 1), S == 0, None))
        stages[k] = dict(dma=dma, fr=fr); k += 1
    post[k-1] = ("h", [ag], [(ag, ag+16, 8)])
    assert k == 33
    KB0 = 36
    ent = [(p, ks) for ks in range(19) for p in (1, 0)] + [(2, ks) for ks in range(odef)] + [(p, ks) for ks in (19, 20) for p in (1, 0)]
    ent += [(2, ks) for ks in range(odef, 21)]
    for p in (3, 4): ent += [(p, ks) for ks in range(21)]
    BACC = {0: 144, 1: 176, 2: 208, 3: 144, 4: 176}
    def Hop(ks, t):
        if ks < 10: b = H + 8*ks + 4*t
        elif ks < 20: b = HP + 8*(ks-10) + 4*t
        else: b = HB + 4*t
        return f"a[{b}:{b+3}]"
    nBst = (len(ent) + 5) // 6
    last_fr = [[], []]
    bpost = {}
    for sb in range(nBst):
        k = KB0 + sb; slot = (k % NS) * SLOT
        dma = []; fr = []
        for u, (p, ks) in enumerate(ent[6*sb:6*sb+6]):
            i = u % 3
            if i == 0: dma.append(("s", f"s_add_u32 m0, s{sMq}, {slot + 3072*(u//3)}"))
            kk = ks % 10
            if ks == 20:
                dma.append(("v", f"v_accvgpr_read_b32 v{vT1}, a{st('Obm' if p == 0 else 'Ob')}"))
                dma.append(("v", f"v_add_u32 v{vT1}, {2048-1024*i}, v{vT1}"))
                dma.append(("m", f"buffer_load_dwordx4 v{vT1}, s[{SO}:{SO+3}], s{sCol[p]} offen offset:{1024*i} lds"))
            elif kk == 9:
                dma.append(("v", f"v_accvgpr_read_b32 v{vT1}, a{st('Oam' if p == 0 else 'Oa')}"))
                dma.append(("v", f"v_add_u32 v{vT1}, {2048-1024*i}, v{vT1}"))
                dma.append(("s", f"s_add_u32 s{sOff}, s{sAo if ks < 10 else sAp}, s{sCol[p]}"))
                dma.append(("m", f"buffer_load_dwordx4 v{vT1}, s[{SO}:{SO+3}], s{sOff} offen offset:{1024*i} lds"))
            else:
                if ks == 0:
                    regs = vA if p == 0 else vS
                    dma.append(("v", f"v_accvgpr_read_b32 v{regs[2]}, a{st('Dm' if p == 0 else 'D')}"))
                    dma.append(("v", f"v_add_u32 v{regs[2]}, s{sCol[p]}, v{regs[2]}"))
                    dma += [("v", f"v_add_u32 v{regs[j]}, {2048-1024*j}, v{regs[2]}") for j in range(2)]
                elif i == 0: dma.append(("n", "s_nop 0"))
                tab = ((sKo, sKo2) if ks < 10 else (sKp, sKp2))[kk % 2]
                v = (vA if p == 0 else vS)[i]
                dma.append(("m", f"buffer_load_dwordx4 v{v}, s[{SD}:{SD+3}], s{tab[kk//2]} offen offset:{1024*i} lds"))
            for tau in range(2 if p == 0 else 4):
                f = (1024*u + 512*(tau//2) + 32*(tau%2), BACC[p] + 8*tau, Hop(ks, 0), Hop(ks, 1), ks == 0, ("B", p, ks, tau))
                if p == 4 and tau >= 2: last_fr[1].append((k,) + f)
                else: fr.append(f)
        stages[k] = dict(dma=dma, fr=fr)
    KEND = KB0 + nBst

    def emit_dma(k):
        for it in stages[k]["dma"]: emit_dma_item(k, it)

    fill = deque(); fill2 = deque(); fill3 = deque(); dmaq = deque(); extq = []; spin_blocks = []; pubs = []; toks = {}
    hooks = {}; ihooks = {}
    def emit_fill(it):
        kind, txt = it[1], it[2]
        if kind == "m": return a.vm(txt)
        if kind == "d": return a.ds(txt)
        if kind == "f": return txt()
        a.i(txt)
    def F(nb, kind, txt, sets=(), space=0): fill.append((nb, kind, txt, list(sets), space))
    def Fm(nb, name, txt, sets=(), space=0):
        def fn(): toks[name] = a.vm(txt)
        fill.append((nb, "f", fn, list(sets), space))
    def defer(L, accset):
        i = 0
        while i < len(L):
            g = [L[i]]; i += 1
            if g[0].startswith("s_cmp") or (i < len(L) and L[i].startswith("?")): g.append(L[i]); i += 1
            fill3.append((g, accset))
    def emit3(drain=False):
        g, _ = fill3.popleft()
        for t in g:
            if t.startswith("?"):
                if drain: a.i(t[1:])
            else: a.i(t)
    def G(nb, kind, txt, space=0): fill2.append((nb, kind, txt, [], space))
    def Gm(nb, name, txt, space=0):
        def fn(): toks[name] = a.vm(txt)
        fill2.append((nb, "f", fn, [], space))
    def poll_check(name, va, vf, soff="0", offs=0):
        a.wait(vm=toks[name])
        a.i(f"v_cmp_ne_u32 vcc, s{sTag}, v{vf}")
        a.i("s_nop 0")
        a.i("s_cmp_lg_u64 vcc, 0")
        a.i(f"s_cbranch_scc1 L_spin_{name}")
        a.label(f"L_back_{name}")
        spin_blocks.append((name, va, vf, soff, offs))
    def stream(frs, dma_after, flush=True, gap=gap, tailnop=True):
        N = len(frs); first_of = {}
        for i, f in enumerate(frs): first_of.setdefault(f[0], i)
        rd = {}; nextbar = [0]; hold_until = [0]; lastd = [-100]; gpf = 3 if len(frs[0]) > 7 else 2
        def rd_half(i, hf):
            k, off = frs[i][0], frs[i][1]
            o = slot_of(k) * SLOT + off; base = vRd[o // (2*SLOT)]; oo = o % (2*SLOT)
            fb = FR + 4*(i % NB) + 2*hf
            rd[i] = a.ds(f"ds_read_b64_tr_b16 a[{fb}:{fb+1}], v{base} offset:{oo + 256*hf}")
        def pre_read(i, cur):
            k = frs[i][0]
            if first_of[k] == i:
                nfl = 0
                while any(kk == k for kk, _ in dmaq):
                    kk, it = dmaq.popleft(); emit_dma_item(kk, it); nfl += 1
                if nfl: print("late flush", nfl, "at", k, file=sys.stderr)
                tr.stage = k; tr(f"w{k}")
                a.wait(vm=dma_tok[k])
                a.i("s_barrier")
                tr(f"b{k}")
                for p in list(pubs):
                    if p[3] and toks.get(p[0]) is not None and toks[p[0]] <= a.vm_done:
                        p[1](); pubs.remove(p); print("pub", p[0], "at barrier", k, file=sys.stderr)
                for kk in dma_after(k):
                    for it in stages[kk]["dma"]: dmaq.append((kk, it))
                if k in hooks: hooks[k](cur)
                nextbar[0] = first_of.get(k + 1, N + D) - D
                return True
            return False
        for i in range(min(D, N)):
            pre_read(i, 0); rd_half(i, 0); rd_half(i, 1)
        a.wait(lg=rd[1])
        gi = 0; lastm = -100
        def other(i):
            nonlocal lastm
            for p in list(pubs):
                if not p[3] and toks.get(p[0]) is not None:
                    if toks[p[0]] <= a.vm_done or (p[2][0] is not None and i >= p[2][0]):
                        print("pub", p[0], "at frag", i, "stage", frs[i][0], "forced" if toks[p[0]] > a.vm_done else "", file=sys.stderr); a.wait(vm=toks[p[0]]); p[1](); pubs.remove(p); return
                    if p[2][0] is None: p[2][0] = i + p[2][1]
            if dmaq:
                kk, it = dmaq[0]
                ok = True
                if it[0] == "n":
                    dmaq.popleft(); kk, it = dmaq[0]
                if it[0] == "h":
                    dmaq.popleft(); hold_until[0] = gi + it[1]; ok = False
                elif it[0] == "m":
                    if kk == "z": ok = gi - lastm >= 2
                    else:
                        g_eff = gap; urgent = False; cnt = 0
                        for k2, it2 in dmaq:
                            if it2[0] != "m": continue
                            cnt += 1
                            if k2 in first_of:
                                dl = gpf * (first_of[k2] - D) - lead
                                if gi + cnt * gap > dl: g_eff = min(g_eff, max(2, (dl - gi) // cnt)); urgent = True
                        ok = gi - lastd[0] >= g_eff and gi - lastm >= 2 and (gi >= hold_until[0] or urgent)
                if ok:
                    dmaq.popleft(); emit_dma_item(kk, it)
                    if isinstance(it[1], str) and it[1].startswith("s_cmp"):
                        kk, it = dmaq.popleft(); emit_dma_item(kk, it)
                    if it[0] == "m": lastm = gi; lastd[0] = gi
                    return
            for q_ in (fill, fill2):
                if q_ and q_[0][0] <= i and (q_[0][4] == 0 or gi - lastm >= q_[0][4]):
                    it = q_.popleft(); emit_fill(it)
                    if it[4]: lastm = gi
                    return
            if fill3: emit3()
        for i in range(N):
            k, off, acc, b0, b1, first, tag = frs[i][:7]
            if first_of[k] == i: astamp_stage(k)
            if trace == (100, 101) and k >= 36 and i % 8 == 2: tr.stage = 100; tr(f"f{i}"); tr.stage = k
            if i in ihooks: ihooks.pop(i)(i)
            if tag in ihooks: ihooks.pop(tag)(i)
            while extq: dmaq.append(extq.pop(0))
            assert rd[i] <= a.lg_done
            fb = FR + 4*(i % NB)
            if first_of[k] + 1 == i and ("S", k) in ihooks: ihooks.pop(("S", k))(i)
            if first:
                nd = 0
                while any(any((x <= acc < x + 32) if isinstance(x, int) else (x[0] <= acc < x[1]) for x in it[3]) for it in fill):
                    emit_fill(fill.popleft()); nd += 1
                while any(x <= acc < x + 32 for _, x in fill3):
                    emit3(True); nd += 1
                if nd: print("drained", nd, "at stage", k, file=sys.stderr); a.i("s_nop 1")
            for t, b in enumerate((b0, b1)):
                d = f"v[{acc+4*t}:{acc+4*t+3}]"
                a.i(f"{MF} {d}, a[{fb}:{fb+3}], {b}, {'0' if first else d}")
                used = False
                if i + D < N:
                    if t == 0: used = pre_read(i + D, i)
                    rd_half(i + D, t)
                if t == 1 and i + 1 < N and rd[i+1] > a.lg_done:
                    a.wait(lg=rd[min(i+wev, N-1)]); used = True
                if not used: other(i)
                gi += 1
            if len(frs[i]) > 7:
                d = f"v[{frs[i][7]}:{frs[i][7]+3}]"
                a.i(f"{MF} {d}, a[{fb}:{fb+3}], a[{ONES}:{ONES+3}], {'0' if first else d}")
                other(i); other(i); gi += 1
            if tag in bpost: bpost[tag](i + 3)
            if (i + 1 == N or frs[i+1][0] != k) and k in post: do_post(post.pop(k), i + 3)
        while dmaq:
            kk, it = dmaq.popleft(); emit_dma_item(kk, it)
        if tailnop or fill: a.i("s_nop 7")
        while fill: emit_fill(fill.popleft())
        while fill2: emit_fill(fill2.popleft())
    def astamp_stage(k):
        if k == 6: astamp("P:qend")
        if 6 <= k < 33 and k % 3 == 0: astamp(f"A:{k}")
        if k < 6: astamp(f"Q:{k}")
        if k >= 36 and k % 2 == 0: astamp(f"B:{k}")
    def pack4(nb, d, e, sets):
        F(nb, "v", f"v_cvt_pk_bf16_f32 v{d}, v{d}, v{d+1}", sets); F(nb, "v", f"v_cvt_pk_bf16_f32 v{d+1}, v{d+2}, v{d+3}", sets)
        F(nb, "v", f"v_cvt_pk_bf16_f32 v{d+2}, v{e}, v{e+1}", sets); F(nb, "v", f"v_cvt_pk_bf16_f32 v{d+3}, v{e+2}, v{e+3}", sets)
    def flag_store(voff_txts, soff, offs=0):
        for t in voff_txts: a.i(t)
        a.i(f"v_mov_b32 v{q1}, s{sTag}")
        a.vm(f"buffer_store_dword v{q1}, v{q0}, {WS}, {soff} offen offset:{offs} sc1")
    def do_post(p, nb):
        if p[0] == "h":
            sets = p[1]
            for (g, u_, ks) in p[2]:
                F(nb, "s", f"s_add_u32 s{sPst}, s{sHst}, {2048*ks}", sets)
                for t in range(2):
                    for c in range(2):
                        for r in range(4):
                            o = 8*c + 4*t + r
                            F(nb, "v", f"v_mul_f32 v{g+o}, v{g+o}, v{u_+o}", sets)
                    pack4(nb, g + 4*t, g + 8 + 4*t, sets)
                    for r in range(4):
                        F(nb, "v", f"v_accvgpr_write_b32 a{H+8*ks+4*t+r}, v{g+4*t+r}", sets)
                    Fm(nb, "h1st" if (ks, t) == (3, 1) else "hst", f"buffer_store_dwordx4 v[{g+4*t}:{g+4*t+3}], v{vL16}, {WS}, s{sPst} offen offset:{1024*t} sc1", sets, 3)
            if p[2][-1][2] == 3:
                pubs.append(("h1st", lambda: flag_store([f"v_accvgpr_read_b32 v{q0}, a{st('hfo')}"], "0", 8), [None, 110], False))
        elif p[0] == "q":
            sets = p[1]
            F(nb, "v", f"v_accvgpr_read_b32 v{q0}, a{st('stq')}", sets)
            for tau in range(7):
                if tau == 6: F(nb, "v", f"v_accvgpr_read_b32 v{q0}, a{st('stq2')}", sets)
                F(nb, "s", f"s_add_u32 s{sPst}, s{sQst}, {4096*tau}", sets)
                for t in range(2):
                    b = QACC + 8*tau + 4*t
                    F(nb, "v", f"v_cvt_pk_bf16_f32 v{b}, v{b}, v{b+1}", sets); F(nb, "v", f"v_cvt_pk_bf16_f32 v{b+1}, v{b+2}, v{b+3}", sets)
                    Fm(nb, "qdone" if (tau, t) == (6, 1) else "qst", f"buffer_store_dwordx2 v[{b}:{b+1}], v{q0}, {WS}, s{sPst} offen offset:{128*t} sc1", sets, 3)
            def pubq():
                a.i(f"s_lshl_b32 s{sT0}, s{sR}, 4"); a.i(f"s_add_u32 s{sT0}, s{sT0}, s{sS}")
                a.i(f"s_lshl_b32 s{sT0}, s{sT0}, 7"); a.i(f"s_add_u32 s{sT0}, s{sT0}, {QF_BASE}")
                flag_store([f"v_mov_b32 v{q0}, 0"], f"s{sT0}")
            pubs.append(("qdone", pubq, [None, 0], True))

    def hook7(cur): toks["tag"] = a.vm(f"buffer_load_dword v{vT1}, off, s[{SDBG}:{SDBG+3}], 0 sc1")
    hooks[7] = hook7
    def hook10(cur):
        a.wait(vm=toks["tag"])
        a.label("L_tagchk")
        a.i(f"v_readfirstlane_b32 s{sTag}, v{vT1}")
        a.i("s_nop 0")
        a.i(f"s_cmp_eq_u32 s{sTag}, 0")
        a.i("s_cbranch_scc1 L_tagspin")
        a.label("L_tagok")
    hooks[10] = hook10
    DUM = f"a[{HP+76}:{HP+79}]"
    nw = 8 << lg_rpx
    def wid_code():
        return [("s", f"s_and_b32 s{sT3}, s{sR}, {(1 << lg_rpx) - 1}"), ("s", f"s_lshl_b32 s{sT3}, s{sT3}, 1"),
                ("s", f"s_and_b32 s{sT1}, s{sS}, 1"), ("s", f"s_add_u32 s{sT3}, s{sT3}, s{sT1}"),
                ("s", f"s_lshl_b32 s{sT3}, s{sT3}, 2"), ("s", f"s_add_u32 s{sT3}, s{sT3}, s{sW}")]
    def pf1_items():
        L = wid_code()
        L += [("v", f"v_accvgpr_read_b32 v{q2}, a{st('pt')}"), ("m", f"buffer_load_dword a{HP+75}, v{q2}, {WS}, 0 offen sc1")]
        if gupf is True: return L
        per = (18 * 4 + nw - 1) // nw
        L += [("s", f"s_lshr_b32 s{sT0}, s{sT3}, 2"), ("s", f"s_and_b32 s{sT1}, s{sSing}, 0xffffff80")]
        for j in range(per):
            L += [("s", f"s_add_u32 s{sT2}, s{sT0}, {j * (nw // 4)}"), ("s", f"s_mul_i32 s{sT2}, s{sT2}, {32*9216}"),
                  ("s", f"s_add_u32 s{sT2}, s{sT2}, s{sT1}"),
                  ("m", f"buffer_load_dwordx4 {DUM}, v{vA[0]}, s[{SG}:{SG+3}], s{sT2} offen"),
                  ("m", f"buffer_load_dwordx4 {DUM}, v{vA[0]}, s[{SU}:{SU+3}], s{sT2} offen")]
        return L
    def xr_items(q0=q0, q1=q1, q2=q2):
        L = [("v", f"v_bfe_u32 v{q1}, v{vL16}, 4, 4"), ("v", f"v_mul_u32_u24 v{q1}, 1152, v{q1}"), ("v", f"v_lshrrev_b32 v{q0}, 8, v{vL16}"),
             ("v", f"v_lshl_add_u32 v{q2}, v{q0}, 3, v{q1}"),
             ("s", f"s_and_b32 s{sT2}, s{sS}, 1"), ("s", f"s_mul_i32 s{sT0}, s{sT2}, 640"), ("s", f"s_lshl_b32 s{sT1}, s{sI}, 6"),
             ("s", f"s_add_u32 s{sT0}, s{sT0}, s{sT1}"), ("s", f"s_add_u32 s{sT0}, s{sT0}, s{sXrow}")]
        for t in range(2):
            if t: L.append(("s", f"s_add_u32 s{sT0}, s{sT0}, {16*1152}"))
            for c in range(2):
                L.append(("m", f"buffer_load_dwordx2 a[{XR+4*t+2*c}:{XR+4*t+2*c+1}], v{q2}, s[{SX}:{SX+3}], s{sT0} offen offset:{32*c}"))
        L += [("v", f"v_and_b32 v{q0}, 1, v{q0}"), ("v", f"v_lshl_add_u32 v{q2}, v{q0}, 5, v{q1}"),
              ("s", f"s_lshr_b32 s{sT0}, s{sI}, 2"), ("s", f"s_mul_i32 s{sT0}, s{sT0}, {16*1152}"), ("s", f"s_and_b32 s{sT1}, s{sI}, 3"),
              ("s", f"s_lshl_b32 s{sT1}, s{sT1}, 3"), ("s", f"s_add_u32 s{sT0}, s{sT0}, s{sT1}"), ("s", f"s_lshl_b32 s{sT2}, s{sT2}, 6"),
              ("s", f"s_add_u32 s{sT0}, s{sT0}, s{sT2}"), ("s", f"s_add_u32 s{sT0}, s{sT0}, s{sXrow}"),
              ("m", f"buffer_load_dwordx2 a[{XR+8}:{XR+9}], v{q2}, s[{SX}:{SX+3}], s{sT0} offen offset:512")]
        return L
    def gu_items():
        assert lg_rpx == 4
        L = [("s", f"s_and_b32 s{sT1}, s{sS}, 1"), ("s", f"s_mul_i32 s{sT2}, s{sI}, 1152"),
             ("s", f"s_mul_i32 s{sT0}, s{sR}, {32*9216}"), ("s", f"s_add_u32 s{sT0}, s{sT0}, s{sT2}"),
             ("s", f"s_lshl_b32 s{sT3}, s{sT1}, 7"), ("s", f"s_add_u32 s{sT0}, s{sT0}, s{sT3}")]
        for j in range(5):
            for sr in ((SU,) if gupf == 'U' else (SG, SU)):
                L.append(("m", f"buffer_load_dwordx4 {DUM}, v{vA[0]}, s[{sr}:{sr+3}], s{sT0} offen offset:{256*j}"))
        L += [("s", f"s_add_u32 s{sT1}, s{sT1}, 16"), ("s", f"s_mul_i32 s{sT1}, s{sT1}, {32*9216}"), ("s", f"s_add_u32 s{sT1}, s{sT1}, s{sT2}"),
              ("s", f"s_min_u32 s{sT3}, s{sR}, 8"), ("s", f"s_lshl_b32 s{sT3}, s{sT3}, 7"), ("s", f"s_add_u32 s{sT1}, s{sT1}, s{sT3}")]
        for sr in ((SU,) if gupf == 'U' else (SG, SU)):
            L.append(("m", f"buffer_load_dwordx4 {DUM}, v{vA[0]}, s[{sr}:{sr+3}], s{sT1} offen"))
        return L
    def pf2_items():
        L = []
        for j in range((81 + nw - 1) // nw):
            L += [("s", f"s_add_u32 s{sT2}, s{sT3}, {j * nw + 2}"), ("s", f"s_min_u32 s{sT2}, s{sT2}, 82"),
                  ("s", f"s_lshl_b32 s{sT2}, s{sT2}, 10"), ("s", f"s_mul_i32 s{sT1}, s{sI}, {72*1152}"), ("s", f"s_add_u32 s{sT2}, s{sT2}, s{sT1}"),
                  ("m", f"buffer_load_dwordx4 {DUM}, v{vL16}, s[{SO}:{SO+3}], s{sT2} offen")]
        per_wave = 576 * 1152 // nw
        L += [("s", f"s_mul_i32 s{sT0}, s{sT3}, {per_wave}"), ("s", f"s_mul_i32 s{sT1}, s{sI}, {576*1152}"),
              ("s", f"s_add_u32 s{sT0}, s{sT0}, s{sT1}"), ("s", f"s_add_u32 s{sT0}, s{sT0}, 2048")]
        for j in range((per_wave + 1023) // 1024):
            if j % 4 == 0 and j: L.append(("s", f"s_add_u32 s{sT0}, s{sT0}, 4096"))
            L.append(("m", f"buffer_load_dwordx4 {DUM}, v{vL16}, s[{SD}:{SD+3}], s{sT0} offen offset:{1024*(j%4)}"))
        return L
    def hook_poll_issue(cur):
        assert not any(kk == "z" and it[0] != "h" for kk, it in dmaq)
        a.i(f"v_accvgpr_read_b32 v{q0}, a{st('qf')}")
        toks["kv"] = a.vm(f"buffer_load_dword v{q1}, v{q0}, {WS}, 0 offen sc1")
    def hook_poll_check(cur):
        poll_check("kv", q0, q1)
        for hd, nm in enumerate(("qA", "qB")):
            G(cur, "v", f"v_accvgpr_read_b32 v{q2}, a{st(nm)}")
            for t in range(2):
                for hf in range(2):
                    d = aQ + 8*hd + 4*t + 2*hf
                    Gm(cur, "qld", f"buffer_load_dwordx2 a[{d}:{d+1}], v{q2}, {WS}, s{sQld} offen offset:{128*t + 1024*hf} sc1", 3)
    hooks[19] = hook_poll_issue
    hooks[21] = hook_poll_check
    def h1_issue(cur):
        assert not any(p[0] == "h1st" for p in pubs) and not fill2
        a.i(f"v_accvgpr_read_b32 v{q0}, a{st('hfp')}")
        toks["h1"] = a.vm(f"buffer_load_dword v{q1}, v{q0}, {WS}, 0 offen offset:8 sc1")
    def h1_check(cur):
        poll_check("h1", q0, q1, "0", 8)
        for ks in range(4):
            for t in range(2):
                o = 2048*ks + 1024*t; d = HP + 8*ks + 4*t
                if o % 4096 == 0: G(cur, "s", f"s_add_u32 s{sT3}, s{sHld}, {o}")
                G(cur, "m", f"buffer_load_dwordx4 a[{d}:{d+3}], v{vL16}, {WS}, s{sT3} offen offset:{o % 4096} sc1", 5)
    hooks[26] = h1_issue
    hooks[28] = h1_check
    def hook_pf(cur):
        assert not any(p[0] == "qdone" for p in pubs)
        L = [("z", it) for it in pf1_items() + pf2_items() + (xr_items() if xrat == 'A' else [])] + [("z", ("h", hold))]
        for it in reversed(L): dmaq.appendleft(it)
    hooks[pfk] = hook_pf
    def kv_dma(cur, mat):
        base = TBASE + mat*10*GS; go = mat*144*1024
        L = []
        L.append(("s", f"s_mul_i32 s{sT2}, s{sW}, {GS}"))
        L.append(("s", f"s_add_u32 m0, s{sT2}, {base}"))
        for r2 in range(3):
            L.append(("s", f"s_add_u32 s{sT0}, s{sKV[r2]}, {go}"))
            L.append(("m", f"buffer_load_dwordx4 v{vL16}, {WS}, s{sT0} offen offset:{1024*r2} sc1 lds"))
        L.append(("s", f"s_min_u32 s{sT1}, s{sT2}, {GS}"))
        L.append(("s", f"s_add_u32 s{sT1}, s{sT1}, s{sT2}"))
        L.append(("s", f"s_add_u32 m0, s{sT1}, {base + 4*GS}"))
        for r2 in range(3):
            L.append(("s", f"s_add_u32 s{sT0}, s{sKV[r2]}, {go + 4096}"))
            L.append(("m", f"buffer_load_dwordx4 v{vL16}, {WS}, s{sT0} offen offset:{1024*r2} sc1 lds"))
        L.append(("s", f"s_cmp_eq_u32 s{sW}, 1")); L.append(("s", f"s_cselect_b32 s{sT0}, s{sKV[1]}, s{sKV[2]}"))
        L.append(("s", f"s_cmp_eq_u32 s{sW}, 0")); L.append(("s", f"s_cselect_b32 s{sT0}, s{sKV[0]}, s{sT0}"))
        L.append(("s", f"s_min_u32 s{sT1}, s{sW}, 2")); L.append(("s", f"s_sub_u32 s{sT2}, s{sT1}, s{sW}"))
        L.append(("s", f"s_lshl_b32 s{sT2}, s{sT2}, 10")); L.append(("s", f"s_add_u32 s{sT0}, s{sT0}, s{sT2}"))
        L.append(("s", f"s_lshl_b32 s{sT1}, s{sT1}, 10"))
        L.append(("s", f"s_add_u32 m0, s{sT1}, {base + 9*GS}"))
        L.append(("s", f"s_add_u32 s{sT0}, s{sT0}, {go + 8192}"))
        L.append(("m", f"buffer_load_dwordx4 v{vL16}, {WS}, s{sT0} offen sc1 lds"))
        L.append(("v", f"v_add_u32 v{q2}, s{sT1}, v{vL16}"))
        d = KVS + 4*mat
        if mat == 0:
            L.append(("s", f"s_cmp_ge_u32 s{sT0}, {OOB}")); L.append(("s", f"s_cselect_b32 s{sT0}, 0xf149, 0"))
            L += [("v", f"v_accvgpr_write_b32 a{d}, s{sT0}"), ("v", f"v_accvgpr_write_b32 a{d+1}, 0"),
                  ("v", f"v_accvgpr_write_b32 a{d+2}, s{sT0}"), ("v", f"v_accvgpr_write_b32 a{d+3}, 0")]
        else:
            L += [("v", f"v_accvgpr_write_b32 a{d+r}, s{sC0}") for r in range(4)]
        L.append(("v", f"v_add_u32 v{q2}, {base + 5*GS}, v{q2}"))
        L.append(("d", f"ds_write_b128 v{q2}, a[{d}:{d+3}]"))
        return L
    stages[34] = dict(dma=kv_dma(0, 0), fr=[]); stages[35] = dict(dma=kv_dma(0, 1), fr=[])
    assert nraw == 0
    a.i(f"s_mov_b32 s{sC0}, 0x3f803f80"); a.i(f"s_mov_b32 s{sC1}, 0xffff0000")
    SA = [234, 235, 236, 237]
    PR = [230, 238]; u = [160, 161]; TP = [164 + 2*i for i in range(4)]
    nx = [x0]; xrd = {}
    def xnext():
        if nx[0] < 18:
            if nx[0] >= NXU:
                if (nx[0] - NXU) not in xrd: return
                a.wait(lg=xrd[nx[0] - NXU])
            xdma(nx[0]); nx[0] += 1
    NHOP = 4
    def hop(h):
        def fn():
            if not iwarm: return
            a.i("s_mov_b64 exec, 0")
            for w in range(3):
                a.i(f"s_cmp_eq_u32 s{sW}, {w}"); a.i(f"s_cbranch_scc1 L_w{4*h+w}")
            a.i(f"s_branch L_w{4*h+3}")
            a.label(f"L_wret{h}")
            a.i("s_mov_b64 exec, -1")
        return fn
    def xread(n):
        t, ch = n // 9, n % 9
        while nx[0] <= n: xnext()
        tr(f"x{n}")
        a.wait(vm=dma_tok[("x", n)])
        tr(f"y{n}")
        for Sb in range(2):
            xrd[n] = a.ds(f"ds_read_b128 {X(2*ch + Sb, t)}, v{vXr[Sb]} offset:{2048*(n % NXU)}")
    def stats(n):
        t, ch = n // 9, n % 9
        a.wait(lg=xrd[n])
        for Sb in range(2):
            for i in range(4):
                x = XN + 8*(2*ch + Sb) + 4*t + i
                c1 = "0" if (ch == 0 and Sb == 0 and i < 2) else f"v{SA[i%2]}"
                c2 = "0" if (ch == 0 and Sb == 0 and i < 2) else f"v{SA[2+i%2]}"
                a.i(f"v_dot2_f32_bf16 v{SA[i%2]}, v{x}, s{sC0}, {c1}")
                a.i(f"v_dot2_f32_bf16 v{SA[2+i%2]}, v{x}, v{x}, {c2}")
    inv = 1.0/576.0
    def finstats(t):
        m, q = SA[0], SA[2]; rs, nm = PR[t], PR[t] + 1
        a.i("s_nop 2")
        a.i(f"v_add_f32 v{m}, v{m}, v{SA[1]}"); a.i(f"v_add_f32 v{q}, v{q}, v{SA[3]}")
        for sw in ("v_permlane32_swap_b32", "v_permlane16_swap_b32"):
            a.i(f"v_mov_b32 v{u[0]}, v{m}"); a.i(f"v_mov_b32 v{u[1]}, v{q}")
            a.i("s_nop 1")
            a.i(f"{sw} v{m}, v{u[0]}"); a.i(f"{sw} v{q}, v{u[1]}")
            a.i("s_nop 0")
            a.i(f"v_add_f32 v{m}, v{m}, v{u[0]}"); a.i(f"v_add_f32 v{q}, v{q}, v{u[1]}")
        def rb(r): a.i(f"v_cvt_pk_bf16_f32 v{r}, v{r}, v{r}"); a.i(f"v_lshlrev_b32 v{r}, 16, v{r}")
        a.i(f"v_mul_f32 v{m}, {f2u(inv)}, v{m}"); a.i(f"v_mul_f32 v{q}, {f2u(inv)}, v{q}")
        a.i(f"v_fma_f32 v{q}, -v{m}, v{m}, v{q}"); a.i(f"v_max_f32 v{q}, 0, v{q}")
        rb(q); a.i(f"v_add_f32 v{q}, {f2u(1e-5)}, v{q}"); rb(q)
        a.i(f"v_sqrt_f32 v{q}, v{q}"); rb(m); rb(q)
        a.i(f"v_rcp_f32 v{rs}, v{q}"); a.i("s_nop 0")
        a.i(f"v_mul_f32 v{nm}, v{m}, v{rs}"); a.i(f"v_sub_f32 v{nm}, 0, v{nm}")
    def norm(S, t):
        for i in range(4):
            x = XN + 8*S + 4*t + i; tp = TP[i]
            a.i(f"v_lshlrev_b32 v{tp}, 16, v{x}"); a.i(f"v_and_b32 v{tp+1}, s{sC1}, v{x}")
        for i in range(4):
            tp = TP[i]
            a.i(f"v_pk_fma_f32 v[{tp}:{tp+1}], v[{tp}:{tp+1}], v[{PR[t]}:{PR[t]+1}], v[{PR[t]}:{PR[t]+1}] op_sel:[0,0,1] op_sel_hi:[1,0,1]")
        for i in range(4):
            x = XN + 8*S + 4*t + i; tp = TP[i]
            a.i(f"v_cvt_pk_bf16_f32 v{x}, v{tp}, v{tp+1}")
    tr.stage = -1
    su_early(); su_cas()
    work = {hopat[h]: hop(h) for h in range(NHOP)}
    for n in range(9):
        if n in work: work.pop(n)()
        xread(n)
        xnext()
        if n < xfast: xnext()
        if n: stats(n - 1)
    pre = list(range(lnpre))
    vq_ = deque([(kk, it) for kk in pre for it in stages[kk]["dma"]] + ([("z", it) for it in gu_items()] if gupf else []))
    if gupf: dmaq.append(("z", ("h", hold0)))
    def vside():
        while vq_:
            kk, it = vq_.popleft(); emit_dma_item(kk, it)
            if it[0] == "m": break
    stats(8); finstats(0)
    for n in range(9, 18):
        if n in work: work.pop(n)()
        xread(n)
        xnext()
        if n >= w0at: vside(); vside()
        norm(2*(n-9), 0); norm(2*(n-9)+1, 0)
        stats(n)
    assert not work
    astamp("P:stats")
    finstats(1)
    for S in range(18):
        norm(S, 1)
        if vq_ and (vq_[0][0] != "z" or S >= gu_at): vside()
    while vq_: vside()
    astamp("P:ln")
    if nraw == 6: do_post(("q", [ACC[0], ACC[1]]), 0)
    else: post[5] = ("q", [ACC[0], ACC[1]])
    defer(d_q(208) + d_h(208) + d_flags(208), 208)
    def addhook(k, fn):
        old = hooks.get(k)
        hooks[k] = (lambda cur: (old(cur), fn(cur))) if old else fn
    def at_stage(k, L, accset):
        def f(i):
            assert not fill or True
            defer(L, accset)
        ihooks[("S", k)] = f
    at_stage(9, d_B(ACC[1]) + d_rows(0), ACC[1])
    at_stage(15, d_T1(ACC[0]), ACC[0])
    at_stage(21, d_T2(ACC[2]), ACC[2])
    at_stage(27, d_col(0), ACC[1])
    todo = [kk for kk in range(nraw, 33) if kk not in dma_tok]
    def dma_after_A(k):
        out = []
        while todo and todo[0] <= k + 4:
            kk = todo[0]
            prev = [x for x in range(nraw, kk) if slot_of(x) == slot_of(kk)]
            if prev and max(prev) > k - 2: break
            out.append(todo.pop(0))
        if k == 30: out.append(34)
        if k == 31: out.append(35)
        if k == 32: out.append(36)
        return out
    stream([(k,) + f for k in range(nraw, 33) for f in stages[k]["fr"]], dma_after_A)
    assert not todo
    astamp("P:aend"); astamp("A:end"); astamp("T:0")

    a.wait(vm=max(dma_tok[34], toks["qld"]), lg=a.lg_issued)
    a.i("s_barrier")
    SS = 0; OA = 144; QO = 176; MFi = 192; MLa = 196
    aKA, aKB, aV0, aV1 = 200, 201, 202, 203
    mx = [204, 206]; nmx = [208, 210]; w0, w1, w2, w3 = 212, 213, 214, 215
    def Sr(t, kt): return SS + 72*t + 4*kt
    side = deque()
    def side_group(kk, items):
        cur = []
        for it in items:
            cur.append(it)
            if it[0] == "m":
                side.append(lambda kk=kk, cur=cur: [emit_dma_item(kk, x) for x in cur]); cur = []
        assert not cur
    side_group(37, stages[37]["dma"])
    side_group(38, stages[38]["dma"])
    if xrat == 'T': side_group("z", xr_items(236, 237, 238))
    for nm, r in (("KA", aKA), ("KB", aKB), ("V0", aV0), ("V1", aV1)): a.i(f"v_accvgpr_read_b32 v{r}, a{st(nm)}")
    fbn = [0]
    def nextfb():
        fb = FR + 4*(fbn[0] % 8); fbn[0] += 1; return fb
    def rd_k(hd, kt, lazy=None):
        fb = nextfb(); v = aKB if hd else aKA
        o = [f"ds_read_b64 a[{fb}:{fb+1}], v{v} offset:{128*kt}", f"ds_read_b64 a[{fb+2}:{fb+3}], v{v} offset:{128*kt + GS}"]
        if lazy is not None: lazy += o; return fb, None
        a.ds(o[0]); return fb, a.ds(o[1])
    def rd_v(hd, kap, tile, lazy):
        fb = nextfb(); v = aV1 if tile else aV0; o = 256*kap + (6*GS if (hd and not tile) else 0)
        lazy += [f"ds_read_b64_tr_b16 a[{fb}:{fb+1}], v{v} offset:{o}", f"ds_read_b64_tr_b16 a[{fb+2}:{fb+3}], v{v} offset:{o+128}"]
        return fb, None
    kf = {}
    for kt in range(6): kf[kt] = rd_k(0, kt)
    for r in range(4):
        a.i(f"v_accvgpr_read_b32 v{MFi+r}, a{st('mf')+r}"); a.i(f"v_accvgpr_read_b32 v{MLa+r}, a{st('ml')+r}")
    for t in range(2): a.i(f"v_mov_b32 v{nmx[t]}, {f2u(QC)}")
    a.i(f"v_lshrrev_b32 v{w0}, 8, v{vL16}")
    a.i(f"v_cmp_gt_u32 vcc, 2, v{w0}"); a.i("s_nop 1"); a.i(f"v_cndmask_b32_e64 v{w1}, 0, -1, vcc")
    a.i(f"v_cmp_gt_u32 vcc, 3, v{w0}"); a.i("s_nop 1"); a.i(f"v_cndmask_b32_e64 v{w2}, 0, -1, vcc")
    a.i(f"v_xor_b32 v{w3}, v{w1}, v{w2}"); a.i(f"v_and_b32 v{w3}, 0x3f80, v{w3}")
    for hd in range(2):
        for t in range(2):
            b = QO + 8*hd + 4*t
            for r in range(4): a.i(f"v_accvgpr_read_b32 v{b+r}, a{aQ+8*hd+4*t+r}")
            a.i(f"v_and_b32 v{b}, v{w1 if hd else w2}, v{b}"); a.i(f"v_and_b32 v{b+1}, v{w2 if hd else w1}, v{b+1}")
            a.i(f"v_and_or_b32 v{b+2}, v{b+2}, v{w1}, v{w3}"); a.i(f"v_and_b32 v{b+3}, v{w1}, v{b+3}")
    astamp("T:setup")
    def qk_ops(hd, kt, fr):
        fb, tk = fr; o = []
        for t in range(2):
            j = kt - t
            if not 0 <= j <= 16: continue
            c = f"v[{MFi}:{MFi+3}]" if j == 0 else (f"v[{MLa}:{MLa+3}]" if j == 16 else "0")
            d = Sr(t, kt); b = QO + 8*hd + 4*t
            o.append((tk, f"{MF} v[{d}:{d+3}], a[{fb}:{fb+3}], v[{b}:{b+3}], {c}"))
        return o
    def max_ops(kt):
        o = []
        for t in range(2):
            j = kt - t
            if not 0 <= j <= 16: continue
            b = Sr(t, kt); m = mx[t]
            if j == 0:
                o.append(f"v_max_f32 v{m}, v{b}, v{b+1}"); o.append(f"v_max_f32 v{m+1}, v{b+2}, v{b+3}")
            else:
                o.append(f"v_max3_f32 v{m}, v{b}, v{b+1}, v{m}"); o.append(f"v_max3_f32 v{m+1}, v{b+2}, v{b+3}, v{m+1}")
        return o
    def finmax():
        for t in range(2): a.i(f"v_max_f32 v{mx[t]}, v{mx[t]}, v{mx[t]+1}")
        for sw in ("v_permlane32_swap_b32", "v_permlane16_swap_b32"):
            for t in range(2): a.i(f"v_mov_b32 v{mx[t]+1}, v{mx[t]}")
            a.i("s_nop 1")
            for t in range(2): a.i(f"{sw} v{mx[t]}, v{mx[t]+1}")
            a.i("s_nop 0")
            for t in range(2): a.i(f"v_max_f32 v{mx[t]}, v{mx[t]}, v{mx[t]+1}")
        for t in range(2): a.i(f"v_mul_f32 v{nmx[t]+1}, {f2u(-QC)}, v{mx[t]}")
    def exp_ops(kap):
        o1, o2, o3 = [], [], []
        for t in range(2):
            d = Sr(t, 2*kap)
            for hf in range(2):
                kt = 2*kap + hf; b = Sr(t, kt)
                if 0 <= kt - t <= 16:
                    for r in (0, 2): o1.append(f"v_pk_fma_f32 v[{b+r}:{b+r+1}], v[{b+r}:{b+r+1}], v[{nmx[t]}:{nmx[t]+1}], v[{nmx[t]}:{nmx[t]+1}] op_sel:[0,0,1] op_sel_hi:[1,0,1]")
                    for r in range(4): o2.append(f"v_exp_f32 v{b+r}, v{b+r}")
                    o3.append(f"v_cvt_pk_bf16_f32 v{d+2*hf}, v{b}, v{b+1}"); o3.append(f"v_cvt_pk_bf16_f32 v{d+2*hf+1}, v{b+2}, v{b+3}")
                else:
                    o3.append(f"v_mov_b32 v{d+2*hf}, 0"); o3.append(f"v_mov_b32 v{d+2*hf+1}, 0")
        return o1, o2 + o3
    def pv_ops(hd, kap, frs):
        o = []
        for tile in range(2):
            fb, tk = frs[tile]
            for t in range(2):
                d = OA + 16*hd + 8*t + 4*tile; b = Sr(t, 2*kap)
                o.append((tk, f"{MF} v[{d}:{d+3}], a[{fb}:{fb+3}], v[{b}:{b+3}], {'0' if kap == 0 else f'v[{d}:{d+3}]'}"))
        return o
    def merge(valu, mfs, lead=2, tailgap=1, reads=(), nside=3):
        n = len(valu); m = len(mfs); pos = {}; reads = list(reads)
        a.wait(lg=a.lg_issued)
        while len(reads) > m: a.ds(reads.pop(0))
        for j in range(m): pos.setdefault(lead + (j * max(n - lead - tailgap, 1)) // max(m, 1), []).append(mfs[j])
        cnt = 0
        def one(txt):
            nonlocal cnt
            a.i(txt)
            if reads: a.ds(reads.pop(0))
            cnt += 1
            if side and cnt % nside == 0: side.popleft()()
        for i, v in enumerate(valu):
            for (tk, txt) in pos.pop(i, []): one(txt)
            a.i(v)
        for kq in sorted(pos):
            for (tk, txt) in pos[kq]: one(txt)
    a.i("s_nop 1")
    for kt in range(18):
        lz = []
        if kt + 6 < 18: fbx, _ = rd_k(0, kt+6, lz)
        mo = max_ops(kt-3) if kt >= 3 else []
        if kt % 2 == 0: a.wait(lg=kf[kt+1][1])
        for (tk, txt) in qk_ops(0, kt, kf[kt]):
            a.wait(lg=tk); a.i(txt)
            if lz: tkx = a.ds(lz.pop(0))
            for t in mo[:2]: a.i(t)
            mo = mo[2:]
        while lz: tkx = a.ds(lz.pop(0))
        if kt + 6 < 18: kf[kt+6] = (fbx, tkx)
        for t in mo: a.i(t)
    for kt in (15, 16):
        for t in max_ops(kt): a.i(t)
    a.i("s_nop 3")
    for t in max_ops(17): a.i(t)
    finmax()
    a.wait(vm=max(toks["hst"], dma_tok[35]))
    a.i("s_barrier")
    flag_store([f"v_accvgpr_read_b32 v{q0}, a{st('hfo')}"], "0", 0)
    astamp("T:qkA")
    pend = []
    for kap in range(9):
        lz = []
        vf = [rd_v(0, kap, 0, lz), rd_v(0, kap, 1, lz)]
        k2 = [rd_k(1, 2*kap, lz), rd_k(1, 2*kap+1, lz)]
        o1, v = exp_ops(kap)
        for t in o1: a.i(t)
        if kap >= 2: v = v[:8] + max_ops(2*kap-4) + max_ops(2*kap-3) + v[8:]
        merge(v, pend, lead=0, tailgap=5, reads=lz)
        pend = pv_ops(0, kap, vf) + qk_ops(1, 2*kap, k2[0]) + qk_ops(1, 2*kap+1, k2[1])
        if kap == 6:
            a.i(f"v_accvgpr_read_b32 v{q0}, a{st('hfp')}")
            toks["hp"] = a.vm(f"buffer_load_dword v{q1}, v{q0}, {WS}, 0 offen sc1")
    merge(max_ops(14) + max_ops(15), pend)
    a.i("s_nop 7")
    for t in max_ops(16) + max_ops(17): a.i(t)
    finmax()
    while side: side.popleft()()
    poll_check("hp", q0, q1)
    for ks in range(4, 9):
        for t in range(2):
            def ld(ks=ks, t=t):
                o = 2048*ks + 1024*t
                if o % 4096 == 0: a.i(f"s_add_u32 s{sPst}, s{sHld}, {o}")
                d = HP + 8*ks + 4*t
                toks["hld"] = a.vm(f"buffer_load_dwordx4 a[{d}:{d+3}], v{vL16}, {WS}, s{sPst} offen offset:{o % 4096} sc1")
            side.append(ld)
    astamp("T:expA")
    pend = []
    for kap in range(9):
        lz = []
        vf = [rd_v(1, kap, 0, lz), rd_v(1, kap, 1, lz)]
        o1, v = exp_ops(kap)
        for t in o1: a.i(t)
        merge(v, pend, lead=0, tailgap=5, reads=lz, nside=3)
        pend = pv_ops(1, kap, vf)
    a.i("s_nop 1")
    merge([], pend)
    while side: side.popleft()()
    a.i("s_nop 7")
    L = [216, 217, 218, 219]; L2 = [220, 221, 222, 223]; BT = 224
    idx = [(hd, t) for hd in range(2) for t in range(2)]
    for n, (hd, t) in enumerate(idx):
        d = OA + 16*hd + 8*t + 4
        a.i(f"v_mov_b32 v{L[n]}, v{d}"); a.i(f"v_mov_b32 v{L2[n]}, v{d}")
    a.i("s_nop 1")
    for n in range(4): a.i(f"v_permlane16_swap_b32 v{L2[n]}, v{L[n]}")
    a.i("s_nop 0")
    for n in range(4): a.i(f"v_rcp_f32 v{L[n]}, v{L[n]}")
    a.i(f"v_cmp_eq_u32 vcc, 0, v{w0}")
    for n, (hd, t) in enumerate(idx):
        d = OA + 16*hd + 8*t
        for r in range(4): a.i(f"v_mul_f32 v{d+r}, v{L[n]}, v{d+r}")
        for r in ((6, 7) if hd else (4, 5)): a.i(f"v_mul_f32 v{d+r}, v{L[n]}, v{d+r}")
    a.i(f"s_add_u32 s{sPst}, s{sHst}, {18*1024}")
    for t in range(2):
        d = OA + 8*t; e = OA + 16 + 8*t
        a.i(f"v_cvt_pk_bf16_f32 v{BT+2*t}, v{d+4}, v{d+5}"); a.i(f"v_cvt_pk_bf16_f32 v{BT+2*t+1}, v{e+6}, v{e+7}")
        a.i(f"v_cvt_pk_bf16_f32 v{d}, v{d}, v{d+1}"); a.i(f"v_cvt_pk_bf16_f32 v{d+1}, v{d+2}, v{d+3}")
        a.i(f"v_cvt_pk_bf16_f32 v{d+2}, v{e}, v{e+1}"); a.i(f"v_cvt_pk_bf16_f32 v{d+3}, v{e+2}, v{e+3}")
        a.i(f"v_cndmask_b32 v{BT+2*t}, 0, v{BT+2*t}, vcc"); a.i(f"v_cndmask_b32 v{BT+2*t+1}, 0, v{BT+2*t+1}, vcc")
        a.vm(f"buffer_store_dwordx4 v[{d}:{d+3}], v{vL16}, {WS}, s{sPst} offen offset:{1024*t} sc1")
    toks["ost"] = a.vm(f"buffer_store_dwordx4 v[{BT}:{BT+3}], v{vL16}, {WS}, s{sPst} offen offset:2048 sc1")
    for t in range(2):
        d = OA + 8*t
        for r in range(4): a.i(f"v_accvgpr_write_b32 a{H+72+4*t+r}, v{d+r}")
        a.i(f"v_accvgpr_write_b32 a{HB+4*t}, v{BT+2*t}"); a.i(f"v_accvgpr_write_b32 a{HB+4*t+1}, v{BT+2*t+1}")
    pubs.append(("ost", lambda: flag_store([f"v_accvgpr_read_b32 v{q0}, a{st('hfo')}"], "0", 4), [None, od], False))
    astamp("P:tend"); astamp("T:end")

    PL = 0
    SQ = 96
    def pstore(p, halves):
        def fn(nb):
            acc = BACC[p]; sets = [(acc, acc + 16*len(halves))]
            for hf in halves:
                if p == 0:
                    F(nb, "s", f"s_add_u32 s{sPst}, s{sHld}, {8*2048}", sets)
                else:
                    F(nb, "s", f"s_lshl_b32 s{sPst}, s{sCol[p]}, 5", sets); F(nb, "s", f"s_add_u32 s{sPst}, s{sPst}, s{sPo[hf]}", sets)
                for t in range(2):
                    d = acc + 16*hf + 4*t
                    pack4(nb, d, d + 8, sets)
                    last = (hf == halves[-1] and t == 1)
                    Fm(nb, f"pst{p}" if last else "pstx", f"buffer_store_dwordx4 v[{d}:{d+3}], v{vL16}, {WS}, s{sPst} offen offset:{1024*t} sc1", sets, 2)
            def pub():
                if p == 0: a.i(f"s_add_u32 s{sT0}, s{sPF}, 1024")
                else:
                    a.i(f"s_lshr_b32 s{sT0}, s{sI}, 1"); a.i(f"s_xor_b32 s{sT0}, s{sT0}, {4-p}")
                    a.i(f"s_lshl_b32 s{sT0}, s{sT0}, 8"); a.i(f"s_add_u32 s{sT0}, s{sT0}, s{sPF}")
                a.i(f"s_lshl_b32 s{sT1}, s{sI}, 2")
                flag_store([f"v_mov_b32 v{q0}, s{sT1}"], f"s{sT0}")
            pubs.append((f"pst{p}", pub, [None, pd if p < 3 else pd3], False))
        return fn
    def tag_store(acc, sreg):
        def fn(nb):
            sets = [(acc, acc + 16)]; src = []; L = []
            for t in range(2):
                for c in range(2):
                    src += [(acc + 8*c + 4*t, acc + 8*c + 4*t + 1), (acc + 8*c + 4*t + 2, acc + 8*c + 4*t + 3)]
            dst = [0, 1, 2, 8, 4, 5, 6, 9]
            for n in range(8):
                L.append((nb, "v", f"v_cvt_pk_bf16_f32 v{SQ+dst[n]}, v{src[n][0]}, v{src[n][1]}", sets, 0))
                if n in (2, 6, 7):
                    j = (2, 6, 7).index(n)
                    L.append((nb, "m", f"buffer_store_dwordx4 v[{SQ+4*j}:{SQ+4*j+3}], v{vL16}, {WS}, s{sreg} offen offset:{1024*j} sc1", sets, 0))
            return L
        return fn
    def c3_store(nb):
        assert not fill, len(fill)
        assert not any(f"v{SQ+11}," in str(it[2]) for it in fill2)
        for it in tag_store(BACC[3], sC3a)(nb) + tag_store(BACC[3] + 16, sC3b)(nb): fill.append(it)
    def sib_store(nb):
        assert not fill, len(fill)
        for it in tag_store(BACC[4], sSibS)(nb): fill.append(it)
    bpost[("B", 0, 20, 1)] = pstore(0, [0])
    for p in (1, 2): bpost[("B", p, 20, 3)] = pstore(p, [0, 1])
    bpost[("B", 3, 20, 3)] = c3_store if c3tag else pstore(3, [0, 1])
    bpost[("B", 4, 20, 1)] = sib_store
    vP0, vP1 = 80, 81
    def h_wait(i): a.wait(vm=toks["hld"])
    ihooks[("B", 1, 14, 0)] = h_wait
    def o_poll(i):
        a.i(f"v_accvgpr_read_b32 v{vP0}, a{st('hfp')}")
        toks["op"] = a.vm(f"buffer_load_dword v{vP1}, v{vP0}, {WS}, 0 offen offset:4 sc1")
    ihooks[("B", 1, op[0], 0)] = o_poll
    def o_check(i):
        assert not any("v_cndmask" in str(it[2]) for it in fill2)
        poll_check("op", vP0, vP1, "0", 4)
        a.i(f"s_add_u32 s{sT0}, s{sHld}, {18*1024}")
        for t in range(2):
            a.vm(f"buffer_load_dwordx4 a[{HP+72+4*t}:{HP+75+4*t}], v{vL16}, {WS}, s{sT0} offen offset:{1024*t} sc1")
        for t in range(2):
            toks["old"] = a.vm(f"buffer_load_dwordx2 a[{HB+4*t+2}:{HB+4*t+3}], v{vL16}, {WS}, s{sT0} offen offset:{2048+8*t} sc1")
    ihooks[("B", 1, op[1], 0)] = o_check
    ihooks[("B", 1, 19, 0)] = lambda i: a.wait(vm=toks["old"])
    sOwn, sSibS = sQst, sQld
    sC3a, sC3b = 60, 61; sTL = [62, 63, sQcol]
    sPFo = sKV[0]; sXo = [sKV[1], sKV[2]]; sMf, sMo, sMl = 45, sE, sM4x
    def polladdr(minx):
        a.i(f"v_bfe_u32 v{vP0}, v{vL16}, 4, 3"); a.i(f"v_max_u32 v{vP0}, {minx}, v{vP0}")
        a.i(f"v_xor_b32 v{vP0}, s{sI}, v{vP0}"); a.i(f"v_lshlrev_b32 v{vP0}, 2, v{vP0}")
    MA, MB, MX, MD, vM0, vM1 = 120, 124, 132, 136, 134, 135
    def m_prep(i):
        L = [f"v_bfe_u32 v{MD}, v{vL16}, 4, 4", f"v_lshrrev_b32 v{MD+1}, 8, v{vL16}",
             f"v_mul_u32_u24 v{vM0}, {8*HXS}, v{MD+1}", f"v_lshl_add_u32 v{vM0}, v{MD}, 4, v{vM0}",
             f"s_lshl_b32 s{sMl}, s{sI}, 8", f"s_add_u32 s{sMl}, s{sMl}, s{sPbase}", f"s_add_u32 s{sMl}, s{sMl}, {8*2048}",
             f"v_mul_u32_u24 v{vM1}, 1152, v{MD}", f"v_lshl_add_u32 v{vM1}, v{MD+1}, 5, v{vM1}",
             f"v_lshrrev_b32 v{MD+2}, 1, v{MD+1}", f"v_lshl_add_u32 v{vM1}, v{MD+2}, 29, v{vM1}",
             f"s_lshr_b32 s{sT2}, s{sI}, 2", f"s_mul_i32 s{sMo}, s{sT2}, {16*1152}", f"s_and_b32 s{sT2}, s{sI}, 3", f"s_lshl_b32 s{sT2}, s{sT2}, 3",
             f"s_add_u32 s{sMo}, s{sMo}, s{sT2}", f"s_add_u32 s{sMo}, s{sMo}, s{sCol[0]}", f"s_add_u32 s{sMo}, s{sMo}, s{sXrow}",
             f"s_add_u32 s{sMf}, s{sPF}, 1024",
             f"v_and_b32 v{MD+2}, 1, v{MD}", f"v_lshlrev_b32 v{MD+2}, 4, v{MD+2}", f"v_mov_b32 v{MD+3}, 0x3f80",
             f"v_lshlrev_b32 v{MD+3}, v{MD+2}, v{MD+3}", f"v_lshrrev_b32 v{MD+2}, 1, v{MD}"]
        for t in L: G(i, "v", t)
        for r in range(4):
            G(i, "v", f"v_cmp_eq_u32 vcc, {r}, v{MD+2}"); G(i, "v", f"v_cndmask_b32 v{MA+r}, 0, v{MD+3}, vcc")
        G(i, "v", f"v_accvgpr_read_b32 v{MX}, a{XR+8}"); G(i, "v", f"v_accvgpr_read_b32 v{MX+1}, a{XR+9}")
    ihooks[("B", 1, 1, 0)] = m_prep
    def m_poll(i):
        assert not fill2, len(fill2)
        for t in (f"v_bfe_u32 v{vP0}, v{vL16}, 4, 3", f"v_bfe_u32 v{vP1}, v{vL16}, 7, 1", f"v_mul_u32_u24 v{vP0+2}, 6, v{vP1}",
                  f"v_or_b32 v{vP0}, v{vP0}, v{vP0+2}", f"v_xor_b32 v{vP0}, s{sI}, v{vP0}", f"v_lshlrev_b32 v{vP0}, 2, v{vP0}",
                  f"s_sub_u32 s{sT2}, s{sMf}, s{sPFo}", f"v_xor_b32 v{vP1}, 1, v{vP1}", f"v_mad_u32_u24 v{vP0}, v{vP1}, s{sT2}, v{vP0}"):
            G(i, "v", t)
        Gm(i, "mp", f"buffer_load_dword v{vP1}, v{vP0}, {WS}, s{sPFo} offen sc1")
    ihooks[("B",) + mp[0] + (0,)] = m_poll
    def m_check(i):
        poll_check("mp", vP0, vP1, f"s{sPFo}", 0)
        a.vm(f"buffer_load_dwordx4 v[{MB}:{MB+3}], v{vM0}, {WS}, s{sMl} offen sc1")
        a.i(f"s_add_u32 s{sMl}, s{sMl}, {32*HXS}")
        toks["ml"] = a.vm(f"buffer_load_dwordx4 v[{MB+4}:{MB+7}], v{vM0}, {WS}, s{sMl} offen sc1")
        for t in (f"v_lshlrev_b32 v{MD}, 16, v{MX}", f"v_and_b32 v{MD+1}, 0xffff0000, v{MX}", f"v_lshlrev_b32 v{MD+2}, 16, v{MX+1}", f"v_and_b32 v{MD+3}, 0xffff0000, v{MX+1}"):
            G(i, "v", t)
        for x in (6, 7): G(i, "f", (lambda x=x: pload(x, sOwn, PL + 8*x, "pl")), 6)
    ihooks[("B",) + mp[1] + (0,)] = m_check
    def m_fin(i):
        assert not any(f"v{MD+3}," in str(it[2]) for it in fill2)
        a.wait(vm=toks["ml"])
        for j in range(2): a.i(f"{MF} v[{MD}:{MD+3}], v[{MA}:{MA+3}], v[{MB+4*j}:{MB+4*j+3}], v[{MD}:{MD+3}]")
        G(i + 3, "v", f"v_cvt_pk_bf16_f32 v{MD}, v{MD}, v{MD+1}"); G(i + 3, "v", f"v_cvt_pk_bf16_f32 v{MD+1}, v{MD+2}, v{MD+3}")
        G(i + 3, "m", f"buffer_store_dwordx2 v[{MD}:{MD+1}], v{vM1}, s[{SOUT}:{SOUT+3}], s{sMo} offen")
    ihooks[("B",) + mp[2] + (0,)] = m_fin
    def e_poll(i):
        for t in (f"v_bfe_u32 v{vP0}, v{vL16}, 4, 1", f"v_or_b32 v{vP0}, 4, v{vP0}", f"v_xor_b32 v{vP0}, s{sI}, v{vP0}", f"v_lshlrev_b32 v{vP0}, 2, v{vP0}"):
            a.i(t)
        toks["ep"] = a.vm(f"buffer_load_dword v{vP1}, v{vP0}, {WS}, s{sPFo} offen sc1")
    def prep_own(i):
        L = [f"v_accvgpr_read_b32 v{vT0}, a{st('ov')}",
             f"s_lshl_b32 s{sOwn}, s{sI}, 11", f"s_add_u32 s{sOwn}, s{sOwn}, s{sPbase}",
             f"s_and_b32 s{sT2}, s{sS}, 1", f"s_mul_i32 s{sT2}, s{sT2}, 640", f"s_lshl_b32 s{sT3}, s{sI}, 6",
             f"s_add_u32 s{sT2}, s{sT2}, s{sT3}", f"s_add_u32 s{sXo[0]}, s{sT2}, s{sXrow}", f"s_add_u32 s{sXo[1]}, s{sXo[0]}, {16*1152}",
             f"s_lshr_b32 s{sPFo}, s{sI}, 1", f"s_lshl_b32 s{sT2}, s{sPFo}, 12", f"s_lshl_b32 s{sPFo}, s{sPFo}, 8", f"s_add_u32 s{sPFo}, s{sPFo}, s{sPF}",
             f"s_add_u32 s{sSibS}, s{sHld}, s{sT2}", f"s_xor_b32 s{sT3}, s{sT2}, 4096", f"s_add_u32 s{sC3a}, s{sHld}, s{sT3}",
             f"s_add_u32 s{sC3b}, s{sHld}, {18*1024}", f"s_add_u32 s{sT2}, s{sT2}, s{sPbase}"]
        for n, x in enumerate((3, 2, 1)):
            L += [f"s_xor_b32 s{sT3}, s{sI}, {x}", f"s_mul_i32 s{sT3}, s{sT3}, {8*HXS}"]
            if x == 2: L += [f"s_add_u32 s{sT3}, s{sT3}, s{sPbase}", f"s_add_u32 s{sTL[n]}, s{sT3}, {18*1024}"]
            else: L += [f"s_add_u32 s{sTL[n]}, s{sT3}, s{sT2}"]
        L += [f"v_mov_b32 v{SQ+r}, s{sTag}" for r in (3, 7, 10, 11)]
        for t in L: G(i, "v", t)
    ihooks[("B", 1, 2, 0)] = prep_own
    def pload(x, base, dst, name):
        a.i(f"s_xor_b32 s{sT0}, s{sI}, {x}"); a.i(f"s_mul_i32 s{sT0}, s{sT0}, {8*HXS}"); a.i(f"s_add_u32 s{sT0}, s{sT0}, s{base}")
        for t in range(2):
            toks[name] = a.vm(f"buffer_load_dwordx4 v[{dst+4*t}:{dst+4*t+3}], v{vL16}, {WS}, s{sT0} offen offset:{1024*t} sc1")
    def e_check(i):
        poll_check("ep", vP0, vP1, f"s{sPFo}", 0)
        for x in (4, 5): G(i, "f", (lambda x=x: pload(x, sOwn, PL + 8*x, "pl")), 4)
    ihooks[("B", 4) + ep[0]] = e_poll
    ihooks[("B", 4) + ep[1]] = e_check
    SI = [208, 220, 0]
    def tload(n, j): return f"buffer_load_dwordx4 v[{SI[n]+4*j}:{SI[n]+4*j+3}], v{vL16}, {WS}, s{sTL[n]} offen offset:{1024*j} sc1"
    def c3_load(i):
        for n in range(2):
            for j in range(3): Gm(i, "c3l", tload(n, j), 2)
    def sib_load(i):
        for j in range(3): G(i, "m", tload(2, j), 2)
    def e3_poll(i):
        for t in (f"v_bfe_u32 v{vP0}, v{vL16}, 4, 1", f"v_or_b32 v{vP0}, 2, v{vP0}", f"v_xor_b32 v{vP0}, s{sI}, v{vP0}", f"v_lshlrev_b32 v{vP0}, 2, v{vP0}"):
            a.i(t)
        toks["e3"] = a.vm(f"buffer_load_dword v{vP1}, v{vP0}, {WS}, s{sPFo} offen sc1")
    def e3_check(i):
        poll_check("e3", vP0, vP1, f"s{sPFo}", 0)
        for x in (2, 3): pload(x, sOwn, PL + 8*x, "c3l")
    if c3tag: ihooks[("B", 4) + tl[0]] = c3_load
    else:
        ihooks[("B", 4, e3[0], 2)] = e3_poll
        if e3[1] is not None: ihooks[("B", 4, e3[1], 2)] = e3_check
    if tl[1] is not None: ihooks[("B", 4, tl[1], 2)] = sib_load
    def dma_after_B(k):
        if k == 36: return [39, 40]
        return [k + 4] if k + 4 < KEND else []
    stream([(k,) + f for k in range(KB0, KEND) for f in stages[k]["fr"]] + last_fr[1], dma_after_B, tailnop=False)
    assert not pubs
    astamp("P:bend"); astamp("B:end")
    def accum(acc, src, f="v"):
        for c in range(2):
            for t in range(2):
                d = acc + 8*c + 4*t; s0 = SEL + (0 if c else 2)
                a.i(f"{MF} v[{d}:{d+3}], a[{s0}:{s0+3}], {f}[{src+4*t}:{src+4*t+3}], v[{d}:{d+3}]")
    OWN = BACC[4] + 16
    if not c3tag and e3[1] is None: e3_check(0)
    if tl[1] is None:
        for j in range(3): a.vm(tload(2, j))
    tr.stage = 100; tr("end")
    a.wait(vm=toks["pl"])
    tr("pl")
    accum(OWN, XR, "a")
    for x in range(4, 8): accum(OWN, PL + 8*x)
    CK = 12
    tr("acc")
    a.wait(vm=toks["c3l"])
    tr("c3")
    if not c3tag:
        for x in (2, 3): accum(OWN, PL + 8*x)
    for n in (range(3) if c3tag else [2]):
        if n == 2: tr("c3a"); a.i("s_waitcnt vmcnt(0)"); tr("sib")
        a.label(f"L_tchk{n}")
        a.i(f"v_xor_b32 v{CK}, s{sTag}, v{SI[n]+3}"); a.i(f"v_xor_b32 v{CK+1}, s{sTag}, v{SI[n]+7}"); a.i(f"v_xor_b32 v{CK+2}, s{sTag}, v{SI[n]+11}")
        a.i(f"v_or3_b32 v{CK}, v{CK}, v{CK+1}, v{CK+2}")
        a.i(f"v_cmp_ne_u32 vcc, 0, v{CK}")
        a.i(f"v_mov_b32 v{SI[n]+3}, v{SI[n]+8}"); a.i(f"v_mov_b32 v{SI[n]+7}, v{SI[n]+9}")
        a.i("s_cmp_lg_u64 vcc, 0")
        a.i(f"s_cbranch_scc1 L_tretry{n}")
        a.label(f"L_tok{n}")
        accum(OWN, SI[n])
    a.i("s_nop 4")
    for c in range(2):
        for t in range(2):
            d = OWN + 8*c + 4*t
            a.i(f"v_cvt_pk_bf16_f32 v{d}, v{d}, v{d+1}"); a.i(f"v_cvt_pk_bf16_f32 v{d+1}, v{d+2}, v{d+3}")
            a.vm(f"buffer_store_dwordx2 v[{d}:{d+1}], v{vT0}, s[{SOUT}:{SOUT+3}], s{sXo[t]} offen offset:{32*c}")
    tr("st")
    if trace: a.i("s_waitcnt vmcnt(0)"); tr("fin")
    astamp("P:done")
    if trace:
        a.i("s_waitcnt lgkmcnt(0)")
        for n0, p0 in trp: a.i(f"v_writelane_b32 v{vLane}, s{p0}, {n0}")
        a.i(f"s_lshl_b32 s{sT0}, s2, 2"); a.i(f"s_add_u32 s{sT0}, s{sT0}, s{sW}"); a.i(f"s_lshl_b32 s{sT0}, s{sT0}, 8")
        a.i(f"s_add_u32 s{sT0}, s{sT0}, {STAMP_OFF}")
        a.i(f"v_lshrrev_b32 v1, 2, v{vL16}")
        a.i(f"buffer_store_dword v{vLane}, v1, {WS}, s{sT0} offen")
        print("trace:", len(trl), " ".join(trl), file=sys.stderr)
    if stamps:
        a.i(f"s_lshl_b32 s{sT0}, s2, 2"); a.i(f"s_add_u32 s{sT0}, s{sT0}, s{sW}"); a.i(f"s_lshl_b32 s{sT0}, s{sT0}, 6")
        a.i(f"s_add_u32 s{sT0}, s{sT0}, {STAMP_OFF}")
        a.i(f"v_mov_b32 v1, 0")
        for n in range(len(stl)):
            a.i(f"buffer_store_dword a{244+n}, v1, {WS}, s{sT0} offen offset:{4*n}")
        a.i("s_waitcnt vmcnt(0)")
        a.i("s_memrealtime s[80:81]"); a.i("s_waitcnt lgkmcnt(0)"); a.i("v_accvgpr_write_b32 a255, s80")
        a.i(f"buffer_store_dword a254, v1, {WS}, s{sT0} offen offset:56")
        a.i(f"buffer_store_dword a255, v1, {WS}, s{sT0} offen offset:60")
        print("stamps:", stl, file=sys.stderr)
        if dbgout:
            a.i(f"s_cmp_lg_u32 s{sW}, 1"); a.i("s_cbranch_scc1 L_end")
            a.i("s_cmp_eq_u32 s2, 8"); a.i(f"s_cselect_b32 s{sT1}, 0, 0x1000")
            a.i("s_cmp_eq_u32 s2, 253"); a.i(f"s_cselect_b32 s{sT1}, 28, s{sT1}")
            a.i("v_accvgpr_read_b32 v3, a254")
            for n in range(1, 8):
                a.i(f"v_accvgpr_read_b32 v2, a{244+n}"); a.i("v_sub_u32 v2, v2, v3")
                a.i(f"buffer_store_dword v2, v1, s[{SDBG}:{SDBG+3}], s{sT1} offen offset:{4*n}")
            a.i(f"buffer_store_dword v3, v1, s[{SDBG}:{SDBG+3}], s{sT1} offen offset:32")
    a.label("L_end")
    a.i("s_endpgm")
    for n in (range(3) if c3tag else [2]):
        a.label(f"L_tretry{n}")
        a.i(f"s_cmp_eq_u32 s{sBound}, 0"); a.i(f"s_cbranch_scc1 L_tok{n}")
        a.i(f"s_sub_u32 s{sBound}, s{sBound}, 1"); a.i("s_sleep 2")
        for j in range(3): a.i(tload(n, j))
        a.i("s_waitcnt vmcnt(0)")
        a.i(f"s_branch L_tchk{n}")
    a.label("L_tagspin")
    a.i(f"s_cmp_eq_u32 s{sBound}, 0"); a.i("s_cbranch_scc1 L_tagok")
    a.i(f"s_sub_u32 s{sBound}, s{sBound}, 1"); a.i("s_sleep 1")
    a.i(f"buffer_load_dword v{vT1}, off, s[{SDBG}:{SDBG+3}], 0 sc1"); a.i("s_waitcnt vmcnt(0)")
    a.i("s_branch L_tagchk")
    for (name, va, vf, soff, offs) in spin_blocks:
        a.label(f"L_spin_{name}")
        a.i(f"s_cmp_eq_u32 s{sBound}, 0")
        a.i(f"s_cbranch_scc1 L_back_{name}")
        a.i(f"s_sub_u32 s{sBound}, s{sBound}, 1")
        a.i("s_sleep 1")
        a.i(f"buffer_load_dword v{vf}, v{va}, {WS}, {soff} offen offset:{offs} sc1")
        a.i("s_waitcnt vmcnt(0)")
        a.i(f"v_cmp_ne_u32 vcc, s{sTag}, v{vf}")
        a.i("s_nop 0")
        a.i("s_cmp_lg_u64 vcc, 0")
        a.i(f"s_cbranch_scc1 L_spin_{name}")
        a.i(f"s_branch L_back_{name}")
    assert not ihooks, ihooks.keys()
    body = [l.replace("CODE_LAST", "0x1000") for l in a.lines]
    if iwarm:
        tmp = [l for l in body] + [f"L_w{w}:" for w in range(4*NHOP)] + ["    s_endpgm"]
        tmp, _, _, _ = align8(tmp, nops=False)
        tmp = tmp[:-(4*NHOP+1)]
        sz = sizes_of(tmp + [f"L_w{w}:" for w in range(4*NHOP)])
        out = []; off = 0; n = 0; j = 0; nextp = 8192; done = False
        for l in tmp:
            if l.startswith("L_end:"): done = True
            if is_instr(l):
                prev = out[-1].strip() if out else ""
                if off >= nextp and not done and not prev.startswith("v_mfma") and not prev.startswith("s_cmp"):
                    out.append(f"L_w{n}:"); out.append(f"    s_cbranch_execz L_wret{n//4}"); n += 1; off += 4; nextp += 4096
                off += sz[j]; j += 1
            out.append(l)
        assert n <= 4*NHOP
        for nn in range(n, 4*NHOP):
            out.insert(out.index(f"L_wret{nn//4}:"), f"L_w{nn}:")
        body = out; size = off
        print("warm stubs", n, file=sys.stderr)
    else:
        body, nf, nn, size = align8(body, nops=False)
    body = [l.replace("v_min_u32 v%d, 0x1000," % vT0, "v_min_u32 v%d, %d," % (vT0, (size - 64) & ~15)) for l in body]
    print(f"main: code {size} bytes, stash {st.next}", file=sys.stderr)
    return body

from gen1 import kd
def whole(**kw):
    m = gen(**kw)
    hdr = [l for l in open("parallel_sum__sliding_block__glu_gated_bilinear__prompt.s.ref").read().split("\n")[:11]]
    s = "\n".join(hdr) + "\n"
    s += f"; @launch grid=(256,1,1) block=(256,1,1) lds={LDS_BYTES}\n"
    s += '.amdgcn_target "amdgcn-amd-amdhsa--gfx950"\n.text\n'
    s += f".globl {KN}\n.p2align 12\n.type {KN},@function\n{KN}:\n" + "\n".join(m) + "\n"
    s += '.section .rodata,"a"\n.p2align 6\n' + kd(KN, 512, 256)
    return s

if __name__ == "__main__":
    kw = {}
    for x in sys.argv[2:]:
        k, v = x.split("="); kw[k] = eval(v)
    open(sys.argv[1], "w").write(whole(**kw))
```

```python
import sys, struct, math, re
from asmlib import *
from collections import deque

KN = "parallel_sum__sliding_block__glu_gated_bilinear__prompt_kernel"
QS = 6176; SLOT = 4 * QS; NS = 6
LDS_BYTES = 163840
TAG_LDS = NS * SLOT + 64
QKV_BASE = 0x2400000
QF_BASE = 0x2C00000; HF_BASE = 0x2C10000; PF_BASE = 0x2C40000
EPOCH_OFF = 0x2D00000
HX_BASE = 0x3000000; HXS = 21504
STAMP_OFF = 0x6000000
WS_BYTES = 268435456
OOB = 0x20000000
GS = 3136; TBASE = 163840 - 20 * GS
TAGC = 0x9E3779B8
def f2u(f): return "0x%08x" % struct.unpack("<I", struct.pack("<f", f))[0]
QC = 18 ** -0.5 * math.log2(math.e)
QG = QC ** 0.5
MF = "v_mfma_f32_16x16x32_bf16"

def gen(D=7, wev=3, stamps=None, rt=False, gap=6, lg_rpx=4, krot=True, normil=True, l2pf=True, pfs=6, pd3=24, ep=((2, 0), (13, 0)), tl=(0, None), mp=((3, 6), (3, 14), (4, 12)), trace=None, nraw=0, iwarm=True, pd=30, lead=70, hold=90, pfk=16, lnpre=3, od=40, warmat=1, gupf="U", hold0=40, gu_at=12, dbgout=False, x0=5, w0at=13, hopat=(2, 4, 6, 8), xfast=0, odef=6, op=((1, 13), (1, 18)), c3tag=False, e3=(10, None), xrat='T', kvat=(25, 27), fastT=True, forceslow=False, outsc='', tg=1, th=(3, 8, 12), oinl=60):
    a = Asm()
    XS = lnpre * SLOT; NXU = (LDS_BYTES - XS) // 8192
    SX, SG, SU, SD, SWS, SQKV, SO, SDBG, SOUT = 4, 8, 12, 16, 20, 24, 28, 32, 36
    sPF = 3
    sCol = [40, 41, 42, 43, 44]
    sSc = [45, 46, 47]; sKV = [48, 49, 50]
    sTag, sE, sBound, sQst, sQld = 51, 52, 53, 54, 55
    sW, sS, sR = 56, 57, 58
    sPair = [59, 60, 61, 62]; sSing = 63
    sMq, sI = 64, 65
    sOff, sT0, sT1, sT2, sT3 = 66, 67, 68, 69, 70
    sXrow, sPst, sM4 = 71, 72, 73
    sOff2 = 73
    sM4x = 59
    sPC = 74; sHst, sHld = 74, 75
    sC0, sC1, sQcol, sPbase = 76, 77, 78, 79
    sStamp = 80; sPo = [82, 83]
    KA = 84
    sKo = [84, 85, 86, 87, 88]; sKp = [89, 90, 91, 92, 93]; sAo, sAp = 94, 95
    sKr9 = [96, 97, 98]; sKr3 = [99, 100, 101]
    sKo2 = [24, 25, 26, 27]; sKp2 = [99, 100, 101, 77]
    XN = 0; ACC = [144, 176, 208]
    vRd = [240, 241, 242]; vA = [243, 244, 245]; vS = [246, 247, 248]
    q0, q1, q2 = 249, 250, 251
    vT0, vT1, vL16, vLane = 252, 253, 254, 255
    H, HP, HB, FR = 0, 80, 160, 168
    KVS, aQ = 128, 136
    NB = 8; assert D <= 7
    stash = {}
    def st(name, n=1):
        if name not in stash:
            stash[name] = st.next; st.next += n; assert st.next <= 228
        return stash[name]
    st.next = 200; stash['pt'] = 236; stash['stq'] = 228; stash['stq2'] = 229
    XR = 228
    SEL = 238
    stl = []
    def astamp(name):
        if stamps is None or name.split(":")[0] not in stamps: return
        n = len(stl); assert n < 10
        a.i("s_waitcnt lgkmcnt(0)"); a.lg_done = a.lg_issued
        a.i(f"{'s_memrealtime' if rt else 's_memtime'} s[{sStamp}:{sStamp+1}]")
        a.i("s_waitcnt lgkmcnt(0)")
        a.i(f"v_accvgpr_write_b32 a{244+n}, s{sStamp}")
        stl.append(name)
    trl = []; trp = []
    TRS = [44, 80, 0] if (trace and trace[0] < 0) else [46, 80, 0]
    def tr(name):
        if trace is None or not (trace[0] <= tr.stage < trace[1]) or len(trl) >= 64: return
        if len(trp) >= 2:
            n0, p0 = trp.pop(0); a.i(f"v_writelane_b32 v{vLane}, s{p0}, {n0}")
        p = TRS[len(trl) % 3]
        a.i(f"s_memtime s[{p}:{p+1}]")
        trp.append((len(trl), p)); trl.append(name)
    tr.stage = 0
    def srd(d, p, nbytes, back=0):
        if back:
            a.i(f"s_sub_u32 s{d}, s{p}, {back}"); a.i(f"s_subb_u32 s{d+1}, s{p+1}, 0")
        else:
            a.i(f"s_mov_b32 s{d}, s{p}"); a.i(f"s_mov_b32 s{d+1}, s{p+1}")
        a.i(f"s_mov_b32 s{d+2}, {nbytes + back}"); a.i(f"s_mov_b32 s{d+3}, 0x00020000")
    WS = f"s[{SWS}:{SWS+3}]"

    a.i("s_cmp_ge_u32 s2, 256")
    a.i("s_cbranch_scc1 L_end")
    if stamps: a.i("s_memrealtime s[36:37]")
    if trace and trace[0] < 0: a.i("s_memtime s[36:37]")
    a.i(f"s_load_dwordx16 s[{KA}:{KA+15}], s[0:1], 0")
    a.i(f"s_load_dwordx4 s[80:83], s[0:1], 64")
    a.i(f"s_getpc_b64 s[{sPC}:{sPC+1}]")
    a.i(f"s_lshr_b32 s{sT0}, s2, 3")
    a.i(f"s_lshl_b32 s{sT0}, s{sT0}, 12")
    a.i(f"v_lshlrev_b32 v{vT0}, 4, v0")
    a.i(f"v_add_u32 v{vT0}, s{sT0}, v{vT0}")
    a.i(f"v_min_u32 v{vT0}, CODE_LAST, v{vT0}")
    a.vm(f"global_load_dwordx4 a[{HP+76}:{HP+79}], v{vT0}, s[{sPC}:{sPC+1}]")
    a.i(f"v_lshrrev_b32 v{vT1}, 6, v0")
    a.i(f"v_and_b32 v{vLane}, 63, v0")
    a.i(f"v_readfirstlane_b32 s{sW}, v{vT1}")
    lg = lg_rpx; nsl = 32 >> lg
    a.i(f"s_and_b32 s{sR}, s2, {(16 >> lg) - 1}"); a.i(f"s_lshl_b32 s{sR}, s{sR}, {lg}")
    a.i(f"s_lshr_b32 s{sT0}, s2, {8 - lg}"); a.i(f"s_add_u32 s{sR}, s{sR}, s{sT0}")
    a.i(f"s_bfe_u32 s{sS}, s2, {hex(((lg - 1) << 16) | (4 - lg))}"); a.i(f"s_lshl_b32 s{sS}, s{sS}, {5 - lg}")
    a.i(f"s_bfe_u32 s{sT0}, s2, {hex(((5 - lg) << 16) | 3)}"); a.i(f"s_add_u32 s{sS}, s{sS}, s{sT0}")
    sRot = sT3
    if krot:
        a.i(f"s_lshr_b32 s{sT0}, s{sR}, 2"); a.i(f"s_add_u32 s{sT0}, s{sT0}, s{sS}")
        a.i(f"s_mul_hi_u32 s{sT1}, s{sT0}, 0x55555556"); a.i(f"s_mul_i32 s{sT1}, s{sT1}, 3"); a.i(f"s_sub_u32 s{sRot}, s{sT0}, s{sT1}")
    else: a.i(f"s_mov_b32 s{sRot}, 0")
    sRk = [45, 46, 47]
    for stg in range(3):
        a.i(f"s_add_u32 s{sRk[stg]}, s{sRot}, {stg}")
        a.i(f"s_cmp_ge_u32 s{sRk[stg]}, 3"); a.i(f"s_cselect_b32 s{sT0}, 3, 0"); a.i(f"s_sub_u32 s{sRk[stg]}, s{sRk[stg]}, s{sT0}")
    QACC = 144; D2 = 200
    vX = [228, 229, 230, 231]; vXr = [232, 233]
    S1 = [234, 235]; S2 = [236, 237]; vCs = 238
    t0, t1, t2, t3 = 144, 145, 146, 147
    ONES = 128
    a.i(f"v_lshrrev_b32 v{t0}, 3, v{vLane}")
    a.i(f"v_and_b32 v{t1}, 7, v{vLane}")
    for j in range(2):
        a.i(f"v_add_u32 v{t2}, {8*j}, v{t0}")
        a.i(f"v_bfe_u32 v{t3}, v{t2}, 1, 3")
        a.i(f"v_xor_b32 v{t3}, v{t3}, v{t1}")
        a.i(f"v_mul_u32_u24 v{t2}, 1152, v{t2}")
        a.i(f"v_lshl_add_u32 v{vX[j]}, v{t3}, 4, v{t2}")
        if j: a.i(f"v_subrev_u32 v{vX[j]}, {1024*j}, v{vX[j]}")
    a.i(f"s_lshl_b32 s{sXrow}, s{sR}, 2")
    a.i(f"s_add_u32 s{sXrow}, s{sXrow}, s{sW}")
    a.i(f"s_mul_i32 s{sXrow}, s{sXrow}, {32*1152}")
    sXk = [40, 41, 42]
    for stg in range(3):
        a.i(f"s_mul_i32 s{sXk[stg]}, s{sRk[stg]}, 384"); a.i(f"s_add_u32 s{sXk[stg]}, s{sXk[stg]}, s{sXrow}")
    a.i(f"s_mul_i32 s{sM4}, s{sW}, {2048*NXU}")
    a.i("s_waitcnt lgkmcnt(0)")
    if stamps: a.i("v_accvgpr_write_b32 a254, s36")
    if trace and trace[0] < 0: a.i("s_mov_b32 s53, s36"); a.i("s_memtime s[54:55]")
    srd(SX, KA+0, 2048*1152)
    xtok = {}
    def xdma_items(n):
        t, ch = n // 9, n % 9
        o = [("s", f"s_add_u32 m0, s{sM4}, {XS + 2048*(n % NXU)}"), ("s", f"s_add_u32 s{sOff}, s{sXk[ch//3]}, {128*(ch%3) + 16*1152*t}")]
        return o + [("m", f"buffer_load_dwordx4 v{vX[j]}, s[{SX}:{SX+3}], s{sOff} offen offset:{1024*j} lds") for j in range(2)]
    dma_tok = {}
    def emit_dma_item(k, it):
        if it[0] == "m": dma_tok[k] = a.vm(it[1])
        elif it[0] == "d": a.ds(it[1])
        elif it[0] == "h": pass
        else: a.i(it[1])
    def xdma(ch):
        for it in xdma_items(ch): emit_dma_item(("x", ch), it)
    for n in range(x0): xdma(n)
    srd(SQKV, KA+2, 576*3456); srd(SO, KA+4, 576*1152, back=2048)
    srd(SG, KA+8, 576*9216); srd(SU, KA+10, 576*9216); srd(SD, KA+12, 4608*1152, back=2048)
    srd(SOUT, KA+14, 2048*1152)
    srd(SDBG, 80, 256); srd(SWS, 82, WS_BYTES)
    a.i(f"s_or_b32 s{sT0}, s2, s{sW}")
    a.i("s_cbranch_scc1 L_noep")
    a.i(f"s_add_u32 s82, s82, {EPOCH_OFF}"); a.i("s_addc_u32 s83, s83, 0")
    a.i(f"s_load_dword s{sE}, s[82:83], 0")
    a.label("L_noep")
    astamp("P:start")
    vn, vq, rho, tt, pc = 148, 149, 150, 151, 152
    a.i(f"v_and_b32 v{vn}, 15, v{vLane}"); a.i(f"v_lshrrev_b32 v{vq}, 4, v{vLane}")
    a.i(f"v_bfe_u32 v{rho}, v{vLane}, 2, 3"); a.i(f"v_lshrrev_b32 v{tt}, 5, v{vLane}")
    a.i(f"v_and_b32 v{pc}, 3, v{vLane}"); a.i(f"v_lshlrev_b32 v{pc}, 4, v{pc}")
    a.i(f"v_lshlrev_b32 v{vL16}, 4, v{vLane}")
    a.i(f"v_lshrrev_b32 v{t1}, 1, v{vn}"); a.i(f"v_xor_b32 v{t1}, v{t1}, v{vq}")
    a.i(f"v_lshlrev_b32 v{t0}, 7, v{vn}")
    a.i(f"s_add_u32 s{sT0}, s{sM4}, {XS}"); a.i(f"v_add_u32 v{t0}, s{sT0}, v{t0}")
    a.i(f"v_lshl_add_u32 v{vXr[0]}, v{t1}, 4, v{t0}")
    a.i(f"v_xor_b32 v{t1}, 4, v{t1}"); a.i(f"v_lshl_add_u32 v{vXr[1]}, v{t1}, 4, v{t0}")
    for stg in range(3):
        a.i(f"s_mul_i32 s{sKr9[stg]}, s{sRk[stg]}, {192*9216}"); a.i(f"s_mul_i32 s{sKr3[stg]}, s{sRk[stg]}, {192*3456}")
    a.i(f"s_mul_i32 s{sQcol}, s{sS}, 216")
    for stg in range(3): a.i(f"s_add_u32 s{sKr3[stg]}, s{sKr3[stg]}, s{sQcol}")
    a.i(f"s_mul_i32 s{sMq}, s{sW}, {QS}")
    a.i(f"s_lshr_b32 s{sI}, s{sS}, 1")
    a.i(f"s_lshl_b32 s{sT0}, s{sW}, 3"); a.i(f"v_add_u32 v{t2}, s{sT0}, v{rho}")
    a.i(f"v_lshl_add_u32 v{t3}, v{tt}, 6, v{pc}")
    a.i(f"v_mul_u32_u24 v{vS[0]}, 3456, v{t2}"); a.i(f"v_add_u32 v{vS[0]}, v{vS[0]}, v{t3}")
    a.i(f"v_add_u32 v{vS[1]}, {32*3456-1024}, v{vS[0]}"); a.i(f"v_add_u32 v{vS[2]}, {64*3456-2048}, v{vS[0]}")
    a.i(f"v_mul_u32_u24 v{t0}, 9216, v{t2}"); a.i(f"v_add_u32 v{vA[0]}, v{t0}, v{t3}")
    a.i(f"v_add_u32 v{vA[1]}, {32*9216-1024}, v{vA[0]}"); a.i(f"v_add_u32 v{vA[2]}, {64*9216-2048}, v{vA[0]}")
    def su_cas():
        a.i(f"s_or_b32 s{sT0}, s2, s{sW}")
        a.i("s_cbranch_scc1 L_nocas")
        a.i("s_waitcnt lgkmcnt(0)")
        a.i(f"s_add_u32 s{sE}, s{sE}, {TAGC}"); a.i(f"s_or_b32 s{sE}, s{sE}, 1")
        a.i(f"v_mov_b32 v{vCs}, s{sE}"); a.i(f"v_mov_b32 v{vCs+1}, {EPOCH_OFF}")
        a.i(f"buffer_store_dword v{vCs}, off, s[{SDBG}:{SDBG+3}], 0 sc1")
        a.i(f"buffer_store_dword v{vCs}, v{vCs+1}, {WS}, 0 offen sc1")
        a.label("L_nocas")

    def su_early():
        a.i(f"v_bfe_u32 v{t0}, v{vLane}, 2, 2"); a.i(f"v_lshlrev_b32 v{t1}, 6, v{t0}")
        a.i(f"v_and_b32 v{t0}, 3, v{vLane}"); a.i(f"v_lshl_add_u32 v{t1}, v{t0}, 3, v{t1}")
        a.i(f"v_mul_u32_u24 v{t0}, {QS}, v{vq}"); a.i(f"v_add_u32 v{vRd[0]}, v{t0}, v{t1}")
        a.i(f"v_add_u32 v{vRd[1]}, {2*SLOT}, v{vRd[0]}"); a.i(f"v_add_u32 v{vRd[2]}, {4*SLOT}, v{vRd[0]}")
        a.i(f"s_mul_i32 s{sT1}, s{sS}, 576"); a.i(f"s_and_b32 s{sT2}, s{sS}, 1")
        a.i(f"s_lshl_b32 s{sT3}, s{sT2}, 6"); a.i(f"s_add_u32 s{sT3}, s{sT3}, s{sT1}")
        for j in range(4):
            a.i(f"s_add_u32 s{sPair[j]}, s{sR}, {j}"); a.i(f"s_and_b32 s{sPair[j]}, s{sPair[j]}, 3")
            a.i(f"s_lshl_b32 s{sPair[j]}, s{sPair[j]}, 7"); a.i(f"s_add_u32 s{sPair[j]}, s{sPair[j]}, s{sT3}")
        a.i(f"s_xor_b32 s{sT2}, s{sT2}, 1"); a.i(f"s_lshl_b32 s{sT2}, s{sT2}, 9"); a.i(f"s_add_u32 s{sSing}, s{sT2}, s{sT1}")
        a.i(f"s_mov_b32 s{sBound}, 0x40000")
    U0, U1, U2, U3 = 45, 52, 78, 73
    MK = "s[40:41]"
    def d_q(tb):
        x0_, x1, x2, n, q = tb, tb+1, tb+2, tb+3, tb+4
        return [f"v_bfe_u32 v{n}, v{vL16}, 4, 4", f"v_lshrrev_b32 v{q}, 8, v{vL16}",
            f"s_lshl_b32 s{U0}, s{sW}, 8", f"v_lshlrev_b32 v{x0_}, 3, v{n}", f"v_add_u32 v{x0_}, s{U0}, v{x0_}",
            f"v_lshl_add_u32 v{x1}, v{q}, 10, v{x0_}", f"v_accvgpr_write_b32 a{st('stq')}, v{x1}",
            f"v_add_u32 v{x2}, 1, v{q}", f"v_lshrrev_b32 v{x2}, 2, v{x2}", f"v_lshl_add_u32 v{x1}, v{x2}, 29, v{x1}",
            f"v_accvgpr_write_b32 a{st('stq2')}, v{x1}",
            f"s_mul_i32 s{U0}, s{sR}, 432", f"s_mul_i32 s{U1}, s{sS}, 27", f"s_add_u32 s{U1}, s{U1}, s{U0}",
            f"s_lshl_b32 s{U1}, s{U1}, 10", f"s_add_u32 s{sQst}, s{U1}, {QKV_BASE}",
            f"v_lshl_add_u32 v{x1}, v{q}, 11, v{x0_}", f"v_accvgpr_write_b32 a{st('qA')}, v{x1}",
            f"v_lshl_add_u32 v{x1}, v{q}, 1, 5", f"v_cmp_gt_u32 {MK}, 2, v{q}", "?s_nop 1",
            f"v_cndmask_b32 v{x1}, 4, v{x1}, {MK}", f"v_lshl_add_u32 v{x1}, v{x1}, 10, v{x0_}", f"v_accvgpr_write_b32 a{st('qB')}, v{x1}",
            f"s_mul_i32 s{U1}, s{sS}, 9", f"s_add_u32 s{U1}, s{U1}, s{U0}", f"s_lshl_b32 s{U1}, s{U1}, 10", f"s_add_u32 s{sQld}, s{U1}, {QKV_BASE}",
            f"s_add_u32 s{U2}, s{sW}, 144", f"s_lshl_b32 s{U2}, s{U2}, 10", f"s_add_u32 s{sKV[2]}, s{U2}, s{sQld}",
            f"s_sub_u32 s{sKV[0]}, s{sKV[2]}, {2*432*1024}", f"s_cmp_ge_u32 s{sR}, 2", f"s_cselect_b32 s{sKV[0]}, s{sKV[0]}, {OOB}",
            f"s_sub_u32 s{sKV[1]}, s{sKV[2]}, {432*1024 + 1024}", f"s_cmp_ge_u32 s{sR}, 1", f"s_cselect_b32 s{sKV[1]}, s{sKV[1]}, {OOB}",
            f"s_sub_u32 s{sKV[2]}, s{sKV[2]}, 2048"]
    def d_h(tb):
        x2 = tb
        return [f"s_and_b32 s{U2}, s{sS}, 1", f"s_lshl_b32 s{U1}, s{sR}, 1", f"s_add_u32 s{U1}, s{U1}, s{U2}",
            f"s_mul_i32 s{sPF}, s{U1}, 20", f"s_add_u32 s{sPF}, s{sPF}, s{sW}", f"s_lshl_b32 s{sPF}, s{sPF}, 6", f"s_add_u32 s{sPF}, s{sPF}, {PF_BASE}",
            f"s_lshl_b32 s{U1}, s{sR}, 4", f"s_add_u32 s{U1}, s{U1}, s{sS}", f"s_lshl_b32 s{U3}, s{U1}, 2", f"s_add_u32 s{U3}, s{U3}, s{sW}",
            f"s_mul_i32 s{sHst}, s{U3}, {HXS}", f"s_add_u32 s{sHst}, s{sHst}, {HX_BASE}",
            f"s_lshl_b32 s{U1}, s{U3}, 6", f"s_add_u32 s{U1}, s{U1}, {HF_BASE}", f"v_accvgpr_write_b32 a{st('hfo')}, s{U1}",
            f"v_min_u32 v{x2}, 64, v{vL16}", f"v_lshlrev_b32 v{x2}, 4, v{x2}", f"v_add_u32 v{x2}, s{sPF}, v{x2}",
            f"v_writelane_b32 v{x2}, s{U1}, 7", f"v_accvgpr_write_b32 a{st('pt')}, v{x2}",
            f"s_xor_b32 s{U1}, s{U1}, 256", f"v_accvgpr_write_b32 a{st('hfp')}, s{U1}",
            f"s_xor_b32 s{U3}, s{U3}, 4", f"s_mul_i32 s{sHld}, s{U3}, {HXS}", f"s_add_u32 s{sHld}, s{sHld}, {HX_BASE}",
            f"s_and_b32 s{U0}, s{sI}, 1", f"s_xor_b32 s{U0}, s{U0}, 1",
            f"s_mul_i32 s{U3}, s{U2}, {640 << 5}", f"s_sub_u32 s{U1}, s{sHld}, s{U3}",
            f"s_lshl_b32 s{U3}, s{U0}, 11", f"s_add_u32 s{sPo[0]}, s{U1}, s{U3}", f"s_xor_b32 s{U3}, s{U3}, 0x800", f"s_add_u32 s{sPo[1]}, s{U1}, s{U3}",
            f"s_mul_i32 s{U3}, s{sI}, {8*HXS}", f"s_sub_u32 s{sPbase}, s{sHld}, s{U3}"]
    def d_flags(tb):
        m, d, x = tb, tb+1, tb+2
        return [f"v_bfe_u32 v{m}, v{vL16}, 6, 2", f"v_min_u32 v{m}, 2, v{m}", f"v_bfe_u32 v{d}, v{vL16}, 4, 2", f"v_min_u32 v{d}, 2, v{d}",
            f"v_min_u32 v{x}, 1, v{m}", f"v_mul_u32_u24 v{d}, v{d}, v{x}", f"v_sub_u32 v{d}, s{sR}, v{d}", f"v_max_i32 v{d}, 0, v{d}",
            f"v_lshl_add_u32 v{m}, v{m}, 4, s{sS}", f"v_mul_u32_u24 v{m}, 0x5556, v{m}", f"v_lshrrev_b32 v{m}, 16, v{m}",
            f"v_lshl_add_u32 v{m}, v{d}, 4, v{m}", f"v_lshlrev_b32 v{m}, 7, v{m}", f"v_add_u32 v{m}, {QF_BASE}, v{m}",
            f"v_accvgpr_write_b32 a{st('qf')}, v{m}"]
    def d_B(tb):
        x0_, x1, x2, x3, pc_, tt_ = tb, tb+1, tb+2, tb+3, tb+4, tb+5
        L = [f"v_and_b32 v{pc_}, 48, v{vL16}", f"v_lshrrev_b32 v{tt_}, 9, v{vL16}",
            f"v_mul_u32_u24 v{x1}, {32*9216 - 64}, v{tt_}", f"v_add_u32 v{x1}, v{x1}, v{vA[0]}"]
        for i in range(3):
            if i: L.append(f"v_add_u32 v{x1}, {64*9216-1024}, v{x1}")
            L.append(f"v_accvgpr_write_b32 a{st('sing',3)+i}, v{x1}")
        L += [f"s_and_b32 s{U0}, s{sI}, 1", f"s_xor_b32 s{U0}, s{U0}, 1",
            f"v_xor_b32 v{x3}, s{U0}, v{tt_}", f"v_lshlrev_b32 v{x3}, 6, v{x3}",
            f"v_bfe_u32 v{x0_}, v{vL16}, 6, 2", f"v_bfe_u32 v{x1}, v{vL16}, 8, 1",
            f"v_xor_b32 v{x2}, s{sS}, v{x1}", f"v_mul_u32_u24 v{x2}, 36, v{x2}", f"v_add3_u32 v{x2}, v{x2}, v{x0_}, 16",
            f"v_mul_u32_u24 v{x2}, 1152, v{x2}", f"v_add_u32 v{x2}, v{x2}, v{pc_}", f"v_accvgpr_write_b32 a{st('Obm')}, v{x2}",
            f"v_add_u32 v{x2}, v{x2}, v{x3}", f"v_accvgpr_write_b32 a{st('Ob')}, v{x2}",
            f"s_lshl_b32 s{U1}, s{sW}, 2", f"v_add_u32 v{x0_}, s{U1}, v{x0_}"]
        for name, hi in (("D", 16), ("Oa", 20)):
            L += [f"v_mad_u32_u24 v{x2}, v{x1}, {hi}, v{x0_}", f"v_mul_u32_u24 v{x2}, 1152, v{x2}", f"v_add_u32 v{x2}, v{x2}, v{pc_}",
                  f"v_accvgpr_write_b32 a{st(name+'m')}, v{x2}", f"v_add_u32 v{x2}, v{x2}, v{x3}", f"v_accvgpr_write_b32 a{st(name)}, v{x2}"]
        return L
    def d_rows(tb):
        L = [f"s_mul_i32 s{sKo[j]}, s{sPair[j]}, 576" for j in range(4)] + [f"s_mul_i32 s{sKo[4]}, s{sSing}, 576"]
        L += [f"s_and_b32 s{U0}, s{sS}, 1", f"s_lshl_b32 s{U0}, s{U0}, 1", f"s_sub_u32 s{U0}, 1, s{U0}",
              f"s_mul_i32 s{U1}, s{U0}, {320*1152}"]
        L += [f"s_add_u32 s{sKp[j]}, s{sKo[j]}, s{U1}" for j in range(4)]
        L += [f"s_mul_i32 s{U1}, s{U0}, {32*1152}", f"s_add_u32 s{sKp[4]}, s{sKo[4]}, s{U1}",
              f"s_mul_i32 s{sAo}, s{sS}, {36*1152}", f"s_mul_i32 s{U1}, s{U0}, {36*1152}", f"s_add_u32 s{sAp}, s{sAo}, s{U1}"]
        L += [f"s_add_u32 s{sKo2[j]}, s{sKo[j]}, {32*1152}" for j in range(4)] + [f"s_add_u32 s{sKp2[j]}, s{sKp[j]}, {32*1152}" for j in range(4)]
        return L
    def d_T1(tb):
        x0_, x1, x2, n, q = tb, tb+1, tb+2, tb+3, tb+4
        return [f"v_bfe_u32 v{n}, v{vL16}, 4, 4", f"v_lshrrev_b32 v{q}, 8, v{vL16}",
            f"s_lshl_b32 s{U0}, s{sW}, 8", f"s_add_u32 s{U0}, s{U0}, {TBASE}",
            f"v_lshlrev_b32 v{x0_}, 3, v{n}", f"v_add_u32 v{x0_}, s{U0}, v{x0_}",
            f"v_mul_u32_u24 v{x1}, {2*GS}, v{q}", f"v_add_u32 v{x1}, v{x1}, v{x0_}", f"v_accvgpr_write_b32 a{st('KA')}, v{x1}",
            f"v_lshl_add_u32 v{x1}, v{q}, 1, 6", f"v_cmp_gt_u32 {MK}, 2, v{q}", "?s_nop 1", f"v_cndmask_b32 v{x1}, 4, v{x1}, {MK}",
            f"v_mul_u32_u24 v{x1}, {GS}, v{x1}", f"v_add_u32 v{x1}, v{x1}, v{x0_}", f"v_accvgpr_write_b32 a{st('KB')}, v{x1}",
            f"v_lshrrev_b32 v{x0_}, 6, v{vL16}", f"v_lshlrev_b32 v{x0_}, 3, v{x0_}", f"s_add_u32 s{U0}, s{U0}, {10*GS}", f"v_add_u32 v{x0_}, s{U0}, v{x0_}",
            f"v_bfe_u32 v{x1}, v{vL16}, 4, 2", f"v_mul_u32_u24 v{x2}, {GS}, v{x1}", f"v_add_u32 v{x2}, v{x2}, v{x0_}", f"v_accvgpr_write_b32 a{st('V0')}, v{x2}",
            f"v_min_u32 v{x1}, 1, v{x1}", f"v_add_u32 v{x1}, 4, v{x1}", f"v_mul_u32_u24 v{x2}, {GS}, v{x1}", f"v_add_u32 v{x2}, v{x2}, v{x0_}",
            f"v_accvgpr_write_b32 a{st('V1')}, v{x2}",
            f"v_mul_u32_u24 v{x0_}, 1152, v{n}", f"v_lshl_add_u32 v{x0_}, v{q}, 3, v{x0_}", f"v_accvgpr_write_b32 a{st('ov')}, v{x0_}"]
    def d_T2(tb):
        x0_, x1, x2, x3 = tb, tb+1, tb+2, tb+3
        L = [f"v_bfe_u32 v{x1}, v{vL16}, 4, 4", f"v_lshrrev_b32 v{x0_}, 8, v{vL16}", f"v_lshlrev_b32 v{x0_}, 2, v{x0_}", f"v_sub_u32 v{x0_}, v{x1}, v{x0_}",
             f"v_mov_b32 v{x1}, {f2u(-1e30)}"]
        for r in range(4):
            L += [f"v_cmp_le_i32 {MK}, {r}, v{x0_}", "?s_nop 1", f"v_cndmask_b32 v{x2}, 0, v{x1}, {MK}", f"v_accvgpr_write_b32 a{st('mf',4)+r}, v{x2}",
                  f"v_xor_b32 v{x2}, v{x2}, v{x1}", f"v_accvgpr_write_b32 a{st('ml',4)+r}, v{x2}"]
        L += [f"v_and_b32 v{x2}, 1, v{x0_}", f"v_lshlrev_b32 v{x2}, 4, v{x2}", f"v_mov_b32 v{x1}, 0x3f80", f"v_lshlrev_b32 v{x1}, v{x2}, v{x1}",
              f"v_ashrrev_i32 v{x0_}, 1, v{x0_}"]
        for hf in range(2):
            L += [f"v_cmp_eq_u32 {MK}, {hf}, v{x0_}", "?s_nop 1", f"v_cndmask_b32 v{x3}, 0, v{x1}, {MK}", f"v_accvgpr_write_b32 a{SEL+2+hf}, v{x3}"]
        L += [f"v_accvgpr_write_b32 a{SEL+r}, 0" for r in (0, 1, 4, 5)]
        return L
    def d_col(tb):
        L = [f"s_and_b32 s{U2}, s{sS}, 1", f"s_lshl_b32 s{U0}, s{U2}, 6", f"s_add_u32 s{sCol[0]}, s{U0}, 512",
             f"s_mul_i32 s{U2}, s{U2}, 640", f"s_lshr_b32 s{U1}, s{sI}, 1"]
        for p in range(1, 5):
            L += [f"s_xor_b32 s{U0}, s{U1}, {4-p}", f"s_lshl_b32 s{U0}, s{U0}, 7", f"s_add_u32 s{sCol[p]}, s{U0}, s{U2}"]
        return L

    stages = {}
    post = {}
    def X(S, t): return f"v[{XN+8*S+4*t}:{XN+8*S+4*t+3}]"
    def slot_of(k):
        if k < 28: return k % NS
        if k < 33: return k % 4
        return [1, 2, 3, 0, 4, 5][(k - 36) % 6]
    def grp(k, g, srdreg, soffs, vregs):
        slot = slot_of(k) * SLOT
        out = [("s", f"s_add_u32 m0, s{sMq}, {slot + 3072*g}")]
        out += [("s", t) for t in soffs]
        for i, v in enumerate(vregs):
            out.append(("m", f"buffer_load_dwordx4 v{v}, s[{srdreg}:{srdreg+3}], s{sOff} offen offset:{1024*i} lds"))
        return out
    k = 0
    for stg in range(6):
        dma = []
        for P in range(2):
            dma += grp(k, P, SQKV, [f"s_add_u32 s{sOff}, s{sKr3[stg//2]}, {(stg%2)*96*3456 + 128*P}"], vS)
        fr = []
        for uu in range(3):
            S = 3*stg + uu
            for tau in range(7):
                P = tau // 4; off = 1024*(3*P + uu) + 512*((tau % 4)//2) + 32*(tau % 2)
                fr.append((off, QACC + 8*tau, X(S, 0), X(S, 1), S == 0, ("Q", S, tau)) + ((D2 + 4*tau,) if stg < nraw else ()))
        stages[k] = dict(dma=dma, fr=fr); k += 1
    rot = 2
    for j in range(4):
        ag = ACC[rot % 3]; au = ACC[(rot + 1) % 3]; rot += 2
        for (srdreg, acc) in ((SG, ag), (SU, au)):
            for stg in range(3):
                dma = grp(k, 0, srdreg, [f"s_add_u32 s{sOff}, s{sPair[j]}, s{sKr9[stg]}"], vA)
                dma += grp(k, 1, srdreg, [f"s_add_u32 s{sOff}, s{sOff}, {96*9216}"], vA)
                fr = []
                for uu in range(6):
                    S = 6*stg + uu
                    for tau in range(4):
                        fr.append((1024*uu + 512*(tau//2) + 32*(tau%2), acc + 8*tau, X(S, 0), X(S, 1), S == 0, None))
                stages[k] = dict(dma=dma, fr=fr); k += 1
            if srdreg == SG: post[k-1] = ("g", [ag], ag, 4)
        post[k-1] = ("h", [ag, au], [(ag, au, 2*j), (ag+16, au+16, 2*j+1)])
    ag = ACC[rot % 3]
    for stg in range(3):
        dma = grp(k, 0, SG, [f"s_add_u32 s{sOff}, s{sSing}, s{sKr9[stg]}"], vS) + [x if x[1] != "s_nop 0" else ("n", "s_nop 0") for x in grp(k, 1, SU, ["s_nop 0"], vS)]
        if stg == 0: dma = [("v", f"v_accvgpr_read_b32 v{vS[i]}, a{st('sing',3)+i}") for i in range(3)] + dma
        fr = []
        for uu in range(6):
            S = 6*stg + uu
            for m in range(2):
                for c in range(2):
                    fr.append((3072*m + 1024*(uu//2) + 512*(uu%2) + 32*c, ag + 16*m + 8*c, X(S, 0), X(S, 1), S == 0, None))
        stages[k] = dict(dma=dma, fr=fr); k += 1
    post[k-1] = ("h", [ag], [(ag, ag+16, 8)])
    assert k == 33
    KB0 = 36
    ent = [(p, ks) for ks in range(19) for p in (1, 0)] + [(2, ks) for ks in range(odef)] + [(p, ks) for ks in (19, 20) for p in (1, 0)]
    ent += [(2, ks) for ks in range(odef, 21)]
    for p in (3, 4): ent += [(p, ks) for ks in range(21)]
    BACC = {0: 144, 1: 176, 2: 208, 3: 144, 4: 176}
    def Hop(ks, t):
        if ks < 10: b = H + 8*ks + 4*t
        elif ks < 20: b = HP + 8*(ks-10) + 4*t
        else: b = HB + 4*t
        return f"a[{b}:{b+3}]"
    nBst = (len(ent) + 5) // 6
    last_fr = [[], []]
    bpost = {}
    for sb in range(nBst):
        k = KB0 + sb; slot = slot_of(k) * SLOT
        dma = []; fr = []
        for u, (p, ks) in enumerate(ent[6*sb:6*sb+6]):
            i = u % 3
            if i == 0: dma.append(("s", f"s_add_u32 m0, s{sMq}, {slot + 3072*(u//3)}"))
            kk = ks % 10
            if ks == 20:
                dma.append(("v", f"v_accvgpr_read_b32 v{vT1}, a{st('Obm' if p == 0 else 'Ob')}"))
                dma.append(("v", f"v_add_u32 v{vT1}, {2048-1024*i}, v{vT1}"))
                dma.append(("m", f"buffer_load_dwordx4 v{vT1}, s[{SO}:{SO+3}], s{sCol[p]} offen offset:{1024*i} lds"))
            elif kk == 9:
                dma.append(("v", f"v_accvgpr_read_b32 v{vT1}, a{st('Oam' if p == 0 else 'Oa')}"))
                dma.append(("v", f"v_add_u32 v{vT1}, {2048-1024*i}, v{vT1}"))
                dma.append(("s", f"s_add_u32 s{sOff}, s{sAo if ks < 10 else sAp}, s{sCol[p]}"))
                dma.append(("m", f"buffer_load_dwordx4 v{vT1}, s[{SO}:{SO+3}], s{sOff} offen offset:{1024*i} lds"))
            else:
                if ks == 0:
                    regs = vA if p == 0 else vS
                    dma.append(("v", f"v_accvgpr_read_b32 v{regs[2]}, a{st('Dm' if p == 0 else 'D')}"))
                    dma.append(("v", f"v_add_u32 v{regs[2]}, s{sCol[p]}, v{regs[2]}"))
                    dma += [("v", f"v_add_u32 v{regs[j]}, {2048-1024*j}, v{regs[2]}") for j in range(2)]
                elif i == 0: dma.append(("n", "s_nop 0"))
                tab = ((sKo, sKo2) if ks < 10 else (sKp, sKp2))[kk % 2]
                v = (vA if p == 0 else vS)[i]
                dma.append(("m", f"buffer_load_dwordx4 v{v}, s[{SD}:{SD+3}], s{tab[kk//2]} offen offset:{1024*i} lds"))
            for tau in range(2 if p == 0 else 4):
                f = (1024*u + 512*(tau//2) + 32*(tau%2), BACC[p] + 8*tau, Hop(ks, 0), Hop(ks, 1), ks == 0, ("B", p, ks, tau))
                if p == 4 and tau >= 2: last_fr[1].append((k,) + f)
                else: fr.append(f)
        stages[k] = dict(dma=dma, fr=fr)
    KEND = KB0 + nBst

    def emit_dma(k):
        for it in stages[k]["dma"]: emit_dma_item(k, it)

    fill = deque(); fill2 = deque(); fill3 = deque(); dmaq = deque(); extq = []; spin_blocks = []; pubs = []; toks = {}
    hooks = {}; ihooks = {}
    def emit_fill(it):
        kind, txt = it[1], it[2]
        if kind == "m": return a.vm(txt)
        if kind == "d": return a.ds(txt)
        if kind == "f": return txt()
        a.i(txt)
    def F(nb, kind, txt, sets=(), space=0): fill.append((nb, kind, txt, list(sets), space))
    def Fm(nb, name, txt, sets=(), space=0):
        def fn(): toks[name] = a.vm(txt)
        fill.append((nb, "f", fn, list(sets), space))
    def defer(L, accset):
        i = 0
        while i < len(L):
            g = [L[i]]; i += 1
            if g[0].startswith("s_cmp") or (i < len(L) and L[i].startswith("?")): g.append(L[i]); i += 1
            fill3.append((g, accset))
    def emit3(drain=False):
        g, _ = fill3.popleft()
        for t in g:
            if t.startswith("?"):
                if drain: a.i(t[1:])
            else: a.i(t)
    def G(nb, kind, txt, space=0): fill2.append((nb, kind, txt, [], space))
    def Gm(nb, name, txt, space=0):
        def fn(): toks[name] = a.vm(txt)
        fill2.append((nb, "f", fn, [], space))
    def poll_check(name, va, vf, soff="0", offs=0):
        a.wait(vm=toks[name])
        a.i(f"v_cmp_ne_u32 vcc, s{sTag}, v{vf}")
        a.i("s_nop 0")
        a.i("s_cmp_lg_u64 vcc, 0")
        a.i(f"s_cbranch_scc1 L_spin_{name}")
        a.label(f"L_back_{name}")
        spin_blocks.append((name, va, vf, soff, offs))
    def stream(frs, dma_after, flush=True, gap=gap, tailnop=True):
        N = len(frs); first_of = {}
        for i, f in enumerate(frs): first_of.setdefault(f[0], i)
        rd = {}; nextbar = [0]; hold_until = [0]; lastd = [-100]; gpf = 3 if len(frs[0]) > 7 else 2
        def rd_half(i, hf):
            k, off = frs[i][0], frs[i][1]
            o = slot_of(k) * SLOT + off; base = vRd[o // (2*SLOT)]; oo = o % (2*SLOT)
            fb = FR + 4*(i % NB) + 2*hf
            rd[i] = a.ds(f"ds_read_b64_tr_b16 a[{fb}:{fb+1}], v{base} offset:{oo + 256*hf}")
        def pre_read(i, cur):
            k = frs[i][0]
            if first_of[k] == i:
                nfl = 0
                while any(kk == k for kk, _ in dmaq):
                    kk, it = dmaq.popleft(); emit_dma_item(kk, it); nfl += 1
                if nfl: print("late flush", nfl, "at", k, file=sys.stderr)
                tr.stage = k; tr(f"w{k}")
                a.wait(vm=dma_tok[k])
                a.i("s_barrier")
                tr(f"b{k}")
                for p in list(pubs):
                    if p[3] and toks.get(p[0]) is not None and toks[p[0]] <= a.vm_done:
                        p[1](); pubs.remove(p); print("pub", p[0], "at barrier", k, file=sys.stderr)
                for kk in dma_after(k):
                    for it in stages[kk]["dma"]: dmaq.append((kk, it))
                if k in hooks: hooks[k](cur)
                nextbar[0] = first_of.get(k + 1, N + D) - D
                return True
            return False
        for i in range(min(D, N)):
            pre_read(i, 0); rd_half(i, 0); rd_half(i, 1)
        a.wait(lg=rd[1])
        gi = 0; lastm = -100
        def other(i):
            nonlocal lastm
            for p in list(pubs):
                if not p[3] and toks.get(p[0]) is not None:
                    if toks[p[0]] <= a.vm_done or (p[2][0] is not None and i >= p[2][0]):
                        print("pub", p[0], "at frag", i, "stage", frs[i][0], "forced" if toks[p[0]] > a.vm_done else "", file=sys.stderr); a.wait(vm=toks[p[0]]); p[1](); pubs.remove(p); return
                    if p[2][0] is None: p[2][0] = i + p[2][1]
            if dmaq:
                kk, it = dmaq[0]
                ok = True
                if it[0] == "n":
                    dmaq.popleft(); kk, it = dmaq[0]
                if it[0] == "h":
                    dmaq.popleft(); hold_until[0] = gi + it[1]; ok = False
                elif it[0] == "m":
                    if kk == "z": ok = gi - lastm >= 2
                    else:
                        g_eff = gap; urgent = False; cnt = 0
                        for k2, it2 in dmaq:
                            if it2[0] != "m": continue
                            cnt += 1
                            if k2 in first_of:
                                dl = gpf * (first_of[k2] - D) - lead
                                if gi + cnt * gap > dl: g_eff = min(g_eff, max(2, (dl - gi) // cnt)); urgent = True
                        ok = gi - lastd[0] >= g_eff and gi - lastm >= 2 and (gi >= hold_until[0] or urgent)
                if ok:
                    dmaq.popleft(); emit_dma_item(kk, it)
                    if isinstance(it[1], str) and it[1].startswith("s_cmp"):
                        kk, it = dmaq.popleft(); emit_dma_item(kk, it)
                    if it[0] == "m": lastm = gi; lastd[0] = gi
                    return
            for q_ in (fill, fill2):
                if q_ and q_[0][0] <= i and (q_[0][4] == 0 or gi - lastm >= q_[0][4]):
                    it = q_.popleft(); emit_fill(it)
                    if it[4]: lastm = gi
                    return
            if fill3: emit3()
        for i in range(N):
            k, off, acc, b0, b1, first, tag = frs[i][:7]
            if first_of[k] == i: astamp_stage(k)
            if trace == (200, 201) and 24 <= k < 33 and i % 8 == 6: tr.stage = 200; tr(f"a{k}"); tr.stage = k
            if trace == (100, 101) and k >= 36 and i % 8 == 2: tr.stage = 100; tr(f"f{i}"); tr.stage = k
            if i in ihooks: ihooks.pop(i)(i)
            if tag in ihooks: ihooks.pop(tag)(i)
            while extq: dmaq.append(extq.pop(0))
            assert rd[i] <= a.lg_done
            fb = FR + 4*(i % NB)
            if first_of[k] + 1 == i and ("S", k) in ihooks: ihooks.pop(("S", k))(i)
            if first:
                nd = 0
                while any(any((x <= acc < x + 32) if isinstance(x, int) else (x[0] <= acc < x[1]) for x in it[3]) for it in fill):
                    emit_fill(fill.popleft()); nd += 1
                while any(x <= acc < x + 32 for _, x in fill3):
                    emit3(True); nd += 1
                if nd: print("drained", nd, "at stage", k, file=sys.stderr); a.i("s_nop 1")
            for t, b in enumerate((b0, b1)):
                d = f"v[{acc+4*t}:{acc+4*t+3}]"
                a.i(f"{MF} {d}, a[{fb}:{fb+3}], {b}, {'0' if first else d}")
                used = False
                if i + D < N:
                    if t == 0: used = pre_read(i + D, i)
                    rd_half(i + D, t)
                if t == 1 and i + 1 < N and rd[i+1] > a.lg_done:
                    a.wait(lg=rd[min(i+wev, N-1)]); used = True
                if not used: other(i)
                gi += 1
            if len(frs[i]) > 7:
                d = f"v[{frs[i][7]}:{frs[i][7]+3}]"
                a.i(f"{MF} {d}, a[{fb}:{fb+3}], a[{ONES}:{ONES+3}], {'0' if first else d}")
                other(i); other(i); gi += 1
            if tag in bpost: bpost[tag](i + 3)
            if (i + 1 == N or frs[i+1][0] != k) and k in post: do_post(post.pop(k), i + 3)
        while dmaq:
            kk, it = dmaq.popleft(); emit_dma_item(kk, it)
        if tailnop or fill: a.i("s_nop 7")
        while fill: emit_fill(fill.popleft())
        while fill2: emit_fill(fill2.popleft())
        if fill3: print("fill3 left", len(fill3), file=sys.stderr)
        while fill3: emit3(True)
    def astamp_stage(k):
        if k == 6: astamp("P:qend")
        if 6 <= k < 33 and k % 3 == 0: astamp(f"A:{k}")
        if k < 6: astamp(f"Q:{k}")
        if k >= 36 and k % 2 == 0: astamp(f"B:{k}")
    def pack4(nb, d, e, sets):
        F(nb, "v", f"v_cvt_pk_bf16_f32 v{d}, v{d}, v{d+1}", sets); F(nb, "v", f"v_cvt_pk_bf16_f32 v{d+1}, v{d+2}, v{d+3}", sets)
        F(nb, "v", f"v_cvt_pk_bf16_f32 v{d+2}, v{e}, v{e+1}", sets); F(nb, "v", f"v_cvt_pk_bf16_f32 v{d+3}, v{e+2}, v{e+3}", sets)
    def flag_store(voff_txts, soff, offs=0):
        for t in voff_txts: a.i(t)
        a.i(f"v_mov_b32 v{q1}, s{sTag}")
        a.vm(f"buffer_store_dword v{q1}, v{q0}, {WS}, {soff} offen offset:{offs} sc1")
    def do_post(p, nb):
        if p[0] == "g" or (p[0] == "h" and len(p[2]) == 1):
            g = p[2] if p[0] == "g" else p[2][0][0]
            for tau in range(p[3] if p[0] == "g" else 2):
                for t in range(2):
                    for r in range(4): F(nb, "v", f"v_mul_f32 v{g+8*tau+4*t+r}, v{RS2[t]}, v{g+8*tau+4*t+r}", p[1])
        if p[0] == "h":
            sets = p[1]
            for (g, u_, ks) in p[2]:
                F(nb, "s", f"s_add_u32 s{sPst}, s{sHst}, {2048*ks}", sets)
                for t in range(2):
                    for c in range(2):
                        for r in range(4):
                            o = 8*c + 4*t + r
                            F(nb, "v", f"v_mul_f32 v{g+o}, v{g+o}, v{u_+o}", sets)
                    pack4(nb, g + 4*t, g + 8 + 4*t, sets)
                    for r in range(4):
                        F(nb, "v", f"v_accvgpr_write_b32 a{H+8*ks+4*t+r}, v{g+4*t+r}", sets)
                    Fm(nb, "h1st" if (ks, t) == (3, 1) else "hst", f"buffer_store_dwordx4 v[{g+4*t}:{g+4*t+3}], v{vL16}, {WS}, s{sPst} offen offset:{1024*t} sc1", sets, 3)
            if p[2][-1][2] == 3:
                pubs.append(("h1st", lambda: flag_store([f"v_accvgpr_read_b32 v{q0}, a{st('hfo')}"], "0", 8), [None, 110], False))
        elif p[0] == "q":
            sets = p[1]
            F(nb, "v", f"v_accvgpr_read_b32 v{q0}, a{st('stq')}", sets)
            for tau in range(7):
                sets = [ACC[tau // 4]]
                if tau == 6: F(nb, "v", f"v_accvgpr_read_b32 v{q0}, a{st('stq2')}", sets)
                F(nb, "s", f"s_add_u32 s{sPst}, s{sQst}, {4096*tau}", sets)
                for t in range(2):
                    b = QACC + 8*tau + 4*t
                    for r in range(4): F(nb, "v", f"v_mul_f32 v{b+r}, v{QSC[t]}, v{b+r}", sets)
                    F(nb, "v", f"v_cvt_pk_bf16_f32 v{b}, v{b}, v{b+1}", sets); F(nb, "v", f"v_cvt_pk_bf16_f32 v{b+1}, v{b+2}, v{b+3}", sets)
                    Fm(nb, "qdone" if (tau, t) == (6, 1) else "qst", f"buffer_store_dwordx2 v[{b}:{b+1}], v{q0}, {WS}, s{sPst} offen offset:{128*t} sc1", sets, 3)
            def pubq():
                a.i(f"s_lshl_b32 s{sT0}, s{sR}, 4"); a.i(f"s_add_u32 s{sT0}, s{sT0}, s{sS}")
                a.i(f"s_lshl_b32 s{sT0}, s{sT0}, 7"); a.i(f"s_add_u32 s{sT0}, s{sT0}, {QF_BASE}")
                flag_store([f"v_mov_b32 v{q0}, 0"], f"s{sT0}")
            pubs.append(("qdone", pubq, [None, 0], True))

    def hook7(cur): toks["tag"] = a.vm(f"buffer_load_dword v207, off, s[{SDBG}:{SDBG+3}], 0 sc1")
    hooks[7] = hook7
    def hook10(cur):
        a.wait(vm=toks["tag"])
        a.label("L_tagchk")
        a.i(f"v_readfirstlane_b32 s{sTag}, v207")
        a.i("s_nop 0")
        a.i(f"s_cmp_eq_u32 s{sTag}, 0")
        a.i("s_cbranch_scc1 L_tagspin")
        a.label("L_tagok")
    hooks[10] = hook10
    DUM = f"a[{HP+76}:{HP+79}]"
    nw = 8 << lg_rpx
    def wid_code():
        return [("s", f"s_and_b32 s{sT3}, s{sR}, {(1 << lg_rpx) - 1}"), ("s", f"s_lshl_b32 s{sT3}, s{sT3}, 1"),
                ("s", f"s_and_b32 s{sT1}, s{sS}, 1"), ("s", f"s_add_u32 s{sT3}, s{sT3}, s{sT1}"),
                ("s", f"s_lshl_b32 s{sT3}, s{sT3}, 2"), ("s", f"s_add_u32 s{sT3}, s{sT3}, s{sW}")]
    def pf1_items():
        L = wid_code()
        L += [("v", f"v_accvgpr_read_b32 v{q2}, a{st('pt')}"), ("m", f"buffer_load_dword a{HP+75}, v{q2}, {WS}, 0 offen sc1")]
        if gupf is True: return L
        per = (18 * 4 + nw - 1) // nw
        L += [("s", f"s_lshr_b32 s{sT0}, s{sT3}, 2"), ("s", f"s_and_b32 s{sT1}, s{sSing}, 0xffffff80")]
        for j in range(per):
            L += [("s", f"s_add_u32 s{sT2}, s{sT0}, {j * (nw // 4)}"), ("s", f"s_mul_i32 s{sT2}, s{sT2}, {32*9216}"),
                  ("s", f"s_add_u32 s{sT2}, s{sT2}, s{sT1}"),
                  ("m", f"buffer_load_dwordx4 {DUM}, v{vA[0]}, s[{SG}:{SG+3}], s{sT2} offen"),
                  ("m", f"buffer_load_dwordx4 {DUM}, v{vA[0]}, s[{SU}:{SU+3}], s{sT2} offen")]
        return L
    def xr_items(q0=q0, q1=q1, q2=q2):
        L = [("v", f"v_bfe_u32 v{q1}, v{vL16}, 4, 4"), ("v", f"v_mul_u32_u24 v{q1}, 1152, v{q1}"), ("v", f"v_lshrrev_b32 v{q0}, 8, v{vL16}"),
             ("v", f"v_lshl_add_u32 v{q2}, v{q0}, 3, v{q1}"),
             ("s", f"s_and_b32 s{sT2}, s{sS}, 1"), ("s", f"s_mul_i32 s{sT0}, s{sT2}, 640"), ("s", f"s_lshl_b32 s{sT1}, s{sI}, 6"),
             ("s", f"s_add_u32 s{sT0}, s{sT0}, s{sT1}"), ("s", f"s_add_u32 s{sT0}, s{sT0}, s{sXrow}")]
        for t in range(2):
            if t: L.append(("s", f"s_add_u32 s{sT0}, s{sT0}, {16*1152}"))
            for c in range(2):
                L.append(("m", f"buffer_load_dwordx2 a[{XR+4*t+2*c}:{XR+4*t+2*c+1}], v{q2}, s[{SX}:{SX+3}], s{sT0} offen offset:{32*c}"))
        L += [("v", f"v_and_b32 v{q0}, 1, v{q0}"), ("v", f"v_lshl_add_u32 v{q2}, v{q0}, 5, v{q1}"),
              ("s", f"s_lshr_b32 s{sT0}, s{sI}, 2"), ("s", f"s_mul_i32 s{sT0}, s{sT0}, {16*1152}"), ("s", f"s_and_b32 s{sT1}, s{sI}, 3"),
              ("s", f"s_lshl_b32 s{sT1}, s{sT1}, 3"), ("s", f"s_add_u32 s{sT0}, s{sT0}, s{sT1}"), ("s", f"s_lshl_b32 s{sT2}, s{sT2}, 6"),
              ("s", f"s_add_u32 s{sT0}, s{sT0}, s{sT2}"), ("s", f"s_add_u32 s{sT0}, s{sT0}, s{sXrow}"),
              ("m", f"buffer_load_dwordx2 a[{XR+8}:{XR+9}], v{q2}, s[{SX}:{SX+3}], s{sT0} offen offset:512")]
        return L
    def gu_items():
        assert lg_rpx == 4
        L = [("s", f"s_and_b32 s{sT1}, s{sS}, 1"), ("s", f"s_mul_i32 s{sT2}, s{sI}, 1152"),
             ("s", f"s_mul_i32 s{sT0}, s{sR}, {32*9216}"), ("s", f"s_add_u32 s{sT0}, s{sT0}, s{sT2}"),
             ("s", f"s_lshl_b32 s{sT3}, s{sT1}, 7"), ("s", f"s_add_u32 s{sT0}, s{sT0}, s{sT3}")]
        for j in range(5):
            for sr in ((SU,) if gupf == 'U' else (SG, SU)):
                L.append(("m", f"buffer_load_dwordx4 {DUM}, v{vA[0]}, s[{sr}:{sr+3}], s{sT0} offen offset:{256*j}"))
        L += [("s", f"s_add_u32 s{sT1}, s{sT1}, 16"), ("s", f"s_mul_i32 s{sT1}, s{sT1}, {32*9216}"), ("s", f"s_add_u32 s{sT1}, s{sT1}, s{sT2}"),
              ("s", f"s_min_u32 s{sT3}, s{sR}, 8"), ("s", f"s_lshl_b32 s{sT3}, s{sT3}, 7"), ("s", f"s_add_u32 s{sT1}, s{sT1}, s{sT3}")]
        for sr in ((SU,) if gupf == 'U' else (SG, SU)):
            L.append(("m", f"buffer_load_dwordx4 {DUM}, v{vA[0]}, s[{sr}:{sr+3}], s{sT1} offen"))
        return L
    def pf2_items():
        L = []
        for j in range((81 + nw - 1) // nw):
            L += [("s", f"s_add_u32 s{sT2}, s{sT3}, {j * nw + 2}"), ("s", f"s_min_u32 s{sT2}, s{sT2}, 82"),
                  ("s", f"s_lshl_b32 s{sT2}, s{sT2}, 10"), ("s", f"s_mul_i32 s{sT1}, s{sI}, {72*1152}"), ("s", f"s_add_u32 s{sT2}, s{sT2}, s{sT1}"),
                  ("m", f"buffer_load_dwordx4 {DUM}, v{vL16}, s[{SO}:{SO+3}], s{sT2} offen")]
        per_wave = 576 * 1152 // nw
        L += [("s", f"s_mul_i32 s{sT0}, s{sT3}, {per_wave}"), ("s", f"s_mul_i32 s{sT1}, s{sI}, {576*1152}"),
              ("s", f"s_add_u32 s{sT0}, s{sT0}, s{sT1}"), ("s", f"s_add_u32 s{sT0}, s{sT0}, 2048")]
        for j in range((per_wave + 1023) // 1024):
            if j % 4 == 0 and j: L.append(("s", f"s_add_u32 s{sT0}, s{sT0}, 4096"))
            L.append(("m", f"buffer_load_dwordx4 {DUM}, v{vL16}, s[{SD}:{SD+3}], s{sT0} offen offset:{1024*(j%4)}"))
        return L
    def hook_poll_issue(cur):
        assert not any(kk == "z" and it[0] != "h" for kk, it in dmaq)
        a.i(f"v_accvgpr_read_b32 v{q0}, a{st('qf')}")
        toks["kv"] = a.vm(f"buffer_load_dword v{q1}, v{q0}, {WS}, 0 offen sc1")
    def hook_poll_check(cur):
        poll_check("kv", q0, q1)
        for hd, nm in enumerate(("qA", "qB")):
            G(cur, "v", f"v_accvgpr_read_b32 v{q2}, a{st(nm)}")
            for t in range(2):
                for hf in range(2):
                    d = aQ + 8*hd + 4*t + 2*hf
                    Gm(cur, "qld", f"buffer_load_dwordx2 a[{d}:{d+1}], v{q2}, {WS}, s{sQld} offen offset:{128*t + 1024*hf} sc1", 3)
    hooks[19] = hook_poll_issue
    hooks[21] = hook_poll_check
    def h1_issue(cur):
        assert not any(p[0] == "h1st" for p in pubs) and not fill2
        a.i(f"v_accvgpr_read_b32 v{q0}, a{st('hfp')}")
        toks["h1"] = a.vm(f"buffer_load_dword v{q1}, v{q0}, {WS}, 0 offen offset:8 sc1")
    def h1_check(cur):
        poll_check("h1", q0, q1, "0", 8)
        for ks in range(4):
            for t in range(2):
                o = 2048*ks + 1024*t; d = HP + 8*ks + 4*t
                if o % 4096 == 0: G(cur, "s", f"s_add_u32 s{sT3}, s{sHld}, {o}")
                G(cur, "m", f"buffer_load_dwordx4 a[{d}:{d+3}], v{vL16}, {WS}, s{sT3} offen offset:{o % 4096} sc1", 5)
    hooks[26] = h1_issue
    hooks[28] = h1_check
    def hook_pf(cur):
        assert not any(p[0] == "qdone" for p in pubs)
        L = [("z", it) for it in pf1_items() + pf2_items() + (xr_items() if xrat == 'A' else [])] + [("z", ("h", hold))]
        for it in reversed(L): dmaq.appendleft(it)
    hooks[pfk] = hook_pf
    def kv_dma(cur, mat):
        base = TBASE + mat*10*GS; go = mat*144*1024
        L = []
        L.append(("s", f"s_mul_i32 s{sT2}, s{sW}, {GS}"))
        L.append(("s", f"s_add_u32 m0, s{sT2}, {base}"))
        for r2 in range(3):
            L.append(("s", f"s_add_u32 s{sT0}, s{sKV[r2]}, {go}"))
            L.append(("m", f"buffer_load_dwordx4 v{vL16}, {WS}, s{sT0} offen offset:{1024*r2} sc1 lds"))
        L.append(("s", f"s_min_u32 s{sT1}, s{sT2}, {GS}"))
        L.append(("s", f"s_add_u32 s{sT1}, s{sT1}, s{sT2}"))
        L.append(("s", f"s_add_u32 m0, s{sT1}, {base + 4*GS}"))
        for r2 in range(3):
            L.append(("s", f"s_add_u32 s{sT0}, s{sKV[r2]}, {go + 4096}"))
            L.append(("m", f"buffer_load_dwordx4 v{vL16}, {WS}, s{sT0} offen offset:{1024*r2} sc1 lds"))
        L.append(("s", f"s_cmp_eq_u32 s{sW}, 1")); L.append(("s", f"s_cselect_b32 s{sT0}, s{sKV[1]}, s{sKV[2]}"))
        L.append(("s", f"s_cmp_eq_u32 s{sW}, 0")); L.append(("s", f"s_cselect_b32 s{sT0}, s{sKV[0]}, s{sT0}"))
        L.append(("s", f"s_min_u32 s{sT1}, s{sW}, 2")); L.append(("s", f"s_sub_u32 s{sT2}, s{sT1}, s{sW}"))
        L.append(("s", f"s_lshl_b32 s{sT2}, s{sT2}, 10")); L.append(("s", f"s_add_u32 s{sT0}, s{sT0}, s{sT2}"))
        L.append(("s", f"s_lshl_b32 s{sT1}, s{sT1}, 10"))
        L.append(("s", f"s_add_u32 m0, s{sT1}, {base + 9*GS}"))
        L.append(("s", f"s_add_u32 s{sT0}, s{sT0}, {go + 8192}"))
        L.append(("m", f"buffer_load_dwordx4 v{vL16}, {WS}, s{sT0} offen sc1 lds"))
        L.append(("v", f"v_add_u32 v{q2}, s{sT1}, v{vL16}"))
        d = KVS + 4*mat
        if mat == 0:
            L.append(("s", f"s_cmp_ge_u32 s{sT0}, {OOB}")); L.append(("s", f"s_cselect_b32 s{sT0}, 0xf149, 0"))
            L += [("v", f"v_accvgpr_write_b32 a{d}, s{sT0}"), ("v", f"v_accvgpr_write_b32 a{d+1}, 0"),
                  ("v", f"v_accvgpr_write_b32 a{d+2}, s{sT0}"), ("v", f"v_accvgpr_write_b32 a{d+3}, 0")]
        else:
            L += [("v", f"v_accvgpr_write_b32 a{d+r}, s{sC0}") for r in range(4)]
        L.append(("v", f"v_add_u32 v{q2}, {base + 5*GS}, v{q2}"))
        L.append(("d", f"ds_write_b128 v{q2}, a[{d}:{d+3}]"))
        return L
    stages[34] = dict(dma=kv_dma(0, 0), fr=[]); stages[35] = dict(dma=kv_dma(0, 1), fr=[])
    assert nraw == 0
    a.i(f"s_mov_b32 s{sC0}, 0x3f803f80"); a.i(f"s_mov_b32 s{sC1}, 0x3f80")
    RS2 = [vT0, vT1]; QSC = [q1, q2]
    SA = [234, 235, 236, 237]
    PR = [230, 238]; u = [160, 161]; TP = [164 + 2*i for i in range(4)]
    nx = [x0]; xrd = {}
    def xnext():
        if nx[0] < 18:
            if nx[0] >= NXU:
                if (nx[0] - NXU) not in xrd: return
                a.wait(lg=xrd[nx[0] - NXU])
            xdma(nx[0]); nx[0] += 1
    NHOP = 4
    def hop(h):
        def fn():
            if not iwarm: return
            a.i("s_mov_b64 exec, 0")
            for w in range(3):
                a.i(f"s_cmp_eq_u32 s{sW}, {w}"); a.i(f"s_cbranch_scc1 L_w{4*h+w}")
            a.i(f"s_branch L_w{4*h+3}")
            a.label(f"L_wret{h}")
            a.i("s_mov_b64 exec, -1")
        return fn
    def xread(n):
        t, ch = n // 9, n % 9
        while nx[0] <= n: xnext()
        tr(f"x{n}")
        a.wait(vm=dma_tok[("x", n)])
        tr(f"y{n}")
        for Sb in range(2):
            xrd[n] = a.ds(f"ds_read_b128 {X(2*ch + Sb, t)}, v{vXr[Sb]} offset:{2048*(n % NXU)}")
    def stats(n):
        t, ch = n // 9, n % 9
        a.wait(lg=xrd[n])
        for Sb in range(2):
            for i in range(4):
                x = XN + 8*(2*ch + Sb) + 4*t + i
                c1 = "0" if (ch == 0 and Sb == 0 and i < 2) else f"v{SA[i%2]}"
                c2 = "0" if (ch == 0 and Sb == 0 and i < 2) else f"v{SA[2+i%2]}"
                a.i(f"v_dot2_f32_bf16 v{SA[i%2]}, v{x}, s{sC0}, {c1}")
                a.i(f"v_dot2_f32_bf16 v{SA[2+i%2]}, v{x}, v{x}, {c2}")
    inv = 1.0/576.0
    def finstats(t):
        m, q = SA[0], SA[2]; rs, nm = PR[t], PR[t] + 1
        a.i("s_nop 2")
        a.i(f"v_add_f32 v{m}, v{m}, v{SA[1]}"); a.i(f"v_add_f32 v{q}, v{q}, v{SA[3]}")
        for sw in ("v_permlane32_swap_b32", "v_permlane16_swap_b32"):
            a.i(f"v_mov_b32 v{u[0]}, v{m}"); a.i(f"v_mov_b32 v{u[1]}, v{q}")
            a.i("s_nop 1")
            a.i(f"{sw} v{m}, v{u[0]}"); a.i(f"{sw} v{q}, v{u[1]}")
            a.i("s_nop 0")
            a.i(f"v_add_f32 v{m}, v{m}, v{u[0]}"); a.i(f"v_add_f32 v{q}, v{q}, v{u[1]}")
        def rb(r): a.i(f"v_cvt_pk_bf16_f32 v{r}, v{r}, v{r}"); a.i(f"v_lshlrev_b32 v{r}, 16, v{r}")
        a.i(f"v_mul_f32 v{m}, {f2u(inv)}, v{m}"); a.i(f"v_mul_f32 v{q}, {f2u(inv)}, v{q}")
        a.i(f"v_fma_f32 v{q}, -v{m}, v{m}, v{q}"); a.i(f"v_max_f32 v{q}, 0, v{q}")
        rb(q); a.i(f"v_add_f32 v{q}, {f2u(1e-5)}, v{q}"); rb(q)
        a.i(f"v_sqrt_f32 v{q}, v{q}"); rb(m); rb(q)
        a.i(f"v_rcp_f32 v{rs}, v{q}"); a.i(f"v_sub_f32 v{nm}, 0, v{m}")
        a.i(f"v_mul_f32 v{RS2[t]}, v{rs}, v{rs}"); a.i(f"v_mul_f32 v{QSC[t]}, {f2u(QG)}, v{rs}")
    def norm(S, t):
        for i in range(4):
            x = XN + 8*S + 4*t + i; tp = TP[i]
            a.i(f"v_dot2_f32_bf16 v{tp}, v{x}, s{sC1}, v{PR[t]+1}"); a.i(f"v_dot2_f32_bf16 v{tp+1}, v{x}, s{sHi}, v{PR[t]+1}")
        for i in range(4):
            x = XN + 8*S + 4*t + i; tp = TP[i]
            if i == 2: pass
            a.i(f"v_cvt_pk_bf16_f32 v{x}, v{tp}, v{tp+1}")
    sHi = 47
    a.i(f"s_mov_b32 s{sHi}, 0x3f800000")
    tr.stage = -1
    if trace and trace[0] < 0: a.i("s_mov_b32 s48, s53")
    su_early()
    if trace and trace[0] < 0:
        a.i("s_waitcnt lgkmcnt(0)"); a.i(f"v_writelane_b32 v{vLane}, s48, 0"); a.i(f"v_writelane_b32 v{vLane}, s54, 1"); trl.extend(["entry", "karg"])
    work = {hopat[h]: hop(h) for h in range(NHOP)}
    for n in range(9):
        if n in work: work.pop(n)()
        xread(n)
        xnext()
        if n < xfast: xnext()
        if n: stats(n - 1)
    pre = list(range(lnpre))
    vq_ = deque([(kk, it) for kk in pre for it in stages[kk]["dma"]] + ([("z", it) for it in gu_items()] if gupf else []))
    if gupf: dmaq.append(("z", ("h", hold0)))
    def vside():
        while vq_:
            kk, it = vq_.popleft(); emit_dma_item(kk, it)
            if it[0] == "m": break
    su_cas()
    stats(8); finstats(0)
    for n in range(9, 18):
        if n in work: work.pop(n)()
        xread(n)
        xnext()
        if n >= w0at: vside(); vside()
        norm(2*(n-9), 0); norm(2*(n-9)+1, 0)
        stats(n)
    assert not work
    astamp("P:stats")
    finstats(1)
    for S in range(18):
        norm(S, 1)
        if vq_ and (vq_[0][0] != "z" or S >= gu_at): vside()
    while vq_: vside()
    astamp("P:ln")
    if nraw == 6: do_post(("q", [ACC[0], ACC[1]]), 0)
    else: post[5] = ("q", [ACC[0], ACC[1]])
    defer(d_q(208) + d_h(208) + d_B(208), 208)
    def addhook(k, fn):
        old = hooks.get(k)
        hooks[k] = (lambda cur: (old(cur), fn(cur))) if old else fn
    def at_stage(k, L, accset):
        def f(i):
            assert not fill or True
            defer(L, accset)
        ihooks[("S", k)] = f
    at_stage(9, d_flags(200), ACC[1])
    at_stage(12, d_rows(0), -100)
    at_stage(15, d_T1(ACC[0]), ACC[0])
    at_stage(21, d_T2(ACC[2]), ACC[2])
    at_stage(24, d_col(0), -100)
    QO = 0; MFi = 16; MLa = 20; aKA, aKB, aV0, aV1 = 24, 25, 26, 27; w0, w1, w2, w3 = 28, 29, 30, 31
    def d_Tsetup():
        L = [f"v_accvgpr_read_b32 v{r}, a{st(nm)}" for nm, r in (("KA", aKA), ("KB", aKB), ("V0", aV0), ("V1", aV1))]
        for r in range(4): L += [f"v_accvgpr_read_b32 v{MFi+r}, a{st('mf')+r}", f"v_accvgpr_read_b32 v{MLa+r}, a{st('ml')+r}"]
        L += [f"v_lshrrev_b32 v{w0}, 8, v{vL16}", f"v_add_u32 v{w1}, -2, v{w0}", f"v_ashrrev_i32 v{w1}, 31, v{w1}",
              f"v_add_u32 v{w2}, -3, v{w0}", f"v_ashrrev_i32 v{w2}, 31, v{w2}", f"v_xor_b32 v{w3}, v{w1}, v{w2}", f"v_and_b32 v{w3}, 0x3f80, v{w3}"]
        for hd in range(2):
            for t in range(2):
                b = QO + 8*hd + 4*t
                L += [f"v_accvgpr_read_b32 v{b+r}, a{aQ+8*hd+4*t+r}" for r in range(4)]
                L += [f"v_and_b32 v{b}, v{w1 if hd else w2}, v{b}", f"v_and_b32 v{b+1}, v{w2 if hd else w1}, v{b+1}",
                      f"v_and_or_b32 v{b+2}, v{b+2}, v{w1}, v{w3}", f"v_and_b32 v{b+3}, v{w1}, v{b+3}"]
        return L
    def f31(i):
        assert not fill3
        assert toks["qld"] <= a.vm_done
        defer(d_Tsetup(), -100)
    ihooks[("S", 31)] = f31
    todo = [kk for kk in range(nraw, 33) if kk not in dma_tok]
    def dma_after_A(k):
        out = []
        while todo and todo[0] <= k + 4:
            kk = todo[0]
            prev = [x for x in range(nraw, kk) if slot_of(x) == slot_of(kk)]
            if prev and max(prev) > k - 2: break
            out.append(todo.pop(0))
        if k == kvat[0]: out.append(34)
        if k == kvat[1]: out.append(35)
        if k == 31: out.append(36)
        if k == 32: out.append(37)
        return out
    stream([(k,) + f for k in range(nraw, 33) for f in stages[k]["fr"]], dma_after_A)
    assert not todo
    astamp("P:aend"); astamp("A:end"); astamp("T:0")

    tr.stage = 200; tr("aend")
    a.wait(vm=max(dma_tok[34], dma_tok[35]), lg=a.lg_issued)
    a.i("s_barrier")
    SS = 32; OA = 208
    mx = [176, 178]; nmx = [180, 182]
    def Sr(t, kt): return SS + 72*t + 4*kt
    side = deque()
    def side_group(kk, items):
        cur = []
        for it in items:
            cur.append(it)
            if it[0] == "m":
                side.append(lambda kk=kk, cur=cur: [emit_dma_item(kk, x) for x in cur]); cur = []
        assert not cur
    side_group(38, stages[38]["dma"])
    if xrat == 'T': side_group("z", xr_items(196, 197, 198))
    side_group(39, stages[39]["dma"])
    fbn = [0]; NFB = [8]
    def nextfb():
        fb = FR + 4*(fbn[0] % NFB[0]); fbn[0] += 1; return fb
    def rd_k(hd, kt, lazy=None):
        fb = nextfb(); v = aKB if hd else aKA
        o = [f"ds_read_b64 a[{fb}:{fb+1}], v{v} offset:{128*kt}", f"ds_read_b64 a[{fb+2}:{fb+3}], v{v} offset:{128*kt + GS}"]
        if lazy is not None: lazy += o; return fb, None
        a.ds(o[0]); return fb, a.ds(o[1])
    def rd_v(hd, kap, tile, lazy):
        fb = nextfb(); v = aV1 if tile else aV0; o = 256*kap + (6*GS if (hd and not tile) else 0)
        lazy += [f"ds_read_b64_tr_b16 a[{fb}:{fb+1}], v{v} offset:{o}", f"ds_read_b64_tr_b16 a[{fb+2}:{fb+3}], v{v} offset:{o+128}"]
        return fb, None
    def qk_ops(hd, kt, fr):
        fb, tk = fr; o = []
        for t in range(2):
            j = kt - t
            if not 0 <= j <= 16: continue
            c = f"v[{MFi}:{MFi+3}]" if j == 0 else (f"v[{MLa}:{MLa+3}]" if j == 16 else "0")
            d = Sr(t, kt); b = QO + 8*hd + 4*t
            o.append((tk, f"{MF} v[{d}:{d+3}], a[{fb}:{fb+3}], v[{b}:{b+3}], {c}"))
        return o
    def max_ops(kt):
        o = []
        for t in range(2):
            j = kt - t
            if not 0 <= j <= 16: continue
            b = Sr(t, kt); m = mx[t]
            if j == 0:
                o.append(f"v_max_f32 v{m}, v{b}, v{b+1}"); o.append(f"v_max_f32 v{m+1}, v{b+2}, v{b+3}")
            else:
                o.append(f"v_max3_f32 v{m}, v{b}, v{b+1}, v{m}"); o.append(f"v_max3_f32 v{m+1}, v{b+2}, v{b+3}, v{m+1}")
        return o
    def finmax():
        for t in range(2): a.i(f"v_max_f32 v{mx[t]}, v{mx[t]}, v{mx[t]+1}")
        for sw in ("v_permlane32_swap_b32", "v_permlane16_swap_b32"):
            for t in range(2): a.i(f"v_mov_b32 v{mx[t]+1}, v{mx[t]}")
            a.i("s_nop 1")
            for t in range(2): a.i(f"{sw} v{mx[t]}, v{mx[t]+1}")
            a.i("s_nop 0")
            for t in range(2): a.i(f"v_max_f32 v{mx[t]}, v{mx[t]}, v{mx[t]+1}")
        for t in range(2): a.i(f"v_mul_f32 v{nmx[t]+1}, -1.0, v{mx[t]}")
    def exp_ops(kap):
        o1, o2, o3 = [], [], []
        for t in range(2):
            d = Sr(t, 2*kap)
            for hf in range(2):
                kt = 2*kap + hf; b = Sr(t, kt)
                if 0 <= kt - t <= 16:
                    for r in (0, 2): o1.append(f"v_pk_fma_f32 v[{b+r}:{b+r+1}], v[{b+r}:{b+r+1}], v[{nmx[t]}:{nmx[t]+1}], v[{nmx[t]}:{nmx[t]+1}] op_sel:[0,0,1] op_sel_hi:[1,0,1]")
                    for r in range(4): o2.append(f"v_exp_f32 v{b+r}, v{b+r}")
                    o3.append(f"v_cvt_pk_bf16_f32 v{d+2*hf}, v{b}, v{b+1}"); o3.append(f"v_cvt_pk_bf16_f32 v{d+2*hf+1}, v{b+2}, v{b+3}")
                else:
                    o3.append(f"v_mov_b32 v{d+2*hf}, 0"); o3.append(f"v_mov_b32 v{d+2*hf+1}, 0")
        return o1, o2 + o3
    def pv_ops(hd, kap, frs):
        o = []
        for tile in range(2):
            fb, tk = frs[tile]
            for t in range(2):
                d = OA + 16*hd + 8*t + 4*tile; b = Sr(t, 2*kap)
                o.append((tk, f"{MF} v[{d}:{d+3}], a[{fb}:{fb+3}], v[{b}:{b+3}], {'0' if kap == 0 else f'v[{d}:{d+3}]'}"))
        return o
    fbtok = {}
    def dsr(txt):
        tk = a.ds(txt); fbtok[int(re.search(r"a\[(\d+):", txt).group(1)) & ~3] = tk
    def merge(valu, mfs, lead=2, tailgap=1, reads=(), nside=3, lazywait=False):
        n = len(valu); m = len(mfs); pos = {}; reads = list(reads)
        if not lazywait: a.wait(lg=a.lg_issued)
        need = {txt: fbtok.get(int(re.search(r", a\[(\d+):", txt).group(1)), 0) for _, txt in mfs}
        order = [txt for _, txt in mfs]
        while len(reads) > m: dsr(reads.pop(0))
        for j in range(m): pos.setdefault(lead + (j * max(n - lead - tailgap, 1)) // max(m, 1), []).append(mfs[j])
        cnt = 0
        def one(txt):
            nonlocal cnt
            if lazywait and need[txt] > a.lg_done:
                j = order.index(txt); a.wait(lg=max(need[x] for x in order[j:j+4]))
            a.i(txt)
            if reads: dsr(reads.pop(0))
            cnt += 1
            if side and cnt % nside == 0: side.popleft()()
        for i, v in enumerate(valu):
            for (tk, txt) in pos.pop(i, []): one(txt)
            a.i(v)
        for kq in sorted(pos):
            for (tk, txt) in pos[kq]: one(txt)
    def slowT():
        for t in range(2): a.i(f"v_mov_b32 v{nmx[t]}, 1.0")
        for hd in range(2):
            kf = {}
            for kt in range(6): kf[kt] = rd_k(hd, kt)
            for kt in range(18):
                lz = []
                if kt + 6 < 18: fbx, _ = rd_k(hd, kt+6, lz)
                mo = max_ops(kt-3) if kt >= 3 else []
                for (tk, txt) in qk_ops(hd, kt, kf[kt]):
                    a.wait(lg=tk); a.i(txt)
                    if lz: tkx = a.ds(lz.pop(0))
                while lz: tkx = a.ds(lz.pop(0))
                if kt + 6 < 18: kf[kt+6] = (fbx, tkx)
                a.i("s_nop 1")
                for t in mo: a.i(t)
            a.i("s_nop 7")
            for kt in (15, 16, 17):
                for t in max_ops(kt): a.i(t)
            finmax()
            pend = []
            for kap in range(9):
                lz = []
                vf = [rd_v(hd, kap, 0, lz), rd_v(hd, kap, 1, lz)]
                o1, v = exp_ops(kap)
                for t in o1: a.i(t)
                merge(v, pend, lead=0, tailgap=5, reads=lz)
                pend = pv_ops(hd, kap, vf)
            a.i("s_nop 1")
            merge([], pend)
        a.i("s_nop 7")
    def hp_loads():
        for ks in range(4, 9):
            for t in range(2):
                def ld(ks=ks, t=t):
                    o = 2048*ks + 1024*t
                    if o % 4096 == 0: a.i(f"s_add_u32 s{sPst}, s{sHld}, {o}")
                    d = HP + 8*ks + 4*t
                    toks["hld"] = a.vm(f"buffer_load_dwordx4 a[{d}:{d+3}], v{vL16}, {WS}, s{sPst} offen offset:{o % 4096} sc1")
                side.append(ld)
    seq = [(hd, kap) for kap in range(9) for hd in range(2)]
    cur_n = [None]
    Sr_slow = Sr
    def Sr(t, kt):
        if cur_n[0] is None: return Sr_slow(t, kt)
        return SS + 16*(cur_n[0] % 3) + 8*t + 4*(kt % 2)
    def kreads(n, lz):
        hd, kap = seq[n]; return [rd_k(hd, 2*kap, lz), rd_k(hd, 2*kap+1, lz)]
    def qks(n, kf):
        hd, kap = seq[n]; cur_n[0] = n
        r = qk_ops(hd, 2*kap, kf[0]) + qk_ops(hd, 2*kap+1, kf[1]); cur_n[0] = None
        return r
    NFB[0] = 6; V1B = [FR + 24, FR + 28]
    lz = []; k0 = kreads(0, lz); nextfb(); nextfb(); k1 = kreads(1, lz)
    for t in lz: dsr(t)
    a.wait(lg=a.lg_issued - 4)
    for (_, txt) in qks(0, k0): a.i(txt)
    a.i("s_nop 5")
    knext = k1; pv = []
    for n in range(18):
        hd, kap = seq[n]
        tr.stage = 200; tr(f"t{n}")
        mf = (qks(n+1, knext) if n + 1 < 18 else []) + pv
        lz = []; lz2 = []
        v0f = rd_v(hd, kap, 0, lz2)
        if hd == 0:
            v1f = (V1B[kap % 2], None)
            lz2 += [f"ds_read_b64_tr_b16 a[{v1f[0]}:{v1f[0]+1}], v{aV1} offset:{256*kap}", f"ds_read_b64_tr_b16 a[{v1f[0]+2}:{v1f[0]+3}], v{aV1} offset:{256*kap+128}"]
        if n + 2 < 18: knext = kreads(n + 2, lz)
        cur_n[0] = n
        _, v = exp_ops(kap)
        pvn = pv_ops(hd, kap, [v0f, v1f])
        cur_n[0] = None
        merge(v, mf, lead=0, tailgap=tg, reads=lz + lz2, nside=4, lazywait=True)
        pv = pvn
        if n == th[0]:
            a.wait(vm=toks["hst"])
            flag_store([f"v_accvgpr_read_b32 v{q0}, a{st('hfo')}"], "0", 0)
        if n == th[1]:
            a.i(f"v_accvgpr_read_b32 v{q0}, a{st('hfp')}")
            toks["hp"] = a.vm(f"buffer_load_dword v{q1}, v{q0}, {WS}, 0 offen sc1")
        if n == th[2]:
            poll_check("hp", q0, q1); hp_loads()
    a.i("s_nop 1")
    merge([], pv)
    tr("tl")
    nleft = len(side)
    while side: side.popleft()()
    print("T side left", nleft, file=sys.stderr)
    a.i("s_nop 7")
    L = [0, 1, 2, 3] if False else [84, 85, 86, 87]; L2 = [88, 89, 90, 91]; BT = 92
    idx = [(hd, t) for hd in range(2) for t in range(2)]
    def getl():
        for n, (hd, t) in enumerate(idx):
            d = OA + 16*hd + 8*t + 4
            a.i(f"v_mov_b32 v{L[n]}, v{d}"); a.i(f"v_mov_b32 v{L2[n]}, v{d}")
        a.i("s_nop 1")
        for n in range(4): a.i(f"v_permlane16_swap_b32 v{L2[n]}, v{L[n]}")
        a.i("s_nop 0")
    getl()
    a.i(f"v_min3_f32 v{L2[0]}, v{L[0]}, v{L[1]}, v{L[2]}"); a.i(f"v_add_f32 v{L2[1]}, v{L[0]}, v{L[1]}"); a.i(f"v_add_f32 v{L2[2]}, v{L[2]}, v{L[3]}")
    a.i(f"v_min_f32 v{L2[0]}, v{L2[0]}, v{L[3]}"); a.i(f"v_add_f32 v{L2[1]}, v{L2[1]}, v{L2[2]}")
    a.i(f"v_cmp_nle_f32 vcc, {f2u(2.0**-40)}, v{L2[0]}")
    a.i(f"s_mov_b64 s[{sT1}:{sT1+1}], vcc")
    a.i(f"v_cmp_nge_f32 vcc, {f2u(2.0**40 if not forceslow else 0.0)}, v{L2[1]}")
    a.i("s_nop 0")
    a.i(f"s_or_b64 vcc, vcc, s[{sT1}:{sT1+1}]")
    a.i("s_cbranch_scc1 L_Tslow")
    a.label("L_Tnorm")
    main_lines = a.lines; a.lines = []
    assert a.lg_done == a.lg_issued
    NFB[0] = 8
    a.label("L_Tslow"); slowT(); getl(); a.i("s_branch L_Tnorm")
    assert a.lg_done == a.lg_issued
    slow_lines = a.lines; a.lines = main_lines
    E = []; osets = [OA]
    for n in range(4): E.append(f"v_mul_f32 v{L[n]}, {f2u(QG)}, v{L[n]}")
    for n in range(4): E.append(f"v_rcp_f32 v{L[n]}, v{L[n]}")
    E.append(f"v_add_u32 v{w1}, -1, v{w0}"); E.append(f"v_ashrrev_i32 v{w1}, 31, v{w1}")
    E.append(f"s_add_u32 s{sPst}, s{sHst}, {18*1024}")
    for t in range(2):
        for hd in range(2):
            d = OA + 16*hd + 8*t; n = 2*hd + t
            for r in list(range(4)) + ([6, 7] if hd else [4, 5]): E.append(f"v_mul_f32 v{d+r}, v{L[n]}, v{d+r}")
        d = OA + 8*t; e = OA + 16 + 8*t
        E += [f"v_cvt_pk_bf16_f32 v{BT+2*t}, v{d+4}, v{d+5}", f"v_cvt_pk_bf16_f32 v{BT+2*t+1}, v{e+6}, v{e+7}",
              f"v_cvt_pk_bf16_f32 v{d}, v{d}, v{d+1}", f"v_cvt_pk_bf16_f32 v{d+1}, v{d+2}, v{d+3}",
              f"v_cvt_pk_bf16_f32 v{d+2}, v{e}, v{e+1}", f"v_cvt_pk_bf16_f32 v{d+3}, v{e+2}, v{e+3}",
              f"v_and_b32 v{BT+2*t}, v{w1}, v{BT+2*t}", f"v_and_b32 v{BT+2*t+1}, v{w1}, v{BT+2*t+1}",
              f"buffer_store_dwordx4 v[{d}:{d+3}], v{vL16}, {WS}, s{sPst} offen offset:{1024*t} sc1"]
    E.append(f"buffer_store_dwordx4 v[{BT}:{BT+3}], v{vL16}, {WS}, s{sPst} offen offset:2048 sc1")
    for t in range(2):
        d = OA + 8*t
        E += [f"v_accvgpr_write_b32 a{H+72+4*t+r}, v{d+r}" for r in range(4)]
        E += [f"v_accvgpr_write_b32 a{HB+4*t}, v{BT+2*t}", f"v_accvgpr_write_b32 a{HB+4*t+1}, v{BT+2*t+1}"]
    for n_, t in enumerate(E):
        if n_ < oinl:
            if t.startswith("buffer"): toks["ost" if "2048" in t else "ostx"] = a.vm(t)
            else: a.i(t)
        elif t.startswith("buffer"): Fm(0, "ost" if "offset:2048" in t else "ostx", t, osets)
        else: F(0, "v", t, osets)
    def own_alpha(i):
        nd = 0
        while fill: emit_fill(fill.popleft()); nd += 1
        if nd: print("own alpha drain", nd, file=sys.stderr); a.i("s_nop 1")
    ihooks[("B", 1, 9, 0)] = own_alpha
    pubs.append(("ost", lambda: flag_store([f"v_accvgpr_read_b32 v{q0}, a{st('hfo')}"], "0", 4), [None, od], False))
    tr("tend")
    astamp("P:tend"); astamp("T:end")

    PL = 0
    SQ = 96
    def pstore(p, halves):
        def fn(nb):
            acc = BACC[p]; sets = [(acc, acc + 16*len(halves))]
            for hf in halves:
                if p == 0:
                    F(nb, "s", f"s_add_u32 s{sPst}, s{sHld}, {8*2048}", sets)
                else:
                    F(nb, "s", f"s_lshl_b32 s{sPst}, s{sCol[p]}, 5", sets); F(nb, "s", f"s_add_u32 s{sPst}, s{sPst}, s{sPo[hf]}", sets)
                for t in range(2):
                    d = acc + 16*hf + 4*t
                    pack4(nb, d, d + 8, sets)
                    last = (hf == halves[-1] and t == 1)
                    Fm(nb, f"pst{p}" if last else "pstx", f"buffer_store_dwordx4 v[{d}:{d+3}], v{vL16}, {WS}, s{sPst} offen offset:{1024*t} sc1", sets, 2)
            def pub():
                if p == 0: a.i(f"s_add_u32 s{sT0}, s{sPF}, 1024")
                else:
                    a.i(f"s_lshr_b32 s{sT0}, s{sI}, 1"); a.i(f"s_xor_b32 s{sT0}, s{sT0}, {4-p}")
                    a.i(f"s_lshl_b32 s{sT0}, s{sT0}, 8"); a.i(f"s_add_u32 s{sT0}, s{sT0}, s{sPF}")
                a.i(f"s_lshl_b32 s{sT1}, s{sI}, 2")
                flag_store([f"v_mov_b32 v{q0}, s{sT1}"], f"s{sT0}")
            pubs.append((f"pst{p}", pub, [None, pd if p < 3 else pd3], False))
        return fn
    def tag_store(acc, sreg):
        def fn(nb):
            sets = [(acc, acc + 16)]; src = []; L = []
            for t in range(2):
                for c in range(2):
                    src += [(acc + 8*c + 4*t, acc + 8*c + 4*t + 1), (acc + 8*c + 4*t + 2, acc + 8*c + 4*t + 3)]
            dst = [0, 1, 2, 8, 4, 5, 6, 9]
            for n in range(8):
                L.append((nb, "v", f"v_cvt_pk_bf16_f32 v{SQ+dst[n]}, v{src[n][0]}, v{src[n][1]}", sets, 0))
                if n in (2, 6, 7):
                    j = (2, 6, 7).index(n)
                    L.append((nb, "m", f"buffer_store_dwordx4 v[{SQ+4*j}:{SQ+4*j+3}], v{vL16}, {WS}, s{sreg} offen offset:{1024*j} sc1", sets, 0))
            return L
        return fn
    def c3_store(nb):
        assert not fill, len(fill)
        assert not any(f"v{SQ+11}," in str(it[2]) for it in fill2)
        for it in tag_store(BACC[3], sC3a)(nb) + tag_store(BACC[3] + 16, sC3b)(nb): fill.append(it)
    def sib_store(nb):
        assert not fill, len(fill)
        for it in tag_store(BACC[4], sSibS)(nb): fill.append(it)
    bpost[("B", 0, 20, 1)] = pstore(0, [0])
    for p in (1, 2): bpost[("B", p, 20, 3)] = pstore(p, [0, 1])
    bpost[("B", 3, 20, 3)] = c3_store if c3tag else pstore(3, [0, 1])
    bpost[("B", 4, 20, 1)] = sib_store
    vP0, vP1 = 80, 81
    def h_wait(i): a.wait(vm=toks["hld"])
    ihooks[("B", 1, 14, 0)] = h_wait
    def o_poll(i):
        a.i(f"v_accvgpr_read_b32 v{vP0}, a{st('hfp')}")
        toks["op"] = a.vm(f"buffer_load_dword v{vP1}, v{vP0}, {WS}, 0 offen offset:4 sc1")
    ihooks[("B",) + op[0] + (0,)] = o_poll
    def o_check(i):
        assert not any("v_cndmask" in str(it[2]) for it in fill2)
        poll_check("op", vP0, vP1, "0", 4)
        a.i(f"s_add_u32 s{sT0}, s{sHld}, {18*1024}")
        for t in range(2):
            a.vm(f"buffer_load_dwordx4 a[{HP+72+4*t}:{HP+75+4*t}], v{vL16}, {WS}, s{sT0} offen offset:{1024*t} sc1")
        for t in range(2):
            toks["old"] = a.vm(f"buffer_load_dwordx2 a[{HB+4*t+2}:{HB+4*t+3}], v{vL16}, {WS}, s{sT0} offen offset:{2048+8*t} sc1")
    ihooks[("B",) + op[1] + (0,)] = o_check
    ihooks[("B", 1, 19, 0)] = lambda i: a.wait(vm=toks["old"])
    sOwn, sSibS = sQst, sQld
    sC3a, sC3b = 60, 61; sTL = [62, 63, sQcol]
    sPFo = sKV[0]; sXo = [sKV[1], sKV[2]]; sMf, sMo, sMl = 45, sE, sM4x
    def polladdr(minx):
        a.i(f"v_bfe_u32 v{vP0}, v{vL16}, 4, 3"); a.i(f"v_max_u32 v{vP0}, {minx}, v{vP0}")
        a.i(f"v_xor_b32 v{vP0}, s{sI}, v{vP0}"); a.i(f"v_lshlrev_b32 v{vP0}, 2, v{vP0}")
    MA, MB, MX, MD, vM0, vM1 = 120, 124, 132, 136, 134, 135
    def m_prep(i):
        L = [f"v_bfe_u32 v{MD}, v{vL16}, 4, 4", f"v_lshrrev_b32 v{MD+1}, 8, v{vL16}",
             f"v_mul_u32_u24 v{vM0}, {8*HXS}, v{MD+1}", f"v_lshl_add_u32 v{vM0}, v{MD}, 4, v{vM0}",
             f"s_lshl_b32 s{sMl}, s{sI}, 8", f"s_add_u32 s{sMl}, s{sMl}, s{sPbase}", f"s_add_u32 s{sMl}, s{sMl}, {8*2048}",
             f"v_mul_u32_u24 v{vM1}, 1152, v{MD}", f"v_lshl_add_u32 v{vM1}, v{MD+1}, 5, v{vM1}",
             f"v_lshrrev_b32 v{MD+2}, 1, v{MD+1}", f"v_lshl_add_u32 v{vM1}, v{MD+2}, 29, v{vM1}",
             f"s_lshr_b32 s{sT2}, s{sI}, 2", f"s_mul_i32 s{sMo}, s{sT2}, {16*1152}", f"s_and_b32 s{sT2}, s{sI}, 3", f"s_lshl_b32 s{sT2}, s{sT2}, 3",
             f"s_add_u32 s{sMo}, s{sMo}, s{sT2}", f"s_add_u32 s{sMo}, s{sMo}, s{sCol[0]}", f"s_add_u32 s{sMo}, s{sMo}, s{sXrow}",
             f"s_add_u32 s{sMf}, s{sPF}, 1024",
             f"v_and_b32 v{MD+2}, 1, v{MD}", f"v_lshlrev_b32 v{MD+2}, 4, v{MD+2}", f"v_mov_b32 v{MD+3}, 0x3f80",
             f"v_lshlrev_b32 v{MD+3}, v{MD+2}, v{MD+3}", f"v_lshrrev_b32 v{MD+2}, 1, v{MD}"]
        for t in L: G(i, "v", t)
        for r in range(4):
            G(i, "v", f"v_cmp_eq_u32 vcc, {r}, v{MD+2}"); G(i, "v", f"v_cndmask_b32 v{MA+r}, 0, v{MD+3}, vcc")
        G(i, "v", f"v_accvgpr_read_b32 v{MX}, a{XR+8}"); G(i, "v", f"v_accvgpr_read_b32 v{MX+1}, a{XR+9}")
    ihooks[("B", 1, 1, 0)] = m_prep
    def m_poll(i):
        assert not fill2, len(fill2)
        for t in (f"v_bfe_u32 v{vP0}, v{vL16}, 4, 3", f"v_bfe_u32 v{vP1}, v{vL16}, 7, 1", f"v_mul_u32_u24 v{vP0+2}, 6, v{vP1}",
                  f"v_or_b32 v{vP0}, v{vP0}, v{vP0+2}", f"v_xor_b32 v{vP0}, s{sI}, v{vP0}", f"v_lshlrev_b32 v{vP0}, 2, v{vP0}",
                  f"s_sub_u32 s{sT2}, s{sMf}, s{sPFo}", f"v_xor_b32 v{vP1}, 1, v{vP1}", f"v_mad_u32_u24 v{vP0}, v{vP1}, s{sT2}, v{vP0}"):
            G(i, "v", t)
        Gm(i, "mp", f"buffer_load_dword v{vP1}, v{vP0}, {WS}, s{sPFo} offen sc1")
    ihooks[("B",) + mp[0] + (0,)] = m_poll
    def m_check(i):
        poll_check("mp", vP0, vP1, f"s{sPFo}", 0)
        a.vm(f"buffer_load_dwordx4 v[{MB}:{MB+3}], v{vM0}, {WS}, s{sMl} offen sc1")
        a.i(f"s_add_u32 s{sMl}, s{sMl}, {32*HXS}")
        toks["ml"] = a.vm(f"buffer_load_dwordx4 v[{MB+4}:{MB+7}], v{vM0}, {WS}, s{sMl} offen sc1")
        for t in (f"v_lshlrev_b32 v{MD}, 16, v{MX}", f"v_and_b32 v{MD+1}, 0xffff0000, v{MX}", f"v_lshlrev_b32 v{MD+2}, 16, v{MX+1}", f"v_and_b32 v{MD+3}, 0xffff0000, v{MX+1}"):
            G(i, "v", t)
        for x in (6, 7): G(i, "f", (lambda x=x: pload(x, sOwn, PL + 8*x, "pl")), 6)
    ihooks[("B",) + mp[1] + (0,)] = m_check
    def m_fin(i):
        assert not any(f"v{MD+3}," in str(it[2]) for it in fill2)
        a.wait(vm=toks["ml"])
        for j in range(2): a.i(f"{MF} v[{MD}:{MD+3}], v[{MA}:{MA+3}], v[{MB+4*j}:{MB+4*j+3}], v[{MD}:{MD+3}]")
        G(i + 3, "v", f"v_cvt_pk_bf16_f32 v{MD}, v{MD}, v{MD+1}"); G(i + 3, "v", f"v_cvt_pk_bf16_f32 v{MD+1}, v{MD+2}, v{MD+3}")
        G(i + 3, "m", f"buffer_store_dwordx2 v[{MD}:{MD+1}], v{vM1}, s[{SOUT}:{SOUT+3}], s{sMo} offen{outsc}")
    ihooks[("B",) + mp[2] + (0,)] = m_fin
    def e_poll(i):
        for t in (f"v_bfe_u32 v{vP0}, v{vL16}, 4, 1", f"v_or_b32 v{vP0}, 4, v{vP0}", f"v_xor_b32 v{vP0}, s{sI}, v{vP0}", f"v_lshlrev_b32 v{vP0}, 2, v{vP0}"):
            a.i(t)
        toks["ep"] = a.vm(f"buffer_load_dword v{vP1}, v{vP0}, {WS}, s{sPFo} offen sc1")
    def prep_own(i):
        L = [f"v_accvgpr_read_b32 v{vT0}, a{st('ov')}",
             f"s_lshl_b32 s{sOwn}, s{sI}, 11", f"s_add_u32 s{sOwn}, s{sOwn}, s{sPbase}",
             f"s_and_b32 s{sT2}, s{sS}, 1", f"s_mul_i32 s{sT2}, s{sT2}, 640", f"s_lshl_b32 s{sT3}, s{sI}, 6",
             f"s_add_u32 s{sT2}, s{sT2}, s{sT3}", f"s_add_u32 s{sXo[0]}, s{sT2}, s{sXrow}", f"s_add_u32 s{sXo[1]}, s{sXo[0]}, {16*1152}",
             f"s_lshr_b32 s{sPFo}, s{sI}, 1", f"s_lshl_b32 s{sT2}, s{sPFo}, 12", f"s_lshl_b32 s{sPFo}, s{sPFo}, 8", f"s_add_u32 s{sPFo}, s{sPFo}, s{sPF}",
             f"s_add_u32 s{sSibS}, s{sHld}, s{sT2}", f"s_xor_b32 s{sT3}, s{sT2}, 4096", f"s_add_u32 s{sC3a}, s{sHld}, s{sT3}",
             f"s_add_u32 s{sC3b}, s{sHld}, {18*1024}", f"s_add_u32 s{sT2}, s{sT2}, s{sPbase}"]
        for n, x in enumerate((3, 2, 1)):
            L += [f"s_xor_b32 s{sT3}, s{sI}, {x}", f"s_mul_i32 s{sT3}, s{sT3}, {8*HXS}"]
            if x == 2: L += [f"s_add_u32 s{sT3}, s{sT3}, s{sPbase}", f"s_add_u32 s{sTL[n]}, s{sT3}, {18*1024}"]
            else: L += [f"s_add_u32 s{sTL[n]}, s{sT3}, s{sT2}"]
        L += [f"v_mov_b32 v{SQ+r}, s{sTag}" for r in (3, 7, 10, 11)]
        for t in L: G(i, "v", t)
    ihooks[("B", 1, 2, 0)] = prep_own
    def pload(x, base, dst, name):
        a.i(f"s_xor_b32 s{sT0}, s{sI}, {x}"); a.i(f"s_mul_i32 s{sT0}, s{sT0}, {8*HXS}"); a.i(f"s_add_u32 s{sT0}, s{sT0}, s{base}")
        for t in range(2):
            toks[name] = a.vm(f"buffer_load_dwordx4 v[{dst+4*t}:{dst+4*t+3}], v{vL16}, {WS}, s{sT0} offen offset:{1024*t} sc1")
    def e_check(i):
        poll_check("ep", vP0, vP1, f"s{sPFo}", 0)
        for x in (4, 5): G(i, "f", (lambda x=x: pload(x, sOwn, PL + 8*x, "pl")), 4)
    ihooks[("B", 4) + ep[0]] = e_poll
    ihooks[("B", 4) + ep[1]] = e_check
    SI = [208, 220, 0]
    def tload(n, j): return f"buffer_load_dwordx4 v[{SI[n]+4*j}:{SI[n]+4*j+3}], v{vL16}, {WS}, s{sTL[n]} offen offset:{1024*j} sc1"
    def c3_load(i):
        for n in range(2):
            for j in range(3): Gm(i, "c3l", tload(n, j), 2)
    def sib_load(i):
        for j in range(3): G(i, "m", tload(2, j), 2)
    def e3_poll(i):
        for t in (f"v_bfe_u32 v{vP0}, v{vL16}, 4, 1", f"v_or_b32 v{vP0}, 2, v{vP0}", f"v_xor_b32 v{vP0}, s{sI}, v{vP0}", f"v_lshlrev_b32 v{vP0}, 2, v{vP0}"):
            a.i(t)
        toks["e3"] = a.vm(f"buffer_load_dword v{vP1}, v{vP0}, {WS}, s{sPFo} offen sc1")
    def e3_check(i):
        poll_check("e3", vP0, vP1, f"s{sPFo}", 0)
        for x in (2, 3): pload(x, sOwn, PL + 8*x, "c3l")
    if c3tag: ihooks[("B", 4) + tl[0]] = c3_load
    else:
        ihooks[("B", 4, e3[0], 2)] = e3_poll
        if e3[1] is not None: ihooks[("B", 4, e3[1], 2)] = e3_check
    if tl[1] is not None: ihooks[("B", 4, tl[1], 2)] = sib_load
    def dma_after_B(k):
        if k == 36: return [40, 41]
        if k == 37: return []
        return [k + 4] if k + 4 < KEND else []
    stream([(k,) + f for k in range(KB0, KEND) for f in stages[k]["fr"]] + last_fr[1], dma_after_B, tailnop=False)
    assert not pubs
    astamp("P:bend"); astamp("B:end")
    def accum(acc, src, f="v"):
        for c in range(2):
            for t in range(2):
                d = acc + 8*c + 4*t; s0 = SEL + (0 if c else 2)
                a.i(f"{MF} v[{d}:{d+3}], a[{s0}:{s0+3}], {f}[{src+4*t}:{src+4*t+3}], v[{d}:{d+3}]")
    OWN = BACC[4] + 16
    if not c3tag and e3[1] is None: e3_check(0)
    if tl[1] is None:
        for j in range(3): a.vm(tload(2, j))
    tr.stage = 100; tr("end")
    a.wait(vm=toks["pl"])
    tr("pl")
    accum(OWN, XR, "a")
    for x in range(4, 8): accum(OWN, PL + 8*x)
    CK = 12
    tr("acc")
    a.wait(vm=toks["c3l"])
    tr("c3")
    if not c3tag:
        for x in (2, 3): accum(OWN, PL + 8*x)
    for n in (range(3) if c3tag else [2]):
        if n == 2: tr("c3a"); a.i("s_waitcnt vmcnt(0)"); tr("sib")
        a.label(f"L_tchk{n}")
        a.i(f"v_xor_b32 v{CK}, s{sTag}, v{SI[n]+3}"); a.i(f"v_xor_b32 v{CK+1}, s{sTag}, v{SI[n]+7}"); a.i(f"v_xor_b32 v{CK+2}, s{sTag}, v{SI[n]+11}")
        a.i(f"v_or3_b32 v{CK}, v{CK}, v{CK+1}, v{CK+2}")
        a.i(f"v_cmp_ne_u32 vcc, 0, v{CK}")
        a.i(f"v_mov_b32 v{SI[n]+3}, v{SI[n]+8}"); a.i(f"v_mov_b32 v{SI[n]+7}, v{SI[n]+9}")
        a.i("s_cmp_lg_u64 vcc, 0")
        a.i(f"s_cbranch_scc1 L_tretry{n}")
        a.label(f"L_tok{n}")
        accum(OWN, SI[n])
    a.i("s_nop 4")
    for c in range(2):
        for t in range(2):
            d = OWN + 8*c + 4*t
            a.i(f"v_cvt_pk_bf16_f32 v{d}, v{d}, v{d+1}"); a.i(f"v_cvt_pk_bf16_f32 v{d+1}, v{d+2}, v{d+3}")
            a.vm(f"buffer_store_dwordx2 v[{d}:{d+1}], v{vT0}, s[{SOUT}:{SOUT+3}], s{sXo[t]} offen offset:{32*c}{outsc}")
    tr("st")
    if trace: a.i("s_waitcnt vmcnt(0)"); tr("fin")
    astamp("P:done")
    if trace:
        a.i("s_waitcnt lgkmcnt(0)")
        for n0, p0 in trp: a.i(f"v_writelane_b32 v{vLane}, s{p0}, {n0}")
        a.i(f"s_lshl_b32 s{sT0}, s2, 2"); a.i(f"s_add_u32 s{sT0}, s{sT0}, s{sW}"); a.i(f"s_lshl_b32 s{sT0}, s{sT0}, 8")
        a.i(f"s_add_u32 s{sT0}, s{sT0}, {STAMP_OFF}")
        a.i(f"v_lshrrev_b32 v1, 2, v{vL16}")
        a.i(f"buffer_store_dword v{vLane}, v1, {WS}, s{sT0} offen")
        print("trace:", len(trl), " ".join(trl), file=sys.stderr)
    if stamps:
        a.i(f"s_lshl_b32 s{sT0}, s2, 2"); a.i(f"s_add_u32 s{sT0}, s{sT0}, s{sW}"); a.i(f"s_lshl_b32 s{sT0}, s{sT0}, 6")
        a.i(f"s_add_u32 s{sT0}, s{sT0}, {STAMP_OFF}")
        a.i(f"v_mov_b32 v1, 0")
        for n in range(len(stl)):
            a.i(f"buffer_store_dword a{244+n}, v1, {WS}, s{sT0} offen offset:{4*n}")
        a.i("s_waitcnt vmcnt(0)")
        a.i("s_memrealtime s[80:81]"); a.i("s_waitcnt lgkmcnt(0)"); a.i("v_accvgpr_write_b32 a255, s80")
        a.i(f"buffer_store_dword a254, v1, {WS}, s{sT0} offen offset:56")
        a.i(f"buffer_store_dword a255, v1, {WS}, s{sT0} offen offset:60")
        print("stamps:", stl, file=sys.stderr)
        if dbgout:
            a.i(f"s_cmp_lg_u32 s{sW}, 1"); a.i("s_cbranch_scc1 L_end")
            a.i("s_cmp_eq_u32 s2, 8"); a.i(f"s_cselect_b32 s{sT1}, 0, 0x1000")
            a.i("s_cmp_eq_u32 s2, 253"); a.i(f"s_cselect_b32 s{sT1}, 28, s{sT1}")
            a.i("v_accvgpr_read_b32 v3, a254")
            for n in range(1, 8):
                a.i(f"v_accvgpr_read_b32 v2, a{244+n}"); a.i("v_sub_u32 v2, v2, v3")
                a.i(f"buffer_store_dword v2, v1, s[{SDBG}:{SDBG+3}], s{sT1} offen offset:{4*n}")
            a.i(f"buffer_store_dword v3, v1, s[{SDBG}:{SDBG+3}], s{sT1} offen offset:32")
    a.label("L_end")
    a.i("s_endpgm")
    for n in (range(3) if c3tag else [2]):
        a.label(f"L_tretry{n}")
        a.i(f"s_cmp_eq_u32 s{sBound}, 0"); a.i(f"s_cbranch_scc1 L_tok{n}")
        a.i(f"s_sub_u32 s{sBound}, s{sBound}, 1"); a.i("s_sleep 2")
        for j in range(3): a.i(tload(n, j))
        a.i("s_waitcnt vmcnt(0)")
        a.i(f"s_branch L_tchk{n}")
    a.lines += slow_lines
    a.label("L_tagspin")
    a.i(f"s_cmp_eq_u32 s{sBound}, 0"); a.i("s_cbranch_scc1 L_tagok")
    a.i(f"s_sub_u32 s{sBound}, s{sBound}, 1"); a.i("s_sleep 1")
    a.i(f"buffer_load_dword v207, off, s[{SDBG}:{SDBG+3}], 0 sc1"); a.i("s_waitcnt vmcnt(0)")
    a.i("s_branch L_tagchk")
    for (name, va, vf, soff, offs) in spin_blocks:
        a.label(f"L_spin_{name}")
        a.i(f"s_cmp_eq_u32 s{sBound}, 0")
        a.i(f"s_cbranch_scc1 L_back_{name}")
        a.i(f"s_sub_u32 s{sBound}, s{sBound}, 1")
        a.i("s_sleep 1")
        a.i(f"buffer_load_dword v{vf}, v{va}, {WS}, {soff} offen offset:{offs} sc1")
        a.i("s_waitcnt vmcnt(0)")
        a.i(f"v_cmp_ne_u32 vcc, s{sTag}, v{vf}")
        a.i("s_nop 0")
        a.i("s_cmp_lg_u64 vcc, 0")
        a.i(f"s_cbranch_scc1 L_spin_{name}")
        a.i(f"s_branch L_back_{name}")
    assert not ihooks, ihooks.keys()
    body = [l.replace("CODE_LAST", "0x1000") for l in a.lines]
    if iwarm:
        tmp = [l for l in body] + [f"L_w{w}:" for w in range(4*NHOP)] + ["    s_endpgm"]
        tmp, _, _, _ = align8(tmp, nops=False)
        tmp = tmp[:-(4*NHOP+1)]
        sz = sizes_of(tmp + [f"L_w{w}:" for w in range(4*NHOP)])
        out = []; off = 0; n = 0; j = 0; nextp = 8192; done = False
        for l in tmp:
            if l.startswith("L_end:"): done = True
            if is_instr(l):
                prev = out[-1].strip() if out else ""
                if off >= nextp and not done and not prev.startswith("v_mfma") and not prev.startswith("s_cmp"):
                    out.append(f"L_w{n}:"); out.append(f"    s_cbranch_execz L_wret{n//4}"); n += 1; off += 4; nextp += 4096
                off += sz[j]; j += 1
            out.append(l)
        assert n <= 4*NHOP
        for nn in range(n, 4*NHOP):
            out.insert(out.index(f"L_wret{nn//4}:"), f"L_w{nn}:")
        body = out; size = off
        print("warm stubs", n, file=sys.stderr)
    else:
        body, nf, nn, size = align8(body, nops=False)
    body = [l.replace("v_min_u32 v%d, 0x1000," % vT0, "v_min_u32 v%d, %d," % (vT0, (size - 64) & ~15)) for l in body]
    print(f"main: code {size} bytes, stash {st.next}", file=sys.stderr)
    return body

from gen1 import kd
def whole(**kw):
    m = gen(**kw)
    hdr = [l for l in open("parallel_sum__sliding_block__glu_gated_bilinear__prompt.s.ref").read().split("\n")[:11]]
    s = "\n".join(hdr) + "\n"
    s += f"; @launch grid=(256,1,1) block=(256,1,1) lds={LDS_BYTES}\n"
    s += '.amdgcn_target "amdgcn-amd-amdhsa--gfx950"\n.text\n'
    s += f".globl {KN}\n.p2align 12\n.type {KN},@function\n{KN}:\n" + "\n".join(m) + "\n"
    s += '.section .rodata,"a"\n.p2align 6\n' + kd(KN, 512, 256)
    return s

if __name__ == "__main__":
    kw = {}
    for x in sys.argv[2:]:
        k, v = x.split("="); kw[k] = eval(v)
    open(sys.argv[1], "w").write(whole(**kw))
```

```python
import sys, struct, math, re
from asmlib import *
from collections import deque

KN = "parallel_sum__sliding_block__glu_gated_bilinear__prompt_kernel"
QS = 6176; SLOT = 4 * QS; NS = 6
LDS_BYTES = 163840
TAG_LDS = NS * SLOT + 64
QKV_BASE = 0x2400000
QF_BASE = 0x2C00000; HF_BASE = 0x2C10000; PF_BASE = 0x2C40000
EPOCH_OFF = 0x2D00000
HX_BASE = 0x3000000; HXS = 21504
STAMP_OFF = 0x6000000
WS_BYTES = 268435456
OOB = 0x20000000
GS = 3136; TBASE = 163840 - 20 * GS
TAGC = 0x9E3779B8
def f2u(f): return "0x%08x" % struct.unpack("<I", struct.pack("<f", f))[0]
QC = 18 ** -0.5 * math.log2(math.e)
QG = QC ** 0.5
MF = "v_mfma_f32_16x16x32_bf16"

def gen(D=7, wev=3, stamps=None, rt=False, gap=6, lg_rpx=4, krot=True, normil=True, l2pf=True, pfs=6, pd3=24, ep=((2, 0), (13, 0)), tl=(0, None), mp=((3, 6), (3, 14), (4, 12)), trace=None, nraw=0, iwarm=True, pd=30, lead=70, hold=90, pfk=16, lnpre=3, od=40, warmat=1, gupf="U", hold0=40, gu_at=12, dbgout=False, x0=5, w0at=13, hopat=(2, 4, 6, 8), xfast=0, odef=6, op=((1, 13), (1, 18)), c3tag=False, e3=(10, None), xrat='T', kvat=(25, 27), fastT=True, forceslow=False, outsc='', tg=1, th=(3, 8, 12), oinl=60):
    a = Asm()
    XS = lnpre * SLOT; NXU = (LDS_BYTES - XS) // 8192
    SX, SG, SU, SD, SWS, SQKV, SO, SDBG, SOUT = 4, 8, 12, 16, 20, 24, 28, 32, 36
    sPF = 3
    sCol = [40, 41, 42, 43, 44]
    sSc = [45, 46, 47]; sKV = [48, 49, 50]
    sTag, sE, sBound, sQst, sQld = 51, 52, 53, 54, 55
    sW, sS, sR = 56, 57, 58
    sPair = [59, 60, 61, 62]; sSing = 63
    sMq, sI = 64, 65
    sOff, sT0, sT1, sT2, sT3 = 66, 67, 68, 69, 70
    sXrow, sPst, sM4 = 71, 72, 73
    sOff2 = 73
    sM4x = 59
    sPC = 74; sHst, sHld = 74, 75
    sC0, sC1, sQcol, sPbase = 76, 77, 78, 79
    sStamp = 80; sPo = [82, 83]
    KA = 84
    sKo = [84, 85, 86, 87, 88]; sKp = [89, 90, 91, 92, 93]; sAo, sAp = 94, 95
    sKr9 = [96, 97, 98]; sKr3 = [99, 100, 101]
    sKo2 = [24, 25, 26, 27]; sKp2 = [99, 100, 101, 77]
    XN = 0; ACC = [144, 176, 208]
    vRd = [240, 241, 242]; vA = [243, 244, 245]; vS = [246, 247, 248]
    q0, q1, q2 = 249, 250, 251
    vT0, vT1, vL16, vLane = 252, 253, 254, 255
    H, HP, HB, FR = 0, 80, 160, 168
    KVS, aQ = 128, 136
    NB = 8; assert D <= 7
    stash = {}
    def st(name, n=1):
        if name not in stash:
            stash[name] = st.next; st.next += n; assert st.next <= 228
        return stash[name]
    st.next = 200; stash['pt'] = 236; stash['stq'] = 228; stash['stq2'] = 229
    XR = 228
    SEL = 238
    stl = []
    def astamp(name):
        if stamps is None or name.split(":")[0] not in stamps: return
        n = len(stl); assert n < 10
        a.i("s_waitcnt lgkmcnt(0)"); a.lg_done = a.lg_issued
        a.i(f"{'s_memrealtime' if rt else 's_memtime'} s[{sStamp}:{sStamp+1}]")
        a.i("s_waitcnt lgkmcnt(0)")
        a.i(f"v_accvgpr_write_b32 a{244+n}, s{sStamp}")
        stl.append(name)
    trl = []; trp = []
    TRS = [44, 80, 0] if (trace and trace[0] < 0) else [46, 80, 0]
    def tr(name):
        if trace is None or not (trace[0] <= tr.stage < trace[1]) or len(trl) >= 64: return
        if len(trp) >= 2:
            n0, p0 = trp.pop(0); a.i(f"v_writelane_b32 v{vLane}, s{p0}, {n0}")
        p = TRS[len(trl) % 3]
        a.i(f"s_memtime s[{p}:{p+1}]")
        trp.append((len(trl), p)); trl.append(name)
    tr.stage = 0
    def srd(d, p, nbytes, back=0):
        if back:
            a.i(f"s_sub_u32 s{d}, s{p}, {back}"); a.i(f"s_subb_u32 s{d+1}, s{p+1}, 0")
        else:
            a.i(f"s_mov_b32 s{d}, s{p}"); a.i(f"s_mov_b32 s{d+1}, s{p+1}")
        a.i(f"s_mov_b32 s{d+2}, {nbytes + back}"); a.i(f"s_mov_b32 s{d+3}, 0x00020000")
    WS = f"s[{SWS}:{SWS+3}]"

    a.i("s_cmp_ge_u32 s2, 256")
    a.i("s_cbranch_scc1 L_end")
    if stamps: a.i("s_memrealtime s[36:37]")
    if trace and trace[0] < 0: a.i("s_memtime s[36:37]")
    a.i(f"s_load_dwordx16 s[{KA}:{KA+15}], s[0:1], 0")
    a.i(f"s_load_dwordx4 s[80:83], s[0:1], 64")
    a.i(f"s_getpc_b64 s[{sPC}:{sPC+1}]")
    a.i(f"s_lshr_b32 s{sT0}, s2, 3")
    a.i(f"s_lshl_b32 s{sT0}, s{sT0}, 12")
    a.i(f"v_lshlrev_b32 v{vT0}, 4, v0")
    a.i(f"v_add_u32 v{vT0}, s{sT0}, v{vT0}")
    a.i(f"v_min_u32 v{vT0}, CODE_LAST, v{vT0}")
    a.vm(f"global_load_dwordx4 a[{HP+76}:{HP+79}], v{vT0}, s[{sPC}:{sPC+1}]")
    a.i(f"v_lshrrev_b32 v{vT1}, 6, v0")
    a.i(f"v_and_b32 v{vLane}, 63, v0")
    a.i(f"v_readfirstlane_b32 s{sW}, v{vT1}")
    lg = lg_rpx; nsl = 32 >> lg
    a.i(f"s_and_b32 s{sR}, s2, {(16 >> lg) - 1}"); a.i(f"s_lshl_b32 s{sR}, s{sR}, {lg}")
    a.i(f"s_lshr_b32 s{sT0}, s2, {8 - lg}"); a.i(f"s_add_u32 s{sR}, s{sR}, s{sT0}")
    a.i(f"s_bfe_u32 s{sS}, s2, {hex(((lg - 1) << 16) | (4 - lg))}"); a.i(f"s_lshl_b32 s{sS}, s{sS}, {5 - lg}")
    a.i(f"s_bfe_u32 s{sT0}, s2, {hex(((5 - lg) << 16) | 3)}"); a.i(f"s_add_u32 s{sS}, s{sS}, s{sT0}")
    sRot = sT3
    if krot:
        a.i(f"s_lshr_b32 s{sT0}, s{sR}, 2"); a.i(f"s_add_u32 s{sT0}, s{sT0}, s{sS}")
        a.i(f"s_mul_hi_u32 s{sT1}, s{sT0}, 0x55555556"); a.i(f"s_mul_i32 s{sT1}, s{sT1}, 3"); a.i(f"s_sub_u32 s{sRot}, s{sT0}, s{sT1}")
    else: a.i(f"s_mov_b32 s{sRot}, 0")
    sRk = [45, 46, 47]
    for stg in range(3):
        a.i(f"s_add_u32 s{sRk[stg]}, s{sRot}, {stg}")
        a.i(f"s_cmp_ge_u32 s{sRk[stg]}, 3"); a.i(f"s_cselect_b32 s{sT0}, 3, 0"); a.i(f"s_sub_u32 s{sRk[stg]}, s{sRk[stg]}, s{sT0}")
    QACC = 144; D2 = 200
    vX = [228, 229, 230, 231]; vXr = [232, 233]
    S1 = [234, 235]; S2 = [236, 237]; vCs = 238
    t0, t1, t2, t3 = 144, 145, 146, 147
    ONES = 128
    a.i(f"v_lshrrev_b32 v{t0}, 3, v{vLane}")
    a.i(f"v_and_b32 v{t1}, 7, v{vLane}")
    for j in range(2):
        a.i(f"v_add_u32 v{t2}, {8*j}, v{t0}")
        a.i(f"v_bfe_u32 v{t3}, v{t2}, 1, 3")
        a.i(f"v_xor_b32 v{t3}, v{t3}, v{t1}")
        a.i(f"v_mul_u32_u24 v{t2}, 1152, v{t2}")
        a.i(f"v_lshl_add_u32 v{vX[j]}, v{t3}, 4, v{t2}")
        if j: a.i(f"v_subrev_u32 v{vX[j]}, {1024*j}, v{vX[j]}")
    a.i(f"s_lshl_b32 s{sXrow}, s{sR}, 2")
    a.i(f"s_add_u32 s{sXrow}, s{sXrow}, s{sW}")
    a.i(f"s_mul_i32 s{sXrow}, s{sXrow}, {32*1152}")
    sXk = [40, 41, 42]
    for stg in range(3):
        a.i(f"s_mul_i32 s{sXk[stg]}, s{sRk[stg]}, 384"); a.i(f"s_add_u32 s{sXk[stg]}, s{sXk[stg]}, s{sXrow}")
    a.i(f"s_mul_i32 s{sM4}, s{sW}, {2048*NXU}")
    a.i("s_waitcnt lgkmcnt(0)")
    if stamps: a.i("v_accvgpr_write_b32 a254, s36")
    if trace and trace[0] < 0: a.i("s_mov_b32 s53, s36"); a.i("s_memtime s[54:55]")
    srd(SX, KA+0, 2048*1152)
    xtok = {}
    def xdma_items(n):
        t, ch = n // 9, n % 9
        o = [("s", f"s_add_u32 m0, s{sM4}, {XS + 2048*(n % NXU)}"), ("s", f"s_add_u32 s{sOff}, s{sXk[ch//3]}, {128*(ch%3) + 16*1152*t}")]
        return o + [("m", f"buffer_load_dwordx4 v{vX[j]}, s[{SX}:{SX+3}], s{sOff} offen offset:{1024*j} lds") for j in range(2)]
    dma_tok = {}
    def emit_dma_item(k, it):
        if it[0] == "m": dma_tok[k] = a.vm(it[1])
        elif it[0] == "d": a.ds(it[1])
        elif it[0] == "h": pass
        else: a.i(it[1])
    def xdma(ch):
        for it in xdma_items(ch): emit_dma_item(("x", ch), it)
    for n in range(x0): xdma(n)
    srd(SQKV, KA+2, 576*3456); srd(SO, KA+4, 576*1152, back=2048)
    srd(SG, KA+8, 576*9216); srd(SU, KA+10, 576*9216); srd(SD, KA+12, 4608*1152, back=2048)
    srd(SOUT, KA+14, 2048*1152)
    srd(SDBG, 80, 256); srd(SWS, 82, WS_BYTES)
    a.i(f"s_or_b32 s{sT0}, s2, s{sW}")
    a.i("s_cbranch_scc1 L_noep")
    a.i(f"s_add_u32 s82, s82, {EPOCH_OFF}"); a.i("s_addc_u32 s83, s83, 0")
    a.i(f"s_load_dword s{sE}, s[82:83], 0")
    a.label("L_noep")
    astamp("P:start")
    vn, vq, rho, tt, pc = 148, 149, 150, 151, 152
    a.i(f"v_and_b32 v{vn}, 15, v{vLane}"); a.i(f"v_lshrrev_b32 v{vq}, 4, v{vLane}")
    a.i(f"v_bfe_u32 v{rho}, v{vLane}, 2, 3"); a.i(f"v_lshrrev_b32 v{tt}, 5, v{vLane}")
    a.i(f"v_and_b32 v{pc}, 3, v{vLane}"); a.i(f"v_lshlrev_b32 v{pc}, 4, v{pc}")
    a.i(f"v_lshlrev_b32 v{vL16}, 4, v{vLane}")
    a.i(f"v_lshrrev_b32 v{t1}, 1, v{vn}"); a.i(f"v_xor_b32 v{t1}, v{t1}, v{vq}")
    a.i(f"v_lshlrev_b32 v{t0}, 7, v{vn}")
    a.i(f"s_add_u32 s{sT0}, s{sM4}, {XS}"); a.i(f"v_add_u32 v{t0}, s{sT0}, v{t0}")
    a.i(f"v_lshl_add_u32 v{vXr[0]}, v{t1}, 4, v{t0}")
    a.i(f"v_xor_b32 v{t1}, 4, v{t1}"); a.i(f"v_lshl_add_u32 v{vXr[1]}, v{t1}, 4, v{t0}")
    for stg in range(3):
        a.i(f"s_mul_i32 s{sKr9[stg]}, s{sRk[stg]}, {192*9216}"); a.i(f"s_mul_i32 s{sKr3[stg]}, s{sRk[stg]}, {192*3456}")
    a.i(f"s_mul_i32 s{sQcol}, s{sS}, 216")
    for stg in range(3): a.i(f"s_add_u32 s{sKr3[stg]}, s{sKr3[stg]}, s{sQcol}")
    a.i(f"s_mul_i32 s{sMq}, s{sW}, {QS}")
    a.i(f"s_lshr_b32 s{sI}, s{sS}, 1")
    a.i(f"s_lshl_b32 s{sT0}, s{sW}, 3"); a.i(f"v_add_u32 v{t2}, s{sT0}, v{rho}")
    a.i(f"v_lshl_add_u32 v{t3}, v{tt}, 6, v{pc}")
    a.i(f"v_mul_u32_u24 v{vS[0]}, 3456, v{t2}"); a.i(f"v_add_u32 v{vS[0]}, v{vS[0]}, v{t3}")
    a.i(f"v_add_u32 v{vS[1]}, {32*3456-1024}, v{vS[0]}"); a.i(f"v_add_u32 v{vS[2]}, {64*3456-2048}, v{vS[0]}")
    a.i(f"v_mul_u32_u24 v{t0}, 9216, v{t2}"); a.i(f"v_add_u32 v{vA[0]}, v{t0}, v{t3}")
    a.i(f"v_add_u32 v{vA[1]}, {32*9216-1024}, v{vA[0]}"); a.i(f"v_add_u32 v{vA[2]}, {64*9216-2048}, v{vA[0]}")
    def su_cas():
        a.i(f"s_or_b32 s{sT0}, s2, s{sW}")
        a.i("s_cbranch_scc1 L_nocas")
        a.i("s_waitcnt lgkmcnt(0)")
        a.i(f"s_add_u32 s{sE}, s{sE}, {TAGC}"); a.i(f"s_or_b32 s{sE}, s{sE}, 1")
        a.i(f"v_mov_b32 v{vCs}, s{sE}"); a.i(f"v_mov_b32 v{vCs+1}, {EPOCH_OFF}")
        a.i(f"buffer_store_dword v{vCs}, off, s[{SDBG}:{SDBG+3}], 0 sc1")
        a.i(f"buffer_store_dword v{vCs}, v{vCs+1}, {WS}, 0 offen sc1")
        a.label("L_nocas")

    def su_early():
        a.i(f"v_bfe_u32 v{t0}, v{vLane}, 2, 2"); a.i(f"v_lshlrev_b32 v{t1}, 6, v{t0}")
        a.i(f"v_and_b32 v{t0}, 3, v{vLane}"); a.i(f"v_lshl_add_u32 v{t1}, v{t0}, 3, v{t1}")
        a.i(f"v_mul_u32_u24 v{t0}, {QS}, v{vq}"); a.i(f"v_add_u32 v{vRd[0]}, v{t0}, v{t1}")
        a.i(f"v_add_u32 v{vRd[1]}, {2*SLOT}, v{vRd[0]}"); a.i(f"v_add_u32 v{vRd[2]}, {4*SLOT}, v{vRd[0]}")
        a.i(f"s_mul_i32 s{sT1}, s{sS}, 576"); a.i(f"s_and_b32 s{sT2}, s{sS}, 1")
        a.i(f"s_lshl_b32 s{sT3}, s{sT2}, 6"); a.i(f"s_add_u32 s{sT3}, s{sT3}, s{sT1}")
        for j in range(4):
            a.i(f"s_add_u32 s{sPair[j]}, s{sR}, {j}"); a.i(f"s_and_b32 s{sPair[j]}, s{sPair[j]}, 3")
            a.i(f"s_lshl_b32 s{sPair[j]}, s{sPair[j]}, 7"); a.i(f"s_add_u32 s{sPair[j]}, s{sPair[j]}, s{sT3}")
        a.i(f"s_xor_b32 s{sT2}, s{sT2}, 1"); a.i(f"s_lshl_b32 s{sT2}, s{sT2}, 9"); a.i(f"s_add_u32 s{sSing}, s{sT2}, s{sT1}")
        a.i(f"s_mov_b32 s{sBound}, 0x40000")
    U0, U1, U2, U3 = 45, 52, 78, 73
    MK = "s[40:41]"
    def d_q(tb):
        x0_, x1, x2, n, q = tb, tb+1, tb+2, tb+3, tb+4
        return [f"v_bfe_u32 v{n}, v{vL16}, 4, 4", f"v_lshrrev_b32 v{q}, 8, v{vL16}",
            f"s_lshl_b32 s{U0}, s{sW}, 8", f"v_lshlrev_b32 v{x0_}, 3, v{n}", f"v_add_u32 v{x0_}, s{U0}, v{x0_}",
            f"v_lshl_add_u32 v{x1}, v{q}, 10, v{x0_}", f"v_accvgpr_write_b32 a{st('stq')}, v{x1}",
            f"v_add_u32 v{x2}, 1, v{q}", f"v_lshrrev_b32 v{x2}, 2, v{x2}", f"v_lshl_add_u32 v{x1}, v{x2}, 29, v{x1}",
            f"v_accvgpr_write_b32 a{st('stq2')}, v{x1}",
            f"s_mul_i32 s{U0}, s{sR}, 432", f"s_mul_i32 s{U1}, s{sS}, 27", f"s_add_u32 s{U1}, s{U1}, s{U0}",
            f"s_lshl_b32 s{U1}, s{U1}, 10", f"s_add_u32 s{sQst}, s{U1}, {QKV_BASE}",
            f"v_lshl_add_u32 v{x1}, v{q}, 11, v{x0_}", f"v_accvgpr_write_b32 a{st('qA')}, v{x1}",
            f"v_lshl_add_u32 v{x1}, v{q}, 1, 5", f"v_cmp_gt_u32 {MK}, 2, v{q}", "?s_nop 1",
            f"v_cndmask_b32 v{x1}, 4, v{x1}, {MK}", f"v_lshl_add_u32 v{x1}, v{x1}, 10, v{x0_}", f"v_accvgpr_write_b32 a{st('qB')}, v{x1}",
            f"s_mul_i32 s{U1}, s{sS}, 9", f"s_add_u32 s{U1}, s{U1}, s{U0}", f"s_lshl_b32 s{U1}, s{U1}, 10", f"s_add_u32 s{sQld}, s{U1}, {QKV_BASE}",
            f"s_add_u32 s{U2}, s{sW}, 144", f"s_lshl_b32 s{U2}, s{U2}, 10", f"s_add_u32 s{sKV[2]}, s{U2}, s{sQld}",
            f"s_sub_u32 s{sKV[0]}, s{sKV[2]}, {2*432*1024}", f"s_cmp_ge_u32 s{sR}, 2", f"s_cselect_b32 s{sKV[0]}, s{sKV[0]}, {OOB}",
            f"s_sub_u32 s{sKV[1]}, s{sKV[2]}, {432*1024 + 1024}", f"s_cmp_ge_u32 s{sR}, 1", f"s_cselect_b32 s{sKV[1]}, s{sKV[1]}, {OOB}",
            f"s_sub_u32 s{sKV[2]}, s{sKV[2]}, 2048"]
    def d_h(tb):
        x2 = tb
        return [f"s_and_b32 s{U2}, s{sS}, 1", f"s_lshl_b32 s{U1}, s{sR}, 1", f"s_add_u32 s{U1}, s{U1}, s{U2}",
            f"s_mul_i32 s{sPF}, s{U1}, 20", f"s_add_u32 s{sPF}, s{sPF}, s{sW}", f"s_lshl_b32 s{sPF}, s{sPF}, 6", f"s_add_u32 s{sPF}, s{sPF}, {PF_BASE}",
            f"s_lshl_b32 s{U1}, s{sR}, 4", f"s_add_u32 s{U1}, s{U1}, s{sS}", f"s_lshl_b32 s{U3}, s{U1}, 2", f"s_add_u32 s{U3}, s{U3}, s{sW}",
            f"s_mul_i32 s{sHst}, s{U3}, {HXS}", f"s_add_u32 s{sHst}, s{sHst}, {HX_BASE}",
            f"s_lshl_b32 s{U1}, s{U3}, 6", f"s_add_u32 s{U1}, s{U1}, {HF_BASE}", f"v_accvgpr_write_b32 a{st('hfo')}, s{U1}",
            f"v_min_u32 v{x2}, 64, v{vL16}", f"v_lshlrev_b32 v{x2}, 4, v{x2}", f"v_add_u32 v{x2}, s{sPF}, v{x2}",
            f"v_writelane_b32 v{x2}, s{U1}, 7", f"v_accvgpr_write_b32 a{st('pt')}, v{x2}",
            f"s_xor_b32 s{U1}, s{U1}, 256", f"v_accvgpr_write_b32 a{st('hfp')}, s{U1}",
            f"s_xor_b32 s{U3}, s{U3}, 4", f"s_mul_i32 s{sHld}, s{U3}, {HXS}", f"s_add_u32 s{sHld}, s{sHld}, {HX_BASE}",
            f"s_and_b32 s{U0}, s{sI}, 1", f"s_xor_b32 s{U0}, s{U0}, 1",
            f"s_mul_i32 s{U3}, s{U2}, {640 << 5}", f"s_sub_u32 s{U1}, s{sHld}, s{U3}",
            f"s_lshl_b32 s{U3}, s{U0}, 11", f"s_add_u32 s{sPo[0]}, s{U1}, s{U3}", f"s_xor_b32 s{U3}, s{U3}, 0x800", f"s_add_u32 s{sPo[1]}, s{U1}, s{U3}",
            f"s_mul_i32 s{U3}, s{sI}, {8*HXS}", f"s_sub_u32 s{sPbase}, s{sHld}, s{U3}"]
    def d_flags(tb):
        m, d, x = tb, tb+1, tb+2
        return [f"v_bfe_u32 v{m}, v{vL16}, 6, 2", f"v_min_u32 v{m}, 2, v{m}", f"v_bfe_u32 v{d}, v{vL16}, 4, 2", f"v_min_u32 v{d}, 2, v{d}",
            f"v_min_u32 v{x}, 1, v{m}", f"v_mul_u32_u24 v{d}, v{d}, v{x}", f"v_sub_u32 v{d}, s{sR}, v{d}", f"v_max_i32 v{d}, 0, v{d}",
            f"v_lshl_add_u32 v{m}, v{m}, 4, s{sS}", f"v_mul_u32_u24 v{m}, 0x5556, v{m}", f"v_lshrrev_b32 v{m}, 16, v{m}",
            f"v_lshl_add_u32 v{m}, v{d}, 4, v{m}", f"v_lshlrev_b32 v{m}, 7, v{m}", f"v_add_u32 v{m}, {QF_BASE}, v{m}",
            f"v_accvgpr_write_b32 a{st('qf')}, v{m}"]
    def d_B(tb):
        x0_, x1, x2, x3, pc_, tt_ = tb, tb+1, tb+2, tb+3, tb+4, tb+5
        L = [f"v_and_b32 v{pc_}, 48, v{vL16}", f"v_lshrrev_b32 v{tt_}, 9, v{vL16}",
            f"v_mul_u32_u24 v{x1}, {32*9216 - 64}, v{tt_}", f"v_add_u32 v{x1}, v{x1}, v{vA[0]}"]
        for i in range(3):
            if i: L.append(f"v_add_u32 v{x1}, {64*9216-1024}, v{x1}")
            L.append(f"v_accvgpr_write_b32 a{st('sing',3)+i}, v{x1}")
        L += [f"s_and_b32 s{U0}, s{sI}, 1", f"s_xor_b32 s{U0}, s{U0}, 1",
            f"v_xor_b32 v{x3}, s{U0}, v{tt_}", f"v_lshlrev_b32 v{x3}, 6, v{x3}",
            f"v_bfe_u32 v{x0_}, v{vL16}, 6, 2", f"v_bfe_u32 v{x1}, v{vL16}, 8, 1",
            f"v_xor_b32 v{x2}, s{sS}, v{x1}", f"v_mul_u32_u24 v{x2}, 36, v{x2}", f"v_add3_u32 v{x2}, v{x2}, v{x0_}, 16",
            f"v_mul_u32_u24 v{x2}, 1152, v{x2}", f"v_add_u32 v{x2}, v{x2}, v{pc_}", f"v_accvgpr_write_b32 a{st('Obm')}, v{x2}",
            f"v_add_u32 v{x2}, v{x2}, v{x3}", f"v_accvgpr_write_b32 a{st('Ob')}, v{x2}",
            f"s_lshl_b32 s{U1}, s{sW}, 2", f"v_add_u32 v{x0_}, s{U1}, v{x0_}"]
        for name, hi in (("D", 16), ("Oa", 20)):
            L += [f"v_mad_u32_u24 v{x2}, v{x1}, {hi}, v{x0_}", f"v_mul_u32_u24 v{x2}, 1152, v{x2}", f"v_add_u32 v{x2}, v{x2}, v{pc_}",
                  f"v_accvgpr_write_b32 a{st(name+'m')}, v{x2}", f"v_add_u32 v{x2}, v{x2}, v{x3}", f"v_accvgpr_write_b32 a{st(name)}, v{x2}"]
        return L
    def d_rows(tb):
        L = [f"s_mul_i32 s{sKo[j]}, s{sPair[j]}, 576" for j in range(4)] + [f"s_mul_i32 s{sKo[4]}, s{sSing}, 576"]
        L += [f"s_and_b32 s{U0}, s{sS}, 1", f"s_lshl_b32 s{U0}, s{U0}, 1", f"s_sub_u32 s{U0}, 1, s{U0}",
              f"s_mul_i32 s{U1}, s{U0}, {320*1152}"]
        L += [f"s_add_u32 s{sKp[j]}, s{sKo[j]}, s{U1}" for j in range(4)]
        L += [f"s_mul_i32 s{U1}, s{U0}, {32*1152}", f"s_add_u32 s{sKp[4]}, s{sKo[4]}, s{U1}",
              f"s_mul_i32 s{sAo}, s{sS}, {36*1152}", f"s_mul_i32 s{U1}, s{U0}, {36*1152}", f"s_add_u32 s{sAp}, s{sAo}, s{U1}"]
        L += [f"s_add_u32 s{sKo2[j]}, s{sKo[j]}, {32*1152}" for j in range(4)] + [f"s_add_u32 s{sKp2[j]}, s{sKp[j]}, {32*1152}" for j in range(4)]
        return L
    def d_T1(tb):
        x0_, x1, x2, n, q = tb, tb+1, tb+2, tb+3, tb+4
        return [f"v_bfe_u32 v{n}, v{vL16}, 4, 4", f"v_lshrrev_b32 v{q}, 8, v{vL16}",
            f"s_lshl_b32 s{U0}, s{sW}, 8", f"s_add_u32 s{U0}, s{U0}, {TBASE}",
            f"v_lshlrev_b32 v{x0_}, 3, v{n}", f"v_add_u32 v{x0_}, s{U0}, v{x0_}",
            f"v_mul_u32_u24 v{x1}, {2*GS}, v{q}", f"v_add_u32 v{x1}, v{x1}, v{x0_}", f"v_accvgpr_write_b32 a{st('KA')}, v{x1}",
            f"v_lshl_add_u32 v{x1}, v{q}, 1, 6", f"v_cmp_gt_u32 {MK}, 2, v{q}", "?s_nop 1", f"v_cndmask_b32 v{x1}, 4, v{x1}, {MK}",
            f"v_mul_u32_u24 v{x1}, {GS}, v{x1}", f"v_add_u32 v{x1}, v{x1}, v{x0_}", f"v_accvgpr_write_b32 a{st('KB')}, v{x1}",
            f"v_lshrrev_b32 v{x0_}, 6, v{vL16}", f"v_lshlrev_b32 v{x0_}, 3, v{x0_}", f"s_add_u32 s{U0}, s{U0}, {10*GS}", f"v_add_u32 v{x0_}, s{U0}, v{x0_}",
            f"v_bfe_u32 v{x1}, v{vL16}, 4, 2", f"v_mul_u32_u24 v{x2}, {GS}, v{x1}", f"v_add_u32 v{x2}, v{x2}, v{x0_}", f"v_accvgpr_write_b32 a{st('V0')}, v{x2}",
            f"v_min_u32 v{x1}, 1, v{x1}", f"v_add_u32 v{x1}, 4, v{x1}", f"v_mul_u32_u24 v{x2}, {GS}, v{x1}", f"v_add_u32 v{x2}, v{x2}, v{x0_}",
            f"v_accvgpr_write_b32 a{st('V1')}, v{x2}",
            f"v_mul_u32_u24 v{x0_}, 1152, v{n}", f"v_lshl_add_u32 v{x0_}, v{q}, 3, v{x0_}", f"v_accvgpr_write_b32 a{st('ov')}, v{x0_}"]
    def d_T2(tb):
        x0_, x1, x2, x3 = tb, tb+1, tb+2, tb+3
        L = [f"v_bfe_u32 v{x1}, v{vL16}, 4, 4", f"v_lshrrev_b32 v{x0_}, 8, v{vL16}", f"v_lshlrev_b32 v{x0_}, 2, v{x0_}", f"v_sub_u32 v{x0_}, v{x1}, v{x0_}",
             f"v_mov_b32 v{x1}, {f2u(-1e30)}"]
        for r in range(4):
            L += [f"v_cmp_le_i32 {MK}, {r}, v{x0_}", "?s_nop 1", f"v_cndmask_b32 v{x2}, 0, v{x1}, {MK}", f"v_accvgpr_write_b32 a{st('mf',4)+r}, v{x2}",
                  f"v_xor_b32 v{x2}, v{x2}, v{x1}", f"v_accvgpr_write_b32 a{st('ml',4)+r}, v{x2}"]
        L += [f"v_and_b32 v{x2}, 1, v{x0_}", f"v_lshlrev_b32 v{x2}, 4, v{x2}", f"v_mov_b32 v{x1}, 0x3f80", f"v_lshlrev_b32 v{x1}, v{x2}, v{x1}",
              f"v_ashrrev_i32 v{x0_}, 1, v{x0_}"]
        for hf in range(2):
            L += [f"v_cmp_eq_u32 {MK}, {hf}, v{x0_}", "?s_nop 1", f"v_cndmask_b32 v{x3}, 0, v{x1}, {MK}", f"v_accvgpr_write_b32 a{SEL+2+hf}, v{x3}"]
        L += [f"v_accvgpr_write_b32 a{SEL+r}, 0" for r in (0, 1, 4, 5)]
        return L
    def d_col(tb):
        L = [f"s_and_b32 s{U2}, s{sS}, 1", f"s_lshl_b32 s{U0}, s{U2}, 6", f"s_add_u32 s{sCol[0]}, s{U0}, 512",
             f"s_mul_i32 s{U2}, s{U2}, 640", f"s_lshr_b32 s{U1}, s{sI}, 1"]
        for p in range(1, 5):
            L += [f"s_xor_b32 s{U0}, s{U1}, {4-p}", f"s_lshl_b32 s{U0}, s{U0}, 7", f"s_add_u32 s{sCol[p]}, s{U0}, s{U2}"]
        return L

    stages = {}
    post = {}
    def X(S, t): return f"v[{XN+8*S+4*t}:{XN+8*S+4*t+3}]"
    def slot_of(k):
        if k < 28: return k % NS
        if k < 33: return k % 4
        return [1, 2, 3, 0, 4, 5][(k - 36) % 6]
    def grp(k, g, srdreg, soffs, vregs):
        slot = slot_of(k) * SLOT
        out = [("s", f"s_add_u32 m0, s{sMq}, {slot + 3072*g}")]
        out += [("s", t) for t in soffs]
        for i, v in enumerate(vregs):
            out.append(("m", f"buffer_load_dwordx4 v{v}, s[{srdreg}:{srdreg+3}], s{sOff} offen offset:{1024*i} lds"))
        return out
    k = 0
    for stg in range(6):
        dma = []
        for P in range(2):
            dma += grp(k, P, SQKV, [f"s_add_u32 s{sOff}, s{sKr3[stg//2]}, {(stg%2)*96*3456 + 128*P}"], vS)
        fr = []
        for uu in range(3):
            S = 3*stg + uu
            for tau in range(7):
                P = tau // 4; off = 1024*(3*P + uu) + 512*((tau % 4)//2) + 32*(tau % 2)
                fr.append((off, QACC + 8*tau, X(S, 0), X(S, 1), S == 0, ("Q", S, tau)) + ((D2 + 4*tau,) if stg < nraw else ()))
        stages[k] = dict(dma=dma, fr=fr); k += 1
    rot = 2
    for j in range(4):
        ag = ACC[rot % 3]; au = ACC[(rot + 1) % 3]; rot += 2
        for (srdreg, acc) in ((SG, ag), (SU, au)):
            for stg in range(3):
                dma = grp(k, 0, srdreg, [f"s_add_u32 s{sOff}, s{sPair[j]}, s{sKr9[stg]}"], vA)
                dma += grp(k, 1, srdreg, [f"s_add_u32 s{sOff}, s{sOff}, {96*9216}"], vA)
                fr = []
                for uu in range(6):
                    S = 6*stg + uu
                    for tau in range(4):
                        fr.append((1024*uu + 512*(tau//2) + 32*(tau%2), acc + 8*tau, X(S, 0), X(S, 1), S == 0, None))
                stages[k] = dict(dma=dma, fr=fr); k += 1
            if srdreg == SG: post[k-1] = ("g", [ag], ag, 4)
        post[k-1] = ("h", [ag, au], [(ag, au, 2*j), (ag+16, au+16, 2*j+1)])
    ag = ACC[rot % 3]
    for stg in range(3):
        dma = grp(k, 0, SG, [f"s_add_u32 s{sOff}, s{sSing}, s{sKr9[stg]}"], vS) + [x if x[1] != "s_nop 0" else ("n", "s_nop 0") for x in grp(k, 1, SU, ["s_nop 0"], vS)]
        if stg == 0: dma = [("v", f"v_accvgpr_read_b32 v{vS[i]}, a{st('sing',3)+i}") for i in range(3)] + dma
        fr = []
        for uu in range(6):
            S = 6*stg + uu
            for m in range(2):
                for c in range(2):
                    fr.append((3072*m + 1024*(uu//2) + 512*(uu%2) + 32*c, ag + 16*m + 8*c, X(S, 0), X(S, 1), S == 0, None))
        stages[k] = dict(dma=dma, fr=fr); k += 1
    post[k-1] = ("h", [ag], [(ag, ag+16, 8)])
    assert k == 33
    KB0 = 36
    ent = [(p, ks) for ks in range(19) for p in (1, 0)] + [(2, ks) for ks in range(odef)] + [(p, ks) for ks in (19, 20) for p in (1, 0)]
    ent += [(2, ks) for ks in range(odef, 21)]
    for p in (3, 4): ent += [(p, ks) for ks in range(21)]
    BACC = {0: 144, 1: 176, 2: 208, 3: 144, 4: 176}
    def Hop(ks, t):
        if ks < 10: b = H + 8*ks + 4*t
        elif ks < 20: b = HP + 8*(ks-10) + 4*t
        else: b = HB + 4*t
        return f"a[{b}:{b+3}]"
    nBst = (len(ent) + 5) // 6
    last_fr = [[], []]
    bpost = {}
    for sb in range(nBst):
        k = KB0 + sb; slot = slot_of(k) * SLOT
        dma = []; fr = []
        for u, (p, ks) in enumerate(ent[6*sb:6*sb+6]):
            i = u % 3
            if i == 0: dma.append(("s", f"s_add_u32 m0, s{sMq}, {slot + 3072*(u//3)}"))
            kk = ks % 10
            if ks == 20:
                dma.append(("v", f"v_accvgpr_read_b32 v{vT1}, a{st('Obm' if p == 0 else 'Ob')}"))
                dma.append(("v", f"v_add_u32 v{vT1}, {2048-1024*i}, v{vT1}"))
                dma.append(("m", f"buffer_load_dwordx4 v{vT1}, s[{SO}:{SO+3}], s{sCol[p]} offen offset:{1024*i} lds"))
            elif kk == 9:
                dma.append(("v", f"v_accvgpr_read_b32 v{vT1}, a{st('Oam' if p == 0 else 'Oa')}"))
                dma.append(("v", f"v_add_u32 v{vT1}, {2048-1024*i}, v{vT1}"))
                dma.append(("s", f"s_add_u32 s{sOff}, s{sAo if ks < 10 else sAp}, s{sCol[p]}"))
                dma.append(("m", f"buffer_load_dwordx4 v{vT1}, s[{SO}:{SO+3}], s{sOff} offen offset:{1024*i} lds"))
            else:
                if ks == 0:
                    regs = vA if p == 0 else vS
                    dma.append(("v", f"v_accvgpr_read_b32 v{regs[2]}, a{st('Dm' if p == 0 else 'D')}"))
                    dma.append(("v", f"v_add_u32 v{regs[2]}, s{sCol[p]}, v{regs[2]}"))
                    dma += [("v", f"v_add_u32 v{regs[j]}, {2048-1024*j}, v{regs[2]}") for j in range(2)]
                elif i == 0: dma.append(("n", "s_nop 0"))
                tab = ((sKo, sKo2) if ks < 10 else (sKp, sKp2))[kk % 2]
                v = (vA if p == 0 else vS)[i]
                dma.append(("m", f"buffer_load_dwordx4 v{v}, s[{SD}:{SD+3}], s{tab[kk//2]} offen offset:{1024*i} lds"))
            for tau in range(2 if p == 0 else 4):
                f = (1024*u + 512*(tau//2) + 32*(tau%2), BACC[p] + 8*tau, Hop(ks, 0), Hop(ks, 1), ks == 0, ("B", p, ks, tau))
                if p == 4 and tau >= 2: last_fr[1].append((k,) + f)
                else: fr.append(f)
        stages[k] = dict(dma=dma, fr=fr)
    KEND = KB0 + nBst

    def emit_dma(k):
        for it in stages[k]["dma"]: emit_dma_item(k, it)

    fill = deque(); fill2 = deque(); fill3 = deque(); dmaq = deque(); extq = []; spin_blocks = []; pubs = []; toks = {}
    hooks = {}; ihooks = {}
    def emit_fill(it):
        kind, txt = it[1], it[2]
        if kind == "m": return a.vm(txt)
        if kind == "d": return a.ds(txt)
        if kind == "f": return txt()
        a.i(txt)
    def F(nb, kind, txt, sets=(), space=0): fill.append((nb, kind, txt, list(sets), space))
    def Fm(nb, name, txt, sets=(), space=0):
        def fn(): toks[name] = a.vm(txt)
        fill.append((nb, "f", fn, list(sets), space))
    def defer(L, accset):
        i = 0
        while i < len(L):
            g = [L[i]]; i += 1
            if g[0].startswith("s_cmp") or (i < len(L) and L[i].startswith("?")): g.append(L[i]); i += 1
            fill3.append((g, accset))
    def emit3(drain=False):
        g, _ = fill3.popleft()
        for t in g:
            if t.startswith("?"):
                if drain: a.i(t[1:])
            else: a.i(t)
    def G(nb, kind, txt, space=0): fill2.append((nb, kind, txt, [], space))
    def Gm(nb, name, txt, space=0):
        def fn(): toks[name] = a.vm(txt)
        fill2.append((nb, "f", fn, [], space))
    def poll_check(name, va, vf, soff="0", offs=0):
        a.wait(vm=toks[name])
        a.i(f"v_cmp_ne_u32 vcc, s{sTag}, v{vf}")
        a.i("s_nop 0")
        a.i("s_cmp_lg_u64 vcc, 0")
        a.i(f"s_cbranch_scc1 L_spin_{name}")
        a.label(f"L_back_{name}")
        spin_blocks.append((name, va, vf, soff, offs))
    def stream(frs, dma_after, flush=True, gap=gap, tailnop=True):
        N = len(frs); first_of = {}
        for i, f in enumerate(frs): first_of.setdefault(f[0], i)
        rd = {}; nextbar = [0]; hold_until = [0]; lastd = [-100]; gpf = 3 if len(frs[0]) > 7 else 2
        def rd_half(i, hf):
            k, off = frs[i][0], frs[i][1]
            o = slot_of(k) * SLOT + off; base = vRd[o // (2*SLOT)]; oo = o % (2*SLOT)
            fb = FR + 4*(i % NB) + 2*hf
            rd[i] = a.ds(f"ds_read_b64_tr_b16 a[{fb}:{fb+1}], v{base} offset:{oo + 256*hf}")
        def pre_read(i, cur):
            k = frs[i][0]
            if first_of[k] == i:
                nfl = 0
                while any(kk == k for kk, _ in dmaq):
                    kk, it = dmaq.popleft(); emit_dma_item(kk, it); nfl += 1
                if nfl: print("late flush", nfl, "at", k, file=sys.stderr)
                tr.stage = k; tr(f"w{k}")
                a.wait(vm=dma_tok[k])
                a.i("s_barrier")
                tr(f"b{k}")
                for p in list(pubs):
                    if p[3] and toks.get(p[0]) is not None and toks[p[0]] <= a.vm_done:
                        p[1](); pubs.remove(p); print("pub", p[0], "at barrier", k, file=sys.stderr)
                for kk in dma_after(k):
                    for it in stages[kk]["dma"]: dmaq.append((kk, it))
                if k in hooks: hooks[k](cur)
                nextbar[0] = first_of.get(k + 1, N + D) - D
                return True
            return False
        for i in range(min(D, N)):
            pre_read(i, 0); rd_half(i, 0); rd_half(i, 1)
        a.wait(lg=rd[1])
        gi = 0; lastm = -100
        def other(i):
            nonlocal lastm
            for p in list(pubs):
                if not p[3] and toks.get(p[0]) is not None:
                    if toks[p[0]] <= a.vm_done or (p[2][0] is not None and i >= p[2][0]):
                        print("pub", p[0], "at frag", i, "stage", frs[i][0], "forced" if toks[p[0]] > a.vm_done else "", file=sys.stderr); a.wait(vm=toks[p[0]]); p[1](); pubs.remove(p); return
                    if p[2][0] is None: p[2][0] = i + p[2][1]
            if dmaq:
                kk, it = dmaq[0]
                ok = True
                if it[0] == "n":
                    dmaq.popleft(); kk, it = dmaq[0]
                if it[0] == "h":
                    dmaq.popleft(); hold_until[0] = gi + it[1]; ok = False
                elif it[0] == "m":
                    if kk == "z": ok = gi - lastm >= 2
                    else:
                        g_eff = gap; urgent = False; cnt = 0
                        for k2, it2 in dmaq:
                            if it2[0] != "m": continue
                            cnt += 1
                            if k2 in first_of:
                                dl = gpf * (first_of[k2] - D) - lead
                                if gi + cnt * gap > dl: g_eff = min(g_eff, max(2, (dl - gi) // cnt)); urgent = True
                        ok = gi - lastd[0] >= g_eff and gi - lastm >= 2 and (gi >= hold_until[0] or urgent)
                if ok:
                    dmaq.popleft(); emit_dma_item(kk, it)
                    if isinstance(it[1], str) and it[1].startswith("s_cmp"):
                        kk, it = dmaq.popleft(); emit_dma_item(kk, it)
                    if it[0] == "m": lastm = gi; lastd[0] = gi
                    return
            for q_ in (fill, fill2):
                if q_ and q_[0][0] <= i and (q_[0][4] == 0 or gi - lastm >= q_[0][4]):
                    it = q_.popleft(); emit_fill(it)
                    if it[4]: lastm = gi
                    return
            if fill3: emit3()
        for i in range(N):
            k, off, acc, b0, b1, first, tag = frs[i][:7]
            if first_of[k] == i: astamp_stage(k)
            if trace == (200, 201) and 24 <= k < 33 and i % 8 == 6: tr.stage = 200; tr(f"a{k}"); tr.stage = k
            if trace == (100, 101) and k >= 36 and i % 8 == 2: tr.stage = 100; tr(f"f{i}"); tr.stage = k
            if i in ihooks: ihooks.pop(i)(i)
            if tag in ihooks: ihooks.pop(tag)(i)
            while extq: dmaq.append(extq.pop(0))
            assert rd[i] <= a.lg_done
            fb = FR + 4*(i % NB)
            if first_of[k] + 1 == i and ("S", k) in ihooks: ihooks.pop(("S", k))(i)
            if first:
                nd = 0
                while any(any((x <= acc < x + 32) if isinstance(x, int) else (x[0] <= acc < x[1]) for x in it[3]) for it in fill):
                    emit_fill(fill.popleft()); nd += 1
                while any(x <= acc < x + 32 for _, x in fill3):
                    emit3(True); nd += 1
                if nd: print("drained", nd, "at stage", k, file=sys.stderr); a.i("s_nop 1")
            for t, b in enumerate((b0, b1)):
                d = f"v[{acc+4*t}:{acc+4*t+3}]"
                a.i(f"{MF} {d}, a[{fb}:{fb+3}], {b}, {'0' if first else d}")
                used = False
                if i + D < N:
                    if t == 0: used = pre_read(i + D, i)
                    rd_half(i + D, t)
                if t == 1 and i + 1 < N and rd[i+1] > a.lg_done:
                    a.wait(lg=rd[min(i+wev, N-1)]); used = True
                if not used: other(i)
                gi += 1
            if len(frs[i]) > 7:
                d = f"v[{frs[i][7]}:{frs[i][7]+3}]"
                a.i(f"{MF} {d}, a[{fb}:{fb+3}], a[{ONES}:{ONES+3}], {'0' if first else d}")
                other(i); other(i); gi += 1
            if tag in bpost: bpost[tag](i + 3)
            if (i + 1 == N or frs[i+1][0] != k) and k in post: do_post(post.pop(k), i + 3)
        while dmaq:
            kk, it = dmaq.popleft(); emit_dma_item(kk, it)
        if tailnop or fill: a.i("s_nop 7")
        while fill: emit_fill(fill.popleft())
        while fill2: emit_fill(fill2.popleft())
        if fill3: print("fill3 left", len(fill3), file=sys.stderr)
        while fill3: emit3(True)
    def astamp_stage(k):
        if k == 6: astamp("P:qend")
        if 6 <= k < 33 and k % 3 == 0: astamp(f"A:{k}")
        if k < 6: astamp(f"Q:{k}")
        if k >= 36 and k % 2 == 0: astamp(f"B:{k}")
    def pack4(nb, d, e, sets):
        F(nb, "v", f"v_cvt_pk_bf16_f32 v{d}, v{d}, v{d+1}", sets); F(nb, "v", f"v_cvt_pk_bf16_f32 v{d+1}, v{d+2}, v{d+3}", sets)
        F(nb, "v", f"v_cvt_pk_bf16_f32 v{d+2}, v{e}, v{e+1}", sets); F(nb, "v", f"v_cvt_pk_bf16_f32 v{d+3}, v{e+2}, v{e+3}", sets)
    def flag_store(voff_txts, soff, offs=0):
        for t in voff_txts: a.i(t)
        a.i(f"v_mov_b32 v{q1}, s{sTag}")
        a.vm(f"buffer_store_dword v{q1}, v{q0}, {WS}, {soff} offen offset:{offs} sc1")
    def do_post(p, nb):
        if p[0] == "g" or (p[0] == "h" and len(p[2]) == 1):
            g = p[2] if p[0] == "g" else p[2][0][0]
            for tau in range(p[3] if p[0] == "g" else 2):
                for t in range(2):
                    for r in range(4): F(nb, "v", f"v_mul_f32 v{g+8*tau+4*t+r}, v{RS2[t]}, v{g+8*tau+4*t+r}", p[1])
        if p[0] == "h":
            sets = p[1]
            for (g, u_, ks) in p[2]:
                F(nb, "s", f"s_add_u32 s{sPst}, s{sHst}, {2048*ks}", sets)
                for t in range(2):
                    for c in range(2):
                        for r in range(4):
                            o = 8*c + 4*t + r
                            F(nb, "v", f"v_mul_f32 v{g+o}, v{g+o}, v{u_+o}", sets)
                    pack4(nb, g + 4*t, g + 8 + 4*t, sets)
                    for r in range(4):
                        F(nb, "v", f"v_accvgpr_write_b32 a{H+8*ks+4*t+r}, v{g+4*t+r}", sets)
                    Fm(nb, "h1st" if (ks, t) == (3, 1) else "hst", f"buffer_store_dwordx4 v[{g+4*t}:{g+4*t+3}], v{vL16}, {WS}, s{sPst} offen offset:{1024*t} sc1", sets, 3)
            if p[2][-1][2] == 3:
                pubs.append(("h1st", lambda: flag_store([f"v_accvgpr_read_b32 v{q0}, a{st('hfo')}"], "0", 8), [None, 110], False))
        elif p[0] == "q":
            sets = p[1]
            F(nb, "v", f"v_accvgpr_read_b32 v{q0}, a{st('stq')}", sets)
            for tau in range(7):
                sets = [ACC[tau // 4]]
                if tau == 6: F(nb, "v", f"v_accvgpr_read_b32 v{q0}, a{st('stq2')}", sets)
                F(nb, "s", f"s_add_u32 s{sPst}, s{sQst}, {4096*tau}", sets)
                for t in range(2):
                    b = QACC + 8*tau + 4*t
                    for r in range(4): F(nb, "v", f"v_mul_f32 v{b+r}, v{QSC[t]}, v{b+r}", sets)
                    F(nb, "v", f"v_cvt_pk_bf16_f32 v{b}, v{b}, v{b+1}", sets); F(nb, "v", f"v_cvt_pk_bf16_f32 v{b+1}, v{b+2}, v{b+3}", sets)
                    Fm(nb, "qdone" if (tau, t) == (6, 1) else "qst", f"buffer_store_dwordx2 v[{b}:{b+1}], v{q0}, {WS}, s{sPst} offen offset:{128*t} sc1", sets, 3)
            def pubq():
                a.i(f"s_lshl_b32 s{sT0}, s{sR}, 4"); a.i(f"s_add_u32 s{sT0}, s{sT0}, s{sS}")
                a.i(f"s_lshl_b32 s{sT0}, s{sT0}, 7"); a.i(f"s_add_u32 s{sT0}, s{sT0}, {QF_BASE}")
                flag_store([f"v_mov_b32 v{q0}, 0"], f"s{sT0}")
            pubs.append(("qdone", pubq, [None, 0], True))

    def hook7(cur): toks["tag"] = a.vm(f"buffer_load_dword v207, off, s[{SDBG}:{SDBG+3}], 0 sc1")
    hooks[7] = hook7
    def hook10(cur):
        a.wait(vm=toks["tag"])
        a.label("L_tagchk")
        a.i(f"v_readfirstlane_b32 s{sTag}, v207")
        a.i("s_nop 0")
        a.i(f"s_cmp_eq_u32 s{sTag}, 0")
        a.i("s_cbranch_scc1 L_tagspin")
        a.label("L_tagok")
    hooks[10] = hook10
    DUM = f"a[{HP+76}:{HP+79}]"
    nw = 8 << lg_rpx
    def wid_code():
        return [("s", f"s_and_b32 s{sT3}, s{sR}, {(1 << lg_rpx) - 1}"), ("s", f"s_lshl_b32 s{sT3}, s{sT3}, 1"),
                ("s", f"s_and_b32 s{sT1}, s{sS}, 1"), ("s", f"s_add_u32 s{sT3}, s{sT3}, s{sT1}"),
                ("s", f"s_lshl_b32 s{sT3}, s{sT3}, 2"), ("s", f"s_add_u32 s{sT3}, s{sT3}, s{sW}")]
    def pf1_items():
        L = wid_code()
        L += [("v", f"v_accvgpr_read_b32 v{q2}, a{st('pt')}"), ("m", f"buffer_load_dword a{HP+75}, v{q2}, {WS}, 0 offen sc1")]
        if gupf is True: return L
        per = (18 * 4 + nw - 1) // nw
        L += [("s", f"s_lshr_b32 s{sT0}, s{sT3}, 2"), ("s", f"s_and_b32 s{sT1}, s{sSing}, 0xffffff80")]
        for j in range(per):
            L += [("s", f"s_add_u32 s{sT2}, s{sT0}, {j * (nw // 4)}"), ("s", f"s_mul_i32 s{sT2}, s{sT2}, {32*9216}"),
                  ("s", f"s_add_u32 s{sT2}, s{sT2}, s{sT1}"),
                  ("m", f"buffer_load_dwordx4 {DUM}, v{vA[0]}, s[{SG}:{SG+3}], s{sT2} offen"),
                  ("m", f"buffer_load_dwordx4 {DUM}, v{vA[0]}, s[{SU}:{SU+3}], s{sT2} offen")]
        return L
    def xr_items(q0=q0, q1=q1, q2=q2):
        L = [("v", f"v_bfe_u32 v{q1}, v{vL16}, 4, 4"), ("v", f"v_mul_u32_u24 v{q1}, 1152, v{q1}"), ("v", f"v_lshrrev_b32 v{q0}, 8, v{vL16}"),
             ("v", f"v_lshl_add_u32 v{q2}, v{q0}, 3, v{q1}"),
             ("s", f"s_and_b32 s{sT2}, s{sS}, 1"), ("s", f"s_mul_i32 s{sT0}, s{sT2}, 640"), ("s", f"s_lshl_b32 s{sT1}, s{sI}, 6"),
             ("s", f"s_add_u32 s{sT0}, s{sT0}, s{sT1}"), ("s", f"s_add_u32 s{sT0}, s{sT0}, s{sXrow}")]
        for t in range(2):
            if t: L.append(("s", f"s_add_u32 s{sT0}, s{sT0}, {16*1152}"))
            for c in range(2):
                L.append(("m", f"buffer_load_dwordx2 a[{XR+4*t+2*c}:{XR+4*t+2*c+1}], v{q2}, s[{SX}:{SX+3}], s{sT0} offen offset:{32*c}"))
        L += [("v", f"v_and_b32 v{q0}, 1, v{q0}"), ("v", f"v_lshl_add_u32 v{q2}, v{q0}, 5, v{q1}"),
              ("s", f"s_lshr_b32 s{sT0}, s{sI}, 2"), ("s", f"s_mul_i32 s{sT0}, s{sT0}, {16*1152}"), ("s", f"s_and_b32 s{sT1}, s{sI}, 3"),
              ("s", f"s_lshl_b32 s{sT1}, s{sT1}, 3"), ("s", f"s_add_u32 s{sT0}, s{sT0}, s{sT1}"), ("s", f"s_lshl_b32 s{sT2}, s{sT2}, 6"),
              ("s", f"s_add_u32 s{sT0}, s{sT0}, s{sT2}"), ("s", f"s_add_u32 s{sT0}, s{sT0}, s{sXrow}"),
              ("m", f"buffer_load_dwordx2 a[{XR+8}:{XR+9}], v{q2}, s[{SX}:{SX+3}], s{sT0} offen offset:512")]
        return L
    def gu_items():
        assert lg_rpx == 4
        L = [("s", f"s_and_b32 s{sT1}, s{sS}, 1"), ("s", f"s_mul_i32 s{sT2}, s{sI}, 1152"),
             ("s", f"s_mul_i32 s{sT0}, s{sR}, {32*9216}"), ("s", f"s_add_u32 s{sT0}, s{sT0}, s{sT2}"),
             ("s", f"s_lshl_b32 s{sT3}, s{sT1}, 7"), ("s", f"s_add_u32 s{sT0}, s{sT0}, s{sT3}")]
        for j in range(5):
            for sr in ((SU,) if gupf == 'U' else (SG, SU)):
                L.append(("m", f"buffer_load_dwordx4 {DUM}, v{vA[0]}, s[{sr}:{sr+3}], s{sT0} offen offset:{256*j}"))
        L += [("s", f"s_add_u32 s{sT1}, s{sT1}, 16"), ("s", f"s_mul_i32 s{sT1}, s{sT1}, {32*9216}"), ("s", f"s_add_u32 s{sT1}, s{sT1}, s{sT2}"),
              ("s", f"s_min_u32 s{sT3}, s{sR}, 8"), ("s", f"s_lshl_b32 s{sT3}, s{sT3}, 7"), ("s", f"s_add_u32 s{sT1}, s{sT1}, s{sT3}")]
        for sr in ((SU,) if gupf == 'U' else (SG, SU)):
            L.append(("m", f"buffer_load_dwordx4 {DUM}, v{vA[0]}, s[{sr}:{sr+3}], s{sT1} offen"))
        return L
    def pf2_items():
        L = []
        for j in range((81 + nw - 1) // nw):
            L += [("s", f"s_add_u32 s{sT2}, s{sT3}, {j * nw + 2}"), ("s", f"s_min_u32 s{sT2}, s{sT2}, 82"),
                  ("s", f"s_lshl_b32 s{sT2}, s{sT2}, 10"), ("s", f"s_mul_i32 s{sT1}, s{sI}, {72*1152}"), ("s", f"s_add_u32 s{sT2}, s{sT2}, s{sT1}"),
                  ("m", f"buffer_load_dwordx4 {DUM}, v{vL16}, s[{SO}:{SO+3}], s{sT2} offen")]
        per_wave = 576 * 1152 // nw
        L += [("s", f"s_mul_i32 s{sT0}, s{sT3}, {per_wave}"), ("s", f"s_mul_i32 s{sT1}, s{sI}, {576*1152}"),
              ("s", f"s_add_u32 s{sT0}, s{sT0}, s{sT1}"), ("s", f"s_add_u32 s{sT0}, s{sT0}, 2048")]
        for j in range((per_wave + 1023) // 1024):
            if j % 4 == 0 and j: L.append(("s", f"s_add_u32 s{sT0}, s{sT0}, 4096"))
            L.append(("m", f"buffer_load_dwordx4 {DUM}, v{vL16}, s[{SD}:{SD+3}], s{sT0} offen offset:{1024*(j%4)}"))
        return L
    def hook_poll_issue(cur):
        assert not any(kk == "z" and it[0] != "h" for kk, it in dmaq)
        a.i(f"v_accvgpr_read_b32 v{q0}, a{st('qf')}")
        toks["kv"] = a.vm(f"buffer_load_dword v{q1}, v{q0}, {WS}, 0 offen sc1")
    def hook_poll_check(cur):
        poll_check("kv", q0, q1)
        for hd, nm in enumerate(("qA", "qB")):
            G(cur, "v", f"v_accvgpr_read_b32 v{q2}, a{st(nm)}")
            for t in range(2):
                for hf in range(2):
                    d = aQ + 8*hd + 4*t + 2*hf
                    Gm(cur, "qld", f"buffer_load_dwordx2 a[{d}:{d+1}], v{q2}, {WS}, s{sQld} offen offset:{128*t + 1024*hf} sc1", 3)
    hooks[19] = hook_poll_issue
    hooks[21] = hook_poll_check
    def h1_issue(cur):
        assert not any(p[0] == "h1st" for p in pubs) and not fill2
        a.i(f"v_accvgpr_read_b32 v{q0}, a{st('hfp')}")
        toks["h1"] = a.vm(f"buffer_load_dword v{q1}, v{q0}, {WS}, 0 offen offset:8 sc1")
    def h1_check(cur):
        poll_check("h1", q0, q1, "0", 8)
        for ks in range(4):
            for t in range(2):
                o = 2048*ks + 1024*t; d = HP + 8*ks + 4*t
                if o % 4096 == 0: G(cur, "s", f"s_add_u32 s{sT3}, s{sHld}, {o}")
                G(cur, "m", f"buffer_load_dwordx4 a[{d}:{d+3}], v{vL16}, {WS}, s{sT3} offen offset:{o % 4096} sc1", 5)
    hooks[26] = h1_issue
    hooks[28] = h1_check
    def hook_pf(cur):
        assert not any(p[0] == "qdone" for p in pubs)
        L = [("z", it) for it in pf1_items() + pf2_items() + (xr_items() if xrat == 'A' else [])] + [("z", ("h", hold))]
        for it in reversed(L): dmaq.appendleft(it)
    hooks[pfk] = hook_pf
    def kv_dma(cur, mat):
        base = TBASE + mat*10*GS; go = mat*144*1024
        L = []
        L.append(("s", f"s_mul_i32 s{sT2}, s{sW}, {GS}"))
        L.append(("s", f"s_add_u32 m0, s{sT2}, {base}"))
        for r2 in range(3):
            L.append(("s", f"s_add_u32 s{sT0}, s{sKV[r2]}, {go}"))
            L.append(("m", f"buffer_load_dwordx4 v{vL16}, {WS}, s{sT0} offen offset:{1024*r2} sc1 lds"))
        L.append(("s", f"s_min_u32 s{sT1}, s{sT2}, {GS}"))
        L.append(("s", f"s_add_u32 s{sT1}, s{sT1}, s{sT2}"))
        L.append(("s", f"s_add_u32 m0, s{sT1}, {base + 4*GS}"))
        for r2 in range(3):
            L.append(("s", f"s_add_u32 s{sT0}, s{sKV[r2]}, {go + 4096}"))
            L.append(("m", f"buffer_load_dwordx4 v{vL16}, {WS}, s{sT0} offen offset:{1024*r2} sc1 lds"))
        L.append(("s", f"s_cmp_eq_u32 s{sW}, 1")); L.append(("s", f"s_cselect_b32 s{sT0}, s{sKV[1]}, s{sKV[2]}"))
        L.append(("s", f"s_cmp_eq_u32 s{sW}, 0")); L.append(("s", f"s_cselect_b32 s{sT0}, s{sKV[0]}, s{sT0}"))
        L.append(("s", f"s_min_u32 s{sT1}, s{sW}, 2")); L.append(("s", f"s_sub_u32 s{sT2}, s{sT1}, s{sW}"))
        L.append(("s", f"s_lshl_b32 s{sT2}, s{sT2}, 10")); L.append(("s", f"s_add_u32 s{sT0}, s{sT0}, s{sT2}"))
        L.append(("s", f"s_lshl_b32 s{sT1}, s{sT1}, 10"))
        L.append(("s", f"s_add_u32 m0, s{sT1}, {base + 9*GS}"))
        L.append(("s", f"s_add_u32 s{sT0}, s{sT0}, {go + 8192}"))
        L.append(("m", f"buffer_load_dwordx4 v{vL16}, {WS}, s{sT0} offen sc1 lds"))
        L.append(("v", f"v_add_u32 v{q2}, s{sT1}, v{vL16}"))
        d = KVS + 4*mat
        if mat == 0:
            L.append(("s", f"s_cmp_ge_u32 s{sT0}, {OOB}")); L.append(("s", f"s_cselect_b32 s{sT0}, 0xf149, 0"))
            L += [("v", f"v_accvgpr_write_b32 a{d}, s{sT0}"), ("v", f"v_accvgpr_write_b32 a{d+1}, 0"),
                  ("v", f"v_accvgpr_write_b32 a{d+2}, s{sT0}"), ("v", f"v_accvgpr_write_b32 a{d+3}, 0")]
        else:
            L += [("v", f"v_accvgpr_write_b32 a{d+r}, s{sC0}") for r in range(4)]
        L.append(("v", f"v_add_u32 v{q2}, {base + 5*GS}, v{q2}"))
        L.append(("d", f"ds_write_b128 v{q2}, a[{d}:{d+3}]"))
        return L
    stages[34] = dict(dma=kv_dma(0, 0), fr=[]); stages[35] = dict(dma=kv_dma(0, 1), fr=[])
    assert nraw == 0
    a.i(f"s_mov_b32 s{sC0}, 0x3f803f80"); a.i(f"s_mov_b32 s{sC1}, 0x3f80")
    RS2 = [vT0, vT1]; QSC = [q1, q2]
    SA = [234, 235, 236, 237]
    PR = [230, 238]; u = [160, 161]; TP = [164 + 2*i for i in range(4)]
    nx = [x0]; xrd = {}
    def xnext():
        if nx[0] < 18:
            if nx[0] >= NXU:
                if (nx[0] - NXU) not in xrd: return
                a.wait(lg=xrd[nx[0] - NXU])
            xdma(nx[0]); nx[0] += 1
    NHOP = 4
    def hop(h):
        def fn():
            if not iwarm: return
            a.i("s_mov_b64 exec, 0")
            for w in range(3):
                a.i(f"s_cmp_eq_u32 s{sW}, {w}"); a.i(f"s_cbranch_scc1 L_w{4*h+w}")
            a.i(f"s_branch L_w{4*h+3}")
            a.label(f"L_wret{h}")
            a.i("s_mov_b64 exec, -1")
        return fn
    def xread(n):
        t, ch = n // 9, n % 9
        while nx[0] <= n: xnext()
        tr(f"x{n}")
        a.wait(vm=dma_tok[("x", n)])
        tr(f"y{n}")
        for Sb in range(2):
            xrd[n] = a.ds(f"ds_read_b128 {X(2*ch + Sb, t)}, v{vXr[Sb]} offset:{2048*(n % NXU)}")
    def stats(n):
        t, ch = n // 9, n % 9
        a.wait(lg=xrd[n])
        for Sb in range(2):
            for i in range(4):
                x = XN + 8*(2*ch + Sb) + 4*t + i
                c1 = "0" if (ch == 0 and Sb == 0 and i < 2) else f"v{SA[i%2]}"
                c2 = "0" if (ch == 0 and Sb == 0 and i < 2) else f"v{SA[2+i%2]}"
                a.i(f"v_dot2_f32_bf16 v{SA[i%2]}, v{x}, s{sC0}, {c1}")
                a.i(f"v_dot2_f32_bf16 v{SA[2+i%2]}, v{x}, v{x}, {c2}")
    inv = 1.0/576.0
    def finstats(t):
        m, q = SA[0], SA[2]; rs, nm = PR[t], PR[t] + 1
        a.i("s_nop 2")
        a.i(f"v_add_f32 v{m}, v{m}, v{SA[1]}"); a.i(f"v_add_f32 v{q}, v{q}, v{SA[3]}")
        for sw in ("v_permlane32_swap_b32", "v_permlane16_swap_b32"):
            a.i(f"v_mov_b32 v{u[0]}, v{m}"); a.i(f"v_mov_b32 v{u[1]}, v{q}")
            a.i("s_nop 1")
            a.i(f"{sw} v{m}, v{u[0]}"); a.i(f"{sw} v{q}, v{u[1]}")
            a.i("s_nop 0")
            a.i(f"v_add_f32 v{m}, v{m}, v{u[0]}"); a.i(f"v_add_f32 v{q}, v{q}, v{u[1]}")
        def rb(r): a.i(f"v_cvt_pk_bf16_f32 v{r}, v{r}, v{r}"); a.i(f"v_lshlrev_b32 v{r}, 16, v{r}")
        a.i(f"v_mul_f32 v{m}, {f2u(inv)}, v{m}"); a.i(f"v_mul_f32 v{q}, {f2u(inv)}, v{q}")
        a.i(f"v_fma_f32 v{q}, -v{m}, v{m}, v{q}"); a.i(f"v_max_f32 v{q}, 0, v{q}")
        rb(q); a.i(f"v_add_f32 v{q}, {f2u(1e-5)}, v{q}"); rb(q)
        a.i(f"v_sqrt_f32 v{q}, v{q}"); rb(m); rb(q)
        a.i(f"v_rcp_f32 v{rs}, v{q}"); a.i(f"v_sub_f32 v{nm}, 0, v{m}")
        a.i(f"v_mul_f32 v{RS2[t]}, v{rs}, v{rs}"); a.i(f"v_mul_f32 v{QSC[t]}, {f2u(QG)}, v{rs}")
    def norm(S, t):
        for i in range(4):
            x = XN + 8*S + 4*t + i; tp = TP[i]
            a.i(f"v_dot2_f32_bf16 v{tp}, v{x}, s{sC1}, v{PR[t]+1}"); a.i(f"v_dot2_f32_bf16 v{tp+1}, v{x}, s{sHi}, v{PR[t]+1}")
        for i in range(4):
            x = XN + 8*S + 4*t + i; tp = TP[i]
            if i == 2: pass
            a.i(f"v_cvt_pk_bf16_f32 v{x}, v{tp}, v{tp+1}")
    sHi = 47
    a.i(f"s_mov_b32 s{sHi}, 0x3f800000")
    tr.stage = -1
    if trace and trace[0] < 0: a.i("s_mov_b32 s48, s53")
    su_early()
    if trace and trace[0] < 0:
        a.i("s_waitcnt lgkmcnt(0)"); a.i(f"v_writelane_b32 v{vLane}, s48, 0"); a.i(f"v_writelane_b32 v{vLane}, s54, 1"); trl.extend(["entry", "karg"])
    work = {hopat[h]: hop(h) for h in range(NHOP)}
    for n in range(9):
        if n in work: work.pop(n)()
        xread(n)
        xnext()
        if n < xfast: xnext()
        if n: stats(n - 1)
    pre = list(range(lnpre))
    vq_ = deque([(kk, it) for kk in pre for it in stages[kk]["dma"]] + ([("z", it) for it in gu_items()] if gupf else []))
    if gupf: dmaq.append(("z", ("h", hold0)))
    def vside():
        while vq_:
            kk, it = vq_.popleft(); emit_dma_item(kk, it)
            if it[0] == "m": break
    su_cas()
    stats(8); finstats(0)
    for n in range(9, 18):
        if n in work: work.pop(n)()
        xread(n)
        xnext()
        if n >= w0at: vside(); vside()
        norm(2*(n-9), 0); norm(2*(n-9)+1, 0)
        stats(n)
    assert not work
    astamp("P:stats")
    finstats(1)
    for S in range(18):
        norm(S, 1)
        if vq_ and (vq_[0][0] != "z" or S >= gu_at): vside()
    while vq_: vside()
    astamp("P:ln")
    if nraw == 6: do_post(("q", [ACC[0], ACC[1]]), 0)
    else: post[5] = ("q", [ACC[0], ACC[1]])
    defer(d_q(208) + d_h(208) + d_B(208), 208)
    def addhook(k, fn):
        old = hooks.get(k)
        hooks[k] = (lambda cur: (old(cur), fn(cur))) if old else fn
    def at_stage(k, L, accset):
        def f(i):
            assert not fill or True
            defer(L, accset)
        ihooks[("S", k)] = f
    at_stage(9, d_flags(200), ACC[1])
    at_stage(12, d_rows(0), -100)
    at_stage(15, d_T1(ACC[0]), ACC[0])
    at_stage(21, d_T2(ACC[2]), ACC[2])
    at_stage(24, d_col(0), -100)
    QO = 0; MFi = 16; MLa = 20; aKA, aKB, aV0, aV1 = 24, 25, 26, 27; w0, w1, w2, w3 = 28, 29, 30, 31
    def d_Tsetup():
        L = [f"v_accvgpr_read_b32 v{r}, a{st(nm)}" for nm, r in (("KA", aKA), ("KB", aKB), ("V0", aV0), ("V1", aV1))]
        for r in range(4): L += [f"v_accvgpr_read_b32 v{MFi+r}, a{st('mf')+r}", f"v_accvgpr_read_b32 v{MLa+r}, a{st('ml')+r}"]
        L += [f"v_lshrrev_b32 v{w0}, 8, v{vL16}", f"v_add_u32 v{w1}, -2, v{w0}", f"v_ashrrev_i32 v{w1}, 31, v{w1}",
              f"v_add_u32 v{w2}, -3, v{w0}", f"v_ashrrev_i32 v{w2}, 31, v{w2}", f"v_xor_b32 v{w3}, v{w1}, v{w2}", f"v_and_b32 v{w3}, 0x3f80, v{w3}"]
        for hd in range(2):
            for t in range(2):
                b = QO + 8*hd + 4*t
                L += [f"v_accvgpr_read_b32 v{b+r}, a{aQ+8*hd+4*t+r}" for r in range(4)]
                L += [f"v_and_b32 v{b}, v{w1 if hd else w2}, v{b}", f"v_and_b32 v{b+1}, v{w2 if hd else w1}, v{b+1}",
                      f"v_and_or_b32 v{b+2}, v{b+2}, v{w1}, v{w3}", f"v_and_b32 v{b+3}, v{w1}, v{b+3}"]
        return L
    def f31(i):
        assert not fill3
        assert toks["qld"] <= a.vm_done
        defer(d_Tsetup(), -100)
    ihooks[("S", 31)] = f31
    todo = [kk for kk in range(nraw, 33) if kk not in dma_tok]
    def dma_after_A(k):
        out = []
        while todo and todo[0] <= k + 4:
            kk = todo[0]
            prev = [x for x in range(nraw, kk) if slot_of(x) == slot_of(kk)]
            if prev and max(prev) > k - 2: break
            out.append(todo.pop(0))
        if k == kvat[0]: out.append(34)
        if k == kvat[1]: out.append(35)
        if k == 31: out.append(36)
        if k == 32: out.append(37)
        return out
    stream([(k,) + f for k in range(nraw, 33) for f in stages[k]["fr"]], dma_after_A)
    assert not todo
    astamp("P:aend"); astamp("A:end"); astamp("T:0")

    tr.stage = 200; tr("aend")
    a.wait(vm=max(dma_tok[34], dma_tok[35]), lg=a.lg_issued)
    a.i("s_barrier")
    SS = 32; OA = 208
    mx = [176, 178]; nmx = [180, 182]
    def Sr(t, kt): return SS + 72*t + 4*kt
    side = deque()
    def side_group(kk, items):
        cur = []
        for it in items:
            cur.append(it)
            if it[0] == "m":
                side.append(lambda kk=kk, cur=cur: [emit_dma_item(kk, x) for x in cur]); cur = []
        assert not cur
    side_group(38, stages[38]["dma"])
    if xrat == 'T': side_group("z", xr_items(196, 197, 198))
    side_group(39, stages[39]["dma"])
    fbn = [0]; NFB = [8]
    def nextfb():
        fb = FR + 4*(fbn[0] % NFB[0]); fbn[0] += 1; return fb
    def rd_k(hd, kt, lazy=None):
        fb = nextfb(); v = aKB if hd else aKA
        o = [f"ds_read_b64 a[{fb}:{fb+1}], v{v} offset:{128*kt}", f"ds_read_b64 a[{fb+2}:{fb+3}], v{v} offset:{128*kt + GS}"]
        if lazy is not None: lazy += o; return fb, None
        a.ds(o[0]); return fb, a.ds(o[1])
    def rd_v(hd, kap, tile, lazy):
        fb = nextfb(); v = aV1 if tile else aV0; o = 256*kap + (6*GS if (hd and not tile) else 0)
        lazy += [f"ds_read_b64_tr_b16 a[{fb}:{fb+1}], v{v} offset:{o}", f"ds_read_b64_tr_b16 a[{fb+2}:{fb+3}], v{v} offset:{o+128}"]
        return fb, None
    def qk_ops(hd, kt, fr):
        fb, tk = fr; o = []
        for t in range(2):
            j = kt - t
            if not 0 <= j <= 16: continue
            c = f"v[{MFi}:{MFi+3}]" if j == 0 else (f"v[{MLa}:{MLa+3}]" if j == 16 else "0")
            d = Sr(t, kt); b = QO + 8*hd + 4*t
            o.append((tk, f"{MF} v[{d}:{d+3}], a[{fb}:{fb+3}], v[{b}:{b+3}], {c}"))
        return o
    def max_ops(kt):
        o = []
        for t in range(2):
            j = kt - t
            if not 0 <= j <= 16: continue
            b = Sr(t, kt); m = mx[t]
            if j == 0:
                o.append(f"v_max_f32 v{m}, v{b}, v{b+1}"); o.append(f"v_max_f32 v{m+1}, v{b+2}, v{b+3}")
            else:
                o.append(f"v_max3_f32 v{m}, v{b}, v{b+1}, v{m}"); o.append(f"v_max3_f32 v{m+1}, v{b+2}, v{b+3}, v{m+1}")
        return o
    def finmax():
        for t in range(2): a.i(f"v_max_f32 v{mx[t]}, v{mx[t]}, v{mx[t]+1}")
        for sw in ("v_permlane32_swap_b32", "v_permlane16_swap_b32"):
            for t in range(2): a.i(f"v_mov_b32 v{mx[t]+1}, v{mx[t]}")
            a.i("s_nop 1")
            for t in range(2): a.i(f"{sw} v{mx[t]}, v{mx[t]+1}")
            a.i("s_nop 0")
            for t in range(2): a.i(f"v_max_f32 v{mx[t]}, v{mx[t]}, v{mx[t]+1}")
        for t in range(2): a.i(f"v_mul_f32 v{nmx[t]+1}, -1.0, v{mx[t]}")
    def exp_ops(kap):
        o1, o2, o3 = [], [], []
        for t in range(2):
            d = Sr(t, 2*kap)
            for hf in range(2):
                kt = 2*kap + hf; b = Sr(t, kt)
                if 0 <= kt - t <= 16:
                    for r in (0, 2): o1.append(f"v_pk_fma_f32 v[{b+r}:{b+r+1}], v[{b+r}:{b+r+1}], v[{nmx[t]}:{nmx[t]+1}], v[{nmx[t]}:{nmx[t]+1}] op_sel:[0,0,1] op_sel_hi:[1,0,1]")
                    for r in range(4): o2.append(f"v_exp_f32 v{b+r}, v{b+r}")
                    o3.append(f"v_cvt_pk_bf16_f32 v{d+2*hf}, v{b}, v{b+1}"); o3.append(f"v_cvt_pk_bf16_f32 v{d+2*hf+1}, v{b+2}, v{b+3}")
                else:
                    o3.append(f"v_mov_b32 v{d+2*hf}, 0"); o3.append(f"v_mov_b32 v{d+2*hf+1}, 0")
        return o1, o2 + o3
    def pv_ops(hd, kap, frs):
        o = []
        for tile in range(2):
            fb, tk = frs[tile]
            for t in range(2):
                d = OA + 16*hd + 8*t + 4*tile; b = Sr(t, 2*kap)
                o.append((tk, f"{MF} v[{d}:{d+3}], a[{fb}:{fb+3}], v[{b}:{b+3}], {'0' if kap == 0 else f'v[{d}:{d+3}]'}"))
        return o
    fbtok = {}
    def dsr(txt):
        tk = a.ds(txt); fbtok[int(re.search(r"a\[(\d+):", txt).group(1)) & ~3] = tk
    def merge(valu, mfs, lead=2, tailgap=1, reads=(), nside=3, lazywait=False):
        n = len(valu); m = len(mfs); pos = {}; reads = list(reads)
        if not lazywait: a.wait(lg=a.lg_issued)
        need = {txt: fbtok.get(int(re.search(r", a\[(\d+):", txt).group(1)), 0) for _, txt in mfs}
        order = [txt for _, txt in mfs]
        while len(reads) > m: dsr(reads.pop(0))
        for j in range(m): pos.setdefault(lead + (j * max(n - lead - tailgap, 1)) // max(m, 1), []).append(mfs[j])
        cnt = 0
        def one(txt):
            nonlocal cnt
            if lazywait and need[txt] > a.lg_done:
                j = order.index(txt); a.wait(lg=max(need[x] for x in order[j:j+4]))
            a.i(txt)
            if reads: dsr(reads.pop(0))
            cnt += 1
            if side and cnt % nside == 0: side.popleft()()
        for i, v in enumerate(valu):
            for (tk, txt) in pos.pop(i, []): one(txt)
            a.i(v)
        for kq in sorted(pos):
            for (tk, txt) in pos[kq]: one(txt)
    def slowT():
        for t in range(2): a.i(f"v_mov_b32 v{nmx[t]}, 1.0")
        for hd in range(2):
            kf = {}
            for kt in range(6): kf[kt] = rd_k(hd, kt)
            for kt in range(18):
                lz = []
                if kt + 6 < 18: fbx, _ = rd_k(hd, kt+6, lz)
                mo = max_ops(kt-3) if kt >= 3 else []
                for (tk, txt) in qk_ops(hd, kt, kf[kt]):
                    a.wait(lg=tk); a.i(txt)
                    if lz: tkx = a.ds(lz.pop(0))
                while lz: tkx = a.ds(lz.pop(0))
                if kt + 6 < 18: kf[kt+6] = (fbx, tkx)
                a.i("s_nop 1")
                for t in mo: a.i(t)
            a.i("s_nop 7")
            for kt in (15, 16, 17):
                for t in max_ops(kt): a.i(t)
            finmax()
            pend = []
            for kap in range(9):
                lz = []
                vf = [rd_v(hd, kap, 0, lz), rd_v(hd, kap, 1, lz)]
                o1, v = exp_ops(kap)
                for t in o1: a.i(t)
                merge(v, pend, lead=0, tailgap=5, reads=lz)
                pend = pv_ops(hd, kap, vf)
            a.i("s_nop 1")
            merge([], pend)
        a.i("s_nop 7")
    def hp_loads():
        for ks in range(4, 9):
            for t in range(2):
                def ld(ks=ks, t=t):
                    o = 2048*ks + 1024*t
                    if o % 4096 == 0: a.i(f"s_add_u32 s{sPst}, s{sHld}, {o}")
                    d = HP + 8*ks + 4*t
                    toks["hld"] = a.vm(f"buffer_load_dwordx4 a[{d}:{d+3}], v{vL16}, {WS}, s{sPst} offen offset:{o % 4096} sc1")
                side.append(ld)
    seq = [(hd, kap) for kap in range(9) for hd in range(2)]
    cur_n = [None]
    Sr_slow = Sr
    def Sr(t, kt):
        if cur_n[0] is None: return Sr_slow(t, kt)
        return SS + 16*(cur_n[0] % 3) + 8*t + 4*(kt % 2)
    def kreads(n, lz):
        hd, kap = seq[n]; return [rd_k(hd, 2*kap, lz), rd_k(hd, 2*kap+1, lz)]
    def qks(n, kf):
        hd, kap = seq[n]; cur_n[0] = n
        r = qk_ops(hd, 2*kap, kf[0]) + qk_ops(hd, 2*kap+1, kf[1]); cur_n[0] = None
        return r
    NFB[0] = 6; V1B = [FR + 24, FR + 28]
    lz = []; k0 = kreads(0, lz); nextfb(); nextfb(); k1 = kreads(1, lz)
    for t in lz: dsr(t)
    a.wait(lg=a.lg_issued - 4)
    for (_, txt) in qks(0, k0): a.i(txt)
    a.i("s_nop 5")
    knext = k1; pv = []
    for n in range(18):
        hd, kap = seq[n]
        tr.stage = 200; tr(f"t{n}")
        mf = (qks(n+1, knext) if n + 1 < 18 else []) + pv
        lz = []; lz2 = []
        v0f = rd_v(hd, kap, 0, lz2)
        if hd == 0:
            v1f = (V1B[kap % 2], None)
            lz2 += [f"ds_read_b64_tr_b16 a[{v1f[0]}:{v1f[0]+1}], v{aV1} offset:{256*kap}", f"ds_read_b64_tr_b16 a[{v1f[0]+2}:{v1f[0]+3}], v{aV1} offset:{256*kap+128}"]
        if n + 2 < 18: knext = kreads(n + 2, lz)
        cur_n[0] = n
        _, v = exp_ops(kap)
        pvn = pv_ops(hd, kap, [v0f, v1f])
        cur_n[0] = None
        merge(v, mf, lead=0, tailgap=tg, reads=lz + lz2, nside=4, lazywait=True)
        pv = pvn
        if n == th[0]:
            a.wait(vm=toks["hst"])
            flag_store([f"v_accvgpr_read_b32 v{q0}, a{st('hfo')}"], "0", 0)
        if n == th[1]:
            a.i(f"v_accvgpr_read_b32 v{q0}, a{st('hfp')}")
            toks["hp"] = a.vm(f"buffer_load_dword v{q1}, v{q0}, {WS}, 0 offen sc1")
        if n == th[2]:
            poll_check("hp", q0, q1); hp_loads()
    a.i("s_nop 1")
    merge([], pv)
    tr("tl")
    nleft = len(side)
    while side: side.popleft()()
    print("T side left", nleft, file=sys.stderr)
    a.i("s_nop 7")
    L = [0, 1, 2, 3] if False else [84, 85, 86, 87]; L2 = [88, 89, 90, 91]; BT = 92
    idx = [(hd, t) for hd in range(2) for t in range(2)]
    def getl():
        for n, (hd, t) in enumerate(idx):
            d = OA + 16*hd + 8*t + 4
            a.i(f"v_mov_b32 v{L[n]}, v{d}"); a.i(f"v_mov_b32 v{L2[n]}, v{d}")
        a.i("s_nop 1")
        for n in range(4): a.i(f"v_permlane16_swap_b32 v{L2[n]}, v{L[n]}")
        a.i("s_nop 0")
    getl()
    a.i(f"v_min3_f32 v{L2[0]}, v{L[0]}, v{L[1]}, v{L[2]}"); a.i(f"v_add_f32 v{L2[1]}, v{L[0]}, v{L[1]}"); a.i(f"v_add_f32 v{L2[2]}, v{L[2]}, v{L[3]}")
    a.i(f"v_min_f32 v{L2[0]}, v{L2[0]}, v{L[3]}"); a.i(f"v_add_f32 v{L2[1]}, v{L2[1]}, v{L2[2]}")
    a.i(f"v_cmp_nle_f32 vcc, {f2u(2.0**-40)}, v{L2[0]}")
    a.i(f"s_mov_b64 s[{sT1}:{sT1+1}], vcc")
    a.i(f"v_cmp_nge_f32 vcc, {f2u(2.0**40 if not forceslow else 0.0)}, v{L2[1]}")
    a.i("s_nop 0")
    a.i(f"s_or_b64 vcc, vcc, s[{sT1}:{sT1+1}]")
    a.i("s_cbranch_scc1 L_Tslow")
    a.label("L_Tnorm")
    main_lines = a.lines; a.lines = []
    assert a.lg_done == a.lg_issued
    NFB[0] = 8
    a.label("L_Tslow"); slowT(); getl(); a.i("s_branch L_Tnorm")
    assert a.lg_done == a.lg_issued
    slow_lines = a.lines; a.lines = main_lines
    E = []; osets = [OA]
    for n in range(4): E.append(f"v_mul_f32 v{L[n]}, {f2u(QG)}, v{L[n]}")
    for n in range(4): E.append(f"v_rcp_f32 v{L[n]}, v{L[n]}")
    E.append(f"v_add_u32 v{w1}, -1, v{w0}"); E.append(f"v_ashrrev_i32 v{w1}, 31, v{w1}")
    E.append(f"s_add_u32 s{sPst}, s{sHst}, {18*1024}")
    for t in range(2):
        for hd in range(2):
            d = OA + 16*hd + 8*t; n = 2*hd + t
            for r in list(range(4)) + ([6, 7] if hd else [4, 5]): E.append(f"v_mul_f32 v{d+r}, v{L[n]}, v{d+r}")
        d = OA + 8*t; e = OA + 16 + 8*t
        E += [f"v_cvt_pk_bf16_f32 v{BT+2*t}, v{d+4}, v{d+5}", f"v_cvt_pk_bf16_f32 v{BT+2*t+1}, v{e+6}, v{e+7}",
              f"v_cvt_pk_bf16_f32 v{d}, v{d}, v{d+1}", f"v_cvt_pk_bf16_f32 v{d+1}, v{d+2}, v{d+3}",
              f"v_cvt_pk_bf16_f32 v{d+2}, v{e}, v{e+1}", f"v_cvt_pk_bf16_f32 v{d+3}, v{e+2}, v{e+3}",
              f"v_and_b32 v{BT+2*t}, v{w1}, v{BT+2*t}", f"v_and_b32 v{BT+2*t+1}, v{w1}, v{BT+2*t+1}",
              f"buffer_store_dwordx4 v[{d}:{d+3}], v{vL16}, {WS}, s{sPst} offen offset:{1024*t} sc1"]
    E.append(f"buffer_store_dwordx4 v[{BT}:{BT+3}], v{vL16}, {WS}, s{sPst} offen offset:2048 sc1")
    for t in range(2):
        d = OA + 8*t
        E += [f"v_accvgpr_write_b32 a{H+72+4*t+r}, v{d+r}" for r in range(4)]
        E += [f"v_accvgpr_write_b32 a{HB+4*t}, v{BT+2*t}", f"v_accvgpr_write_b32 a{HB+4*t+1}, v{BT+2*t+1}"]
    for n_, t in enumerate(E):
        if n_ < oinl:
            if t.startswith("buffer"): toks["ost" if "2048" in t else "ostx"] = a.vm(t)
            else: a.i(t)
        elif t.startswith("buffer"): Fm(0, "ost" if "offset:2048" in t else "ostx", t, osets)
        else: F(0, "v", t, osets)
    def own_alpha(i):
        nd = 0
        while fill: emit_fill(fill.popleft()); nd += 1
        if nd: print("own alpha drain", nd, file=sys.stderr); a.i("s_nop 1")
    ihooks[("B", 1, 9, 0)] = own_alpha
    pubs.append(("ost", lambda: flag_store([f"v_accvgpr_read_b32 v{q0}, a{st('hfo')}"], "0", 4), [None, od], False))
    tr("tend")
    astamp("P:tend"); astamp("T:end")

    PL = 0
    SQ = 96
    def pstore(p, halves):
        def fn(nb):
            acc = BACC[p]; sets = [(acc, acc + 16*len(halves))]
            for hf in halves:
                if p == 0:
                    F(nb, "s", f"s_add_u32 s{sPst}, s{sHld}, {8*2048}", sets)
                else:
                    F(nb, "s", f"s_lshl_b32 s{sPst}, s{sCol[p]}, 5", sets); F(nb, "s", f"s_add_u32 s{sPst}, s{sPst}, s{sPo[hf]}", sets)
                for t in range(2):
                    d = acc + 16*hf + 4*t
                    pack4(nb, d, d + 8, sets)
                    last = (hf == halves[-1] and t == 1)
                    Fm(nb, f"pst{p}" if last else "pstx", f"buffer_store_dwordx4 v[{d}:{d+3}], v{vL16}, {WS}, s{sPst} offen offset:{1024*t} sc1", sets, 2)
            def pub():
                if p == 0: a.i(f"s_add_u32 s{sT0}, s{sPF}, 1024")
                else:
                    a.i(f"s_lshr_b32 s{sT0}, s{sI}, 1"); a.i(f"s_xor_b32 s{sT0}, s{sT0}, {4-p}")
                    a.i(f"s_lshl_b32 s{sT0}, s{sT0}, 8"); a.i(f"s_add_u32 s{sT0}, s{sT0}, s{sPF}")
                a.i(f"s_lshl_b32 s{sT1}, s{sI}, 2")
                flag_store([f"v_mov_b32 v{q0}, s{sT1}"], f"s{sT0}")
            pubs.append((f"pst{p}", pub, [None, pd if p < 3 else pd3], False))
        return fn
    def tag_store(acc, sreg):
        def fn(nb):
            sets = [(acc, acc + 16)]; src = []; L = []
            for t in range(2):
                for c in range(2):
                    src += [(acc + 8*c + 4*t, acc + 8*c + 4*t + 1), (acc + 8*c + 4*t + 2, acc + 8*c + 4*t + 3)]
            dst = [0, 1, 2, 8, 4, 5, 6, 9]
            for n in range(8):
                L.append((nb, "v", f"v_cvt_pk_bf16_f32 v{SQ+dst[n]}, v{src[n][0]}, v{src[n][1]}", sets, 0))
                if n in (2, 6, 7):
                    j = (2, 6, 7).index(n)
                    L.append((nb, "m", f"buffer_store_dwordx4 v[{SQ+4*j}:{SQ+4*j+3}], v{vL16}, {WS}, s{sreg} offen offset:{1024*j} sc1", sets, 0))
            return L
        return fn
    def c3_store(nb):
        assert not fill, len(fill)
        assert not any(f"v{SQ+11}," in str(it[2]) for it in fill2)
        for it in tag_store(BACC[3], sC3a)(nb) + tag_store(BACC[3] + 16, sC3b)(nb): fill.append(it)
    def sib_store(nb):
        assert not fill, len(fill)
        for it in tag_store(BACC[4], sSibS)(nb): fill.append(it)
    bpost[("B", 0, 20, 1)] = pstore(0, [0])
    for p in (1, 2): bpost[("B", p, 20, 3)] = pstore(p, [0, 1])
    bpost[("B", 3, 20, 3)] = c3_store if c3tag else pstore(3, [0, 1])
    bpost[("B", 4, 20, 1)] = sib_store
    vP0, vP1 = 80, 81
    def h_wait(i): a.wait(vm=toks["hld"])
    ihooks[("B", 1, 14, 0)] = h_wait
    def o_poll(i):
        a.i(f"v_accvgpr_read_b32 v{vP0}, a{st('hfp')}")
        toks["op"] = a.vm(f"buffer_load_dword v{vP1}, v{vP0}, {WS}, 0 offen offset:4 sc1")
    ihooks[("B",) + op[0] + (0,)] = o_poll
    def o_check(i):
        assert not any("v_cndmask" in str(it[2]) for it in fill2)
        poll_check("op", vP0, vP1, "0", 4)
        a.i(f"s_add_u32 s{sT0}, s{sHld}, {18*1024}")
        for t in range(2):
            a.vm(f"buffer_load_dwordx4 a[{HP+72+4*t}:{HP+75+4*t}], v{vL16}, {WS}, s{sT0} offen offset:{1024*t} sc1")
        for t in range(2):
            toks["old"] = a.vm(f"buffer_load_dwordx2 a[{HB+4*t+2}:{HB+4*t+3}], v{vL16}, {WS}, s{sT0} offen offset:{2048+8*t} sc1")
    ihooks[("B",) + op[1] + (0,)] = o_check
    ihooks[("B", 1, 19, 0)] = lambda i: a.wait(vm=toks["old"])
    sOwn, sSibS = sQst, sQld
    sC3a, sC3b = 60, 61; sTL = [62, 63, sQcol]
    sPFo = sKV[0]; sXo = [sKV[1], sKV[2]]; sMf, sMo, sMl = 45, sE, sM4x
    def polladdr(minx):
        a.i(f"v_bfe_u32 v{vP0}, v{vL16}, 4, 3"); a.i(f"v_max_u32 v{vP0}, {minx}, v{vP0}")
        a.i(f"v_xor_b32 v{vP0}, s{sI}, v{vP0}"); a.i(f"v_lshlrev_b32 v{vP0}, 2, v{vP0}")
    MA, MB, MX, MD, vM0, vM1 = 120, 124, 132, 136, 134, 135
    def m_prep(i):
        L = [f"v_bfe_u32 v{MD}, v{vL16}, 4, 4", f"v_lshrrev_b32 v{MD+1}, 8, v{vL16}",
             f"v_mul_u32_u24 v{vM0}, {8*HXS}, v{MD+1}", f"v_lshl_add_u32 v{vM0}, v{MD}, 4, v{vM0}",
             f"s_lshl_b32 s{sMl}, s{sI}, 8", f"s_add_u32 s{sMl}, s{sMl}, s{sPbase}", f"s_add_u32 s{sMl}, s{sMl}, {8*2048}",
             f"v_mul_u32_u24 v{vM1}, 1152, v{MD}", f"v_lshl_add_u32 v{vM1}, v{MD+1}, 5, v{vM1}",
             f"v_lshrrev_b32 v{MD+2}, 1, v{MD+1}", f"v_lshl_add_u32 v{vM1}, v{MD+2}, 29, v{vM1}",
             f"s_lshr_b32 s{sT2}, s{sI}, 2", f"s_mul_i32 s{sMo}, s{sT2}, {16*1152}", f"s_and_b32 s{sT2}, s{sI}, 3", f"s_lshl_b32 s{sT2}, s{sT2}, 3",
             f"s_add_u32 s{sMo}, s{sMo}, s{sT2}", f"s_add_u32 s{sMo}, s{sMo}, s{sCol[0]}", f"s_add_u32 s{sMo}, s{sMo}, s{sXrow}",
             f"s_add_u32 s{sMf}, s{sPF}, 1024",
             f"v_and_b32 v{MD+2}, 1, v{MD}", f"v_lshlrev_b32 v{MD+2}, 4, v{MD+2}", f"v_mov_b32 v{MD+3}, 0x3f80",
             f"v_lshlrev_b32 v{MD+3}, v{MD+2}, v{MD+3}", f"v_lshrrev_b32 v{MD+2}, 1, v{MD}"]
        for t in L: G(i, "v", t)
        for r in range(4):
            G(i, "v", f"v_cmp_eq_u32 vcc, {r}, v{MD+2}"); G(i, "v", f"v_cndmask_b32 v{MA+r}, 0, v{MD+3}, vcc")
        G(i, "v", f"v_accvgpr_read_b32 v{MX}, a{XR+8}"); G(i, "v", f"v_accvgpr_read_b32 v{MX+1}, a{XR+9}")
    ihooks[("B", 1, 1, 0)] = m_prep
    def m_poll(i):
        assert not fill2, len(fill2)
        for t in (f"v_bfe_u32 v{vP0}, v{vL16}, 4, 3", f"v_bfe_u32 v{vP1}, v{vL16}, 7, 1", f"v_mul_u32_u24 v{vP0+2}, 6, v{vP1}",
                  f"v_or_b32 v{vP0}, v{vP0}, v{vP0+2}", f"v_xor_b32 v{vP0}, s{sI}, v{vP0}", f"v_lshlrev_b32 v{vP0}, 2, v{vP0}",
                  f"s_sub_u32 s{sT2}, s{sMf}, s{sPFo}", f"v_xor_b32 v{vP1}, 1, v{vP1}", f"v_mad_u32_u24 v{vP0}, v{vP1}, s{sT2}, v{vP0}"):
            G(i, "v", t)
        Gm(i, "mp", f"buffer_load_dword v{vP1}, v{vP0}, {WS}, s{sPFo} offen sc1")
    ihooks[("B",) + mp[0] + (0,)] = m_poll
    def m_check(i):
        poll_check("mp", vP0, vP1, f"s{sPFo}", 0)
        a.vm(f"buffer_load_dwordx4 v[{MB}:{MB+3}], v{vM0}, {WS}, s{sMl} offen sc1")
        a.i(f"s_add_u32 s{sMl}, s{sMl}, {32*HXS}")
        toks["ml"] = a.vm(f"buffer_load_dwordx4 v[{MB+4}:{MB+7}], v{vM0}, {WS}, s{sMl} offen sc1")
        for t in (f"v_lshlrev_b32 v{MD}, 16, v{MX}", f"v_and_b32 v{MD+1}, 0xffff0000, v{MX}", f"v_lshlrev_b32 v{MD+2}, 16, v{MX+1}", f"v_and_b32 v{MD+3}, 0xffff0000, v{MX+1}"):
            G(i, "v", t)
        for x in (6, 7): G(i, "f", (lambda x=x: pload(x, sOwn, PL + 8*x, "pl")), 6)
    ihooks[("B",) + mp[1] + (0,)] = m_check
    def m_fin(i):
        assert not any(f"v{MD+3}," in str(it[2]) for it in fill2)
        a.wait(vm=toks["ml"])
        for j in range(2): a.i(f"{MF} v[{MD}:{MD+3}], v[{MA}:{MA+3}], v[{MB+4*j}:{MB+4*j+3}], v[{MD}:{MD+3}]")
        G(i + 3, "v", f"v_cvt_pk_bf16_f32 v{MD}, v{MD}, v{MD+1}"); G(i + 3, "v", f"v_cvt_pk_bf16_f32 v{MD+1}, v{MD+2}, v{MD+3}")
        G(i + 3, "m", f"buffer_store_dwordx2 v[{MD}:{MD+1}], v{vM1}, s[{SOUT}:{SOUT+3}], s{sMo} offen{outsc}")
    ihooks[("B",) + mp[2] + (0,)] = m_fin
    def e_poll(i):
        for t in (f"v_bfe_u32 v{vP0}, v{vL16}, 4, 1", f"v_or_b32 v{vP0}, 4, v{vP0}", f"v_xor_b32 v{vP0}, s{sI}, v{vP0}", f"v_lshlrev_b32 v{vP0}, 2, v{vP0}"):
            a.i(t)
        toks["ep"] = a.vm(f"buffer_load_dword v{vP1}, v{vP0}, {WS}, s{sPFo} offen sc1")
    def prep_own(i):
        L = [f"v_accvgpr_read_b32 v{vT0}, a{st('ov')}",
             f"s_lshl_b32 s{sOwn}, s{sI}, 11", f"s_add_u32 s{sOwn}, s{sOwn}, s{sPbase}",
             f"s_and_b32 s{sT2}, s{sS}, 1", f"s_mul_i32 s{sT2}, s{sT2}, 640", f"s_lshl_b32 s{sT3}, s{sI}, 6",
             f"s_add_u32 s{sT2}, s{sT2}, s{sT3}", f"s_add_u32 s{sXo[0]}, s{sT2}, s{sXrow}", f"s_add_u32 s{sXo[1]}, s{sXo[0]}, {16*1152}",
             f"s_lshr_b32 s{sPFo}, s{sI}, 1", f"s_lshl_b32 s{sT2}, s{sPFo}, 12", f"s_lshl_b32 s{sPFo}, s{sPFo}, 8", f"s_add_u32 s{sPFo}, s{sPFo}, s{sPF}",
             f"s_add_u32 s{sSibS}, s{sHld}, s{sT2}", f"s_xor_b32 s{sT3}, s{sT2}, 4096", f"s_add_u32 s{sC3a}, s{sHld}, s{sT3}",
             f"s_add_u32 s{sC3b}, s{sHld}, {18*1024}", f"s_add_u32 s{sT2}, s{sT2}, s{sPbase}"]
        for n, x in enumerate((3, 2, 1)):
            L += [f"s_xor_b32 s{sT3}, s{sI}, {x}", f"s_mul_i32 s{sT3}, s{sT3}, {8*HXS}"]
            if x == 2: L += [f"s_add_u32 s{sT3}, s{sT3}, s{sPbase}", f"s_add_u32 s{sTL[n]}, s{sT3}, {18*1024}"]
            else: L += [f"s_add_u32 s{sTL[n]}, s{sT3}, s{sT2}"]
        L += [f"v_mov_b32 v{SQ+r}, s{sTag}" for r in (3, 7, 10, 11)]
        for t in L: G(i, "v", t)
    ihooks[("B", 1, 2, 0)] = prep_own
    def pload(x, base, dst, name):
        a.i(f"s_xor_b32 s{sT0}, s{sI}, {x}"); a.i(f"s_mul_i32 s{sT0}, s{sT0}, {8*HXS}"); a.i(f"s_add_u32 s{sT0}, s{sT0}, s{base}")
        for t in range(2):
            toks[name] = a.vm(f"buffer_load_dwordx4 v[{dst+4*t}:{dst+4*t+3}], v{vL16}, {WS}, s{sT0} offen offset:{1024*t} sc1")
    def e_check(i):
        poll_check("ep", vP0, vP1, f"s{sPFo}", 0)
        for x in (4, 5): G(i, "f", (lambda x=x: pload(x, sOwn, PL + 8*x, "pl")), 4)
    ihooks[("B", 4) + ep[0]] = e_poll
    ihooks[("B", 4) + ep[1]] = e_check
    SI = [208, 220, 0]
    def tload(n, j): return f"buffer_load_dwordx4 v[{SI[n]+4*j}:{SI[n]+4*j+3}], v{vL16}, {WS}, s{sTL[n]} offen offset:{1024*j} sc1"
    def c3_load(i):
        for n in range(2):
            for j in range(3): Gm(i, "c3l", tload(n, j), 2)
    def sib_load(i):
        for j in range(3): G(i, "m", tload(2, j), 2)
    def e3_poll(i):
        for t in (f"v_bfe_u32 v{vP0}, v{vL16}, 4, 1", f"v_or_b32 v{vP0}, 2, v{vP0}", f"v_xor_b32 v{vP0}, s{sI}, v{vP0}", f"v_lshlrev_b32 v{vP0}, 2, v{vP0}"):
            a.i(t)
        toks["e3"] = a.vm(f"buffer_load_dword v{vP1}, v{vP0}, {WS}, s{sPFo} offen sc1")
    def e3_check(i):
        poll_check("e3", vP0, vP1, f"s{sPFo}", 0)
        for x in (2, 3): pload(x, sOwn, PL + 8*x, "c3l")
    if c3tag: ihooks[("B", 4) + tl[0]] = c3_load
    else:
        ihooks[("B", 4, e3[0], 2)] = e3_poll
        if e3[1] is not None: ihooks[("B", 4, e3[1], 2)] = e3_check
    if tl[1] is not None: ihooks[("B", 4, tl[1], 2)] = sib_load
    def dma_after_B(k):
        if k == 36: return [40, 41]
        if k == 37: return []
        return [k + 4] if k + 4 < KEND else []
    stream([(k,) + f for k in range(KB0, KEND) for f in stages[k]["fr"]] + last_fr[1], dma_after_B, tailnop=False)
    assert not pubs
    astamp("P:bend"); astamp("B:end")
    def accum(acc, src, f="v"):
        for c in range(2):
            for t in range(2):
                d = acc + 8*c + 4*t; s0 = SEL + (0 if c else 2)
                a.i(f"{MF} v[{d}:{d+3}], a[{s0}:{s0+3}], {f}[{src+4*t}:{src+4*t+3}], v[{d}:{d+3}]")
    OWN = BACC[4] + 16
    if not c3tag and e3[1] is None: e3_check(0)
    if tl[1] is None:
        for j in range(3): a.vm(tload(2, j))
    tr.stage = 100; tr("end")
    a.wait(vm=toks["pl"])
    tr("pl")
    accum(OWN, XR, "a")
    for x in range(4, 8): accum(OWN, PL + 8*x)
    CK = 12
    tr("acc")
    a.wait(vm=toks["c3l"])
    tr("c3")
    if not c3tag:
        for x in (2, 3): accum(OWN, PL + 8*x)
    for n in (range(3) if c3tag else [2]):
        if n == 2: tr("c3a"); a.i("s_waitcnt vmcnt(0)"); tr("sib")
        a.label(f"L_tchk{n}")
        a.i(f"v_xor_b32 v{CK}, s{sTag}, v{SI[n]+3}"); a.i(f"v_xor_b32 v{CK+1}, s{sTag}, v{SI[n]+7}"); a.i(f"v_xor_b32 v{CK+2}, s{sTag}, v{SI[n]+11}")
        a.i(f"v_or3_b32 v{CK}, v{CK}, v{CK+1}, v{CK+2}")
        a.i(f"v_cmp_ne_u32 vcc, 0, v{CK}")
        a.i(f"v_mov_b32 v{SI[n]+3}, v{SI[n]+8}"); a.i(f"v_mov_b32 v{SI[n]+7}, v{SI[n]+9}")
        a.i("s_cmp_lg_u64 vcc, 0")
        a.i(f"s_cbranch_scc1 L_tretry{n}")
        a.label(f"L_tok{n}")
        accum(OWN, SI[n])
    a.i("s_nop 4")
    for c in range(2):
        for t in range(2):
            d = OWN + 8*c + 4*t
            a.i(f"v_cvt_pk_bf16_f32 v{d}, v{d}, v{d+1}"); a.i(f"v_cvt_pk_bf16_f32 v{d+1}, v{d+2}, v{d+3}")
            a.vm(f"buffer_store_dwordx2 v[{d}:{d+1}], v{vT0}, s[{SOUT}:{SOUT+3}], s{sXo[t]} offen offset:{32*c}{outsc}")
    tr("st")
    if trace: a.i("s_waitcnt vmcnt(0)"); tr("fin")
    astamp("P:done")
    if trace:
        a.i("s_waitcnt lgkmcnt(0)")
        for n0, p0 in trp: a.i(f"v_writelane_b32 v{vLane}, s{p0}, {n0}")
        a.i(f"s_lshl_b32 s{sT0}, s2, 2"); a.i(f"s_add_u32 s{sT0}, s{sT0}, s{sW}"); a.i(f"s_lshl_b32 s{sT0}, s{sT0}, 8")
        a.i(f"s_add_u32 s{sT0}, s{sT0}, {STAMP_OFF}")
        a.i(f"v_lshrrev_b32 v1, 2, v{vL16}")
        a.i(f"buffer_store_dword v{vLane}, v1, {WS}, s{sT0} offen")
        print("trace:", len(trl), " ".join(trl), file=sys.stderr)
    if stamps:
        a.i(f"s_lshl_b32 s{sT0}, s2, 2"); a.i(f"s_add_u32 s{sT0}, s{sT0}, s{sW}"); a.i(f"s_lshl_b32 s{sT0}, s{sT0}, 6")
        a.i(f"s_add_u32 s{sT0}, s{sT0}, {STAMP_OFF}")
        a.i(f"v_mov_b32 v1, 0")
        for n in range(len(stl)):
            a.i(f"buffer_store_dword a{244+n}, v1, {WS}, s{sT0} offen offset:{4*n}")
        a.i("s_waitcnt vmcnt(0)")
        a.i("s_memrealtime s[80:81]"); a.i("s_waitcnt lgkmcnt(0)"); a.i("v_accvgpr_write_b32 a255, s80")
        a.i(f"buffer_store_dword a254, v1, {WS}, s{sT0} offen offset:56")
        a.i(f"buffer_store_dword a255, v1, {WS}, s{sT0} offen offset:60")
        print("stamps:", stl, file=sys.stderr)
        if dbgout:
            a.i(f"s_cmp_lg_u32 s{sW}, 1"); a.i("s_cbranch_scc1 L_end")
            a.i("s_cmp_lt_u32 s2, 248"); a.i("s_cbranch_scc1 L_end")
            a.i("v_accvgpr_read_b32 v3, a254"); a.i("v_accvgpr_read_b32 v4, a255")
            a.i("v_sub_u32 v4, v4, v3"); a.i("v_mul_u32_u24 v4, 100000, v4"); a.i("v_and_b32 v5, 0xffff, v3"); a.i("v_add_u32 v4, v4, v5")
            a.i(f"s_and_b32 s{sT1}, s2, 7"); a.i(f"s_lshl_b32 s{sT1}, s{sT1}, 2")
            a.i(f"buffer_store_dword v4, v1, s[{SDBG}:{SDBG+3}], s{sT1} offen offset:32")
            a.i("s_cmp_lg_u32 s2, 253"); a.i("s_cbranch_scc1 L_end")
            for n in range(1, 8):
                a.i(f"v_accvgpr_read_b32 v2, a{244+n}"); a.i("v_sub_u32 v2, v2, v3")
                a.i(f"buffer_store_dword v2, v1, s[{SDBG}:{SDBG+3}], 0 offen offset:{4*n}")
    a.label("L_end")
    a.i("s_endpgm")
    for n in (range(3) if c3tag else [2]):
        a.label(f"L_tretry{n}")
        a.i(f"s_cmp_eq_u32 s{sBound}, 0"); a.i(f"s_cbranch_scc1 L_tok{n}")
        a.i(f"s_sub_u32 s{sBound}, s{sBound}, 1"); a.i("s_sleep 2")
        for j in range(3): a.i(tload(n, j))
        a.i("s_waitcnt vmcnt(0)")
        a.i(f"s_branch L_tchk{n}")
    a.lines += slow_lines
    a.label("L_tagspin")
    a.i(f"s_cmp_eq_u32 s{sBound}, 0"); a.i("s_cbranch_scc1 L_tagok")
    a.i(f"s_sub_u32 s{sBound}, s{sBound}, 1"); a.i("s_sleep 1")
    a.i(f"buffer_load_dword v207, off, s[{SDBG}:{SDBG+3}], 0 sc1"); a.i("s_waitcnt vmcnt(0)")
    a.i("s_branch L_tagchk")
    for (name, va, vf, soff, offs) in spin_blocks:
        a.label(f"L_spin_{name}")
        a.i(f"s_cmp_eq_u32 s{sBound}, 0")
        a.i(f"s_cbranch_scc1 L_back_{name}")
        a.i(f"s_sub_u32 s{sBound}, s{sBound}, 1")
        a.i("s_sleep 1")
        a.i(f"buffer_load_dword v{vf}, v{va}, {WS}, {soff} offen offset:{offs} sc1")
        a.i("s_waitcnt vmcnt(0)")
        a.i(f"v_cmp_ne_u32 vcc, s{sTag}, v{vf}")
        a.i("s_nop 0")
        a.i("s_cmp_lg_u64 vcc, 0")
        a.i(f"s_cbranch_scc1 L_spin_{name}")
        a.i(f"s_branch L_back_{name}")
    assert not ihooks, ihooks.keys()
    body = [l.replace("CODE_LAST", "0x1000") for l in a.lines]
    if iwarm:
        tmp = [l for l in body] + [f"L_w{w}:" for w in range(4*NHOP)] + ["    s_endpgm"]
        tmp, _, _, _ = align8(tmp, nops=False)
        tmp = tmp[:-(4*NHOP+1)]
        sz = sizes_of(tmp + [f"L_w{w}:" for w in range(4*NHOP)])
        out = []; off = 0; n = 0; j = 0; nextp = 8192; done = False
        for l in tmp:
            if l.startswith("L_end:"): done = True
            if is_instr(l):
                prev = out[-1].strip() if out else ""
                if off >= nextp and not done and not prev.startswith("v_mfma") and not prev.startswith("s_cmp"):
                    out.append(f"L_w{n}:"); out.append(f"    s_cbranch_execz L_wret{n//4}"); n += 1; off += 4; nextp += 4096
                off += sz[j]; j += 1
            out.append(l)
        assert n <= 4*NHOP
        for nn in range(n, 4*NHOP):
            out.insert(out.index(f"L_wret{nn//4}:"), f"L_w{nn}:")
        body = out; size = off
        print("warm stubs", n, file=sys.stderr)
    else:
        body, nf, nn, size = align8(body, nops=False)
    body = [l.replace("v_min_u32 v%d, 0x1000," % vT0, "v_min_u32 v%d, %d," % (vT0, (size - 64) & ~15)) for l in body]
    print(f"main: code {size} bytes, stash {st.next}", file=sys.stderr)
    return body

from gen1 import kd
def whole(**kw):
    m = gen(**kw)
    hdr = [l for l in open("parallel_sum__sliding_block__glu_gated_bilinear__prompt.s.ref").read().split("\n")[:11]]
    s = "\n".join(hdr) + "\n"
    s += f"; @launch grid=(256,1,1) block=(256,1,1) lds={LDS_BYTES}\n"
    s += '.amdgcn_target "amdgcn-amd-amdhsa--gfx950"\n.text\n'
    s += f".globl {KN}\n.p2align 12\n.type {KN},@function\n{KN}:\n" + "\n".join(m) + "\n"
    s += '.section .rodata,"a"\n.p2align 6\n' + kd(KN, 512, 256)
    return s

if __name__ == "__main__":
    kw = {}
    for x in sys.argv[2:]:
        k, v = x.split("="); kw[k] = eval(v)
    open(sys.argv[1], "w").write(whole(**kw))
```

```python
import sys, struct, math, re
from asmlib import *
from collections import deque

KN = "parallel_sum__sliding_block__glu_gated_bilinear__prompt_kernel"
QS = 6176; SLOT = 4 * QS; NS = 6
LDS_BYTES = 163840
TAG_LDS = NS * SLOT + 64
QKV_BASE = 0x2400000
QF_BASE = 0x2C00000; HF_BASE = 0x2C10000; PF_BASE = 0x2C40000
EPOCH_OFF = 0x2D00000
HX_BASE = 0x3000000; HXS = 21504
STAMP_OFF = 0x6000000
WS_BYTES = 268435456
OOB = 0x20000000
GS = 3136; TBASE = 163840 - 20 * GS
TAGC = 0x9E3779B8
def f2u(f): return "0x%08x" % struct.unpack("<I", struct.pack("<f", f))[0]
QC = 18 ** -0.5 * math.log2(math.e)
QG = QC ** 0.5
MF = "v_mfma_f32_16x16x32_bf16"

def gen(D=7, wev=3, stamps=None, rt=False, gap=6, lg_rpx=4, krot=True, normil=True, l2pf=True, pfs=6, pd3=24, ep=((2, 0), (13, 0)), tl=(0, None), mp=((3, 6), (3, 14), (4, 12)), trace=None, nraw=0, iwarm=True, pd=30, lead=70, hold=90, pfk=16, lnpre=3, od=40, warmat=1, gupf="U", hold0=40, gu_at=12, dbgout=False, probe=None, probewg=None, x0=5, w0at=13, hopat=(2, 4, 6, 8), xfast=0, odef=6, op=((1, 13), (1, 18)), c3tag=False, e3=(10, None), xrat='T', kvat=(25, 27), fastT=True, forceslow=False, outsc='', tg=1, th=(3, 8, 12), oinl=60):
    a = Asm()
    XS = lnpre * SLOT; NXU = (LDS_BYTES - XS) // 8192
    SX, SG, SU, SD, SWS, SQKV, SO, SDBG, SOUT = 4, 8, 12, 16, 20, 24, 28, 32, 36
    sPF = 3
    sCol = [40, 41, 42, 43, 44]
    sSc = [45, 46, 47]; sKV = [48, 49, 50]
    sTag, sE, sBound, sQst, sQld = 51, 52, 53, 54, 55
    sW, sS, sR = 56, 57, 58
    sPair = [59, 60, 61, 62]; sSing = 63
    sMq, sI = 64, 65
    sOff, sT0, sT1, sT2, sT3 = 66, 67, 68, 69, 70
    sXrow, sPst, sM4 = 71, 72, 73
    sOff2 = 73
    sM4x = 59
    sPC = 74; sHst, sHld = 74, 75
    sC0, sC1, sQcol, sPbase = 76, 77, 78, 79
    sStamp = 80; sPo = [82, 83]
    KA = 84
    sKo = [84, 85, 86, 87, 88]; sKp = [89, 90, 91, 92, 93]; sAo, sAp = 94, 95
    sKr9 = [96, 97, 98]; sKr3 = [99, 100, 101]
    sKo2 = [24, 25, 26, 27]; sKp2 = [99, 100, 101, 77]
    XN = 0; ACC = [144, 176, 208]
    vRd = [240, 241, 242]; vA = [243, 244, 245]; vS = [246, 247, 248]
    q0, q1, q2 = 249, 250, 251
    vT0, vT1, vL16, vLane = 252, 253, 254, 255
    H, HP, HB, FR = 0, 80, 160, 168
    KVS, aQ = 128, 136
    NB = 8; assert D <= 7
    stash = {}
    def st(name, n=1):
        if name not in stash:
            stash[name] = st.next; st.next += n; assert st.next <= 228
        return stash[name]
    st.next = 200; stash['pt'] = 236; stash['stq'] = 228; stash['stq2'] = 229
    XR = 228
    SEL = 238
    stl = []
    def astamp(name):
        if stamps is None or name.split(":")[0] not in stamps: return
        n = len(stl); assert n < 10
        a.i("s_waitcnt lgkmcnt(0)"); a.lg_done = a.lg_issued
        a.i(f"{'s_memrealtime' if rt else 's_memtime'} s[{sStamp}:{sStamp+1}]")
        a.i("s_waitcnt lgkmcnt(0)")
        a.i(f"v_accvgpr_write_b32 a{244+n}, s{sStamp}")
        stl.append(name)
    trl = []; trp = []
    TRS = [44, 80, 0] if (trace and trace[0] < 0) else [46, 80, 0]
    def tr(name):
        if trace is None or not (trace[0] <= tr.stage < trace[1]) or len(trl) >= 64: return
        if len(trp) >= 2:
            n0, p0 = trp.pop(0); a.i(f"v_writelane_b32 v{vLane}, s{p0}, {n0}")
        p = TRS[len(trl) % 3]
        a.i(f"s_memtime s[{p}:{p+1}]")
        trp.append((len(trl), p)); trl.append(name)
    tr.stage = 0
    def srd(d, p, nbytes, back=0):
        if back:
            a.i(f"s_sub_u32 s{d}, s{p}, {back}"); a.i(f"s_subb_u32 s{d+1}, s{p+1}, 0")
        else:
            a.i(f"s_mov_b32 s{d}, s{p}"); a.i(f"s_mov_b32 s{d+1}, s{p+1}")
        a.i(f"s_mov_b32 s{d+2}, {nbytes + back}"); a.i(f"s_mov_b32 s{d+3}, 0x00020000")
    WS = f"s[{SWS}:{SWS+3}]"

    a.i("s_cmp_ge_u32 s2, 256")
    a.i("s_cbranch_scc1 L_end")
    if stamps: a.i("s_memrealtime s[36:37]")
    if trace and trace[0] < 0: a.i("s_memtime s[36:37]")
    a.i(f"s_load_dwordx16 s[{KA}:{KA+15}], s[0:1], 0")
    a.i(f"s_load_dwordx4 s[80:83], s[0:1], 64")
    a.i(f"s_getpc_b64 s[{sPC}:{sPC+1}]")
    a.i(f"s_lshr_b32 s{sT0}, s2, 3")
    a.i(f"s_lshl_b32 s{sT0}, s{sT0}, 12")
    a.i(f"v_lshlrev_b32 v{vT0}, 4, v0")
    a.i(f"v_add_u32 v{vT0}, s{sT0}, v{vT0}")
    a.i(f"v_min_u32 v{vT0}, CODE_LAST, v{vT0}")
    a.vm(f"global_load_dwordx4 a[{HP+76}:{HP+79}], v{vT0}, s[{sPC}:{sPC+1}]")
    a.i(f"v_lshrrev_b32 v{vT1}, 6, v0")
    a.i(f"v_and_b32 v{vLane}, 63, v0")
    a.i(f"v_readfirstlane_b32 s{sW}, v{vT1}")
    lg = lg_rpx; nsl = 32 >> lg
    a.i(f"s_and_b32 s{sR}, s2, {(16 >> lg) - 1}"); a.i(f"s_lshl_b32 s{sR}, s{sR}, {lg}")
    a.i(f"s_lshr_b32 s{sT0}, s2, {8 - lg}"); a.i(f"s_add_u32 s{sR}, s{sR}, s{sT0}")
    a.i(f"s_bfe_u32 s{sS}, s2, {hex(((lg - 1) << 16) | (4 - lg))}"); a.i(f"s_lshl_b32 s{sS}, s{sS}, {5 - lg}")
    a.i(f"s_bfe_u32 s{sT0}, s2, {hex(((5 - lg) << 16) | 3)}"); a.i(f"s_add_u32 s{sS}, s{sS}, s{sT0}")
    sRot = sT3
    if krot:
        a.i(f"s_lshr_b32 s{sT0}, s{sR}, 2"); a.i(f"s_add_u32 s{sT0}, s{sT0}, s{sS}")
        a.i(f"s_mul_hi_u32 s{sT1}, s{sT0}, 0x55555556"); a.i(f"s_mul_i32 s{sT1}, s{sT1}, 3"); a.i(f"s_sub_u32 s{sRot}, s{sT0}, s{sT1}")
    else: a.i(f"s_mov_b32 s{sRot}, 0")
    sRk = [45, 46, 47]
    for stg in range(3):
        a.i(f"s_add_u32 s{sRk[stg]}, s{sRot}, {stg}")
        a.i(f"s_cmp_ge_u32 s{sRk[stg]}, 3"); a.i(f"s_cselect_b32 s{sT0}, 3, 0"); a.i(f"s_sub_u32 s{sRk[stg]}, s{sRk[stg]}, s{sT0}")
    QACC = 144; D2 = 200
    vX = [228, 229, 230, 231]; vXr = [232, 233]
    S1 = [234, 235]; S2 = [236, 237]; vCs = 238
    t0, t1, t2, t3 = 144, 145, 146, 147
    ONES = 128
    a.i(f"v_lshrrev_b32 v{t0}, 3, v{vLane}")
    a.i(f"v_and_b32 v{t1}, 7, v{vLane}")
    for j in range(2):
        a.i(f"v_add_u32 v{t2}, {8*j}, v{t0}")
        a.i(f"v_bfe_u32 v{t3}, v{t2}, 1, 3")
        a.i(f"v_xor_b32 v{t3}, v{t3}, v{t1}")
        a.i(f"v_mul_u32_u24 v{t2}, 1152, v{t2}")
        a.i(f"v_lshl_add_u32 v{vX[j]}, v{t3}, 4, v{t2}")
        if j: a.i(f"v_subrev_u32 v{vX[j]}, {1024*j}, v{vX[j]}")
    a.i(f"s_lshl_b32 s{sXrow}, s{sR}, 2")
    a.i(f"s_add_u32 s{sXrow}, s{sXrow}, s{sW}")
    a.i(f"s_mul_i32 s{sXrow}, s{sXrow}, {32*1152}")
    sXk = [40, 41, 42]
    for stg in range(3):
        a.i(f"s_mul_i32 s{sXk[stg]}, s{sRk[stg]}, 384"); a.i(f"s_add_u32 s{sXk[stg]}, s{sXk[stg]}, s{sXrow}")
    a.i(f"s_mul_i32 s{sM4}, s{sW}, {2048*NXU}")
    a.i("s_waitcnt lgkmcnt(0)")
    if stamps: a.i("v_accvgpr_write_b32 a254, s36")
    if trace and trace[0] < 0: a.i("s_mov_b32 s53, s36"); a.i("s_memtime s[54:55]")
    srd(SX, KA+0, 2048*1152)
    xtok = {}
    def xdma_items(n):
        t, ch = n // 9, n % 9
        o = [("s", f"s_add_u32 m0, s{sM4}, {XS + 2048*(n % NXU)}"), ("s", f"s_add_u32 s{sOff}, s{sXk[ch//3]}, {128*(ch%3) + 16*1152*t}")]
        return o + [("m", f"buffer_load_dwordx4 v{vX[j]}, s[{SX}:{SX+3}], s{sOff} offen offset:{1024*j} lds") for j in range(2)]
    dma_tok = {}
    def emit_dma_item(k, it):
        if it[0] == "m": dma_tok[k] = a.vm(it[1])
        elif it[0] == "d": a.ds(it[1])
        elif it[0] == "h": pass
        else: a.i(it[1])
    def xdma(ch):
        for it in xdma_items(ch): emit_dma_item(("x", ch), it)
    for n in range(x0): xdma(n)
    srd(SQKV, KA+2, 576*3456); srd(SO, KA+4, 576*1152, back=2048)
    srd(SG, KA+8, 576*9216); srd(SU, KA+10, 576*9216); srd(SD, KA+12, 4608*1152, back=2048)
    srd(SOUT, KA+14, 2048*1152)
    srd(SDBG, 80, 256); srd(SWS, 82, WS_BYTES)
    a.i(f"s_or_b32 s{sT0}, s2, s{sW}")
    a.i("s_cbranch_scc1 L_noep")
    a.i(f"s_add_u32 s82, s82, {EPOCH_OFF}"); a.i("s_addc_u32 s83, s83, 0")
    a.i(f"s_load_dword s{sE}, s[82:83], 0")
    a.label("L_noep")
    astamp("P:start")
    vn, vq, rho, tt, pc = 148, 149, 150, 151, 152
    a.i(f"v_and_b32 v{vn}, 15, v{vLane}"); a.i(f"v_lshrrev_b32 v{vq}, 4, v{vLane}")
    a.i(f"v_bfe_u32 v{rho}, v{vLane}, 2, 3"); a.i(f"v_lshrrev_b32 v{tt}, 5, v{vLane}")
    a.i(f"v_and_b32 v{pc}, 3, v{vLane}"); a.i(f"v_lshlrev_b32 v{pc}, 4, v{pc}")
    a.i(f"v_lshlrev_b32 v{vL16}, 4, v{vLane}")
    a.i(f"v_lshrrev_b32 v{t1}, 1, v{vn}"); a.i(f"v_xor_b32 v{t1}, v{t1}, v{vq}")
    a.i(f"v_lshlrev_b32 v{t0}, 7, v{vn}")
    a.i(f"s_add_u32 s{sT0}, s{sM4}, {XS}"); a.i(f"v_add_u32 v{t0}, s{sT0}, v{t0}")
    a.i(f"v_lshl_add_u32 v{vXr[0]}, v{t1}, 4, v{t0}")
    a.i(f"v_xor_b32 v{t1}, 4, v{t1}"); a.i(f"v_lshl_add_u32 v{vXr[1]}, v{t1}, 4, v{t0}")
    for stg in range(3):
        a.i(f"s_mul_i32 s{sKr9[stg]}, s{sRk[stg]}, {192*9216}"); a.i(f"s_mul_i32 s{sKr3[stg]}, s{sRk[stg]}, {192*3456}")
    a.i(f"s_mul_i32 s{sQcol}, s{sS}, 216")
    for stg in range(3): a.i(f"s_add_u32 s{sKr3[stg]}, s{sKr3[stg]}, s{sQcol}")
    a.i(f"s_mul_i32 s{sMq}, s{sW}, {QS}")
    a.i(f"s_lshr_b32 s{sI}, s{sS}, 1")
    a.i(f"s_lshl_b32 s{sT0}, s{sW}, 3"); a.i(f"v_add_u32 v{t2}, s{sT0}, v{rho}")
    a.i(f"v_lshl_add_u32 v{t3}, v{tt}, 6, v{pc}")
    a.i(f"v_mul_u32_u24 v{vS[0]}, 3456, v{t2}"); a.i(f"v_add_u32 v{vS[0]}, v{vS[0]}, v{t3}")
    a.i(f"v_add_u32 v{vS[1]}, {32*3456-1024}, v{vS[0]}"); a.i(f"v_add_u32 v{vS[2]}, {64*3456-2048}, v{vS[0]}")
    a.i(f"v_mul_u32_u24 v{t0}, 9216, v{t2}"); a.i(f"v_add_u32 v{vA[0]}, v{t0}, v{t3}")
    a.i(f"v_add_u32 v{vA[1]}, {32*9216-1024}, v{vA[0]}"); a.i(f"v_add_u32 v{vA[2]}, {64*9216-2048}, v{vA[0]}")
    def su_cas():
        a.i(f"s_or_b32 s{sT0}, s2, s{sW}")
        a.i("s_cbranch_scc1 L_nocas")
        a.i("s_waitcnt lgkmcnt(0)")
        a.i(f"s_add_u32 s{sE}, s{sE}, {TAGC}"); a.i(f"s_or_b32 s{sE}, s{sE}, 1")
        a.i(f"v_mov_b32 v{vCs}, s{sE}"); a.i(f"v_mov_b32 v{vCs+1}, {EPOCH_OFF}")
        a.i(f"buffer_store_dword v{vCs}, off, s[{SDBG}:{SDBG+3}], 0 sc1")
        a.i(f"buffer_store_dword v{vCs}, v{vCs+1}, {WS}, 0 offen sc1")
        a.label("L_nocas")

    def su_early():
        a.i(f"v_bfe_u32 v{t0}, v{vLane}, 2, 2"); a.i(f"v_lshlrev_b32 v{t1}, 6, v{t0}")
        a.i(f"v_and_b32 v{t0}, 3, v{vLane}"); a.i(f"v_lshl_add_u32 v{t1}, v{t0}, 3, v{t1}")
        a.i(f"v_mul_u32_u24 v{t0}, {QS}, v{vq}"); a.i(f"v_add_u32 v{vRd[0]}, v{t0}, v{t1}")
        a.i(f"v_add_u32 v{vRd[1]}, {2*SLOT}, v{vRd[0]}"); a.i(f"v_add_u32 v{vRd[2]}, {4*SLOT}, v{vRd[0]}")
        a.i(f"s_mul_i32 s{sT1}, s{sS}, 576"); a.i(f"s_and_b32 s{sT2}, s{sS}, 1")
        a.i(f"s_lshl_b32 s{sT3}, s{sT2}, 6"); a.i(f"s_add_u32 s{sT3}, s{sT3}, s{sT1}")
        for j in range(4):
            a.i(f"s_add_u32 s{sPair[j]}, s{sR}, {j}"); a.i(f"s_and_b32 s{sPair[j]}, s{sPair[j]}, 3")
            a.i(f"s_lshl_b32 s{sPair[j]}, s{sPair[j]}, 7"); a.i(f"s_add_u32 s{sPair[j]}, s{sPair[j]}, s{sT3}")
        a.i(f"s_xor_b32 s{sT2}, s{sT2}, 1"); a.i(f"s_lshl_b32 s{sT2}, s{sT2}, 9"); a.i(f"s_add_u32 s{sSing}, s{sT2}, s{sT1}")
        a.i(f"s_mov_b32 s{sBound}, 0x40000")
    U0, U1, U2, U3 = 45, 52, 78, 73
    MK = "s[40:41]"
    def d_q(tb):
        x0_, x1, x2, n, q = tb, tb+1, tb+2, tb+3, tb+4
        return [f"v_bfe_u32 v{n}, v{vL16}, 4, 4", f"v_lshrrev_b32 v{q}, 8, v{vL16}",
            f"s_lshl_b32 s{U0}, s{sW}, 8", f"v_lshlrev_b32 v{x0_}, 3, v{n}", f"v_add_u32 v{x0_}, s{U0}, v{x0_}",
            f"v_lshl_add_u32 v{x1}, v{q}, 10, v{x0_}", f"v_accvgpr_write_b32 a{st('stq')}, v{x1}",
            f"v_add_u32 v{x2}, 1, v{q}", f"v_lshrrev_b32 v{x2}, 2, v{x2}", f"v_lshl_add_u32 v{x1}, v{x2}, 29, v{x1}",
            f"v_accvgpr_write_b32 a{st('stq2')}, v{x1}",
            f"s_mul_i32 s{U0}, s{sR}, 432", f"s_mul_i32 s{U1}, s{sS}, 27", f"s_add_u32 s{U1}, s{U1}, s{U0}",
            f"s_lshl_b32 s{U1}, s{U1}, 10", f"s_add_u32 s{sQst}, s{U1}, {QKV_BASE}",
            f"v_lshl_add_u32 v{x1}, v{q}, 11, v{x0_}", f"v_accvgpr_write_b32 a{st('qA')}, v{x1}",
            f"v_lshl_add_u32 v{x1}, v{q}, 1, 5", f"v_cmp_gt_u32 {MK}, 2, v{q}", "?s_nop 1",
            f"v_cndmask_b32 v{x1}, 4, v{x1}, {MK}", f"v_lshl_add_u32 v{x1}, v{x1}, 10, v{x0_}", f"v_accvgpr_write_b32 a{st('qB')}, v{x1}",
            f"s_mul_i32 s{U1}, s{sS}, 9", f"s_add_u32 s{U1}, s{U1}, s{U0}", f"s_lshl_b32 s{U1}, s{U1}, 10", f"s_add_u32 s{sQld}, s{U1}, {QKV_BASE}",
            f"s_add_u32 s{U2}, s{sW}, 144", f"s_lshl_b32 s{U2}, s{U2}, 10", f"s_add_u32 s{sKV[2]}, s{U2}, s{sQld}",
            f"s_sub_u32 s{sKV[0]}, s{sKV[2]}, {2*432*1024}", f"s_cmp_ge_u32 s{sR}, 2", f"s_cselect_b32 s{sKV[0]}, s{sKV[0]}, {OOB}",
            f"s_sub_u32 s{sKV[1]}, s{sKV[2]}, {432*1024 + 1024}", f"s_cmp_ge_u32 s{sR}, 1", f"s_cselect_b32 s{sKV[1]}, s{sKV[1]}, {OOB}",
            f"s_sub_u32 s{sKV[2]}, s{sKV[2]}, 2048"]
    def d_h(tb):
        x2 = tb
        return [f"s_and_b32 s{U2}, s{sS}, 1", f"s_lshl_b32 s{U1}, s{sR}, 1", f"s_add_u32 s{U1}, s{U1}, s{U2}",
            f"s_mul_i32 s{sPF}, s{U1}, 20", f"s_add_u32 s{sPF}, s{sPF}, s{sW}", f"s_lshl_b32 s{sPF}, s{sPF}, 6", f"s_add_u32 s{sPF}, s{sPF}, {PF_BASE}",
            f"s_lshl_b32 s{U1}, s{sR}, 4", f"s_add_u32 s{U1}, s{U1}, s{sS}", f"s_lshl_b32 s{U3}, s{U1}, 2", f"s_add_u32 s{U3}, s{U3}, s{sW}",
            f"s_mul_i32 s{sHst}, s{U3}, {HXS}", f"s_add_u32 s{sHst}, s{sHst}, {HX_BASE}",
            f"s_lshl_b32 s{U1}, s{U3}, 6", f"s_add_u32 s{U1}, s{U1}, {HF_BASE}", f"v_accvgpr_write_b32 a{st('hfo')}, s{U1}",
            f"v_min_u32 v{x2}, 64, v{vL16}", f"v_lshlrev_b32 v{x2}, 4, v{x2}", f"v_add_u32 v{x2}, s{sPF}, v{x2}",
            f"v_writelane_b32 v{x2}, s{U1}, 7", f"v_accvgpr_write_b32 a{st('pt')}, v{x2}",
            f"s_xor_b32 s{U1}, s{U1}, 256", f"v_accvgpr_write_b32 a{st('hfp')}, s{U1}",
            f"s_xor_b32 s{U3}, s{U3}, 4", f"s_mul_i32 s{sHld}, s{U3}, {HXS}", f"s_add_u32 s{sHld}, s{sHld}, {HX_BASE}",
            f"s_and_b32 s{U0}, s{sI}, 1", f"s_xor_b32 s{U0}, s{U0}, 1",
            f"s_mul_i32 s{U3}, s{U2}, {640 << 5}", f"s_sub_u32 s{U1}, s{sHld}, s{U3}",
            f"s_lshl_b32 s{U3}, s{U0}, 11", f"s_add_u32 s{sPo[0]}, s{U1}, s{U3}", f"s_xor_b32 s{U3}, s{U3}, 0x800", f"s_add_u32 s{sPo[1]}, s{U1}, s{U3}",
            f"s_mul_i32 s{U3}, s{sI}, {8*HXS}", f"s_sub_u32 s{sPbase}, s{sHld}, s{U3}"]
    def d_flags(tb):
        m, d, x = tb, tb+1, tb+2
        return [f"v_bfe_u32 v{m}, v{vL16}, 6, 2", f"v_min_u32 v{m}, 2, v{m}", f"v_bfe_u32 v{d}, v{vL16}, 4, 2", f"v_min_u32 v{d}, 2, v{d}",
            f"v_min_u32 v{x}, 1, v{m}", f"v_mul_u32_u24 v{d}, v{d}, v{x}", f"v_sub_u32 v{d}, s{sR}, v{d}", f"v_max_i32 v{d}, 0, v{d}",
            f"v_lshl_add_u32 v{m}, v{m}, 4, s{sS}", f"v_mul_u32_u24 v{m}, 0x5556, v{m}", f"v_lshrrev_b32 v{m}, 16, v{m}",
            f"v_lshl_add_u32 v{m}, v{d}, 4, v{m}", f"v_lshlrev_b32 v{m}, 7, v{m}", f"v_add_u32 v{m}, {QF_BASE}, v{m}",
            f"v_accvgpr_write_b32 a{st('qf')}, v{m}"]
    def d_B(tb):
        x0_, x1, x2, x3, pc_, tt_ = tb, tb+1, tb+2, tb+3, tb+4, tb+5
        L = [f"v_and_b32 v{pc_}, 48, v{vL16}", f"v_lshrrev_b32 v{tt_}, 9, v{vL16}",
            f"v_mul_u32_u24 v{x1}, {32*9216 - 64}, v{tt_}", f"v_add_u32 v{x1}, v{x1}, v{vA[0]}"]
        for i in range(3):
            if i: L.append(f"v_add_u32 v{x1}, {64*9216-1024}, v{x1}")
            L.append(f"v_accvgpr_write_b32 a{st('sing',3)+i}, v{x1}")
        L += [f"s_and_b32 s{U0}, s{sI}, 1", f"s_xor_b32 s{U0}, s{U0}, 1",
            f"v_xor_b32 v{x3}, s{U0}, v{tt_}", f"v_lshlrev_b32 v{x3}, 6, v{x3}",
            f"v_bfe_u32 v{x0_}, v{vL16}, 6, 2", f"v_bfe_u32 v{x1}, v{vL16}, 8, 1",
            f"v_xor_b32 v{x2}, s{sS}, v{x1}", f"v_mul_u32_u24 v{x2}, 36, v{x2}", f"v_add3_u32 v{x2}, v{x2}, v{x0_}, 16",
            f"v_mul_u32_u24 v{x2}, 1152, v{x2}", f"v_add_u32 v{x2}, v{x2}, v{pc_}", f"v_accvgpr_write_b32 a{st('Obm')}, v{x2}",
            f"v_add_u32 v{x2}, v{x2}, v{x3}", f"v_accvgpr_write_b32 a{st('Ob')}, v{x2}",
            f"s_lshl_b32 s{U1}, s{sW}, 2", f"v_add_u32 v{x0_}, s{U1}, v{x0_}"]
        for name, hi in (("D", 16), ("Oa", 20)):
            L += [f"v_mad_u32_u24 v{x2}, v{x1}, {hi}, v{x0_}", f"v_mul_u32_u24 v{x2}, 1152, v{x2}", f"v_add_u32 v{x2}, v{x2}, v{pc_}",
                  f"v_accvgpr_write_b32 a{st(name+'m')}, v{x2}", f"v_add_u32 v{x2}, v{x2}, v{x3}", f"v_accvgpr_write_b32 a{st(name)}, v{x2}"]
        return L
    def d_rows(tb):
        L = [f"s_mul_i32 s{sKo[j]}, s{sPair[j]}, 576" for j in range(4)] + [f"s_mul_i32 s{sKo[4]}, s{sSing}, 576"]
        L += [f"s_and_b32 s{U0}, s{sS}, 1", f"s_lshl_b32 s{U0}, s{U0}, 1", f"s_sub_u32 s{U0}, 1, s{U0}",
              f"s_mul_i32 s{U1}, s{U0}, {320*1152}"]
        L += [f"s_add_u32 s{sKp[j]}, s{sKo[j]}, s{U1}" for j in range(4)]
        L += [f"s_mul_i32 s{U1}, s{U0}, {32*1152}", f"s_add_u32 s{sKp[4]}, s{sKo[4]}, s{U1}",
              f"s_mul_i32 s{sAo}, s{sS}, {36*1152}", f"s_mul_i32 s{U1}, s{U0}, {36*1152}", f"s_add_u32 s{sAp}, s{sAo}, s{U1}"]
        L += [f"s_add_u32 s{sKo2[j]}, s{sKo[j]}, {32*1152}" for j in range(4)] + [f"s_add_u32 s{sKp2[j]}, s{sKp[j]}, {32*1152}" for j in range(4)]
        return L
    def d_T1(tb):
        x0_, x1, x2, n, q = tb, tb+1, tb+2, tb+3, tb+4
        return [f"v_bfe_u32 v{n}, v{vL16}, 4, 4", f"v_lshrrev_b32 v{q}, 8, v{vL16}",
            f"s_lshl_b32 s{U0}, s{sW}, 8", f"s_add_u32 s{U0}, s{U0}, {TBASE}",
            f"v_lshlrev_b32 v{x0_}, 3, v{n}", f"v_add_u32 v{x0_}, s{U0}, v{x0_}",
            f"v_mul_u32_u24 v{x1}, {2*GS}, v{q}", f"v_add_u32 v{x1}, v{x1}, v{x0_}", f"v_accvgpr_write_b32 a{st('KA')}, v{x1}",
            f"v_lshl_add_u32 v{x1}, v{q}, 1, 6", f"v_cmp_gt_u32 {MK}, 2, v{q}", "?s_nop 1", f"v_cndmask_b32 v{x1}, 4, v{x1}, {MK}",
            f"v_mul_u32_u24 v{x1}, {GS}, v{x1}", f"v_add_u32 v{x1}, v{x1}, v{x0_}", f"v_accvgpr_write_b32 a{st('KB')}, v{x1}",
            f"v_lshrrev_b32 v{x0_}, 6, v{vL16}", f"v_lshlrev_b32 v{x0_}, 3, v{x0_}", f"s_add_u32 s{U0}, s{U0}, {10*GS}", f"v_add_u32 v{x0_}, s{U0}, v{x0_}",
            f"v_bfe_u32 v{x1}, v{vL16}, 4, 2", f"v_mul_u32_u24 v{x2}, {GS}, v{x1}", f"v_add_u32 v{x2}, v{x2}, v{x0_}", f"v_accvgpr_write_b32 a{st('V0')}, v{x2}",
            f"v_min_u32 v{x1}, 1, v{x1}", f"v_add_u32 v{x1}, 4, v{x1}", f"v_mul_u32_u24 v{x2}, {GS}, v{x1}", f"v_add_u32 v{x2}, v{x2}, v{x0_}",
            f"v_accvgpr_write_b32 a{st('V1')}, v{x2}",
            f"v_mul_u32_u24 v{x0_}, 1152, v{n}", f"v_lshl_add_u32 v{x0_}, v{q}, 3, v{x0_}", f"v_accvgpr_write_b32 a{st('ov')}, v{x0_}"]
    def d_T2(tb):
        x0_, x1, x2, x3 = tb, tb+1, tb+2, tb+3
        L = [f"v_bfe_u32 v{x1}, v{vL16}, 4, 4", f"v_lshrrev_b32 v{x0_}, 8, v{vL16}", f"v_lshlrev_b32 v{x0_}, 2, v{x0_}", f"v_sub_u32 v{x0_}, v{x1}, v{x0_}",
             f"v_mov_b32 v{x1}, {f2u(-1e30)}"]
        for r in range(4):
            L += [f"v_cmp_le_i32 {MK}, {r}, v{x0_}", "?s_nop 1", f"v_cndmask_b32 v{x2}, 0, v{x1}, {MK}", f"v_accvgpr_write_b32 a{st('mf',4)+r}, v{x2}",
                  f"v_xor_b32 v{x2}, v{x2}, v{x1}", f"v_accvgpr_write_b32 a{st('ml',4)+r}, v{x2}"]
        L += [f"v_and_b32 v{x2}, 1, v{x0_}", f"v_lshlrev_b32 v{x2}, 4, v{x2}", f"v_mov_b32 v{x1}, 0x3f80", f"v_lshlrev_b32 v{x1}, v{x2}, v{x1}",
              f"v_ashrrev_i32 v{x0_}, 1, v{x0_}"]
        for hf in range(2):
            L += [f"v_cmp_eq_u32 {MK}, {hf}, v{x0_}", "?s_nop 1", f"v_cndmask_b32 v{x3}, 0, v{x1}, {MK}", f"v_accvgpr_write_b32 a{SEL+2+hf}, v{x3}"]
        L += [f"v_accvgpr_write_b32 a{SEL+r}, 0" for r in (0, 1, 4, 5)]
        return L
    def d_col(tb):
        L = [f"s_and_b32 s{U2}, s{sS}, 1", f"s_lshl_b32 s{U0}, s{U2}, 6", f"s_add_u32 s{sCol[0]}, s{U0}, 512",
             f"s_mul_i32 s{U2}, s{U2}, 640", f"s_lshr_b32 s{U1}, s{sI}, 1"]
        for p in range(1, 5):
            L += [f"s_xor_b32 s{U0}, s{U1}, {4-p}", f"s_lshl_b32 s{U0}, s{U0}, 7", f"s_add_u32 s{sCol[p]}, s{U0}, s{U2}"]
        return L

    stages = {}
    post = {}
    def X(S, t): return f"v[{XN+8*S+4*t}:{XN+8*S+4*t+3}]"
    def slot_of(k):
        if k < 28: return k % NS
        if k < 33: return k % 4
        return [1, 2, 3, 0, 4, 5][(k - 36) % 6]
    def grp(k, g, srdreg, soffs, vregs):
        slot = slot_of(k) * SLOT
        out = [("s", f"s_add_u32 m0, s{sMq}, {slot + 3072*g}")]
        out += [("s", t) for t in soffs]
        for i, v in enumerate(vregs):
            out.append(("m", f"buffer_load_dwordx4 v{v}, s[{srdreg}:{srdreg+3}], s{sOff} offen offset:{1024*i} lds"))
        return out
    k = 0
    for stg in range(6):
        dma = []
        for P in range(2):
            dma += grp(k, P, SQKV, [f"s_add_u32 s{sOff}, s{sKr3[stg//2]}, {(stg%2)*96*3456 + 128*P}"], vS)
        fr = []
        for uu in range(3):
            S = 3*stg + uu
            for tau in range(7):
                P = tau // 4; off = 1024*(3*P + uu) + 512*((tau % 4)//2) + 32*(tau % 2)
                fr.append((off, QACC + 8*tau, X(S, 0), X(S, 1), S == 0, ("Q", S, tau)) + ((D2 + 4*tau,) if stg < nraw else ()))
        stages[k] = dict(dma=dma, fr=fr); k += 1
    rot = 2
    for j in range(4):
        ag = ACC[rot % 3]; au = ACC[(rot + 1) % 3]; rot += 2
        for (srdreg, acc) in ((SG, ag), (SU, au)):
            for stg in range(3):
                dma = grp(k, 0, srdreg, [f"s_add_u32 s{sOff}, s{sPair[j]}, s{sKr9[stg]}"], vA)
                dma += grp(k, 1, srdreg, [f"s_add_u32 s{sOff}, s{sOff}, {96*9216}"], vA)
                fr = []
                for uu in range(6):
                    S = 6*stg + uu
                    for tau in range(4):
                        fr.append((1024*uu + 512*(tau//2) + 32*(tau%2), acc + 8*tau, X(S, 0), X(S, 1), S == 0, None))
                stages[k] = dict(dma=dma, fr=fr); k += 1
            if srdreg == SG: post[k-1] = ("g", [ag], ag, 4)
        post[k-1] = ("h", [ag, au], [(ag, au, 2*j), (ag+16, au+16, 2*j+1)])
    ag = ACC[rot % 3]
    for stg in range(3):
        dma = grp(k, 0, SG, [f"s_add_u32 s{sOff}, s{sSing}, s{sKr9[stg]}"], vS) + [x if x[1] != "s_nop 0" else ("n", "s_nop 0") for x in grp(k, 1, SU, ["s_nop 0"], vS)]
        if stg == 0: dma = [("v", f"v_accvgpr_read_b32 v{vS[i]}, a{st('sing',3)+i}") for i in range(3)] + dma
        fr = []
        for uu in range(6):
            S = 6*stg + uu
            for m in range(2):
                for c in range(2):
                    fr.append((3072*m + 1024*(uu//2) + 512*(uu%2) + 32*c, ag + 16*m + 8*c, X(S, 0), X(S, 1), S == 0, None))
        stages[k] = dict(dma=dma, fr=fr); k += 1
    post[k-1] = ("h", [ag], [(ag, ag+16, 8)])
    assert k == 33
    KB0 = 36
    ent = [(p, ks) for ks in range(19) for p in (1, 0)] + [(2, ks) for ks in range(odef)] + [(p, ks) for ks in (19, 20) for p in (1, 0)]
    ent += [(2, ks) for ks in range(odef, 21)]
    for p in (3, 4): ent += [(p, ks) for ks in range(21)]
    BACC = {0: 144, 1: 176, 2: 208, 3: 144, 4: 176}
    def Hop(ks, t):
        if ks < 10: b = H + 8*ks + 4*t
        elif ks < 20: b = HP + 8*(ks-10) + 4*t
        else: b = HB + 4*t
        return f"a[{b}:{b+3}]"
    nBst = (len(ent) + 5) // 6
    last_fr = [[], []]
    bpost = {}
    for sb in range(nBst):
        k = KB0 + sb; slot = slot_of(k) * SLOT
        dma = []; fr = []
        for u, (p, ks) in enumerate(ent[6*sb:6*sb+6]):
            i = u % 3
            if i == 0: dma.append(("s", f"s_add_u32 m0, s{sMq}, {slot + 3072*(u//3)}"))
            kk = ks % 10
            if ks == 20:
                dma.append(("v", f"v_accvgpr_read_b32 v{vT1}, a{st('Obm' if p == 0 else 'Ob')}"))
                dma.append(("v", f"v_add_u32 v{vT1}, {2048-1024*i}, v{vT1}"))
                dma.append(("m", f"buffer_load_dwordx4 v{vT1}, s[{SO}:{SO+3}], s{sCol[p]} offen offset:{1024*i} lds"))
            elif kk == 9:
                dma.append(("v", f"v_accvgpr_read_b32 v{vT1}, a{st('Oam' if p == 0 else 'Oa')}"))
                dma.append(("v", f"v_add_u32 v{vT1}, {2048-1024*i}, v{vT1}"))
                dma.append(("s", f"s_add_u32 s{sOff}, s{sAo if ks < 10 else sAp}, s{sCol[p]}"))
                dma.append(("m", f"buffer_load_dwordx4 v{vT1}, s[{SO}:{SO+3}], s{sOff} offen offset:{1024*i} lds"))
            else:
                if ks == 0:
                    regs = vA if p == 0 else vS
                    dma.append(("v", f"v_accvgpr_read_b32 v{regs[2]}, a{st('Dm' if p == 0 else 'D')}"))
                    dma.append(("v", f"v_add_u32 v{regs[2]}, s{sCol[p]}, v{regs[2]}"))
                    dma += [("v", f"v_add_u32 v{regs[j]}, {2048-1024*j}, v{regs[2]}") for j in range(2)]
                elif i == 0: dma.append(("n", "s_nop 0"))
                tab = ((sKo, sKo2) if ks < 10 else (sKp, sKp2))[kk % 2]
                v = (vA if p == 0 else vS)[i]
                dma.append(("m", f"buffer_load_dwordx4 v{v}, s[{SD}:{SD+3}], s{tab[kk//2]} offen offset:{1024*i} lds"))
            for tau in range(2 if p == 0 else 4):
                f = (1024*u + 512*(tau//2) + 32*(tau%2), BACC[p] + 8*tau, Hop(ks, 0), Hop(ks, 1), ks == 0, ("B", p, ks, tau))
                if p == 4 and tau >= 2: last_fr[1].append((k,) + f)
                else: fr.append(f)
        stages[k] = dict(dma=dma, fr=fr)
    KEND = KB0 + nBst

    def emit_dma(k):
        for it in stages[k]["dma"]: emit_dma_item(k, it)

    fill = deque(); fill2 = deque(); fill3 = deque(); dmaq = deque(); extq = []; spin_blocks = []; pubs = []; toks = {}
    hooks = {}; ihooks = {}
    def emit_fill(it):
        kind, txt = it[1], it[2]
        if kind == "m": return a.vm(txt)
        if kind == "d": return a.ds(txt)
        if kind == "f": return txt()
        a.i(txt)
    def F(nb, kind, txt, sets=(), space=0): fill.append((nb, kind, txt, list(sets), space))
    def Fm(nb, name, txt, sets=(), space=0):
        def fn(): toks[name] = a.vm(txt)
        fill.append((nb, "f", fn, list(sets), space))
    def defer(L, accset):
        i = 0
        while i < len(L):
            g = [L[i]]; i += 1
            if g[0].startswith("s_cmp") or (i < len(L) and L[i].startswith("?")): g.append(L[i]); i += 1
            fill3.append((g, accset))
    def emit3(drain=False):
        g, _ = fill3.popleft()
        for t in g:
            if t.startswith("?"):
                if drain: a.i(t[1:])
            else: a.i(t)
    def G(nb, kind, txt, space=0): fill2.append((nb, kind, txt, [], space))
    def Gm(nb, name, txt, space=0):
        def fn(): toks[name] = a.vm(txt)
        fill2.append((nb, "f", fn, [], space))
    def poll_check(name, va, vf, soff="0", offs=0):
        a.wait(vm=toks[name])
        a.i(f"v_cmp_ne_u32 vcc, s{sTag}, v{vf}")
        a.i("s_nop 0")
        a.i("s_cmp_lg_u64 vcc, 0")
        a.i(f"s_cbranch_scc1 L_spin_{name}")
        a.label(f"L_back_{name}")
        spin_blocks.append((name, va, vf, soff, offs))
    def stream(frs, dma_after, flush=True, gap=gap, tailnop=True):
        N = len(frs); first_of = {}
        for i, f in enumerate(frs): first_of.setdefault(f[0], i)
        rd = {}; nextbar = [0]; hold_until = [0]; lastd = [-100]; gpf = 3 if len(frs[0]) > 7 else 2
        def rd_half(i, hf):
            k, off = frs[i][0], frs[i][1]
            o = slot_of(k) * SLOT + off; base = vRd[o // (2*SLOT)]; oo = o % (2*SLOT)
            fb = FR + 4*(i % NB) + 2*hf
            rd[i] = a.ds(f"ds_read_b64_tr_b16 a[{fb}:{fb+1}], v{base} offset:{oo + 256*hf}")
        def pre_read(i, cur):
            k = frs[i][0]
            if first_of[k] == i:
                nfl = 0
                while any(kk == k for kk, _ in dmaq):
                    kk, it = dmaq.popleft(); emit_dma_item(kk, it); nfl += 1
                if nfl: print("late flush", nfl, "at", k, file=sys.stderr)
                tr.stage = k; tr(f"w{k}")
                a.wait(vm=dma_tok[k])
                a.i("s_barrier")
                tr(f"b{k}")
                for p in list(pubs):
                    if p[3] and toks.get(p[0]) is not None and toks[p[0]] <= a.vm_done:
                        p[1](); pubs.remove(p); print("pub", p[0], "at barrier", k, file=sys.stderr)
                for kk in dma_after(k):
                    for it in stages[kk]["dma"]: dmaq.append((kk, it))
                if k in hooks: hooks[k](cur)
                nextbar[0] = first_of.get(k + 1, N + D) - D
                return True
            return False
        for i in range(min(D, N)):
            pre_read(i, 0); rd_half(i, 0); rd_half(i, 1)
        a.wait(lg=rd[1])
        gi = 0; lastm = -100
        def other(i):
            nonlocal lastm
            for p in list(pubs):
                if not p[3] and toks.get(p[0]) is not None:
                    if toks[p[0]] <= a.vm_done or (p[2][0] is not None and i >= p[2][0]):
                        print("pub", p[0], "at frag", i, "stage", frs[i][0], "forced" if toks[p[0]] > a.vm_done else "", file=sys.stderr); a.wait(vm=toks[p[0]]); p[1](); pubs.remove(p); return
                    if p[2][0] is None: p[2][0] = i + p[2][1]
            if dmaq:
                kk, it = dmaq[0]
                ok = True
                if it[0] == "n":
                    dmaq.popleft(); kk, it = dmaq[0]
                if it[0] == "h":
                    dmaq.popleft(); hold_until[0] = gi + it[1]; ok = False
                elif it[0] == "m":
                    if kk == "z": ok = gi - lastm >= 2
                    else:
                        g_eff = gap; urgent = False; cnt = 0
                        for k2, it2 in dmaq:
                            if it2[0] != "m": continue
                            cnt += 1
                            if k2 in first_of:
                                dl = gpf * (first_of[k2] - D) - lead
                                if gi + cnt * gap > dl: g_eff = min(g_eff, max(2, (dl - gi) // cnt)); urgent = True
                        ok = gi - lastd[0] >= g_eff and gi - lastm >= 2 and (gi >= hold_until[0] or urgent)
                if ok:
                    dmaq.popleft(); emit_dma_item(kk, it)
                    if isinstance(it[1], str) and it[1].startswith("s_cmp"):
                        kk, it = dmaq.popleft(); emit_dma_item(kk, it)
                    if it[0] == "m": lastm = gi; lastd[0] = gi
                    return
            for q_ in (fill, fill2):
                if q_ and q_[0][0] <= i and (q_[0][4] == 0 or gi - lastm >= q_[0][4]):
                    it = q_.popleft(); emit_fill(it)
                    if it[4]: lastm = gi
                    return
            if fill3: emit3()
        for i in range(N):
            k, off, acc, b0, b1, first, tag = frs[i][:7]
            if first_of[k] == i: astamp_stage(k)
            if trace == (200, 201) and 24 <= k < 33 and i % 8 == 6: tr.stage = 200; tr(f"a{k}"); tr.stage = k
            if trace == (100, 101) and k >= 36 and i % 8 == 2: tr.stage = 100; tr(f"f{i}"); tr.stage = k
            if i in ihooks: ihooks.pop(i)(i)
            if tag in ihooks: ihooks.pop(tag)(i)
            while extq: dmaq.append(extq.pop(0))
            assert rd[i] <= a.lg_done
            fb = FR + 4*(i % NB)
            if first_of[k] + 1 == i and ("S", k) in ihooks: ihooks.pop(("S", k))(i)
            if first:
                nd = 0
                while any(any((x <= acc < x + 32) if isinstance(x, int) else (x[0] <= acc < x[1]) for x in it[3]) for it in fill):
                    emit_fill(fill.popleft()); nd += 1
                while any(x <= acc < x + 32 for _, x in fill3):
                    emit3(True); nd += 1
                if nd: print("drained", nd, "at stage", k, file=sys.stderr); a.i("s_nop 1")
            for t, b in enumerate((b0, b1)):
                d = f"v[{acc+4*t}:{acc+4*t+3}]"
                a.i(f"{MF} {d}, a[{fb}:{fb+3}], {b}, {'0' if first else d}")
                used = False
                if i + D < N:
                    if t == 0: used = pre_read(i + D, i)
                    rd_half(i + D, t)
                if t == 1 and i + 1 < N and rd[i+1] > a.lg_done:
                    a.wait(lg=rd[min(i+wev, N-1)]); used = True
                if not used: other(i)
                gi += 1
            if len(frs[i]) > 7:
                d = f"v[{frs[i][7]}:{frs[i][7]+3}]"
                a.i(f"{MF} {d}, a[{fb}:{fb+3}], a[{ONES}:{ONES+3}], {'0' if first else d}")
                other(i); other(i); gi += 1
            if tag in bpost: bpost[tag](i + 3)
            if (i + 1 == N or frs[i+1][0] != k) and k in post: do_post(post.pop(k), i + 3)
        while dmaq:
            kk, it = dmaq.popleft(); emit_dma_item(kk, it)
        if tailnop or fill: a.i("s_nop 7")
        while fill: emit_fill(fill.popleft())
        while fill2: emit_fill(fill2.popleft())
        if fill3: print("fill3 left", len(fill3), file=sys.stderr)
        while fill3: emit3(True)
    def astamp_stage(k):
        if k == 6: astamp("P:qend")
        if 6 <= k < 33 and k % 3 == 0: astamp(f"A:{k}")
        if k < 6: astamp(f"Q:{k}")
        if k >= 36 and k % 2 == 0: astamp(f"B:{k}")
    def pack4(nb, d, e, sets):
        F(nb, "v", f"v_cvt_pk_bf16_f32 v{d}, v{d}, v{d+1}", sets); F(nb, "v", f"v_cvt_pk_bf16_f32 v{d+1}, v{d+2}, v{d+3}", sets)
        F(nb, "v", f"v_cvt_pk_bf16_f32 v{d+2}, v{e}, v{e+1}", sets); F(nb, "v", f"v_cvt_pk_bf16_f32 v{d+3}, v{e+2}, v{e+3}", sets)
    def flag_store(voff_txts, soff, offs=0):
        for t in voff_txts: a.i(t)
        a.i(f"v_mov_b32 v{q1}, s{sTag}")
        a.vm(f"buffer_store_dword v{q1}, v{q0}, {WS}, {soff} offen offset:{offs} sc1")
    def do_post(p, nb):
        if p[0] == "g" or (p[0] == "h" and len(p[2]) == 1):
            g = p[2] if p[0] == "g" else p[2][0][0]
            for tau in range(p[3] if p[0] == "g" else 2):
                for t in range(2):
                    for r in range(4): F(nb, "v", f"v_mul_f32 v{g+8*tau+4*t+r}, v{RS2[t]}, v{g+8*tau+4*t+r}", p[1])
        if p[0] == "h":
            sets = p[1]
            for (g, u_, ks) in p[2]:
                F(nb, "s", f"s_add_u32 s{sPst}, s{sHst}, {2048*ks}", sets)
                for t in range(2):
                    for c in range(2):
                        for r in range(4):
                            o = 8*c + 4*t + r
                            F(nb, "v", f"v_mul_f32 v{g+o}, v{g+o}, v{u_+o}", sets)
                    pack4(nb, g + 4*t, g + 8 + 4*t, sets)
                    for r in range(4):
                        F(nb, "v", f"v_accvgpr_write_b32 a{H+8*ks+4*t+r}, v{g+4*t+r}", sets)
                    Fm(nb, "h1st" if (ks, t) == (3, 1) else "hst", f"buffer_store_dwordx4 v[{g+4*t}:{g+4*t+3}], v{vL16}, {WS}, s{sPst} offen offset:{1024*t} sc1", sets, 3)
            if p[2][-1][2] == 3:
                pubs.append(("h1st", lambda: flag_store([f"v_accvgpr_read_b32 v{q0}, a{st('hfo')}"], "0", 8), [None, 110], False))
        elif p[0] == "q":
            sets = p[1]
            F(nb, "v", f"v_accvgpr_read_b32 v{q0}, a{st('stq')}", sets)
            for tau in range(7):
                sets = [ACC[tau // 4]]
                if tau == 6: F(nb, "v", f"v_accvgpr_read_b32 v{q0}, a{st('stq2')}", sets)
                F(nb, "s", f"s_add_u32 s{sPst}, s{sQst}, {4096*tau}", sets)
                for t in range(2):
                    b = QACC + 8*tau + 4*t
                    for r in range(4): F(nb, "v", f"v_mul_f32 v{b+r}, v{QSC[t]}, v{b+r}", sets)
                    F(nb, "v", f"v_cvt_pk_bf16_f32 v{b}, v{b}, v{b+1}", sets); F(nb, "v", f"v_cvt_pk_bf16_f32 v{b+1}, v{b+2}, v{b+3}", sets)
                    Fm(nb, "qdone" if (tau, t) == (6, 1) else "qst", f"buffer_store_dwordx2 v[{b}:{b+1}], v{q0}, {WS}, s{sPst} offen offset:{128*t} sc1", sets, 3)
            def pubq():
                a.i(f"s_lshl_b32 s{sT0}, s{sR}, 4"); a.i(f"s_add_u32 s{sT0}, s{sT0}, s{sS}")
                a.i(f"s_lshl_b32 s{sT0}, s{sT0}, 7"); a.i(f"s_add_u32 s{sT0}, s{sT0}, {QF_BASE}")
                flag_store([f"v_mov_b32 v{q0}, 0"], f"s{sT0}")
            pubs.append(("qdone", pubq, [None, 0], True))

    def hook7(cur): toks["tag"] = a.vm(f"buffer_load_dword v207, off, s[{SDBG}:{SDBG+3}], 0 sc1")
    hooks[7] = hook7
    def hook10(cur):
        a.wait(vm=toks["tag"])
        a.label("L_tagchk")
        a.i(f"v_readfirstlane_b32 s{sTag}, v207")
        a.i("s_nop 0")
        a.i(f"s_cmp_eq_u32 s{sTag}, 0")
        a.i("s_cbranch_scc1 L_tagspin")
        a.label("L_tagok")
    hooks[10] = hook10
    DUM = f"a[{HP+76}:{HP+79}]"
    nw = 8 << lg_rpx
    def wid_code():
        return [("s", f"s_and_b32 s{sT3}, s{sR}, {(1 << lg_rpx) - 1}"), ("s", f"s_lshl_b32 s{sT3}, s{sT3}, 1"),
                ("s", f"s_and_b32 s{sT1}, s{sS}, 1"), ("s", f"s_add_u32 s{sT3}, s{sT3}, s{sT1}"),
                ("s", f"s_lshl_b32 s{sT3}, s{sT3}, 2"), ("s", f"s_add_u32 s{sT3}, s{sT3}, s{sW}")]
    def pf1_items():
        L = wid_code()
        L += [("v", f"v_accvgpr_read_b32 v{q2}, a{st('pt')}"), ("m", f"buffer_load_dword a{HP+75}, v{q2}, {WS}, 0 offen sc1")]
        if gupf is True: return L
        per = (18 * 4 + nw - 1) // nw
        L += [("s", f"s_lshr_b32 s{sT0}, s{sT3}, 2"), ("s", f"s_and_b32 s{sT1}, s{sSing}, 0xffffff80")]
        for j in range(per):
            L += [("s", f"s_add_u32 s{sT2}, s{sT0}, {j * (nw // 4)}"), ("s", f"s_mul_i32 s{sT2}, s{sT2}, {32*9216}"),
                  ("s", f"s_add_u32 s{sT2}, s{sT2}, s{sT1}"),
                  ("m", f"buffer_load_dwordx4 {DUM}, v{vA[0]}, s[{SG}:{SG+3}], s{sT2} offen"),
                  ("m", f"buffer_load_dwordx4 {DUM}, v{vA[0]}, s[{SU}:{SU+3}], s{sT2} offen")]
        return L
    def xr_items(q0=q0, q1=q1, q2=q2):
        L = [("v", f"v_bfe_u32 v{q1}, v{vL16}, 4, 4"), ("v", f"v_mul_u32_u24 v{q1}, 1152, v{q1}"), ("v", f"v_lshrrev_b32 v{q0}, 8, v{vL16}"),
             ("v", f"v_lshl_add_u32 v{q2}, v{q0}, 3, v{q1}"),
             ("s", f"s_and_b32 s{sT2}, s{sS}, 1"), ("s", f"s_mul_i32 s{sT0}, s{sT2}, 640"), ("s", f"s_lshl_b32 s{sT1}, s{sI}, 6"),
             ("s", f"s_add_u32 s{sT0}, s{sT0}, s{sT1}"), ("s", f"s_add_u32 s{sT0}, s{sT0}, s{sXrow}")]
        for t in range(2):
            if t: L.append(("s", f"s_add_u32 s{sT0}, s{sT0}, {16*1152}"))
            for c in range(2):
                L.append(("m", f"buffer_load_dwordx2 a[{XR+4*t+2*c}:{XR+4*t+2*c+1}], v{q2}, s[{SX}:{SX+3}], s{sT0} offen offset:{32*c}"))
        L += [("v", f"v_and_b32 v{q0}, 1, v{q0}"), ("v", f"v_lshl_add_u32 v{q2}, v{q0}, 5, v{q1}"),
              ("s", f"s_lshr_b32 s{sT0}, s{sI}, 2"), ("s", f"s_mul_i32 s{sT0}, s{sT0}, {16*1152}"), ("s", f"s_and_b32 s{sT1}, s{sI}, 3"),
              ("s", f"s_lshl_b32 s{sT1}, s{sT1}, 3"), ("s", f"s_add_u32 s{sT0}, s{sT0}, s{sT1}"), ("s", f"s_lshl_b32 s{sT2}, s{sT2}, 6"),
              ("s", f"s_add_u32 s{sT0}, s{sT0}, s{sT2}"), ("s", f"s_add_u32 s{sT0}, s{sT0}, s{sXrow}"),
              ("m", f"buffer_load_dwordx2 a[{XR+8}:{XR+9}], v{q2}, s[{SX}:{SX+3}], s{sT0} offen offset:512")]
        return L
    def gu_items():
        assert lg_rpx == 4
        L = [("s", f"s_and_b32 s{sT1}, s{sS}, 1"), ("s", f"s_mul_i32 s{sT2}, s{sI}, 1152"),
             ("s", f"s_mul_i32 s{sT0}, s{sR}, {32*9216}"), ("s", f"s_add_u32 s{sT0}, s{sT0}, s{sT2}"),
             ("s", f"s_lshl_b32 s{sT3}, s{sT1}, 7"), ("s", f"s_add_u32 s{sT0}, s{sT0}, s{sT3}")]
        for j in range(5):
            for sr in ((SU,) if gupf == 'U' else (SG, SU)):
                L.append(("m", f"buffer_load_dwordx4 {DUM}, v{vA[0]}, s[{sr}:{sr+3}], s{sT0} offen offset:{256*j}"))
        L += [("s", f"s_add_u32 s{sT1}, s{sT1}, 16"), ("s", f"s_mul_i32 s{sT1}, s{sT1}, {32*9216}"), ("s", f"s_add_u32 s{sT1}, s{sT1}, s{sT2}"),
              ("s", f"s_min_u32 s{sT3}, s{sR}, 8"), ("s", f"s_lshl_b32 s{sT3}, s{sT3}, 7"), ("s", f"s_add_u32 s{sT1}, s{sT1}, s{sT3}")]
        for sr in ((SU,) if gupf == 'U' else (SG, SU)):
            L.append(("m", f"buffer_load_dwordx4 {DUM}, v{vA[0]}, s[{sr}:{sr+3}], s{sT1} offen"))
        return L
    def pf2_items():
        L = []
        for j in range((81 + nw - 1) // nw):
            L += [("s", f"s_add_u32 s{sT2}, s{sT3}, {j * nw + 2}"), ("s", f"s_min_u32 s{sT2}, s{sT2}, 82"),
                  ("s", f"s_lshl_b32 s{sT2}, s{sT2}, 10"), ("s", f"s_mul_i32 s{sT1}, s{sI}, {72*1152}"), ("s", f"s_add_u32 s{sT2}, s{sT2}, s{sT1}"),
                  ("m", f"buffer_load_dwordx4 {DUM}, v{vL16}, s[{SO}:{SO+3}], s{sT2} offen")]
        per_wave = 576 * 1152 // nw
        L += [("s", f"s_mul_i32 s{sT0}, s{sT3}, {per_wave}"), ("s", f"s_mul_i32 s{sT1}, s{sI}, {576*1152}"),
              ("s", f"s_add_u32 s{sT0}, s{sT0}, s{sT1}"), ("s", f"s_add_u32 s{sT0}, s{sT0}, 2048")]
        for j in range((per_wave + 1023) // 1024):
            if j % 4 == 0 and j: L.append(("s", f"s_add_u32 s{sT0}, s{sT0}, 4096"))
            L.append(("m", f"buffer_load_dwordx4 {DUM}, v{vL16}, s[{SD}:{SD+3}], s{sT0} offen offset:{1024*(j%4)}"))
        return L
    def hook_poll_issue(cur):
        assert not any(kk == "z" and it[0] != "h" for kk, it in dmaq)
        a.i(f"v_accvgpr_read_b32 v{q0}, a{st('qf')}")
        toks["kv"] = a.vm(f"buffer_load_dword v{q1}, v{q0}, {WS}, 0 offen sc1")
    def hook_poll_check(cur):
        poll_check("kv", q0, q1)
        for hd, nm in enumerate(("qA", "qB")):
            G(cur, "v", f"v_accvgpr_read_b32 v{q2}, a{st(nm)}")
            for t in range(2):
                for hf in range(2):
                    d = aQ + 8*hd + 4*t + 2*hf
                    Gm(cur, "qld", f"buffer_load_dwordx2 a[{d}:{d+1}], v{q2}, {WS}, s{sQld} offen offset:{128*t + 1024*hf} sc1", 3)
    hooks[19] = hook_poll_issue
    hooks[21] = hook_poll_check
    def h1_issue(cur):
        assert not any(p[0] == "h1st" for p in pubs) and not fill2
        a.i(f"v_accvgpr_read_b32 v{q0}, a{st('hfp')}")
        toks["h1"] = a.vm(f"buffer_load_dword v{q1}, v{q0}, {WS}, 0 offen offset:8 sc1")
    def h1_check(cur):
        poll_check("h1", q0, q1, "0", 8)
        for ks in range(4):
            for t in range(2):
                o = 2048*ks + 1024*t; d = HP + 8*ks + 4*t
                if o % 4096 == 0: G(cur, "s", f"s_add_u32 s{sT3}, s{sHld}, {o}")
                G(cur, "m", f"buffer_load_dwordx4 a[{d}:{d+3}], v{vL16}, {WS}, s{sT3} offen offset:{o % 4096} sc1", 5)
    hooks[26] = h1_issue
    hooks[28] = h1_check
    def hook_pf(cur):
        assert not any(p[0] == "qdone" for p in pubs)
        L = [("z", it) for it in pf1_items() + pf2_items() + (xr_items() if xrat == 'A' else [])] + [("z", ("h", hold))]
        for it in reversed(L): dmaq.appendleft(it)
    hooks[pfk] = hook_pf
    def kv_dma(cur, mat):
        base = TBASE + mat*10*GS; go = mat*144*1024
        L = []
        L.append(("s", f"s_mul_i32 s{sT2}, s{sW}, {GS}"))
        L.append(("s", f"s_add_u32 m0, s{sT2}, {base}"))
        for r2 in range(3):
            L.append(("s", f"s_add_u32 s{sT0}, s{sKV[r2]}, {go}"))
            L.append(("m", f"buffer_load_dwordx4 v{vL16}, {WS}, s{sT0} offen offset:{1024*r2} sc1 lds"))
        L.append(("s", f"s_min_u32 s{sT1}, s{sT2}, {GS}"))
        L.append(("s", f"s_add_u32 s{sT1}, s{sT1}, s{sT2}"))
        L.append(("s", f"s_add_u32 m0, s{sT1}, {base + 4*GS}"))
        for r2 in range(3):
            L.append(("s", f"s_add_u32 s{sT0}, s{sKV[r2]}, {go + 4096}"))
            L.append(("m", f"buffer_load_dwordx4 v{vL16}, {WS}, s{sT0} offen offset:{1024*r2} sc1 lds"))
        L.append(("s", f"s_cmp_eq_u32 s{sW}, 1")); L.append(("s", f"s_cselect_b32 s{sT0}, s{sKV[1]}, s{sKV[2]}"))
        L.append(("s", f"s_cmp_eq_u32 s{sW}, 0")); L.append(("s", f"s_cselect_b32 s{sT0}, s{sKV[0]}, s{sT0}"))
        L.append(("s", f"s_min_u32 s{sT1}, s{sW}, 2")); L.append(("s", f"s_sub_u32 s{sT2}, s{sT1}, s{sW}"))
        L.append(("s", f"s_lshl_b32 s{sT2}, s{sT2}, 10")); L.append(("s", f"s_add_u32 s{sT0}, s{sT0}, s{sT2}"))
        L.append(("s", f"s_lshl_b32 s{sT1}, s{sT1}, 10"))
        L.append(("s", f"s_add_u32 m0, s{sT1}, {base + 9*GS}"))
        L.append(("s", f"s_add_u32 s{sT0}, s{sT0}, {go + 8192}"))
        L.append(("m", f"buffer_load_dwordx4 v{vL16}, {WS}, s{sT0} offen sc1 lds"))
        L.append(("v", f"v_add_u32 v{q2}, s{sT1}, v{vL16}"))
        d = KVS + 4*mat
        if mat == 0:
            L.append(("s", f"s_cmp_ge_u32 s{sT0}, {OOB}")); L.append(("s", f"s_cselect_b32 s{sT0}, 0xf149, 0"))
            L += [("v", f"v_accvgpr_write_b32 a{d}, s{sT0}"), ("v", f"v_accvgpr_write_b32 a{d+1}, 0"),
                  ("v", f"v_accvgpr_write_b32 a{d+2}, s{sT0}"), ("v", f"v_accvgpr_write_b32 a{d+3}, 0")]
        else:
            L += [("v", f"v_accvgpr_write_b32 a{d+r}, s{sC0}") for r in range(4)]
        L.append(("v", f"v_add_u32 v{q2}, {base + 5*GS}, v{q2}"))
        L.append(("d", f"ds_write_b128 v{q2}, a[{d}:{d+3}]"))
        return L
    stages[34] = dict(dma=kv_dma(0, 0), fr=[]); stages[35] = dict(dma=kv_dma(0, 1), fr=[])
    assert nraw == 0
    a.i(f"s_mov_b32 s{sC0}, 0x3f803f80"); a.i(f"s_mov_b32 s{sC1}, 0x3f80")
    RS2 = [vT0, vT1]; QSC = [q1, q2]
    SA = [234, 235, 236, 237]
    PR = [230, 238]; u = [160, 161]; TP = [164 + 2*i for i in range(4)]
    nx = [x0]; xrd = {}
    def xnext():
        if nx[0] < 18:
            if nx[0] >= NXU:
                if (nx[0] - NXU) not in xrd: return
                a.wait(lg=xrd[nx[0] - NXU])
            xdma(nx[0]); nx[0] += 1
    NHOP = 4
    def hop(h):
        def fn():
            if not iwarm: return
            a.i("s_mov_b64 exec, 0")
            for w in range(3):
                a.i(f"s_cmp_eq_u32 s{sW}, {w}"); a.i(f"s_cbranch_scc1 L_w{4*h+w}")
            a.i(f"s_branch L_w{4*h+3}")
            a.label(f"L_wret{h}")
            a.i("s_mov_b64 exec, -1")
        return fn
    def xread(n):
        t, ch = n // 9, n % 9
        while nx[0] <= n: xnext()
        tr(f"x{n}")
        a.wait(vm=dma_tok[("x", n)])
        tr(f"y{n}")
        for Sb in range(2):
            xrd[n] = a.ds(f"ds_read_b128 {X(2*ch + Sb, t)}, v{vXr[Sb]} offset:{2048*(n % NXU)}")
    def stats(n):
        t, ch = n // 9, n % 9
        a.wait(lg=xrd[n])
        for Sb in range(2):
            for i in range(4):
                x = XN + 8*(2*ch + Sb) + 4*t + i
                c1 = "0" if (ch == 0 and Sb == 0 and i < 2) else f"v{SA[i%2]}"
                c2 = "0" if (ch == 0 and Sb == 0 and i < 2) else f"v{SA[2+i%2]}"
                a.i(f"v_dot2_f32_bf16 v{SA[i%2]}, v{x}, s{sC0}, {c1}")
                a.i(f"v_dot2_f32_bf16 v{SA[2+i%2]}, v{x}, v{x}, {c2}")
    inv = 1.0/576.0
    def finstats(t):
        m, q = SA[0], SA[2]; rs, nm = PR[t], PR[t] + 1
        a.i("s_nop 2")
        a.i(f"v_add_f32 v{m}, v{m}, v{SA[1]}"); a.i(f"v_add_f32 v{q}, v{q}, v{SA[3]}")
        for sw in ("v_permlane32_swap_b32", "v_permlane16_swap_b32"):
            a.i(f"v_mov_b32 v{u[0]}, v{m}"); a.i(f"v_mov_b32 v{u[1]}, v{q}")
            a.i("s_nop 1")
            a.i(f"{sw} v{m}, v{u[0]}"); a.i(f"{sw} v{q}, v{u[1]}")
            a.i("s_nop 0")
            a.i(f"v_add_f32 v{m}, v{m}, v{u[0]}"); a.i(f"v_add_f32 v{q}, v{q}, v{u[1]}")
        def rb(r): a.i(f"v_cvt_pk_bf16_f32 v{r}, v{r}, v{r}"); a.i(f"v_lshlrev_b32 v{r}, 16, v{r}")
        a.i(f"v_mul_f32 v{m}, {f2u(inv)}, v{m}"); a.i(f"v_mul_f32 v{q}, {f2u(inv)}, v{q}")
        a.i(f"v_fma_f32 v{q}, -v{m}, v{m}, v{q}"); a.i(f"v_max_f32 v{q}, 0, v{q}")
        rb(q); a.i(f"v_add_f32 v{q}, {f2u(1e-5)}, v{q}"); rb(q)
        a.i(f"v_sqrt_f32 v{q}, v{q}"); rb(m); rb(q)
        a.i(f"v_rcp_f32 v{rs}, v{q}"); a.i(f"v_sub_f32 v{nm}, 0, v{m}")
        a.i(f"v_mul_f32 v{RS2[t]}, v{rs}, v{rs}"); a.i(f"v_mul_f32 v{QSC[t]}, {f2u(QG)}, v{rs}")
    def norm(S, t):
        for i in range(4):
            x = XN + 8*S + 4*t + i; tp = TP[i]
            a.i(f"v_dot2_f32_bf16 v{tp}, v{x}, s{sC1}, v{PR[t]+1}"); a.i(f"v_dot2_f32_bf16 v{tp+1}, v{x}, s{sHi}, v{PR[t]+1}")
        for i in range(4):
            x = XN + 8*S + 4*t + i; tp = TP[i]
            if i == 2: pass
            a.i(f"v_cvt_pk_bf16_f32 v{x}, v{tp}, v{tp+1}")
    sHi = 47
    a.i(f"s_mov_b32 s{sHi}, 0x3f800000")
    tr.stage = -1
    if trace and trace[0] < 0: a.i("s_mov_b32 s48, s53")
    su_early()
    if trace and trace[0] < 0:
        a.i("s_waitcnt lgkmcnt(0)"); a.i(f"v_writelane_b32 v{vLane}, s48, 0"); a.i(f"v_writelane_b32 v{vLane}, s54, 1"); trl.extend(["entry", "karg"])
    work = {hopat[h]: hop(h) for h in range(NHOP)}
    for n in range(9):
        if n in work: work.pop(n)()
        xread(n)
        xnext()
        if n < xfast: xnext()
        if n: stats(n - 1)
    pre = list(range(lnpre))
    vq_ = deque([(kk, it) for kk in pre for it in stages[kk]["dma"]] + ([("z", it) for it in gu_items()] if gupf else []))
    if gupf: dmaq.append(("z", ("h", hold0)))
    def vside():
        while vq_:
            kk, it = vq_.popleft(); emit_dma_item(kk, it)
            if it[0] == "m": break
    su_cas()
    stats(8); finstats(0)
    for n in range(9, 18):
        if n in work: work.pop(n)()
        xread(n)
        xnext()
        if n >= w0at: vside(); vside()
        norm(2*(n-9), 0); norm(2*(n-9)+1, 0)
        stats(n)
    assert not work
    astamp("P:stats")
    finstats(1)
    for S in range(18):
        norm(S, 1)
        if vq_ and (vq_[0][0] != "z" or S >= gu_at): vside()
    while vq_: vside()
    astamp("P:ln")
    if nraw == 6: do_post(("q", [ACC[0], ACC[1]]), 0)
    else: post[5] = ("q", [ACC[0], ACC[1]])
    defer(d_q(208) + d_h(208) + d_B(208), 208)
    def addhook(k, fn):
        old = hooks.get(k)
        hooks[k] = (lambda cur: (old(cur), fn(cur))) if old else fn
    def at_stage(k, L, accset):
        def f(i):
            assert not fill or True
            defer(L, accset)
        ihooks[("S", k)] = f
    at_stage(9, d_flags(200), ACC[1])
    at_stage(12, d_rows(0), -100)
    at_stage(15, d_T1(ACC[0]), ACC[0])
    at_stage(21, d_T2(ACC[2]), ACC[2])
    at_stage(24, d_col(0), -100)
    QO = 0; MFi = 16; MLa = 20; aKA, aKB, aV0, aV1 = 24, 25, 26, 27; w0, w1, w2, w3 = 28, 29, 30, 31
    def d_Tsetup():
        L = [f"v_accvgpr_read_b32 v{r}, a{st(nm)}" for nm, r in (("KA", aKA), ("KB", aKB), ("V0", aV0), ("V1", aV1))]
        for r in range(4): L += [f"v_accvgpr_read_b32 v{MFi+r}, a{st('mf')+r}", f"v_accvgpr_read_b32 v{MLa+r}, a{st('ml')+r}"]
        L += [f"v_lshrrev_b32 v{w0}, 8, v{vL16}", f"v_add_u32 v{w1}, -2, v{w0}", f"v_ashrrev_i32 v{w1}, 31, v{w1}",
              f"v_add_u32 v{w2}, -3, v{w0}", f"v_ashrrev_i32 v{w2}, 31, v{w2}", f"v_xor_b32 v{w3}, v{w1}, v{w2}", f"v_and_b32 v{w3}, 0x3f80, v{w3}"]
        for hd in range(2):
            for t in range(2):
                b = QO + 8*hd + 4*t
                L += [f"v_accvgpr_read_b32 v{b+r}, a{aQ+8*hd+4*t+r}" for r in range(4)]
                L += [f"v_and_b32 v{b}, v{w1 if hd else w2}, v{b}", f"v_and_b32 v{b+1}, v{w2 if hd else w1}, v{b+1}",
                      f"v_and_or_b32 v{b+2}, v{b+2}, v{w1}, v{w3}", f"v_and_b32 v{b+3}, v{w1}, v{b+3}"]
        return L
    def f31(i):
        assert not fill3
        assert toks["qld"] <= a.vm_done
        defer(d_Tsetup(), -100)
    ihooks[("S", 31)] = f31
    todo = [kk for kk in range(nraw, 33) if kk not in dma_tok]
    def dma_after_A(k):
        out = []
        while todo and todo[0] <= k + 4:
            kk = todo[0]
            prev = [x for x in range(nraw, kk) if slot_of(x) == slot_of(kk)]
            if prev and max(prev) > k - 2: break
            out.append(todo.pop(0))
        if k == kvat[0]: out.append(34)
        if k == kvat[1]: out.append(35)
        if k == 31: out.append(36)
        if k == 32: out.append(37)
        return out
    stream([(k,) + f for k in range(nraw, 33) for f in stages[k]["fr"]], dma_after_A)
    assert not todo
    astamp("P:aend"); astamp("A:end"); astamp("T:0")

    tr.stage = 200; tr("aend")
    a.wait(vm=max(dma_tok[34], dma_tok[35]), lg=a.lg_issued)
    a.i("s_barrier")
    SS = 32; OA = 208
    mx = [176, 178]; nmx = [180, 182]
    def Sr(t, kt): return SS + 72*t + 4*kt
    side = deque()
    def side_group(kk, items):
        cur = []
        for it in items:
            cur.append(it)
            if it[0] == "m":
                side.append(lambda kk=kk, cur=cur: [emit_dma_item(kk, x) for x in cur]); cur = []
        assert not cur
    side_group(38, stages[38]["dma"])
    if xrat == 'T': side_group("z", xr_items(196, 197, 198))
    side_group(39, stages[39]["dma"])
    fbn = [0]; NFB = [8]
    def nextfb():
        fb = FR + 4*(fbn[0] % NFB[0]); fbn[0] += 1; return fb
    def rd_k(hd, kt, lazy=None):
        fb = nextfb(); v = aKB if hd else aKA
        o = [f"ds_read_b64 a[{fb}:{fb+1}], v{v} offset:{128*kt}", f"ds_read_b64 a[{fb+2}:{fb+3}], v{v} offset:{128*kt + GS}"]
        if lazy is not None: lazy += o; return fb, None
        a.ds(o[0]); return fb, a.ds(o[1])
    def rd_v(hd, kap, tile, lazy):
        fb = nextfb(); v = aV1 if tile else aV0; o = 256*kap + (6*GS if (hd and not tile) else 0)
        lazy += [f"ds_read_b64_tr_b16 a[{fb}:{fb+1}], v{v} offset:{o}", f"ds_read_b64_tr_b16 a[{fb+2}:{fb+3}], v{v} offset:{o+128}"]
        return fb, None
    def qk_ops(hd, kt, fr):
        fb, tk = fr; o = []
        for t in range(2):
            j = kt - t
            if not 0 <= j <= 16: continue
            c = f"v[{MFi}:{MFi+3}]" if j == 0 else (f"v[{MLa}:{MLa+3}]" if j == 16 else "0")
            d = Sr(t, kt); b = QO + 8*hd + 4*t
            o.append((tk, f"{MF} v[{d}:{d+3}], a[{fb}:{fb+3}], v[{b}:{b+3}], {c}"))
        return o
    def max_ops(kt):
        o = []
        for t in range(2):
            j = kt - t
            if not 0 <= j <= 16: continue
            b = Sr(t, kt); m = mx[t]
            if j == 0:
                o.append(f"v_max_f32 v{m}, v{b}, v{b+1}"); o.append(f"v_max_f32 v{m+1}, v{b+2}, v{b+3}")
            else:
                o.append(f"v_max3_f32 v{m}, v{b}, v{b+1}, v{m}"); o.append(f"v_max3_f32 v{m+1}, v{b+2}, v{b+3}, v{m+1}")
        return o
    def finmax():
        for t in range(2): a.i(f"v_max_f32 v{mx[t]}, v{mx[t]}, v{mx[t]+1}")
        for sw in ("v_permlane32_swap_b32", "v_permlane16_swap_b32"):
            for t in range(2): a.i(f"v_mov_b32 v{mx[t]+1}, v{mx[t]}")
            a.i("s_nop 1")
            for t in range(2): a.i(f"{sw} v{mx[t]}, v{mx[t]+1}")
            a.i("s_nop 0")
            for t in range(2): a.i(f"v_max_f32 v{mx[t]}, v{mx[t]}, v{mx[t]+1}")
        for t in range(2): a.i(f"v_mul_f32 v{nmx[t]+1}, -1.0, v{mx[t]}")
    def exp_ops(kap):
        o1, o2, o3 = [], [], []
        for t in range(2):
            d = Sr(t, 2*kap)
            for hf in range(2):
                kt = 2*kap + hf; b = Sr(t, kt)
                if 0 <= kt - t <= 16:
                    for r in (0, 2): o1.append(f"v_pk_fma_f32 v[{b+r}:{b+r+1}], v[{b+r}:{b+r+1}], v[{nmx[t]}:{nmx[t]+1}], v[{nmx[t]}:{nmx[t]+1}] op_sel:[0,0,1] op_sel_hi:[1,0,1]")
                    for r in range(4): o2.append(f"v_exp_f32 v{b+r}, v{b+r}")
                    o3.append(f"v_cvt_pk_bf16_f32 v{d+2*hf}, v{b}, v{b+1}"); o3.append(f"v_cvt_pk_bf16_f32 v{d+2*hf+1}, v{b+2}, v{b+3}")
                else:
                    o3.append(f"v_mov_b32 v{d+2*hf}, 0"); o3.append(f"v_mov_b32 v{d+2*hf+1}, 0")
        return o1, o2 + o3
    def pv_ops(hd, kap, frs):
        o = []
        for tile in range(2):
            fb, tk = frs[tile]
            for t in range(2):
                d = OA + 16*hd + 8*t + 4*tile; b = Sr(t, 2*kap)
                o.append((tk, f"{MF} v[{d}:{d+3}], a[{fb}:{fb+3}], v[{b}:{b+3}], {'0' if kap == 0 else f'v[{d}:{d+3}]'}"))
        return o
    fbtok = {}
    def dsr(txt):
        tk = a.ds(txt); fbtok[int(re.search(r"a\[(\d+):", txt).group(1)) & ~3] = tk
    def merge(valu, mfs, lead=2, tailgap=1, reads=(), nside=3, lazywait=False):
        n = len(valu); m = len(mfs); pos = {}; reads = list(reads)
        if not lazywait: a.wait(lg=a.lg_issued)
        need = {txt: fbtok.get(int(re.search(r", a\[(\d+):", txt).group(1)), 0) for _, txt in mfs}
        order = [txt for _, txt in mfs]
        while len(reads) > m: dsr(reads.pop(0))
        for j in range(m): pos.setdefault(lead + (j * max(n - lead - tailgap, 1)) // max(m, 1), []).append(mfs[j])
        cnt = 0
        def one(txt):
            nonlocal cnt
            if lazywait and need[txt] > a.lg_done:
                j = order.index(txt); a.wait(lg=max(need[x] for x in order[j:j+4]))
            a.i(txt)
            if reads: dsr(reads.pop(0))
            cnt += 1
            if side and cnt % nside == 0: side.popleft()()
        for i, v in enumerate(valu):
            for (tk, txt) in pos.pop(i, []): one(txt)
            a.i(v)
        for kq in sorted(pos):
            for (tk, txt) in pos[kq]: one(txt)
    def slowT():
        for t in range(2): a.i(f"v_mov_b32 v{nmx[t]}, 1.0")
        for hd in range(2):
            kf = {}
            for kt in range(6): kf[kt] = rd_k(hd, kt)
            for kt in range(18):
                lz = []
                if kt + 6 < 18: fbx, _ = rd_k(hd, kt+6, lz)
                mo = max_ops(kt-3) if kt >= 3 else []
                for (tk, txt) in qk_ops(hd, kt, kf[kt]):
                    a.wait(lg=tk); a.i(txt)
                    if lz: tkx = a.ds(lz.pop(0))
                while lz: tkx = a.ds(lz.pop(0))
                if kt + 6 < 18: kf[kt+6] = (fbx, tkx)
                a.i("s_nop 1")
                for t in mo: a.i(t)
            a.i("s_nop 7")
            for kt in (15, 16, 17):
                for t in max_ops(kt): a.i(t)
            finmax()
            pend = []
            for kap in range(9):
                lz = []
                vf = [rd_v(hd, kap, 0, lz), rd_v(hd, kap, 1, lz)]
                o1, v = exp_ops(kap)
                for t in o1: a.i(t)
                merge(v, pend, lead=0, tailgap=5, reads=lz)
                pend = pv_ops(hd, kap, vf)
            a.i("s_nop 1")
            merge([], pend)
        a.i("s_nop 7")
    def hp_loads():
        for ks in range(4, 9):
            for t in range(2):
                def ld(ks=ks, t=t):
                    o = 2048*ks + 1024*t
                    if o % 4096 == 0: a.i(f"s_add_u32 s{sPst}, s{sHld}, {o}")
                    d = HP + 8*ks + 4*t
                    toks["hld"] = a.vm(f"buffer_load_dwordx4 a[{d}:{d+3}], v{vL16}, {WS}, s{sPst} offen offset:{o % 4096} sc1")
                side.append(ld)
    seq = [(hd, kap) for kap in range(9) for hd in range(2)]
    cur_n = [None]
    Sr_slow = Sr
    def Sr(t, kt):
        if cur_n[0] is None: return Sr_slow(t, kt)
        return SS + 16*(cur_n[0] % 3) + 8*t + 4*(kt % 2)
    def kreads(n, lz):
        hd, kap = seq[n]; return [rd_k(hd, 2*kap, lz), rd_k(hd, 2*kap+1, lz)]
    def qks(n, kf):
        hd, kap = seq[n]; cur_n[0] = n
        r = qk_ops(hd, 2*kap, kf[0]) + qk_ops(hd, 2*kap+1, kf[1]); cur_n[0] = None
        return r
    NFB[0] = 6; V1B = [FR + 24, FR + 28]
    lz = []; k0 = kreads(0, lz); nextfb(); nextfb(); k1 = kreads(1, lz)
    for t in lz: dsr(t)
    a.wait(lg=a.lg_issued - 4)
    for (_, txt) in qks(0, k0): a.i(txt)
    a.i("s_nop 5")
    knext = k1; pv = []
    for n in range(18):
        hd, kap = seq[n]
        tr.stage = 200; tr(f"t{n}")
        mf = (qks(n+1, knext) if n + 1 < 18 else []) + pv
        lz = []; lz2 = []
        v0f = rd_v(hd, kap, 0, lz2)
        if hd == 0:
            v1f = (V1B[kap % 2], None)
            lz2 += [f"ds_read_b64_tr_b16 a[{v1f[0]}:{v1f[0]+1}], v{aV1} offset:{256*kap}", f"ds_read_b64_tr_b16 a[{v1f[0]+2}:{v1f[0]+3}], v{aV1} offset:{256*kap+128}"]
        if n + 2 < 18: knext = kreads(n + 2, lz)
        cur_n[0] = n
        _, v = exp_ops(kap)
        pvn = pv_ops(hd, kap, [v0f, v1f])
        cur_n[0] = None
        merge(v, mf, lead=0, tailgap=tg, reads=lz + lz2, nside=4, lazywait=True)
        pv = pvn
        if n == th[0]:
            a.wait(vm=toks["hst"])
            flag_store([f"v_accvgpr_read_b32 v{q0}, a{st('hfo')}"], "0", 0)
        if n == th[1]:
            a.i(f"v_accvgpr_read_b32 v{q0}, a{st('hfp')}")
            toks["hp"] = a.vm(f"buffer_load_dword v{q1}, v{q0}, {WS}, 0 offen sc1")
        if n == th[2]:
            poll_check("hp", q0, q1); hp_loads()
    a.i("s_nop 1")
    merge([], pv)
    tr("tl")
    nleft = len(side)
    while side: side.popleft()()
    print("T side left", nleft, file=sys.stderr)
    a.i("s_nop 7")
    L = [0, 1, 2, 3] if False else [84, 85, 86, 87]; L2 = [88, 89, 90, 91]; BT = 92
    idx = [(hd, t) for hd in range(2) for t in range(2)]
    def getl():
        for n, (hd, t) in enumerate(idx):
            d = OA + 16*hd + 8*t + 4
            a.i(f"v_mov_b32 v{L[n]}, v{d}"); a.i(f"v_mov_b32 v{L2[n]}, v{d}")
        a.i("s_nop 1")
        for n in range(4): a.i(f"v_permlane16_swap_b32 v{L2[n]}, v{L[n]}")
        a.i("s_nop 0")
    getl()
    a.i(f"v_min3_f32 v{L2[0]}, v{L[0]}, v{L[1]}, v{L[2]}"); a.i(f"v_add_f32 v{L2[1]}, v{L[0]}, v{L[1]}"); a.i(f"v_add_f32 v{L2[2]}, v{L[2]}, v{L[3]}")
    a.i(f"v_min_f32 v{L2[0]}, v{L2[0]}, v{L[3]}"); a.i(f"v_add_f32 v{L2[1]}, v{L2[1]}, v{L2[2]}")
    a.i(f"v_cmp_nle_f32 vcc, {f2u(2.0**-40)}, v{L2[0]}")
    a.i(f"s_mov_b64 s[{sT1}:{sT1+1}], vcc")
    a.i(f"v_cmp_nge_f32 vcc, {f2u(2.0**40 if not forceslow else 0.0)}, v{L2[1]}")
    a.i("s_nop 0")
    a.i(f"s_or_b64 vcc, vcc, s[{sT1}:{sT1+1}]")
    a.i("s_cbranch_scc1 L_Tslow")
    a.label("L_Tnorm")
    main_lines = a.lines; a.lines = []
    assert a.lg_done == a.lg_issued
    NFB[0] = 8
    a.label("L_Tslow"); slowT(); getl(); a.i("s_branch L_Tnorm")
    assert a.lg_done == a.lg_issued
    slow_lines = a.lines; a.lines = main_lines
    E = []; osets = [OA]
    for n in range(4): E.append(f"v_mul_f32 v{L[n]}, {f2u(QG)}, v{L[n]}")
    for n in range(4): E.append(f"v_rcp_f32 v{L[n]}, v{L[n]}")
    E.append(f"v_add_u32 v{w1}, -1, v{w0}"); E.append(f"v_ashrrev_i32 v{w1}, 31, v{w1}")
    E.append(f"s_add_u32 s{sPst}, s{sHst}, {18*1024}")
    for t in range(2):
        for hd in range(2):
            d = OA + 16*hd + 8*t; n = 2*hd + t
            for r in list(range(4)) + ([6, 7] if hd else [4, 5]): E.append(f"v_mul_f32 v{d+r}, v{L[n]}, v{d+r}")
        d = OA + 8*t; e = OA + 16 + 8*t
        E += [f"v_cvt_pk_bf16_f32 v{BT+2*t}, v{d+4}, v{d+5}", f"v_cvt_pk_bf16_f32 v{BT+2*t+1}, v{e+6}, v{e+7}",
              f"v_cvt_pk_bf16_f32 v{d}, v{d}, v{d+1}", f"v_cvt_pk_bf16_f32 v{d+1}, v{d+2}, v{d+3}",
              f"v_cvt_pk_bf16_f32 v{d+2}, v{e}, v{e+1}", f"v_cvt_pk_bf16_f32 v{d+3}, v{e+2}, v{e+3}",
              f"v_and_b32 v{BT+2*t}, v{w1}, v{BT+2*t}", f"v_and_b32 v{BT+2*t+1}, v{w1}, v{BT+2*t+1}",
              f"buffer_store_dwordx4 v[{d}:{d+3}], v{vL16}, {WS}, s{sPst} offen offset:{1024*t} sc1"]
    E.append(f"buffer_store_dwordx4 v[{BT}:{BT+3}], v{vL16}, {WS}, s{sPst} offen offset:2048 sc1")
    for t in range(2):
        d = OA + 8*t
        E += [f"v_accvgpr_write_b32 a{H+72+4*t+r}, v{d+r}" for r in range(4)]
        E += [f"v_accvgpr_write_b32 a{HB+4*t}, v{BT+2*t}", f"v_accvgpr_write_b32 a{HB+4*t+1}, v{BT+2*t+1}"]
    for n_, t in enumerate(E):
        if n_ < oinl:
            if t.startswith("buffer"): toks["ost" if "2048" in t else "ostx"] = a.vm(t)
            else: a.i(t)
        elif t.startswith("buffer"): Fm(0, "ost" if "offset:2048" in t else "ostx", t, osets)
        else: F(0, "v", t, osets)
    def own_alpha(i):
        nd = 0
        while fill: emit_fill(fill.popleft()); nd += 1
        if nd: print("own alpha drain", nd, file=sys.stderr); a.i("s_nop 1")
    ihooks[("B", 1, 9, 0)] = own_alpha
    pubs.append(("ost", lambda: flag_store([f"v_accvgpr_read_b32 v{q0}, a{st('hfo')}"], "0", 4), [None, od], False))
    tr("tend")
    astamp("P:tend"); astamp("T:end")

    PL = 0
    SQ = 96
    def pstore(p, halves):
        def fn(nb):
            acc = BACC[p]; sets = [(acc, acc + 16*len(halves))]
            for hf in halves:
                if p == 0:
                    F(nb, "s", f"s_add_u32 s{sPst}, s{sHld}, {8*2048}", sets)
                else:
                    F(nb, "s", f"s_lshl_b32 s{sPst}, s{sCol[p]}, 5", sets); F(nb, "s", f"s_add_u32 s{sPst}, s{sPst}, s{sPo[hf]}", sets)
                for t in range(2):
                    d = acc + 16*hf + 4*t
                    pack4(nb, d, d + 8, sets)
                    last = (hf == halves[-1] and t == 1)
                    Fm(nb, f"pst{p}" if last else "pstx", f"buffer_store_dwordx4 v[{d}:{d+3}], v{vL16}, {WS}, s{sPst} offen offset:{1024*t} sc1", sets, 2)
            def pub():
                if p == 0: a.i(f"s_add_u32 s{sT0}, s{sPF}, 1024")
                else:
                    a.i(f"s_lshr_b32 s{sT0}, s{sI}, 1"); a.i(f"s_xor_b32 s{sT0}, s{sT0}, {4-p}")
                    a.i(f"s_lshl_b32 s{sT0}, s{sT0}, 8"); a.i(f"s_add_u32 s{sT0}, s{sT0}, s{sPF}")
                a.i(f"s_lshl_b32 s{sT1}, s{sI}, 2")
                flag_store([f"v_mov_b32 v{q0}, s{sT1}"], f"s{sT0}")
            pubs.append((f"pst{p}", pub, [None, pd if p < 3 else pd3], False))
        return fn
    def tag_store(acc, sreg):
        def fn(nb):
            sets = [(acc, acc + 16)]; src = []; L = []
            for t in range(2):
                for c in range(2):
                    src += [(acc + 8*c + 4*t, acc + 8*c + 4*t + 1), (acc + 8*c + 4*t + 2, acc + 8*c + 4*t + 3)]
            dst = [0, 1, 2, 8, 4, 5, 6, 9]
            for n in range(8):
                L.append((nb, "v", f"v_cvt_pk_bf16_f32 v{SQ+dst[n]}, v{src[n][0]}, v{src[n][1]}", sets, 0))
                if n in (2, 6, 7):
                    j = (2, 6, 7).index(n)
                    L.append((nb, "m", f"buffer_store_dwordx4 v[{SQ+4*j}:{SQ+4*j+3}], v{vL16}, {WS}, s{sreg} offen offset:{1024*j} sc1", sets, 0))
            return L
        return fn
    def c3_store(nb):
        assert not fill, len(fill)
        assert not any(f"v{SQ+11}," in str(it[2]) for it in fill2)
        for it in tag_store(BACC[3], sC3a)(nb) + tag_store(BACC[3] + 16, sC3b)(nb): fill.append(it)
    def sib_store(nb):
        assert not fill, len(fill)
        for it in tag_store(BACC[4], sSibS)(nb): fill.append(it)
    bpost[("B", 0, 20, 1)] = pstore(0, [0])
    for p in (1, 2): bpost[("B", p, 20, 3)] = pstore(p, [0, 1])
    bpost[("B", 3, 20, 3)] = c3_store if c3tag else pstore(3, [0, 1])
    bpost[("B", 4, 20, 1)] = sib_store
    vP0, vP1 = 80, 81
    def h_wait(i): a.wait(vm=toks["hld"])
    ihooks[("B", 1, 14, 0)] = h_wait
    def o_poll(i):
        a.i(f"v_accvgpr_read_b32 v{vP0}, a{st('hfp')}")
        toks["op"] = a.vm(f"buffer_load_dword v{vP1}, v{vP0}, {WS}, 0 offen offset:4 sc1")
    ihooks[("B",) + op[0] + (0,)] = o_poll
    def o_check(i):
        assert not any("v_cndmask" in str(it[2]) for it in fill2)
        poll_check("op", vP0, vP1, "0", 4)
        a.i(f"s_add_u32 s{sT0}, s{sHld}, {18*1024}")
        for t in range(2):
            a.vm(f"buffer_load_dwordx4 a[{HP+72+4*t}:{HP+75+4*t}], v{vL16}, {WS}, s{sT0} offen offset:{1024*t} sc1")
        for t in range(2):
            toks["old"] = a.vm(f"buffer_load_dwordx2 a[{HB+4*t+2}:{HB+4*t+3}], v{vL16}, {WS}, s{sT0} offen offset:{2048+8*t} sc1")
    ihooks[("B",) + op[1] + (0,)] = o_check
    ihooks[("B", 1, 19, 0)] = lambda i: a.wait(vm=toks["old"])
    sOwn, sSibS = sQst, sQld
    sC3a, sC3b = 60, 61; sTL = [62, 63, sQcol]
    sPFo = sKV[0]; sXo = [sKV[1], sKV[2]]; sMf, sMo, sMl = 45, sE, sM4x
    def polladdr(minx):
        a.i(f"v_bfe_u32 v{vP0}, v{vL16}, 4, 3"); a.i(f"v_max_u32 v{vP0}, {minx}, v{vP0}")
        a.i(f"v_xor_b32 v{vP0}, s{sI}, v{vP0}"); a.i(f"v_lshlrev_b32 v{vP0}, 2, v{vP0}")
    MA, MB, MX, MD, vM0, vM1 = 120, 124, 132, 136, 134, 135
    def m_prep(i):
        L = [f"v_bfe_u32 v{MD}, v{vL16}, 4, 4", f"v_lshrrev_b32 v{MD+1}, 8, v{vL16}",
             f"v_mul_u32_u24 v{vM0}, {8*HXS}, v{MD+1}", f"v_lshl_add_u32 v{vM0}, v{MD}, 4, v{vM0}",
             f"s_lshl_b32 s{sMl}, s{sI}, 8", f"s_add_u32 s{sMl}, s{sMl}, s{sPbase}", f"s_add_u32 s{sMl}, s{sMl}, {8*2048}",
             f"v_mul_u32_u24 v{vM1}, 1152, v{MD}", f"v_lshl_add_u32 v{vM1}, v{MD+1}, 5, v{vM1}",
             f"v_lshrrev_b32 v{MD+2}, 1, v{MD+1}", f"v_lshl_add_u32 v{vM1}, v{MD+2}, 29, v{vM1}",
             f"s_lshr_b32 s{sT2}, s{sI}, 2", f"s_mul_i32 s{sMo}, s{sT2}, {16*1152}", f"s_and_b32 s{sT2}, s{sI}, 3", f"s_lshl_b32 s{sT2}, s{sT2}, 3",
             f"s_add_u32 s{sMo}, s{sMo}, s{sT2}", f"s_add_u32 s{sMo}, s{sMo}, s{sCol[0]}", f"s_add_u32 s{sMo}, s{sMo}, s{sXrow}",
             f"s_add_u32 s{sMf}, s{sPF}, 1024",
             f"v_and_b32 v{MD+2}, 1, v{MD}", f"v_lshlrev_b32 v{MD+2}, 4, v{MD+2}", f"v_mov_b32 v{MD+3}, 0x3f80",
             f"v_lshlrev_b32 v{MD+3}, v{MD+2}, v{MD+3}", f"v_lshrrev_b32 v{MD+2}, 1, v{MD}"]
        for t in L: G(i, "v", t)
        for r in range(4):
            G(i, "v", f"v_cmp_eq_u32 vcc, {r}, v{MD+2}"); G(i, "v", f"v_cndmask_b32 v{MA+r}, 0, v{MD+3}, vcc")
        G(i, "v", f"v_accvgpr_read_b32 v{MX}, a{XR+8}"); G(i, "v", f"v_accvgpr_read_b32 v{MX+1}, a{XR+9}")
    ihooks[("B", 1, 1, 0)] = m_prep
    def m_poll(i):
        assert not fill2, len(fill2)
        for t in (f"v_bfe_u32 v{vP0}, v{vL16}, 4, 3", f"v_bfe_u32 v{vP1}, v{vL16}, 7, 1", f"v_mul_u32_u24 v{vP0+2}, 6, v{vP1}",
                  f"v_or_b32 v{vP0}, v{vP0}, v{vP0+2}", f"v_xor_b32 v{vP0}, s{sI}, v{vP0}", f"v_lshlrev_b32 v{vP0}, 2, v{vP0}",
                  f"s_sub_u32 s{sT2}, s{sMf}, s{sPFo}", f"v_xor_b32 v{vP1}, 1, v{vP1}", f"v_mad_u32_u24 v{vP0}, v{vP1}, s{sT2}, v{vP0}"):
            G(i, "v", t)
        Gm(i, "mp", f"buffer_load_dword v{vP1}, v{vP0}, {WS}, s{sPFo} offen sc1")
    ihooks[("B",) + mp[0] + (0,)] = m_poll
    def m_check(i):
        poll_check("mp", vP0, vP1, f"s{sPFo}", 0)
        a.vm(f"buffer_load_dwordx4 v[{MB}:{MB+3}], v{vM0}, {WS}, s{sMl} offen sc1")
        a.i(f"s_add_u32 s{sMl}, s{sMl}, {32*HXS}")
        toks["ml"] = a.vm(f"buffer_load_dwordx4 v[{MB+4}:{MB+7}], v{vM0}, {WS}, s{sMl} offen sc1")
        for t in (f"v_lshlrev_b32 v{MD}, 16, v{MX}", f"v_and_b32 v{MD+1}, 0xffff0000, v{MX}", f"v_lshlrev_b32 v{MD+2}, 16, v{MX+1}", f"v_and_b32 v{MD+3}, 0xffff0000, v{MX+1}"):
            G(i, "v", t)
        for x in (6, 7): G(i, "f", (lambda x=x: pload(x, sOwn, PL + 8*x, "pl")), 6)
    ihooks[("B",) + mp[1] + (0,)] = m_check
    def m_fin(i):
        assert not any(f"v{MD+3}," in str(it[2]) for it in fill2)
        a.wait(vm=toks["ml"])
        for j in range(2): a.i(f"{MF} v[{MD}:{MD+3}], v[{MA}:{MA+3}], v[{MB+4*j}:{MB+4*j+3}], v[{MD}:{MD+3}]")
        G(i + 3, "v", f"v_cvt_pk_bf16_f32 v{MD}, v{MD}, v{MD+1}"); G(i + 3, "v", f"v_cvt_pk_bf16_f32 v{MD+1}, v{MD+2}, v{MD+3}")
        G(i + 3, "m", f"buffer_store_dwordx2 v[{MD}:{MD+1}], v{vM1}, s[{SOUT}:{SOUT+3}], s{sMo} offen{outsc}")
    ihooks[("B",) + mp[2] + (0,)] = m_fin
    def e_poll(i):
        for t in (f"v_bfe_u32 v{vP0}, v{vL16}, 4, 1", f"v_or_b32 v{vP0}, 4, v{vP0}", f"v_xor_b32 v{vP0}, s{sI}, v{vP0}", f"v_lshlrev_b32 v{vP0}, 2, v{vP0}"):
            a.i(t)
        toks["ep"] = a.vm(f"buffer_load_dword v{vP1}, v{vP0}, {WS}, s{sPFo} offen sc1")
    def prep_own(i):
        L = [f"v_accvgpr_read_b32 v{vT0}, a{st('ov')}",
             f"s_lshl_b32 s{sOwn}, s{sI}, 11", f"s_add_u32 s{sOwn}, s{sOwn}, s{sPbase}",
             f"s_and_b32 s{sT2}, s{sS}, 1", f"s_mul_i32 s{sT2}, s{sT2}, 640", f"s_lshl_b32 s{sT3}, s{sI}, 6",
             f"s_add_u32 s{sT2}, s{sT2}, s{sT3}", f"s_add_u32 s{sXo[0]}, s{sT2}, s{sXrow}", f"s_add_u32 s{sXo[1]}, s{sXo[0]}, {16*1152}",
             f"s_lshr_b32 s{sPFo}, s{sI}, 1", f"s_lshl_b32 s{sT2}, s{sPFo}, 12", f"s_lshl_b32 s{sPFo}, s{sPFo}, 8", f"s_add_u32 s{sPFo}, s{sPFo}, s{sPF}",
             f"s_add_u32 s{sSibS}, s{sHld}, s{sT2}", f"s_xor_b32 s{sT3}, s{sT2}, 4096", f"s_add_u32 s{sC3a}, s{sHld}, s{sT3}",
             f"s_add_u32 s{sC3b}, s{sHld}, {18*1024}", f"s_add_u32 s{sT2}, s{sT2}, s{sPbase}"]
        for n, x in enumerate((3, 2, 1)):
            L += [f"s_xor_b32 s{sT3}, s{sI}, {x}", f"s_mul_i32 s{sT3}, s{sT3}, {8*HXS}"]
            if x == 2: L += [f"s_add_u32 s{sT3}, s{sT3}, s{sPbase}", f"s_add_u32 s{sTL[n]}, s{sT3}, {18*1024}"]
            else: L += [f"s_add_u32 s{sTL[n]}, s{sT3}, s{sT2}"]
        L += [f"v_mov_b32 v{SQ+r}, s{sTag}" for r in (3, 7, 10, 11)]
        for t in L: G(i, "v", t)
    ihooks[("B", 1, 2, 0)] = prep_own
    def pload(x, base, dst, name):
        a.i(f"s_xor_b32 s{sT0}, s{sI}, {x}"); a.i(f"s_mul_i32 s{sT0}, s{sT0}, {8*HXS}"); a.i(f"s_add_u32 s{sT0}, s{sT0}, s{base}")
        for t in range(2):
            toks[name] = a.vm(f"buffer_load_dwordx4 v[{dst+4*t}:{dst+4*t+3}], v{vL16}, {WS}, s{sT0} offen offset:{1024*t} sc1")
    def e_check(i):
        poll_check("ep", vP0, vP1, f"s{sPFo}", 0)
        for x in (4, 5): G(i, "f", (lambda x=x: pload(x, sOwn, PL + 8*x, "pl")), 4)
    ihooks[("B", 4) + ep[0]] = e_poll
    ihooks[("B", 4) + ep[1]] = e_check
    SI = [208, 220, 0]
    def tload(n, j): return f"buffer_load_dwordx4 v[{SI[n]+4*j}:{SI[n]+4*j+3}], v{vL16}, {WS}, s{sTL[n]} offen offset:{1024*j} sc1"
    def c3_load(i):
        for n in range(2):
            for j in range(3): Gm(i, "c3l", tload(n, j), 2)
    def sib_load(i):
        for j in range(3): G(i, "m", tload(2, j), 2)
    def e3_poll(i):
        for t in (f"v_bfe_u32 v{vP0}, v{vL16}, 4, 1", f"v_or_b32 v{vP0}, 2, v{vP0}", f"v_xor_b32 v{vP0}, s{sI}, v{vP0}", f"v_lshlrev_b32 v{vP0}, 2, v{vP0}"):
            a.i(t)
        toks["e3"] = a.vm(f"buffer_load_dword v{vP1}, v{vP0}, {WS}, s{sPFo} offen sc1")
    def e3_check(i):
        poll_check("e3", vP0, vP1, f"s{sPFo}", 0)
        for x in (2, 3): pload(x, sOwn, PL + 8*x, "c3l")
    if c3tag: ihooks[("B", 4) + tl[0]] = c3_load
    else:
        ihooks[("B", 4, e3[0], 2)] = e3_poll
        if e3[1] is not None: ihooks[("B", 4, e3[1], 2)] = e3_check
    if tl[1] is not None: ihooks[("B", 4, tl[1], 2)] = sib_load
    def dma_after_B(k):
        if k == 36: return [40, 41]
        if k == 37: return []
        return [k + 4] if k + 4 < KEND else []
    stream([(k,) + f for k in range(KB0, KEND) for f in stages[k]["fr"]] + last_fr[1], dma_after_B, tailnop=False)
    assert not pubs
    astamp("P:bend"); astamp("B:end")
    def accum(acc, src, f="v"):
        for c in range(2):
            for t in range(2):
                d = acc + 8*c + 4*t; s0 = SEL + (0 if c else 2)
                a.i(f"{MF} v[{d}:{d+3}], a[{s0}:{s0+3}], {f}[{src+4*t}:{src+4*t+3}], v[{d}:{d+3}]")
    OWN = BACC[4] + 16
    if not c3tag and e3[1] is None: e3_check(0)
    if tl[1] is None:
        for j in range(3): a.vm(tload(2, j))
    tr.stage = 100; tr("end")
    a.wait(vm=toks["pl"])
    tr("pl")
    accum(OWN, XR, "a")
    for x in range(4, 8): accum(OWN, PL + 8*x)
    CK = 12
    tr("acc")
    a.wait(vm=toks["c3l"])
    tr("c3")
    if not c3tag:
        for x in (2, 3): accum(OWN, PL + 8*x)
    for n in (range(3) if c3tag else [2]):
        if n == 2: tr("c3a"); a.i("s_waitcnt vmcnt(0)"); tr("sib")
        a.label(f"L_tchk{n}")
        a.i(f"v_xor_b32 v{CK}, s{sTag}, v{SI[n]+3}"); a.i(f"v_xor_b32 v{CK+1}, s{sTag}, v{SI[n]+7}"); a.i(f"v_xor_b32 v{CK+2}, s{sTag}, v{SI[n]+11}")
        a.i(f"v_or3_b32 v{CK}, v{CK}, v{CK+1}, v{CK+2}")
        a.i(f"v_cmp_ne_u32 vcc, 0, v{CK}")
        a.i(f"v_mov_b32 v{SI[n]+3}, v{SI[n]+8}"); a.i(f"v_mov_b32 v{SI[n]+7}, v{SI[n]+9}")
        a.i("s_cmp_lg_u64 vcc, 0")
        a.i(f"s_cbranch_scc1 L_tretry{n}")
        a.label(f"L_tok{n}")
        accum(OWN, SI[n])
    a.i("s_nop 4")
    for c in range(2):
        for t in range(2):
            d = OWN + 8*c + 4*t
            a.i(f"v_cvt_pk_bf16_f32 v{d}, v{d}, v{d+1}"); a.i(f"v_cvt_pk_bf16_f32 v{d+1}, v{d+2}, v{d+3}")
            a.vm(f"buffer_store_dwordx2 v[{d}:{d+1}], v{vT0}, s[{SOUT}:{SOUT+3}], s{sXo[t]} offen offset:{32*c}{outsc}")
    tr("st")
    if trace: a.i("s_waitcnt vmcnt(0)"); tr("fin")
    astamp("P:done")
    if trace:
        a.i("s_waitcnt lgkmcnt(0)")
        for n0, p0 in trp: a.i(f"v_writelane_b32 v{vLane}, s{p0}, {n0}")
        a.i(f"s_lshl_b32 s{sT0}, s2, 2"); a.i(f"s_add_u32 s{sT0}, s{sT0}, s{sW}"); a.i(f"s_lshl_b32 s{sT0}, s{sT0}, 8")
        a.i(f"s_add_u32 s{sT0}, s{sT0}, {STAMP_OFF}")
        a.i(f"v_lshrrev_b32 v1, 2, v{vL16}")
        a.i(f"buffer_store_dword v{vLane}, v1, {WS}, s{sT0} offen")
        print("trace:", len(trl), " ".join(trl), file=sys.stderr)
    if stamps:
        a.i(f"s_lshl_b32 s{sT0}, s2, 2"); a.i(f"s_add_u32 s{sT0}, s{sT0}, s{sW}"); a.i(f"s_lshl_b32 s{sT0}, s{sT0}, 6")
        a.i(f"s_add_u32 s{sT0}, s{sT0}, {STAMP_OFF}")
        a.i(f"v_mov_b32 v1, 0")
        for n in range(len(stl)):
            a.i(f"buffer_store_dword a{244+n}, v1, {WS}, s{sT0} offen offset:{4*n}")
        a.i("s_waitcnt vmcnt(0)")
        a.i("s_memrealtime s[80:81]"); a.i("s_waitcnt lgkmcnt(0)"); a.i("v_accvgpr_write_b32 a255, s80")
        a.i(f"buffer_store_dword a254, v1, {WS}, s{sT0} offen offset:56")
        a.i(f"buffer_store_dword a255, v1, {WS}, s{sT0} offen offset:60")
        print("stamps:", stl, file=sys.stderr)
        if probe is not None:
            a.i(f"v_accvgpr_read_b32 v3, a{254 if probe < 0 else 244 + probe}"); a.i("s_nop 1")
            a.i(f"v_readfirstlane_b32 s{sT1}, v3"); a.i("s_nop 3"); a.i(f"s_add_u32 s{sT1}, s{sT1}, 6000")
            if probewg is not None:
                a.i(f"s_cmp_lg_u32 s2, {probewg}"); a.i("s_cbranch_scc1 L_end")
            a.label("L_probe")
            a.i("s_memrealtime s[80:81]"); a.i("s_waitcnt lgkmcnt(0)")
            a.i(f"s_sub_u32 s{sT2}, s80, s{sT1}"); a.i(f"s_cmp_lt_i32 s{sT2}, 0"); a.i("s_cbranch_scc1 L_probe")
        if dbgout:
            a.i(f"s_cmp_lg_u32 s{sW}, 1"); a.i("s_cbranch_scc1 L_end")
            a.i("s_cmp_lt_u32 s2, 248"); a.i("s_cbranch_scc1 L_end")
            a.i("v_accvgpr_read_b32 v3, a254"); a.i("v_accvgpr_read_b32 v4, a255")
            a.i("v_sub_u32 v4, v4, v3"); a.i("v_mul_u32_u24 v4, 100000, v4"); a.i("v_and_b32 v5, 0xffff, v3"); a.i("v_add_u32 v4, v4, v5")
            a.i(f"s_and_b32 s{sT1}, s2, 7"); a.i(f"s_lshl_b32 s{sT1}, s{sT1}, 2")
            a.i(f"buffer_store_dword v4, v1, s[{SDBG}:{SDBG+3}], s{sT1} offen offset:32")
            a.i("s_cmp_lg_u32 s2, 253"); a.i("s_cbranch_scc1 L_end")
            for n in range(1, 8):
                a.i(f"v_accvgpr_read_b32 v2, a{244+n}"); a.i("v_sub_u32 v2, v2, v3")
                a.i(f"buffer_store_dword v2, v1, s[{SDBG}:{SDBG+3}], 0 offen offset:{4*n}")
    a.label("L_end")
    a.i("s_endpgm")
    for n in (range(3) if c3tag else [2]):
        a.label(f"L_tretry{n}")
        a.i(f"s_cmp_eq_u32 s{sBound}, 0"); a.i(f"s_cbranch_scc1 L_tok{n}")
        a.i(f"s_sub_u32 s{sBound}, s{sBound}, 1"); a.i("s_sleep 2")
        for j in range(3): a.i(tload(n, j))
        a.i("s_waitcnt vmcnt(0)")
        a.i(f"s_branch L_tchk{n}")
    a.lines += slow_lines
    a.label("L_tagspin")
    a.i(f"s_cmp_eq_u32 s{sBound}, 0"); a.i("s_cbranch_scc1 L_tagok")
    a.i(f"s_sub_u32 s{sBound}, s{sBound}, 1"); a.i("s_sleep 1")
    a.i(f"buffer_load_dword v207, off, s[{SDBG}:{SDBG+3}], 0 sc1"); a.i("s_waitcnt vmcnt(0)")
    a.i("s_branch L_tagchk")
    for (name, va, vf, soff, offs) in spin_blocks:
        a.label(f"L_spin_{name}")
        a.i(f"s_cmp_eq_u32 s{sBound}, 0")
        a.i(f"s_cbranch_scc1 L_back_{name}")
        a.i(f"s_sub_u32 s{sBound}, s{sBound}, 1")
        a.i("s_sleep 1")
        a.i(f"buffer_load_dword v{vf}, v{va}, {WS}, {soff} offen offset:{offs} sc1")
        a.i("s_waitcnt vmcnt(0)")
        a.i(f"v_cmp_ne_u32 vcc, s{sTag}, v{vf}")
        a.i("s_nop 0")
        a.i("s_cmp_lg_u64 vcc, 0")
        a.i(f"s_cbranch_scc1 L_spin_{name}")
        a.i(f"s_branch L_back_{name}")
    assert not ihooks, ihooks.keys()
    body = [l.replace("CODE_LAST", "0x1000") for l in a.lines]
    if iwarm:
        tmp = [l for l in body] + [f"L_w{w}:" for w in range(4*NHOP)] + ["    s_endpgm"]
        tmp, _, _, _ = align8(tmp, nops=False)
        tmp = tmp[:-(4*NHOP+1)]
        sz = sizes_of(tmp + [f"L_w{w}:" for w in range(4*NHOP)])
        out = []; off = 0; n = 0; j = 0; nextp = 8192; done = False
        for l in tmp:
            if l.startswith("L_end:"): done = True
            if is_instr(l):
                prev = out[-1].strip() if out else ""
                if off >= nextp and not done and not prev.startswith("v_mfma") and not prev.startswith("s_cmp"):
                    out.append(f"L_w{n}:"); out.append(f"    s_cbranch_execz L_wret{n//4}"); n += 1; off += 4; nextp += 4096
                off += sz[j]; j += 1
            out.append(l)
        assert n <= 4*NHOP
        for nn in range(n, 4*NHOP):
            out.insert(out.index(f"L_wret{nn//4}:"), f"L_w{nn}:")
        body = out; size = off
        print("warm stubs", n, file=sys.stderr)
    else:
        body, nf, nn, size = align8(body, nops=False)
    body = [l.replace("v_min_u32 v%d, 0x1000," % vT0, "v_min_u32 v%d, %d," % (vT0, (size - 64) & ~15)) for l in body]
    print(f"main: code {size} bytes, stash {st.next}", file=sys.stderr)
    return body

from gen1 import kd
def whole(**kw):
    m = gen(**kw)
    hdr = [l for l in open("parallel_sum__sliding_block__glu_gated_bilinear__prompt.s.ref").read().split("\n")[:11]]
    s = "\n".join(hdr) + "\n"
    s += f"; @launch grid=(256,1,1) block=(256,1,1) lds={LDS_BYTES}\n"
    s += '.amdgcn_target "amdgcn-amd-amdhsa--gfx950"\n.text\n'
    s += f".globl {KN}\n.p2align 12\n.type {KN},@function\n{KN}:\n" + "\n".join(m) + "\n"
    s += '.section .rodata,"a"\n.p2align 6\n' + kd(KN, 512, 256)
    return s

if __name__ == "__main__":
    kw = {}
    for x in sys.argv[2:]:
        k, v = x.split("="); kw[k] = eval(v)
    open(sys.argv[1], "w").write(whole(**kw))
```

```python
import sys, struct, math, re
from asmlib import *
from collections import deque

KN = "parallel_sum__sliding_block__glu_gated_bilinear__prompt_kernel"
QS = 6176; SLOT = 4 * QS; NS = 6
LDS_BYTES = 163840
TAG_LDS = NS * SLOT + 64
QKV_BASE = 0x2400000
QF_BASE = 0x2C00000; HF_BASE = 0x2C10000; PF_BASE = 0x2C40000
EPOCH_OFF = 0x2D00000
HX_BASE = 0x3000000; HXS = 21504
STAMP_OFF = 0x6000000
WS_BYTES = 268435456
OOB = 0x20000000
GS = 3136; TBASE = 163840 - 20 * GS
TAGC = 0x9E3779B8
def f2u(f): return "0x%08x" % struct.unpack("<I", struct.pack("<f", f))[0]
QC = 18 ** -0.5 * math.log2(math.e)
QG = QC ** 0.5
MF = "v_mfma_f32_16x16x32_bf16"

def gen(D=7, wev=3, stamps=None, rt=False, gap=6, lg_rpx=4, krot=True, normil=True, l2pf=True, pfs=6, pd3=24, ep=((2, 0), (13, 0)), tl=(0, None), mp=((3, 6), (3, 14), (4, 12)), trace=None, nraw=0, iwarm=True, pd=30, lead=70, hold=90, pfk=16, lnpre=3, od=40, warmat=1, gupf="U", hold0=40, gu_at=12, dbgout=False, probe=None, x0=5, w0at=13, hopat=(2, 4, 6, 8), xfast=0, odef=6, op=((1, 13), (1, 18)), c3tag=False, e3=(10, None), xrat='T', kvat=(27, 29), fastT=True, forceslow=False, outsc='', tg=1, th=(3, 8, 12), oinl=60, prot=0, mh=130, wpf=True, sched=None, fp=(4, {9: 'G0 U0'}), wdlate=False, tside=10):
    a = Asm()
    XS = lnpre * SLOT; NXU = (LDS_BYTES - XS) // 8192
    SX, SG, SU, SD, SWS, SQKV, SO, SDBG, SOUT = 4, 8, 12, 16, 20, 24, 28, 32, 36
    sPF = 3
    sCol = [40, 41, 42, 43, 44]
    sSc = [45, 46, 47]; sKV = [48, 49, 50]
    sTag, sE, sBound, sQst, sQld = 51, 52, 53, 54, 55
    sW, sS, sR = 56, 57, 58
    sPair = [59, 60, 61, 62]; sSing = 63
    sMq, sI = 64, 65
    sOff, sT0, sT1, sT2, sT3 = 66, 67, 68, 69, 70
    sXrow, sPst, sM4 = 71, 72, 73
    sOff2 = 73
    sM4x = 59
    sPC = 74; sHst, sHld = 74, 75
    sC0, sC1, sQcol, sPbase = 76, 77, 78, 79
    sStamp = 80; sPo = [82, 83]
    KA = 84
    sKo = [84, 85, 86, 87, 88]; sKp = [89, 90, 91, 92, 93]; sAo, sAp = 94, 95
    sKr9 = [96, 97, 98]; sKr3 = [99, 100, 101]
    sKo2 = [24, 25, 26, 27]; sKp2 = [99, 100, 101, 77]
    XN = 0; ACC = [144, 176, 208]
    vRd = [240, 241, 242]; vA = [243, 244, 245]; vS = [246, 247, 248]
    q0, q1, q2 = 249, 250, 251
    vT0, vT1, vL16, vLane = 252, 253, 254, 255
    H, HP, HB, FR = 0, 80, 160, 168
    KVS, aQ = 128, 136
    NB = 8; assert D <= 7
    stash = {}
    def st(name, n=1):
        if name not in stash:
            stash[name] = st.next; st.next += n; assert st.next <= 228 or trace
        return stash[name]
    st.next = 200; stash['pt'] = 114; stash['pfv'] = 244; stash['trs'] = 245; stash['stq'] = 112; stash['stq2'] = 113
    XR = 228
    SEL = 238
    stl = []
    def astamp(name):
        if stamps is None or name.split(":")[0] not in stamps: return
        n = len(stl); assert n < 10
        a.i("s_waitcnt lgkmcnt(0)"); a.lg_done = a.lg_issued
        a.i(f"{'s_memrealtime' if rt else 's_memtime'} s[{sStamp}:{sStamp+1}]")
        a.i("s_waitcnt lgkmcnt(0)")
        a.i(f"v_accvgpr_write_b32 a{244+n}, s{sStamp}")
        stl.append(name)
    trl = []; trp = []
    TRS = [48, 80, 0] if (trace and trace[0] < 0) else [46, 80, 0]
    def tr(name):
        if trace is None or not (trace[0] <= tr.stage < trace[1]) or len(trl) >= 64: return
        if len(trp) >= 2:
            n0, p0 = trp.pop(0); a.i(f"v_writelane_b32 v{vLane}, s{p0}, {n0}")
        p = TRS[len(trl) % 3]
        a.i(f"s_memtime s[{p}:{p+1}]")
        trp.append((len(trl), p)); trl.append(name)
    tr.stage = 0
    def srd(d, p, nbytes, back=0):
        if back:
            a.i(f"s_sub_u32 s{d}, s{p}, {back}"); a.i(f"s_subb_u32 s{d+1}, s{p+1}, 0")
        else:
            a.i(f"s_mov_b32 s{d}, s{p}"); a.i(f"s_mov_b32 s{d+1}, s{p+1}")
        a.i(f"s_mov_b32 s{d+2}, {nbytes + back}"); a.i(f"s_mov_b32 s{d+3}, 0x00020000")
    WS = f"s[{SWS}:{SWS+3}]"

    a.i("s_cmp_ge_u32 s2, 256")
    a.i("s_cbranch_scc1 L_end")
    if stamps: a.i("s_memrealtime s[36:37]")
    if trace and trace[0] < 0: a.i("s_memtime s[36:37]")
    a.i(f"s_load_dwordx16 s[{KA}:{KA+15}], s[0:1], 0")
    a.i(f"s_load_dwordx4 s[80:83], s[0:1], 64")
    a.i(f"s_getpc_b64 s[{sPC}:{sPC+1}]")
    a.i(f"s_lshr_b32 s{sT0}, s2, 3")
    a.i(f"s_lshl_b32 s{sT0}, s{sT0}, 12")
    a.i(f"v_lshlrev_b32 v{vT0}, 4, v0")
    a.i(f"v_add_u32 v{vT0}, s{sT0}, v{vT0}")
    a.i(f"v_min_u32 v{vT0}, CODE_LAST, v{vT0}")
    a.vm(f"global_load_dwordx4 a[{HP+76}:{HP+79}], v{vT0}, s[{sPC}:{sPC+1}]")
    a.i(f"v_lshrrev_b32 v{vT1}, 6, v0")
    a.i(f"v_and_b32 v{vLane}, 63, v0")
    a.i(f"v_readfirstlane_b32 s{sW}, v{vT1}")
    lg = lg_rpx; nsl = 32 >> lg
    a.i(f"s_and_b32 s{sR}, s2, {(16 >> lg) - 1}"); a.i(f"s_lshl_b32 s{sR}, s{sR}, {lg}")
    a.i(f"s_lshr_b32 s{sT0}, s2, {8 - lg}"); a.i(f"s_add_u32 s{sR}, s{sR}, s{sT0}")
    a.i(f"s_bfe_u32 s{sS}, s2, {hex(((lg - 1) << 16) | (4 - lg))}"); a.i(f"s_lshl_b32 s{sS}, s{sS}, {5 - lg}")
    a.i(f"s_bfe_u32 s{sT0}, s2, {hex(((5 - lg) << 16) | 3)}"); a.i(f"s_add_u32 s{sS}, s{sS}, s{sT0}")
    sRot = sT3
    if krot:
        a.i(f"s_add_u32 s{sT0}, s{sR}, s{sS}")
        a.i(f"s_mul_hi_u32 s{sT1}, s{sT0}, 0x55555556"); a.i(f"s_mul_i32 s{sT1}, s{sT1}, 3"); a.i(f"s_sub_u32 s{sRot}, s{sT0}, s{sT1}")
    else: a.i(f"s_mov_b32 s{sRot}, 0")
    sRk = [45, 46, 47]
    for stg in range(3):
        a.i(f"s_add_u32 s{sRk[stg]}, s{sRot}, {stg}")
        a.i(f"s_cmp_ge_u32 s{sRk[stg]}, 3"); a.i(f"s_cselect_b32 s{sT0}, 3, 0"); a.i(f"s_sub_u32 s{sRk[stg]}, s{sRk[stg]}, s{sT0}")
    QACC = 144; D2 = 200
    vX = [228, 229, 230, 231]; vXr = [232, 233]
    S1 = [234, 235]; S2 = [236, 237]; vCs = 238
    t0, t1, t2, t3 = 144, 145, 146, 147
    ONES = 128
    vWP = 153
    a.i(f"v_lshrrev_b32 v{t0}, 3, v{vLane}")
    a.i(f"v_and_b32 v{t1}, 7, v{vLane}")
    for j in range(2):
        a.i(f"v_add_u32 v{t2}, {8*j}, v{t0}")
        a.i(f"v_bfe_u32 v{t3}, v{t2}, 1, 3")
        a.i(f"v_xor_b32 v{t3}, v{t3}, v{t1}")
        a.i(f"v_mul_u32_u24 v{t2}, 1152, v{t2}")
        a.i(f"v_lshl_add_u32 v{vX[j]}, v{t3}, 4, v{t2}")
        if j: a.i(f"v_subrev_u32 v{vX[j]}, {1024*j}, v{vX[j]}")
    a.i(f"s_lshl_b32 s{sXrow}, s{sR}, 2")
    a.i(f"s_add_u32 s{sXrow}, s{sXrow}, s{sW}")
    a.i(f"s_mul_i32 s{sXrow}, s{sXrow}, {32*1152}")
    sXk = [40, 41, 42]
    for stg in range(3):
        a.i(f"s_mul_i32 s{sXk[stg]}, s{sRk[stg]}, 384"); a.i(f"s_add_u32 s{sXk[stg]}, s{sXk[stg]}, s{sXrow}")
    a.i(f"s_mul_i32 s{sM4}, s{sW}, {2048*NXU}")
    a.i("s_waitcnt lgkmcnt(0)")
    if stamps: a.i("v_accvgpr_write_b32 a254, s36")
    if trace and trace[0] < 0: a.i("s_mov_b32 s53, s36"); a.i("s_memtime s[54:55]")
    srd(SX, KA+0, 2048*1152)
    xtok = {}
    def xdma_items(n):
        t, ch = n // 9, n % 9
        o = [("s", f"s_add_u32 m0, s{sM4}, {XS + 2048*(n % NXU)}"), ("s", f"s_add_u32 s{sOff}, s{sXk[ch//3]}, {128*(ch%3) + 16*1152*t}")]
        return o + [("m", f"buffer_load_dwordx4 v{vX[j]}, s[{SX}:{SX+3}], s{sOff} offen offset:{1024*j} lds") for j in range(2)]
    dma_tok = {}
    def emit_dma_item(k, it):
        if it[0] == "m": dma_tok[k] = a.vm(it[1])
        elif it[0] == "d": a.ds(it[1])
        elif it[0] == "h": pass
        elif it[0] == "g":
            for t in it[1]: (a.vm(t) if t.startswith("buffer") else a.i(t))
        else: a.i(it[1])
    def xdma(ch):
        for it in xdma_items(ch): emit_dma_item(("x", ch), it)
    for n in range(x0): xdma(n)
    srd(SQKV, KA+2, 576*3456); srd(SO, KA+4, 576*1152, back=2048)
    srd(SG, KA+8, 576*9216); srd(SU, KA+10, 576*9216); srd(SD, KA+12, 4608*1152, back=2048)
    srd(SOUT, KA+14, 2048*1152)
    srd(SDBG, 80, 256); srd(SWS, 82, WS_BYTES)
    a.i(f"s_or_b32 s{sT0}, s2, s{sW}")
    a.i("s_cbranch_scc1 L_noep")
    a.i(f"s_add_u32 s82, s82, {EPOCH_OFF}"); a.i("s_addc_u32 s83, s83, 0")
    a.i(f"s_load_dword s{sE}, s[82:83], 0")
    a.label("L_noep")
    astamp("P:start")
    vn, vq, rho, tt, pc = 148, 149, 150, 151, 152
    a.i(f"v_and_b32 v{vn}, 15, v{vLane}"); a.i(f"v_lshrrev_b32 v{vq}, 4, v{vLane}")
    a.i(f"v_bfe_u32 v{rho}, v{vLane}, 2, 3"); a.i(f"v_lshrrev_b32 v{tt}, 5, v{vLane}")
    a.i(f"v_and_b32 v{pc}, 3, v{vLane}"); a.i(f"v_lshlrev_b32 v{pc}, 4, v{pc}")
    a.i(f"v_lshlrev_b32 v{vL16}, 4, v{vLane}")
    a.i(f"v_lshrrev_b32 v{t1}, 1, v{vn}"); a.i(f"v_xor_b32 v{t1}, v{t1}, v{vq}")
    a.i(f"v_lshlrev_b32 v{t0}, 7, v{vn}")
    a.i(f"s_add_u32 s{sT0}, s{sM4}, {XS}"); a.i(f"v_add_u32 v{t0}, s{sT0}, v{t0}")
    a.i(f"v_lshl_add_u32 v{vXr[0]}, v{t1}, 4, v{t0}")
    a.i(f"v_xor_b32 v{t1}, 4, v{t1}"); a.i(f"v_lshl_add_u32 v{vXr[1]}, v{t1}, 4, v{t0}")
    for stg in range(3):
        a.i(f"s_mul_i32 s{sKr9[stg]}, s{sRk[stg]}, {192*9216}"); a.i(f"s_mul_i32 s{sKr3[stg]}, s{sRk[stg]}, {192*3456}")
    a.i(f"s_mul_i32 s{sQcol}, s{sS}, 216")
    for stg in range(3): a.i(f"s_add_u32 s{sKr3[stg]}, s{sKr3[stg]}, s{sQcol}")
    a.i(f"s_mul_i32 s{sMq}, s{sW}, {QS}")
    a.i(f"s_lshr_b32 s{sI}, s{sS}, 1")
    a.i(f"s_lshl_b32 s{sT0}, s{sW}, 3"); a.i(f"v_add_u32 v{t2}, s{sT0}, v{rho}")
    a.i(f"v_lshl_add_u32 v{t3}, v{tt}, 6, v{pc}")
    a.i(f"v_mul_u32_u24 v{vS[0]}, 3456, v{t2}"); a.i(f"v_add_u32 v{vS[0]}, v{vS[0]}, v{t3}")
    a.i(f"v_add_u32 v{vS[1]}, {32*3456-1024}, v{vS[0]}"); a.i(f"v_add_u32 v{vS[2]}, {64*3456-2048}, v{vS[0]}")
    a.i(f"v_mul_u32_u24 v{t0}, 9216, v{t2}"); a.i(f"v_add_u32 v{vA[0]}, v{t0}, v{t3}")
    a.i(f"v_add_u32 v{vA[1]}, {32*9216-1024}, v{vA[0]}"); a.i(f"v_add_u32 v{vA[2]}, {64*9216-2048}, v{vA[0]}")
    def su_cas():
        a.i(f"s_or_b32 s{sT0}, s2, s{sW}")
        a.i("s_cbranch_scc1 L_nocas")
        a.i("s_waitcnt lgkmcnt(0)")
        a.i(f"s_add_u32 s{sE}, s{sE}, {TAGC}"); a.i(f"s_or_b32 s{sE}, s{sE}, 1")
        a.i(f"v_mov_b32 v{vCs}, s{sE}"); a.i(f"v_mov_b32 v{vCs+1}, {EPOCH_OFF}")
        a.i(f"buffer_store_dword v{vCs}, off, s[{SDBG}:{SDBG+3}], 0 sc1")
        a.i(f"buffer_store_dword v{vCs}, v{vCs+1}, {WS}, 0 offen sc1")
        a.label("L_nocas")

    def su_early():
        a.i(f"v_bfe_u32 v{t0}, v{vLane}, 2, 2"); a.i(f"v_lshlrev_b32 v{t1}, 6, v{t0}")
        a.i(f"v_and_b32 v{t0}, 3, v{vLane}"); a.i(f"v_lshl_add_u32 v{t1}, v{t0}, 3, v{t1}")
        a.i(f"v_mul_u32_u24 v{t0}, {QS}, v{vq}"); a.i(f"v_add_u32 v{vRd[0]}, v{t0}, v{t1}")
        a.i(f"v_add_u32 v{vRd[1]}, {2*SLOT}, v{vRd[0]}"); a.i(f"v_add_u32 v{vRd[2]}, {4*SLOT}, v{vRd[0]}")
        a.i(f"s_mul_i32 s{sT1}, s{sS}, 576"); a.i(f"s_and_b32 s{sT2}, s{sS}, 1")
        a.i(f"s_lshl_b32 s{sT3}, s{sT2}, 6"); a.i(f"s_add_u32 s{sT3}, s{sT3}, s{sT1}")
        for j in range(4):
            a.i(f"s_add_u32 s{sPair[j]}, s{sT3}, {128*j}")
        a.i(f"s_xor_b32 s{sT2}, s{sT2}, 1"); a.i(f"s_lshl_b32 s{sT2}, s{sT2}, 9"); a.i(f"s_add_u32 s{sSing}, s{sT2}, s{sT1}")
        a.i(f"s_mov_b32 s{sBound}, 0x40000")
        a.i(f"s_mul_i32 s{sT0}, s{sR}, 36"); a.i(f"s_mul_i32 s{sT1}, s{sW}, 9"); a.i(f"s_add_u32 s{sT0}, s{sT0}, s{sT1}")
        if wpf:
            a.i(f"v_lshrrev_b32 v{t0}, 2, v{vLane}"); a.i(f"v_min_u32 v{t0}, 8, v{t0}"); a.i(f"v_add_u32 v{t0}, s{sT0}, v{t0}")
            a.i(f"v_mul_u32_u24 v{t0}, 3456, v{t0}"); a.i(f"v_and_b32 v{t1}, 3, v{vLane}"); a.i(f"v_mul_u32_u24 v{t1}, 84, v{t1}")
            a.i(f"v_add_u32 v{vWP}, v{t0}, v{t1}")
        a.i(f"v_min_u32 v{t0}, 8, v{vLane}"); a.i(f"v_add_u32 v{t0}, s{sT0}, v{t0}"); a.i(f"v_mul_u32_u24 v{t0}, 9216, v{t0}")
        if trace: a.i(f"v_accvgpr_write_b32 a{st('pfv')}, v{t0}")
        else: a.i(f"v_mov_b32 v{vLane}, v{t0}")
    U0, U1, U2, U3 = 45, 52, 78, 73
    MK = "s[40:41]"
    def d_q(tb):
        x0_, x1, x2, n, q = tb, tb+1, tb+2, tb+3, tb+4
        return [f"v_bfe_u32 v{n}, v{vL16}, 4, 4", f"v_lshrrev_b32 v{q}, 8, v{vL16}",
            f"s_lshl_b32 s{U0}, s{sW}, 8", f"v_lshlrev_b32 v{x0_}, 3, v{n}", f"v_add_u32 v{x0_}, s{U0}, v{x0_}",
            f"v_lshl_add_u32 v{x1}, v{q}, 10, v{x0_}", f"v_accvgpr_write_b32 a{st('stq')}, v{x1}",
            f"v_add_u32 v{x2}, 1, v{q}", f"v_lshrrev_b32 v{x2}, 2, v{x2}", f"v_lshl_add_u32 v{x1}, v{x2}, 29, v{x1}",
            f"v_accvgpr_write_b32 a{st('stq2')}, v{x1}",
            f"s_mul_i32 s{U0}, s{sR}, 432", f"s_mul_i32 s{U1}, s{sS}, 27", f"s_add_u32 s{U1}, s{U1}, s{U0}",
            f"s_lshl_b32 s{U1}, s{U1}, 10", f"s_add_u32 s{sQst}, s{U1}, {QKV_BASE}",
            f"v_lshl_add_u32 v{x1}, v{q}, 11, v{x0_}", f"v_accvgpr_write_b32 a{st('qA')}, v{x1}",
            f"v_lshl_add_u32 v{x1}, v{q}, 1, 5", f"v_cmp_gt_u32 {MK}, 2, v{q}", "?s_nop 1",
            f"v_cndmask_b32 v{x1}, 4, v{x1}, {MK}", f"v_lshl_add_u32 v{x1}, v{x1}, 10, v{x0_}", f"v_accvgpr_write_b32 a{st('qB')}, v{x1}",
            f"s_mul_i32 s{U1}, s{sS}, 9", f"s_add_u32 s{U1}, s{U1}, s{U0}", f"s_lshl_b32 s{U1}, s{U1}, 10", f"s_add_u32 s{sQld}, s{U1}, {QKV_BASE}",
            f"s_add_u32 s{U2}, s{sW}, 144", f"s_lshl_b32 s{U2}, s{U2}, 10", f"s_add_u32 s{sKV[2]}, s{U2}, s{sQld}",
            f"s_sub_u32 s{sKV[0]}, s{sKV[2]}, {2*432*1024}", f"s_cmp_ge_u32 s{sR}, 2", f"s_cselect_b32 s{sKV[0]}, s{sKV[0]}, {OOB}",
            f"s_sub_u32 s{sKV[1]}, s{sKV[2]}, {432*1024 + 1024}", f"s_cmp_ge_u32 s{sR}, 1", f"s_cselect_b32 s{sKV[1]}, s{sKV[1]}, {OOB}",
            f"s_sub_u32 s{sKV[2]}, s{sKV[2]}, 2048"]
    def d_h(tb):
        x2 = tb
        return [f"s_and_b32 s{U2}, s{sS}, 1", f"s_lshl_b32 s{U1}, s{sR}, 1", f"s_add_u32 s{U1}, s{U1}, s{U2}",
            f"s_mul_i32 s{sPF}, s{U1}, 20", f"s_add_u32 s{sPF}, s{sPF}, s{sW}", f"s_lshl_b32 s{sPF}, s{sPF}, 6", f"s_add_u32 s{sPF}, s{sPF}, {PF_BASE}",
            f"s_lshl_b32 s{U1}, s{sR}, 4", f"s_add_u32 s{U1}, s{U1}, s{sS}", f"s_lshl_b32 s{U3}, s{U1}, 2", f"s_add_u32 s{U3}, s{U3}, s{sW}",
            f"s_mul_i32 s{sHst}, s{U3}, {HXS}", f"s_add_u32 s{sHst}, s{sHst}, {HX_BASE}",
            f"s_lshl_b32 s{U1}, s{U3}, 6", f"s_add_u32 s{U1}, s{U1}, {HF_BASE}", f"v_accvgpr_write_b32 a{st('hfo')}, s{U1}",
            f"v_min_u32 v{x2}, 64, v{vL16}", f"v_lshlrev_b32 v{x2}, 4, v{x2}", f"v_add_u32 v{x2}, s{sPF}, v{x2}",
            f"v_writelane_b32 v{x2}, s{U1}, 7", f"v_accvgpr_write_b32 a{st('pt')}, v{x2}",
            f"s_xor_b32 s{U1}, s{U1}, 256", f"v_accvgpr_write_b32 a{st('hfp')}, s{U1}",
            f"s_xor_b32 s{U3}, s{U3}, 4", f"s_mul_i32 s{sHld}, s{U3}, {HXS}", f"s_add_u32 s{sHld}, s{sHld}, {HX_BASE}",
            f"s_and_b32 s{U0}, s{sI}, 1", f"s_xor_b32 s{U0}, s{U0}, 1",
            f"s_mul_i32 s{U3}, s{U2}, {640 << 5}", f"s_sub_u32 s{U1}, s{sHld}, s{U3}",
            f"s_lshl_b32 s{U3}, s{U0}, 11", f"s_add_u32 s{sPo[0]}, s{U1}, s{U3}", f"s_xor_b32 s{U3}, s{U3}, 0x800", f"s_add_u32 s{sPo[1]}, s{U1}, s{U3}",
            f"s_mul_i32 s{U3}, s{sI}, {8*HXS}", f"s_sub_u32 s{sPbase}, s{sHld}, s{U3}"]
    def d_flags(tb):
        m, d, x = tb, tb+1, tb+2
        return [f"v_bfe_u32 v{m}, v{vL16}, 6, 2", f"v_min_u32 v{m}, 2, v{m}", f"v_bfe_u32 v{d}, v{vL16}, 4, 2", f"v_min_u32 v{d}, 2, v{d}",
            f"v_min_u32 v{x}, 1, v{m}", f"v_mul_u32_u24 v{d}, v{d}, v{x}", f"v_sub_u32 v{d}, s{sR}, v{d}", f"v_max_i32 v{d}, 0, v{d}",
            f"v_lshl_add_u32 v{m}, v{m}, 4, s{sS}", f"v_mul_u32_u24 v{m}, 0x5556, v{m}", f"v_lshrrev_b32 v{m}, 16, v{m}",
            f"v_lshl_add_u32 v{m}, v{d}, 4, v{m}", f"v_lshlrev_b32 v{m}, 7, v{m}", f"v_add_u32 v{m}, {QF_BASE}, v{m}",
            f"v_accvgpr_write_b32 a{st('qf')}, v{m}"]
    def d_B(tb):
        x0_, x1, x2, x3, pc_, tt_ = tb, tb+1, tb+2, tb+3, tb+4, tb+5
        L = [f"v_and_b32 v{pc_}, 48, v{vL16}", f"v_lshrrev_b32 v{tt_}, 9, v{vL16}",
            f"v_mul_u32_u24 v{x1}, {32*9216 - 64}, v{tt_}", f"v_add_u32 v{x1}, v{x1}, v{vA[0]}"]
        for i in range(3):
            if i: L.append(f"v_add_u32 v{x1}, {64*9216-1024}, v{x1}")
            L.append(f"v_accvgpr_write_b32 a{st('sing',3)+i}, v{x1}")
        L += [f"s_and_b32 s{U0}, s{sI}, 1", f"s_xor_b32 s{U0}, s{U0}, 1",
            f"v_xor_b32 v{x3}, s{U0}, v{tt_}", f"v_lshlrev_b32 v{x3}, 6, v{x3}",
            f"v_bfe_u32 v{x0_}, v{vL16}, 6, 2", f"v_bfe_u32 v{x1}, v{vL16}, 8, 1",
            f"v_xor_b32 v{x2}, s{sS}, v{x1}", f"v_mul_u32_u24 v{x2}, 36, v{x2}", f"v_add3_u32 v{x2}, v{x2}, v{x0_}, 16",
            f"v_mul_u32_u24 v{x2}, 1152, v{x2}", f"v_add_u32 v{x2}, v{x2}, v{pc_}", f"v_accvgpr_write_b32 a{st('Obm')}, v{x2}",
            f"v_add_u32 v{x2}, v{x2}, v{x3}", f"v_accvgpr_write_b32 a{st('Ob')}, v{x2}",
            f"s_lshl_b32 s{U1}, s{sW}, 2", f"v_add_u32 v{x0_}, s{U1}, v{x0_}"]
        for name, hi in (("D", 16), ("Oa", 20)):
            L += [f"v_mad_u32_u24 v{x2}, v{x1}, {hi}, v{x0_}", f"v_mul_u32_u24 v{x2}, 1152, v{x2}", f"v_add_u32 v{x2}, v{x2}, v{pc_}",
                  f"v_accvgpr_write_b32 a{st(name+'m')}, v{x2}", f"v_add_u32 v{x2}, v{x2}, v{x3}", f"v_accvgpr_write_b32 a{st(name)}, v{x2}"]
        return L
    def d_rows(tb):
        L = [f"s_mul_i32 s{sKo[j]}, s{sPair[j]}, 576" for j in range(4)] + [f"s_mul_i32 s{sKo[4]}, s{sSing}, 576"]
        L += [f"s_and_b32 s{U0}, s{sS}, 1", f"s_lshl_b32 s{U0}, s{U0}, 1", f"s_sub_u32 s{U0}, 1, s{U0}",
              f"s_mul_i32 s{U1}, s{U0}, {320*1152}"]
        L += [f"s_add_u32 s{sKp[j]}, s{sKo[j]}, s{U1}" for j in range(4)]
        L += [f"s_mul_i32 s{U1}, s{U0}, {32*1152}", f"s_add_u32 s{sKp[4]}, s{sKo[4]}, s{U1}",
              f"s_mul_i32 s{sAo}, s{sS}, {36*1152}", f"s_mul_i32 s{U1}, s{U0}, {36*1152}", f"s_add_u32 s{sAp}, s{sAo}, s{U1}"]
        L += [f"s_add_u32 s{sKo2[j]}, s{sKo[j]}, {32*1152}" for j in range(4)] + [f"s_add_u32 s{sKp2[j]}, s{sKp[j]}, {32*1152}" for j in range(4)]
        return L
    def d_T1(tb):
        x0_, x1, x2, n, q = tb, tb+1, tb+2, tb+3, tb+4
        return [f"v_bfe_u32 v{n}, v{vL16}, 4, 4", f"v_lshrrev_b32 v{q}, 8, v{vL16}",
            f"s_lshl_b32 s{U0}, s{sW}, 8", f"s_add_u32 s{U0}, s{U0}, {TBASE}",
            f"v_lshlrev_b32 v{x0_}, 3, v{n}", f"v_add_u32 v{x0_}, s{U0}, v{x0_}",
            f"v_mul_u32_u24 v{x1}, {2*GS}, v{q}", f"v_add_u32 v{x1}, v{x1}, v{x0_}", f"v_accvgpr_write_b32 a{st('KA')}, v{x1}",
            f"v_lshl_add_u32 v{x1}, v{q}, 1, 6", f"v_cmp_gt_u32 {MK}, 2, v{q}", "?s_nop 1", f"v_cndmask_b32 v{x1}, 4, v{x1}, {MK}",
            f"v_mul_u32_u24 v{x1}, {GS}, v{x1}", f"v_add_u32 v{x1}, v{x1}, v{x0_}", f"v_accvgpr_write_b32 a{st('KB')}, v{x1}",
            f"v_lshrrev_b32 v{x0_}, 6, v{vL16}", f"v_lshlrev_b32 v{x0_}, 3, v{x0_}", f"s_add_u32 s{U0}, s{U0}, {10*GS}", f"v_add_u32 v{x0_}, s{U0}, v{x0_}",
            f"v_bfe_u32 v{x1}, v{vL16}, 4, 2", f"v_mul_u32_u24 v{x2}, {GS}, v{x1}", f"v_add_u32 v{x2}, v{x2}, v{x0_}", f"v_accvgpr_write_b32 a{st('V0')}, v{x2}",
            f"v_min_u32 v{x1}, 1, v{x1}", f"v_add_u32 v{x1}, 4, v{x1}", f"v_mul_u32_u24 v{x2}, {GS}, v{x1}", f"v_add_u32 v{x2}, v{x2}, v{x0_}",
            f"v_accvgpr_write_b32 a{st('V1')}, v{x2}",
            f"v_mul_u32_u24 v{x0_}, 1152, v{n}", f"v_lshl_add_u32 v{x0_}, v{q}, 3, v{x0_}", f"v_accvgpr_write_b32 a{st('ov')}, v{x0_}"]
    def d_T2(tb):
        x0_, x1, x2, x3 = tb, tb+1, tb+2, tb+3
        L = [f"v_bfe_u32 v{x1}, v{vL16}, 4, 4", f"v_lshrrev_b32 v{x0_}, 8, v{vL16}", f"v_lshlrev_b32 v{x0_}, 2, v{x0_}", f"v_sub_u32 v{x0_}, v{x1}, v{x0_}",
             f"v_mov_b32 v{x1}, {f2u(-1e30)}"]
        for r in range(4):
            L += [f"v_cmp_le_i32 {MK}, {r}, v{x0_}", "?s_nop 1", f"v_cndmask_b32 v{x2}, 0, v{x1}, {MK}", f"v_accvgpr_write_b32 a{st('mf',4)+r}, v{x2}",
                  f"v_xor_b32 v{x2}, v{x2}, v{x1}", f"v_accvgpr_write_b32 a{st('ml',4)+r}, v{x2}"]
        L += [f"v_and_b32 v{x2}, 1, v{x0_}", f"v_lshlrev_b32 v{x2}, 4, v{x2}", f"v_mov_b32 v{x1}, 0x3f80", f"v_lshlrev_b32 v{x1}, v{x2}, v{x1}",
              f"v_ashrrev_i32 v{x0_}, 1, v{x0_}"]
        for hf in range(2):
            L += [f"v_cmp_eq_u32 {MK}, {hf}, v{x0_}", "?s_nop 1", f"v_cndmask_b32 v{x3}, 0, v{x1}, {MK}", f"v_accvgpr_write_b32 a{SEL+2+hf}, v{x3}"]
        L += [f"v_accvgpr_write_b32 a{SEL+r}, 0" for r in (0, 1, 4, 5)]
        return L
    def d_col(tb):
        L = [f"s_and_b32 s{U2}, s{sS}, 1", f"s_lshl_b32 s{U0}, s{U2}, 6", f"s_add_u32 s{sCol[0]}, s{U0}, 512",
             f"s_mul_i32 s{U2}, s{U2}, 640", f"s_lshr_b32 s{U1}, s{sI}, 1"]
        for p in range(1, 5):
            L += [f"s_xor_b32 s{U0}, s{U1}, {4-p}", f"s_lshl_b32 s{U0}, s{U0}, 7", f"s_add_u32 s{sCol[p]}, s{U0}, s{U2}"]
        return L

    stages = {}
    post = {}
    def X(S, t): return f"v[{XN+8*S+4*t}:{XN+8*S+4*t+3}]"
    def slot_of(k):
        if k < 28: return k % NS
        if k < 33: return k % 4
        return [1, 2, 3, 0, 4, 5][(k - 36) % 6]
    def grp(k, g, srdreg, soffs, vregs):
        slot = slot_of(k) * SLOT
        out = [("s", f"s_add_u32 m0, s{sMq}, {slot + 3072*g}")]
        out += [("s", t) for t in soffs]
        for i, v in enumerate(vregs):
            out.append(("m", f"buffer_load_dwordx4 v{v}, s[{srdreg}:{srdreg+3}], s{sOff} offen offset:{1024*i} lds"))
        return out
    k = 0
    for stg in range(6):
        dma = []
        for P in range(2):
            dma += grp(k, P, SQKV, [f"s_add_u32 s{sOff}, s{sKr3[stg//2]}, {(stg%2)*96*3456 + 128*P}"], vS)
        fr = []
        for uu in range(3):
            S = 3*stg + uu
            for tau in range(7):
                P = tau // 4; off = 1024*(3*P + uu) + 512*((tau % 4)//2) + 32*(tau % 2)
                fr.append((off, QACC + 8*tau, X(S, 0), X(S, 1), S == 0, ("Q", S, tau)) + ((D2 + 4*tau,) if stg < nraw else ()))
        stages[k] = dict(dma=dma, fr=fr); k += 1
    rot = 2
    for j in range(4):
        ag = ACC[rot % 3]; au = ACC[(rot + 1) % 3]; rot += 2
        for (srdreg, acc) in ((SG, ag), (SU, au)):
            for stg in range(3):
                dma = grp(k, 0, srdreg, [f"s_add_u32 s{sOff}, s{sPair[j]}, s{sKr9[stg]}"], vA)
                dma += grp(k, 1, srdreg, [f"s_add_u32 s{sOff}, s{sOff}, {96*9216}"], vA)
                fr = []
                for uu in range(6):
                    S = 6*stg + uu
                    for tau in range(4):
                        fr.append((1024*uu + 512*(tau//2) + 32*(tau%2), acc + 8*tau, X(S, 0), X(S, 1), S == 0, None))
                stages[k] = dict(dma=dma, fr=fr); k += 1
            if srdreg == SG: post[k-1] = ("g", [ag], ag, 4)
        post[k-1] = ("h", [ag, au], [(ag, au, 2*j), (ag+16, au+16, 2*j+1)])
    ag = ACC[rot % 3]
    for stg in range(3):
        dma = grp(k, 0, SG, [f"s_add_u32 s{sOff}, s{sSing}, s{sKr9[stg]}"], vS) + [x if x[1] != "s_nop 0" else ("n", "s_nop 0") for x in grp(k, 1, SU, ["s_nop 0"], vS)]
        if stg == 0: dma = [("v", f"v_accvgpr_read_b32 v{vS[i]}, a{st('sing',3)+i}") for i in range(3)] + dma
        fr = []
        for uu in range(6):
            S = 6*stg + uu
            for m in range(2):
                for c in range(2):
                    fr.append((3072*m + 1024*(uu//2) + 512*(uu%2) + 32*c, ag + 16*m + 8*c, X(S, 0), X(S, 1), S == 0, None))
        stages[k] = dict(dma=dma, fr=fr); k += 1
    post[k-1] = ("h", [ag], [(ag, ag+16, 8)])
    assert k == 33
    KB0 = 36
    ent = [(p, ks) for ks in range(19) for p in (1, 0)] + [(2, ks) for ks in range(odef)] + [(p, ks) for ks in (19, 20) for p in (1, 0)]
    ent += [(2, ks) for ks in range(odef, 21)]
    for p in (3, 4): ent += [(p, ks) for ks in range(21)]
    BACC = {0: 144, 1: 176, 2: 208, 3: 144, 4: 176}
    def Hop(ks, t):
        if ks < 10: b = H + 8*ks + 4*t
        elif ks < 20: b = HP + 8*(ks-10) + 4*t
        else: b = HB + 4*t
        return f"a[{b}:{b+3}]"
    nBst = (len(ent) + 5) // 6
    last_fr = [[], []]
    bpost = {}
    for sb in range(nBst):
        k = KB0 + sb; slot = slot_of(k) * SLOT
        dma = []; fr = []
        for u, (p, ks) in enumerate(ent[6*sb:6*sb+6]):
            i = u % 3
            if i == 0: dma.append(("s", f"s_add_u32 m0, s{sMq}, {slot + 3072*(u//3)}"))
            kk = ks % 10
            if ks == 20:
                dma.append(("v", f"v_accvgpr_read_b32 v{vT1}, a{st('Obm' if p == 0 else 'Ob')}"))
                dma.append(("v", f"v_add_u32 v{vT1}, {2048-1024*i}, v{vT1}"))
                dma.append(("m", f"buffer_load_dwordx4 v{vT1}, s[{SO}:{SO+3}], s{sCol[p]} offen offset:{1024*i} lds"))
            elif kk == 9:
                dma.append(("v", f"v_accvgpr_read_b32 v{vT1}, a{st('Oam' if p == 0 else 'Oa')}"))
                dma.append(("v", f"v_add_u32 v{vT1}, {2048-1024*i}, v{vT1}"))
                dma.append(("s", f"s_add_u32 s{sOff}, s{sAo if ks < 10 else sAp}, s{sCol[p]}"))
                dma.append(("m", f"buffer_load_dwordx4 v{vT1}, s[{SO}:{SO+3}], s{sOff} offen offset:{1024*i} lds"))
            else:
                if ks == 0:
                    regs = vA if p == 0 else vS
                    dma.append(("v", f"v_accvgpr_read_b32 v{regs[2]}, a{st('Dm' if p == 0 else 'D')}"))
                    dma.append(("v", f"v_add_u32 v{regs[2]}, s{sCol[p]}, v{regs[2]}"))
                    dma += [("v", f"v_add_u32 v{regs[j]}, {2048-1024*j}, v{regs[2]}") for j in range(2)]
                elif i == 0: dma.append(("n", "s_nop 0"))
                tab = ((sKo, sKo2) if ks < 10 else (sKp, sKp2))[kk % 2]
                v = (vA if p == 0 else vS)[i]
                dma.append(("m", f"buffer_load_dwordx4 v{v}, s[{SD}:{SD+3}], s{tab[kk//2]} offen offset:{1024*i} lds"))
            for tau in range(2 if p == 0 else 4):
                f = (1024*u + 512*(tau//2) + 32*(tau%2), BACC[p] + 8*tau, Hop(ks, 0), Hop(ks, 1), ks == 0, ("B", p, ks, tau))
                if p == 4 and tau >= 2: last_fr[1].append((k,) + f)
                else: fr.append(f)
        stages[k] = dict(dma=dma, fr=fr)
    KEND = KB0 + nBst

    def emit_dma(k):
        for it in stages[k]["dma"]: emit_dma_item(k, it)

    fill = deque(); fill2 = deque(); fill3 = deque(); dmaq = deque(); extq = []; spin_blocks = []; pubs = []; toks = {}
    hooks = {}; ihooks = {}
    def emit_fill(it):
        kind, txt = it[1], it[2]
        if kind == "m": return a.vm(txt)
        if kind == "d": return a.ds(txt)
        if kind == "f": return txt()
        a.i(txt)
    def F(nb, kind, txt, sets=(), space=0): fill.append((nb, kind, txt, list(sets), space))
    def Fm(nb, name, txt, sets=(), space=0):
        def fn(): toks[name] = a.vm(txt)
        fill.append((nb, "f", fn, list(sets), space))
    def defer(L, accset):
        i = 0
        while i < len(L):
            g = [L[i]]; i += 1
            if g[0].startswith("s_cmp") or (i < len(L) and L[i].startswith("?")): g.append(L[i]); i += 1
            fill3.append((g, accset))
    def emit3(drain=False):
        g, _ = fill3.popleft()
        for t in g:
            if t.startswith("?"):
                if drain: a.i(t[1:])
            else: a.i(t)
    def G(nb, kind, txt, space=0): fill2.append((nb, kind, txt, [], space))
    def Gm(nb, name, txt, space=0):
        def fn(): toks[name] = a.vm(txt)
        fill2.append((nb, "f", fn, [], space))
    def poll_check(name, va, vf, soff="0", offs=0):
        a.wait(vm=toks[name])
        a.i(f"v_cmp_ne_u32 vcc, s{sTag}, v{vf}")
        a.i("s_nop 0")
        a.i("s_cmp_lg_u64 vcc, 0")
        a.i(f"s_cbranch_scc1 L_spin_{name}")
        a.label(f"L_back_{name}")
        spin_blocks.append((name, va, vf, soff, offs))
    def stream(frs, dma_after, flush=True, gap=gap, tailnop=True):
        N = len(frs); first_of = {}
        for i, f in enumerate(frs): first_of.setdefault(f[0], i)
        rd = {}; nextbar = [0]; hold_until = [0]; lastd = [-100]; gpf = 3 if len(frs[0]) > 7 else 2
        def rd_half(i, hf):
            k, off = frs[i][0], frs[i][1]
            o = slot_of(k) * SLOT + off; base = vRd[o // (2*SLOT)]; oo = o % (2*SLOT)
            fb = FR + 4*(i % NB) + 2*hf
            rd[i] = a.ds(f"ds_read_b64_tr_b16 a[{fb}:{fb+1}], v{base} offset:{oo + 256*hf}")
        def pre_read(i, cur):
            k = frs[i][0]
            if first_of[k] == i:
                nfl = 0
                while any(kk == k for kk, _ in dmaq):
                    kk, it = dmaq.popleft(); emit_dma_item(kk, it); nfl += 1
                if nfl: print("late flush", nfl, "at", k, file=sys.stderr)
                tr.stage = k; tr(f"w{k}")
                a.wait(vm=dma_tok[k])
                a.i("s_barrier")
                tr(f"b{k}")
                for p in list(pubs):
                    if p[3] and toks.get(p[0]) is not None and toks[p[0]] <= a.vm_done:
                        p[1](); pubs.remove(p); print("pub", p[0], "at barrier", k, file=sys.stderr)
                for kk in dma_after(k):
                    for it in stages[kk]["dma"]: dmaq.append((kk, it))
                if k in hooks: hooks[k](cur)
                if k in pfhooks: pfhooks.pop(k)(cur)
                nextbar[0] = first_of.get(k + 1, N + D) - D
                return True
            return False
        for i in range(min(D, N)):
            pre_read(i, 0); rd_half(i, 0); rd_half(i, 1)
        a.wait(lg=rd[1])
        gi = 0; lastm = -100
        def other(i):
            nonlocal lastm
            for p in list(pubs):
                if not p[3] and toks.get(p[0]) is not None:
                    if toks[p[0]] <= a.vm_done or (p[2][0] is not None and i >= p[2][0]):
                        print("pub", p[0], "at frag", i, "stage", frs[i][0], "forced" if toks[p[0]] > a.vm_done else "", file=sys.stderr); a.wait(vm=toks[p[0]]); p[1](); pubs.remove(p); return
                    if p[2][0] is None: p[2][0] = i + p[2][1]
            if dmaq:
                kk, it = dmaq[0]
                ok = True
                if it[0] == "n":
                    dmaq.popleft(); kk, it = dmaq[0]
                if it[0] == "h":
                    dmaq.popleft(); hold_until[0] = gi + it[1]; ok = False
                elif it[0] == "m":
                    if kk == "z": ok = gi - lastm >= 2
                    else:
                        g_eff = gap; urgent = False; cnt = 0
                        for k2, it2 in dmaq:
                            if it2[0] != "m": continue
                            cnt += 1
                            if k2 in first_of:
                                dl = gpf * (first_of[k2] - D) - lead
                                if gi + cnt * gap > dl: g_eff = min(g_eff, max(2, (dl - gi) // cnt)); urgent = True
                        ok = gi - lastd[0] >= g_eff and gi - lastm >= 2 and (gi >= hold_until[0] or urgent)
                if ok:
                    dmaq.popleft(); emit_dma_item(kk, it)
                    if isinstance(it[1], str) and it[1].startswith("s_cmp"):
                        kk, it = dmaq.popleft(); emit_dma_item(kk, it)
                    if it[0] == "m": lastm = gi; lastd[0] = gi
                    return
            for q_ in (fill, fill2):
                if q_ and q_[0][0] <= i and (q_[0][4] == 0 or gi - lastm >= q_[0][4]):
                    it = q_.popleft(); emit_fill(it)
                    if it[4]: lastm = gi
                    return
            if fill3: emit3()
        for i in range(N):
            k, off, acc, b0, b1, first, tag = frs[i][:7]
            if first_of[k] == i: astamp_stage(k)
            if trace == (200, 201) and 24 <= k < 33 and i % 8 == 6: tr.stage = 200; tr(f"a{k}"); tr.stage = k
            if trace == (100, 101) and k >= 36 and i % 8 == 2: tr.stage = 100; tr(f"f{i}"); tr.stage = k
            if i in ihooks: ihooks.pop(i)(i)
            if tag in ihooks: ihooks.pop(tag)(i)
            while extq: dmaq.append(extq.pop(0))
            assert rd[i] <= a.lg_done
            fb = FR + 4*(i % NB)
            if first_of[k] + 1 == i and ("S", k) in ihooks: ihooks.pop(("S", k))(i)
            if k == 12 and first_of[k] == i: assert not any("v206" in str(it[1]) for _, it in dmaq)
            if k == 18 and first_of[k] == i: assert not any(kk == "z" and it[0] != "h" for kk, it in dmaq)
            if first:
                nd = 0
                while any(any((x <= acc < x + 32) if isinstance(x, int) else (x[0] <= acc < x[1]) for x in it[3]) for it in fill):
                    emit_fill(fill.popleft()); nd += 1
                while any(x <= acc < x + 32 for _, x in fill3):
                    emit3(True); nd += 1
                if nd: print("drained", nd, "at stage", k, file=sys.stderr); a.i("s_nop 1")
            for t, b in enumerate((b0, b1)):
                d = f"v[{acc+4*t}:{acc+4*t+3}]"
                a.i(f"{MF} {d}, a[{fb}:{fb+3}], {b}, {'0' if first else d}")
                used = False
                if i + D < N:
                    if t == 0: used = pre_read(i + D, i)
                    rd_half(i + D, t)
                if t == 1 and i + 1 < N and rd[i+1] > a.lg_done:
                    a.wait(lg=rd[min(i+wev, N-1)]); used = True
                if not used: other(i)
                gi += 1
            if len(frs[i]) > 7:
                d = f"v[{frs[i][7]}:{frs[i][7]+3}]"
                a.i(f"{MF} {d}, a[{fb}:{fb+3}], a[{ONES}:{ONES+3}], {'0' if first else d}")
                other(i); other(i); gi += 1
            if tag in bpost: bpost[tag](i + 3)
            if (i + 1 == N or frs[i+1][0] != k) and k in post: do_post(post.pop(k), i + 3)
        while dmaq:
            kk, it = dmaq.popleft(); emit_dma_item(kk, it)
        if tailnop or fill: a.i("s_nop 7")
        while fill: emit_fill(fill.popleft())
        while fill2: emit_fill(fill2.popleft())
        if fill3: print("fill3 left", len(fill3), file=sys.stderr)
        while fill3: emit3(True)
    def astamp_stage(k):
        if k == 6: astamp("P:qend")
        if 6 <= k < 33 and k % 3 == 0: astamp(f"A:{k}")
        if k < 6: astamp(f"Q:{k}")
        if k >= 36 and k % 2 == 0: astamp(f"B:{k}")
    def pack4(nb, d, e, sets):
        F(nb, "v", f"v_cvt_pk_bf16_f32 v{d}, v{d}, v{d+1}", sets); F(nb, "v", f"v_cvt_pk_bf16_f32 v{d+1}, v{d+2}, v{d+3}", sets)
        F(nb, "v", f"v_cvt_pk_bf16_f32 v{d+2}, v{e}, v{e+1}", sets); F(nb, "v", f"v_cvt_pk_bf16_f32 v{d+3}, v{e+2}, v{e+3}", sets)
    def flag_store(voff_txts, soff, offs=0):
        for t in voff_txts: a.i(t)
        a.i(f"v_mov_b32 v{q1}, s{sTag}")
        a.vm(f"buffer_store_dword v{q1}, v{q0}, {WS}, {soff} offen offset:{offs} sc1")
    def do_post(p, nb):
        if p[0] == "g" or (p[0] == "h" and len(p[2]) == 1):
            g = p[2] if p[0] == "g" else p[2][0][0]
            for tau in range(p[3] if p[0] == "g" else 2):
                for t in range(2):
                    for r in range(4): F(nb, "v", f"v_mul_f32 v{g+8*tau+4*t+r}, v{RS2[t]}, v{g+8*tau+4*t+r}", p[1])
        if p[0] == "h":
            sets = p[1]
            for (g, u_, ks) in p[2]:
                F(nb, "s", f"s_add_u32 s{sPst}, s{sHst}, {2048*ks}", sets)
                for t in range(2):
                    for c in range(2):
                        for r in range(4):
                            o = 8*c + 4*t + r
                            F(nb, "v", f"v_mul_f32 v{g+o}, v{g+o}, v{u_+o}", sets)
                    pack4(nb, g + 4*t, g + 8 + 4*t, sets)
                    for r in range(4):
                        F(nb, "v", f"v_accvgpr_write_b32 a{H+8*ks+4*t+r}, v{g+4*t+r}", sets)
                    Fm(nb, "h1st" if (ks, t) == (3, 1) else "hst", f"buffer_store_dwordx4 v[{g+4*t}:{g+4*t+3}], v{vL16}, {WS}, s{sPst} offen offset:{1024*t} sc1", sets, 3)
            if p[2][-1][2] == 3:
                pubs.append(("h1st", lambda: flag_store([f"v_accvgpr_read_b32 v{q0}, a{st('hfo')}"], "0", 8), [None, 110], False))
        elif p[0] == "q":
            sets = p[1]
            F(nb, "v", f"v_accvgpr_read_b32 v{q0}, a{st('stq')}", sets)
            for tau in range(7):
                sets = [ACC[tau // 4]]
                if tau == 6: F(nb, "v", f"v_accvgpr_read_b32 v{q0}, a{st('stq2')}", sets)
                F(nb, "s", f"s_add_u32 s{sPst}, s{sQst}, {4096*tau}", sets)
                for t in range(2):
                    b = QACC + 8*tau + 4*t
                    for r in range(4): F(nb, "v", f"v_mul_f32 v{b+r}, v{QSC[t]}, v{b+r}", sets)
                    F(nb, "v", f"v_cvt_pk_bf16_f32 v{b}, v{b}, v{b+1}", sets); F(nb, "v", f"v_cvt_pk_bf16_f32 v{b+1}, v{b+2}, v{b+3}", sets)
                    Fm(nb, "qdone" if (tau, t) == (6, 1) else "qst", f"buffer_store_dwordx2 v[{b}:{b+1}], v{q0}, {WS}, s{sPst} offen offset:{128*t} sc1", sets, 3)
            def pubq():
                a.i(f"s_lshl_b32 s{sT0}, s{sR}, 4"); a.i(f"s_add_u32 s{sT0}, s{sT0}, s{sS}")
                a.i(f"s_lshl_b32 s{sT0}, s{sT0}, 7"); a.i(f"s_add_u32 s{sT0}, s{sT0}, {QF_BASE}")
                flag_store([f"v_mov_b32 v{q0}, 0"], f"s{sT0}")
            pubs.append(("qdone", pubq, [None, 0], True))

    def hook7(cur): toks["tag"] = a.vm(f"buffer_load_dword v207, off, s[{SDBG}:{SDBG+3}], 0 sc1")
    hooks[7] = hook7
    def hook10(cur):
        a.wait(vm=toks["tag"])
        a.label("L_tagchk")
        a.i(f"v_readfirstlane_b32 s{sTag}, v207")
        a.i("s_nop 0")
        a.i(f"s_cmp_eq_u32 s{sTag}, 0")
        a.i("s_cbranch_scc1 L_tagspin")
        a.label("L_tagok")
    hooks[10] = hook10
    DUM = f"a[{HP+76}:{HP+79}]"
    nw = 8 << lg_rpx
    def pf_gu(sr, scol):
        ld = f"buffer_load_dword a{HP+75}, v{vLane}, s[{sr}:{sr+3}], s{scol} offen"
        if not trace: return [("m", ld)]
        return [("g", [f"v_accvgpr_write_b32 a{st('trs')}, v{vLane}", f"v_accvgpr_read_b32 v{vLane}, a{st('pfv')}", ld, f"v_accvgpr_read_b32 v{vLane}, a{st('trs')}"])]
    def pf_dw():
        return [("s", f"s_lshl_b32 s{sT0}, s{sR}, 1"), ("s", f"s_and_b32 s{sT1}, s{sS}, 1"), ("s", f"s_add_u32 s{sT0}, s{sT0}, s{sT1}"),
                ("s", f"s_lshl_b32 s{sT0}, s{sT0}, 2"), ("s", f"s_add_u32 s{sT0}, s{sT0}, s{sW}"), ("s", f"s_lshl_b32 s{sT1}, s{sI}, 7"),
                ("s", f"s_add_u32 s{sT0}, s{sT0}, s{sT1}"), ("s", f"s_mul_i32 s{sT1}, s{sT0}, 5184"), ("s", f"s_mul_i32 s{sT0}, s{sT0}, 648"),
                ("v", f"v_min_u32 v{q2}, {41*16}, v{vL16}"), ("v", f"v_lshlrev_b32 v{q2}, 3, v{q2}"),
                ("m", f"buffer_load_dword a{HP+75}, v{q2}, s[{SD}:{SD+3}], s{sT1} offen offset:2048"),
                ("v", f"v_min_u32 v{q2}, {5*128}, v{q2}"),
                ("m", f"buffer_load_dword a{HP+75}, v{q2}, s[{SO}:{SO+3}], s{sT0} offen offset:2048")]
    def pf_fl(): return [("v", f"v_accvgpr_read_b32 v{q2}, a{st('pt')}"), ("m", f"buffer_load_dword a{HP+75}, v{q2}, {WS}, 0 offen sc1")]
    def xr_own(q0, q1, q2):
        L = [("v", f"v_bfe_u32 v{q1}, v{vL16}, 4, 4"), ("v", f"v_mul_u32_u24 v{q1}, 1152, v{q1}"), ("v", f"v_lshrrev_b32 v{q0}, 8, v{vL16}"),
             ("v", f"v_lshl_add_u32 v{q2}, v{q0}, 3, v{q1}"),
             ("s", f"s_and_b32 s{sT2}, s{sS}, 1"), ("s", f"s_mul_i32 s{sT2}, s{sT2}, 640"), ("s", f"s_lshl_b32 s{sT3}, s{sI}, 6"),
             ("s", f"s_add_u32 s{sT2}, s{sT2}, s{sT3}"), ("s", f"s_add_u32 s{sT2}, s{sT2}, s{sXrow}")]
        for t in range(2):
            if t: L.append(("s", f"s_add_u32 s{sT2}, s{sT2}, {16*1152}"))
            for c in range(2):
                L.append(("m", f"buffer_load_dwordx2 a[{XR+4*t+2*c}:{XR+4*t+2*c+1}], v{q2}, s[{SX}:{SX+3}], s{sT2} offen offset:{32*c}"))
        return L
    def xr_mid(q0, q1, q2):
        return [("v", f"v_bfe_u32 v{q1}, v{vL16}, 4, 4"), ("v", f"v_mul_u32_u24 v{q1}, 1152, v{q1}"), ("v", f"v_bfe_u32 v{q0}, v{vL16}, 8, 1"),
              ("v", f"v_lshl_add_u32 v{q2}, v{q0}, 5, v{q1}"),
              ("s", f"s_lshr_b32 s{sT2}, s{sI}, 2"), ("s", f"s_mul_i32 s{sT2}, s{sT2}, {16*1152}"), ("s", f"s_and_b32 s{sT3}, s{sI}, 3"),
              ("s", f"s_lshl_b32 s{sT3}, s{sT3}, 3"), ("s", f"s_add_u32 s{sT2}, s{sT2}, s{sT3}"), ("s", f"s_and_b32 s{sT3}, s{sS}, 1"),
              ("s", f"s_lshl_b32 s{sT3}, s{sT3}, 6"), ("s", f"s_add_u32 s{sT2}, s{sT2}, s{sT3}"), ("s", f"s_add_u32 s{sT2}, s{sT2}, s{sXrow}"),
              ("m", f"buffer_load_dwordx2 a[{XR+8}:{XR+9}], v{q2}, s[{SX}:{SX+3}], s{sT2} offen offset:512")]
    def hook_poll_issue(cur):
        a.i(f"v_accvgpr_read_b32 v{q0}, a{st('qf')}")
        toks["kv"] = a.vm(f"buffer_load_dword v{q1}, v{q0}, {WS}, 0 offen sc1")
    def hook_poll_check(cur):
        poll_check("kv", q0, q1)
        for hd, nm in enumerate(("qA", "qB")):
            G(cur, "v", f"v_accvgpr_read_b32 v{q2}, a{st(nm)}")
            for t in range(2):
                for hf in range(2):
                    d = aQ + 8*hd + 4*t + 2*hf
                    Gm(cur, "qld", f"buffer_load_dwordx2 a[{d}:{d+1}], v{q2}, {WS}, s{sQld} offen offset:{128*t + 1024*hf} sc1", 3)
    hooks[19] = hook_poll_issue
    hooks[21] = hook_poll_check
    def h1_issue(cur):
        assert not any(p[0] == "h1st" for p in pubs) and not fill2
        a.i(f"v_accvgpr_read_b32 v{q0}, a{st('hfp')}")
        toks["h1"] = a.vm(f"buffer_load_dword v{q1}, v{q0}, {WS}, 0 offen offset:8 sc1")
    def h1_check(cur):
        poll_check("h1", q0, q1, "0", 8)
        for ks in range(4):
            for t in range(2):
                o = 2048*ks + 1024*t; d = HP + 8*ks + 4*t
                if o % 4096 == 0: G(cur, "s", f"s_add_u32 s{sT3}, s{sHld}, {o}")
                G(cur, "m", f"buffer_load_dwordx4 a[{d}:{d+3}], v{vL16}, {WS}, s{sT3} offen offset:{o % 4096} sc1", 5)
    hooks[26] = h1_issue
    hooks[28] = h1_check
    PFS = sched or {3: "G1 U1 h40", 11: "x G2 U2 G3", 17: "y U3 G4 U4 f", 24: "d h100"}
    def pf_named(nm):
        if nm[0] in "GU": return pf_gu(SG if nm[0] == "G" else SU, (sPair + [sSing])[int(nm[1])])
        if nm == "x": return xr_own(204, 205, 206)
        if nm == "y": return xr_mid(q0, q1, q2)
        return pf_dw() if nm == "d" else pf_fl()
    def mkpf(names):
        def f(cur):
            hh = [int(nm[1:]) for nm in names.split() if nm[0] == "h"]
            L = [("z", it) for nm in names.split() if nm[0] != "h" for it in pf_named(nm)] + [("z", ("h", hh[0] if hh else mh))]
            if "d" in names.split():
                assert not fill2
                for it in L: dmaq.append(it)
            else:
                for it in reversed(L): dmaq.appendleft(it)
        return f
    pfhooks = {k: mkpf(v) for k, v in PFS.items()}
    def kv_dma(cur, mat):
        base = TBASE + mat*10*GS; go = mat*144*1024
        L = []
        L.append(("s", f"s_mul_i32 s{sT2}, s{sW}, {GS}"))
        L.append(("s", f"s_add_u32 m0, s{sT2}, {base}"))
        for r2 in range(3):
            L.append(("s", f"s_add_u32 s{sT0}, s{sKV[r2]}, {go}"))
            L.append(("m", f"buffer_load_dwordx4 v{vL16}, {WS}, s{sT0} offen offset:{1024*r2} sc1 lds"))
        L.append(("s", f"s_min_u32 s{sT1}, s{sT2}, {GS}"))
        L.append(("s", f"s_add_u32 s{sT1}, s{sT1}, s{sT2}"))
        L.append(("s", f"s_add_u32 m0, s{sT1}, {base + 4*GS}"))
        for r2 in range(3):
            L.append(("s", f"s_add_u32 s{sT0}, s{sKV[r2]}, {go + 4096}"))
            L.append(("m", f"buffer_load_dwordx4 v{vL16}, {WS}, s{sT0} offen offset:{1024*r2} sc1 lds"))
        L.append(("s", f"s_cmp_eq_u32 s{sW}, 1")); L.append(("s", f"s_cselect_b32 s{sT0}, s{sKV[1]}, s{sKV[2]}"))
        L.append(("s", f"s_cmp_eq_u32 s{sW}, 0")); L.append(("s", f"s_cselect_b32 s{sT0}, s{sKV[0]}, s{sT0}"))
        L.append(("s", f"s_min_u32 s{sT1}, s{sW}, 2")); L.append(("s", f"s_sub_u32 s{sT2}, s{sT1}, s{sW}"))
        L.append(("s", f"s_lshl_b32 s{sT2}, s{sT2}, 10")); L.append(("s", f"s_add_u32 s{sT0}, s{sT0}, s{sT2}"))
        L.append(("s", f"s_lshl_b32 s{sT1}, s{sT1}, 10"))
        L.append(("s", f"s_add_u32 m0, s{sT1}, {base + 9*GS}"))
        L.append(("s", f"s_add_u32 s{sT0}, s{sT0}, {go + 8192}"))
        L.append(("m", f"buffer_load_dwordx4 v{vL16}, {WS}, s{sT0} offen sc1 lds"))
        L.append(("v", f"v_add_u32 v{q2}, s{sT1}, v{vL16}"))
        d = KVS + 4*mat
        if mat == 0:
            L.append(("s", f"s_cmp_ge_u32 s{sT0}, {OOB}")); L.append(("s", f"s_cselect_b32 s{sT0}, 0xf149, 0"))
            L += [("v", f"v_accvgpr_write_b32 a{d}, s{sT0}"), ("v", f"v_accvgpr_write_b32 a{d+1}, 0"),
                  ("v", f"v_accvgpr_write_b32 a{d+2}, s{sT0}"), ("v", f"v_accvgpr_write_b32 a{d+3}, 0")]
        else:
            L += [("v", f"v_accvgpr_write_b32 a{d+r}, s{sC0}") for r in range(4)]
        L.append(("v", f"v_add_u32 v{q2}, {base + 5*GS}, v{q2}"))
        L.append(("d", f"ds_write_b128 v{q2}, a[{d}:{d+3}]"))
        return L
    stages[34] = dict(dma=kv_dma(0, 0), fr=[]); stages[35] = dict(dma=kv_dma(0, 1), fr=[])
    assert nraw == 0
    a.i(f"s_mov_b32 s{sC0}, 0x3f803f80"); a.i(f"s_mov_b32 s{sC1}, 0x3f80")
    RS2 = [vT0, vT1]; QSC = [q1, q2]
    SA = [234, 235, 236, 237]
    PR = [230, 238]; u = [160, 161]; TP = [164 + 2*i for i in range(4)]
    nx = [x0]; xrd = {}
    def xnext():
        if nx[0] < 18:
            if nx[0] >= NXU:
                if (nx[0] - NXU) not in xrd: return
                a.wait(lg=xrd[nx[0] - NXU])
            xdma(nx[0]); nx[0] += 1
    NHOP = 4
    def hop(h):
        def fn():
            if not iwarm: return
            a.i("s_mov_b64 exec, 0")
            for w in range(3):
                a.i(f"s_cmp_eq_u32 s{sW}, {w}"); a.i(f"s_cbranch_scc1 L_w{4*h+w}")
            a.i(f"s_branch L_w{4*h+3}")
            a.label(f"L_wret{h}")
            a.i("s_mov_b64 exec, -1")
        return fn
    def xread(n):
        t, ch = n // 9, n % 9
        while nx[0] <= n: xnext()
        tr(f"x{n}")
        a.wait(vm=dma_tok[("x", n)])
        tr(f"y{n}")
        for Sb in range(2):
            xrd[n] = a.ds(f"ds_read_b128 {X(2*ch + Sb, t)}, v{vXr[Sb]} offset:{2048*(n % NXU)}")
    def stats(n):
        t, ch = n // 9, n % 9
        a.wait(lg=xrd[n])
        for Sb in range(2):
            for i in range(4):
                x = XN + 8*(2*ch + Sb) + 4*t + i
                c1 = "0" if (ch == 0 and Sb == 0 and i < 2) else f"v{SA[i%2]}"
                c2 = "0" if (ch == 0 and Sb == 0 and i < 2) else f"v{SA[2+i%2]}"
                a.i(f"v_dot2_f32_bf16 v{SA[i%2]}, v{x}, s{sC0}, {c1}")
                a.i(f"v_dot2_f32_bf16 v{SA[2+i%2]}, v{x}, v{x}, {c2}")
    inv = 1.0/576.0
    def finstats(t):
        m, q = SA[0], SA[2]; rs, nm = PR[t], PR[t] + 1
        a.i("s_nop 2")
        a.i(f"v_add_f32 v{m}, v{m}, v{SA[1]}"); a.i(f"v_add_f32 v{q}, v{q}, v{SA[3]}")
        for sw in ("v_permlane32_swap_b32", "v_permlane16_swap_b32"):
            a.i(f"v_mov_b32 v{u[0]}, v{m}"); a.i(f"v_mov_b32 v{u[1]}, v{q}")
            a.i("s_nop 1")
            a.i(f"{sw} v{m}, v{u[0]}"); a.i(f"{sw} v{q}, v{u[1]}")
            a.i("s_nop 0")
            a.i(f"v_add_f32 v{m}, v{m}, v{u[0]}"); a.i(f"v_add_f32 v{q}, v{q}, v{u[1]}")
        def rb(r): a.i(f"v_cvt_pk_bf16_f32 v{r}, v{r}, v{r}"); a.i(f"v_lshlrev_b32 v{r}, 16, v{r}")
        a.i(f"v_mul_f32 v{m}, {f2u(inv)}, v{m}"); a.i(f"v_mul_f32 v{q}, {f2u(inv)}, v{q}")
        a.i(f"v_fma_f32 v{q}, -v{m}, v{m}, v{q}"); a.i(f"v_max_f32 v{q}, 0, v{q}")
        rb(q); a.i(f"v_add_f32 v{q}, {f2u(1e-5)}, v{q}"); rb(q)
        a.i(f"v_sqrt_f32 v{q}, v{q}"); rb(m); rb(q)
        a.i(f"v_rcp_f32 v{rs}, v{q}"); a.i(f"v_sub_f32 v{nm}, 0, v{m}")
        a.i(f"v_mul_f32 v{RS2[t]}, v{rs}, v{rs}"); a.i(f"v_mul_f32 v{QSC[t]}, {f2u(QG)}, v{rs}")
    def norm(S, t):
        for i in range(4):
            x = XN + 8*S + 4*t + i; tp = TP[i]
            a.i(f"v_dot2_f32_bf16 v{tp}, v{x}, s{sC1}, v{PR[t]+1}"); a.i(f"v_dot2_f32_bf16 v{tp+1}, v{x}, s{sHi}, v{PR[t]+1}")
        for i in range(4):
            x = XN + 8*S + 4*t + i; tp = TP[i]
            if i == 2: pass
            a.i(f"v_cvt_pk_bf16_f32 v{x}, v{tp}, v{tp+1}")
    sHi = 47
    a.i(f"s_mov_b32 s{sHi}, 0x3f800000")
    tr.stage = -1
    if trace and trace[0] < 0: a.i("s_mov_b32 s48, s53")
    su_early()
    if trace and trace[0] < 0:
        a.i("s_waitcnt lgkmcnt(0)"); a.i(f"v_writelane_b32 v{vLane}, s48, 0"); a.i(f"v_writelane_b32 v{vLane}, s54, 1"); trl.extend(["entry", "karg"])
    work = {hopat[h]: hop(h) for h in range(NHOP)}
    for n in range(9):
        if n in work: work.pop(n)()
        for nm in fp[1].get(n, "").split():
            for it in pf_named(nm): emit_dma_item("z", it)
        if n == fp[0] and wpf: a.vm(f"buffer_load_dword a{HP+75}, v{vWP}, s[{SQKV}:{SQKV+3}], s{sQcol} offen")
        xread(n)
        xnext()
        if n < xfast: xnext()
        if n: stats(n - 1)
    pre = list(range(lnpre))
    vq_ = deque([(kk, it) for kk in pre for it in stages[kk]["dma"]])
    def vside():
        while vq_:
            kk, it = vq_.popleft(); emit_dma_item(kk, it)
            if it[0] == "m": break
    su_cas()
    stats(8); finstats(0)
    for n in range(9, 18):
        if n in work: work.pop(n)()
        for nm in fp[1].get(n, "").split():
            for it in pf_named(nm): emit_dma_item("z", it)
        xread(n)
        xnext()
        if n >= w0at: vside(); vside()
        norm(2*(n-9), 0); norm(2*(n-9)+1, 0)
        stats(n)
    assert not work
    astamp("P:stats")
    finstats(1)
    for S in range(18):
        norm(S, 1)
        if vq_ and (vq_[0][0] != "z" or S >= gu_at): vside()
    while vq_: vside()
    astamp("P:ln")
    if nraw == 6: do_post(("q", [ACC[0], ACC[1]]), 0)
    else: post[5] = ("q", [ACC[0], ACC[1]])
    defer(d_q(208) + d_h(208) + d_B(208), 208)
    def addhook(k, fn):
        old = hooks.get(k)
        hooks[k] = (lambda cur: (old(cur), fn(cur))) if old else fn
    def at_stage(k, L, accset):
        def f(i):
            assert not fill or True
            defer(L, accset)
        ihooks[("S", k)] = f
    at_stage(9, d_flags(200), ACC[1])
    at_stage(12, d_rows(0), -100)
    at_stage(15, d_T1(ACC[0]), ACC[0])
    at_stage(21, d_T2(ACC[2]), ACC[2])
    at_stage(24, d_col(0), -100)
    QO = 0; MFi = 16; MLa = 20; aKA, aKB, aV0, aV1 = 24, 25, 26, 27; w0, w1, w2, w3 = 28, 29, 30, 31
    def d_Tsetup():
        L = [f"v_accvgpr_read_b32 v{r}, a{st(nm)}" for nm, r in (("KA", aKA), ("KB", aKB), ("V0", aV0), ("V1", aV1))]
        for r in range(4): L += [f"v_accvgpr_read_b32 v{MFi+r}, a{st('mf')+r}", f"v_accvgpr_read_b32 v{MLa+r}, a{st('ml')+r}"]
        L += [f"v_lshrrev_b32 v{w0}, 8, v{vL16}", f"v_add_u32 v{w1}, -2, v{w0}", f"v_ashrrev_i32 v{w1}, 31, v{w1}",
              f"v_add_u32 v{w2}, -3, v{w0}", f"v_ashrrev_i32 v{w2}, 31, v{w2}", f"v_xor_b32 v{w3}, v{w1}, v{w2}", f"v_and_b32 v{w3}, 0x3f80, v{w3}"]
        for hd in range(2):
            for t in range(2):
                b = QO + 8*hd + 4*t
                L += [f"v_accvgpr_read_b32 v{b+r}, a{aQ+8*hd+4*t+r}" for r in range(4)]
                L += [f"v_and_b32 v{b}, v{w1 if hd else w2}, v{b}", f"v_and_b32 v{b+1}, v{w2 if hd else w1}, v{b+1}",
                      f"v_and_or_b32 v{b+2}, v{b+2}, v{w1}, v{w3}", f"v_and_b32 v{b+3}, v{w1}, v{b+3}"]
        return L
    def f31(i):
        assert not fill3
        assert toks["qld"] <= a.vm_done
        defer(d_Tsetup(), -100)
    ihooks[("S", 31)] = f31
    todo = [kk for kk in range(nraw, 33) if kk not in dma_tok]
    def dma_after_A(k):
        out = []
        while todo and todo[0] <= k + 4:
            kk = todo[0]
            prev = [x for x in range(nraw, kk) if slot_of(x) == slot_of(kk)]
            if prev and max(prev) > k - 2: break
            out.append(todo.pop(0))
        if k == kvat[0]: out.append(34)
        if k == kvat[1]: out.append(35)
        if k == 31:
            if fill3: print("forced fill3", len(fill3), file=sys.stderr)
            while fill3: emit3(True)
            if not wdlate: out.append(36)
        if k == 32 and not wdlate: out.append(37)
        return out
    stream([(k,) + f for k in range(nraw, 33) for f in stages[k]["fr"]], dma_after_A)
    assert not todo
    astamp("P:aend"); astamp("A:end"); astamp("T:0")

    tr.stage = 200; tr("aend")
    a.wait(vm=max(dma_tok[34], dma_tok[35]), lg=a.lg_issued)
    a.i("s_barrier")
    SS = 32; OA = 208
    mx = [176, 178]; nmx = [180, 182]
    def Sr(t, kt): return SS + 72*t + 4*kt
    side = deque()
    def side_group(kk, items):
        cur = []
        for it in items:
            cur.append(it)
            if it[0] == "m":
                side.append(lambda kk=kk, cur=cur: [emit_dma_item(kk, x) for x in cur]); cur = []
        assert not cur
    def side_all():
        if wdlate:
            side_group(36, stages[36]["dma"]); side_group(37, stages[37]["dma"])
        side_group(38, stages[38]["dma"])
        side_group(39, stages[39]["dma"])
    if wdlate: side_group("z", pf_dw())
    if not wdlate: side_all()
    fbn = [0]; NFB = [8]
    def nextfb():
        fb = FR + 4*(fbn[0] % NFB[0]); fbn[0] += 1; return fb
    def rd_k(hd, kt, lazy=None):
        fb = nextfb(); v = aKB if hd else aKA
        o = [f"ds_read_b64 a[{fb}:{fb+1}], v{v} offset:{128*kt}", f"ds_read_b64 a[{fb+2}:{fb+3}], v{v} offset:{128*kt + GS}"]
        if lazy is not None: lazy += o; return fb, None
        a.ds(o[0]); return fb, a.ds(o[1])
    def rd_v(hd, kap, tile, lazy):
        fb = nextfb(); v = aV1 if tile else aV0; o = 256*kap + (6*GS if (hd and not tile) else 0)
        lazy += [f"ds_read_b64_tr_b16 a[{fb}:{fb+1}], v{v} offset:{o}", f"ds_read_b64_tr_b16 a[{fb+2}:{fb+3}], v{v} offset:{o+128}"]
        return fb, None
    def qk_ops(hd, kt, fr):
        fb, tk = fr; o = []
        for t in range(2):
            j = kt - t
            if not 0 <= j <= 16: continue
            c = f"v[{MFi}:{MFi+3}]" if j == 0 else (f"v[{MLa}:{MLa+3}]" if j == 16 else "0")
            d = Sr(t, kt); b = QO + 8*hd + 4*t
            o.append((tk, f"{MF} v[{d}:{d+3}], a[{fb}:{fb+3}], v[{b}:{b+3}], {c}"))
        return o
    def max_ops(kt):
        o = []
        for t in range(2):
            j = kt - t
            if not 0 <= j <= 16: continue
            b = Sr(t, kt); m = mx[t]
            if j == 0:
                o.append(f"v_max_f32 v{m}, v{b}, v{b+1}"); o.append(f"v_max_f32 v{m+1}, v{b+2}, v{b+3}")
            else:
                o.append(f"v_max3_f32 v{m}, v{b}, v{b+1}, v{m}"); o.append(f"v_max3_f32 v{m+1}, v{b+2}, v{b+3}, v{m+1}")
        return o
    def finmax():
        for t in range(2): a.i(f"v_max_f32 v{mx[t]}, v{mx[t]}, v{mx[t]+1}")
        for sw in ("v_permlane32_swap_b32", "v_permlane16_swap_b32"):
            for t in range(2): a.i(f"v_mov_b32 v{mx[t]+1}, v{mx[t]}")
            a.i("s_nop 1")
            for t in range(2): a.i(f"{sw} v{mx[t]}, v{mx[t]+1}")
            a.i("s_nop 0")
            for t in range(2): a.i(f"v_max_f32 v{mx[t]}, v{mx[t]}, v{mx[t]+1}")
        for t in range(2): a.i(f"v_mul_f32 v{nmx[t]+1}, -1.0, v{mx[t]}")
    def exp_ops(kap):
        o1, o2, o3 = [], [], []
        for t in range(2):
            d = Sr(t, 2*kap)
            for hf in range(2):
                kt = 2*kap + hf; b = Sr(t, kt)
                if 0 <= kt - t <= 16:
                    for r in (0, 2): o1.append(f"v_pk_fma_f32 v[{b+r}:{b+r+1}], v[{b+r}:{b+r+1}], v[{nmx[t]}:{nmx[t]+1}], v[{nmx[t]}:{nmx[t]+1}] op_sel:[0,0,1] op_sel_hi:[1,0,1]")
                    for r in range(4): o2.append(f"v_exp_f32 v{b+r}, v{b+r}")
                    o3.append(f"v_cvt_pk_bf16_f32 v{d+2*hf}, v{b}, v{b+1}"); o3.append(f"v_cvt_pk_bf16_f32 v{d+2*hf+1}, v{b+2}, v{b+3}")
                else:
                    o3.append(f"v_mov_b32 v{d+2*hf}, 0"); o3.append(f"v_mov_b32 v{d+2*hf+1}, 0")
        return o1, o2 + o3
    def pv_ops(hd, kap, frs):
        o = []
        for tile in range(2):
            fb, tk = frs[tile]
            for t in range(2):
                d = OA + 16*hd + 8*t + 4*tile; b = Sr(t, 2*kap)
                o.append((tk, f"{MF} v[{d}:{d+3}], a[{fb}:{fb+3}], v[{b}:{b+3}], {'0' if kap == 0 else f'v[{d}:{d+3}]'}"))
        return o
    fbtok = {}
    def dsr(txt):
        tk = a.ds(txt); fbtok[int(re.search(r"a\[(\d+):", txt).group(1)) & ~3] = tk
    def merge(valu, mfs, lead=2, tailgap=1, reads=(), nside=3, lazywait=False):
        n = len(valu); m = len(mfs); pos = {}; reads = list(reads)
        if not lazywait: a.wait(lg=a.lg_issued)
        need = {txt: fbtok.get(int(re.search(r", a\[(\d+):", txt).group(1)), 0) for _, txt in mfs}
        order = [txt for _, txt in mfs]
        while len(reads) > m: dsr(reads.pop(0))
        for j in range(m): pos.setdefault(lead + (j * max(n - lead - tailgap, 1)) // max(m, 1), []).append(mfs[j])
        cnt = 0
        def one(txt):
            nonlocal cnt
            if lazywait and need[txt] > a.lg_done:
                j = order.index(txt); a.wait(lg=max(need[x] for x in order[j:j+4]))
            a.i(txt)
            if reads: dsr(reads.pop(0))
            cnt += 1
            if side and cnt % nside == 0: side.popleft()()
        for i, v in enumerate(valu):
            for (tk, txt) in pos.pop(i, []): one(txt)
            a.i(v)
        for kq in sorted(pos):
            for (tk, txt) in pos[kq]: one(txt)
    def slowT():
        for t in range(2): a.i(f"v_mov_b32 v{nmx[t]}, 1.0")
        for hd in range(2):
            kf = {}
            for kt in range(6): kf[kt] = rd_k(hd, kt)
            for kt in range(18):
                lz = []
                if kt + 6 < 18: fbx, _ = rd_k(hd, kt+6, lz)
                mo = max_ops(kt-3) if kt >= 3 else []
                for (tk, txt) in qk_ops(hd, kt, kf[kt]):
                    a.wait(lg=tk); a.i(txt)
                    if lz: tkx = a.ds(lz.pop(0))
                while lz: tkx = a.ds(lz.pop(0))
                if kt + 6 < 18: kf[kt+6] = (fbx, tkx)
                a.i("s_nop 1")
                for t in mo: a.i(t)
            a.i("s_nop 7")
            for kt in (15, 16, 17):
                for t in max_ops(kt): a.i(t)
            finmax()
            pend = []
            for kap in range(9):
                lz = []
                vf = [rd_v(hd, kap, 0, lz), rd_v(hd, kap, 1, lz)]
                o1, v = exp_ops(kap)
                for t in o1: a.i(t)
                merge(v, pend, lead=0, tailgap=5, reads=lz)
                pend = pv_ops(hd, kap, vf)
            a.i("s_nop 1")
            merge([], pend)
        a.i("s_nop 7")
    def hp_loads():
        for ks in range(4, 9):
            for t in range(2):
                def ld(ks=ks, t=t):
                    o = 2048*ks + 1024*t
                    if o % 4096 == 0: a.i(f"s_add_u32 s{sPst}, s{sHld}, {o}")
                    d = HP + 8*ks + 4*t
                    toks["hld"] = a.vm(f"buffer_load_dwordx4 a[{d}:{d+3}], v{vL16}, {WS}, s{sPst} offen offset:{o % 4096} sc1")
                side.append(ld)
    seq = [(hd, kap) for kap in range(9) for hd in range(2)]
    cur_n = [None]
    Sr_slow = Sr
    def Sr(t, kt):
        if cur_n[0] is None: return Sr_slow(t, kt)
        return SS + 16*(cur_n[0] % 3) + 8*t + 4*(kt % 2)
    def kreads(n, lz):
        hd, kap = seq[n]; return [rd_k(hd, 2*kap, lz), rd_k(hd, 2*kap+1, lz)]
    def qks(n, kf):
        hd, kap = seq[n]; cur_n[0] = n
        r = qk_ops(hd, 2*kap, kf[0]) + qk_ops(hd, 2*kap+1, kf[1]); cur_n[0] = None
        return r
    NFB[0] = 6; V1B = [FR + 24, FR + 28]
    lz = []; k0 = kreads(0, lz); nextfb(); nextfb(); k1 = kreads(1, lz)
    for t in lz: dsr(t)
    a.wait(lg=a.lg_issued - 4)
    for (_, txt) in qks(0, k0): a.i(txt)
    a.i("s_nop 5")
    knext = k1; pv = []
    for n in range(18):
        hd, kap = seq[n]
        tr.stage = 200; tr(f"t{n}")
        mf = (qks(n+1, knext) if n + 1 < 18 else []) + pv
        lz = []; lz2 = []
        v0f = rd_v(hd, kap, 0, lz2)
        if hd == 0:
            v1f = (V1B[kap % 2], None)
            lz2 += [f"ds_read_b64_tr_b16 a[{v1f[0]}:{v1f[0]+1}], v{aV1} offset:{256*kap}", f"ds_read_b64_tr_b16 a[{v1f[0]+2}:{v1f[0]+3}], v{aV1} offset:{256*kap+128}"]
        if n + 2 < 18: knext = kreads(n + 2, lz)
        cur_n[0] = n
        _, v = exp_ops(kap)
        pvn = pv_ops(hd, kap, [v0f, v1f])
        cur_n[0] = None
        if wdlate and n == tside: side_all()
        merge(v, mf, lead=0, tailgap=tg, reads=lz + lz2, nside=(2 if wdlate and n >= tside else 4), lazywait=True)
        pv = pvn
        if n == th[0]:
            a.wait(vm=toks["hst"])
            flag_store([f"v_accvgpr_read_b32 v{q0}, a{st('hfo')}"], "0", 0)
        if n == th[1]:
            a.i(f"v_accvgpr_read_b32 v{q0}, a{st('hfp')}")
            toks["hp"] = a.vm(f"buffer_load_dword v{q1}, v{q0}, {WS}, 0 offen sc1")
        if n == th[2]:
            poll_check("hp", q0, q1); hp_loads()
    a.i("s_nop 1")
    merge([], pv)
    tr("tl")
    nleft = len(side)
    while side: side.popleft()()
    print("T side left", nleft, file=sys.stderr)
    a.i("s_nop 7")
    L = [0, 1, 2, 3] if False else [84, 85, 86, 87]; L2 = [88, 89, 90, 91]; BT = 92
    idx = [(hd, t) for hd in range(2) for t in range(2)]
    def getl():
        for n, (hd, t) in enumerate(idx):
            d = OA + 16*hd + 8*t + 4
            a.i(f"v_mov_b32 v{L[n]}, v{d}"); a.i(f"v_mov_b32 v{L2[n]}, v{d}")
        a.i("s_nop 1")
        for n in range(4): a.i(f"v_permlane16_swap_b32 v{L2[n]}, v{L[n]}")
        a.i("s_nop 0")
    getl()
    a.i(f"v_min3_f32 v{L2[0]}, v{L[0]}, v{L[1]}, v{L[2]}"); a.i(f"v_add_f32 v{L2[1]}, v{L[0]}, v{L[1]}"); a.i(f"v_add_f32 v{L2[2]}, v{L[2]}, v{L[3]}")
    a.i(f"v_min_f32 v{L2[0]}, v{L2[0]}, v{L[3]}"); a.i(f"v_add_f32 v{L2[1]}, v{L2[1]}, v{L2[2]}")
    a.i(f"v_cmp_nle_f32 vcc, {f2u(2.0**-40)}, v{L2[0]}")
    a.i(f"s_mov_b64 s[{sT1}:{sT1+1}], vcc")
    a.i(f"v_cmp_nge_f32 vcc, {f2u(2.0**40 if not forceslow else 0.0)}, v{L2[1]}")
    a.i("s_nop 0")
    a.i(f"s_or_b64 vcc, vcc, s[{sT1}:{sT1+1}]")
    a.i("s_cbranch_scc1 L_Tslow")
    a.label("L_Tnorm")
    main_lines = a.lines; a.lines = []
    assert a.lg_done == a.lg_issued
    NFB[0] = 8
    a.label("L_Tslow"); slowT(); getl(); a.i("s_branch L_Tnorm")
    assert a.lg_done == a.lg_issued
    slow_lines = a.lines; a.lines = main_lines
    E = []; osets = [OA]
    for n in range(4): E.append(f"v_mul_f32 v{L[n]}, {f2u(QG)}, v{L[n]}")
    for n in range(4): E.append(f"v_rcp_f32 v{L[n]}, v{L[n]}")
    E.append(f"v_add_u32 v{w1}, -1, v{w0}"); E.append(f"v_ashrrev_i32 v{w1}, 31, v{w1}")
    E.append(f"s_add_u32 s{sPst}, s{sHst}, {18*1024}")
    for t in range(2):
        for hd in range(2):
            d = OA + 16*hd + 8*t; n = 2*hd + t
            for r in list(range(4)) + ([6, 7] if hd else [4, 5]): E.append(f"v_mul_f32 v{d+r}, v{L[n]}, v{d+r}")
        d = OA + 8*t; e = OA + 16 + 8*t
        E += [f"v_cvt_pk_bf16_f32 v{BT+2*t}, v{d+4}, v{d+5}", f"v_cvt_pk_bf16_f32 v{BT+2*t+1}, v{e+6}, v{e+7}",
              f"v_cvt_pk_bf16_f32 v{d}, v{d}, v{d+1}", f"v_cvt_pk_bf16_f32 v{d+1}, v{d+2}, v{d+3}",
              f"v_cvt_pk_bf16_f32 v{d+2}, v{e}, v{e+1}", f"v_cvt_pk_bf16_f32 v{d+3}, v{e+2}, v{e+3}",
              f"v_and_b32 v{BT+2*t}, v{w1}, v{BT+2*t}", f"v_and_b32 v{BT+2*t+1}, v{w1}, v{BT+2*t+1}",
              f"buffer_store_dwordx4 v[{d}:{d+3}], v{vL16}, {WS}, s{sPst} offen offset:{1024*t} sc1"]
    E.append(f"buffer_store_dwordx4 v[{BT}:{BT+3}], v{vL16}, {WS}, s{sPst} offen offset:2048 sc1")
    for t in range(2):
        d = OA + 8*t
        E += [f"v_accvgpr_write_b32 a{H+72+4*t+r}, v{d+r}" for r in range(4)]
        E += [f"v_accvgpr_write_b32 a{HB+4*t}, v{BT+2*t}", f"v_accvgpr_write_b32 a{HB+4*t+1}, v{BT+2*t+1}"]
    for n_, t in enumerate(E):
        if n_ < oinl:
            if t.startswith("buffer"): toks["ost" if "2048" in t else "ostx"] = a.vm(t)
            else: a.i(t)
        elif t.startswith("buffer"): Fm(0, "ost" if "offset:2048" in t else "ostx", t, osets)
        else: F(0, "v", t, osets)
    def own_alpha(i):
        nd = 0
        while fill: emit_fill(fill.popleft()); nd += 1
        if nd: print("own alpha drain", nd, file=sys.stderr); a.i("s_nop 1")
    ihooks[("B", 1, 9, 0)] = own_alpha
    pubs.append(("ost", lambda: flag_store([f"v_accvgpr_read_b32 v{q0}, a{st('hfo')}"], "0", 4), [None, od], False))
    tr("tend")
    astamp("P:tend"); astamp("T:end")

    PL = 0
    SQ = 96
    def pstore(p, halves):
        def fn(nb):
            acc = BACC[p]; sets = [(acc, acc + 16*len(halves))]
            for hf in halves:
                if p == 0:
                    F(nb, "s", f"s_add_u32 s{sPst}, s{sHld}, {8*2048}", sets)
                else:
                    F(nb, "s", f"s_lshl_b32 s{sPst}, s{sCol[p]}, 5", sets); F(nb, "s", f"s_add_u32 s{sPst}, s{sPst}, s{sPo[hf]}", sets)
                for t in range(2):
                    d = acc + 16*hf + 4*t
                    pack4(nb, d, d + 8, sets)
                    last = (hf == halves[-1] and t == 1)
                    Fm(nb, f"pst{p}" if last else "pstx", f"buffer_store_dwordx4 v[{d}:{d+3}], v{vL16}, {WS}, s{sPst} offen offset:{1024*t} sc1", sets, 2)
            def pub():
                if p == 0: a.i(f"s_add_u32 s{sT0}, s{sPF}, 1024")
                else:
                    a.i(f"s_lshr_b32 s{sT0}, s{sI}, 1"); a.i(f"s_xor_b32 s{sT0}, s{sT0}, {4-p}")
                    a.i(f"s_lshl_b32 s{sT0}, s{sT0}, 8"); a.i(f"s_add_u32 s{sT0}, s{sT0}, s{sPF}")
                a.i(f"s_lshl_b32 s{sT1}, s{sI}, 2")
                flag_store([f"v_mov_b32 v{q0}, s{sT1}"], f"s{sT0}")
            pubs.append((f"pst{p}", pub, [None, pd if p < 3 else pd3], False))
        return fn
    def tag_store(acc, sreg):
        def fn(nb):
            sets = [(acc, acc + 16)]; src = []; L = []
            for t in range(2):
                for c in range(2):
                    src += [(acc + 8*c + 4*t, acc + 8*c + 4*t + 1), (acc + 8*c + 4*t + 2, acc + 8*c + 4*t + 3)]
            dst = [0, 1, 2, 8, 4, 5, 6, 9]
            for n in range(8):
                L.append((nb, "v", f"v_cvt_pk_bf16_f32 v{SQ+dst[n]}, v{src[n][0]}, v{src[n][1]}", sets, 0))
                if n in (2, 6, 7):
                    j = (2, 6, 7).index(n)
                    L.append((nb, "m", f"buffer_store_dwordx4 v[{SQ+4*j}:{SQ+4*j+3}], v{vL16}, {WS}, s{sreg} offen offset:{1024*j} sc1", sets, 0))
            return L
        return fn
    def c3_store(nb):
        assert not fill, len(fill)
        assert not any(f"v{SQ+11}," in str(it[2]) for it in fill2)
        for it in tag_store(BACC[3], sC3a)(nb) + tag_store(BACC[3] + 16, sC3b)(nb): fill.append(it)
    def sib_store(nb):
        assert not fill, len(fill)
        for it in tag_store(BACC[4], sSibS)(nb): fill.append(it)
    bpost[("B", 0, 20, 1)] = pstore(0, [0])
    for p in (1, 2): bpost[("B", p, 20, 3)] = pstore(p, [0, 1])
    bpost[("B", 3, 20, 3)] = c3_store if c3tag else pstore(3, [0, 1])
    bpost[("B", 4, 20, 1)] = sib_store
    vP0, vP1 = 80, 81
    def h_wait(i): a.wait(vm=toks["hld"])
    ihooks[("B", 1, 14, 0)] = h_wait
    def o_poll(i):
        a.i(f"v_accvgpr_read_b32 v{vP0}, a{st('hfp')}")
        toks["op"] = a.vm(f"buffer_load_dword v{vP1}, v{vP0}, {WS}, 0 offen offset:4 sc1")
    ihooks[("B",) + op[0] + (0,)] = o_poll
    def o_check(i):
        assert not any("v_cndmask" in str(it[2]) for it in fill2)
        poll_check("op", vP0, vP1, "0", 4)
        a.i(f"s_add_u32 s{sT0}, s{sHld}, {18*1024}")
        for t in range(2):
            a.vm(f"buffer_load_dwordx4 a[{HP+72+4*t}:{HP+75+4*t}], v{vL16}, {WS}, s{sT0} offen offset:{1024*t} sc1")
        for t in range(2):
            toks["old"] = a.vm(f"buffer_load_dwordx2 a[{HB+4*t+2}:{HB+4*t+3}], v{vL16}, {WS}, s{sT0} offen offset:{2048+8*t} sc1")
    ihooks[("B",) + op[1] + (0,)] = o_check
    ihooks[("B", 1, 19, 0)] = lambda i: a.wait(vm=toks["old"])
    sOwn, sSibS = sQst, sQld
    sC3a, sC3b = 60, 61; sTL = [62, 63, sQcol]
    sPFo = sKV[0]; sXo = [sKV[1], sKV[2]]; sMf, sMo, sMl = 45, sE, sM4x
    def polladdr(minx):
        a.i(f"v_bfe_u32 v{vP0}, v{vL16}, 4, 3"); a.i(f"v_max_u32 v{vP0}, {minx}, v{vP0}")
        a.i(f"v_xor_b32 v{vP0}, s{sI}, v{vP0}"); a.i(f"v_lshlrev_b32 v{vP0}, 2, v{vP0}")
    MA, MB, MX, MD, vM0, vM1 = 120, 124, 132, 136, 134, 135
    def m_prep(i):
        L = [f"v_bfe_u32 v{MD}, v{vL16}, 4, 4", f"v_lshrrev_b32 v{MD+1}, 8, v{vL16}",
             f"v_mul_u32_u24 v{vM0}, {8*HXS}, v{MD+1}", f"v_lshl_add_u32 v{vM0}, v{MD}, 4, v{vM0}",
             f"s_lshl_b32 s{sMl}, s{sI}, 8", f"s_add_u32 s{sMl}, s{sMl}, s{sPbase}", f"s_add_u32 s{sMl}, s{sMl}, {8*2048}",
             f"v_mul_u32_u24 v{vM1}, 1152, v{MD}", f"v_lshl_add_u32 v{vM1}, v{MD+1}, 5, v{vM1}",
             f"v_lshrrev_b32 v{MD+2}, 1, v{MD+1}", f"v_lshl_add_u32 v{vM1}, v{MD+2}, 29, v{vM1}",
             f"s_lshr_b32 s{sT2}, s{sI}, 2", f"s_mul_i32 s{sMo}, s{sT2}, {16*1152}", f"s_and_b32 s{sT2}, s{sI}, 3", f"s_lshl_b32 s{sT2}, s{sT2}, 3",
             f"s_add_u32 s{sMo}, s{sMo}, s{sT2}", f"s_add_u32 s{sMo}, s{sMo}, s{sCol[0]}", f"s_add_u32 s{sMo}, s{sMo}, s{sXrow}",
             f"s_add_u32 s{sMf}, s{sPF}, 1024",
             f"v_and_b32 v{MD+2}, 1, v{MD}", f"v_lshlrev_b32 v{MD+2}, 4, v{MD+2}", f"v_mov_b32 v{MD+3}, 0x3f80",
             f"v_lshlrev_b32 v{MD+3}, v{MD+2}, v{MD+3}", f"v_lshrrev_b32 v{MD+2}, 1, v{MD}"]
        for t in L: G(i, "v", t)
        for r in range(4):
            G(i, "v", f"v_cmp_eq_u32 vcc, {r}, v{MD+2}"); G(i, "v", f"v_cndmask_b32 v{MA+r}, 0, v{MD+3}, vcc")
        G(i, "v", f"v_accvgpr_read_b32 v{MX}, a{XR+8}"); G(i, "v", f"v_accvgpr_read_b32 v{MX+1}, a{XR+9}")
    ihooks[("B", 1, 1, 0)] = m_prep
    def m_poll(i):
        assert not fill2, len(fill2)
        for t in (f"v_bfe_u32 v{vP0}, v{vL16}, 4, 3", f"v_bfe_u32 v{vP1}, v{vL16}, 7, 1", f"v_mul_u32_u24 v{vP0+2}, 6, v{vP1}",
                  f"v_or_b32 v{vP0}, v{vP0}, v{vP0+2}", f"v_xor_b32 v{vP0}, s{sI}, v{vP0}", f"v_lshlrev_b32 v{vP0}, 2, v{vP0}",
                  f"s_sub_u32 s{sT2}, s{sMf}, s{sPFo}", f"v_xor_b32 v{vP1}, 1, v{vP1}", f"v_mad_u32_u24 v{vP0}, v{vP1}, s{sT2}, v{vP0}"):
            G(i, "v", t)
        Gm(i, "mp", f"buffer_load_dword v{vP1}, v{vP0}, {WS}, s{sPFo} offen sc1")
    ihooks[("B",) + mp[0] + (0,)] = m_poll
    def m_check(i):
        poll_check("mp", vP0, vP1, f"s{sPFo}", 0)
        a.vm(f"buffer_load_dwordx4 v[{MB}:{MB+3}], v{vM0}, {WS}, s{sMl} offen sc1")
        a.i(f"s_add_u32 s{sMl}, s{sMl}, {32*HXS}")
        toks["ml"] = a.vm(f"buffer_load_dwordx4 v[{MB+4}:{MB+7}], v{vM0}, {WS}, s{sMl} offen sc1")
        for t in (f"v_lshlrev_b32 v{MD}, 16, v{MX}", f"v_and_b32 v{MD+1}, 0xffff0000, v{MX}", f"v_lshlrev_b32 v{MD+2}, 16, v{MX+1}", f"v_and_b32 v{MD+3}, 0xffff0000, v{MX+1}"):
            G(i, "v", t)
        for x in (6, 7): G(i, "f", (lambda x=x: pload(x, sOwn, PL + 8*x, "pl")), 6)
    ihooks[("B",) + mp[1] + (0,)] = m_check
    def m_fin(i):
        assert not any(f"v{MD+3}," in str(it[2]) for it in fill2)
        a.wait(vm=toks["ml"])
        for j in range(2): a.i(f"{MF} v[{MD}:{MD+3}], v[{MA}:{MA+3}], v[{MB+4*j}:{MB+4*j+3}], v[{MD}:{MD+3}]")
        G(i + 3, "v", f"v_cvt_pk_bf16_f32 v{MD}, v{MD}, v{MD+1}"); G(i + 3, "v", f"v_cvt_pk_bf16_f32 v{MD+1}, v{MD+2}, v{MD+3}")
        G(i + 3, "m", f"buffer_store_dwordx2 v[{MD}:{MD+1}], v{vM1}, s[{SOUT}:{SOUT+3}], s{sMo} offen{outsc}")
    ihooks[("B",) + mp[2] + (0,)] = m_fin
    def e_poll(i):
        for t in (f"v_bfe_u32 v{vP0}, v{vL16}, 4, 1", f"v_or_b32 v{vP0}, 4, v{vP0}", f"v_xor_b32 v{vP0}, s{sI}, v{vP0}", f"v_lshlrev_b32 v{vP0}, 2, v{vP0}"):
            a.i(t)
        toks["ep"] = a.vm(f"buffer_load_dword v{vP1}, v{vP0}, {WS}, s{sPFo} offen sc1")
    def prep_own(i):
        L = [f"v_accvgpr_read_b32 v{vT0}, a{st('ov')}",
             f"s_lshl_b32 s{sOwn}, s{sI}, 11", f"s_add_u32 s{sOwn}, s{sOwn}, s{sPbase}",
             f"s_and_b32 s{sT2}, s{sS}, 1", f"s_mul_i32 s{sT2}, s{sT2}, 640", f"s_lshl_b32 s{sT3}, s{sI}, 6",
             f"s_add_u32 s{sT2}, s{sT2}, s{sT3}", f"s_add_u32 s{sXo[0]}, s{sT2}, s{sXrow}", f"s_add_u32 s{sXo[1]}, s{sXo[0]}, {16*1152}",
             f"s_lshr_b32 s{sPFo}, s{sI}, 1", f"s_lshl_b32 s{sT2}, s{sPFo}, 12", f"s_lshl_b32 s{sPFo}, s{sPFo}, 8", f"s_add_u32 s{sPFo}, s{sPFo}, s{sPF}",
             f"s_add_u32 s{sSibS}, s{sHld}, s{sT2}", f"s_xor_b32 s{sT3}, s{sT2}, 4096", f"s_add_u32 s{sC3a}, s{sHld}, s{sT3}",
             f"s_add_u32 s{sC3b}, s{sHld}, {18*1024}", f"s_add_u32 s{sT2}, s{sT2}, s{sPbase}"]
        for n, x in enumerate((3, 2, 1)):
            L += [f"s_xor_b32 s{sT3}, s{sI}, {x}", f"s_mul_i32 s{sT3}, s{sT3}, {8*HXS}"]
            if x == 2: L += [f"s_add_u32 s{sT3}, s{sT3}, s{sPbase}", f"s_add_u32 s{sTL[n]}, s{sT3}, {18*1024}"]
            else: L += [f"s_add_u32 s{sTL[n]}, s{sT3}, s{sT2}"]
        L += [f"v_mov_b32 v{SQ+r}, s{sTag}" for r in (3, 7, 10, 11)]
        for t in L: G(i, "v", t)
    ihooks[("B", 1, 2, 0)] = prep_own
    def pload(x, base, dst, name):
        a.i(f"s_xor_b32 s{sT0}, s{sI}, {x}"); a.i(f"s_mul_i32 s{sT0}, s{sT0}, {8*HXS}"); a.i(f"s_add_u32 s{sT0}, s{sT0}, s{base}")
        for t in range(2):
            toks[name] = a.vm(f"buffer_load_dwordx4 v[{dst+4*t}:{dst+4*t+3}], v{vL16}, {WS}, s{sT0} offen offset:{1024*t} sc1")
    def e_check(i):
        poll_check("ep", vP0, vP1, f"s{sPFo}", 0)
        for x in (4, 5): G(i, "f", (lambda x=x: pload(x, sOwn, PL + 8*x, "pl")), 4)
    ihooks[("B", 4) + ep[0]] = e_poll
    ihooks[("B", 4) + ep[1]] = e_check
    SI = [208, 220, 0]
    def tload(n, j): return f"buffer_load_dwordx4 v[{SI[n]+4*j}:{SI[n]+4*j+3}], v{vL16}, {WS}, s{sTL[n]} offen offset:{1024*j} sc1"
    def c3_load(i):
        for n in range(2):
            for j in range(3): Gm(i, "c3l", tload(n, j), 2)
    def sib_load(i):
        for j in range(3): G(i, "m", tload(2, j), 2)
    def e3_poll(i):
        for t in (f"v_bfe_u32 v{vP0}, v{vL16}, 4, 1", f"v_or_b32 v{vP0}, 2, v{vP0}", f"v_xor_b32 v{vP0}, s{sI}, v{vP0}", f"v_lshlrev_b32 v{vP0}, 2, v{vP0}"):
            a.i(t)
        toks["e3"] = a.vm(f"buffer_load_dword v{vP1}, v{vP0}, {WS}, s{sPFo} offen sc1")
    def e3_check(i):
        poll_check("e3", vP0, vP1, f"s{sPFo}", 0)
        for x in (2, 3): pload(x, sOwn, PL + 8*x, "c3l")
    if c3tag: ihooks[("B", 4) + tl[0]] = c3_load
    else:
        ihooks[("B", 4, e3[0], 2)] = e3_poll
        if e3[1] is not None: ihooks[("B", 4, e3[1], 2)] = e3_check
    if tl[1] is not None: ihooks[("B", 4, tl[1], 2)] = sib_load
    def dma_after_B(k):
        if k == 36: return [40, 41]
        if k == 37: return []
        return [k + 4] if k + 4 < KEND else []
    stream([(k,) + f for k in range(KB0, KEND) for f in stages[k]["fr"]] + last_fr[1], dma_after_B, tailnop=False)
    assert not pubs
    astamp("P:bend"); astamp("B:end")
    def accum(acc, src, f="v"):
        for c in range(2):
            for t in range(2):
                d = acc + 8*c + 4*t; s0 = SEL + (0 if c else 2)
                a.i(f"{MF} v[{d}:{d+3}], a[{s0}:{s0+3}], {f}[{src+4*t}:{src+4*t+3}], v[{d}:{d+3}]")
    OWN = BACC[4] + 16
    if not c3tag and e3[1] is None: e3_check(0)
    if tl[1] is None:
        for j in range(3): a.vm(tload(2, j))
    tr.stage = 100; tr("end")
    a.wait(vm=toks["pl"])
    tr("pl")
    accum(OWN, XR, "a")
    for x in range(4, 8): accum(OWN, PL + 8*x)
    CK = 12
    tr("acc")
    a.wait(vm=toks["c3l"])
    tr("c3")
    if not c3tag:
        for x in (2, 3): accum(OWN, PL + 8*x)
    for n in (range(3) if c3tag else [2]):
        if n == 2: tr("c3a"); a.i("s_waitcnt vmcnt(0)"); tr("sib")
        a.label(f"L_tchk{n}")
        a.i(f"v_xor_b32 v{CK}, s{sTag}, v{SI[n]+3}"); a.i(f"v_xor_b32 v{CK+1}, s{sTag}, v{SI[n]+7}"); a.i(f"v_xor_b32 v{CK+2}, s{sTag}, v{SI[n]+11}")
        a.i(f"v_or3_b32 v{CK}, v{CK}, v{CK+1}, v{CK+2}")
        a.i(f"v_cmp_ne_u32 vcc, 0, v{CK}")
        a.i(f"v_mov_b32 v{SI[n]+3}, v{SI[n]+8}"); a.i(f"v_mov_b32 v{SI[n]+7}, v{SI[n]+9}")
        a.i("s_cmp_lg_u64 vcc, 0")
        a.i(f"s_cbranch_scc1 L_tretry{n}")
        a.label(f"L_tok{n}")
        accum(OWN, SI[n])
    a.i("s_nop 4")
    for c in range(2):
        for t in range(2):
            d = OWN + 8*c + 4*t
            a.i(f"v_cvt_pk_bf16_f32 v{d}, v{d}, v{d+1}"); a.i(f"v_cvt_pk_bf16_f32 v{d+1}, v{d+2}, v{d+3}")
            a.vm(f"buffer_store_dwordx2 v[{d}:{d+1}], v{vT0}, s[{SOUT}:{SOUT+3}], s{sXo[t]} offen offset:{32*c}{outsc}")
    tr("st")
    if trace: a.i("s_waitcnt vmcnt(0)"); tr("fin")
    astamp("P:done")
    if trace:
        a.i("s_waitcnt lgkmcnt(0)")
        for n0, p0 in trp: a.i(f"v_writelane_b32 v{vLane}, s{p0}, {n0}")
        a.i(f"s_lshl_b32 s{sT0}, s2, 2"); a.i(f"s_add_u32 s{sT0}, s{sT0}, s{sW}"); a.i(f"s_lshl_b32 s{sT0}, s{sT0}, 8")
        a.i(f"s_add_u32 s{sT0}, s{sT0}, {STAMP_OFF}")
        a.i(f"v_lshrrev_b32 v1, 2, v{vL16}")
        a.i(f"buffer_store_dword v{vLane}, v1, {WS}, s{sT0} offen")
        print("trace:", len(trl), " ".join(trl), file=sys.stderr)
    if stamps:
        a.i(f"s_lshl_b32 s{sT0}, s2, 2"); a.i(f"s_add_u32 s{sT0}, s{sT0}, s{sW}"); a.i(f"s_lshl_b32 s{sT0}, s{sT0}, 6")
        a.i(f"s_add_u32 s{sT0}, s{sT0}, {STAMP_OFF}")
        a.i(f"v_mov_b32 v1, 0")
        for n in range(len(stl)):
            a.i(f"buffer_store_dword a{244+n}, v1, {WS}, s{sT0} offen offset:{4*n}")
        a.i("s_waitcnt vmcnt(0)")
        a.i("s_memrealtime s[80:81]"); a.i("s_waitcnt lgkmcnt(0)"); a.i("v_accvgpr_write_b32 a255, s80")
        a.i(f"buffer_store_dword a254, v1, {WS}, s{sT0} offen offset:56")
        a.i(f"buffer_store_dword a255, v1, {WS}, s{sT0} offen offset:60")
        print("stamps:", stl, file=sys.stderr)
        if probe is not None:
            a.i(f"v_accvgpr_read_b32 v3, a{254 if probe < 0 else 244 + probe}"); a.i("s_nop 1")
            a.i(f"v_readfirstlane_b32 s{sT1}, v3"); a.i("s_nop 3"); a.i(f"s_add_u32 s{sT1}, s{sT1}, 6000")
            a.label("L_probe")
            a.i("s_memrealtime s[80:81]"); a.i("s_waitcnt lgkmcnt(0)")
            a.i(f"s_sub_u32 s{sT2}, s80, s{sT1}"); a.i(f"s_cmp_lt_i32 s{sT2}, 0"); a.i("s_cbranch_scc1 L_probe")
        if dbgout:
            a.i(f"s_cmp_lg_u32 s{sW}, 1"); a.i("s_cbranch_scc1 L_end")
            a.i("s_cmp_lt_u32 s2, 248"); a.i("s_cbranch_scc1 L_end")
            a.i("v_accvgpr_read_b32 v3, a254"); a.i("v_accvgpr_read_b32 v4, a255")
            a.i("v_sub_u32 v4, v4, v3"); a.i("v_mul_u32_u24 v4, 100000, v4"); a.i("v_and_b32 v5, 0xffff, v3"); a.i("v_add_u32 v4, v4, v5")
            a.i(f"s_and_b32 s{sT1}, s2, 7"); a.i(f"s_lshl_b32 s{sT1}, s{sT1}, 2")
            a.i(f"buffer_store_dword v4, v1, s[{SDBG}:{SDBG+3}], s{sT1} offen offset:32")
            a.i("s_cmp_lg_u32 s2, 253"); a.i("s_cbranch_scc1 L_end")
            for n in range(1, 8):
                a.i(f"v_accvgpr_read_b32 v2, a{244+n}"); a.i("v_sub_u32 v2, v2, v3")
                a.i(f"buffer_store_dword v2, v1, s[{SDBG}:{SDBG+3}], 0 offen offset:{4*n}")
    a.label("L_end")
    a.i("s_endpgm")
    for n in (range(3) if c3tag else [2]):
        a.label(f"L_tretry{n}")
        a.i(f"s_cmp_eq_u32 s{sBound}, 0"); a.i(f"s_cbranch_scc1 L_tok{n}")
        a.i(f"s_sub_u32 s{sBound}, s{sBound}, 1"); a.i("s_sleep 2")
        for j in range(3): a.i(tload(n, j))
        a.i("s_waitcnt vmcnt(0)")
        a.i(f"s_branch L_tchk{n}")
    a.lines += slow_lines
    a.label("L_tagspin")
    a.i(f"s_cmp_eq_u32 s{sBound}, 0"); a.i("s_cbranch_scc1 L_tagok")
    a.i(f"s_sub_u32 s{sBound}, s{sBound}, 1"); a.i("s_sleep 1")
    a.i(f"buffer_load_dword v207, off, s[{SDBG}:{SDBG+3}], 0 sc1"); a.i("s_waitcnt vmcnt(0)")
    a.i("s_branch L_tagchk")
    for (name, va, vf, soff, offs) in spin_blocks:
        a.label(f"L_spin_{name}")
        a.i(f"s_cmp_eq_u32 s{sBound}, 0")
        a.i(f"s_cbranch_scc1 L_back_{name}")
        a.i(f"s_sub_u32 s{sBound}, s{sBound}, 1")
        a.i("s_sleep 1")
        a.i(f"buffer_load_dword v{vf}, v{va}, {WS}, {soff} offen offset:{offs} sc1")
        a.i("s_waitcnt vmcnt(0)")
        a.i(f"v_cmp_ne_u32 vcc, s{sTag}, v{vf}")
        a.i("s_nop 0")
        a.i("s_cmp_lg_u64 vcc, 0")
        a.i(f"s_cbranch_scc1 L_spin_{name}")
        a.i(f"s_branch L_back_{name}")
    assert not ihooks, ihooks.keys()
    body = [l.replace("CODE_LAST", "0x1000") for l in a.lines]
    if iwarm:
        tmp = [l for l in body] + [f"L_w{w}:" for w in range(4*NHOP)] + ["    s_endpgm"]
        tmp, _, _, _ = align8(tmp, nops=False)
        tmp = tmp[:-(4*NHOP+1)]
        sz = sizes_of(tmp + [f"L_w{w}:" for w in range(4*NHOP)])
        out = []; off = 0; n = 0; j = 0; nextp = 8192; done = False
        for l in tmp:
            if l.startswith("L_end:"): done = True
            if is_instr(l):
                prev = out[-1].strip() if out else ""
                if off >= nextp and not done and not prev.startswith("v_mfma") and not prev.startswith("s_cmp"):
                    out.append(f"L_w{n}:"); out.append(f"    s_cbranch_execz L_wret{n//4}"); n += 1; off += 4; nextp += 4096
                off += sz[j]; j += 1
            out.append(l)
        assert n <= 4*NHOP
        for nn in range(n, 4*NHOP):
            out.insert(out.index(f"L_wret{nn//4}:"), f"L_w{nn}:")
        body = out; size = off
        print("warm stubs", n, file=sys.stderr)
    else:
        body, nf, nn, size = align8(body, nops=False)
    body = [l.replace("v_min_u32 v%d, 0x1000," % vT0, "v_min_u32 v%d, %d," % (vT0, (size - 64) & ~15)) for l in body]
    print(f"main: code {size} bytes, stash {st.next}", file=sys.stderr)
    return body

from gen1 import kd
def whole(**kw):
    m = gen(**kw)
    hdr = [l for l in open("parallel_sum__sliding_block__glu_gated_bilinear__prompt.s.ref").read().split("\n")[:11]]
    s = "\n".join(hdr) + "\n"
    s += f"; @launch grid=(256,1,1) block=(256,1,1) lds={LDS_BYTES}\n"
    s += '.amdgcn_target "amdgcn-amd-amdhsa--gfx950"\n.text\n'
    s += f".globl {KN}\n.p2align 12\n.type {KN},@function\n{KN}:\n" + "\n".join(m) + "\n"
    s += '.section .rodata,"a"\n.p2align 6\n' + kd(KN, 512, 256)
    return s

if __name__ == "__main__":
    kw = {}
    for x in sys.argv[2:]:
        k, v = x.split("="); kw[k] = eval(v)
    open(sys.argv[1], "w").write(whole(**kw))
```

```python
import sys, struct, math, re
from asmlib import *
from collections import deque

KN = "parallel_sum__sliding_block__glu_gated_bilinear__prompt_kernel"
QS = 6176; SLOT = 4 * QS; NS = 6
LDS_BYTES = 163840
TAG_LDS = NS * SLOT + 64
QKV_BASE = 0x2400000
QF_BASE = 0x2C00000; HF_BASE = 0x2C10000; PF_BASE = 0x2C40000
EPOCH_OFF = 0x2D00000
HX_BASE = 0x3000000; HXS = 21504
STAMP_OFF = 0x6000000
WS_BYTES = 268435456
OOB = 0x20000000
GS = 3136; TBASE = 163840 - 20 * GS
TAGC = 0x9E3779B8
def f2u(f): return "0x%08x" % struct.unpack("<I", struct.pack("<f", f))[0]
QC = 18 ** -0.5 * math.log2(math.e)
QG = QC ** 0.5
MF = "v_mfma_f32_16x16x32_bf16"

def gen(D=7, wev=3, stamps=None, rt=False, gap=6, lg_rpx=4, krot=True, normil=True, l2pf=True, pfs=6, pd3=24, ep=(285, 312), mp=(234, 266, 318), ll=(325, 345, 360, 372), trace=None, nraw=0, iwarm=True, pd=30, lead=70, hold=90, pfk=16, lnpre=3, od=40, warmat=1, gupf="U", hold0=40, gu_at=12, dbgout=False, probe=None, probewg=None, x0=5, w0at=13, hopat=(2, 4, 6, 8), xfast=0, odef=6, op=((1, 13), (1, 18)), c3tag=False, e3=(10, None), xrat='T', kvat=(25, 27), fastT=True, forceslow=False, outsc='', tg=1, th=(3, 8, 12), oinl=60, psp=11):
    a = Asm()
    XS = lnpre * SLOT; NXU = (LDS_BYTES - XS) // 8192
    SX, SG, SU, SD, SWS, SQKV, SO, SDBG, SOUT = 4, 8, 12, 16, 20, 24, 28, 32, 36
    sPF = 3
    sCol = [40, 41, 42, 43, 44]
    sSc = [45, 46, 47]; sKV = [48, 49, 50]
    sTag, sE, sBound, sQst, sQld = 51, 52, 53, 54, 55
    sW, sS, sR = 56, 57, 58
    sPair = [59, 60, 61, 62]; sSing = 63
    sMq, sI = 64, 65
    sOff, sT0, sT1, sT2, sT3 = 66, 67, 68, 69, 70
    sXrow, sPst, sM4 = 71, 72, 73
    sOff2 = 73
    sM4x = 59
    sPC = 74; sHst, sHld = 74, 75
    sC0, sC1, sQcol, sPbase = 76, 77, 78, 79
    sStamp = 80; sPo = [82, 83]
    KA = 84
    sKo = [84, 85, 86, 87, 88]; sKp = [89, 90, 91, 92, 93]; sAo, sAp = 94, 95
    sKr9 = [96, 97, 98]; sKr3 = [99, 100, 101]
    sKo2 = [24, 25, 26, 27]; sKp2 = [99, 100, 101, 77]
    XN = 0; ACC = [144, 176, 208]
    vRd = [240, 241, 242]; vA = [243, 244, 245]; vS = [246, 247, 248]
    q0, q1, q2 = 249, 250, 251
    vT0, vT1, vL16, vLane = 252, 253, 254, 255
    H, HP, HB, FR = 0, 80, 160, 168
    KVS, aQ = 128, 136
    NB = 8; assert D <= 7
    stash = {}
    def st(name, n=1):
        if name not in stash:
            stash[name] = st.next; st.next += n; assert st.next <= 228
        return stash[name]
    st.next = 200; stash['pt'] = 236; stash['stq'] = 228; stash['stq2'] = 229
    XR = 228
    SEL = 238
    stl = []
    def astamp(name):
        if stamps is None or name.split(":")[0] not in stamps: return
        n = len(stl); assert n < 10
        a.i("s_waitcnt lgkmcnt(0)"); a.lg_done = a.lg_issued
        a.i(f"{'s_memrealtime' if rt else 's_memtime'} s[{sStamp}:{sStamp+1}]")
        a.i("s_waitcnt lgkmcnt(0)")
        a.i(f"v_accvgpr_write_b32 a{244+n}, s{sStamp}")
        stl.append(name)
    trl = []; trp = []
    TRS = [44, 80, 0] if (trace and trace[0] < 0) else [46, 80, 0]
    def tr(name):
        if trace is None or not (trace[0] <= tr.stage < trace[1]) or len(trl) >= 64: return
        if len(trp) >= 2:
            n0, p0 = trp.pop(0); a.i(f"v_writelane_b32 v{vLane}, s{p0}, {n0}")
        p = TRS[len(trl) % 3]
        a.i(f"s_memtime s[{p}:{p+1}]")
        trp.append((len(trl), p)); trl.append(name)
    tr.stage = 0
    def srd(d, p, nbytes, back=0):
        if back:
            a.i(f"s_sub_u32 s{d}, s{p}, {back}"); a.i(f"s_subb_u32 s{d+1}, s{p+1}, 0")
        else:
            a.i(f"s_mov_b32 s{d}, s{p}"); a.i(f"s_mov_b32 s{d+1}, s{p+1}")
        a.i(f"s_mov_b32 s{d+2}, {nbytes + back}"); a.i(f"s_mov_b32 s{d+3}, 0x00020000")
    WS = f"s[{SWS}:{SWS+3}]"

    a.i("s_cmp_ge_u32 s2, 256")
    a.i("s_cbranch_scc1 L_end")
    if stamps: a.i("s_memrealtime s[36:37]")
    if trace and trace[0] < 0: a.i("s_memtime s[36:37]")
    a.i(f"s_load_dwordx16 s[{KA}:{KA+15}], s[0:1], 0")
    a.i(f"s_load_dwordx4 s[80:83], s[0:1], 64")
    a.i(f"s_getpc_b64 s[{sPC}:{sPC+1}]")
    a.i(f"s_lshr_b32 s{sT0}, s2, 3")
    a.i(f"s_lshl_b32 s{sT0}, s{sT0}, 12")
    a.i(f"v_lshlrev_b32 v{vT0}, 4, v0")
    a.i(f"v_add_u32 v{vT0}, s{sT0}, v{vT0}")
    a.i(f"v_min_u32 v{vT0}, CODE_LAST, v{vT0}")
    a.vm(f"global_load_dwordx4 a[{HP+76}:{HP+79}], v{vT0}, s[{sPC}:{sPC+1}]")
    a.i(f"v_lshrrev_b32 v{vT1}, 6, v0")
    a.i(f"v_and_b32 v{vLane}, 63, v0")
    a.i(f"v_readfirstlane_b32 s{sW}, v{vT1}")
    lg = lg_rpx; nsl = 32 >> lg
    a.i(f"s_and_b32 s{sR}, s2, {(16 >> lg) - 1}"); a.i(f"s_lshl_b32 s{sR}, s{sR}, {lg}")
    a.i(f"s_lshr_b32 s{sT0}, s2, {8 - lg}"); a.i(f"s_add_u32 s{sR}, s{sR}, s{sT0}")
    a.i(f"s_bfe_u32 s{sS}, s2, {hex(((lg - 1) << 16) | (4 - lg))}"); a.i(f"s_lshl_b32 s{sS}, s{sS}, {5 - lg}")
    a.i(f"s_bfe_u32 s{sT0}, s2, {hex(((5 - lg) << 16) | 3)}"); a.i(f"s_add_u32 s{sS}, s{sS}, s{sT0}")
    sRot = sT3
    if krot:
        a.i(f"s_lshr_b32 s{sT0}, s{sR}, 2"); a.i(f"s_add_u32 s{sT0}, s{sT0}, s{sS}")
        a.i(f"s_mul_hi_u32 s{sT1}, s{sT0}, 0x55555556"); a.i(f"s_mul_i32 s{sT1}, s{sT1}, 3"); a.i(f"s_sub_u32 s{sRot}, s{sT0}, s{sT1}")
    else: a.i(f"s_mov_b32 s{sRot}, 0")
    sRk = [45, 46, 47]
    for stg in range(3):
        a.i(f"s_add_u32 s{sRk[stg]}, s{sRot}, {stg}")
        a.i(f"s_cmp_ge_u32 s{sRk[stg]}, 3"); a.i(f"s_cselect_b32 s{sT0}, 3, 0"); a.i(f"s_sub_u32 s{sRk[stg]}, s{sRk[stg]}, s{sT0}")
    QACC = 144; D2 = 200
    vX = [228, 229, 230, 231]; vXr = [232, 233]
    S1 = [234, 235]; S2 = [236, 237]; vCs = 238
    t0, t1, t2, t3 = 144, 145, 146, 147
    ONES = 128
    a.i(f"v_lshrrev_b32 v{t0}, 3, v{vLane}")
    a.i(f"v_and_b32 v{t1}, 7, v{vLane}")
    for j in range(2):
        a.i(f"v_add_u32 v{t2}, {8*j}, v{t0}")
        a.i(f"v_bfe_u32 v{t3}, v{t2}, 1, 3")
        a.i(f"v_xor_b32 v{t3}, v{t3}, v{t1}")
        a.i(f"v_mul_u32_u24 v{t2}, 1152, v{t2}")
        a.i(f"v_lshl_add_u32 v{vX[j]}, v{t3}, 4, v{t2}")
        if j: a.i(f"v_subrev_u32 v{vX[j]}, {1024*j}, v{vX[j]}")
    a.i(f"s_lshl_b32 s{sXrow}, s{sR}, 2")
    a.i(f"s_add_u32 s{sXrow}, s{sXrow}, s{sW}")
    a.i(f"s_mul_i32 s{sXrow}, s{sXrow}, {32*1152}")
    sXk = [40, 41, 42]
    for stg in range(3):
        a.i(f"s_mul_i32 s{sXk[stg]}, s{sRk[stg]}, 384"); a.i(f"s_add_u32 s{sXk[stg]}, s{sXk[stg]}, s{sXrow}")
    a.i(f"s_mul_i32 s{sM4}, s{sW}, {2048*NXU}")
    a.i("s_waitcnt lgkmcnt(0)")
    if stamps: a.i("v_accvgpr_write_b32 a254, s36")
    if trace and trace[0] < 0: a.i("s_mov_b32 s53, s36"); a.i("s_memtime s[54:55]")
    srd(SX, KA+0, 2048*1152)
    xtok = {}
    def xdma_items(n):
        t, ch = n // 9, n % 9
        o = [("s", f"s_add_u32 m0, s{sM4}, {XS + 2048*(n % NXU)}"), ("s", f"s_add_u32 s{sOff}, s{sXk[ch//3]}, {128*(ch%3) + 16*1152*t}")]
        return o + [("m", f"buffer_load_dwordx4 v{vX[j]}, s[{SX}:{SX+3}], s{sOff} offen offset:{1024*j} lds") for j in range(2)]
    dma_tok = {}
    def emit_dma_item(k, it):
        if it[0] == "m": dma_tok[k] = a.vm(it[1])
        elif it[0] == "d": a.ds(it[1])
        elif it[0] == "h": pass
        else: a.i(it[1])
    def xdma(ch):
        for it in xdma_items(ch): emit_dma_item(("x", ch), it)
    for n in range(x0): xdma(n)
    srd(SQKV, KA+2, 576*3456); srd(SO, KA+4, 576*1152, back=2048)
    srd(SG, KA+8, 576*9216); srd(SU, KA+10, 576*9216); srd(SD, KA+12, 4608*1152, back=2048)
    srd(SOUT, KA+14, 2048*1152)
    srd(SDBG, 80, 256); srd(SWS, 82, WS_BYTES)
    a.i(f"s_or_b32 s{sT0}, s2, s{sW}")
    a.i("s_cbranch_scc1 L_noep")
    a.i(f"s_add_u32 s82, s82, {EPOCH_OFF}"); a.i("s_addc_u32 s83, s83, 0")
    a.i(f"s_load_dword s{sE}, s[82:83], 0")
    a.label("L_noep")
    astamp("P:start")
    vn, vq, rho, tt, pc = 148, 149, 150, 151, 152
    a.i(f"v_and_b32 v{vn}, 15, v{vLane}"); a.i(f"v_lshrrev_b32 v{vq}, 4, v{vLane}")
    a.i(f"v_bfe_u32 v{rho}, v{vLane}, 2, 3"); a.i(f"v_lshrrev_b32 v{tt}, 5, v{vLane}")
    a.i(f"v_and_b32 v{pc}, 3, v{vLane}"); a.i(f"v_lshlrev_b32 v{pc}, 4, v{pc}")
    a.i(f"v_lshlrev_b32 v{vL16}, 4, v{vLane}")
    a.i(f"v_lshrrev_b32 v{t1}, 1, v{vn}"); a.i(f"v_xor_b32 v{t1}, v{t1}, v{vq}")
    a.i(f"v_lshlrev_b32 v{t0}, 7, v{vn}")
    a.i(f"s_add_u32 s{sT0}, s{sM4}, {XS}"); a.i(f"v_add_u32 v{t0}, s{sT0}, v{t0}")
    a.i(f"v_lshl_add_u32 v{vXr[0]}, v{t1}, 4, v{t0}")
    a.i(f"v_xor_b32 v{t1}, 4, v{t1}"); a.i(f"v_lshl_add_u32 v{vXr[1]}, v{t1}, 4, v{t0}")
    for stg in range(3):
        a.i(f"s_mul_i32 s{sKr9[stg]}, s{sRk[stg]}, {192*9216}"); a.i(f"s_mul_i32 s{sKr3[stg]}, s{sRk[stg]}, {192*3456}")
    a.i(f"s_mul_i32 s{sQcol}, s{sS}, 216")
    for stg in range(3): a.i(f"s_add_u32 s{sKr3[stg]}, s{sKr3[stg]}, s{sQcol}")
    a.i(f"s_mul_i32 s{sMq}, s{sW}, {QS}")
    a.i(f"s_lshr_b32 s{sI}, s{sS}, 1")
    a.i(f"s_lshl_b32 s{sT0}, s{sW}, 3"); a.i(f"v_add_u32 v{t2}, s{sT0}, v{rho}")
    a.i(f"v_lshl_add_u32 v{t3}, v{tt}, 6, v{pc}")
    a.i(f"v_mul_u32_u24 v{vS[0]}, 3456, v{t2}"); a.i(f"v_add_u32 v{vS[0]}, v{vS[0]}, v{t3}")
    a.i(f"v_add_u32 v{vS[1]}, {32*3456-1024}, v{vS[0]}"); a.i(f"v_add_u32 v{vS[2]}, {64*3456-2048}, v{vS[0]}")
    a.i(f"v_mul_u32_u24 v{t0}, 9216, v{t2}"); a.i(f"v_add_u32 v{vA[0]}, v{t0}, v{t3}")
    a.i(f"v_add_u32 v{vA[1]}, {32*9216-1024}, v{vA[0]}"); a.i(f"v_add_u32 v{vA[2]}, {64*9216-2048}, v{vA[0]}")
    def su_cas():
        a.i(f"s_or_b32 s{sT0}, s2, s{sW}")
        a.i("s_cbranch_scc1 L_nocas")
        a.i("s_waitcnt lgkmcnt(0)")
        a.i(f"s_add_u32 s{sE}, s{sE}, {TAGC}"); a.i(f"s_or_b32 s{sE}, s{sE}, 1")
        a.i(f"v_mov_b32 v{vCs}, s{sE}"); a.i(f"v_mov_b32 v{vCs+1}, {EPOCH_OFF}")
        a.i(f"buffer_store_dword v{vCs}, off, s[{SDBG}:{SDBG+3}], 0 sc1")
        a.i(f"buffer_store_dword v{vCs}, v{vCs+1}, {WS}, 0 offen sc1")
        a.label("L_nocas")

    def su_early():
        a.i(f"v_bfe_u32 v{t0}, v{vLane}, 2, 2"); a.i(f"v_lshlrev_b32 v{t1}, 6, v{t0}")
        a.i(f"v_and_b32 v{t0}, 3, v{vLane}"); a.i(f"v_lshl_add_u32 v{t1}, v{t0}, 3, v{t1}")
        a.i(f"v_mul_u32_u24 v{t0}, {QS}, v{vq}"); a.i(f"v_add_u32 v{vRd[0]}, v{t0}, v{t1}")
        a.i(f"v_add_u32 v{vRd[1]}, {2*SLOT}, v{vRd[0]}"); a.i(f"v_add_u32 v{vRd[2]}, {4*SLOT}, v{vRd[0]}")
        a.i(f"s_mul_i32 s{sT1}, s{sS}, 576"); a.i(f"s_and_b32 s{sT2}, s{sS}, 1")
        a.i(f"s_lshl_b32 s{sT3}, s{sT2}, 6"); a.i(f"s_add_u32 s{sT3}, s{sT3}, s{sT1}")
        for j in range(4):
            a.i(f"s_add_u32 s{sPair[j]}, s{sR}, {j}"); a.i(f"s_and_b32 s{sPair[j]}, s{sPair[j]}, 3")
            a.i(f"s_lshl_b32 s{sPair[j]}, s{sPair[j]}, 7"); a.i(f"s_add_u32 s{sPair[j]}, s{sPair[j]}, s{sT3}")
        a.i(f"s_xor_b32 s{sT2}, s{sT2}, 1"); a.i(f"s_lshl_b32 s{sT2}, s{sT2}, 9"); a.i(f"s_add_u32 s{sSing}, s{sT2}, s{sT1}")
        a.i(f"s_mov_b32 s{sBound}, 0x40000")
    U0, U1, U2, U3 = 45, 52, 78, 73
    MK = "s[40:41]"
    def d_q(tb):
        x0_, x1, x2, n, q = tb, tb+1, tb+2, tb+3, tb+4
        return [f"v_bfe_u32 v{n}, v{vL16}, 4, 4", f"v_lshrrev_b32 v{q}, 8, v{vL16}",
            f"s_lshl_b32 s{U0}, s{sW}, 8", f"v_lshlrev_b32 v{x0_}, 3, v{n}", f"v_add_u32 v{x0_}, s{U0}, v{x0_}",
            f"v_lshl_add_u32 v{x1}, v{q}, 10, v{x0_}", f"v_accvgpr_write_b32 a{st('stq')}, v{x1}",
            f"v_add_u32 v{x2}, 1, v{q}", f"v_lshrrev_b32 v{x2}, 2, v{x2}", f"v_lshl_add_u32 v{x1}, v{x2}, 29, v{x1}",
            f"v_accvgpr_write_b32 a{st('stq2')}, v{x1}",
            f"s_mul_i32 s{U0}, s{sR}, 432", f"s_mul_i32 s{U1}, s{sS}, 27", f"s_add_u32 s{U1}, s{U1}, s{U0}",
            f"s_lshl_b32 s{U1}, s{U1}, 10", f"s_add_u32 s{sQst}, s{U1}, {QKV_BASE}",
            f"v_lshl_add_u32 v{x1}, v{q}, 11, v{x0_}", f"v_accvgpr_write_b32 a{st('qA')}, v{x1}",
            f"v_lshl_add_u32 v{x1}, v{q}, 1, 5", f"v_cmp_gt_u32 {MK}, 2, v{q}", "?s_nop 1",
            f"v_cndmask_b32 v{x1}, 4, v{x1}, {MK}", f"v_lshl_add_u32 v{x1}, v{x1}, 10, v{x0_}", f"v_accvgpr_write_b32 a{st('qB')}, v{x1}",
            f"s_mul_i32 s{U1}, s{sS}, 9", f"s_add_u32 s{U1}, s{U1}, s{U0}", f"s_lshl_b32 s{U1}, s{U1}, 10", f"s_add_u32 s{sQld}, s{U1}, {QKV_BASE}",
            f"s_add_u32 s{U2}, s{sW}, 144", f"s_lshl_b32 s{U2}, s{U2}, 10", f"s_add_u32 s{sKV[2]}, s{U2}, s{sQld}",
            f"s_sub_u32 s{sKV[0]}, s{sKV[2]}, {2*432*1024}", f"s_cmp_ge_u32 s{sR}, 2", f"s_cselect_b32 s{sKV[0]}, s{sKV[0]}, {OOB}",
            f"s_sub_u32 s{sKV[1]}, s{sKV[2]}, {432*1024 + 1024}", f"s_cmp_ge_u32 s{sR}, 1", f"s_cselect_b32 s{sKV[1]}, s{sKV[1]}, {OOB}",
            f"s_sub_u32 s{sKV[2]}, s{sKV[2]}, 2048"]
    def d_h(tb):
        x2 = tb
        return [f"s_and_b32 s{U2}, s{sS}, 1", f"s_lshl_b32 s{U1}, s{sR}, 1", f"s_add_u32 s{U1}, s{U1}, s{U2}",
            f"s_mul_i32 s{sPF}, s{U1}, 20", f"s_add_u32 s{sPF}, s{sPF}, s{sW}", f"s_lshl_b32 s{sPF}, s{sPF}, 6", f"s_add_u32 s{sPF}, s{sPF}, {PF_BASE}",
            f"s_lshl_b32 s{U1}, s{sR}, 4", f"s_add_u32 s{U1}, s{U1}, s{sS}", f"s_lshl_b32 s{U3}, s{U1}, 2", f"s_add_u32 s{U3}, s{U3}, s{sW}",
            f"s_mul_i32 s{sHst}, s{U3}, {HXS}", f"s_add_u32 s{sHst}, s{sHst}, {HX_BASE}",
            f"s_lshl_b32 s{U1}, s{U3}, 6", f"s_add_u32 s{U1}, s{U1}, {HF_BASE}", f"v_accvgpr_write_b32 a{st('hfo')}, s{U1}",
            f"v_min_u32 v{x2}, 64, v{vL16}", f"v_lshlrev_b32 v{x2}, 4, v{x2}", f"v_add_u32 v{x2}, s{sPF}, v{x2}",
            f"v_writelane_b32 v{x2}, s{U1}, 7", f"v_accvgpr_write_b32 a{st('pt')}, v{x2}",
            f"s_xor_b32 s{U1}, s{U1}, 256", f"v_accvgpr_write_b32 a{st('hfp')}, s{U1}",
            f"s_xor_b32 s{U3}, s{U3}, 4", f"s_mul_i32 s{sHld}, s{U3}, {HXS}", f"s_add_u32 s{sHld}, s{sHld}, {HX_BASE}",
            f"s_and_b32 s{U0}, s{sI}, 1", f"s_xor_b32 s{U0}, s{U0}, 1",
            f"s_mul_i32 s{U3}, s{U2}, {640 << 5}", f"s_sub_u32 s{U1}, s{sHld}, s{U3}",
            f"s_lshl_b32 s{U3}, s{U0}, 11", f"s_add_u32 s{sPo[0]}, s{U1}, s{U3}", f"s_xor_b32 s{U3}, s{U3}, 0x800", f"s_add_u32 s{sPo[1]}, s{U1}, s{U3}",
            f"s_mul_i32 s{U3}, s{sI}, {8*HXS}", f"s_sub_u32 s{sPbase}, s{sHld}, s{U3}"]
    def d_flags(tb):
        m, d, x = tb, tb+1, tb+2
        return [f"v_bfe_u32 v{m}, v{vL16}, 6, 2", f"v_min_u32 v{m}, 2, v{m}", f"v_bfe_u32 v{d}, v{vL16}, 4, 2", f"v_min_u32 v{d}, 2, v{d}",
            f"v_min_u32 v{x}, 1, v{m}", f"v_mul_u32_u24 v{d}, v{d}, v{x}", f"v_sub_u32 v{d}, s{sR}, v{d}", f"v_max_i32 v{d}, 0, v{d}",
            f"v_lshl_add_u32 v{m}, v{m}, 4, s{sS}", f"v_mul_u32_u24 v{m}, 0x5556, v{m}", f"v_lshrrev_b32 v{m}, 16, v{m}",
            f"v_lshl_add_u32 v{m}, v{d}, 4, v{m}", f"v_lshlrev_b32 v{m}, 7, v{m}", f"v_add_u32 v{m}, {QF_BASE}, v{m}",
            f"v_accvgpr_write_b32 a{st('qf')}, v{m}"]
    def d_B(tb):
        x0_, x1, x2, x3, pc_, tt_ = tb, tb+1, tb+2, tb+3, tb+4, tb+5
        L = [f"v_and_b32 v{pc_}, 48, v{vL16}", f"v_lshrrev_b32 v{tt_}, 9, v{vL16}",
            f"v_mul_u32_u24 v{x1}, {32*9216 - 64}, v{tt_}", f"v_add_u32 v{x1}, v{x1}, v{vA[0]}"]
        for i in range(3):
            if i: L.append(f"v_add_u32 v{x1}, {64*9216-1024}, v{x1}")
            L.append(f"v_accvgpr_write_b32 a{st('sing',3)+i}, v{x1}")
        L += [f"s_and_b32 s{U0}, s{sI}, 1", f"s_xor_b32 s{U0}, s{U0}, 1",
            f"v_xor_b32 v{x3}, s{U0}, v{tt_}", f"v_lshlrev_b32 v{x3}, 6, v{x3}",
            f"v_bfe_u32 v{x0_}, v{vL16}, 6, 2", f"v_bfe_u32 v{x1}, v{vL16}, 8, 1",
            f"v_xor_b32 v{x2}, s{sS}, v{x1}", f"v_mul_u32_u24 v{x2}, 36, v{x2}", f"v_add3_u32 v{x2}, v{x2}, v{x0_}, 16",
            f"v_mul_u32_u24 v{x2}, 1152, v{x2}", f"v_add_u32 v{x2}, v{x2}, v{pc_}", f"v_accvgpr_write_b32 a{st('Obm')}, v{x2}",
            f"v_add_u32 v{x2}, v{x2}, v{x3}", f"v_accvgpr_write_b32 a{st('Ob')}, v{x2}",
            f"s_lshl_b32 s{U1}, s{sW}, 2", f"v_add_u32 v{x0_}, s{U1}, v{x0_}"]
        for name, hi in (("D", 16), ("Oa", 20)):
            L += [f"v_mad_u32_u24 v{x2}, v{x1}, {hi}, v{x0_}", f"v_mul_u32_u24 v{x2}, 1152, v{x2}", f"v_add_u32 v{x2}, v{x2}, v{pc_}",
                  f"v_accvgpr_write_b32 a{st(name+'m')}, v{x2}", f"v_add_u32 v{x2}, v{x2}, v{x3}", f"v_accvgpr_write_b32 a{st(name)}, v{x2}"]
        return L
    def d_rows(tb):
        L = [f"s_mul_i32 s{sKo[j]}, s{sPair[j]}, 576" for j in range(4)] + [f"s_mul_i32 s{sKo[4]}, s{sSing}, 576"]
        L += [f"s_and_b32 s{U0}, s{sS}, 1", f"s_lshl_b32 s{U0}, s{U0}, 1", f"s_sub_u32 s{U0}, 1, s{U0}",
              f"s_mul_i32 s{U1}, s{U0}, {320*1152}"]
        L += [f"s_add_u32 s{sKp[j]}, s{sKo[j]}, s{U1}" for j in range(4)]
        L += [f"s_mul_i32 s{U1}, s{U0}, {32*1152}", f"s_add_u32 s{sKp[4]}, s{sKo[4]}, s{U1}",
              f"s_mul_i32 s{sAo}, s{sS}, {36*1152}", f"s_mul_i32 s{U1}, s{U0}, {36*1152}", f"s_add_u32 s{sAp}, s{sAo}, s{U1}"]
        L += [f"s_add_u32 s{sKo2[j]}, s{sKo[j]}, {32*1152}" for j in range(4)] + [f"s_add_u32 s{sKp2[j]}, s{sKp[j]}, {32*1152}" for j in range(4)]
        return L
    def d_T1(tb):
        x0_, x1, x2, n, q = tb, tb+1, tb+2, tb+3, tb+4
        return [f"v_bfe_u32 v{n}, v{vL16}, 4, 4", f"v_lshrrev_b32 v{q}, 8, v{vL16}",
            f"s_lshl_b32 s{U0}, s{sW}, 8", f"s_add_u32 s{U0}, s{U0}, {TBASE}",
            f"v_lshlrev_b32 v{x0_}, 3, v{n}", f"v_add_u32 v{x0_}, s{U0}, v{x0_}",
            f"v_mul_u32_u24 v{x1}, {2*GS}, v{q}", f"v_add_u32 v{x1}, v{x1}, v{x0_}", f"v_accvgpr_write_b32 a{st('KA')}, v{x1}",
            f"v_lshl_add_u32 v{x1}, v{q}, 1, 6", f"v_cmp_gt_u32 {MK}, 2, v{q}", "?s_nop 1", f"v_cndmask_b32 v{x1}, 4, v{x1}, {MK}",
            f"v_mul_u32_u24 v{x1}, {GS}, v{x1}", f"v_add_u32 v{x1}, v{x1}, v{x0_}", f"v_accvgpr_write_b32 a{st('KB')}, v{x1}",
            f"v_lshrrev_b32 v{x0_}, 6, v{vL16}", f"v_lshlrev_b32 v{x0_}, 3, v{x0_}", f"s_add_u32 s{U0}, s{U0}, {10*GS}", f"v_add_u32 v{x0_}, s{U0}, v{x0_}",
            f"v_bfe_u32 v{x1}, v{vL16}, 4, 2", f"v_mul_u32_u24 v{x2}, {GS}, v{x1}", f"v_add_u32 v{x2}, v{x2}, v{x0_}", f"v_accvgpr_write_b32 a{st('V0')}, v{x2}",
            f"v_min_u32 v{x1}, 1, v{x1}", f"v_add_u32 v{x1}, 4, v{x1}", f"v_mul_u32_u24 v{x2}, {GS}, v{x1}", f"v_add_u32 v{x2}, v{x2}, v{x0_}",
            f"v_accvgpr_write_b32 a{st('V1')}, v{x2}",
            f"v_mul_u32_u24 v{x0_}, 1152, v{n}", f"v_lshl_add_u32 v{x0_}, v{q}, 3, v{x0_}", f"v_accvgpr_write_b32 a{st('ov')}, v{x0_}"]
    def d_T2(tb):
        x0_, x1, x2, x3 = tb, tb+1, tb+2, tb+3
        L = [f"v_bfe_u32 v{x1}, v{vL16}, 4, 4", f"v_lshrrev_b32 v{x0_}, 8, v{vL16}", f"v_lshlrev_b32 v{x0_}, 2, v{x0_}", f"v_sub_u32 v{x0_}, v{x1}, v{x0_}",
             f"v_mov_b32 v{x1}, {f2u(-1e30)}"]
        for r in range(4):
            L += [f"v_cmp_le_i32 {MK}, {r}, v{x0_}", "?s_nop 1", f"v_cndmask_b32 v{x2}, 0, v{x1}, {MK}", f"v_accvgpr_write_b32 a{st('mf',4)+r}, v{x2}",
                  f"v_xor_b32 v{x2}, v{x2}, v{x1}", f"v_accvgpr_write_b32 a{st('ml',4)+r}, v{x2}"]
        L += [f"v_and_b32 v{x2}, 1, v{x0_}", f"v_lshlrev_b32 v{x2}, 4, v{x2}", f"v_mov_b32 v{x1}, 0x3f80", f"v_lshlrev_b32 v{x1}, v{x2}, v{x1}",
              f"v_ashrrev_i32 v{x0_}, 1, v{x0_}"]
        for hf in range(2):
            L += [f"v_cmp_eq_u32 {MK}, {hf}, v{x0_}", "?s_nop 1", f"v_cndmask_b32 v{x3}, 0, v{x1}, {MK}", f"v_accvgpr_write_b32 a{SEL+2+hf}, v{x3}"]
        L += [f"v_accvgpr_write_b32 a{SEL+r}, 0" for r in (0, 1, 4, 5)]
        return L
    def d_col(tb):
        L = [f"s_and_b32 s{U2}, s{sS}, 1", f"s_lshl_b32 s{U0}, s{U2}, 6", f"s_add_u32 s{sCol[0]}, s{U0}, 512",
             f"s_mul_i32 s{U2}, s{U2}, 640", f"s_lshr_b32 s{U1}, s{sI}, 1"]
        for p in range(1, 5):
            L += [f"s_xor_b32 s{U0}, s{U1}, {4-p}", f"s_lshl_b32 s{U0}, s{U0}, 7", f"s_add_u32 s{sCol[p]}, s{U0}, s{U2}"]
        return L

    stages = {}
    post = {}
    def X(S, t): return f"v[{XN+8*S+4*t}:{XN+8*S+4*t+3}]"
    def slot_of(k):
        if k < 28: return k % NS
        if k < 33: return k % 4
        if k in (52, 53): k = 105 - k
        return [1, 2, 3, 0, 4, 5][(k - 36) % 6]
    def grp(k, g, srdreg, soffs, vregs):
        slot = slot_of(k) * SLOT
        out = [("s", f"s_add_u32 m0, s{sMq}, {slot + 3072*g}")]
        out += [("s", t) for t in soffs]
        for i, v in enumerate(vregs):
            out.append(("m", f"buffer_load_dwordx4 v{v}, s[{srdreg}:{srdreg+3}], s{sOff} offen offset:{1024*i} lds"))
        return out
    k = 0
    for stg in range(6):
        dma = []
        for P in range(2):
            dma += grp(k, P, SQKV, [f"s_add_u32 s{sOff}, s{sKr3[stg//2]}, {(stg%2)*96*3456 + 128*P}"], vS)
        fr = []
        for uu in range(3):
            S = 3*stg + uu
            for tau in range(7):
                P = tau // 4; off = 1024*(3*P + uu) + 512*((tau % 4)//2) + 32*(tau % 2)
                fr.append((off, QACC + 8*tau, X(S, 0), X(S, 1), S == 0, ("Q", S, tau)) + ((D2 + 4*tau,) if stg < nraw else ()))
        stages[k] = dict(dma=dma, fr=fr); k += 1
    rot = 2
    for j in range(4):
        ag = ACC[rot % 3]; au = ACC[(rot + 1) % 3]; rot += 2
        for (srdreg, acc) in ((SG, ag), (SU, au)):
            for stg in range(3):
                dma = grp(k, 0, srdreg, [f"s_add_u32 s{sOff}, s{sPair[j]}, s{sKr9[stg]}"], vA)
                dma += grp(k, 1, srdreg, [f"s_add_u32 s{sOff}, s{sOff}, {96*9216}"], vA)
                fr = []
                for uu in range(6):
                    S = 6*stg + uu
                    for tau in range(4):
                        fr.append((1024*uu + 512*(tau//2) + 32*(tau%2), acc + 8*tau, X(S, 0), X(S, 1), S == 0, None))
                stages[k] = dict(dma=dma, fr=fr); k += 1
            if srdreg == SG: post[k-1] = ("g", [ag], ag, 4)
        post[k-1] = ("h", [ag, au], [(ag, au, 2*j), (ag+16, au+16, 2*j+1)])
    ag = ACC[rot % 3]
    for stg in range(3):
        dma = grp(k, 0, SG, [f"s_add_u32 s{sOff}, s{sSing}, s{sKr9[stg]}"], vS) + [x if x[1] != "s_nop 0" else ("n", "s_nop 0") for x in grp(k, 1, SU, ["s_nop 0"], vS)]
        if stg == 0: dma = [("v", f"v_accvgpr_read_b32 v{vS[i]}, a{st('sing',3)+i}") for i in range(3)] + dma
        fr = []
        for uu in range(6):
            S = 6*stg + uu
            for m in range(2):
                for c in range(2):
                    fr.append((3072*m + 1024*(uu//2) + 512*(uu%2) + 32*c, ag + 16*m + 8*c, X(S, 0), X(S, 1), S == 0, None))
        stages[k] = dict(dma=dma, fr=fr); k += 1
    post[k-1] = ("h", [ag], [(ag, ag+16, 8)])
    assert k == 33
    KB0 = 36
    ent = [(p, ks) for ks in range(19) for p in (1, 0)] + [(2, ks) for ks in range(odef)] + [(p, ks) for ks in (19, 20) for p in (1, 0)]
    ent += [(2, ks) for ks in range(odef, 21)]
    for p in (3, 4): ent += [(p, ks) for ks in range(21)]
    BACC = {0: 144, 1: 176, 2: 208, 3: 144, 4: 176}
    def Hop(ks, t):
        if ks < 10: b = H + 8*ks + 4*t
        elif ks < 20: b = HP + 8*(ks-10) + 4*t
        else: b = HB + 4*t
        return f"a[{b}:{b+3}]"
    nBst = (len(ent) + 5) // 6
    late = {}
    bpost = {}
    for sb in range(nBst):
        k = KB0 + sb; slot = slot_of(k) * SLOT
        dma = []; fr = []
        for u, (p, ks) in enumerate(ent[6*sb:6*sb+6]):
            i = u % 3
            if i == 0: dma.append(("s", f"s_add_u32 m0, s{sMq}, {slot + 3072*(u//3)}"))
            kk = ks % 10
            if ks == 20:
                dma.append(("v", f"v_accvgpr_read_b32 v{vT1}, a{st('Obm' if p == 0 else 'Ob')}"))
                dma.append(("v", f"v_add_u32 v{vT1}, {2048-1024*i}, v{vT1}"))
                dma.append(("m", f"buffer_load_dwordx4 v{vT1}, s[{SO}:{SO+3}], s{sCol[p]} offen offset:{1024*i} lds"))
            elif kk == 9:
                dma.append(("v", f"v_accvgpr_read_b32 v{vT1}, a{st('Oam' if p == 0 else 'Oa')}"))
                dma.append(("v", f"v_add_u32 v{vT1}, {2048-1024*i}, v{vT1}"))
                dma.append(("s", f"s_add_u32 s{sOff}, s{sAo if ks < 10 else sAp}, s{sCol[p]}"))
                dma.append(("m", f"buffer_load_dwordx4 v{vT1}, s[{SO}:{SO+3}], s{sOff} offen offset:{1024*i} lds"))
            else:
                if ks == 0:
                    regs = vA if p == 0 else vS
                    dma.append(("v", f"v_accvgpr_read_b32 v{regs[2]}, a{st('Dm' if p == 0 else 'D')}"))
                    dma.append(("v", f"v_add_u32 v{regs[2]}, s{sCol[p]}, v{regs[2]}"))
                    dma += [("v", f"v_add_u32 v{regs[j]}, {2048-1024*j}, v{regs[2]}") for j in range(2)]
                elif i == 0: dma.append(("n", "s_nop 0"))
                tab = ((sKo, sKo2) if ks < 10 else (sKp, sKp2))[kk % 2]
                v = (vA if p == 0 else vS)[i]
                dma.append(("m", f"buffer_load_dwordx4 v{v}, s[{SD}:{SD+3}], s{tab[kk//2]} offen offset:{1024*i} lds"))
            for tau in range(2 if p == 0 else 4):
                f = (1024*u + 512*(tau//2) + 32*(tau%2), BACC[p] + 8*tau, Hop(ks, 0), Hop(ks, 1), ks == 0, ("B", p, ks, tau))
                if p == 4 or (p == 3 and tau >= 2): late.setdefault((p, tau), {}).setdefault(k, []).append((k,) + f)
                else: fr.append(f)
        stages[k] = dict(dma=dma, fr=fr)
    KEND = KB0 + nBst

    def emit_dma(k):
        for it in stages[k]["dma"]: emit_dma_item(k, it)

    fill = deque(); fill2 = deque(); fill3 = deque(); dmaq = deque(); extq = []; spin_blocks = []; pubs = []; toks = {}
    hooks = {}; ihooks = {}; ipost = {}
    def emit_fill(it):
        kind, txt = it[1], it[2]
        if kind == "m": return a.vm(txt)
        if kind == "d": return a.ds(txt)
        if kind == "f": return txt()
        a.i(txt)
    def F(nb, kind, txt, sets=(), space=0): fill.append((nb, kind, txt, list(sets), space))
    def Fm(nb, name, txt, sets=(), space=0):
        def fn(): toks[name] = a.vm(txt)
        fill.append((nb, "f", fn, list(sets), space))
    def defer(L, accset):
        i = 0
        while i < len(L):
            g = [L[i]]; i += 1
            if g[0].startswith("s_cmp") or (i < len(L) and L[i].startswith("?")): g.append(L[i]); i += 1
            fill3.append((g, accset))
    def emit3(drain=False):
        g, _ = fill3.popleft()
        for t in g:
            if t.startswith("?"):
                if drain: a.i(t[1:])
            else: a.i(t)
    def G(nb, kind, txt, space=0): fill2.append((nb, kind, txt, [], space))
    def Gm(nb, name, txt, space=0):
        def fn(): toks[name] = a.vm(txt)
        fill2.append((nb, "f", fn, [], space))
    def poll_check(name, va, vf, soff="0", offs=0):
        a.wait(vm=toks[name])
        a.i(f"v_cmp_ne_u32 vcc, s{sTag}, v{vf}")
        a.i("s_nop 0")
        a.i("s_cmp_lg_u64 vcc, 0")
        a.i(f"s_cbranch_scc1 L_spin_{name}")
        a.label(f"L_back_{name}")
        spin_blocks.append((name, va, vf, soff, offs))
    def stream(frs, dma_after, flush=True, gap=gap, tailnop=True):
        N = len(frs); first_of = {}
        for i, f in enumerate(frs): first_of.setdefault(f[0], i)
        rd = {}; nextbar = [0]; hold_until = [0]; lastd = [-100]; gpf = 3 if len(frs[0]) > 7 else 2
        def rd_half(i, hf):
            k, off = frs[i][0], frs[i][1]
            o = slot_of(k) * SLOT + off; base = vRd[o // (2*SLOT)]; oo = o % (2*SLOT)
            fb = FR + 4*(i % NB) + 2*hf
            rd[i] = a.ds(f"ds_read_b64_tr_b16 a[{fb}:{fb+1}], v{base} offset:{oo + 256*hf}")
        def pre_read(i, cur):
            k = frs[i][0]
            if first_of[k] == i:
                nfl = 0
                while any(kk == k for kk, _ in dmaq):
                    kk, it = dmaq.popleft(); emit_dma_item(kk, it); nfl += 1
                if nfl: print("late flush", nfl, "at", k, file=sys.stderr)
                tr.stage = k; tr(f"w{k}")
                a.wait(vm=dma_tok[k])
                a.i("s_barrier")
                tr(f"b{k}")
                for p in list(pubs):
                    if p[3] and toks.get(p[0]) is not None and toks[p[0]] <= a.vm_done:
                        p[1](); pubs.remove(p); print("pub", p[0], "at barrier", k, file=sys.stderr)
                for kk in dma_after(k):
                    for it in stages[kk]["dma"]: dmaq.append((kk, it))
                if k in hooks: hooks[k](cur)
                nextbar[0] = first_of.get(k + 1, N + D) - D
                return True
            return False
        for i in range(min(D, N)):
            pre_read(i, 0); rd_half(i, 0); rd_half(i, 1)
        a.wait(lg=rd[1])
        gi = 0; lastm = -100
        def other(i):
            nonlocal lastm
            for p in list(pubs):
                if not p[3] and toks.get(p[0]) is not None:
                    if toks[p[0]] <= a.vm_done or (p[2][0] is not None and i >= p[2][0]):
                        print("pub", p[0], "at frag", i, "stage", frs[i][0], "forced" if toks[p[0]] > a.vm_done else "", file=sys.stderr); a.wait(vm=toks[p[0]]); p[1](); pubs.remove(p); return
                    if p[2][0] is None: p[2][0] = i + p[2][1]
            if dmaq:
                kk, it = dmaq[0]
                ok = True
                if it[0] == "n":
                    dmaq.popleft(); kk, it = dmaq[0]
                if it[0] == "h":
                    dmaq.popleft(); hold_until[0] = gi + it[1]; ok = False
                elif it[0] == "m":
                    if kk == "z": ok = gi - lastm >= 2
                    else:
                        g_eff = gap; urgent = False; cnt = 0
                        for k2, it2 in dmaq:
                            if it2[0] != "m": continue
                            cnt += 1
                            if k2 in first_of:
                                dl = gpf * (first_of[k2] - D) - lead
                                if gi + cnt * gap > dl: g_eff = min(g_eff, max(2, (dl - gi) // cnt)); urgent = True
                        ok = gi - lastd[0] >= g_eff and gi - lastm >= 2 and (gi >= hold_until[0] or urgent)
                if ok:
                    dmaq.popleft(); emit_dma_item(kk, it)
                    if isinstance(it[1], str) and it[1].startswith("s_cmp"):
                        kk, it = dmaq.popleft(); emit_dma_item(kk, it)
                    if it[0] == "m": lastm = gi; lastd[0] = gi
                    return
            for q_ in (fill, fill2):
                if q_ and q_[0][0] <= i and (q_[0][4] == 0 or gi - lastm >= q_[0][4]):
                    it = q_.popleft(); emit_fill(it)
                    if it[4]: lastm = gi
                    return
            if fill3: emit3()
        for i in range(N):
            k, off, acc, b0, b1, first, tag = frs[i][:7]
            if first_of[k] == i: astamp_stage(k)
            if trace == (200, 201) and 24 <= k < 33 and i % 8 == 6: tr.stage = 200; tr(f"a{k}"); tr.stage = k
            if trace == (100, 101) and k >= 36 and i % 8 == 2: tr.stage = 100; tr(f"f{i}"); tr.stage = k
            if i in ihooks: ihooks.pop(i)(i)
            if tag in ihooks: ihooks.pop(tag)(i)
            while extq: dmaq.append(extq.pop(0))
            assert rd[i] <= a.lg_done
            fb = FR + 4*(i % NB)
            if first_of[k] + 1 == i and ("S", k) in ihooks: ihooks.pop(("S", k))(i)
            if first:
                nd = 0
                while any(any((x <= acc < x + 32) if isinstance(x, int) else (x[0] <= acc < x[1]) for x in it[3]) for it in fill):
                    emit_fill(fill.popleft()); nd += 1
                while any(x <= acc < x + 32 for _, x in fill3):
                    emit3(True); nd += 1
                if nd: print("drained", nd, "at stage", k, file=sys.stderr); a.i("s_nop 1")
            for t, b in enumerate((b0, b1)):
                d = f"v[{acc+4*t}:{acc+4*t+3}]"
                a.i(f"{MF} {d}, a[{fb}:{fb+3}], {b}, {'0' if first else d}")
                used = False
                if i + D < N:
                    if t == 0: used = pre_read(i + D, i)
                    rd_half(i + D, t)
                if t == 1 and i + 1 < N and rd[i+1] > a.lg_done:
                    a.wait(lg=rd[min(i+wev, N-1)]); used = True
                if not used: other(i)
                gi += 1
            if len(frs[i]) > 7:
                d = f"v[{frs[i][7]}:{frs[i][7]+3}]"
                a.i(f"{MF} {d}, a[{fb}:{fb+3}], a[{ONES}:{ONES+3}], {'0' if first else d}")
                other(i); other(i); gi += 1
            if tag in bpost: bpost[tag](i + 3)
            if k >= 36 and i in ipost: ipost.pop(i)(i + 3)
            if (i + 1 == N or frs[i+1][0] != k) and k in post: do_post(post.pop(k), i + 3)
        while dmaq:
            kk, it = dmaq.popleft(); emit_dma_item(kk, it)
        if tailnop or fill: a.i("s_nop 7")
        while fill: emit_fill(fill.popleft())
        while fill2: emit_fill(fill2.popleft())
        if fill3: print("fill3 left", len(fill3), file=sys.stderr)
        while fill3: emit3(True)
    def astamp_stage(k):
        if k == 6: astamp("P:qend")
        if 6 <= k < 33 and k % 3 == 0: astamp(f"A:{k}")
        if k < 6: astamp(f"Q:{k}")
        if k >= 36 and k % 2 == 0: astamp(f"B:{k}")
    def pack4(nb, d, e, sets):
        F(nb, "v", f"v_cvt_pk_bf16_f32 v{d}, v{d}, v{d+1}", sets); F(nb, "v", f"v_cvt_pk_bf16_f32 v{d+1}, v{d+2}, v{d+3}", sets)
        F(nb, "v", f"v_cvt_pk_bf16_f32 v{d+2}, v{e}, v{e+1}", sets); F(nb, "v", f"v_cvt_pk_bf16_f32 v{d+3}, v{e+2}, v{e+3}", sets)
    def flag_store(voff_txts, soff, offs=0):
        for t in voff_txts: a.i(t)
        a.i(f"v_mov_b32 v{q1}, s{sTag}")
        a.vm(f"buffer_store_dword v{q1}, v{q0}, {WS}, {soff} offen offset:{offs} sc1")
    def do_post(p, nb):
        if p[0] == "g" or (p[0] == "h" and len(p[2]) == 1):
            g = p[2] if p[0] == "g" else p[2][0][0]
            for tau in range(p[3] if p[0] == "g" else 2):
                for t in range(2):
                    for r in range(4): F(nb, "v", f"v_mul_f32 v{g+8*tau+4*t+r}, v{RS2[t]}, v{g+8*tau+4*t+r}", p[1])
        if p[0] == "h":
            sets = p[1]
            for (g, u_, ks) in p[2]:
                F(nb, "s", f"s_add_u32 s{sPst}, s{sHst}, {2048*ks}", sets)
                for t in range(2):
                    for c in range(2):
                        for r in range(4):
                            o = 8*c + 4*t + r
                            F(nb, "v", f"v_mul_f32 v{g+o}, v{g+o}, v{u_+o}", sets)
                    pack4(nb, g + 4*t, g + 8 + 4*t, sets)
                    for r in range(4):
                        F(nb, "v", f"v_accvgpr_write_b32 a{H+8*ks+4*t+r}, v{g+4*t+r}", sets)
                    Fm(nb, "h1st" if (ks, t) == (3, 1) else "hst", f"buffer_store_dwordx4 v[{g+4*t}:{g+4*t+3}], v{vL16}, {WS}, s{sPst} offen offset:{1024*t} sc1", sets, 3)
            if p[2][-1][2] == 3:
                pubs.append(("h1st", lambda: flag_store([f"v_accvgpr_read_b32 v{q0}, a{st('hfo')}"], "0", 8), [None, 110], False))
        elif p[0] == "q":
            sets = p[1]
            F(nb, "v", f"v_accvgpr_read_b32 v{q0}, a{st('stq')}", sets)
            for tau in range(7):
                sets = [ACC[tau // 4]]
                if tau == 6: F(nb, "v", f"v_accvgpr_read_b32 v{q0}, a{st('stq2')}", sets)
                F(nb, "s", f"s_add_u32 s{sPst}, s{sQst}, {4096*tau}", sets)
                for t in range(2):
                    b = QACC + 8*tau + 4*t
                    for r in range(4): F(nb, "v", f"v_mul_f32 v{b+r}, v{QSC[t]}, v{b+r}", sets)
                    F(nb, "v", f"v_cvt_pk_bf16_f32 v{b}, v{b}, v{b+1}", sets); F(nb, "v", f"v_cvt_pk_bf16_f32 v{b+1}, v{b+2}, v{b+3}", sets)
                    Fm(nb, "qdone" if (tau, t) == (6, 1) else "qst", f"buffer_store_dwordx2 v[{b}:{b+1}], v{q0}, {WS}, s{sPst} offen offset:{128*t} sc1", sets, 3)
            def pubq():
                a.i(f"s_lshl_b32 s{sT0}, s{sR}, 4"); a.i(f"s_add_u32 s{sT0}, s{sT0}, s{sS}")
                a.i(f"s_lshl_b32 s{sT0}, s{sT0}, 7"); a.i(f"s_add_u32 s{sT0}, s{sT0}, {QF_BASE}")
                flag_store([f"v_mov_b32 v{q0}, 0"], f"s{sT0}")
            pubs.append(("qdone", pubq, [None, 0], True))

    def hook7(cur): toks["tag"] = a.vm(f"buffer_load_dword v207, off, s[{SDBG}:{SDBG+3}], 0 sc1")
    hooks[7] = hook7
    def hook10(cur):
        a.wait(vm=toks["tag"])
        a.label("L_tagchk")
        a.i(f"v_readfirstlane_b32 s{sTag}, v207")
        a.i("s_nop 0")
        a.i(f"s_cmp_eq_u32 s{sTag}, 0")
        a.i("s_cbranch_scc1 L_tagspin")
        a.label("L_tagok")
    hooks[10] = hook10
    DUM = f"a[{HP+76}:{HP+79}]"
    nw = 8 << lg_rpx
    def wid_code():
        return [("s", f"s_and_b32 s{sT3}, s{sR}, {(1 << lg_rpx) - 1}"), ("s", f"s_lshl_b32 s{sT3}, s{sT3}, 1"),
                ("s", f"s_and_b32 s{sT1}, s{sS}, 1"), ("s", f"s_add_u32 s{sT3}, s{sT3}, s{sT1}"),
                ("s", f"s_lshl_b32 s{sT3}, s{sT3}, 2"), ("s", f"s_add_u32 s{sT3}, s{sT3}, s{sW}")]
    def pf1_items():
        L = wid_code()
        L += [("v", f"v_accvgpr_read_b32 v{q2}, a{st('pt')}"), ("m", f"buffer_load_dword a{HP+75}, v{q2}, {WS}, 0 offen sc1")]
        if gupf is True: return L
        per = (18 * 4 + nw - 1) // nw
        L += [("s", f"s_lshr_b32 s{sT0}, s{sT3}, 2"), ("s", f"s_and_b32 s{sT1}, s{sSing}, 0xffffff80")]
        for j in range(per):
            L += [("s", f"s_add_u32 s{sT2}, s{sT0}, {j * (nw // 4)}"), ("s", f"s_mul_i32 s{sT2}, s{sT2}, {32*9216}"),
                  ("s", f"s_add_u32 s{sT2}, s{sT2}, s{sT1}"),
                  ("m", f"buffer_load_dwordx4 {DUM}, v{vA[0]}, s[{SG}:{SG+3}], s{sT2} offen"),
                  ("m", f"buffer_load_dwordx4 {DUM}, v{vA[0]}, s[{SU}:{SU+3}], s{sT2} offen")]
        return L
    def xr_items(q0=q0, q1=q1, q2=q2):
        L = [("v", f"v_bfe_u32 v{q1}, v{vL16}, 4, 4"), ("v", f"v_mul_u32_u24 v{q1}, 1152, v{q1}"), ("v", f"v_lshrrev_b32 v{q0}, 8, v{vL16}"),
             ("v", f"v_lshl_add_u32 v{q2}, v{q0}, 3, v{q1}"),
             ("s", f"s_and_b32 s{sT2}, s{sS}, 1"), ("s", f"s_mul_i32 s{sT0}, s{sT2}, 640"), ("s", f"s_lshl_b32 s{sT1}, s{sI}, 6"),
             ("s", f"s_add_u32 s{sT0}, s{sT0}, s{sT1}"), ("s", f"s_add_u32 s{sT0}, s{sT0}, s{sXrow}")]
        for t in range(2):
            if t: L.append(("s", f"s_add_u32 s{sT0}, s{sT0}, {16*1152}"))
            for c in range(2):
                L.append(("m", f"buffer_load_dwordx2 a[{XR+4*t+2*c}:{XR+4*t+2*c+1}], v{q2}, s[{SX}:{SX+3}], s{sT0} offen offset:{32*c}"))
        L += [("v", f"v_and_b32 v{q0}, 1, v{q0}"), ("v", f"v_lshl_add_u32 v{q2}, v{q0}, 5, v{q1}"),
              ("s", f"s_lshr_b32 s{sT0}, s{sI}, 2"), ("s", f"s_mul_i32 s{sT0}, s{sT0}, {16*1152}"), ("s", f"s_and_b32 s{sT1}, s{sI}, 3"),
              ("s", f"s_lshl_b32 s{sT1}, s{sT1}, 3"), ("s", f"s_add_u32 s{sT0}, s{sT0}, s{sT1}"), ("s", f"s_lshl_b32 s{sT2}, s{sT2}, 6"),
              ("s", f"s_add_u32 s{sT0}, s{sT0}, s{sT2}"), ("s", f"s_add_u32 s{sT0}, s{sT0}, s{sXrow}"),
              ("m", f"buffer_load_dwordx2 a[{XR+8}:{XR+9}], v{q2}, s[{SX}:{SX+3}], s{sT0} offen offset:512")]
        return L
    def gu_items():
        assert lg_rpx == 4
        L = [("s", f"s_and_b32 s{sT1}, s{sS}, 1"), ("s", f"s_mul_i32 s{sT2}, s{sI}, 1152"),
             ("s", f"s_mul_i32 s{sT0}, s{sR}, {32*9216}"), ("s", f"s_add_u32 s{sT0}, s{sT0}, s{sT2}"),
             ("s", f"s_lshl_b32 s{sT3}, s{sT1}, 7"), ("s", f"s_add_u32 s{sT0}, s{sT0}, s{sT3}")]
        for j in range(5):
            for sr in ((SU,) if gupf == 'U' else (SG, SU)):
                L.append(("m", f"buffer_load_dwordx4 {DUM}, v{vA[0]}, s[{sr}:{sr+3}], s{sT0} offen offset:{256*j}"))
        L += [("s", f"s_add_u32 s{sT1}, s{sT1}, 16"), ("s", f"s_mul_i32 s{sT1}, s{sT1}, {32*9216}"), ("s", f"s_add_u32 s{sT1}, s{sT1}, s{sT2}"),
              ("s", f"s_min_u32 s{sT3}, s{sR}, 8"), ("s", f"s_lshl_b32 s{sT3}, s{sT3}, 7"), ("s", f"s_add_u32 s{sT1}, s{sT1}, s{sT3}")]
        for sr in ((SU,) if gupf == 'U' else (SG, SU)):
            L.append(("m", f"buffer_load_dwordx4 {DUM}, v{vA[0]}, s[{sr}:{sr+3}], s{sT1} offen"))
        return L
    def pf2_items():
        L = []
        for j in range((81 + nw - 1) // nw):
            L += [("s", f"s_add_u32 s{sT2}, s{sT3}, {j * nw + 2}"), ("s", f"s_min_u32 s{sT2}, s{sT2}, 82"),
                  ("s", f"s_lshl_b32 s{sT2}, s{sT2}, 10"), ("s", f"s_mul_i32 s{sT1}, s{sI}, {72*1152}"), ("s", f"s_add_u32 s{sT2}, s{sT2}, s{sT1}"),
                  ("m", f"buffer_load_dwordx4 {DUM}, v{vL16}, s[{SO}:{SO+3}], s{sT2} offen")]
        per_wave = 576 * 1152 // nw
        L += [("s", f"s_mul_i32 s{sT0}, s{sT3}, {per_wave}"), ("s", f"s_mul_i32 s{sT1}, s{sI}, {576*1152}"),
              ("s", f"s_add_u32 s{sT0}, s{sT0}, s{sT1}"), ("s", f"s_add_u32 s{sT0}, s{sT0}, 2048")]
        for j in range((per_wave + 1023) // 1024):
            if j % 4 == 0 and j: L.append(("s", f"s_add_u32 s{sT0}, s{sT0}, 4096"))
            L.append(("m", f"buffer_load_dwordx4 {DUM}, v{vL16}, s[{SD}:{SD+3}], s{sT0} offen offset:{1024*(j%4)}"))
        return L
    def hook_poll_issue(cur):
        assert not any(kk == "z" and it[0] != "h" for kk, it in dmaq)
        a.i(f"v_accvgpr_read_b32 v{q0}, a{st('qf')}")
        toks["kv"] = a.vm(f"buffer_load_dword v{q1}, v{q0}, {WS}, 0 offen sc1")
    def hook_poll_check(cur):
        poll_check("kv", q0, q1)
        for hd, nm in enumerate(("qA", "qB")):
            G(cur, "v", f"v_accvgpr_read_b32 v{q2}, a{st(nm)}")
            for t in range(2):
                for hf in range(2):
                    d = aQ + 8*hd + 4*t + 2*hf
                    Gm(cur, "qld", f"buffer_load_dwordx2 a[{d}:{d+1}], v{q2}, {WS}, s{sQld} offen offset:{128*t + 1024*hf} sc1", 3)
    hooks[19] = hook_poll_issue
    hooks[21] = hook_poll_check
    def h1_issue(cur):
        assert not any(p[0] == "h1st" for p in pubs) and not fill2
        a.i(f"v_accvgpr_read_b32 v{q0}, a{st('hfp')}")
        toks["h1"] = a.vm(f"buffer_load_dword v{q1}, v{q0}, {WS}, 0 offen offset:8 sc1")
    def h1_check(cur):
        poll_check("h1", q0, q1, "0", 8)
        for ks in range(4):
            for t in range(2):
                o = 2048*ks + 1024*t; d = HP + 8*ks + 4*t
                if o % 4096 == 0: G(cur, "s", f"s_add_u32 s{sT3}, s{sHld}, {o}")
                G(cur, "m", f"buffer_load_dwordx4 a[{d}:{d+3}], v{vL16}, {WS}, s{sT3} offen offset:{o % 4096} sc1", 5)
    hooks[26] = h1_issue
    hooks[28] = h1_check
    def hook_pf(cur):
        assert not any(p[0] == "qdone" for p in pubs)
        L = [("z", it) for it in pf1_items() + pf2_items() + (xr_items() if xrat == 'A' else [])] + [("z", ("h", hold))]
        for it in reversed(L): dmaq.appendleft(it)
    hooks[pfk] = hook_pf
    def kv_dma(cur, mat):
        base = TBASE + mat*10*GS; go = mat*144*1024
        L = []
        L.append(("s", f"s_mul_i32 s{sT2}, s{sW}, {GS}"))
        L.append(("s", f"s_add_u32 m0, s{sT2}, {base}"))
        for r2 in range(3):
            L.append(("s", f"s_add_u32 s{sT0}, s{sKV[r2]}, {go}"))
            L.append(("m", f"buffer_load_dwordx4 v{vL16}, {WS}, s{sT0} offen offset:{1024*r2} sc1 lds"))
        L.append(("s", f"s_min_u32 s{sT1}, s{sT2}, {GS}"))
        L.append(("s", f"s_add_u32 s{sT1}, s{sT1}, s{sT2}"))
        L.append(("s", f"s_add_u32 m0, s{sT1}, {base + 4*GS}"))
        for r2 in range(3):
            L.append(("s", f"s_add_u32 s{sT0}, s{sKV[r2]}, {go + 4096}"))
            L.append(("m", f"buffer_load_dwordx4 v{vL16}, {WS}, s{sT0} offen offset:{1024*r2} sc1 lds"))
        L.append(("s", f"s_cmp_eq_u32 s{sW}, 1")); L.append(("s", f"s_cselect_b32 s{sT0}, s{sKV[1]}, s{sKV[2]}"))
        L.append(("s", f"s_cmp_eq_u32 s{sW}, 0")); L.append(("s", f"s_cselect_b32 s{sT0}, s{sKV[0]}, s{sT0}"))
        L.append(("s", f"s_min_u32 s{sT1}, s{sW}, 2")); L.append(("s", f"s_sub_u32 s{sT2}, s{sT1}, s{sW}"))
        L.append(("s", f"s_lshl_b32 s{sT2}, s{sT2}, 10")); L.append(("s", f"s_add_u32 s{sT0}, s{sT0}, s{sT2}"))
        L.append(("s", f"s_lshl_b32 s{sT1}, s{sT1}, 10"))
        L.append(("s", f"s_add_u32 m0, s{sT1}, {base + 9*GS}"))
        L.append(("s", f"s_add_u32 s{sT0}, s{sT0}, {go + 8192}"))
        L.append(("m", f"buffer_load_dwordx4 v{vL16}, {WS}, s{sT0} offen sc1 lds"))
        L.append(("v", f"v_add_u32 v{q2}, s{sT1}, v{vL16}"))
        d = KVS + 4*mat
        if mat == 0:
            L.append(("s", f"s_cmp_ge_u32 s{sT0}, {OOB}")); L.append(("s", f"s_cselect_b32 s{sT0}, 0xf149, 0"))
            L += [("v", f"v_accvgpr_write_b32 a{d}, s{sT0}"), ("v", f"v_accvgpr_write_b32 a{d+1}, 0"),
                  ("v", f"v_accvgpr_write_b32 a{d+2}, s{sT0}"), ("v", f"v_accvgpr_write_b32 a{d+3}, 0")]
        else:
            L += [("v", f"v_accvgpr_write_b32 a{d+r}, s{sC0}") for r in range(4)]
        L.append(("v", f"v_add_u32 v{q2}, {base + 5*GS}, v{q2}"))
        L.append(("d", f"ds_write_b128 v{q2}, a[{d}:{d+3}]"))
        return L
    stages[34] = dict(dma=kv_dma(0, 0), fr=[]); stages[35] = dict(dma=kv_dma(0, 1), fr=[])
    assert nraw == 0
    a.i(f"s_mov_b32 s{sC0}, 0x3f803f80"); a.i(f"s_mov_b32 s{sC1}, 0x3f80")
    RS2 = [vT0, vT1]; QSC = [q1, q2]
    SA = [234, 235, 236, 237]
    PR = [230, 238]; u = [160, 161]; TP = [164 + 2*i for i in range(4)]
    nx = [x0]; xrd = {}
    def xnext():
        if nx[0] < 18:
            if nx[0] >= NXU:
                if (nx[0] - NXU) not in xrd: return
                a.wait(lg=xrd[nx[0] - NXU])
            xdma(nx[0]); nx[0] += 1
    NHOP = 4
    def hop(h):
        def fn():
            if not iwarm: return
            a.i("s_mov_b64 exec, 0")
            for w in range(3):
                a.i(f"s_cmp_eq_u32 s{sW}, {w}"); a.i(f"s_cbranch_scc1 L_w{4*h+w}")
            a.i(f"s_branch L_w{4*h+3}")
            a.label(f"L_wret{h}")
            a.i("s_mov_b64 exec, -1")
        return fn
    def xread(n):
        t, ch = n // 9, n % 9
        while nx[0] <= n: xnext()
        tr(f"x{n}")
        a.wait(vm=dma_tok[("x", n)])
        tr(f"y{n}")
        for Sb in range(2):
            xrd[n] = a.ds(f"ds_read_b128 {X(2*ch + Sb, t)}, v{vXr[Sb]} offset:{2048*(n % NXU)}")
    def stats(n):
        t, ch = n // 9, n % 9
        a.wait(lg=xrd[n])
        for Sb in range(2):
            for i in range(4):
                x = XN + 8*(2*ch + Sb) + 4*t + i
                c1 = "0" if (ch == 0 and Sb == 0 and i < 2) else f"v{SA[i%2]}"
                c2 = "0" if (ch == 0 and Sb == 0 and i < 2) else f"v{SA[2+i%2]}"
                a.i(f"v_dot2_f32_bf16 v{SA[i%2]}, v{x}, s{sC0}, {c1}")
                a.i(f"v_dot2_f32_bf16 v{SA[2+i%2]}, v{x}, v{x}, {c2}")
    inv = 1.0/576.0
    def finstats(t):
        m, q = SA[0], SA[2]; rs, nm = PR[t], PR[t] + 1
        a.i("s_nop 2")
        a.i(f"v_add_f32 v{m}, v{m}, v{SA[1]}"); a.i(f"v_add_f32 v{q}, v{q}, v{SA[3]}")
        for sw in ("v_permlane32_swap_b32", "v_permlane16_swap_b32"):
            a.i(f"v_mov_b32 v{u[0]}, v{m}"); a.i(f"v_mov_b32 v{u[1]}, v{q}")
            a.i("s_nop 1")
            a.i(f"{sw} v{m}, v{u[0]}"); a.i(f"{sw} v{q}, v{u[1]}")
            a.i("s_nop 0")
            a.i(f"v_add_f32 v{m}, v{m}, v{u[0]}"); a.i(f"v_add_f32 v{q}, v{q}, v{u[1]}")
        def rb(r): a.i(f"v_cvt_pk_bf16_f32 v{r}, v{r}, v{r}"); a.i(f"v_lshlrev_b32 v{r}, 16, v{r}")
        a.i(f"v_mul_f32 v{m}, {f2u(inv)}, v{m}"); a.i(f"v_mul_f32 v{q}, {f2u(inv)}, v{q}")
        a.i(f"v_fma_f32 v{q}, -v{m}, v{m}, v{q}"); a.i(f"v_max_f32 v{q}, 0, v{q}")
        rb(q); a.i(f"v_add_f32 v{q}, {f2u(1e-5)}, v{q}"); rb(q)
        a.i(f"v_sqrt_f32 v{q}, v{q}"); rb(m); rb(q)
        a.i(f"v_rcp_f32 v{rs}, v{q}"); a.i(f"v_sub_f32 v{nm}, 0, v{m}")
        a.i(f"v_mul_f32 v{RS2[t]}, v{rs}, v{rs}"); a.i(f"v_mul_f32 v{QSC[t]}, {f2u(QG)}, v{rs}")
    def norm(S, t):
        for i in range(4):
            x = XN + 8*S + 4*t + i; tp = TP[i]
            a.i(f"v_dot2_f32_bf16 v{tp}, v{x}, s{sC1}, v{PR[t]+1}"); a.i(f"v_dot2_f32_bf16 v{tp+1}, v{x}, s{sHi}, v{PR[t]+1}")
        for i in range(4):
            x = XN + 8*S + 4*t + i; tp = TP[i]
            if i == 2: pass
            a.i(f"v_cvt_pk_bf16_f32 v{x}, v{tp}, v{tp+1}")
    sHi = 47
    a.i(f"s_mov_b32 s{sHi}, 0x3f800000")
    tr.stage = -1
    if trace and trace[0] < 0: a.i("s_mov_b32 s48, s53")
    su_early()
    if trace and trace[0] < 0:
        a.i("s_waitcnt lgkmcnt(0)"); a.i(f"v_writelane_b32 v{vLane}, s48, 0"); a.i(f"v_writelane_b32 v{vLane}, s54, 1"); trl.extend(["entry", "karg"])
    work = {hopat[h]: hop(h) for h in range(NHOP)}
    for n in range(9):
        if n in work: work.pop(n)()
        xread(n)
        xnext()
        if n < xfast: xnext()
        if n: stats(n - 1)
    pre = list(range(lnpre))
    vq_ = deque([(kk, it) for kk in pre for it in stages[kk]["dma"]] + ([("z", it) for it in gu_items()] if gupf else []))
    if gupf: dmaq.append(("z", ("h", hold0)))
    def vside():
        while vq_:
            kk, it = vq_.popleft(); emit_dma_item(kk, it)
            if it[0] == "m": break
    su_cas()
    stats(8); finstats(0)
    for n in range(9, 18):
        if n in work: work.pop(n)()
        xread(n)
        xnext()
        if n >= w0at: vside(); vside()
        norm(2*(n-9), 0); norm(2*(n-9)+1, 0)
        stats(n)
    assert not work
    astamp("P:stats")
    finstats(1)
    for S in range(18):
        norm(S, 1)
        if vq_ and (vq_[0][0] != "z" or S >= gu_at): vside()
    while vq_: vside()
    astamp("P:ln")
    if nraw == 6: do_post(("q", [ACC[0], ACC[1]]), 0)
    else: post[5] = ("q", [ACC[0], ACC[1]])
    defer(d_q(208) + d_h(208) + d_B(208), 208)
    def addhook(k, fn):
        old = hooks.get(k)
        hooks[k] = (lambda cur: (old(cur), fn(cur))) if old else fn
    def at_stage(k, L, accset):
        def f(i):
            assert not fill or True
            defer(L, accset)
        ihooks[("S", k)] = f
    at_stage(9, d_flags(200), ACC[1])
    at_stage(12, d_rows(0), -100)
    at_stage(15, d_T1(ACC[0]), ACC[0])
    at_stage(21, d_T2(ACC[2]), ACC[2])
    at_stage(24, d_col(0), -100)
    QO = 0; MFi = 16; MLa = 20; aKA, aKB, aV0, aV1 = 24, 25, 26, 27; w0, w1, w2, w3 = 28, 29, 30, 31
    def d_Tsetup():
        L = [f"v_accvgpr_read_b32 v{r}, a{st(nm)}" for nm, r in (("KA", aKA), ("KB", aKB), ("V0", aV0), ("V1", aV1))]
        for r in range(4): L += [f"v_accvgpr_read_b32 v{MFi+r}, a{st('mf')+r}", f"v_accvgpr_read_b32 v{MLa+r}, a{st('ml')+r}"]
        L += [f"v_lshrrev_b32 v{w0}, 8, v{vL16}", f"v_add_u32 v{w1}, -2, v{w0}", f"v_ashrrev_i32 v{w1}, 31, v{w1}",
              f"v_add_u32 v{w2}, -3, v{w0}", f"v_ashrrev_i32 v{w2}, 31, v{w2}", f"v_xor_b32 v{w3}, v{w1}, v{w2}", f"v_and_b32 v{w3}, 0x3f80, v{w3}"]
        for hd in range(2):
            for t in range(2):
                b = QO + 8*hd + 4*t
                L += [f"v_accvgpr_read_b32 v{b+r}, a{aQ+8*hd+4*t+r}" for r in range(4)]
                L += [f"v_and_b32 v{b}, v{w1 if hd else w2}, v{b}", f"v_and_b32 v{b+1}, v{w2 if hd else w1}, v{b+1}",
                      f"v_and_or_b32 v{b+2}, v{b+2}, v{w1}, v{w3}", f"v_and_b32 v{b+3}, v{w1}, v{b+3}"]
        return L
    def f31(i):
        assert not fill3
        assert toks["qld"] <= a.vm_done
        defer(d_Tsetup(), -100)
    ihooks[("S", 31)] = f31
    todo = [kk for kk in range(nraw, 33) if kk not in dma_tok]
    def dma_after_A(k):
        out = []
        while todo and todo[0] <= k + 4:
            kk = todo[0]
            prev = [x for x in range(nraw, kk) if slot_of(x) == slot_of(kk)]
            if prev and max(prev) > k - 2: break
            out.append(todo.pop(0))
        if k == kvat[0]: out.append(34)
        if k == kvat[1]: out.append(35)
        if k == 31: out.append(36)
        if k == 32: out.append(37)
        return out
    stream([(k,) + f for k in range(nraw, 33) for f in stages[k]["fr"]], dma_after_A)
    assert not todo
    astamp("P:aend"); astamp("A:end"); astamp("T:0")

    tr.stage = 200; tr("aend")
    a.wait(vm=max(dma_tok[34], dma_tok[35]), lg=a.lg_issued)
    a.i("s_barrier")
    SS = 32; OA = 208
    mx = [176, 178]; nmx = [180, 182]
    def Sr(t, kt): return SS + 72*t + 4*kt
    side = deque()
    def side_group(kk, items):
        cur = []
        for it in items:
            cur.append(it)
            if it[0] == "m":
                side.append(lambda kk=kk, cur=cur: [emit_dma_item(kk, x) for x in cur]); cur = []
        assert not cur
    side_group(38, stages[38]["dma"])
    if xrat == 'T': side_group("z", xr_items(196, 197, 198))
    side_group(39, stages[39]["dma"])
    fbn = [0]; NFB = [8]
    def nextfb():
        fb = FR + 4*(fbn[0] % NFB[0]); fbn[0] += 1; return fb
    def rd_k(hd, kt, lazy=None):
        fb = nextfb(); v = aKB if hd else aKA
        o = [f"ds_read_b64 a[{fb}:{fb+1}], v{v} offset:{128*kt}", f"ds_read_b64 a[{fb+2}:{fb+3}], v{v} offset:{128*kt + GS}"]
        if lazy is not None: lazy += o; return fb, None
        a.ds(o[0]); return fb, a.ds(o[1])
    def rd_v(hd, kap, tile, lazy):
        fb = nextfb(); v = aV1 if tile else aV0; o = 256*kap + (6*GS if (hd and not tile) else 0)
        lazy += [f"ds_read_b64_tr_b16 a[{fb}:{fb+1}], v{v} offset:{o}", f"ds_read_b64_tr_b16 a[{fb+2}:{fb+3}], v{v} offset:{o+128}"]
        return fb, None
    def qk_ops(hd, kt, fr):
        fb, tk = fr; o = []
        for t in range(2):
            j = kt - t
            if not 0 <= j <= 16: continue
            c = f"v[{MFi}:{MFi+3}]" if j == 0 else (f"v[{MLa}:{MLa+3}]" if j == 16 else "0")
            d = Sr(t, kt); b = QO + 8*hd + 4*t
            o.append((tk, f"{MF} v[{d}:{d+3}], a[{fb}:{fb+3}], v[{b}:{b+3}], {c}"))
        return o
    def max_ops(kt):
        o = []
        for t in range(2):
            j = kt - t
            if not 0 <= j <= 16: continue
            b = Sr(t, kt); m = mx[t]
            if j == 0:
                o.append(f"v_max_f32 v{m}, v{b}, v{b+1}"); o.append(f"v_max_f32 v{m+1}, v{b+2}, v{b+3}")
            else:
                o.append(f"v_max3_f32 v{m}, v{b}, v{b+1}, v{m}"); o.append(f"v_max3_f32 v{m+1}, v{b+2}, v{b+3}, v{m+1}")
        return o
    def finmax():
        for t in range(2): a.i(f"v_max_f32 v{mx[t]}, v{mx[t]}, v{mx[t]+1}")
        for sw in ("v_permlane32_swap_b32", "v_permlane16_swap_b32"):
            for t in range(2): a.i(f"v_mov_b32 v{mx[t]+1}, v{mx[t]}")
            a.i("s_nop 1")
            for t in range(2): a.i(f"{sw} v{mx[t]}, v{mx[t]+1}")
            a.i("s_nop 0")
            for t in range(2): a.i(f"v_max_f32 v{mx[t]}, v{mx[t]}, v{mx[t]+1}")
        for t in range(2): a.i(f"v_mul_f32 v{nmx[t]+1}, -1.0, v{mx[t]}")
    def exp_ops(kap):
        o1, o2, o3 = [], [], []
        for t in range(2):
            d = Sr(t, 2*kap)
            for hf in range(2):
                kt = 2*kap + hf; b = Sr(t, kt)
                if 0 <= kt - t <= 16:
                    for r in (0, 2): o1.append(f"v_pk_fma_f32 v[{b+r}:{b+r+1}], v[{b+r}:{b+r+1}], v[{nmx[t]}:{nmx[t]+1}], v[{nmx[t]}:{nmx[t]+1}] op_sel:[0,0,1] op_sel_hi:[1,0,1]")
                    for r in range(4): o2.append(f"v_exp_f32 v{b+r}, v{b+r}")
                    o3.append(f"v_cvt_pk_bf16_f32 v{d+2*hf}, v{b}, v{b+1}"); o3.append(f"v_cvt_pk_bf16_f32 v{d+2*hf+1}, v{b+2}, v{b+3}")
                else:
                    o3.append(f"v_mov_b32 v{d+2*hf}, 0"); o3.append(f"v_mov_b32 v{d+2*hf+1}, 0")
        return o1, o2 + o3
    def pv_ops(hd, kap, frs):
        o = []
        for tile in range(2):
            fb, tk = frs[tile]
            for t in range(2):
                d = OA + 16*hd + 8*t + 4*tile; b = Sr(t, 2*kap)
                o.append((tk, f"{MF} v[{d}:{d+3}], a[{fb}:{fb+3}], v[{b}:{b+3}], {'0' if kap == 0 else f'v[{d}:{d+3}]'}"))
        return o
    fbtok = {}
    def dsr(txt):
        tk = a.ds(txt); fbtok[int(re.search(r"a\[(\d+):", txt).group(1)) & ~3] = tk
    def merge(valu, mfs, lead=2, tailgap=1, reads=(), nside=3, lazywait=False):
        n = len(valu); m = len(mfs); pos = {}; reads = list(reads)
        if not lazywait: a.wait(lg=a.lg_issued)
        need = {txt: fbtok.get(int(re.search(r", a\[(\d+):", txt).group(1)), 0) for _, txt in mfs}
        order = [txt for _, txt in mfs]
        while len(reads) > m: dsr(reads.pop(0))
        for j in range(m): pos.setdefault(lead + (j * max(n - lead - tailgap, 1)) // max(m, 1), []).append(mfs[j])
        cnt = 0
        def one(txt):
            nonlocal cnt
            if lazywait and need[txt] > a.lg_done:
                j = order.index(txt); a.wait(lg=max(need[x] for x in order[j:j+4]))
            a.i(txt)
            if reads: dsr(reads.pop(0))
            cnt += 1
            if side and cnt % nside == 0: side.popleft()()
        for i, v in enumerate(valu):
            for (tk, txt) in pos.pop(i, []): one(txt)
            a.i(v)
        for kq in sorted(pos):
            for (tk, txt) in pos[kq]: one(txt)
    def slowT():
        for t in range(2): a.i(f"v_mov_b32 v{nmx[t]}, 1.0")
        for hd in range(2):
            kf = {}
            for kt in range(6): kf[kt] = rd_k(hd, kt)
            for kt in range(18):
                lz = []
                if kt + 6 < 18: fbx, _ = rd_k(hd, kt+6, lz)
                mo = max_ops(kt-3) if kt >= 3 else []
                for (tk, txt) in qk_ops(hd, kt, kf[kt]):
                    a.wait(lg=tk); a.i(txt)
                    if lz: tkx = a.ds(lz.pop(0))
                while lz: tkx = a.ds(lz.pop(0))
                if kt + 6 < 18: kf[kt+6] = (fbx, tkx)
                a.i("s_nop 1")
                for t in mo: a.i(t)
            a.i("s_nop 7")
            for kt in (15, 16, 17):
                for t in max_ops(kt): a.i(t)
            finmax()
            pend = []
            for kap in range(9):
                lz = []
                vf = [rd_v(hd, kap, 0, lz), rd_v(hd, kap, 1, lz)]
                o1, v = exp_ops(kap)
                for t in o1: a.i(t)
                merge(v, pend, lead=0, tailgap=5, reads=lz)
                pend = pv_ops(hd, kap, vf)
            a.i("s_nop 1")
            merge([], pend)
        a.i("s_nop 7")
    def hp_loads():
        for ks in range(4, 9):
            for t in range(2):
                def ld(ks=ks, t=t):
                    o = 2048*ks + 1024*t
                    if o % 4096 == 0: a.i(f"s_add_u32 s{sPst}, s{sHld}, {o}")
                    d = HP + 8*ks + 4*t
                    toks["hld"] = a.vm(f"buffer_load_dwordx4 a[{d}:{d+3}], v{vL16}, {WS}, s{sPst} offen offset:{o % 4096} sc1")
                side.append(ld)
    seq = [(hd, kap) for kap in range(9) for hd in range(2)]
    cur_n = [None]
    Sr_slow = Sr
    def Sr(t, kt):
        if cur_n[0] is None: return Sr_slow(t, kt)
        return SS + 16*(cur_n[0] % 3) + 8*t + 4*(kt % 2)
    def kreads(n, lz):
        hd, kap = seq[n]; return [rd_k(hd, 2*kap, lz), rd_k(hd, 2*kap+1, lz)]
    def qks(n, kf):
        hd, kap = seq[n]; cur_n[0] = n
        r = qk_ops(hd, 2*kap, kf[0]) + qk_ops(hd, 2*kap+1, kf[1]); cur_n[0] = None
        return r
    NFB[0] = 6; V1B = [FR + 24, FR + 28]
    lz = []; k0 = kreads(0, lz); nextfb(); nextfb(); k1 = kreads(1, lz)
    for t in lz: dsr(t)
    a.wait(lg=a.lg_issued - 4)
    for (_, txt) in qks(0, k0): a.i(txt)
    a.i("s_nop 5")
    knext = k1; pv = []
    for n in range(18):
        hd, kap = seq[n]
        tr.stage = 200; tr(f"t{n}")
        mf = (qks(n+1, knext) if n + 1 < 18 else []) + pv
        lz = []; lz2 = []
        v0f = rd_v(hd, kap, 0, lz2)
        if hd == 0:
            v1f = (V1B[kap % 2], None)
            lz2 += [f"ds_read_b64_tr_b16 a[{v1f[0]}:{v1f[0]+1}], v{aV1} offset:{256*kap}", f"ds_read_b64_tr_b16 a[{v1f[0]+2}:{v1f[0]+3}], v{aV1} offset:{256*kap+128}"]
        if n + 2 < 18: knext = kreads(n + 2, lz)
        cur_n[0] = n
        _, v = exp_ops(kap)
        pvn = pv_ops(hd, kap, [v0f, v1f])
        cur_n[0] = None
        merge(v, mf, lead=0, tailgap=tg, reads=lz + lz2, nside=4, lazywait=True)
        pv = pvn
        if n == th[0]:
            a.wait(vm=toks["hst"])
            flag_store([f"v_accvgpr_read_b32 v{q0}, a{st('hfo')}"], "0", 0)
        if n == th[1]:
            a.i(f"v_accvgpr_read_b32 v{q0}, a{st('hfp')}")
            toks["hp"] = a.vm(f"buffer_load_dword v{q1}, v{q0}, {WS}, 0 offen sc1")
        if n == th[2]:
            poll_check("hp", q0, q1); hp_loads()
    a.i("s_nop 1")
    merge([], pv)
    tr("tl")
    nleft = len(side)
    while side: side.popleft()()
    print("T side left", nleft, file=sys.stderr)
    a.i("s_nop 7")
    L = [0, 1, 2, 3] if False else [84, 85, 86, 87]; L2 = [88, 89, 90, 91]; BT = 92
    idx = [(hd, t) for hd in range(2) for t in range(2)]
    def getl():
        for n, (hd, t) in enumerate(idx):
            d = OA + 16*hd + 8*t + 4
            a.i(f"v_mov_b32 v{L[n]}, v{d}"); a.i(f"v_mov_b32 v{L2[n]}, v{d}")
        a.i("s_nop 1")
        for n in range(4): a.i(f"v_permlane16_swap_b32 v{L2[n]}, v{L[n]}")
        a.i("s_nop 0")
    getl()
    a.i(f"v_min3_f32 v{L2[0]}, v{L[0]}, v{L[1]}, v{L[2]}"); a.i(f"v_add_f32 v{L2[1]}, v{L[0]}, v{L[1]}"); a.i(f"v_add_f32 v{L2[2]}, v{L[2]}, v{L[3]}")
    a.i(f"v_min_f32 v{L2[0]}, v{L2[0]}, v{L[3]}"); a.i(f"v_add_f32 v{L2[1]}, v{L2[1]}, v{L2[2]}")
    a.i(f"v_cmp_nle_f32 vcc, {f2u(2.0**-40)}, v{L2[0]}")
    a.i(f"s_mov_b64 s[{sT1}:{sT1+1}], vcc")
    a.i(f"v_cmp_nge_f32 vcc, {f2u(2.0**40 if not forceslow else 0.0)}, v{L2[1]}")
    a.i("s_nop 0")
    a.i(f"s_or_b64 vcc, vcc, s[{sT1}:{sT1+1}]")
    a.i("s_cbranch_scc1 L_Tslow")
    a.label("L_Tnorm")
    main_lines = a.lines; a.lines = []
    assert a.lg_done == a.lg_issued
    NFB[0] = 8
    a.label("L_Tslow"); slowT(); getl(); a.i("s_branch L_Tnorm")
    assert a.lg_done == a.lg_issued
    slow_lines = a.lines; a.lines = main_lines
    E = []; osets = [OA]
    for n in range(4): E.append(f"v_mul_f32 v{L[n]}, {f2u(QG)}, v{L[n]}")
    for n in range(4): E.append(f"v_rcp_f32 v{L[n]}, v{L[n]}")
    E.append(f"v_add_u32 v{w1}, -1, v{w0}"); E.append(f"v_ashrrev_i32 v{w1}, 31, v{w1}")
    E.append(f"s_add_u32 s{sPst}, s{sHst}, {18*1024}")
    for t in range(2):
        for hd in range(2):
            d = OA + 16*hd + 8*t; n = 2*hd + t
            for r in list(range(4)) + ([6, 7] if hd else [4, 5]): E.append(f"v_mul_f32 v{d+r}, v{L[n]}, v{d+r}")
        d = OA + 8*t; e = OA + 16 + 8*t
        E += [f"v_cvt_pk_bf16_f32 v{BT+2*t}, v{d+4}, v{d+5}", f"v_cvt_pk_bf16_f32 v{BT+2*t+1}, v{e+6}, v{e+7}",
              f"v_cvt_pk_bf16_f32 v{d}, v{d}, v{d+1}", f"v_cvt_pk_bf16_f32 v{d+1}, v{d+2}, v{d+3}",
              f"v_cvt_pk_bf16_f32 v{d+2}, v{e}, v{e+1}", f"v_cvt_pk_bf16_f32 v{d+3}, v{e+2}, v{e+3}",
              f"v_and_b32 v{BT+2*t}, v{w1}, v{BT+2*t}", f"v_and_b32 v{BT+2*t+1}, v{w1}, v{BT+2*t+1}",
              f"buffer_store_dwordx4 v[{d}:{d+3}], v{vL16}, {WS}, s{sPst} offen offset:{1024*t} sc1"]
    E.append(f"buffer_store_dwordx4 v[{BT}:{BT+3}], v{vL16}, {WS}, s{sPst} offen offset:2048 sc1")
    for t in range(2):
        d = OA + 8*t
        E += [f"v_accvgpr_write_b32 a{H+72+4*t+r}, v{d+r}" for r in range(4)]
        E += [f"v_accvgpr_write_b32 a{HB+4*t}, v{BT+2*t}", f"v_accvgpr_write_b32 a{HB+4*t+1}, v{BT+2*t+1}"]
    for n_, t in enumerate(E):
        if n_ < oinl:
            if t.startswith("buffer"): toks["ost" if "2048" in t else "ostx"] = a.vm(t)
            else: a.i(t)
        elif t.startswith("buffer"): Fm(0, "ost" if "offset:2048" in t else "ostx", t, osets)
        else: F(0, "v", t, osets)
    def own_alpha(i):
        nd = 0
        while fill: emit_fill(fill.popleft()); nd += 1
        if nd: print("own alpha drain", nd, file=sys.stderr); a.i("s_nop 1")
    ihooks[("B", 1, 9, 0)] = own_alpha
    pubs.append(("ost", lambda: flag_store([f"v_accvgpr_read_b32 v{q0}, a{st('hfo')}"], "0", 4), [None, od], False))
    tr("tend")
    astamp("P:tend"); astamp("T:end")

    PL = 0
    SQ = 96
    def pstore(p, halves):
        def fn(nb):
            assert not any("buffer_store" in str(it[2]) for it in fill2)
            acc = BACC[p]; sets = [(acc, acc + 16*len(halves))]
            for hf in halves:
                if p == 0:
                    F(nb, "s", f"s_add_u32 s{sPst}, s{sHld}, {8*2048}", sets)
                else:
                    F(nb, "s", f"s_lshl_b32 s{sPst}, s{sCol[p]}, 5", sets); F(nb, "s", f"s_add_u32 s{sPst}, s{sPst}, s{sPo[hf]}", sets)
                for t in range(2):
                    d = acc + 16*hf + 4*t
                    pack4(nb, d, d + 8, sets)
                    last = (hf == halves[-1] and t == 1)
                    Fm(nb, f"pst{p}" if last else "pstx", f"buffer_store_dwordx4 v[{d}:{d+3}], v{vL16}, {WS}, s{sPst} offen offset:{1024*t} sc1", sets, 2)
            def pub():
                if p == 0: a.i(f"s_add_u32 s{sT0}, s{sPF}, 1024")
                else:
                    a.i(f"s_lshr_b32 s{sT0}, s{sI}, 1"); a.i(f"s_xor_b32 s{sT0}, s{sT0}, {4-p}")
                    a.i(f"s_lshl_b32 s{sT0}, s{sT0}, 8"); a.i(f"s_add_u32 s{sT0}, s{sT0}, s{sPF}")
                a.i(f"s_lshl_b32 s{sT1}, s{sI}, 2")
                flag_store([f"v_mov_b32 v{q0}, s{sT1}"], f"s{sT0}")
            pubs.append((f"pst{p}", pub, [None, pd if p < 3 else pd3], False))
        return fn
    def late_store(acc, x, taus):
        def fn(nb):
            assert not fill, len(fill)
            for c in taus:
                d = acc + 8*c; sets = [(d, d + 8)]
                pack4(nb, d, d + 4, sets)
                F(nb, "m", f"buffer_store_dwordx4 v[{d}:{d+3}], v{vL16}, {WS}, s{sLS[x]} offen offset:{1024*c} sc1", sets)
        return fn
    bpost[("B", 0, 20, 1)] = pstore(0, [0])
    for p in (1, 2): bpost[("B", p, 20, 3)] = pstore(p, [0, 1])
    vP0, vP1 = 80, 81
    def h_wait(i):
        a.wait(vm=toks["hld"])
        for x in (1, 2, 3):
            for c in range(2): G(i + psp*(2*x + c - 2), "m", f"buffer_store_dwordx4 v[{SQ}:{SQ+3}], v{vL16}, {WS}, s{sLS[x]} offen offset:{1024*c} sc1", 3)
    ihooks[("B", 1, 14, 0)] = h_wait
    def o_poll(i):
        a.i(f"v_accvgpr_read_b32 v{vP0}, a{st('hfp')}")
        toks["op"] = a.vm(f"buffer_load_dword v{vP1}, v{vP0}, {WS}, 0 offen offset:4 sc1")
    ihooks[("B",) + op[0] + (0,)] = o_poll
    def o_check(i):
        assert not any("v_cndmask" in str(it[2]) for it in fill2)
        poll_check("op", vP0, vP1, "0", 4)
        a.i(f"s_add_u32 s{sT0}, s{sHld}, {18*1024}")
        for t in range(2):
            a.vm(f"buffer_load_dwordx4 a[{HP+72+4*t}:{HP+75+4*t}], v{vL16}, {WS}, s{sT0} offen offset:{1024*t} sc1")
        for t in range(2):
            toks["old"] = a.vm(f"buffer_load_dwordx2 a[{HB+4*t+2}:{HB+4*t+3}], v{vL16}, {WS}, s{sT0} offen offset:{2048+8*t} sc1")
    ihooks[("B",) + op[1] + (0,)] = o_check
    ihooks[("B", 1, 19, 0)] = lambda i: a.wait(vm=toks["old"])
    sOwn = sQst
    sLS = {1: sQld, 2: 60, 3: 61}; sLL = {1: 62, 2: 63, 3: sQcol}
    sPFo = sKV[0]; sXo = [sKV[1], sKV[2]]; sMf, sMo, sMl = 45, sE, sM4x
    def polladdr(minx):
        a.i(f"v_bfe_u32 v{vP0}, v{vL16}, 4, 3"); a.i(f"v_max_u32 v{vP0}, {minx}, v{vP0}")
        a.i(f"v_xor_b32 v{vP0}, s{sI}, v{vP0}"); a.i(f"v_lshlrev_b32 v{vP0}, 2, v{vP0}")
    MA, MB, MX, MD, vM0, vM1 = 120, 124, 132, 136, 134, 135
    def m_prep(i):
        L = [f"v_bfe_u32 v{MD}, v{vL16}, 4, 4", f"v_lshrrev_b32 v{MD+1}, 8, v{vL16}",
             f"v_mul_u32_u24 v{vM0}, {8*HXS}, v{MD+1}", f"v_lshl_add_u32 v{vM0}, v{MD}, 4, v{vM0}",
             f"s_lshl_b32 s{sMl}, s{sI}, 8", f"s_add_u32 s{sMl}, s{sMl}, s{sPbase}", f"s_add_u32 s{sMl}, s{sMl}, {8*2048}",
             f"v_mul_u32_u24 v{vM1}, 1152, v{MD}", f"v_lshl_add_u32 v{vM1}, v{MD+1}, 5, v{vM1}",
             f"v_lshrrev_b32 v{MD+2}, 1, v{MD+1}", f"v_lshl_add_u32 v{vM1}, v{MD+2}, 29, v{vM1}",
             f"s_lshr_b32 s{sT2}, s{sI}, 2", f"s_mul_i32 s{sMo}, s{sT2}, {16*1152}", f"s_and_b32 s{sT2}, s{sI}, 3", f"s_lshl_b32 s{sT2}, s{sT2}, 3",
             f"s_add_u32 s{sMo}, s{sMo}, s{sT2}", f"s_add_u32 s{sMo}, s{sMo}, s{sCol[0]}", f"s_add_u32 s{sMo}, s{sMo}, s{sXrow}",
             f"s_add_u32 s{sMf}, s{sPF}, 1024",
             f"v_and_b32 v{MD+2}, 1, v{MD}", f"v_lshlrev_b32 v{MD+2}, 4, v{MD+2}", f"v_mov_b32 v{MD+3}, 0x3f80",
             f"v_lshlrev_b32 v{MD+3}, v{MD+2}, v{MD+3}", f"v_lshrrev_b32 v{MD+2}, 1, v{MD}"]
        for t in L: G(i, "v", t)
        for r in range(4):
            G(i, "v", f"v_cmp_eq_u32 vcc, {r}, v{MD+2}"); G(i, "v", f"v_cndmask_b32 v{MA+r}, 0, v{MD+3}, vcc")
        G(i, "v", f"v_accvgpr_read_b32 v{MX}, a{XR+8}"); G(i, "v", f"v_accvgpr_read_b32 v{MX+1}, a{XR+9}")
    ihooks[("B", 1, 1, 0)] = m_prep
    def m_poll(i):
        assert not fill2, len(fill2)
        for t in (f"v_bfe_u32 v{vP0}, v{vL16}, 4, 3", f"v_bfe_u32 v{vP1}, v{vL16}, 7, 1", f"v_mul_u32_u24 v{vP0+2}, 6, v{vP1}",
                  f"v_or_b32 v{vP0}, v{vP0}, v{vP0+2}", f"v_xor_b32 v{vP0}, s{sI}, v{vP0}", f"v_lshlrev_b32 v{vP0}, 2, v{vP0}",
                  f"s_sub_u32 s{sT2}, s{sMf}, s{sPFo}", f"v_xor_b32 v{vP1}, 1, v{vP1}", f"v_mad_u32_u24 v{vP0}, v{vP1}, s{sT2}, v{vP0}"):
            G(i, "v", t)
        Gm(i, "mp", f"buffer_load_dword v{vP1}, v{vP0}, {WS}, s{sPFo} offen sc1")
    def m_check(i):
        poll_check("mp", vP0, vP1, f"s{sPFo}", 0)
        a.vm(f"buffer_load_dwordx4 v[{MB}:{MB+3}], v{vM0}, {WS}, s{sMl} offen sc1")
        a.i(f"s_add_u32 s{sMl}, s{sMl}, {32*HXS}")
        toks["ml"] = a.vm(f"buffer_load_dwordx4 v[{MB+4}:{MB+7}], v{vM0}, {WS}, s{sMl} offen sc1")
        for t in (f"v_lshlrev_b32 v{MD}, 16, v{MX}", f"v_and_b32 v{MD+1}, 0xffff0000, v{MX}", f"v_lshlrev_b32 v{MD+2}, 16, v{MX+1}", f"v_and_b32 v{MD+3}, 0xffff0000, v{MX+1}"):
            G(i, "v", t)
        for x in (6, 7): G(i, "f", (lambda x=x: pload(x, sOwn, PL + 8*x, "pl")), 6)
    def m_fin(i):
        assert not any(f"v{MD+3}," in str(it[2]) for it in fill2)
        a.wait(vm=toks["ml"])
        for j in range(2): a.i(f"{MF} v[{MD}:{MD+3}], v[{MA}:{MA+3}], v[{MB+4*j}:{MB+4*j+3}], v[{MD}:{MD+3}]")
        G(i + 3, "v", f"v_cvt_pk_bf16_f32 v{MD}, v{MD}, v{MD+1}"); G(i + 3, "v", f"v_cvt_pk_bf16_f32 v{MD+1}, v{MD+2}, v{MD+3}")
        G(i + 3, "m", f"buffer_store_dwordx2 v[{MD}:{MD+1}], v{vM1}, s[{SOUT}:{SOUT+3}], s{sMo} offen{outsc}")
    def e_poll(i):
        for t in (f"v_bfe_u32 v{vP0}, v{vL16}, 4, 1", f"v_or_b32 v{vP0}, 4, v{vP0}", f"v_xor_b32 v{vP0}, s{sI}, v{vP0}", f"v_lshlrev_b32 v{vP0}, 2, v{vP0}"):
            a.i(t)
        toks["ep"] = a.vm(f"buffer_load_dword v{vP1}, v{vP0}, {WS}, s{sPFo} offen sc1")
    def prep_own(i):
        L = [f"v_accvgpr_read_b32 v{vT0}, a{st('ov')}",
             f"s_lshl_b32 s{sOwn}, s{sI}, 11", f"s_add_u32 s{sOwn}, s{sOwn}, s{sPbase}",
             f"s_and_b32 s{sT2}, s{sS}, 1", f"s_mul_i32 s{sT2}, s{sT2}, 640", f"s_lshl_b32 s{sT3}, s{sI}, 6",
             f"s_add_u32 s{sT2}, s{sT2}, s{sT3}", f"s_add_u32 s{sXo[0]}, s{sT2}, s{sXrow}", f"s_add_u32 s{sXo[1]}, s{sXo[0]}, {16*1152}",
             f"s_lshr_b32 s{sPFo}, s{sI}, 1", f"s_lshl_b32 s{sPFo}, s{sPFo}, 8", f"s_add_u32 s{sPFo}, s{sPFo}, s{sPF}"]
        for x in (1, 2, 3):
            L += [f"s_xor_b32 s{sT3}, s{sI}, {x}", f"s_lshl_b32 s{sT2}, s{sT3}, 11", f"s_add_u32 s{sLS[x]}, s{sHld}, s{sT2}",
                  f"s_mul_i32 s{sT3}, s{sT3}, {8*HXS}", f"s_add_u32 s{sLL[x]}, s{sT3}, s{sOwn}"]
        L += [f"v_mov_b32 v{SQ+r}, -1" for r in range(4)]
        for t in L: G(i, "v", t)
    ihooks[("B", 1, 2, 0)] = prep_own
    def pload(x, base, dst, name):
        a.i(f"s_xor_b32 s{sT0}, s{sI}, {x}"); a.i(f"s_mul_i32 s{sT0}, s{sT0}, {8*HXS}"); a.i(f"s_add_u32 s{sT0}, s{sT0}, s{base}")
        for t in range(2):
            toks[name] = a.vm(f"buffer_load_dwordx4 v[{dst+4*t}:{dst+4*t+3}], v{vL16}, {WS}, s{sT0} offen offset:{1024*t} sc1")
    def e_check(i):
        poll_check("ep", vP0, vP1, f"s{sPFo}", 0)
        for x in (4, 5): G(i, "f", (lambda x=x: pload(x, sOwn, PL + 8*x, "pl")), 4)
    def lload(x, c): return f"buffer_load_dwordx4 v[{PL+8*x+4*c}:{PL+8*x+4*c+3}], v{vL16}, {WS}, s{sLL[x]} offen offset:{1024*c} sc1"
    frsB = [(k,) + f for k in range(KB0, 50) for f in stages[k]["fr"]]
    def addpass(p, taus, order):
        n0 = len(frsB); first = True
        for k in order:
            for j in range(len(late[(p, taus[0])][k])):
                for tau in taus:
                    f = list(late[(p, tau)][k][j]); f[5] = first; f[6] = None; frsB.append(tuple(f))
                first = False
        return n0, len(frsB) - 1
    eC3a = len(frsB) - 1
    b3, e3_ = addpass(3, (2, 3), (47, 48, 49, 46))
    c4o = (50, 51, 53, 52)
    b40, e40 = addpass(4, (0,), c4o); b41, e41 = addpass(4, (1,), c4o); b42, e42 = addpass(4, (2, 3), c4o)
    print("B frag map", eC3a, b3, e3_, b40, e40, e41, e42, file=sys.stderr)
    ipost[eC3a] = late_store(BACC[3], 3, (0, 1)); ipost[e3_] = late_store(BACC[3] + 16, 2, (0, 1))
    ipost[e40] = late_store(BACC[4], 1, (0,)); ipost[e41] = late_store(BACC[4], 1, (1,))
    def rel47(i):
        a.i("s_barrier")
        for it in stages[52]["dma"]: dmaq.append((52, it))
    ihooks[b3 + 12] = rel47
    ihooks[mp[0]] = m_poll; ihooks[mp[1]] = m_check; ihooks[mp[2]] = m_fin
    ihooks[ep[0]] = e_poll; ihooks[ep[1]] = e_check
    def mkl(items, name):
        def f(i):
            for x, c in items: Gm(i, name, lload(x, c), 2)
        return f
    ihooks[ll[0]] = mkl([(3, 0), (3, 1)], "l3"); ihooks[ll[1]] = mkl([(2, 0), (2, 1)], "l2"); ihooks[ll[2]] = mkl([(1, 0)], "l10")
    if ll[3] is not None: ihooks[ll[3]] = mkl([(1, 1)], "l11")
    def dma_after_B(k):
        if k == 36: return [40, 41]
        if k == 37: return []
        if k == 48: return [53]
        return [k + 4] if k + 4 <= 51 else []
    stream(frsB, dma_after_B, tailnop=False)
    assert not pubs
    astamp("P:bend"); astamp("B:end")
    def accum(acc, src, f="v"):
        for c in range(2):
            for t in range(2):
                d = acc + 8*c + 4*t; s0 = SEL + (0 if c else 2)
                a.i(f"{MF} v[{d}:{d+3}], a[{s0}:{s0+3}], {f}[{src+4*t}:{src+4*t+3}], v[{d}:{d+3}]")
    OWN = BACC[4] + 16
    if ll[3] is None: toks["l11"] = a.vm(lload(1, 1))
    tr.stage = 100; tr("end")
    a.wait(vm=toks["pl"])
    tr("pl")
    accum(OWN, XR, "a")
    for x in range(4, 8): accum(OWN, PL + 8*x)
    tr("acc")
    CK = 0
    groups = [("l10", [(3, 0), (3, 1), (2, 0), (2, 1), (1, 0)]), ("l11", [(1, 1)])]
    for n, (tk, items) in enumerate(groups):
        a.wait(vm=toks[tk])
        tr(tk)
        a.label(f"L_tchk{n}")
        regs = [PL + 8*x + 4*c + r for x, c in items for r in range(4)]
        a.i(f"v_max_u32 v{CK}, v{regs[0]}, v{regs[1]}")
        for j in range(2, len(regs), 2): a.i(f"v_max3_u32 v{CK}, v{regs[j]}, v{regs[j+1]}, v{CK}")
        a.i(f"v_cmp_eq_u32 vcc, -1, v{CK}")
        a.i("s_nop 0")
        a.i("s_cmp_lg_u64 vcc, 0")
        a.i(f"s_cbranch_scc1 L_tretry{n}")
        a.label(f"L_tok{n}")
        for x, c in items:
            for t in range(2):
                d = OWN + 8*c + 4*t; s0 = SEL + (0 if t else 2); q_ = PL + 8*x + 4*c
                a.i(f"{MF} v[{d}:{d+3}], a[{s0}:{s0+3}], v[{q_}:{q_+3}], v[{d}:{d+3}]")
    a.i("s_nop 1")
    for c in range(2):
        if c: a.i("s_nop 1")
        for t in range(2):
            d = OWN + 8*c + 4*t
            a.i(f"v_cvt_pk_bf16_f32 v{d}, v{d}, v{d+1}"); a.i(f"v_cvt_pk_bf16_f32 v{d+1}, v{d+2}, v{d+3}")
            a.vm(f"buffer_store_dwordx2 v[{d}:{d+1}], v{vT0}, s[{SOUT}:{SOUT+3}], s{sXo[t]} offen offset:{32*c}{outsc}")
    tr("st")
    if trace: a.i("s_waitcnt vmcnt(0)"); tr("fin")
    astamp("P:done")
    if trace:
        a.i("s_waitcnt lgkmcnt(0)")
        for n0, p0 in trp: a.i(f"v_writelane_b32 v{vLane}, s{p0}, {n0}")
        a.i(f"s_lshl_b32 s{sT0}, s2, 2"); a.i(f"s_add_u32 s{sT0}, s{sT0}, s{sW}"); a.i(f"s_lshl_b32 s{sT0}, s{sT0}, 8")
        a.i(f"s_add_u32 s{sT0}, s{sT0}, {STAMP_OFF}")
        a.i(f"v_lshrrev_b32 v1, 2, v{vL16}")
        a.i(f"buffer_store_dword v{vLane}, v1, {WS}, s{sT0} offen")
        print("trace:", len(trl), " ".join(trl), file=sys.stderr)
    if stamps:
        a.i(f"s_lshl_b32 s{sT0}, s2, 2"); a.i(f"s_add_u32 s{sT0}, s{sT0}, s{sW}"); a.i(f"s_lshl_b32 s{sT0}, s{sT0}, 6")
        a.i(f"s_add_u32 s{sT0}, s{sT0}, {STAMP_OFF}")
        a.i(f"v_mov_b32 v1, 0")
        for n in range(len(stl)):
            a.i(f"buffer_store_dword a{244+n}, v1, {WS}, s{sT0} offen offset:{4*n}")
        a.i("s_waitcnt vmcnt(0)")
        a.i("s_memrealtime s[80:81]"); a.i("s_waitcnt lgkmcnt(0)"); a.i("v_accvgpr_write_b32 a255, s80")
        a.i(f"buffer_store_dword a254, v1, {WS}, s{sT0} offen offset:56")
        a.i(f"buffer_store_dword a255, v1, {WS}, s{sT0} offen offset:60")
        print("stamps:", stl, file=sys.stderr)
        if probe is not None:
            a.i(f"v_accvgpr_read_b32 v3, a{254 if probe < 0 else 244 + probe}"); a.i("s_nop 1")
            a.i(f"v_readfirstlane_b32 s{sT1}, v3"); a.i("s_nop 3"); a.i(f"s_add_u32 s{sT1}, s{sT1}, 6000")
            if probewg is not None:
                a.i(f"s_cmp_lg_u32 s2, {probewg}"); a.i("s_cbranch_scc1 L_end")
            a.label("L_probe")
            a.i("s_memrealtime s[80:81]"); a.i("s_waitcnt lgkmcnt(0)")
            a.i(f"s_sub_u32 s{sT2}, s80, s{sT1}"); a.i(f"s_cmp_lt_i32 s{sT2}, 0"); a.i("s_cbranch_scc1 L_probe")
        if dbgout:
            a.i(f"s_cmp_lg_u32 s{sW}, 1"); a.i("s_cbranch_scc1 L_end")
            a.i("s_cmp_lt_u32 s2, 248"); a.i("s_cbranch_scc1 L_end")
            a.i("v_accvgpr_read_b32 v3, a254"); a.i("v_accvgpr_read_b32 v4, a255")
            a.i("v_sub_u32 v4, v4, v3"); a.i("v_mul_u32_u24 v4, 100000, v4"); a.i("v_and_b32 v5, 0xffff, v3"); a.i("v_add_u32 v4, v4, v5")
            a.i(f"s_and_b32 s{sT1}, s2, 7"); a.i(f"s_lshl_b32 s{sT1}, s{sT1}, 2")
            a.i(f"buffer_store_dword v4, v1, s[{SDBG}:{SDBG+3}], s{sT1} offen offset:32")
            a.i("s_cmp_lg_u32 s2, 253"); a.i("s_cbranch_scc1 L_end")
            for n in range(1, 8):
                a.i(f"v_accvgpr_read_b32 v2, a{244+n}"); a.i("v_sub_u32 v2, v2, v3")
                a.i(f"buffer_store_dword v2, v1, s[{SDBG}:{SDBG+3}], 0 offen offset:{4*n}")
    a.label("L_end")
    a.i("s_endpgm")
    for n, (tk, items) in enumerate(groups):
        a.label(f"L_tretry{n}")
        a.i(f"s_cmp_eq_u32 s{sBound}, 0"); a.i(f"s_cbranch_scc1 L_tok{n}")
        a.i(f"s_sub_u32 s{sBound}, s{sBound}, 1"); a.i(f"s_sleep {4 if n == 0 else 1}")
        for x, c in items: a.i(lload(x, c))
        a.i("s_waitcnt vmcnt(0)")
        a.i(f"s_branch L_tchk{n}")
    a.lines += slow_lines
    a.label("L_tagspin")
    a.i(f"s_cmp_eq_u32 s{sBound}, 0"); a.i("s_cbranch_scc1 L_tagok")
    a.i(f"s_sub_u32 s{sBound}, s{sBound}, 1"); a.i("s_sleep 1")
    a.i(f"buffer_load_dword v207, off, s[{SDBG}:{SDBG+3}], 0 sc1"); a.i("s_waitcnt vmcnt(0)")
    a.i("s_branch L_tagchk")
    for (name, va, vf, soff, offs) in spin_blocks:
        a.label(f"L_spin_{name}")
        a.i(f"s_cmp_eq_u32 s{sBound}, 0")
        a.i(f"s_cbranch_scc1 L_back_{name}")
        a.i(f"s_sub_u32 s{sBound}, s{sBound}, 1")
        a.i("s_sleep 1")
        a.i(f"buffer_load_dword v{vf}, v{va}, {WS}, {soff} offen offset:{offs} sc1")
        a.i("s_waitcnt vmcnt(0)")
        a.i(f"v_cmp_ne_u32 vcc, s{sTag}, v{vf}")
        a.i("s_nop 0")
        a.i("s_cmp_lg_u64 vcc, 0")
        a.i(f"s_cbranch_scc1 L_spin_{name}")
        a.i(f"s_branch L_back_{name}")
    assert not ihooks, ihooks.keys()
    body = [l.replace("CODE_LAST", "0x1000") for l in a.lines]
    if iwarm:
        tmp = [l for l in body] + [f"L_w{w}:" for w in range(4*NHOP)] + ["    s_endpgm"]
        tmp, _, _, _ = align8(tmp, nops=False)
        tmp = tmp[:-(4*NHOP+1)]
        sz = sizes_of(tmp + [f"L_w{w}:" for w in range(4*NHOP)])
        out = []; off = 0; n = 0; j = 0; nextp = 8192; done = False
        for l in tmp:
            if l.startswith("L_end:"): done = True
            if is_instr(l):
                prev = out[-1].strip() if out else ""
                if off >= nextp and not done and not prev.startswith("v_mfma") and not prev.startswith("s_cmp"):
                    out.append(f"L_w{n}:"); out.append(f"    s_cbranch_execz L_wret{n//4}"); n += 1; off += 4; nextp += 4096
                off += sz[j]; j += 1
            out.append(l)
        assert n <= 4*NHOP
        for nn in range(n, 4*NHOP):
            out.insert(out.index(f"L_wret{nn//4}:"), f"L_w{nn}:")
        body = out; size = off
        print("warm stubs", n, file=sys.stderr)
    else:
        body, nf, nn, size = align8(body, nops=False)
    body = [l.replace("v_min_u32 v%d, 0x1000," % vT0, "v_min_u32 v%d, %d," % (vT0, (size - 64) & ~15)) for l in body]
    print(f"main: code {size} bytes, stash {st.next}", file=sys.stderr)
    return body

from gen1 import kd
def whole(**kw):
    m = gen(**kw)
    hdr = [l for l in open("parallel_sum__sliding_block__glu_gated_bilinear__prompt.s.ref").read().split("\n")[:11]]
    s = "\n".join(hdr) + "\n"
    s += f"; @launch grid=(256,1,1) block=(256,1,1) lds={LDS_BYTES}\n"
    s += '.amdgcn_target "amdgcn-amd-amdhsa--gfx950"\n.text\n'
    s += f".globl {KN}\n.p2align 12\n.type {KN},@function\n{KN}:\n" + "\n".join(m) + "\n"
    s += '.section .rodata,"a"\n.p2align 6\n' + kd(KN, 512, 256)
    return s

if __name__ == "__main__":
    kw = {}
    for x in sys.argv[2:]:
        k, v = x.split("="); kw[k] = eval(v)
    open(sys.argv[1], "w").write(whole(**kw))
```

```python
import sys, struct, math, re
from asmlib import *
from collections import deque

KN = "parallel_sum__sliding_block__glu_gated_bilinear__prompt_kernel"
QS = 6176; SLOT = 4 * QS; NS = 6
LDS_BYTES = 163840
TAG_LDS = NS * SLOT + 64
QKV_BASE = 0x2400000
QF_BASE = 0x2C00000; HF_BASE = 0x2C10000; PF_BASE = 0x2C40000
EPOCH_OFF = 0x2D00000
HX_BASE = 0x3000000; HXS = 27648
STAMP_OFF = 0x6000000
WS_BYTES = 268435456
OOB = 0x20000000
GS = 3136; TBASE = 163840 - 20 * GS
TAGC = 0x9E3779B8
def f2u(f): return "0x%08x" % struct.unpack("<I", struct.pack("<f", f))[0]
QC = 18 ** -0.5 * math.log2(math.e)
QG = QC ** 0.5
MF = "v_mfma_f32_16x16x32_bf16"

def gen(D=7, wev=3, stamps=None, rt=False, gap=6, lg_rpx=4, krot=True, normil=True, l2pf=True, pfs=6, pd3=24, ep=(285, 312), mp=(234, 266, 318), ll=(325, 345, 360, 372), trace=None, nraw=0, iwarm=True, pd=30, lead=70, hold=90, pfk=16, lnpre=3, od=40, warmat=1, gupf="U", hold0=40, gu_at=12, dbgout=False, probe=None, probewg=None, x0=5, w0at=13, hopat=(2, 4, 6, 8), xfast=0, odef=6, op=((1, 13), (1, 18)), c3tag=False, e3=(10, None), xrat='T', kvat=(25, 27), fastT=True, forceslow=False, outsc='', tg=1, th=(3, 8, 12), oinl=60, psp=10, poi=(11, 23)):
    a = Asm()
    XS = lnpre * SLOT; NXU = (LDS_BYTES - XS) // 8192
    SX, SG, SU, SD, SWS, SQKV, SO, SDBG, SOUT = 4, 8, 12, 16, 20, 24, 28, 32, 36
    sPF = 3
    sCol = [40, 41, 42, 43, 44]
    sSc = [45, 46, 47]; sKV = [48, 49, 50]
    sTag, sE, sBound, sQst, sQld = 51, 52, 53, 54, 55
    sW, sS, sR = 56, 57, 58
    sPair = [59, 60, 61, 62]; sSing = 63
    sMq, sI = 64, 65
    sOff, sT0, sT1, sT2, sT3 = 66, 67, 68, 69, 70
    sXrow, sPst, sM4 = 71, 72, 73
    sOff2 = 73
    sM4x = 59
    sPC = 74; sHst, sHld = 74, 75
    sC0, sC1, sQcol, sPbase = 76, 77, 78, 79
    sStamp = 80; sPo = [82, 83]
    KA = 84
    sKo = [84, 85, 86, 87, 88]; sKp = [89, 90, 91, 92, 93]; sAo, sAp = 94, 95
    sKr9 = [96, 97, 98]; sKr3 = [99, 100, 101]
    sKo2 = [24, 25, 26, 27]; sKp2 = [99, 100, 101, 77]
    XN = 0; ACC = [144, 176, 208]
    vRd = [240, 241, 242]; vA = [243, 244, 245]; vS = [246, 247, 248]
    q0, q1, q2 = 249, 250, 251
    vT0, vT1, vL16, vLane = 252, 253, 254, 255
    H, HP, HB, FR = 0, 80, 160, 168
    KVS, aQ = 128, 136
    NB = 8; assert D <= 7
    stash = {}
    def st(name, n=1):
        if name not in stash:
            stash[name] = st.next; st.next += n; assert st.next <= 228
        return stash[name]
    st.next = 200; stash['pt'] = 236; stash['stq'] = 228; stash['stq2'] = 229
    XR = 228
    SEL = 238
    stl = []
    def astamp(name):
        if stamps is None or name.split(":")[0] not in stamps: return
        n = len(stl); assert n < 10
        a.i("s_waitcnt lgkmcnt(0)"); a.lg_done = a.lg_issued
        a.i(f"{'s_memrealtime' if rt else 's_memtime'} s[{sStamp}:{sStamp+1}]")
        a.i("s_waitcnt lgkmcnt(0)")
        a.i(f"v_accvgpr_write_b32 a{244+n}, s{sStamp}")
        stl.append(name)
    trl = []; trp = []
    TRS = [44, 80, 0] if (trace and trace[0] < 0) else [46, 80, 0]
    def tr(name):
        if trace is None or not (trace[0] <= tr.stage < trace[1]) or len(trl) >= 64: return
        if len(trp) >= 2:
            n0, p0 = trp.pop(0); a.i(f"v_writelane_b32 v{vLane}, s{p0}, {n0}")
        p = TRS[len(trl) % 3]
        a.i(f"s_memtime s[{p}:{p+1}]")
        trp.append((len(trl), p)); trl.append(name)
    tr.stage = 0
    def srd(d, p, nbytes, back=0):
        if back:
            a.i(f"s_sub_u32 s{d}, s{p}, {back}"); a.i(f"s_subb_u32 s{d+1}, s{p+1}, 0")
        else:
            a.i(f"s_mov_b32 s{d}, s{p}"); a.i(f"s_mov_b32 s{d+1}, s{p+1}")
        a.i(f"s_mov_b32 s{d+2}, {nbytes + back}"); a.i(f"s_mov_b32 s{d+3}, 0x00020000")
    WS = f"s[{SWS}:{SWS+3}]"

    a.i("s_cmp_ge_u32 s2, 256")
    a.i("s_cbranch_scc1 L_end")
    if stamps: a.i("s_memrealtime s[36:37]")
    if trace and trace[0] < 0: a.i("s_memtime s[36:37]")
    a.i(f"s_load_dwordx16 s[{KA}:{KA+15}], s[0:1], 0")
    a.i(f"s_load_dwordx4 s[80:83], s[0:1], 64")
    a.i(f"s_getpc_b64 s[{sPC}:{sPC+1}]")
    a.i(f"s_lshr_b32 s{sT0}, s2, 3")
    a.i(f"s_lshl_b32 s{sT0}, s{sT0}, 12")
    a.i(f"v_lshlrev_b32 v{vT0}, 4, v0")
    a.i(f"v_add_u32 v{vT0}, s{sT0}, v{vT0}")
    a.i(f"v_min_u32 v{vT0}, CODE_LAST, v{vT0}")
    a.vm(f"global_load_dwordx4 a[{HP+76}:{HP+79}], v{vT0}, s[{sPC}:{sPC+1}]")
    a.i(f"v_lshrrev_b32 v{vT1}, 6, v0")
    a.i(f"v_and_b32 v{vLane}, 63, v0")
    a.i(f"v_readfirstlane_b32 s{sW}, v{vT1}")
    lg = lg_rpx; nsl = 32 >> lg
    a.i(f"s_and_b32 s{sR}, s2, {(16 >> lg) - 1}"); a.i(f"s_lshl_b32 s{sR}, s{sR}, {lg}")
    a.i(f"s_lshr_b32 s{sT0}, s2, {8 - lg}"); a.i(f"s_add_u32 s{sR}, s{sR}, s{sT0}")
    a.i(f"s_bfe_u32 s{sS}, s2, {hex(((lg - 1) << 16) | (4 - lg))}"); a.i(f"s_lshl_b32 s{sS}, s{sS}, {5 - lg}")
    a.i(f"s_bfe_u32 s{sT0}, s2, {hex(((5 - lg) << 16) | 3)}"); a.i(f"s_add_u32 s{sS}, s{sS}, s{sT0}")
    sRot = sT3
    if krot:
        a.i(f"s_lshr_b32 s{sT0}, s{sR}, 2"); a.i(f"s_add_u32 s{sT0}, s{sT0}, s{sS}")
        a.i(f"s_mul_hi_u32 s{sT1}, s{sT0}, 0x55555556"); a.i(f"s_mul_i32 s{sT1}, s{sT1}, 3"); a.i(f"s_sub_u32 s{sRot}, s{sT0}, s{sT1}")
    else: a.i(f"s_mov_b32 s{sRot}, 0")
    sRk = [45, 46, 47]
    for stg in range(3):
        a.i(f"s_add_u32 s{sRk[stg]}, s{sRot}, {stg}")
        a.i(f"s_cmp_ge_u32 s{sRk[stg]}, 3"); a.i(f"s_cselect_b32 s{sT0}, 3, 0"); a.i(f"s_sub_u32 s{sRk[stg]}, s{sRk[stg]}, s{sT0}")
    QACC = 144; D2 = 200
    vX = [228, 229, 230, 231]; vXr = [232, 233]
    S1 = [234, 235]; S2 = [236, 237]; vCs = 238
    t0, t1, t2, t3 = 144, 145, 146, 147
    ONES = 128
    a.i(f"v_lshrrev_b32 v{t0}, 3, v{vLane}")
    a.i(f"v_and_b32 v{t1}, 7, v{vLane}")
    for j in range(2):
        a.i(f"v_add_u32 v{t2}, {8*j}, v{t0}")
        a.i(f"v_bfe_u32 v{t3}, v{t2}, 1, 3")
        a.i(f"v_xor_b32 v{t3}, v{t3}, v{t1}")
        a.i(f"v_mul_u32_u24 v{t2}, 1152, v{t2}")
        a.i(f"v_lshl_add_u32 v{vX[j]}, v{t3}, 4, v{t2}")
        if j: a.i(f"v_subrev_u32 v{vX[j]}, {1024*j}, v{vX[j]}")
    a.i(f"s_lshl_b32 s{sXrow}, s{sR}, 2")
    a.i(f"s_add_u32 s{sXrow}, s{sXrow}, s{sW}")
    a.i(f"s_mul_i32 s{sXrow}, s{sXrow}, {32*1152}")
    sXk = [40, 41, 42]
    for stg in range(3):
        a.i(f"s_mul_i32 s{sXk[stg]}, s{sRk[stg]}, 384"); a.i(f"s_add_u32 s{sXk[stg]}, s{sXk[stg]}, s{sXrow}")
    a.i(f"s_mul_i32 s{sM4}, s{sW}, {2048*NXU}")
    a.i("s_waitcnt lgkmcnt(0)")
    if stamps: a.i("v_accvgpr_write_b32 a254, s36")
    if trace and trace[0] < 0: a.i("s_mov_b32 s53, s36"); a.i("s_memtime s[54:55]")
    srd(SX, KA+0, 2048*1152)
    xtok = {}
    def xdma_items(n):
        t, ch = n // 9, n % 9
        o = [("s", f"s_add_u32 m0, s{sM4}, {XS + 2048*(n % NXU)}"), ("s", f"s_add_u32 s{sOff}, s{sXk[ch//3]}, {128*(ch%3) + 16*1152*t}")]
        return o + [("m", f"buffer_load_dwordx4 v{vX[j]}, s[{SX}:{SX+3}], s{sOff} offen offset:{1024*j} lds") for j in range(2)]
    dma_tok = {}
    def emit_dma_item(k, it):
        if it[0] == "m": dma_tok[k] = a.vm(it[1])
        elif it[0] == "d": a.ds(it[1])
        elif it[0] == "h": pass
        else: a.i(it[1])
    def xdma(ch):
        for it in xdma_items(ch): emit_dma_item(("x", ch), it)
    for n in range(x0): xdma(n)
    srd(SQKV, KA+2, 576*3456); srd(SO, KA+4, 576*1152, back=2048)
    srd(SG, KA+8, 576*9216); srd(SU, KA+10, 576*9216); srd(SD, KA+12, 4608*1152, back=2048)
    srd(SOUT, KA+14, 2048*1152)
    srd(SDBG, 80, 256); srd(SWS, 82, WS_BYTES)
    a.i(f"s_or_b32 s{sT0}, s2, s{sW}")
    a.i("s_cbranch_scc1 L_noep")
    a.i(f"s_add_u32 s82, s82, {EPOCH_OFF}"); a.i("s_addc_u32 s83, s83, 0")
    a.i(f"s_load_dword s{sE}, s[82:83], 0")
    a.label("L_noep")
    astamp("P:start")
    vn, vq, rho, tt, pc = 148, 149, 150, 151, 152
    a.i(f"v_and_b32 v{vn}, 15, v{vLane}"); a.i(f"v_lshrrev_b32 v{vq}, 4, v{vLane}")
    a.i(f"v_bfe_u32 v{rho}, v{vLane}, 2, 3"); a.i(f"v_lshrrev_b32 v{tt}, 5, v{vLane}")
    a.i(f"v_and_b32 v{pc}, 3, v{vLane}"); a.i(f"v_lshlrev_b32 v{pc}, 4, v{pc}")
    a.i(f"v_lshlrev_b32 v{vL16}, 4, v{vLane}")
    a.i(f"v_lshrrev_b32 v{t1}, 1, v{vn}"); a.i(f"v_xor_b32 v{t1}, v{t1}, v{vq}")
    a.i(f"v_lshlrev_b32 v{t0}, 7, v{vn}")
    a.i(f"s_add_u32 s{sT0}, s{sM4}, {XS}"); a.i(f"v_add_u32 v{t0}, s{sT0}, v{t0}")
    a.i(f"v_lshl_add_u32 v{vXr[0]}, v{t1}, 4, v{t0}")
    a.i(f"v_xor_b32 v{t1}, 4, v{t1}"); a.i(f"v_lshl_add_u32 v{vXr[1]}, v{t1}, 4, v{t0}")
    for stg in range(3):
        a.i(f"s_mul_i32 s{sKr9[stg]}, s{sRk[stg]}, {192*9216}"); a.i(f"s_mul_i32 s{sKr3[stg]}, s{sRk[stg]}, {192*3456}")
    a.i(f"s_mul_i32 s{sQcol}, s{sS}, 216")
    for stg in range(3): a.i(f"s_add_u32 s{sKr3[stg]}, s{sKr3[stg]}, s{sQcol}")
    a.i(f"s_mul_i32 s{sMq}, s{sW}, {QS}")
    a.i(f"s_lshr_b32 s{sI}, s{sS}, 1")
    a.i(f"s_lshl_b32 s{sT0}, s{sW}, 3"); a.i(f"v_add_u32 v{t2}, s{sT0}, v{rho}")
    a.i(f"v_lshl_add_u32 v{t3}, v{tt}, 6, v{pc}")
    a.i(f"v_mul_u32_u24 v{vS[0]}, 3456, v{t2}"); a.i(f"v_add_u32 v{vS[0]}, v{vS[0]}, v{t3}")
    a.i(f"v_add_u32 v{vS[1]}, {32*3456-1024}, v{vS[0]}"); a.i(f"v_add_u32 v{vS[2]}, {64*3456-2048}, v{vS[0]}")
    a.i(f"v_mul_u32_u24 v{t0}, 9216, v{t2}"); a.i(f"v_add_u32 v{vA[0]}, v{t0}, v{t3}")
    a.i(f"v_add_u32 v{vA[1]}, {32*9216-1024}, v{vA[0]}"); a.i(f"v_add_u32 v{vA[2]}, {64*9216-2048}, v{vA[0]}")
    def su_cas():
        a.i(f"s_or_b32 s{sT0}, s2, s{sW}")
        a.i("s_cbranch_scc1 L_nocas")
        a.i("s_waitcnt lgkmcnt(0)")
        a.i(f"s_add_u32 s{sE}, s{sE}, {TAGC}"); a.i(f"s_or_b32 s{sE}, s{sE}, 1")
        a.i(f"v_mov_b32 v{vCs}, s{sE}"); a.i(f"v_mov_b32 v{vCs+1}, {EPOCH_OFF}")
        a.i(f"buffer_store_dword v{vCs}, off, s[{SDBG}:{SDBG+3}], 0 sc1")
        a.i(f"buffer_store_dword v{vCs}, v{vCs+1}, {WS}, 0 offen sc1")
        a.label("L_nocas")

    def su_early():
        a.i(f"v_bfe_u32 v{t0}, v{vLane}, 2, 2"); a.i(f"v_lshlrev_b32 v{t1}, 6, v{t0}")
        a.i(f"v_and_b32 v{t0}, 3, v{vLane}"); a.i(f"v_lshl_add_u32 v{t1}, v{t0}, 3, v{t1}")
        a.i(f"v_mul_u32_u24 v{t0}, {QS}, v{vq}"); a.i(f"v_add_u32 v{vRd[0]}, v{t0}, v{t1}")
        a.i(f"v_add_u32 v{vRd[1]}, {2*SLOT}, v{vRd[0]}"); a.i(f"v_add_u32 v{vRd[2]}, {4*SLOT}, v{vRd[0]}")
        a.i(f"s_mul_i32 s{sT1}, s{sS}, 576"); a.i(f"s_and_b32 s{sT2}, s{sS}, 1")
        a.i(f"s_lshl_b32 s{sT3}, s{sT2}, 6"); a.i(f"s_add_u32 s{sT3}, s{sT3}, s{sT1}")
        for j in range(4):
            a.i(f"s_add_u32 s{sPair[j]}, s{sR}, {j}"); a.i(f"s_and_b32 s{sPair[j]}, s{sPair[j]}, 3")
            a.i(f"s_lshl_b32 s{sPair[j]}, s{sPair[j]}, 7"); a.i(f"s_add_u32 s{sPair[j]}, s{sPair[j]}, s{sT3}")
        a.i(f"s_xor_b32 s{sT2}, s{sT2}, 1"); a.i(f"s_lshl_b32 s{sT2}, s{sT2}, 9"); a.i(f"s_add_u32 s{sSing}, s{sT2}, s{sT1}")
        a.i(f"s_mov_b32 s{sBound}, 0x40000")
    U0, U1, U2, U3 = 45, 52, 78, 73
    MK = "s[40:41]"
    def d_q(tb):
        x0_, x1, x2, n, q = tb, tb+1, tb+2, tb+3, tb+4
        return [f"v_bfe_u32 v{n}, v{vL16}, 4, 4", f"v_lshrrev_b32 v{q}, 8, v{vL16}",
            f"s_lshl_b32 s{U0}, s{sW}, 8", f"v_lshlrev_b32 v{x0_}, 3, v{n}", f"v_add_u32 v{x0_}, s{U0}, v{x0_}",
            f"v_lshl_add_u32 v{x1}, v{q}, 10, v{x0_}", f"v_accvgpr_write_b32 a{st('stq')}, v{x1}",
            f"v_add_u32 v{x2}, 1, v{q}", f"v_lshrrev_b32 v{x2}, 2, v{x2}", f"v_lshl_add_u32 v{x1}, v{x2}, 29, v{x1}",
            f"v_accvgpr_write_b32 a{st('stq2')}, v{x1}",
            f"s_mul_i32 s{U0}, s{sR}, 432", f"s_mul_i32 s{U1}, s{sS}, 27", f"s_add_u32 s{U1}, s{U1}, s{U0}",
            f"s_lshl_b32 s{U1}, s{U1}, 10", f"s_add_u32 s{sQst}, s{U1}, {QKV_BASE}",
            f"v_lshl_add_u32 v{x1}, v{q}, 11, v{x0_}", f"v_accvgpr_write_b32 a{st('qA')}, v{x1}",
            f"v_lshl_add_u32 v{x1}, v{q}, 1, 5", f"v_cmp_gt_u32 {MK}, 2, v{q}", "?s_nop 1",
            f"v_cndmask_b32 v{x1}, 4, v{x1}, {MK}", f"v_lshl_add_u32 v{x1}, v{x1}, 10, v{x0_}", f"v_accvgpr_write_b32 a{st('qB')}, v{x1}",
            f"s_mul_i32 s{U1}, s{sS}, 9", f"s_add_u32 s{U1}, s{U1}, s{U0}", f"s_lshl_b32 s{U1}, s{U1}, 10", f"s_add_u32 s{sQld}, s{U1}, {QKV_BASE}",
            f"s_add_u32 s{U2}, s{sW}, 144", f"s_lshl_b32 s{U2}, s{U2}, 10", f"s_add_u32 s{sKV[2]}, s{U2}, s{sQld}",
            f"s_sub_u32 s{sKV[0]}, s{sKV[2]}, {2*432*1024}", f"s_cmp_ge_u32 s{sR}, 2", f"s_cselect_b32 s{sKV[0]}, s{sKV[0]}, {OOB}",
            f"s_sub_u32 s{sKV[1]}, s{sKV[2]}, {432*1024 + 1024}", f"s_cmp_ge_u32 s{sR}, 1", f"s_cselect_b32 s{sKV[1]}, s{sKV[1]}, {OOB}",
            f"s_sub_u32 s{sKV[2]}, s{sKV[2]}, 2048"]
    def d_h(tb):
        x2 = tb
        return [f"s_and_b32 s{U2}, s{sS}, 1", f"s_lshl_b32 s{U1}, s{sR}, 1", f"s_add_u32 s{U1}, s{U1}, s{U2}",
            f"s_mul_i32 s{sPF}, s{U1}, 20", f"s_add_u32 s{sPF}, s{sPF}, s{sW}", f"s_lshl_b32 s{sPF}, s{sPF}, 6", f"s_add_u32 s{sPF}, s{sPF}, {PF_BASE}",
            f"s_lshl_b32 s{U1}, s{sR}, 4", f"s_add_u32 s{U1}, s{U1}, s{sS}", f"s_lshl_b32 s{U3}, s{U1}, 2", f"s_add_u32 s{U3}, s{U3}, s{sW}",
            f"s_mul_i32 s{sHst}, s{U3}, {HXS}", f"s_add_u32 s{sHst}, s{sHst}, {HX_BASE}",
            f"s_lshl_b32 s{U1}, s{U3}, 6", f"s_add_u32 s{U1}, s{U1}, {HF_BASE}", f"v_accvgpr_write_b32 a{st('hfo')}, s{U1}",
            f"v_min_u32 v{x2}, 64, v{vL16}", f"v_lshlrev_b32 v{x2}, 4, v{x2}", f"v_add_u32 v{x2}, s{sPF}, v{x2}",
            f"v_writelane_b32 v{x2}, s{U1}, 7", f"v_accvgpr_write_b32 a{st('pt')}, v{x2}",
            f"s_xor_b32 s{U1}, s{U1}, 256", f"v_accvgpr_write_b32 a{st('hfp')}, s{U1}",
            f"s_xor_b32 s{U3}, s{U3}, 4", f"s_mul_i32 s{sHld}, s{U3}, {HXS}", f"s_add_u32 s{sHld}, s{sHld}, {HX_BASE}",
            f"s_and_b32 s{U0}, s{sI}, 1", f"s_xor_b32 s{U0}, s{U0}, 1",
            f"s_mul_i32 s{U3}, s{U2}, {640 << 5}", f"s_sub_u32 s{U1}, s{sHld}, s{U3}",
            f"s_lshl_b32 s{U3}, s{U0}, 11", f"s_add_u32 s{sPo[0]}, s{U1}, s{U3}", f"s_xor_b32 s{U3}, s{U3}, 0x800", f"s_add_u32 s{sPo[1]}, s{U1}, s{U3}",
            f"s_mul_i32 s{U3}, s{sI}, {8*HXS}", f"s_sub_u32 s{sPbase}, s{sHld}, s{U3}"]
    def d_flags(tb):
        m, d, x = tb, tb+1, tb+2
        return [f"v_bfe_u32 v{m}, v{vL16}, 6, 2", f"v_min_u32 v{m}, 2, v{m}", f"v_bfe_u32 v{d}, v{vL16}, 4, 2", f"v_min_u32 v{d}, 2, v{d}",
            f"v_min_u32 v{x}, 1, v{m}", f"v_mul_u32_u24 v{d}, v{d}, v{x}", f"v_sub_u32 v{d}, s{sR}, v{d}", f"v_max_i32 v{d}, 0, v{d}",
            f"v_lshl_add_u32 v{m}, v{m}, 4, s{sS}", f"v_mul_u32_u24 v{m}, 0x5556, v{m}", f"v_lshrrev_b32 v{m}, 16, v{m}",
            f"v_lshl_add_u32 v{m}, v{d}, 4, v{m}", f"v_lshlrev_b32 v{m}, 7, v{m}", f"v_add_u32 v{m}, {QF_BASE}, v{m}",
            f"v_accvgpr_write_b32 a{st('qf')}, v{m}"]
    def d_B(tb):
        x0_, x1, x2, x3, pc_, tt_ = tb, tb+1, tb+2, tb+3, tb+4, tb+5
        L = [f"v_and_b32 v{pc_}, 48, v{vL16}", f"v_lshrrev_b32 v{tt_}, 9, v{vL16}",
            f"v_mul_u32_u24 v{x1}, {32*9216 - 64}, v{tt_}", f"v_add_u32 v{x1}, v{x1}, v{vA[0]}"]
        for i in range(3):
            if i: L.append(f"v_add_u32 v{x1}, {64*9216-1024}, v{x1}")
            L.append(f"v_accvgpr_write_b32 a{st('sing',3)+i}, v{x1}")
        L += [f"s_and_b32 s{U0}, s{sI}, 1", f"s_xor_b32 s{U0}, s{U0}, 1",
            f"v_xor_b32 v{x3}, s{U0}, v{tt_}", f"v_lshlrev_b32 v{x3}, 6, v{x3}",
            f"v_bfe_u32 v{x0_}, v{vL16}, 6, 2", f"v_bfe_u32 v{x1}, v{vL16}, 8, 1",
            f"v_xor_b32 v{x2}, s{sS}, v{x1}", f"v_mul_u32_u24 v{x2}, 36, v{x2}", f"v_add3_u32 v{x2}, v{x2}, v{x0_}, 16",
            f"v_mul_u32_u24 v{x2}, 1152, v{x2}", f"v_add_u32 v{x2}, v{x2}, v{pc_}", f"v_accvgpr_write_b32 a{st('Obm')}, v{x2}",
            f"v_add_u32 v{x2}, v{x2}, v{x3}", f"v_accvgpr_write_b32 a{st('Ob')}, v{x2}",
            f"s_lshl_b32 s{U1}, s{sW}, 2", f"v_add_u32 v{x0_}, s{U1}, v{x0_}"]
        for name, hi in (("D", 16), ("Oa", 20)):
            L += [f"v_mad_u32_u24 v{x2}, v{x1}, {hi}, v{x0_}", f"v_mul_u32_u24 v{x2}, 1152, v{x2}", f"v_add_u32 v{x2}, v{x2}, v{pc_}",
                  f"v_accvgpr_write_b32 a{st(name+'m')}, v{x2}", f"v_add_u32 v{x2}, v{x2}, v{x3}", f"v_accvgpr_write_b32 a{st(name)}, v{x2}"]
        return L
    def d_rows(tb):
        L = [f"s_mul_i32 s{sKo[j]}, s{sPair[j]}, 576" for j in range(4)] + [f"s_mul_i32 s{sKo[4]}, s{sSing}, 576"]
        L += [f"s_and_b32 s{U0}, s{sS}, 1", f"s_lshl_b32 s{U0}, s{U0}, 1", f"s_sub_u32 s{U0}, 1, s{U0}",
              f"s_mul_i32 s{U1}, s{U0}, {320*1152}"]
        L += [f"s_add_u32 s{sKp[j]}, s{sKo[j]}, s{U1}" for j in range(4)]
        L += [f"s_mul_i32 s{U1}, s{U0}, {32*1152}", f"s_add_u32 s{sKp[4]}, s{sKo[4]}, s{U1}",
              f"s_mul_i32 s{sAo}, s{sS}, {36*1152}", f"s_mul_i32 s{U1}, s{U0}, {36*1152}", f"s_add_u32 s{sAp}, s{sAo}, s{U1}"]
        L += [f"s_add_u32 s{sKo2[j]}, s{sKo[j]}, {32*1152}" for j in range(4)] + [f"s_add_u32 s{sKp2[j]}, s{sKp[j]}, {32*1152}" for j in range(4)]
        return L
    def d_T1(tb):
        x0_, x1, x2, n, q = tb, tb+1, tb+2, tb+3, tb+4
        return [f"v_bfe_u32 v{n}, v{vL16}, 4, 4", f"v_lshrrev_b32 v{q}, 8, v{vL16}",
            f"s_lshl_b32 s{U0}, s{sW}, 8", f"s_add_u32 s{U0}, s{U0}, {TBASE}",
            f"v_lshlrev_b32 v{x0_}, 3, v{n}", f"v_add_u32 v{x0_}, s{U0}, v{x0_}",
            f"v_mul_u32_u24 v{x1}, {2*GS}, v{q}", f"v_add_u32 v{x1}, v{x1}, v{x0_}", f"v_accvgpr_write_b32 a{st('KA')}, v{x1}",
            f"v_lshl_add_u32 v{x1}, v{q}, 1, 6", f"v_cmp_gt_u32 {MK}, 2, v{q}", "?s_nop 1", f"v_cndmask_b32 v{x1}, 4, v{x1}, {MK}",
            f"v_mul_u32_u24 v{x1}, {GS}, v{x1}", f"v_add_u32 v{x1}, v{x1}, v{x0_}", f"v_accvgpr_write_b32 a{st('KB')}, v{x1}",
            f"v_lshrrev_b32 v{x0_}, 6, v{vL16}", f"v_lshlrev_b32 v{x0_}, 3, v{x0_}", f"s_add_u32 s{U0}, s{U0}, {10*GS}", f"v_add_u32 v{x0_}, s{U0}, v{x0_}",
            f"v_bfe_u32 v{x1}, v{vL16}, 4, 2", f"v_mul_u32_u24 v{x2}, {GS}, v{x1}", f"v_add_u32 v{x2}, v{x2}, v{x0_}", f"v_accvgpr_write_b32 a{st('V0')}, v{x2}",
            f"v_min_u32 v{x1}, 1, v{x1}", f"v_add_u32 v{x1}, 4, v{x1}", f"v_mul_u32_u24 v{x2}, {GS}, v{x1}", f"v_add_u32 v{x2}, v{x2}, v{x0_}",
            f"v_accvgpr_write_b32 a{st('V1')}, v{x2}",
            f"v_mul_u32_u24 v{x0_}, 1152, v{n}", f"v_lshl_add_u32 v{x0_}, v{q}, 3, v{x0_}", f"v_accvgpr_write_b32 a{st('ov')}, v{x0_}"]
    def d_T2(tb):
        x0_, x1, x2, x3 = tb, tb+1, tb+2, tb+3
        L = [f"v_bfe_u32 v{x1}, v{vL16}, 4, 4", f"v_lshrrev_b32 v{x0_}, 8, v{vL16}", f"v_lshlrev_b32 v{x0_}, 2, v{x0_}", f"v_sub_u32 v{x0_}, v{x1}, v{x0_}",
             f"v_mov_b32 v{x1}, {f2u(-1e30)}"]
        for r in range(4):
            L += [f"v_cmp_le_i32 {MK}, {r}, v{x0_}", "?s_nop 1", f"v_cndmask_b32 v{x2}, 0, v{x1}, {MK}", f"v_accvgpr_write_b32 a{st('mf',4)+r}, v{x2}",
                  f"v_xor_b32 v{x2}, v{x2}, v{x1}", f"v_accvgpr_write_b32 a{st('ml',4)+r}, v{x2}"]
        L += [f"v_and_b32 v{x2}, 1, v{x0_}", f"v_lshlrev_b32 v{x2}, 4, v{x2}", f"v_mov_b32 v{x1}, 0x3f80", f"v_lshlrev_b32 v{x1}, v{x2}, v{x1}",
              f"v_ashrrev_i32 v{x0_}, 1, v{x0_}"]
        for hf in range(2):
            L += [f"v_cmp_eq_u32 {MK}, {hf}, v{x0_}", "?s_nop 1", f"v_cndmask_b32 v{x3}, 0, v{x1}, {MK}", f"v_accvgpr_write_b32 a{SEL+2+hf}, v{x3}"]
        L += [f"v_accvgpr_write_b32 a{SEL+r}, 0" for r in (0, 1, 4, 5)]
        return L
    def d_col(tb):
        L = [f"s_and_b32 s{U2}, s{sS}, 1", f"s_lshl_b32 s{U0}, s{U2}, 6", f"s_add_u32 s{sCol[0]}, s{U0}, 512",
             f"s_mul_i32 s{U2}, s{U2}, 640", f"s_lshr_b32 s{U1}, s{sI}, 1"]
        for p in range(1, 5):
            L += [f"s_xor_b32 s{U0}, s{U1}, {4-p}", f"s_lshl_b32 s{U0}, s{U0}, 7", f"s_add_u32 s{sCol[p]}, s{U0}, s{U2}"]
        return L

    stages = {}
    post = {}
    def X(S, t): return f"v[{XN+8*S+4*t}:{XN+8*S+4*t+3}]"
    def slot_of(k):
        if k < 28: return k % NS
        if k < 33: return k % 4
        if k in (52, 53): k = 105 - k
        return [1, 2, 3, 0, 4, 5][(k - 36) % 6]
    def grp(k, g, srdreg, soffs, vregs):
        slot = slot_of(k) * SLOT
        out = [("s", f"s_add_u32 m0, s{sMq}, {slot + 3072*g}")]
        out += [("s", t) for t in soffs]
        for i, v in enumerate(vregs):
            out.append(("m", f"buffer_load_dwordx4 v{v}, s[{srdreg}:{srdreg+3}], s{sOff} offen offset:{1024*i} lds"))
        return out
    k = 0
    for stg in range(6):
        dma = []
        for P in range(2):
            dma += grp(k, P, SQKV, [f"s_add_u32 s{sOff}, s{sKr3[stg//2]}, {(stg%2)*96*3456 + 128*P}"], vS)
        fr = []
        for uu in range(3):
            S = 3*stg + uu
            for tau in range(7):
                P = tau // 4; off = 1024*(3*P + uu) + 512*((tau % 4)//2) + 32*(tau % 2)
                fr.append((off, QACC + 8*tau, X(S, 0), X(S, 1), S == 0, ("Q", S, tau)) + ((D2 + 4*tau,) if stg < nraw else ()))
        stages[k] = dict(dma=dma, fr=fr); k += 1
    rot = 2
    for j in range(4):
        ag = ACC[rot % 3]; au = ACC[(rot + 1) % 3]; rot += 2
        for (srdreg, acc) in ((SG, ag), (SU, au)):
            for stg in range(3):
                dma = grp(k, 0, srdreg, [f"s_add_u32 s{sOff}, s{sPair[j]}, s{sKr9[stg]}"], vA)
                dma += grp(k, 1, srdreg, [f"s_add_u32 s{sOff}, s{sOff}, {96*9216}"], vA)
                fr = []
                for uu in range(6):
                    S = 6*stg + uu
                    for tau in range(4):
                        fr.append((1024*uu + 512*(tau//2) + 32*(tau%2), acc + 8*tau, X(S, 0), X(S, 1), S == 0, None))
                stages[k] = dict(dma=dma, fr=fr); k += 1
            if srdreg == SG: post[k-1] = ("g", [ag], ag, 4)
        post[k-1] = ("h", [ag, au], [(ag, au, 2*j), (ag+16, au+16, 2*j+1)])
    ag = ACC[rot % 3]
    for stg in range(3):
        dma = grp(k, 0, SG, [f"s_add_u32 s{sOff}, s{sSing}, s{sKr9[stg]}"], vS) + [x if x[1] != "s_nop 0" else ("n", "s_nop 0") for x in grp(k, 1, SU, ["s_nop 0"], vS)]
        if stg == 0: dma = [("v", f"v_accvgpr_read_b32 v{vS[i]}, a{st('sing',3)+i}") for i in range(3)] + dma
        fr = []
        for uu in range(6):
            S = 6*stg + uu
            for m in range(2):
                for c in range(2):
                    fr.append((3072*m + 1024*(uu//2) + 512*(uu%2) + 32*c, ag + 16*m + 8*c, X(S, 0), X(S, 1), S == 0, None))
        stages[k] = dict(dma=dma, fr=fr); k += 1
    post[k-1] = ("h", [ag], [(ag, ag+16, 8)])
    assert k == 33
    KB0 = 36
    ent = [(p, ks) for ks in range(19) for p in (1, 0)] + [(2, ks) for ks in range(odef)] + [(p, ks) for ks in (19, 20) for p in (1, 0)]
    ent += [(2, ks) for ks in range(odef, 21)]
    for p in (3, 4): ent += [(p, ks) for ks in range(21)]
    BACC = {0: 144, 1: 176, 2: 208, 3: 144, 4: 176}
    def Hop(ks, t):
        if ks < 10: b = H + 8*ks + 4*t
        elif ks < 20: b = HP + 8*(ks-10) + 4*t
        else: b = HB + 4*t
        return f"a[{b}:{b+3}]"
    nBst = (len(ent) + 5) // 6
    late = {}
    bpost = {}
    for sb in range(nBst):
        k = KB0 + sb; slot = slot_of(k) * SLOT
        dma = []; fr = []
        for u, (p, ks) in enumerate(ent[6*sb:6*sb+6]):
            i = u % 3
            if i == 0: dma.append(("s", f"s_add_u32 m0, s{sMq}, {slot + 3072*(u//3)}"))
            kk = ks % 10
            if ks == 20:
                dma.append(("v", f"v_accvgpr_read_b32 v{vT1}, a{st('Obm' if p == 0 else 'Ob')}"))
                dma.append(("v", f"v_add_u32 v{vT1}, {2048-1024*i}, v{vT1}"))
                dma.append(("m", f"buffer_load_dwordx4 v{vT1}, s[{SO}:{SO+3}], s{sCol[p]} offen offset:{1024*i} lds"))
            elif kk == 9:
                dma.append(("v", f"v_accvgpr_read_b32 v{vT1}, a{st('Oam' if p == 0 else 'Oa')}"))
                dma.append(("v", f"v_add_u32 v{vT1}, {2048-1024*i}, v{vT1}"))
                dma.append(("s", f"s_add_u32 s{sOff}, s{sAo if ks < 10 else sAp}, s{sCol[p]}"))
                dma.append(("m", f"buffer_load_dwordx4 v{vT1}, s[{SO}:{SO+3}], s{sOff} offen offset:{1024*i} lds"))
            else:
                if ks == 0:
                    regs = vA if p == 0 else vS
                    dma.append(("v", f"v_accvgpr_read_b32 v{regs[2]}, a{st('Dm' if p == 0 else 'D')}"))
                    dma.append(("v", f"v_add_u32 v{regs[2]}, s{sCol[p]}, v{regs[2]}"))
                    dma += [("v", f"v_add_u32 v{regs[j]}, {2048-1024*j}, v{regs[2]}") for j in range(2)]
                elif i == 0: dma.append(("n", "s_nop 0"))
                tab = ((sKo, sKo2) if ks < 10 else (sKp, sKp2))[kk % 2]
                v = (vA if p == 0 else vS)[i]
                dma.append(("m", f"buffer_load_dwordx4 v{v}, s[{SD}:{SD+3}], s{tab[kk//2]} offen offset:{1024*i} lds"))
            for tau in range(2 if p == 0 else 4):
                f = (1024*u + 512*(tau//2) + 32*(tau%2), BACC[p] + 8*tau, Hop(ks, 0), Hop(ks, 1), ks == 0, ("B", p, ks, tau))
                if p == 4 or (p == 3 and tau >= 2): late.setdefault((p, tau), {}).setdefault(k, []).append((k,) + f)
                else: fr.append(f)
        stages[k] = dict(dma=dma, fr=fr)
    KEND = KB0 + nBst

    def emit_dma(k):
        for it in stages[k]["dma"]: emit_dma_item(k, it)

    fill = deque(); fill2 = deque(); fill3 = deque(); dmaq = deque(); extq = []; spin_blocks = []; pubs = []; toks = {}
    hooks = {}; ihooks = {}; ipost = {}
    def emit_fill(it):
        kind, txt = it[1], it[2]
        if kind == "m": return a.vm(txt)
        if kind == "d": return a.ds(txt)
        if kind == "f": return txt()
        a.i(txt)
    def F(nb, kind, txt, sets=(), space=0): fill.append((nb, kind, txt, list(sets), space))
    def Fm(nb, name, txt, sets=(), space=0):
        def fn(): toks[name] = a.vm(txt)
        fill.append((nb, "f", fn, list(sets), space))
    def defer(L, accset):
        i = 0
        while i < len(L):
            g = [L[i]]; i += 1
            if g[0].startswith("s_cmp") or (i < len(L) and L[i].startswith("?")): g.append(L[i]); i += 1
            fill3.append((g, accset))
    def emit3(drain=False):
        g, _ = fill3.popleft()
        for t in g:
            if t.startswith("?"):
                if drain: a.i(t[1:])
            else: a.i(t)
    def G(nb, kind, txt, space=0): fill2.append((nb, kind, txt, [], space))
    def Gm(nb, name, txt, space=0):
        def fn(): toks[name] = a.vm(txt)
        fill2.append((nb, "f", fn, [], space))
    def poll_check(name, va, vf, soff="0", offs=0):
        a.wait(vm=toks[name])
        a.i(f"v_cmp_ne_u32 vcc, s{sTag}, v{vf}")
        a.i("s_nop 0")
        a.i("s_cmp_lg_u64 vcc, 0")
        a.i(f"s_cbranch_scc1 L_spin_{name}")
        a.label(f"L_back_{name}")
        spin_blocks.append((name, va, vf, soff, offs))
    def stream(frs, dma_after, flush=True, gap=gap, tailnop=True):
        N = len(frs); first_of = {}
        for i, f in enumerate(frs): first_of.setdefault(f[0], i)
        rd = {}; nextbar = [0]; hold_until = [0]; lastd = [-100]; gpf = 3 if len(frs[0]) > 7 else 2
        def rd_half(i, hf):
            k, off = frs[i][0], frs[i][1]
            o = slot_of(k) * SLOT + off; base = vRd[o // (2*SLOT)]; oo = o % (2*SLOT)
            fb = FR + 4*(i % NB) + 2*hf
            rd[i] = a.ds(f"ds_read_b64_tr_b16 a[{fb}:{fb+1}], v{base} offset:{oo + 256*hf}")
        def pre_read(i, cur):
            k = frs[i][0]
            if first_of[k] == i:
                nfl = 0
                while any(kk == k for kk, _ in dmaq):
                    kk, it = dmaq.popleft(); emit_dma_item(kk, it); nfl += 1
                if nfl: print("late flush", nfl, "at", k, file=sys.stderr)
                tr.stage = k; tr(f"w{k}")
                a.wait(vm=dma_tok[k])
                a.i("s_barrier")
                tr(f"b{k}")
                for p in list(pubs):
                    if p[3] and toks.get(p[0]) is not None and toks[p[0]] <= a.vm_done:
                        p[1](); pubs.remove(p); print("pub", p[0], "at barrier", k, file=sys.stderr)
                for kk in dma_after(k):
                    for it in stages[kk]["dma"]: dmaq.append((kk, it))
                if k in hooks: hooks[k](cur)
                nextbar[0] = first_of.get(k + 1, N + D) - D
                return True
            return False
        for i in range(min(D, N)):
            pre_read(i, 0); rd_half(i, 0); rd_half(i, 1)
        a.wait(lg=rd[1])
        gi = 0; lastm = -100
        def other(i):
            nonlocal lastm
            for p in list(pubs):
                if not p[3] and toks.get(p[0]) is not None:
                    if toks[p[0]] <= a.vm_done or (p[2][0] is not None and i >= p[2][0]):
                        print("pub", p[0], "at frag", i, "stage", frs[i][0], "forced" if toks[p[0]] > a.vm_done else "", file=sys.stderr); a.wait(vm=toks[p[0]]); p[1](); pubs.remove(p); return
                    if p[2][0] is None: p[2][0] = i + p[2][1]
            if dmaq:
                kk, it = dmaq[0]
                ok = True
                if it[0] == "n":
                    dmaq.popleft(); kk, it = dmaq[0]
                if it[0] == "h":
                    dmaq.popleft(); hold_until[0] = gi + it[1]; ok = False
                elif it[0] == "m":
                    if kk == "z": ok = gi - lastm >= 2
                    else:
                        g_eff = gap; urgent = False; cnt = 0
                        for k2, it2 in dmaq:
                            if it2[0] != "m": continue
                            cnt += 1
                            if k2 in first_of:
                                dl = gpf * (first_of[k2] - D) - lead
                                if gi + cnt * gap > dl: g_eff = min(g_eff, max(2, (dl - gi) // cnt)); urgent = True
                        ok = gi - lastd[0] >= g_eff and gi - lastm >= 2 and (gi >= hold_until[0] or urgent)
                if ok:
                    dmaq.popleft(); emit_dma_item(kk, it)
                    if isinstance(it[1], str) and it[1].startswith("s_cmp"):
                        kk, it = dmaq.popleft(); emit_dma_item(kk, it)
                    if it[0] == "m": lastm = gi; lastd[0] = gi
                    return
            for q_ in (fill, fill2):
                if q_ and q_[0][0] <= i and (q_[0][4] == 0 or gi - lastm >= q_[0][4]):
                    it = q_.popleft(); emit_fill(it)
                    if it[4]: lastm = gi
                    return
            if fill3: emit3()
        for i in range(N):
            k, off, acc, b0, b1, first, tag = frs[i][:7]
            if first_of[k] == i: astamp_stage(k)
            if trace == (200, 201) and 24 <= k < 33 and i % 8 == 6: tr.stage = 200; tr(f"a{k}"); tr.stage = k
            if trace == (100, 101) and k >= 36 and i % 8 == 2: tr.stage = 100; tr(f"f{i}"); tr.stage = k
            if i in ihooks: ihooks.pop(i)(i)
            if tag in ihooks: ihooks.pop(tag)(i)
            while extq: dmaq.append(extq.pop(0))
            assert rd[i] <= a.lg_done
            fb = FR + 4*(i % NB)
            if first_of[k] + 1 == i and ("S", k) in ihooks: ihooks.pop(("S", k))(i)
            if first:
                nd = 0
                while any(any((x <= acc < x + 32) if isinstance(x, int) else (x[0] <= acc < x[1]) for x in it[3]) for it in fill):
                    emit_fill(fill.popleft()); nd += 1
                while any(x <= acc < x + 32 for _, x in fill3):
                    emit3(True); nd += 1
                if nd: print("drained", nd, "at stage", k, file=sys.stderr); a.i("s_nop 1")
            for t, b in enumerate((b0, b1)):
                d = f"v[{acc+4*t}:{acc+4*t+3}]"
                a.i(f"{MF} {d}, a[{fb}:{fb+3}], {b}, {'0' if first else d}")
                used = False
                if i + D < N:
                    if t == 0: used = pre_read(i + D, i)
                    rd_half(i + D, t)
                if t == 1 and i + 1 < N and rd[i+1] > a.lg_done:
                    a.wait(lg=rd[min(i+wev, N-1)]); used = True
                if not used: other(i)
                gi += 1
            if len(frs[i]) > 7:
                d = f"v[{frs[i][7]}:{frs[i][7]+3}]"
                a.i(f"{MF} {d}, a[{fb}:{fb+3}], a[{ONES}:{ONES+3}], {'0' if first else d}")
                other(i); other(i); gi += 1
            if tag in bpost: bpost[tag](i + 3)
            if k >= 36 and i in ipost: ipost.pop(i)(i + 3)
            if (i + 1 == N or frs[i+1][0] != k) and k in post: do_post(post.pop(k), i + 3)
        while dmaq:
            kk, it = dmaq.popleft(); emit_dma_item(kk, it)
        if tailnop or fill: a.i("s_nop 7")
        while fill: emit_fill(fill.popleft())
        while fill2: emit_fill(fill2.popleft())
        if fill3: print("fill3 left", len(fill3), file=sys.stderr)
        while fill3: emit3(True)
    def astamp_stage(k):
        if k == 6: astamp("P:qend")
        if 6 <= k < 33 and k % 3 == 0: astamp(f"A:{k}")
        if k < 6: astamp(f"Q:{k}")
        if k >= 36 and k % 2 == 0: astamp(f"B:{k}")
    def pack4(nb, d, e, sets):
        F(nb, "v", f"v_cvt_pk_bf16_f32 v{d}, v{d}, v{d+1}", sets); F(nb, "v", f"v_cvt_pk_bf16_f32 v{d+1}, v{d+2}, v{d+3}", sets)
        F(nb, "v", f"v_cvt_pk_bf16_f32 v{d+2}, v{e}, v{e+1}", sets); F(nb, "v", f"v_cvt_pk_bf16_f32 v{d+3}, v{e+2}, v{e+3}", sets)
    def flag_store(voff_txts, soff, offs=0):
        for t in voff_txts: a.i(t)
        a.i(f"v_mov_b32 v{q1}, s{sTag}")
        a.vm(f"buffer_store_dword v{q1}, v{q0}, {WS}, {soff} offen offset:{offs} sc1")
    def do_post(p, nb):
        if p[0] == "g" or (p[0] == "h" and len(p[2]) == 1):
            g = p[2] if p[0] == "g" else p[2][0][0]
            for tau in range(p[3] if p[0] == "g" else 2):
                for t in range(2):
                    for r in range(4): F(nb, "v", f"v_mul_f32 v{g+8*tau+4*t+r}, v{RS2[t]}, v{g+8*tau+4*t+r}", p[1])
        if p[0] == "h":
            sets = p[1]
            for (g, u_, ks) in p[2]:
                F(nb, "s", f"s_add_u32 s{sPst}, s{sHst}, {2048*ks}", sets)
                for t in range(2):
                    for c in range(2):
                        for r in range(4):
                            o = 8*c + 4*t + r
                            F(nb, "v", f"v_mul_f32 v{g+o}, v{g+o}, v{u_+o}", sets)
                    pack4(nb, g + 4*t, g + 8 + 4*t, sets)
                    for r in range(4):
                        F(nb, "v", f"v_accvgpr_write_b32 a{H+8*ks+4*t+r}, v{g+4*t+r}", sets)
                    Fm(nb, "h1st" if (ks, t) == (3, 1) else "hst", f"buffer_store_dwordx4 v[{g+4*t}:{g+4*t+3}], v{vL16}, {WS}, s{sPst} offen offset:{1024*t} sc1", sets, 3)
            if p[2][-1][2] == 3:
                pubs.append(("h1st", lambda: flag_store([f"v_accvgpr_read_b32 v{q0}, a{st('hfo')}"], "0", 8), [None, 110], False))
        elif p[0] == "q":
            sets = p[1]
            F(nb, "v", f"v_accvgpr_read_b32 v{q0}, a{st('stq')}", sets)
            for tau in range(7):
                sets = [ACC[tau // 4]]
                if tau == 6: F(nb, "v", f"v_accvgpr_read_b32 v{q0}, a{st('stq2')}", sets)
                F(nb, "s", f"s_add_u32 s{sPst}, s{sQst}, {4096*tau}", sets)
                for t in range(2):
                    b = QACC + 8*tau + 4*t
                    for r in range(4): F(nb, "v", f"v_mul_f32 v{b+r}, v{QSC[t]}, v{b+r}", sets)
                    F(nb, "v", f"v_cvt_pk_bf16_f32 v{b}, v{b}, v{b+1}", sets); F(nb, "v", f"v_cvt_pk_bf16_f32 v{b+1}, v{b+2}, v{b+3}", sets)
                    Fm(nb, "qdone" if (tau, t) == (6, 1) else "qst", f"buffer_store_dwordx2 v[{b}:{b+1}], v{q0}, {WS}, s{sPst} offen offset:{128*t} sc1", sets, 3)
            def pubq():
                a.i(f"s_lshl_b32 s{sT0}, s{sR}, 4"); a.i(f"s_add_u32 s{sT0}, s{sT0}, s{sS}")
                a.i(f"s_lshl_b32 s{sT0}, s{sT0}, 7"); a.i(f"s_add_u32 s{sT0}, s{sT0}, {QF_BASE}")
                flag_store([f"v_mov_b32 v{q0}, 0"], f"s{sT0}")
            pubs.append(("qdone", pubq, [None, 0], True))

    def hook7(cur): toks["tag"] = a.vm(f"buffer_load_dword v207, off, s[{SDBG}:{SDBG+3}], 0 sc1")
    hooks[7] = hook7
    def hook10(cur):
        a.wait(vm=toks["tag"])
        a.label("L_tagchk")
        a.i(f"v_readfirstlane_b32 s{sTag}, v207")
        a.i("s_nop 0")
        a.i(f"s_cmp_eq_u32 s{sTag}, 0")
        a.i("s_cbranch_scc1 L_tagspin")
        a.label("L_tagok")
    hooks[10] = hook10
    DUM = f"a[{HP+76}:{HP+79}]"
    nw = 8 << lg_rpx
    def wid_code():
        return [("s", f"s_and_b32 s{sT3}, s{sR}, {(1 << lg_rpx) - 1}"), ("s", f"s_lshl_b32 s{sT3}, s{sT3}, 1"),
                ("s", f"s_and_b32 s{sT1}, s{sS}, 1"), ("s", f"s_add_u32 s{sT3}, s{sT3}, s{sT1}"),
                ("s", f"s_lshl_b32 s{sT3}, s{sT3}, 2"), ("s", f"s_add_u32 s{sT3}, s{sT3}, s{sW}")]
    def pf1_items():
        L = wid_code()
        L += [("v", f"v_accvgpr_read_b32 v{q2}, a{st('pt')}"), ("m", f"buffer_load_dword a{HP+75}, v{q2}, {WS}, 0 offen sc1")]
        if gupf is True: return L
        per = (18 * 4 + nw - 1) // nw
        L += [("s", f"s_lshr_b32 s{sT0}, s{sT3}, 2"), ("s", f"s_and_b32 s{sT1}, s{sSing}, 0xffffff80")]
        for j in range(per):
            L += [("s", f"s_add_u32 s{sT2}, s{sT0}, {j * (nw // 4)}"), ("s", f"s_mul_i32 s{sT2}, s{sT2}, {32*9216}"),
                  ("s", f"s_add_u32 s{sT2}, s{sT2}, s{sT1}"),
                  ("m", f"buffer_load_dwordx4 {DUM}, v{vA[0]}, s[{SG}:{SG+3}], s{sT2} offen"),
                  ("m", f"buffer_load_dwordx4 {DUM}, v{vA[0]}, s[{SU}:{SU+3}], s{sT2} offen")]
        return L
    def xr_items(q0=q0, q1=q1, q2=q2):
        L = [("v", f"v_bfe_u32 v{q1}, v{vL16}, 4, 4"), ("v", f"v_mul_u32_u24 v{q1}, 1152, v{q1}"), ("v", f"v_lshrrev_b32 v{q0}, 8, v{vL16}"),
             ("v", f"v_lshl_add_u32 v{q2}, v{q0}, 3, v{q1}"),
             ("s", f"s_and_b32 s{sT2}, s{sS}, 1"), ("s", f"s_mul_i32 s{sT0}, s{sT2}, 640"), ("s", f"s_lshl_b32 s{sT1}, s{sI}, 6"),
             ("s", f"s_add_u32 s{sT0}, s{sT0}, s{sT1}"), ("s", f"s_add_u32 s{sT0}, s{sT0}, s{sXrow}")]
        for t in range(2):
            if t: L.append(("s", f"s_add_u32 s{sT0}, s{sT0}, {16*1152}"))
            for c in range(2):
                L.append(("m", f"buffer_load_dwordx2 a[{XR+4*t+2*c}:{XR+4*t+2*c+1}], v{q2}, s[{SX}:{SX+3}], s{sT0} offen offset:{32*c}"))
        L += [("v", f"v_and_b32 v{q0}, 1, v{q0}"), ("v", f"v_lshl_add_u32 v{q2}, v{q0}, 5, v{q1}"),
              ("s", f"s_lshr_b32 s{sT0}, s{sI}, 2"), ("s", f"s_mul_i32 s{sT0}, s{sT0}, {16*1152}"), ("s", f"s_and_b32 s{sT1}, s{sI}, 3"),
              ("s", f"s_lshl_b32 s{sT1}, s{sT1}, 3"), ("s", f"s_add_u32 s{sT0}, s{sT0}, s{sT1}"), ("s", f"s_lshl_b32 s{sT2}, s{sT2}, 6"),
              ("s", f"s_add_u32 s{sT0}, s{sT0}, s{sT2}"), ("s", f"s_add_u32 s{sT0}, s{sT0}, s{sXrow}"),
              ("m", f"buffer_load_dwordx2 a[{XR+8}:{XR+9}], v{q2}, s[{SX}:{SX+3}], s{sT0} offen offset:512")]
        return L
    def gu_items():
        assert lg_rpx == 4
        L = [("s", f"s_and_b32 s{sT1}, s{sS}, 1"), ("s", f"s_mul_i32 s{sT2}, s{sI}, 1152"),
             ("s", f"s_mul_i32 s{sT0}, s{sR}, {32*9216}"), ("s", f"s_add_u32 s{sT0}, s{sT0}, s{sT2}"),
             ("s", f"s_lshl_b32 s{sT3}, s{sT1}, 7"), ("s", f"s_add_u32 s{sT0}, s{sT0}, s{sT3}")]
        for j in range(5):
            for sr in ((SU,) if gupf == 'U' else (SG, SU)):
                L.append(("m", f"buffer_load_dwordx4 {DUM}, v{vA[0]}, s[{sr}:{sr+3}], s{sT0} offen offset:{256*j}"))
        L += [("s", f"s_add_u32 s{sT1}, s{sT1}, 16"), ("s", f"s_mul_i32 s{sT1}, s{sT1}, {32*9216}"), ("s", f"s_add_u32 s{sT1}, s{sT1}, s{sT2}"),
              ("s", f"s_min_u32 s{sT3}, s{sR}, 8"), ("s", f"s_lshl_b32 s{sT3}, s{sT3}, 7"), ("s", f"s_add_u32 s{sT1}, s{sT1}, s{sT3}")]
        for sr in ((SU,) if gupf == 'U' else (SG, SU)):
            L.append(("m", f"buffer_load_dwordx4 {DUM}, v{vA[0]}, s[{sr}:{sr+3}], s{sT1} offen"))
        return L
    def pf2_items():
        L = []
        for j in range((81 + nw - 1) // nw):
            L += [("s", f"s_add_u32 s{sT2}, s{sT3}, {j * nw + 2}"), ("s", f"s_min_u32 s{sT2}, s{sT2}, 82"),
                  ("s", f"s_lshl_b32 s{sT2}, s{sT2}, 10"), ("s", f"s_mul_i32 s{sT1}, s{sI}, {72*1152}"), ("s", f"s_add_u32 s{sT2}, s{sT2}, s{sT1}"),
                  ("m", f"buffer_load_dwordx4 {DUM}, v{vL16}, s[{SO}:{SO+3}], s{sT2} offen")]
        per_wave = 576 * 1152 // nw
        L += [("s", f"s_mul_i32 s{sT0}, s{sT3}, {per_wave}"), ("s", f"s_mul_i32 s{sT1}, s{sI}, {576*1152}"),
              ("s", f"s_add_u32 s{sT0}, s{sT0}, s{sT1}"), ("s", f"s_add_u32 s{sT0}, s{sT0}, 2048")]
        for j in range((per_wave + 1023) // 1024):
            if j % 4 == 0 and j: L.append(("s", f"s_add_u32 s{sT0}, s{sT0}, 4096"))
            L.append(("m", f"buffer_load_dwordx4 {DUM}, v{vL16}, s[{SD}:{SD+3}], s{sT0} offen offset:{1024*(j%4)}"))
        return L
    def hook_poll_issue(cur):
        assert not any(kk == "z" and it[0] != "h" for kk, it in dmaq)
        a.i(f"v_accvgpr_read_b32 v{q0}, a{st('qf')}")
        toks["kv"] = a.vm(f"buffer_load_dword v{q1}, v{q0}, {WS}, 0 offen sc1")
    def hook_poll_check(cur):
        poll_check("kv", q0, q1)
        for hd, nm in enumerate(("qA", "qB")):
            G(cur, "v", f"v_accvgpr_read_b32 v{q2}, a{st(nm)}")
            for t in range(2):
                for hf in range(2):
                    d = aQ + 8*hd + 4*t + 2*hf
                    Gm(cur, "qld", f"buffer_load_dwordx2 a[{d}:{d+1}], v{q2}, {WS}, s{sQld} offen offset:{128*t + 1024*hf} sc1", 3)
    def poison(j0):
        def f(cur):
            if j0 == 0:
                for r in range(4): G(cur, "v", f"v_accvgpr_write_b32 a{HP+40+r}, -1")
            G(cur, "s", f"s_add_u32 s{sT3}, s{sHst}, {21504 + 1024*j0}")
            for j in range(3): G(cur + psp*j, "m", f"buffer_store_dwordx4 a[{HP+40}:{HP+43}], v{vL16}, {WS}, s{sT3} offen offset:{1024*j} sc1", 2)
        return f
    hooks[poi[0]] = poison(0); hooks[poi[1]] = poison(3)
    hooks[19] = hook_poll_issue
    hooks[21] = hook_poll_check
    def h1_issue(cur):
        assert not any(p[0] == "h1st" for p in pubs) and not fill2
        a.i(f"v_accvgpr_read_b32 v{q0}, a{st('hfp')}")
        toks["h1"] = a.vm(f"buffer_load_dword v{q1}, v{q0}, {WS}, 0 offen offset:8 sc1")
    def h1_check(cur):
        poll_check("h1", q0, q1, "0", 8)
        for ks in range(4):
            for t in range(2):
                o = 2048*ks + 1024*t; d = HP + 8*ks + 4*t
                if o % 4096 == 0: G(cur, "s", f"s_add_u32 s{sT3}, s{sHld}, {o}")
                G(cur, "m", f"buffer_load_dwordx4 a[{d}:{d+3}], v{vL16}, {WS}, s{sT3} offen offset:{o % 4096} sc1", 5)
    hooks[26] = h1_issue
    hooks[28] = h1_check
    def hook_pf(cur):
        assert not any(p[0] == "qdone" for p in pubs) and not fill2
        L = [("z", it) for it in pf1_items() + pf2_items() + (xr_items() if xrat == 'A' else [])] + [("z", ("h", hold))]
        for it in reversed(L): dmaq.appendleft(it)
    hooks[pfk] = hook_pf
    def kv_dma(cur, mat):
        base = TBASE + mat*10*GS; go = mat*144*1024
        L = []
        L.append(("s", f"s_mul_i32 s{sT2}, s{sW}, {GS}"))
        L.append(("s", f"s_add_u32 m0, s{sT2}, {base}"))
        for r2 in range(3):
            L.append(("s", f"s_add_u32 s{sT0}, s{sKV[r2]}, {go}"))
            L.append(("m", f"buffer_load_dwordx4 v{vL16}, {WS}, s{sT0} offen offset:{1024*r2} sc1 lds"))
        L.append(("s", f"s_min_u32 s{sT1}, s{sT2}, {GS}"))
        L.append(("s", f"s_add_u32 s{sT1}, s{sT1}, s{sT2}"))
        L.append(("s", f"s_add_u32 m0, s{sT1}, {base + 4*GS}"))
        for r2 in range(3):
            L.append(("s", f"s_add_u32 s{sT0}, s{sKV[r2]}, {go + 4096}"))
            L.append(("m", f"buffer_load_dwordx4 v{vL16}, {WS}, s{sT0} offen offset:{1024*r2} sc1 lds"))
        L.append(("s", f"s_cmp_eq_u32 s{sW}, 1")); L.append(("s", f"s_cselect_b32 s{sT0}, s{sKV[1]}, s{sKV[2]}"))
        L.append(("s", f"s_cmp_eq_u32 s{sW}, 0")); L.append(("s", f"s_cselect_b32 s{sT0}, s{sKV[0]}, s{sT0}"))
        L.append(("s", f"s_min_u32 s{sT1}, s{sW}, 2")); L.append(("s", f"s_sub_u32 s{sT2}, s{sT1}, s{sW}"))
        L.append(("s", f"s_lshl_b32 s{sT2}, s{sT2}, 10")); L.append(("s", f"s_add_u32 s{sT0}, s{sT0}, s{sT2}"))
        L.append(("s", f"s_lshl_b32 s{sT1}, s{sT1}, 10"))
        L.append(("s", f"s_add_u32 m0, s{sT1}, {base + 9*GS}"))
        L.append(("s", f"s_add_u32 s{sT0}, s{sT0}, {go + 8192}"))
        L.append(("m", f"buffer_load_dwordx4 v{vL16}, {WS}, s{sT0} offen sc1 lds"))
        L.append(("v", f"v_add_u32 v{q2}, s{sT1}, v{vL16}"))
        d = KVS + 4*mat
        if mat == 0:
            L.append(("s", f"s_cmp_ge_u32 s{sT0}, {OOB}")); L.append(("s", f"s_cselect_b32 s{sT0}, 0xf149, 0"))
            L += [("v", f"v_accvgpr_write_b32 a{d}, s{sT0}"), ("v", f"v_accvgpr_write_b32 a{d+1}, 0"),
                  ("v", f"v_accvgpr_write_b32 a{d+2}, s{sT0}"), ("v", f"v_accvgpr_write_b32 a{d+3}, 0")]
        else:
            L += [("v", f"v_accvgpr_write_b32 a{d+r}, s{sC0}") for r in range(4)]
        L.append(("v", f"v_add_u32 v{q2}, {base + 5*GS}, v{q2}"))
        L.append(("d", f"ds_write_b128 v{q2}, a[{d}:{d+3}]"))
        return L
    stages[34] = dict(dma=kv_dma(0, 0), fr=[]); stages[35] = dict(dma=kv_dma(0, 1), fr=[])
    assert nraw == 0
    a.i(f"s_mov_b32 s{sC0}, 0x3f803f80"); a.i(f"s_mov_b32 s{sC1}, 0x3f80")
    RS2 = [vT0, vT1]; QSC = [q1, q2]
    SA = [234, 235, 236, 237]
    PR = [230, 238]; u = [160, 161]; TP = [164 + 2*i for i in range(4)]
    nx = [x0]; xrd = {}
    def xnext():
        if nx[0] < 18:
            if nx[0] >= NXU:
                if (nx[0] - NXU) not in xrd: return
                a.wait(lg=xrd[nx[0] - NXU])
            xdma(nx[0]); nx[0] += 1
    NHOP = 4
    def hop(h):
        def fn():
            if not iwarm: return
            a.i("s_mov_b64 exec, 0")
            for w in range(3):
                a.i(f"s_cmp_eq_u32 s{sW}, {w}"); a.i(f"s_cbranch_scc1 L_w{4*h+w}")
            a.i(f"s_branch L_w{4*h+3}")
            a.label(f"L_wret{h}")
            a.i("s_mov_b64 exec, -1")
        return fn
    def xread(n):
        t, ch = n // 9, n % 9
        while nx[0] <= n: xnext()
        tr(f"x{n}")
        a.wait(vm=dma_tok[("x", n)])
        tr(f"y{n}")
        for Sb in range(2):
            xrd[n] = a.ds(f"ds_read_b128 {X(2*ch + Sb, t)}, v{vXr[Sb]} offset:{2048*(n % NXU)}")
    def stats(n):
        t, ch = n // 9, n % 9
        a.wait(lg=xrd[n])
        for Sb in range(2):
            for i in range(4):
                x = XN + 8*(2*ch + Sb) + 4*t + i
                c1 = "0" if (ch == 0 and Sb == 0 and i < 2) else f"v{SA[i%2]}"
                c2 = "0" if (ch == 0 and Sb == 0 and i < 2) else f"v{SA[2+i%2]}"
                a.i(f"v_dot2_f32_bf16 v{SA[i%2]}, v{x}, s{sC0}, {c1}")
                a.i(f"v_dot2_f32_bf16 v{SA[2+i%2]}, v{x}, v{x}, {c2}")
    inv = 1.0/576.0
    def finstats(t):
        m, q = SA[0], SA[2]; rs, nm = PR[t], PR[t] + 1
        a.i("s_nop 2")
        a.i(f"v_add_f32 v{m}, v{m}, v{SA[1]}"); a.i(f"v_add_f32 v{q}, v{q}, v{SA[3]}")
        for sw in ("v_permlane32_swap_b32", "v_permlane16_swap_b32"):
            a.i(f"v_mov_b32 v{u[0]}, v{m}"); a.i(f"v_mov_b32 v{u[1]}, v{q}")
            a.i("s_nop 1")
            a.i(f"{sw} v{m}, v{u[0]}"); a.i(f"{sw} v{q}, v{u[1]}")
            a.i("s_nop 0")
            a.i(f"v_add_f32 v{m}, v{m}, v{u[0]}"); a.i(f"v_add_f32 v{q}, v{q}, v{u[1]}")
        def rb(r): a.i(f"v_cvt_pk_bf16_f32 v{r}, v{r}, v{r}"); a.i(f"v_lshlrev_b32 v{r}, 16, v{r}")
        a.i(f"v_mul_f32 v{m}, {f2u(inv)}, v{m}"); a.i(f"v_mul_f32 v{q}, {f2u(inv)}, v{q}")
        a.i(f"v_fma_f32 v{q}, -v{m}, v{m}, v{q}"); a.i(f"v_max_f32 v{q}, 0, v{q}")
        rb(q); a.i(f"v_add_f32 v{q}, {f2u(1e-5)}, v{q}"); rb(q)
        a.i(f"v_sqrt_f32 v{q}, v{q}"); rb(m); rb(q)
        a.i(f"v_rcp_f32 v{rs}, v{q}"); a.i(f"v_sub_f32 v{nm}, 0, v{m}")
        a.i(f"v_mul_f32 v{RS2[t]}, v{rs}, v{rs}"); a.i(f"v_mul_f32 v{QSC[t]}, {f2u(QG)}, v{rs}")
    def norm(S, t):
        for i in range(4):
            x = XN + 8*S + 4*t + i; tp = TP[i]
            a.i(f"v_dot2_f32_bf16 v{tp}, v{x}, s{sC1}, v{PR[t]+1}"); a.i(f"v_dot2_f32_bf16 v{tp+1}, v{x}, s{sHi}, v{PR[t]+1}")
        for i in range(4):
            x = XN + 8*S + 4*t + i; tp = TP[i]
            if i == 2: pass
            a.i(f"v_cvt_pk_bf16_f32 v{x}, v{tp}, v{tp+1}")
    sHi = 47
    a.i(f"s_mov_b32 s{sHi}, 0x3f800000")
    tr.stage = -1
    if trace and trace[0] < 0: a.i("s_mov_b32 s48, s53")
    su_early()
    if trace and trace[0] < 0:
        a.i("s_waitcnt lgkmcnt(0)"); a.i(f"v_writelane_b32 v{vLane}, s48, 0"); a.i(f"v_writelane_b32 v{vLane}, s54, 1"); trl.extend(["entry", "karg"])
    work = {hopat[h]: hop(h) for h in range(NHOP)}
    for n in range(9):
        if n in work: work.pop(n)()
        xread(n)
        xnext()
        if n < xfast: xnext()
        if n: stats(n - 1)
    pre = list(range(lnpre))
    vq_ = deque([(kk, it) for kk in pre for it in stages[kk]["dma"]] + ([("z", it) for it in gu_items()] if gupf else []))
    if gupf: dmaq.append(("z", ("h", hold0)))
    def vside():
        while vq_:
            kk, it = vq_.popleft(); emit_dma_item(kk, it)
            if it[0] == "m": break
    su_cas()
    stats(8); finstats(0)
    for n in range(9, 18):
        if n in work: work.pop(n)()
        xread(n)
        xnext()
        if n >= w0at: vside(); vside()
        norm(2*(n-9), 0); norm(2*(n-9)+1, 0)
        stats(n)
    assert not work
    astamp("P:stats")
    finstats(1)
    for S in range(18):
        norm(S, 1)
        if vq_ and (vq_[0][0] != "z" or S >= gu_at): vside()
    while vq_: vside()
    astamp("P:ln")
    if nraw == 6: do_post(("q", [ACC[0], ACC[1]]), 0)
    else: post[5] = ("q", [ACC[0], ACC[1]])
    defer(d_q(208) + d_h(208) + d_B(208), 208)
    def addhook(k, fn):
        old = hooks.get(k)
        hooks[k] = (lambda cur: (old(cur), fn(cur))) if old else fn
    def at_stage(k, L, accset):
        def f(i):
            assert not fill or True
            defer(L, accset)
        ihooks[("S", k)] = f
    at_stage(9, d_flags(200), ACC[1])
    at_stage(12, d_rows(0), -100)
    at_stage(15, d_T1(ACC[0]), ACC[0])
    at_stage(21, d_T2(ACC[2]), ACC[2])
    at_stage(24, d_col(0), -100)
    QO = 0; MFi = 16; MLa = 20; aKA, aKB, aV0, aV1 = 24, 25, 26, 27; w0, w1, w2, w3 = 28, 29, 30, 31
    def d_Tsetup():
        L = [f"v_accvgpr_read_b32 v{r}, a{st(nm)}" for nm, r in (("KA", aKA), ("KB", aKB), ("V0", aV0), ("V1", aV1))]
        for r in range(4): L += [f"v_accvgpr_read_b32 v{MFi+r}, a{st('mf')+r}", f"v_accvgpr_read_b32 v{MLa+r}, a{st('ml')+r}"]
        L += [f"v_lshrrev_b32 v{w0}, 8, v{vL16}", f"v_add_u32 v{w1}, -2, v{w0}", f"v_ashrrev_i32 v{w1}, 31, v{w1}",
              f"v_add_u32 v{w2}, -3, v{w0}", f"v_ashrrev_i32 v{w2}, 31, v{w2}", f"v_xor_b32 v{w3}, v{w1}, v{w2}", f"v_and_b32 v{w3}, 0x3f80, v{w3}"]
        for hd in range(2):
            for t in range(2):
                b = QO + 8*hd + 4*t
                L += [f"v_accvgpr_read_b32 v{b+r}, a{aQ+8*hd+4*t+r}" for r in range(4)]
                L += [f"v_and_b32 v{b}, v{w1 if hd else w2}, v{b}", f"v_and_b32 v{b+1}, v{w2 if hd else w1}, v{b+1}",
                      f"v_and_or_b32 v{b+2}, v{b+2}, v{w1}, v{w3}", f"v_and_b32 v{b+3}, v{w1}, v{b+3}"]
        return L
    def f31(i):
        assert not fill3
        assert toks["qld"] <= a.vm_done
        defer(d_Tsetup(), -100)
    ihooks[("S", 31)] = f31
    todo = [kk for kk in range(nraw, 33) if kk not in dma_tok]
    def dma_after_A(k):
        out = []
        while todo and todo[0] <= k + 4:
            kk = todo[0]
            prev = [x for x in range(nraw, kk) if slot_of(x) == slot_of(kk)]
            if prev and max(prev) > k - 2: break
            out.append(todo.pop(0))
        if k == kvat[0]: out.append(34)
        if k == kvat[1]: out.append(35)
        if k == 31: out.append(36)
        if k == 32: out.append(37)
        return out
    stream([(k,) + f for k in range(nraw, 33) for f in stages[k]["fr"]], dma_after_A)
    assert not todo
    astamp("P:aend"); astamp("A:end"); astamp("T:0")

    tr.stage = 200; tr("aend")
    a.wait(vm=max(dma_tok[34], dma_tok[35]), lg=a.lg_issued)
    a.i("s_barrier")
    SS = 32; OA = 208
    mx = [176, 178]; nmx = [180, 182]
    def Sr(t, kt): return SS + 72*t + 4*kt
    side = deque()
    def side_group(kk, items):
        cur = []
        for it in items:
            cur.append(it)
            if it[0] == "m":
                side.append(lambda kk=kk, cur=cur: [emit_dma_item(kk, x) for x in cur]); cur = []
        assert not cur
    side_group(38, stages[38]["dma"])
    if xrat == 'T': side_group("z", xr_items(196, 197, 198))
    side_group(39, stages[39]["dma"])
    fbn = [0]; NFB = [8]
    def nextfb():
        fb = FR + 4*(fbn[0] % NFB[0]); fbn[0] += 1; return fb
    def rd_k(hd, kt, lazy=None):
        fb = nextfb(); v = aKB if hd else aKA
        o = [f"ds_read_b64 a[{fb}:{fb+1}], v{v} offset:{128*kt}", f"ds_read_b64 a[{fb+2}:{fb+3}], v{v} offset:{128*kt + GS}"]
        if lazy is not None: lazy += o; return fb, None
        a.ds(o[0]); return fb, a.ds(o[1])
    def rd_v(hd, kap, tile, lazy):
        fb = nextfb(); v = aV1 if tile else aV0; o = 256*kap + (6*GS if (hd and not tile) else 0)
        lazy += [f"ds_read_b64_tr_b16 a[{fb}:{fb+1}], v{v} offset:{o}", f"ds_read_b64_tr_b16 a[{fb+2}:{fb+3}], v{v} offset:{o+128}"]
        return fb, None
    def qk_ops(hd, kt, fr):
        fb, tk = fr; o = []
        for t in range(2):
            j = kt - t
            if not 0 <= j <= 16: continue
            c = f"v[{MFi}:{MFi+3}]" if j == 0 else (f"v[{MLa}:{MLa+3}]" if j == 16 else "0")
            d = Sr(t, kt); b = QO + 8*hd + 4*t
            o.append((tk, f"{MF} v[{d}:{d+3}], a[{fb}:{fb+3}], v[{b}:{b+3}], {c}"))
        return o
    def max_ops(kt):
        o = []
        for t in range(2):
            j = kt - t
            if not 0 <= j <= 16: continue
            b = Sr(t, kt); m = mx[t]
            if j == 0:
                o.append(f"v_max_f32 v{m}, v{b}, v{b+1}"); o.append(f"v_max_f32 v{m+1}, v{b+2}, v{b+3}")
            else:
                o.append(f"v_max3_f32 v{m}, v{b}, v{b+1}, v{m}"); o.append(f"v_max3_f32 v{m+1}, v{b+2}, v{b+3}, v{m+1}")
        return o
    def finmax():
        for t in range(2): a.i(f"v_max_f32 v{mx[t]}, v{mx[t]}, v{mx[t]+1}")
        for sw in ("v_permlane32_swap_b32", "v_permlane16_swap_b32"):
            for t in range(2): a.i(f"v_mov_b32 v{mx[t]+1}, v{mx[t]}")
            a.i("s_nop 1")
            for t in range(2): a.i(f"{sw} v{mx[t]}, v{mx[t]+1}")
            a.i("s_nop 0")
            for t in range(2): a.i(f"v_max_f32 v{mx[t]}, v{mx[t]}, v{mx[t]+1}")
        for t in range(2): a.i(f"v_mul_f32 v{nmx[t]+1}, -1.0, v{mx[t]}")
    def exp_ops(kap):
        o1, o2, o3 = [], [], []
        for t in range(2):
            d = Sr(t, 2*kap)
            for hf in range(2):
                kt = 2*kap + hf; b = Sr(t, kt)
                if 0 <= kt - t <= 16:
                    for r in (0, 2): o1.append(f"v_pk_fma_f32 v[{b+r}:{b+r+1}], v[{b+r}:{b+r+1}], v[{nmx[t]}:{nmx[t]+1}], v[{nmx[t]}:{nmx[t]+1}] op_sel:[0,0,1] op_sel_hi:[1,0,1]")
                    for r in range(4): o2.append(f"v_exp_f32 v{b+r}, v{b+r}")
                    o3.append(f"v_cvt_pk_bf16_f32 v{d+2*hf}, v{b}, v{b+1}"); o3.append(f"v_cvt_pk_bf16_f32 v{d+2*hf+1}, v{b+2}, v{b+3}")
                else:
                    o3.append(f"v_mov_b32 v{d+2*hf}, 0"); o3.append(f"v_mov_b32 v{d+2*hf+1}, 0")
        return o1, o2 + o3
    def pv_ops(hd, kap, frs):
        o = []
        for tile in range(2):
            fb, tk = frs[tile]
            for t in range(2):
                d = OA + 16*hd + 8*t + 4*tile; b = Sr(t, 2*kap)
                o.append((tk, f"{MF} v[{d}:{d+3}], a[{fb}:{fb+3}], v[{b}:{b+3}], {'0' if kap == 0 else f'v[{d}:{d+3}]'}"))
        return o
    fbtok = {}
    def dsr(txt):
        tk = a.ds(txt); fbtok[int(re.search(r"a\[(\d+):", txt).group(1)) & ~3] = tk
    def merge(valu, mfs, lead=2, tailgap=1, reads=(), nside=3, lazywait=False):
        n = len(valu); m = len(mfs); pos = {}; reads = list(reads)
        if not lazywait: a.wait(lg=a.lg_issued)
        need = {txt: fbtok.get(int(re.search(r", a\[(\d+):", txt).group(1)), 0) for _, txt in mfs}
        order = [txt for _, txt in mfs]
        while len(reads) > m: dsr(reads.pop(0))
        for j in range(m): pos.setdefault(lead + (j * max(n - lead - tailgap, 1)) // max(m, 1), []).append(mfs[j])
        cnt = 0
        def one(txt):
            nonlocal cnt
            if lazywait and need[txt] > a.lg_done:
                j = order.index(txt); a.wait(lg=max(need[x] for x in order[j:j+4]))
            a.i(txt)
            if reads: dsr(reads.pop(0))
            cnt += 1
            if side and cnt % nside == 0: side.popleft()()
        for i, v in enumerate(valu):
            for (tk, txt) in pos.pop(i, []): one(txt)
            a.i(v)
        for kq in sorted(pos):
            for (tk, txt) in pos[kq]: one(txt)
    def slowT():
        for t in range(2): a.i(f"v_mov_b32 v{nmx[t]}, 1.0")
        for hd in range(2):
            kf = {}
            for kt in range(6): kf[kt] = rd_k(hd, kt)
            for kt in range(18):
                lz = []
                if kt + 6 < 18: fbx, _ = rd_k(hd, kt+6, lz)
                mo = max_ops(kt-3) if kt >= 3 else []
                for (tk, txt) in qk_ops(hd, kt, kf[kt]):
                    a.wait(lg=tk); a.i(txt)
                    if lz: tkx = a.ds(lz.pop(0))
                while lz: tkx = a.ds(lz.pop(0))
                if kt + 6 < 18: kf[kt+6] = (fbx, tkx)
                a.i("s_nop 1")
                for t in mo: a.i(t)
            a.i("s_nop 7")
            for kt in (15, 16, 17):
                for t in max_ops(kt): a.i(t)
            finmax()
            pend = []
            for kap in range(9):
                lz = []
                vf = [rd_v(hd, kap, 0, lz), rd_v(hd, kap, 1, lz)]
                o1, v = exp_ops(kap)
                for t in o1: a.i(t)
                merge(v, pend, lead=0, tailgap=5, reads=lz)
                pend = pv_ops(hd, kap, vf)
            a.i("s_nop 1")
            merge([], pend)
        a.i("s_nop 7")
    def hp_loads():
        for ks in range(4, 9):
            for t in range(2):
                def ld(ks=ks, t=t):
                    o = 2048*ks + 1024*t
                    if o % 4096 == 0: a.i(f"s_add_u32 s{sPst}, s{sHld}, {o}")
                    d = HP + 8*ks + 4*t
                    toks["hld"] = a.vm(f"buffer_load_dwordx4 a[{d}:{d+3}], v{vL16}, {WS}, s{sPst} offen offset:{o % 4096} sc1")
                side.append(ld)
    seq = [(hd, kap) for kap in range(9) for hd in range(2)]
    cur_n = [None]
    Sr_slow = Sr
    def Sr(t, kt):
        if cur_n[0] is None: return Sr_slow(t, kt)
        return SS + 16*(cur_n[0] % 3) + 8*t + 4*(kt % 2)
    def kreads(n, lz):
        hd, kap = seq[n]; return [rd_k(hd, 2*kap, lz), rd_k(hd, 2*kap+1, lz)]
    def qks(n, kf):
        hd, kap = seq[n]; cur_n[0] = n
        r = qk_ops(hd, 2*kap, kf[0]) + qk_ops(hd, 2*kap+1, kf[1]); cur_n[0] = None
        return r
    NFB[0] = 6; V1B = [FR + 24, FR + 28]
    lz = []; k0 = kreads(0, lz); nextfb(); nextfb(); k1 = kreads(1, lz)
    for t in lz: dsr(t)
    a.wait(lg=a.lg_issued - 4)
    for (_, txt) in qks(0, k0): a.i(txt)
    a.i("s_nop 5")
    knext = k1; pv = []
    for n in range(18):
        hd, kap = seq[n]
        tr.stage = 200; tr(f"t{n}")
        mf = (qks(n+1, knext) if n + 1 < 18 else []) + pv
        lz = []; lz2 = []
        v0f = rd_v(hd, kap, 0, lz2)
        if hd == 0:
            v1f = (V1B[kap % 2], None)
            lz2 += [f"ds_read_b64_tr_b16 a[{v1f[0]}:{v1f[0]+1}], v{aV1} offset:{256*kap}", f"ds_read_b64_tr_b16 a[{v1f[0]+2}:{v1f[0]+3}], v{aV1} offset:{256*kap+128}"]
        if n + 2 < 18: knext = kreads(n + 2, lz)
        cur_n[0] = n
        _, v = exp_ops(kap)
        pvn = pv_ops(hd, kap, [v0f, v1f])
        cur_n[0] = None
        merge(v, mf, lead=0, tailgap=tg, reads=lz + lz2, nside=4, lazywait=True)
        pv = pvn
        if n == th[0]:
            a.wait(vm=toks["hst"])
            flag_store([f"v_accvgpr_read_b32 v{q0}, a{st('hfo')}"], "0", 0)
        if n == th[1]:
            a.i(f"v_accvgpr_read_b32 v{q0}, a{st('hfp')}")
            toks["hp"] = a.vm(f"buffer_load_dword v{q1}, v{q0}, {WS}, 0 offen sc1")
        if n == th[2]:
            poll_check("hp", q0, q1); hp_loads()
    a.i("s_nop 1")
    merge([], pv)
    tr("tl")
    nleft = len(side)
    while side: side.popleft()()
    print("T side left", nleft, file=sys.stderr)
    a.i("s_nop 7")
    L = [0, 1, 2, 3] if False else [84, 85, 86, 87]; L2 = [88, 89, 90, 91]; BT = 92
    idx = [(hd, t) for hd in range(2) for t in range(2)]
    def getl():
        for n, (hd, t) in enumerate(idx):
            d = OA + 16*hd + 8*t + 4
            a.i(f"v_mov_b32 v{L[n]}, v{d}"); a.i(f"v_mov_b32 v{L2[n]}, v{d}")
        a.i("s_nop 1")
        for n in range(4): a.i(f"v_permlane16_swap_b32 v{L2[n]}, v{L[n]}")
        a.i("s_nop 0")
    getl()
    a.i(f"v_min3_f32 v{L2[0]}, v{L[0]}, v{L[1]}, v{L[2]}"); a.i(f"v_add_f32 v{L2[1]}, v{L[0]}, v{L[1]}"); a.i(f"v_add_f32 v{L2[2]}, v{L[2]}, v{L[3]}")
    a.i(f"v_min_f32 v{L2[0]}, v{L2[0]}, v{L[3]}"); a.i(f"v_add_f32 v{L2[1]}, v{L2[1]}, v{L2[2]}")
    a.i(f"v_cmp_nle_f32 vcc, {f2u(2.0**-40)}, v{L2[0]}")
    a.i(f"s_mov_b64 s[{sT1}:{sT1+1}], vcc")
    a.i(f"v_cmp_nge_f32 vcc, {f2u(2.0**40 if not forceslow else 0.0)}, v{L2[1]}")
    a.i("s_nop 0")
    a.i(f"s_or_b64 vcc, vcc, s[{sT1}:{sT1+1}]")
    a.i("s_cbranch_scc1 L_Tslow")
    a.label("L_Tnorm")
    main_lines = a.lines; a.lines = []
    assert a.lg_done == a.lg_issued
    NFB[0] = 8
    a.label("L_Tslow"); slowT(); getl(); a.i("s_branch L_Tnorm")
    assert a.lg_done == a.lg_issued
    slow_lines = a.lines; a.lines = main_lines
    E = []; osets = [OA]
    for n in range(4): E.append(f"v_mul_f32 v{L[n]}, {f2u(QG)}, v{L[n]}")
    for n in range(4): E.append(f"v_rcp_f32 v{L[n]}, v{L[n]}")
    E.append(f"v_add_u32 v{w1}, -1, v{w0}"); E.append(f"v_ashrrev_i32 v{w1}, 31, v{w1}")
    E.append(f"s_add_u32 s{sPst}, s{sHst}, {18*1024}")
    for t in range(2):
        for hd in range(2):
            d = OA + 16*hd + 8*t; n = 2*hd + t
            for r in list(range(4)) + ([6, 7] if hd else [4, 5]): E.append(f"v_mul_f32 v{d+r}, v{L[n]}, v{d+r}")
        d = OA + 8*t; e = OA + 16 + 8*t
        E += [f"v_cvt_pk_bf16_f32 v{BT+2*t}, v{d+4}, v{d+5}", f"v_cvt_pk_bf16_f32 v{BT+2*t+1}, v{e+6}, v{e+7}",
              f"v_cvt_pk_bf16_f32 v{d}, v{d}, v{d+1}", f"v_cvt_pk_bf16_f32 v{d+1}, v{d+2}, v{d+3}",
              f"v_cvt_pk_bf16_f32 v{d+2}, v{e}, v{e+1}", f"v_cvt_pk_bf16_f32 v{d+3}, v{e+2}, v{e+3}",
              f"v_and_b32 v{BT+2*t}, v{w1}, v{BT+2*t}", f"v_and_b32 v{BT+2*t+1}, v{w1}, v{BT+2*t+1}",
              f"buffer_store_dwordx4 v[{d}:{d+3}], v{vL16}, {WS}, s{sPst} offen offset:{1024*t} sc1"]
    E.append(f"buffer_store_dwordx4 v[{BT}:{BT+3}], v{vL16}, {WS}, s{sPst} offen offset:2048 sc1")
    for t in range(2):
        d = OA + 8*t
        E += [f"v_accvgpr_write_b32 a{H+72+4*t+r}, v{d+r}" for r in range(4)]
        E += [f"v_accvgpr_write_b32 a{HB+4*t}, v{BT+2*t}", f"v_accvgpr_write_b32 a{HB+4*t+1}, v{BT+2*t+1}"]
    for n_, t in enumerate(E):
        if n_ < oinl:
            if t.startswith("buffer"): toks["ost" if "2048" in t else "ostx"] = a.vm(t)
            else: a.i(t)
        elif t.startswith("buffer"): Fm(0, "ost" if "offset:2048" in t else "ostx", t, osets)
        else: F(0, "v", t, osets)
    def own_alpha(i):
        nd = 0
        while fill: emit_fill(fill.popleft()); nd += 1
        if nd: print("own alpha drain", nd, file=sys.stderr); a.i("s_nop 1")
    ihooks[("B", 1, 9, 0)] = own_alpha
    pubs.append(("ost", lambda: flag_store([f"v_accvgpr_read_b32 v{q0}, a{st('hfo')}"], "0", 4), [None, od], False))
    tr("tend")
    astamp("P:tend"); astamp("T:end")

    PL = 0
    SQ = 96
    def pstore(p, halves):
        def fn(nb):
            assert not any("buffer_store" in str(it[2]) for it in fill2)
            acc = BACC[p]; sets = [(acc, acc + 16*len(halves))]
            for hf in halves:
                if p == 0:
                    F(nb, "s", f"s_add_u32 s{sPst}, s{sHld}, {8*2048}", sets)
                else:
                    F(nb, "s", f"s_lshl_b32 s{sPst}, s{sCol[p]}, 5", sets); F(nb, "s", f"s_add_u32 s{sPst}, s{sPst}, s{sPo[hf]}", sets)
                for t in range(2):
                    d = acc + 16*hf + 4*t
                    pack4(nb, d, d + 8, sets)
                    last = (hf == halves[-1] and t == 1)
                    Fm(nb, f"pst{p}" if last else "pstx", f"buffer_store_dwordx4 v[{d}:{d+3}], v{vL16}, {WS}, s{sPst} offen offset:{1024*t} sc1", sets, 2)
            def pub():
                if p == 0: a.i(f"s_add_u32 s{sT0}, s{sPF}, 1024")
                else:
                    a.i(f"s_lshr_b32 s{sT0}, s{sI}, 1"); a.i(f"s_xor_b32 s{sT0}, s{sT0}, {4-p}")
                    a.i(f"s_lshl_b32 s{sT0}, s{sT0}, 8"); a.i(f"s_add_u32 s{sT0}, s{sT0}, s{sPF}")
                a.i(f"s_lshl_b32 s{sT1}, s{sI}, 2")
                flag_store([f"v_mov_b32 v{q0}, s{sT1}"], f"s{sT0}")
            pubs.append((f"pst{p}", pub, [None, pd if p < 3 else pd3], False))
        return fn
    def late_store(acc, x, taus):
        def fn(nb):
            assert not fill, len(fill)
            for c in taus:
                d = acc + 8*c; sets = [(d, d + 8)]
                pack4(nb, d, d + 4, sets)
                F(nb, "m", f"buffer_store_dwordx4 v[{d}:{d+3}], v{vL16}, {WS}, s{sLS[x]} offen offset:{1024*c} sc1", sets)
        return fn
    bpost[("B", 0, 20, 1)] = pstore(0, [0])
    for p in (1, 2): bpost[("B", p, 20, 3)] = pstore(p, [0, 1])
    vP0, vP1 = 80, 81
    def h_wait(i):
        a.wait(vm=toks["hld"])
    ihooks[("B", 1, 14, 0)] = h_wait
    def o_poll(i):
        a.i(f"v_accvgpr_read_b32 v{vP0}, a{st('hfp')}")
        toks["op"] = a.vm(f"buffer_load_dword v{vP1}, v{vP0}, {WS}, 0 offen offset:4 sc1")
    ihooks[("B",) + op[0] + (0,)] = o_poll
    def o_check(i):
        assert not any("v_cndmask" in str(it[2]) for it in fill2)
        poll_check("op", vP0, vP1, "0", 4)
        a.i(f"s_add_u32 s{sT0}, s{sHld}, {18*1024}")
        for t in range(2):
            a.vm(f"buffer_load_dwordx4 a[{HP+72+4*t}:{HP+75+4*t}], v{vL16}, {WS}, s{sT0} offen offset:{1024*t} sc1")
        for t in range(2):
            toks["old"] = a.vm(f"buffer_load_dwordx2 a[{HB+4*t+2}:{HB+4*t+3}], v{vL16}, {WS}, s{sT0} offen offset:{2048+8*t} sc1")
    ihooks[("B",) + op[1] + (0,)] = o_check
    ihooks[("B", 1, 19, 0)] = lambda i: a.wait(vm=toks["old"])
    sOwn = sQst
    sLS = {1: sQld, 2: 60, 3: 61}; sLL = {1: 62, 2: 63, 3: sQcol}
    sPFo = sKV[0]; sXo = [sKV[1], sKV[2]]; sMf, sMo, sMl = 45, sE, sM4x
    def polladdr(minx):
        a.i(f"v_bfe_u32 v{vP0}, v{vL16}, 4, 3"); a.i(f"v_max_u32 v{vP0}, {minx}, v{vP0}")
        a.i(f"v_xor_b32 v{vP0}, s{sI}, v{vP0}"); a.i(f"v_lshlrev_b32 v{vP0}, 2, v{vP0}")
    MA, MB, MX, MD, vM0, vM1 = 120, 124, 132, 136, 134, 135
    def m_prep(i):
        L = [f"v_bfe_u32 v{MD}, v{vL16}, 4, 4", f"v_lshrrev_b32 v{MD+1}, 8, v{vL16}",
             f"v_mul_u32_u24 v{vM0}, {8*HXS}, v{MD+1}", f"v_lshl_add_u32 v{vM0}, v{MD}, 4, v{vM0}",
             f"s_lshl_b32 s{sMl}, s{sI}, 8", f"s_add_u32 s{sMl}, s{sMl}, s{sPbase}", f"s_add_u32 s{sMl}, s{sMl}, {8*2048}",
             f"v_mul_u32_u24 v{vM1}, 1152, v{MD}", f"v_lshl_add_u32 v{vM1}, v{MD+1}, 5, v{vM1}",
             f"v_lshrrev_b32 v{MD+2}, 1, v{MD+1}", f"v_lshl_add_u32 v{vM1}, v{MD+2}, 29, v{vM1}",
             f"s_lshr_b32 s{sT2}, s{sI}, 2", f"s_mul_i32 s{sMo}, s{sT2}, {16*1152}", f"s_and_b32 s{sT2}, s{sI}, 3", f"s_lshl_b32 s{sT2}, s{sT2}, 3",
             f"s_add_u32 s{sMo}, s{sMo}, s{sT2}", f"s_add_u32 s{sMo}, s{sMo}, s{sCol[0]}", f"s_add_u32 s{sMo}, s{sMo}, s{sXrow}",
             f"s_add_u32 s{sMf}, s{sPF}, 1024",
             f"v_and_b32 v{MD+2}, 1, v{MD}", f"v_lshlrev_b32 v{MD+2}, 4, v{MD+2}", f"v_mov_b32 v{MD+3}, 0x3f80",
             f"v_lshlrev_b32 v{MD+3}, v{MD+2}, v{MD+3}", f"v_lshrrev_b32 v{MD+2}, 1, v{MD}"]
        for t in L: G(i, "v", t)
        for r in range(4):
            G(i, "v", f"v_cmp_eq_u32 vcc, {r}, v{MD+2}"); G(i, "v", f"v_cndmask_b32 v{MA+r}, 0, v{MD+3}, vcc")
        G(i, "v", f"v_accvgpr_read_b32 v{MX}, a{XR+8}"); G(i, "v", f"v_accvgpr_read_b32 v{MX+1}, a{XR+9}")
    ihooks[("B", 1, 1, 0)] = m_prep
    def m_poll(i):
        assert not fill2, len(fill2)
        for t in (f"v_bfe_u32 v{vP0}, v{vL16}, 4, 3", f"v_bfe_u32 v{vP1}, v{vL16}, 7, 1", f"v_mul_u32_u24 v{vP0+2}, 6, v{vP1}",
                  f"v_or_b32 v{vP0}, v{vP0}, v{vP0+2}", f"v_xor_b32 v{vP0}, s{sI}, v{vP0}", f"v_lshlrev_b32 v{vP0}, 2, v{vP0}",
                  f"s_sub_u32 s{sT2}, s{sMf}, s{sPFo}", f"v_xor_b32 v{vP1}, 1, v{vP1}", f"v_mad_u32_u24 v{vP0}, v{vP1}, s{sT2}, v{vP0}"):
            G(i, "v", t)
        Gm(i, "mp", f"buffer_load_dword v{vP1}, v{vP0}, {WS}, s{sPFo} offen sc1")
    def m_check(i):
        poll_check("mp", vP0, vP1, f"s{sPFo}", 0)
        a.vm(f"buffer_load_dwordx4 v[{MB}:{MB+3}], v{vM0}, {WS}, s{sMl} offen sc1")
        a.i(f"s_add_u32 s{sMl}, s{sMl}, {32*HXS}")
        toks["ml"] = a.vm(f"buffer_load_dwordx4 v[{MB+4}:{MB+7}], v{vM0}, {WS}, s{sMl} offen sc1")
        for t in (f"v_lshlrev_b32 v{MD}, 16, v{MX}", f"v_and_b32 v{MD+1}, 0xffff0000, v{MX}", f"v_lshlrev_b32 v{MD+2}, 16, v{MX+1}", f"v_and_b32 v{MD+3}, 0xffff0000, v{MX+1}"):
            G(i, "v", t)
        for x in (6, 7): G(i, "f", (lambda x=x: pload(x, sOwn, PL + 8*x, "pl")), 6)
    def m_fin(i):
        assert not any(f"v{MD+3}," in str(it[2]) for it in fill2)
        a.wait(vm=toks["ml"])
        for j in range(2): a.i(f"{MF} v[{MD}:{MD+3}], v[{MA}:{MA+3}], v[{MB+4*j}:{MB+4*j+3}], v[{MD}:{MD+3}]")
        G(i + 3, "v", f"v_cvt_pk_bf16_f32 v{MD}, v{MD}, v{MD+1}"); G(i + 3, "v", f"v_cvt_pk_bf16_f32 v{MD+1}, v{MD+2}, v{MD+3}")
        G(i + 3, "m", f"buffer_store_dwordx2 v[{MD}:{MD+1}], v{vM1}, s[{SOUT}:{SOUT+3}], s{sMo} offen{outsc}")
    def e_poll(i):
        for t in (f"v_bfe_u32 v{vP0}, v{vL16}, 4, 1", f"v_or_b32 v{vP0}, 4, v{vP0}", f"v_xor_b32 v{vP0}, s{sI}, v{vP0}", f"v_lshlrev_b32 v{vP0}, 2, v{vP0}"):
            a.i(t)
        toks["ep"] = a.vm(f"buffer_load_dword v{vP1}, v{vP0}, {WS}, s{sPFo} offen sc1")
    def prep_own(i):
        L = [f"v_accvgpr_read_b32 v{vT0}, a{st('ov')}",
             f"s_lshl_b32 s{sOwn}, s{sI}, 11", f"s_add_u32 s{sOwn}, s{sOwn}, s{sPbase}",
             f"s_and_b32 s{sT2}, s{sS}, 1", f"s_mul_i32 s{sT2}, s{sT2}, 640", f"s_lshl_b32 s{sT3}, s{sI}, 6",
             f"s_add_u32 s{sT2}, s{sT2}, s{sT3}", f"s_add_u32 s{sXo[0]}, s{sT2}, s{sXrow}", f"s_add_u32 s{sXo[1]}, s{sXo[0]}, {16*1152}",
             f"s_lshr_b32 s{sPFo}, s{sI}, 1", f"s_lshl_b32 s{sPFo}, s{sPFo}, 8", f"s_add_u32 s{sPFo}, s{sPFo}, s{sPF}"]
        for x in (1, 2, 3):
            L += [f"s_add_u32 s{sLS[x]}, s{sHst}, {21504 + 2048*(x-1)}", f"s_xor_b32 s{sT3}, s{sI}, {x}", f"s_sub_u32 s{sT3}, s{sT3}, s{sI}",
                  f"s_mul_i32 s{sT3}, s{sT3}, {8*HXS}", f"s_add_u32 s{sLL[x]}, s{sT3}, s{sLS[x]}"]
        for t in L: G(i, "v", t)
    ihooks[("B", 1, 2, 0)] = prep_own
    def pload(x, base, dst, name):
        a.i(f"s_xor_b32 s{sT0}, s{sI}, {x}"); a.i(f"s_mul_i32 s{sT0}, s{sT0}, {8*HXS}"); a.i(f"s_add_u32 s{sT0}, s{sT0}, s{base}")
        for t in range(2):
            toks[name] = a.vm(f"buffer_load_dwordx4 v[{dst+4*t}:{dst+4*t+3}], v{vL16}, {WS}, s{sT0} offen offset:{1024*t} sc1")
    def e_check(i):
        poll_check("ep", vP0, vP1, f"s{sPFo}", 0)
        for x in (4, 5): G(i, "f", (lambda x=x: pload(x, sOwn, PL + 8*x, "pl")), 4)
    def lload(x, c): return f"buffer_load_dwordx4 v[{PL+8*x+4*c}:{PL+8*x+4*c+3}], v{vL16}, {WS}, s{sLL[x]} offen offset:{1024*c} sc1"
    frsB = [(k,) + f for k in range(KB0, 50) for f in stages[k]["fr"]]
    def addpass(p, taus, order):
        n0 = len(frsB); first = True
        for k in order:
            for j in range(len(late[(p, taus[0])][k])):
                for tau in taus:
                    f = list(late[(p, tau)][k][j]); f[5] = first; f[6] = None; frsB.append(tuple(f))
                first = False
        return n0, len(frsB) - 1
    eC3a = len(frsB) - 1
    b3, e3_ = addpass(3, (2, 3), (47, 48, 49, 46))
    c4o = (50, 51, 53, 52)
    b40, e40 = addpass(4, (0,), c4o); b41, e41 = addpass(4, (1,), c4o); b42, e42 = addpass(4, (2, 3), c4o)
    print("B frag map", eC3a, b3, e3_, b40, e40, e41, e42, file=sys.stderr)
    ipost[eC3a] = late_store(BACC[3], 3, (0, 1)); ipost[e3_] = late_store(BACC[3] + 16, 2, (0, 1))
    ipost[e40] = late_store(BACC[4], 1, (0,)); ipost[e41] = late_store(BACC[4], 1, (1,))
    def rel47(i):
        a.i("s_barrier")
        for it in stages[52]["dma"]: dmaq.append((52, it))
    ihooks[b3 + 12] = rel47
    ihooks[mp[0]] = m_poll; ihooks[mp[1]] = m_check; ihooks[mp[2]] = m_fin
    ihooks[ep[0]] = e_poll; ihooks[ep[1]] = e_check
    def mkl(items, name):
        def f(i):
            for x, c in items: Gm(i, name, lload(x, c), 2)
        return f
    ihooks[ll[0]] = mkl([(3, 0), (3, 1)], "l3"); ihooks[ll[1]] = mkl([(2, 0), (2, 1)], "l2"); ihooks[ll[2]] = mkl([(1, 0)], "l10")
    if ll[3] is not None: ihooks[ll[3]] = mkl([(1, 1)], "l11")
    def dma_after_B(k):
        if k == 36: return [40, 41]
        if k == 37: return []
        if k == 48: return [53]
        return [k + 4] if k + 4 <= 51 else []
    stream(frsB, dma_after_B, tailnop=False)
    assert not pubs
    astamp("P:bend"); astamp("B:end")
    def accum(acc, src, f="v"):
        for c in range(2):
            for t in range(2):
                d = acc + 8*c + 4*t; s0 = SEL + (0 if c else 2)
                a.i(f"{MF} v[{d}:{d+3}], a[{s0}:{s0+3}], {f}[{src+4*t}:{src+4*t+3}], v[{d}:{d+3}]")
    OWN = BACC[4] + 16
    if ll[3] is None: toks["l11"] = a.vm(lload(1, 1))
    tr.stage = 100; tr("end")
    a.wait(vm=toks["pl"])
    tr("pl")
    accum(OWN, XR, "a")
    for x in range(4, 8): accum(OWN, PL + 8*x)
    tr("acc")
    CK = 0
    groups = [("l10", [(3, 0), (3, 1), (2, 0), (2, 1), (1, 0)]), ("l11", [(1, 1)])]
    for n, (tk, items) in enumerate(groups):
        a.wait(vm=toks[tk])
        tr(tk)
        a.label(f"L_tchk{n}")
        regs = [PL + 8*x + 4*c + r for x, c in items for r in range(4)]
        a.i(f"v_max_u32 v{CK}, v{regs[0]}, v{regs[1]}")
        for j in range(2, len(regs), 2): a.i(f"v_max3_u32 v{CK}, v{regs[j]}, v{regs[j+1]}, v{CK}")
        a.i(f"v_cmp_eq_u32 vcc, -1, v{CK}")
        a.i("s_nop 0")
        a.i("s_cmp_lg_u64 vcc, 0")
        a.i(f"s_cbranch_scc1 L_tretry{n}")
        a.label(f"L_tok{n}")
        for x, c in items:
            for t in range(2):
                d = OWN + 8*c + 4*t; s0 = SEL + (0 if t else 2); q_ = PL + 8*x + 4*c
                a.i(f"{MF} v[{d}:{d+3}], a[{s0}:{s0+3}], v[{q_}:{q_+3}], v[{d}:{d+3}]")
    a.i("s_nop 1")
    for c in range(2):
        if c: a.i("s_nop 1")
        for t in range(2):
            d = OWN + 8*c + 4*t
            a.i(f"v_cvt_pk_bf16_f32 v{d}, v{d}, v{d+1}"); a.i(f"v_cvt_pk_bf16_f32 v{d+1}, v{d+2}, v{d+3}")
            a.vm(f"buffer_store_dwordx2 v[{d}:{d+1}], v{vT0}, s[{SOUT}:{SOUT+3}], s{sXo[t]} offen offset:{32*c}{outsc}")
    tr("st")
    if trace: a.i("s_waitcnt vmcnt(0)"); tr("fin")
    astamp("P:done")
    if trace:
        a.i("s_waitcnt lgkmcnt(0)")
        for n0, p0 in trp: a.i(f"v_writelane_b32 v{vLane}, s{p0}, {n0}")
        a.i(f"s_lshl_b32 s{sT0}, s2, 2"); a.i(f"s_add_u32 s{sT0}, s{sT0}, s{sW}"); a.i(f"s_lshl_b32 s{sT0}, s{sT0}, 8")
        a.i(f"s_add_u32 s{sT0}, s{sT0}, {STAMP_OFF}")
        a.i(f"v_lshrrev_b32 v1, 2, v{vL16}")
        a.i(f"buffer_store_dword v{vLane}, v1, {WS}, s{sT0} offen")
        print("trace:", len(trl), " ".join(trl), file=sys.stderr)
    if stamps:
        a.i(f"s_lshl_b32 s{sT0}, s2, 2"); a.i(f"s_add_u32 s{sT0}, s{sT0}, s{sW}"); a.i(f"s_lshl_b32 s{sT0}, s{sT0}, 6")
        a.i(f"s_add_u32 s{sT0}, s{sT0}, {STAMP_OFF}")
        a.i(f"v_mov_b32 v1, 0")
        for n in range(len(stl)):
            a.i(f"buffer_store_dword a{244+n}, v1, {WS}, s{sT0} offen offset:{4*n}")
        a.i("s_waitcnt vmcnt(0)")
        a.i("s_memrealtime s[80:81]"); a.i("s_waitcnt lgkmcnt(0)"); a.i("v_accvgpr_write_b32 a255, s80")
        a.i(f"buffer_store_dword a254, v1, {WS}, s{sT0} offen offset:56")
        a.i(f"buffer_store_dword a255, v1, {WS}, s{sT0} offen offset:60")
        print("stamps:", stl, file=sys.stderr)
        if probe is not None:
            a.i(f"v_accvgpr_read_b32 v3, a{254 if probe < 0 else 244 + probe}"); a.i("s_nop 1")
            a.i(f"v_readfirstlane_b32 s{sT1}, v3"); a.i("s_nop 3"); a.i(f"s_add_u32 s{sT1}, s{sT1}, 6000")
            if probewg is not None:
                a.i(f"s_cmp_lg_u32 s2, {probewg}"); a.i("s_cbranch_scc1 L_end")
            a.label("L_probe")
            a.i("s_memrealtime s[80:81]"); a.i("s_waitcnt lgkmcnt(0)")
            a.i(f"s_sub_u32 s{sT2}, s80, s{sT1}"); a.i(f"s_cmp_lt_i32 s{sT2}, 0"); a.i("s_cbranch_scc1 L_probe")
        if dbgout:
            a.i(f"s_cmp_lg_u32 s{sW}, 1"); a.i("s_cbranch_scc1 L_end")
            a.i("s_cmp_lt_u32 s2, 248"); a.i("s_cbranch_scc1 L_end")
            a.i("v_accvgpr_read_b32 v3, a254"); a.i("v_accvgpr_read_b32 v4, a255")
            a.i("v_sub_u32 v4, v4, v3"); a.i("v_mul_u32_u24 v4, 100000, v4"); a.i("v_and_b32 v5, 0xffff, v3"); a.i("v_add_u32 v4, v4, v5")
            a.i(f"s_and_b32 s{sT1}, s2, 7"); a.i(f"s_lshl_b32 s{sT1}, s{sT1}, 2")
            a.i(f"buffer_store_dword v4, v1, s[{SDBG}:{SDBG+3}], s{sT1} offen offset:32")
            a.i("s_cmp_lg_u32 s2, 253"); a.i("s_cbranch_scc1 L_end")
            for n in range(1, 8):
                a.i(f"v_accvgpr_read_b32 v2, a{244+n}"); a.i("v_sub_u32 v2, v2, v3")
                a.i(f"buffer_store_dword v2, v1, s[{SDBG}:{SDBG+3}], 0 offen offset:{4*n}")
    a.label("L_end")
    a.i("s_endpgm")
    for n, (tk, items) in enumerate(groups):
        a.label(f"L_tretry{n}")
        a.i(f"s_cmp_eq_u32 s{sBound}, 0"); a.i(f"s_cbranch_scc1 L_tok{n}")
        a.i(f"s_sub_u32 s{sBound}, s{sBound}, 1"); a.i(f"s_sleep {4 if n == 0 else 1}")
        for x, c in items: a.i(lload(x, c))
        a.i("s_waitcnt vmcnt(0)")
        a.i(f"s_branch L_tchk{n}")
    a.lines += slow_lines
    a.label("L_tagspin")
    a.i(f"s_cmp_eq_u32 s{sBound}, 0"); a.i("s_cbranch_scc1 L_tagok")
    a.i(f"s_sub_u32 s{sBound}, s{sBound}, 1"); a.i("s_sleep 1")
    a.i(f"buffer_load_dword v207, off, s[{SDBG}:{SDBG+3}], 0 sc1"); a.i("s_waitcnt vmcnt(0)")
    a.i("s_branch L_tagchk")
    for (name, va, vf, soff, offs) in spin_blocks:
        a.label(f"L_spin_{name}")
        a.i(f"s_cmp_eq_u32 s{sBound}, 0")
        a.i(f"s_cbranch_scc1 L_back_{name}")
        a.i(f"s_sub_u32 s{sBound}, s{sBound}, 1")
        a.i("s_sleep 1")
        a.i(f"buffer_load_dword v{vf}, v{va}, {WS}, {soff} offen offset:{offs} sc1")
        a.i("s_waitcnt vmcnt(0)")
        a.i(f"v_cmp_ne_u32 vcc, s{sTag}, v{vf}")
        a.i("s_nop 0")
        a.i("s_cmp_lg_u64 vcc, 0")
        a.i(f"s_cbranch_scc1 L_spin_{name}")
        a.i(f"s_branch L_back_{name}")
    assert not ihooks, ihooks.keys()
    body = [l.replace("CODE_LAST", "0x1000") for l in a.lines]
    if iwarm:
        tmp = [l for l in body] + [f"L_w{w}:" for w in range(4*NHOP)] + ["    s_endpgm"]
        tmp, _, _, _ = align8(tmp, nops=False)
        tmp = tmp[:-(4*NHOP+1)]
        sz = sizes_of(tmp + [f"L_w{w}:" for w in range(4*NHOP)])
        out = []; off = 0; n = 0; j = 0; nextp = 8192; done = False
        for l in tmp:
            if l.startswith("L_end:"): done = True
            if is_instr(l):
                prev = out[-1].strip() if out else ""
                if off >= nextp and not done and not prev.startswith("v_mfma") and not prev.startswith("s_cmp"):
                    out.append(f"L_w{n}:"); out.append(f"    s_cbranch_execz L_wret{n//4}"); n += 1; off += 4; nextp += 4096
                off += sz[j]; j += 1
            out.append(l)
        assert n <= 4*NHOP
        for nn in range(n, 4*NHOP):
            out.insert(out.index(f"L_wret{nn//4}:"), f"L_w{nn}:")
        body = out; size = off
        print("warm stubs", n, file=sys.stderr)
    else:
        body, nf, nn, size = align8(body, nops=False)
    body = [l.replace("v_min_u32 v%d, 0x1000," % vT0, "v_min_u32 v%d, %d," % (vT0, (size - 64) & ~15)) for l in body]
    print(f"main: code {size} bytes, stash {st.next}", file=sys.stderr)
    return body

from gen1 import kd
def whole(**kw):
    m = gen(**kw)
    hdr = [l for l in open("parallel_sum__sliding_block__glu_gated_bilinear__prompt.s.ref").read().split("\n")[:11]]
    s = "\n".join(hdr) + "\n"
    s += f"; @launch grid=(256,1,1) block=(256,1,1) lds={LDS_BYTES}\n"
    s += '.amdgcn_target "amdgcn-amd-amdhsa--gfx950"\n.text\n'
    s += f".globl {KN}\n.p2align 12\n.type {KN},@function\n{KN}:\n" + "\n".join(m) + "\n"
    s += '.section .rodata,"a"\n.p2align 6\n' + kd(KN, 512, 256)
    return s

if __name__ == "__main__":
    kw = {}
    for x in sys.argv[2:]:
        k, v = x.split("="); kw[k] = eval(v)
    open(sys.argv[1], "w").write(whole(**kw))
```

```python
import sys, struct, math, re
from asmlib import *
from collections import deque

KN = "parallel_sum__sliding_block__glu_gated_bilinear__prompt_kernel"
QS = 6176; SLOT = 4 * QS; NS = 6
LDS_BYTES = 163840
TAG_LDS = NS * SLOT + 64
QKV_BASE = 0x2400000
QF_BASE = 0x2C00000; HF_BASE = 0x2C10000; PF_BASE = 0x2C40000
EPOCH_OFF = 0x2D00000
HX_BASE = 0x3000000; HXS = 27648
STAMP_OFF = 0x6000000
WS_BYTES = 268435456
OOB = 0x20000000
GS = 3136; TBASE = 163840 - 20 * GS
TAGC = 0x9E3779B8
def f2u(f): return "0x%08x" % struct.unpack("<I", struct.pack("<f", f))[0]
QC = 18 ** -0.5 * math.log2(math.e)
QG = QC ** 0.5
MF = "v_mfma_f32_16x16x32_bf16"

def gen(D=7, wev=3, stamps=None, rt=False, gap=6, lg_rpx=4, krot=True, normil=True, l2pf=True, pfs=6, pd3=24, ep=(285, 312), mp=(234, 266, 318), ll=(325, 345, 360, 372), trace=None, nraw=0, iwarm=True, pd=30, lead=70, hold=90, pfk=16, lnpre=3, od=40, warmat=1, gupf="U", hold0=40, gu_at=12, dbgout=False, probe=None, probewg=None, x0=5, w0at=13, hopat=(2, 4, 6, 8), xfast=0, odef=6, op=((1, 13), (1, 18)), c3tag=False, e3=(10, None), xrat='T', kvat=(25, 27), fastT=True, forceslow=False, outsc='', tg=1, th=(3, 8, 12), oinl=60, psp=10, poi=(11, 23), l11late=False):
    a = Asm()
    XS = lnpre * SLOT; NXU = (LDS_BYTES - XS) // 8192
    SX, SG, SU, SD, SWS, SQKV, SO, SDBG, SOUT = 4, 8, 12, 16, 20, 24, 28, 32, 36
    sPF = 3
    sCol = [40, 41, 42, 43, 44]
    sSc = [45, 46, 47]; sKV = [48, 49, 50]
    sTag, sE, sBound, sQst, sQld = 51, 52, 53, 54, 55
    sW, sS, sR = 56, 57, 58
    sPair = [59, 60, 61, 62]; sSing = 63
    sMq, sI = 64, 65
    sOff, sT0, sT1, sT2, sT3 = 66, 67, 68, 69, 70
    sXrow, sPst, sM4 = 71, 72, 73
    sOff2 = 73
    sM4x = 59
    sPC = 74; sHst, sHld = 74, 75
    sC0, sC1, sQcol, sPbase = 76, 77, 78, 79
    sStamp = 80; sPo = [82, 83]
    KA = 84
    sKo = [84, 85, 86, 87, 88]; sKp = [89, 90, 91, 92, 93]; sAo, sAp = 94, 95
    sKr9 = [96, 97, 98]; sKr3 = [99, 100, 101]
    sKo2 = [24, 25, 26, 27]; sKp2 = [99, 100, 101, 77]
    XN = 0; ACC = [144, 176, 208]
    vRd = [240, 241, 242]; vA = [243, 244, 245]; vS = [246, 247, 248]
    q0, q1, q2 = 249, 250, 251
    vT0, vT1, vL16, vLane = 252, 253, 254, 255
    H, HP, HB, FR = 0, 80, 160, 168
    KVS, aQ = 128, 136
    NB = 8; assert D <= 7
    stash = {}
    def st(name, n=1):
        if name not in stash:
            stash[name] = st.next; st.next += n; assert st.next <= 228
        return stash[name]
    st.next = 200; stash['pt'] = 236; stash['stq'] = 228; stash['stq2'] = 229
    XR = 228
    SEL = 238
    stl = []
    def astamp(name):
        if stamps is None or name.split(":")[0] not in stamps: return
        n = len(stl); assert n < 10
        a.i("s_waitcnt lgkmcnt(0)"); a.lg_done = a.lg_issued
        a.i(f"{'s_memrealtime' if rt else 's_memtime'} s[{sStamp}:{sStamp+1}]")
        a.i("s_waitcnt lgkmcnt(0)")
        a.i(f"v_accvgpr_write_b32 a{244+n}, s{sStamp}")
        stl.append(name)
    trl = []; trp = []
    TRS = [44, 80, 0] if (trace and trace[0] < 0) else [46, 80, 0]
    def tr(name):
        if trace is None or not (trace[0] <= tr.stage < trace[1]) or len(trl) >= 64: return
        if len(trp) >= 2:
            n0, p0 = trp.pop(0); a.i(f"v_writelane_b32 v{vLane}, s{p0}, {n0}")
        p = TRS[len(trl) % 3]
        a.i(f"s_memtime s[{p}:{p+1}]")
        trp.append((len(trl), p)); trl.append(name)
    tr.stage = 0
    def srd(d, p, nbytes, back=0):
        if back:
            a.i(f"s_sub_u32 s{d}, s{p}, {back}"); a.i(f"s_subb_u32 s{d+1}, s{p+1}, 0")
        else:
            a.i(f"s_mov_b32 s{d}, s{p}"); a.i(f"s_mov_b32 s{d+1}, s{p+1}")
        a.i(f"s_mov_b32 s{d+2}, {nbytes + back}"); a.i(f"s_mov_b32 s{d+3}, 0x00020000")
    WS = f"s[{SWS}:{SWS+3}]"

    a.i("s_cmp_ge_u32 s2, 256")
    a.i("s_cbranch_scc1 L_end")
    if stamps: a.i("s_memrealtime s[36:37]")
    if trace and trace[0] < 0: a.i("s_memtime s[36:37]")
    a.i(f"s_load_dwordx16 s[{KA}:{KA+15}], s[0:1], 0")
    a.i(f"s_load_dwordx4 s[80:83], s[0:1], 64")
    a.i(f"s_getpc_b64 s[{sPC}:{sPC+1}]")
    a.i(f"s_lshr_b32 s{sT0}, s2, 3")
    a.i(f"s_lshl_b32 s{sT0}, s{sT0}, 12")
    a.i(f"v_lshlrev_b32 v{vT0}, 4, v0")
    a.i(f"v_add_u32 v{vT0}, s{sT0}, v{vT0}")
    a.i(f"v_min_u32 v{vT0}, CODE_LAST, v{vT0}")
    a.vm(f"global_load_dwordx4 a[{HP+76}:{HP+79}], v{vT0}, s[{sPC}:{sPC+1}]")
    a.i(f"v_lshrrev_b32 v{vT1}, 6, v0")
    a.i(f"v_and_b32 v{vLane}, 63, v0")
    a.i(f"v_readfirstlane_b32 s{sW}, v{vT1}")
    lg = lg_rpx; nsl = 32 >> lg
    a.i(f"s_and_b32 s{sR}, s2, {(16 >> lg) - 1}"); a.i(f"s_lshl_b32 s{sR}, s{sR}, {lg}")
    a.i(f"s_lshr_b32 s{sT0}, s2, {8 - lg}"); a.i(f"s_add_u32 s{sR}, s{sR}, s{sT0}")
    a.i(f"s_bfe_u32 s{sS}, s2, {hex(((lg - 1) << 16) | (4 - lg))}"); a.i(f"s_lshl_b32 s{sS}, s{sS}, {5 - lg}")
    a.i(f"s_bfe_u32 s{sT0}, s2, {hex(((5 - lg) << 16) | 3)}"); a.i(f"s_add_u32 s{sS}, s{sS}, s{sT0}")
    sRot = sT3
    if krot:
        a.i(f"s_lshr_b32 s{sT0}, s{sR}, 2"); a.i(f"s_add_u32 s{sT0}, s{sT0}, s{sS}")
        a.i(f"s_mul_hi_u32 s{sT1}, s{sT0}, 0x55555556"); a.i(f"s_mul_i32 s{sT1}, s{sT1}, 3"); a.i(f"s_sub_u32 s{sRot}, s{sT0}, s{sT1}")
    else: a.i(f"s_mov_b32 s{sRot}, 0")
    sRk = [45, 46, 47]
    for stg in range(3):
        a.i(f"s_add_u32 s{sRk[stg]}, s{sRot}, {stg}")
        a.i(f"s_cmp_ge_u32 s{sRk[stg]}, 3"); a.i(f"s_cselect_b32 s{sT0}, 3, 0"); a.i(f"s_sub_u32 s{sRk[stg]}, s{sRk[stg]}, s{sT0}")
    QACC = 144; D2 = 200
    vX = [228, 229, 230, 231]; vXr = [232, 233]
    S1 = [234, 235]; S2 = [236, 237]; vCs = 238
    t0, t1, t2, t3 = 144, 145, 146, 147
    ONES = 128
    a.i(f"v_lshrrev_b32 v{t0}, 3, v{vLane}")
    a.i(f"v_and_b32 v{t1}, 7, v{vLane}")
    for j in range(2):
        a.i(f"v_add_u32 v{t2}, {8*j}, v{t0}")
        a.i(f"v_bfe_u32 v{t3}, v{t2}, 1, 3")
        a.i(f"v_xor_b32 v{t3}, v{t3}, v{t1}")
        a.i(f"v_mul_u32_u24 v{t2}, 1152, v{t2}")
        a.i(f"v_lshl_add_u32 v{vX[j]}, v{t3}, 4, v{t2}")
        if j: a.i(f"v_subrev_u32 v{vX[j]}, {1024*j}, v{vX[j]}")
    a.i(f"s_lshl_b32 s{sXrow}, s{sR}, 2")
    a.i(f"s_add_u32 s{sXrow}, s{sXrow}, s{sW}")
    a.i(f"s_mul_i32 s{sXrow}, s{sXrow}, {32*1152}")
    sXk = [40, 41, 42]
    for stg in range(3):
        a.i(f"s_mul_i32 s{sXk[stg]}, s{sRk[stg]}, 384"); a.i(f"s_add_u32 s{sXk[stg]}, s{sXk[stg]}, s{sXrow}")
    a.i(f"s_mul_i32 s{sM4}, s{sW}, {2048*NXU}")
    a.i("s_waitcnt lgkmcnt(0)")
    if stamps: a.i("v_accvgpr_write_b32 a254, s36")
    if trace and trace[0] < 0: a.i("s_mov_b32 s53, s36"); a.i("s_memtime s[54:55]")
    srd(SX, KA+0, 2048*1152)
    xtok = {}
    def xdma_items(n):
        t, ch = n // 9, n % 9
        o = [("s", f"s_add_u32 m0, s{sM4}, {XS + 2048*(n % NXU)}"), ("s", f"s_add_u32 s{sOff}, s{sXk[ch//3]}, {128*(ch%3) + 16*1152*t}")]
        return o + [("m", f"buffer_load_dwordx4 v{vX[j]}, s[{SX}:{SX+3}], s{sOff} offen offset:{1024*j} lds") for j in range(2)]
    dma_tok = {}
    def emit_dma_item(k, it):
        if it[0] == "m": dma_tok[k] = a.vm(it[1])
        elif it[0] == "d": a.ds(it[1])
        elif it[0] == "h": pass
        else: a.i(it[1])
    def xdma(ch):
        for it in xdma_items(ch): emit_dma_item(("x", ch), it)
    for n in range(x0): xdma(n)
    srd(SQKV, KA+2, 576*3456); srd(SO, KA+4, 576*1152, back=2048)
    srd(SG, KA+8, 576*9216); srd(SU, KA+10, 576*9216); srd(SD, KA+12, 4608*1152, back=2048)
    srd(SOUT, KA+14, 2048*1152)
    srd(SDBG, 80, 256); srd(SWS, 82, WS_BYTES)
    a.i(f"s_or_b32 s{sT0}, s2, s{sW}")
    a.i("s_cbranch_scc1 L_noep")
    a.i(f"s_add_u32 s82, s82, {EPOCH_OFF}"); a.i("s_addc_u32 s83, s83, 0")
    a.i(f"s_load_dword s{sE}, s[82:83], 0")
    a.label("L_noep")
    astamp("P:start")
    vn, vq, rho, tt, pc = 148, 149, 150, 151, 152
    a.i(f"v_and_b32 v{vn}, 15, v{vLane}"); a.i(f"v_lshrrev_b32 v{vq}, 4, v{vLane}")
    a.i(f"v_bfe_u32 v{rho}, v{vLane}, 2, 3"); a.i(f"v_lshrrev_b32 v{tt}, 5, v{vLane}")
    a.i(f"v_and_b32 v{pc}, 3, v{vLane}"); a.i(f"v_lshlrev_b32 v{pc}, 4, v{pc}")
    a.i(f"v_lshlrev_b32 v{vL16}, 4, v{vLane}")
    a.i(f"v_lshrrev_b32 v{t1}, 1, v{vn}"); a.i(f"v_xor_b32 v{t1}, v{t1}, v{vq}")
    a.i(f"v_lshlrev_b32 v{t0}, 7, v{vn}")
    a.i(f"s_add_u32 s{sT0}, s{sM4}, {XS}"); a.i(f"v_add_u32 v{t0}, s{sT0}, v{t0}")
    a.i(f"v_lshl_add_u32 v{vXr[0]}, v{t1}, 4, v{t0}")
    a.i(f"v_xor_b32 v{t1}, 4, v{t1}"); a.i(f"v_lshl_add_u32 v{vXr[1]}, v{t1}, 4, v{t0}")
    for stg in range(3):
        a.i(f"s_mul_i32 s{sKr9[stg]}, s{sRk[stg]}, {192*9216}"); a.i(f"s_mul_i32 s{sKr3[stg]}, s{sRk[stg]}, {192*3456}")
    a.i(f"s_mul_i32 s{sQcol}, s{sS}, 216")
    for stg in range(3): a.i(f"s_add_u32 s{sKr3[stg]}, s{sKr3[stg]}, s{sQcol}")
    a.i(f"s_mul_i32 s{sMq}, s{sW}, {QS}")
    a.i(f"s_lshr_b32 s{sI}, s{sS}, 1")
    a.i(f"s_lshl_b32 s{sT0}, s{sW}, 3"); a.i(f"v_add_u32 v{t2}, s{sT0}, v{rho}")
    a.i(f"v_lshl_add_u32 v{t3}, v{tt}, 6, v{pc}")
    a.i(f"v_mul_u32_u24 v{vS[0]}, 3456, v{t2}"); a.i(f"v_add_u32 v{vS[0]}, v{vS[0]}, v{t3}")
    a.i(f"v_add_u32 v{vS[1]}, {32*3456-1024}, v{vS[0]}"); a.i(f"v_add_u32 v{vS[2]}, {64*3456-2048}, v{vS[0]}")
    a.i(f"v_mul_u32_u24 v{t0}, 9216, v{t2}"); a.i(f"v_add_u32 v{vA[0]}, v{t0}, v{t3}")
    a.i(f"v_add_u32 v{vA[1]}, {32*9216-1024}, v{vA[0]}"); a.i(f"v_add_u32 v{vA[2]}, {64*9216-2048}, v{vA[0]}")
    def su_cas():
        a.i(f"s_or_b32 s{sT0}, s2, s{sW}")
        a.i("s_cbranch_scc1 L_nocas")
        a.i("s_waitcnt lgkmcnt(0)")
        a.i(f"s_add_u32 s{sE}, s{sE}, {TAGC}"); a.i(f"s_or_b32 s{sE}, s{sE}, 1")
        a.i(f"v_mov_b32 v{vCs}, s{sE}"); a.i(f"v_mov_b32 v{vCs+1}, {EPOCH_OFF}")
        a.i(f"buffer_store_dword v{vCs}, off, s[{SDBG}:{SDBG+3}], 0 sc1")
        a.i(f"buffer_store_dword v{vCs}, v{vCs+1}, {WS}, 0 offen sc1")
        a.label("L_nocas")

    def su_early():
        a.i(f"v_bfe_u32 v{t0}, v{vLane}, 2, 2"); a.i(f"v_lshlrev_b32 v{t1}, 6, v{t0}")
        a.i(f"v_and_b32 v{t0}, 3, v{vLane}"); a.i(f"v_lshl_add_u32 v{t1}, v{t0}, 3, v{t1}")
        a.i(f"v_mul_u32_u24 v{t0}, {QS}, v{vq}"); a.i(f"v_add_u32 v{vRd[0]}, v{t0}, v{t1}")
        a.i(f"v_add_u32 v{vRd[1]}, {2*SLOT}, v{vRd[0]}"); a.i(f"v_add_u32 v{vRd[2]}, {4*SLOT}, v{vRd[0]}")
        a.i(f"s_mul_i32 s{sT1}, s{sS}, 576"); a.i(f"s_and_b32 s{sT2}, s{sS}, 1")
        a.i(f"s_lshl_b32 s{sT3}, s{sT2}, 6"); a.i(f"s_add_u32 s{sT3}, s{sT3}, s{sT1}")
        for j in range(4):
            a.i(f"s_add_u32 s{sPair[j]}, s{sR}, {j}"); a.i(f"s_and_b32 s{sPair[j]}, s{sPair[j]}, 3")
            a.i(f"s_lshl_b32 s{sPair[j]}, s{sPair[j]}, 7"); a.i(f"s_add_u32 s{sPair[j]}, s{sPair[j]}, s{sT3}")
        a.i(f"s_xor_b32 s{sT2}, s{sT2}, 1"); a.i(f"s_lshl_b32 s{sT2}, s{sT2}, 9"); a.i(f"s_add_u32 s{sSing}, s{sT2}, s{sT1}")
        a.i(f"s_mov_b32 s{sBound}, 0x40000")
    U0, U1, U2, U3 = 45, 52, 78, 73
    MK = "s[40:41]"
    def d_q(tb):
        x0_, x1, x2, n, q = tb, tb+1, tb+2, tb+3, tb+4
        return [f"v_bfe_u32 v{n}, v{vL16}, 4, 4", f"v_lshrrev_b32 v{q}, 8, v{vL16}",
            f"s_lshl_b32 s{U0}, s{sW}, 8", f"v_lshlrev_b32 v{x0_}, 3, v{n}", f"v_add_u32 v{x0_}, s{U0}, v{x0_}",
            f"v_lshl_add_u32 v{x1}, v{q}, 10, v{x0_}", f"v_accvgpr_write_b32 a{st('stq')}, v{x1}",
            f"v_add_u32 v{x2}, 1, v{q}", f"v_lshrrev_b32 v{x2}, 2, v{x2}", f"v_lshl_add_u32 v{x1}, v{x2}, 29, v{x1}",
            f"v_accvgpr_write_b32 a{st('stq2')}, v{x1}",
            f"s_mul_i32 s{U0}, s{sR}, 432", f"s_mul_i32 s{U1}, s{sS}, 27", f"s_add_u32 s{U1}, s{U1}, s{U0}",
            f"s_lshl_b32 s{U1}, s{U1}, 10", f"s_add_u32 s{sQst}, s{U1}, {QKV_BASE}",
            f"v_lshl_add_u32 v{x1}, v{q}, 11, v{x0_}", f"v_accvgpr_write_b32 a{st('qA')}, v{x1}",
            f"v_lshl_add_u32 v{x1}, v{q}, 1, 5", f"v_cmp_gt_u32 {MK}, 2, v{q}", "?s_nop 1",
            f"v_cndmask_b32 v{x1}, 4, v{x1}, {MK}", f"v_lshl_add_u32 v{x1}, v{x1}, 10, v{x0_}", f"v_accvgpr_write_b32 a{st('qB')}, v{x1}",
            f"s_mul_i32 s{U1}, s{sS}, 9", f"s_add_u32 s{U1}, s{U1}, s{U0}", f"s_lshl_b32 s{U1}, s{U1}, 10", f"s_add_u32 s{sQld}, s{U1}, {QKV_BASE}",
            f"s_add_u32 s{U2}, s{sW}, 144", f"s_lshl_b32 s{U2}, s{U2}, 10", f"s_add_u32 s{sKV[2]}, s{U2}, s{sQld}",
            f"s_sub_u32 s{sKV[0]}, s{sKV[2]}, {2*432*1024}", f"s_cmp_ge_u32 s{sR}, 2", f"s_cselect_b32 s{sKV[0]}, s{sKV[0]}, {OOB}",
            f"s_sub_u32 s{sKV[1]}, s{sKV[2]}, {432*1024 + 1024}", f"s_cmp_ge_u32 s{sR}, 1", f"s_cselect_b32 s{sKV[1]}, s{sKV[1]}, {OOB}",
            f"s_sub_u32 s{sKV[2]}, s{sKV[2]}, 2048"]
    def d_h(tb):
        x2 = tb
        return [f"s_and_b32 s{U2}, s{sS}, 1", f"s_lshl_b32 s{U1}, s{sR}, 1", f"s_add_u32 s{U1}, s{U1}, s{U2}",
            f"s_mul_i32 s{sPF}, s{U1}, 20", f"s_add_u32 s{sPF}, s{sPF}, s{sW}", f"s_lshl_b32 s{sPF}, s{sPF}, 6", f"s_add_u32 s{sPF}, s{sPF}, {PF_BASE}",
            f"s_lshl_b32 s{U1}, s{sR}, 4", f"s_add_u32 s{U1}, s{U1}, s{sS}", f"s_lshl_b32 s{U3}, s{U1}, 2", f"s_add_u32 s{U3}, s{U3}, s{sW}",
            f"s_mul_i32 s{sHst}, s{U3}, {HXS}", f"s_add_u32 s{sHst}, s{sHst}, {HX_BASE}",
            f"s_lshl_b32 s{U1}, s{U3}, 6", f"s_add_u32 s{U1}, s{U1}, {HF_BASE}", f"v_accvgpr_write_b32 a{st('hfo')}, s{U1}",
            f"v_min_u32 v{x2}, 64, v{vL16}", f"v_lshlrev_b32 v{x2}, 4, v{x2}", f"v_add_u32 v{x2}, s{sPF}, v{x2}",
            f"v_writelane_b32 v{x2}, s{U1}, 7", f"v_accvgpr_write_b32 a{st('pt')}, v{x2}",
            f"s_xor_b32 s{U1}, s{U1}, 256", f"v_accvgpr_write_b32 a{st('hfp')}, s{U1}",
            f"s_xor_b32 s{U3}, s{U3}, 4", f"s_mul_i32 s{sHld}, s{U3}, {HXS}", f"s_add_u32 s{sHld}, s{sHld}, {HX_BASE}",
            f"s_and_b32 s{U0}, s{sI}, 1", f"s_xor_b32 s{U0}, s{U0}, 1",
            f"s_mul_i32 s{U3}, s{U2}, {640 << 5}", f"s_sub_u32 s{U1}, s{sHld}, s{U3}",
            f"s_lshl_b32 s{U3}, s{U0}, 11", f"s_add_u32 s{sPo[0]}, s{U1}, s{U3}", f"s_xor_b32 s{U3}, s{U3}, 0x800", f"s_add_u32 s{sPo[1]}, s{U1}, s{U3}",
            f"s_mul_i32 s{U3}, s{sI}, {8*HXS}", f"s_sub_u32 s{sPbase}, s{sHld}, s{U3}"]
    def d_flags(tb):
        m, d, x = tb, tb+1, tb+2
        return [f"v_bfe_u32 v{m}, v{vL16}, 6, 2", f"v_min_u32 v{m}, 2, v{m}", f"v_bfe_u32 v{d}, v{vL16}, 4, 2", f"v_min_u32 v{d}, 2, v{d}",
            f"v_min_u32 v{x}, 1, v{m}", f"v_mul_u32_u24 v{d}, v{d}, v{x}", f"v_sub_u32 v{d}, s{sR}, v{d}", f"v_max_i32 v{d}, 0, v{d}",
            f"v_lshl_add_u32 v{m}, v{m}, 4, s{sS}", f"v_mul_u32_u24 v{m}, 0x5556, v{m}", f"v_lshrrev_b32 v{m}, 16, v{m}",
            f"v_lshl_add_u32 v{m}, v{d}, 4, v{m}", f"v_lshlrev_b32 v{m}, 7, v{m}", f"v_add_u32 v{m}, {QF_BASE}, v{m}",
            f"v_accvgpr_write_b32 a{st('qf')}, v{m}"]
    def d_B(tb):
        x0_, x1, x2, x3, pc_, tt_ = tb, tb+1, tb+2, tb+3, tb+4, tb+5
        L = [f"v_and_b32 v{pc_}, 48, v{vL16}", f"v_lshrrev_b32 v{tt_}, 9, v{vL16}",
            f"v_mul_u32_u24 v{x1}, {32*9216 - 64}, v{tt_}", f"v_add_u32 v{x1}, v{x1}, v{vA[0]}"]
        for i in range(3):
            if i: L.append(f"v_add_u32 v{x1}, {64*9216-1024}, v{x1}")
            L.append(f"v_accvgpr_write_b32 a{st('sing',3)+i}, v{x1}")
        L += [f"s_and_b32 s{U0}, s{sI}, 1", f"s_xor_b32 s{U0}, s{U0}, 1",
            f"v_xor_b32 v{x3}, s{U0}, v{tt_}", f"v_lshlrev_b32 v{x3}, 6, v{x3}",
            f"v_bfe_u32 v{x0_}, v{vL16}, 6, 2", f"v_bfe_u32 v{x1}, v{vL16}, 8, 1",
            f"v_xor_b32 v{x2}, s{sS}, v{x1}", f"v_mul_u32_u24 v{x2}, 36, v{x2}", f"v_add3_u32 v{x2}, v{x2}, v{x0_}, 16",
            f"v_mul_u32_u24 v{x2}, 1152, v{x2}", f"v_add_u32 v{x2}, v{x2}, v{pc_}", f"v_accvgpr_write_b32 a{st('Obm')}, v{x2}",
            f"v_add_u32 v{x2}, v{x2}, v{x3}", f"v_accvgpr_write_b32 a{st('Ob')}, v{x2}",
            f"s_lshl_b32 s{U1}, s{sW}, 2", f"v_add_u32 v{x0_}, s{U1}, v{x0_}"]
        for name, hi in (("D", 16), ("Oa", 20)):
            L += [f"v_mad_u32_u24 v{x2}, v{x1}, {hi}, v{x0_}", f"v_mul_u32_u24 v{x2}, 1152, v{x2}", f"v_add_u32 v{x2}, v{x2}, v{pc_}",
                  f"v_accvgpr_write_b32 a{st(name+'m')}, v{x2}", f"v_add_u32 v{x2}, v{x2}, v{x3}", f"v_accvgpr_write_b32 a{st(name)}, v{x2}"]
        return L
    def d_rows(tb):
        L = [f"s_mul_i32 s{sKo[j]}, s{sPair[j]}, 576" for j in range(4)] + [f"s_mul_i32 s{sKo[4]}, s{sSing}, 576"]
        L += [f"s_and_b32 s{U0}, s{sS}, 1", f"s_lshl_b32 s{U0}, s{U0}, 1", f"s_sub_u32 s{U0}, 1, s{U0}",
              f"s_mul_i32 s{U1}, s{U0}, {320*1152}"]
        L += [f"s_add_u32 s{sKp[j]}, s{sKo[j]}, s{U1}" for j in range(4)]
        L += [f"s_mul_i32 s{U1}, s{U0}, {32*1152}", f"s_add_u32 s{sKp[4]}, s{sKo[4]}, s{U1}",
              f"s_mul_i32 s{sAo}, s{sS}, {36*1152}", f"s_mul_i32 s{U1}, s{U0}, {36*1152}", f"s_add_u32 s{sAp}, s{sAo}, s{U1}"]
        L += [f"s_add_u32 s{sKo2[j]}, s{sKo[j]}, {32*1152}" for j in range(4)] + [f"s_add_u32 s{sKp2[j]}, s{sKp[j]}, {32*1152}" for j in range(4)]
        return L
    def d_T1(tb):
        x0_, x1, x2, n, q = tb, tb+1, tb+2, tb+3, tb+4
        return [f"v_bfe_u32 v{n}, v{vL16}, 4, 4", f"v_lshrrev_b32 v{q}, 8, v{vL16}",
            f"s_lshl_b32 s{U0}, s{sW}, 8", f"s_add_u32 s{U0}, s{U0}, {TBASE}",
            f"v_lshlrev_b32 v{x0_}, 3, v{n}", f"v_add_u32 v{x0_}, s{U0}, v{x0_}",
            f"v_mul_u32_u24 v{x1}, {2*GS}, v{q}", f"v_add_u32 v{x1}, v{x1}, v{x0_}", f"v_accvgpr_write_b32 a{st('KA')}, v{x1}",
            f"v_lshl_add_u32 v{x1}, v{q}, 1, 6", f"v_cmp_gt_u32 {MK}, 2, v{q}", "?s_nop 1", f"v_cndmask_b32 v{x1}, 4, v{x1}, {MK}",
            f"v_mul_u32_u24 v{x1}, {GS}, v{x1}", f"v_add_u32 v{x1}, v{x1}, v{x0_}", f"v_accvgpr_write_b32 a{st('KB')}, v{x1}",
            f"v_lshrrev_b32 v{x0_}, 6, v{vL16}", f"v_lshlrev_b32 v{x0_}, 3, v{x0_}", f"s_add_u32 s{U0}, s{U0}, {10*GS}", f"v_add_u32 v{x0_}, s{U0}, v{x0_}",
            f"v_bfe_u32 v{x1}, v{vL16}, 4, 2", f"v_mul_u32_u24 v{x2}, {GS}, v{x1}", f"v_add_u32 v{x2}, v{x2}, v{x0_}", f"v_accvgpr_write_b32 a{st('V0')}, v{x2}",
            f"v_min_u32 v{x1}, 1, v{x1}", f"v_add_u32 v{x1}, 4, v{x1}", f"v_mul_u32_u24 v{x2}, {GS}, v{x1}", f"v_add_u32 v{x2}, v{x2}, v{x0_}",
            f"v_accvgpr_write_b32 a{st('V1')}, v{x2}",
            f"v_mul_u32_u24 v{x0_}, 1152, v{n}", f"v_lshl_add_u32 v{x0_}, v{q}, 3, v{x0_}", f"v_accvgpr_write_b32 a{st('ov')}, v{x0_}"]
    def d_T2(tb):
        x0_, x1, x2, x3 = tb, tb+1, tb+2, tb+3
        L = [f"v_bfe_u32 v{x1}, v{vL16}, 4, 4", f"v_lshrrev_b32 v{x0_}, 8, v{vL16}", f"v_lshlrev_b32 v{x0_}, 2, v{x0_}", f"v_sub_u32 v{x0_}, v{x1}, v{x0_}",
             f"v_mov_b32 v{x1}, {f2u(-1e30)}"]
        for r in range(4):
            L += [f"v_cmp_le_i32 {MK}, {r}, v{x0_}", "?s_nop 1", f"v_cndmask_b32 v{x2}, 0, v{x1}, {MK}", f"v_accvgpr_write_b32 a{st('mf',4)+r}, v{x2}",
                  f"v_xor_b32 v{x2}, v{x2}, v{x1}", f"v_accvgpr_write_b32 a{st('ml',4)+r}, v{x2}"]
        L += [f"v_and_b32 v{x2}, 1, v{x0_}", f"v_lshlrev_b32 v{x2}, 4, v{x2}", f"v_mov_b32 v{x1}, 0x3f80", f"v_lshlrev_b32 v{x1}, v{x2}, v{x1}",
              f"v_ashrrev_i32 v{x0_}, 1, v{x0_}"]
        for hf in range(2):
            L += [f"v_cmp_eq_u32 {MK}, {hf}, v{x0_}", "?s_nop 1", f"v_cndmask_b32 v{x3}, 0, v{x1}, {MK}", f"v_accvgpr_write_b32 a{SEL+2+hf}, v{x3}"]
        L += [f"v_accvgpr_write_b32 a{SEL+r}, 0" for r in (0, 1, 4, 5)]
        return L
    def d_col(tb):
        L = [f"s_and_b32 s{U2}, s{sS}, 1", f"s_lshl_b32 s{U0}, s{U2}, 6", f"s_add_u32 s{sCol[0]}, s{U0}, 512",
             f"s_mul_i32 s{U2}, s{U2}, 640", f"s_lshr_b32 s{U1}, s{sI}, 1"]
        for p in range(1, 5):
            L += [f"s_xor_b32 s{U0}, s{U1}, {4-p}", f"s_lshl_b32 s{U0}, s{U0}, 7", f"s_add_u32 s{sCol[p]}, s{U0}, s{U2}"]
        return L

    stages = {}
    post = {}
    def X(S, t): return f"v[{XN+8*S+4*t}:{XN+8*S+4*t+3}]"
    def slot_of(k):
        if k < 28: return k % NS
        if k < 33: return k % 4
        if k in (52, 53): k = 105 - k
        return [1, 2, 3, 0, 4, 5][(k - 36) % 6]
    def grp(k, g, srdreg, soffs, vregs):
        slot = slot_of(k) * SLOT
        out = [("s", f"s_add_u32 m0, s{sMq}, {slot + 3072*g}")]
        out += [("s", t) for t in soffs]
        for i, v in enumerate(vregs):
            out.append(("m", f"buffer_load_dwordx4 v{v}, s[{srdreg}:{srdreg+3}], s{sOff} offen offset:{1024*i} lds"))
        return out
    k = 0
    for stg in range(6):
        dma = []
        for P in range(2):
            dma += grp(k, P, SQKV, [f"s_add_u32 s{sOff}, s{sKr3[stg//2]}, {(stg%2)*96*3456 + 128*P}"], vS)
        fr = []
        for uu in range(3):
            S = 3*stg + uu
            for tau in range(7):
                P = tau // 4; off = 1024*(3*P + uu) + 512*((tau % 4)//2) + 32*(tau % 2)
                fr.append((off, QACC + 8*tau, X(S, 0), X(S, 1), S == 0, ("Q", S, tau)) + ((D2 + 4*tau,) if stg < nraw else ()))
        stages[k] = dict(dma=dma, fr=fr); k += 1
    rot = 2
    for j in range(4):
        ag = ACC[rot % 3]; au = ACC[(rot + 1) % 3]; rot += 2
        for (srdreg, acc) in ((SG, ag), (SU, au)):
            for stg in range(3):
                dma = grp(k, 0, srdreg, [f"s_add_u32 s{sOff}, s{sPair[j]}, s{sKr9[stg]}"], vA)
                dma += grp(k, 1, srdreg, [f"s_add_u32 s{sOff}, s{sOff}, {96*9216}"], vA)
                fr = []
                for uu in range(6):
                    S = 6*stg + uu
                    for tau in range(4):
                        fr.append((1024*uu + 512*(tau//2) + 32*(tau%2), acc + 8*tau, X(S, 0), X(S, 1), S == 0, None))
                stages[k] = dict(dma=dma, fr=fr); k += 1
            if srdreg == SG: post[k-1] = ("g", [ag], ag, 4)
        post[k-1] = ("h", [ag, au], [(ag, au, 2*j), (ag+16, au+16, 2*j+1)])
    ag = ACC[rot % 3]
    for stg in range(3):
        dma = grp(k, 0, SG, [f"s_add_u32 s{sOff}, s{sSing}, s{sKr9[stg]}"], vS) + [x if x[1] != "s_nop 0" else ("n", "s_nop 0") for x in grp(k, 1, SU, ["s_nop 0"], vS)]
        if stg == 0: dma = [("v", f"v_accvgpr_read_b32 v{vS[i]}, a{st('sing',3)+i}") for i in range(3)] + dma
        fr = []
        for uu in range(6):
            S = 6*stg + uu
            for m in range(2):
                for c in range(2):
                    fr.append((3072*m + 1024*(uu//2) + 512*(uu%2) + 32*c, ag + 16*m + 8*c, X(S, 0), X(S, 1), S == 0, None))
        stages[k] = dict(dma=dma, fr=fr); k += 1
    post[k-1] = ("h", [ag], [(ag, ag+16, 8)])
    assert k == 33
    KB0 = 36
    ent = [(p, ks) for ks in range(19) for p in (1, 0)] + [(2, ks) for ks in range(odef)] + [(p, ks) for ks in (19, 20) for p in (1, 0)]
    ent += [(2, ks) for ks in range(odef, 21)]
    for p in (3, 4): ent += [(p, ks) for ks in range(21)]
    BACC = {0: 144, 1: 176, 2: 208, 3: 144, 4: 176}
    def Hop(ks, t):
        if ks < 10: b = H + 8*ks + 4*t
        elif ks < 20: b = HP + 8*(ks-10) + 4*t
        else: b = HB + 4*t
        return f"a[{b}:{b+3}]"
    nBst = (len(ent) + 5) // 6
    late = {}
    bpost = {}
    for sb in range(nBst):
        k = KB0 + sb; slot = slot_of(k) * SLOT
        dma = []; fr = []
        for u, (p, ks) in enumerate(ent[6*sb:6*sb+6]):
            i = u % 3
            if i == 0: dma.append(("s", f"s_add_u32 m0, s{sMq}, {slot + 3072*(u//3)}"))
            kk = ks % 10
            if ks == 20:
                dma.append(("v", f"v_accvgpr_read_b32 v{vT1}, a{st('Obm' if p == 0 else 'Ob')}"))
                dma.append(("v", f"v_add_u32 v{vT1}, {2048-1024*i}, v{vT1}"))
                dma.append(("m", f"buffer_load_dwordx4 v{vT1}, s[{SO}:{SO+3}], s{sCol[p]} offen offset:{1024*i} lds"))
            elif kk == 9:
                dma.append(("v", f"v_accvgpr_read_b32 v{vT1}, a{st('Oam' if p == 0 else 'Oa')}"))
                dma.append(("v", f"v_add_u32 v{vT1}, {2048-1024*i}, v{vT1}"))
                dma.append(("s", f"s_add_u32 s{sOff}, s{sAo if ks < 10 else sAp}, s{sCol[p]}"))
                dma.append(("m", f"buffer_load_dwordx4 v{vT1}, s[{SO}:{SO+3}], s{sOff} offen offset:{1024*i} lds"))
            else:
                if ks == 0:
                    regs = vA if p == 0 else vS
                    dma.append(("v", f"v_accvgpr_read_b32 v{regs[2]}, a{st('Dm' if p == 0 else 'D')}"))
                    dma.append(("v", f"v_add_u32 v{regs[2]}, s{sCol[p]}, v{regs[2]}"))
                    dma += [("v", f"v_add_u32 v{regs[j]}, {2048-1024*j}, v{regs[2]}") for j in range(2)]
                elif i == 0: dma.append(("n", "s_nop 0"))
                tab = ((sKo, sKo2) if ks < 10 else (sKp, sKp2))[kk % 2]
                v = (vA if p == 0 else vS)[i]
                dma.append(("m", f"buffer_load_dwordx4 v{v}, s[{SD}:{SD+3}], s{tab[kk//2]} offen offset:{1024*i} lds"))
            for tau in range(2 if p == 0 else 4):
                f = (1024*u + 512*(tau//2) + 32*(tau%2), BACC[p] + 8*tau, Hop(ks, 0), Hop(ks, 1), ks == 0, ("B", p, ks, tau))
                if p == 4 or (p == 3 and tau >= 2): late.setdefault((p, tau), {}).setdefault(k, []).append((k,) + f)
                else: fr.append(f)
        stages[k] = dict(dma=dma, fr=fr)
    KEND = KB0 + nBst

    def emit_dma(k):
        for it in stages[k]["dma"]: emit_dma_item(k, it)

    fill = deque(); fill2 = deque(); fill3 = deque(); dmaq = deque(); extq = []; spin_blocks = []; pubs = []; toks = {}
    hooks = {}; ihooks = {}; ipost = {}
    def emit_fill(it):
        kind, txt = it[1], it[2]
        if kind == "m": return a.vm(txt)
        if kind == "d": return a.ds(txt)
        if kind == "f": return txt()
        a.i(txt)
    def F(nb, kind, txt, sets=(), space=0): fill.append((nb, kind, txt, list(sets), space))
    def Fm(nb, name, txt, sets=(), space=0):
        def fn(): toks[name] = a.vm(txt)
        fill.append((nb, "f", fn, list(sets), space))
    def defer(L, accset):
        i = 0
        while i < len(L):
            g = [L[i]]; i += 1
            if g[0].startswith("s_cmp") or (i < len(L) and L[i].startswith("?")): g.append(L[i]); i += 1
            fill3.append((g, accset))
    def emit3(drain=False):
        g, _ = fill3.popleft()
        for t in g:
            if t.startswith("?"):
                if drain: a.i(t[1:])
            else: a.i(t)
    def G(nb, kind, txt, space=0): fill2.append((nb, kind, txt, [], space))
    def Gm(nb, name, txt, space=0):
        def fn(): toks[name] = a.vm(txt)
        fill2.append((nb, "f", fn, [], space))
    def poll_check(name, va, vf, soff="0", offs=0):
        a.wait(vm=toks[name])
        a.i(f"v_cmp_ne_u32 vcc, s{sTag}, v{vf}")
        a.i("s_nop 0")
        a.i("s_cmp_lg_u64 vcc, 0")
        a.i(f"s_cbranch_scc1 L_spin_{name}")
        a.label(f"L_back_{name}")
        spin_blocks.append((name, va, vf, soff, offs))
    def stream(frs, dma_after, flush=True, gap=gap, tailnop=True):
        N = len(frs); first_of = {}
        for i, f in enumerate(frs): first_of.setdefault(f[0], i)
        rd = {}; nextbar = [0]; hold_until = [0]; lastd = [-100]; gpf = 3 if len(frs[0]) > 7 else 2
        def rd_half(i, hf):
            k, off = frs[i][0], frs[i][1]
            o = slot_of(k) * SLOT + off; base = vRd[o // (2*SLOT)]; oo = o % (2*SLOT)
            fb = FR + 4*(i % NB) + 2*hf
            rd[i] = a.ds(f"ds_read_b64_tr_b16 a[{fb}:{fb+1}], v{base} offset:{oo + 256*hf}")
        def pre_read(i, cur):
            k = frs[i][0]
            if first_of[k] == i:
                nfl = 0
                while any(kk == k for kk, _ in dmaq):
                    kk, it = dmaq.popleft(); emit_dma_item(kk, it); nfl += 1
                if nfl: print("late flush", nfl, "at", k, file=sys.stderr)
                tr.stage = k; tr(f"w{k}")
                a.wait(vm=dma_tok[k])
                a.i("s_barrier")
                tr(f"b{k}")
                for p in list(pubs):
                    if p[3] and toks.get(p[0]) is not None and toks[p[0]] <= a.vm_done:
                        p[1](); pubs.remove(p); print("pub", p[0], "at barrier", k, file=sys.stderr)
                for kk in dma_after(k):
                    for it in stages[kk]["dma"]: dmaq.append((kk, it))
                if k in hooks: hooks[k](cur)
                nextbar[0] = first_of.get(k + 1, N + D) - D
                return True
            return False
        for i in range(min(D, N)):
            pre_read(i, 0); rd_half(i, 0); rd_half(i, 1)
        a.wait(lg=rd[1])
        gi = 0; lastm = -100
        def other(i):
            nonlocal lastm
            for p in list(pubs):
                if not p[3] and toks.get(p[0]) is not None:
                    if toks[p[0]] <= a.vm_done or (p[2][0] is not None and i >= p[2][0]):
                        print("pub", p[0], "at frag", i, "stage", frs[i][0], "forced" if toks[p[0]] > a.vm_done else "", file=sys.stderr); a.wait(vm=toks[p[0]]); p[1](); pubs.remove(p); return
                    if p[2][0] is None: p[2][0] = i + p[2][1]
            if dmaq:
                kk, it = dmaq[0]
                ok = True
                if it[0] == "n":
                    dmaq.popleft(); kk, it = dmaq[0]
                if it[0] == "h":
                    dmaq.popleft(); hold_until[0] = gi + it[1]; ok = False
                elif it[0] == "m":
                    if kk == "z": ok = gi - lastm >= 2
                    else:
                        g_eff = gap; urgent = False; cnt = 0
                        for k2, it2 in dmaq:
                            if it2[0] != "m": continue
                            cnt += 1
                            if k2 in first_of:
                                dl = gpf * (first_of[k2] - D) - lead
                                if gi + cnt * gap > dl: g_eff = min(g_eff, max(2, (dl - gi) // cnt)); urgent = True
                        ok = gi - lastd[0] >= g_eff and gi - lastm >= 2 and (gi >= hold_until[0] or urgent)
                if ok:
                    dmaq.popleft(); emit_dma_item(kk, it)
                    if isinstance(it[1], str) and it[1].startswith("s_cmp"):
                        kk, it = dmaq.popleft(); emit_dma_item(kk, it)
                    if it[0] == "m": lastm = gi; lastd[0] = gi
                    return
            for q_ in (fill, fill2):
                if q_ and q_[0][0] <= i and (q_[0][4] == 0 or gi - lastm >= q_[0][4]):
                    it = q_.popleft(); emit_fill(it)
                    if it[4]: lastm = gi
                    return
            if fill3: emit3()
        for i in range(N):
            k, off, acc, b0, b1, first, tag = frs[i][:7]
            if first_of[k] == i: astamp_stage(k)
            if trace == (200, 201) and 24 <= k < 33 and i % 8 == 6: tr.stage = 200; tr(f"a{k}"); tr.stage = k
            if trace == (100, 101) and k >= 36 and i % 8 == 2: tr.stage = 100; tr(f"f{i}"); tr.stage = k
            if i in ihooks: ihooks.pop(i)(i)
            if tag in ihooks: ihooks.pop(tag)(i)
            while extq: dmaq.append(extq.pop(0))
            assert rd[i] <= a.lg_done
            fb = FR + 4*(i % NB)
            if first_of[k] + 1 == i and ("S", k) in ihooks: ihooks.pop(("S", k))(i)
            if first:
                nd = 0
                while any(any((x <= acc < x + 32) if isinstance(x, int) else (x[0] <= acc < x[1]) for x in it[3]) for it in fill):
                    emit_fill(fill.popleft()); nd += 1
                while any(x <= acc < x + 32 for _, x in fill3):
                    emit3(True); nd += 1
                if nd: print("drained", nd, "at stage", k, file=sys.stderr); a.i("s_nop 1")
            for t, b in enumerate((b0, b1)):
                d = f"v[{acc+4*t}:{acc+4*t+3}]"
                a.i(f"{MF} {d}, a[{fb}:{fb+3}], {b}, {'0' if first else d}")
                used = False
                if i + D < N:
                    if t == 0: used = pre_read(i + D, i)
                    rd_half(i + D, t)
                if t == 1 and i + 1 < N and rd[i+1] > a.lg_done:
                    a.wait(lg=rd[min(i+wev, N-1)]); used = True
                if not used: other(i)
                gi += 1
            if len(frs[i]) > 7:
                d = f"v[{frs[i][7]}:{frs[i][7]+3}]"
                a.i(f"{MF} {d}, a[{fb}:{fb+3}], a[{ONES}:{ONES+3}], {'0' if first else d}")
                other(i); other(i); gi += 1
            if tag in bpost: bpost[tag](i + 3)
            if k >= 36 and i in ipost: ipost.pop(i)(i + 3)
            if (i + 1 == N or frs[i+1][0] != k) and k in post: do_post(post.pop(k), i + 3)
        while dmaq:
            kk, it = dmaq.popleft(); emit_dma_item(kk, it)
        if tailnop or fill: a.i("s_nop 7")
        while fill: emit_fill(fill.popleft())
        while fill2: emit_fill(fill2.popleft())
        if fill3: print("fill3 left", len(fill3), file=sys.stderr)
        while fill3: emit3(True)
    def astamp_stage(k):
        if k == 6: astamp("P:qend")
        if 6 <= k < 33 and k % 3 == 0: astamp(f"A:{k}")
        if k < 6: astamp(f"Q:{k}")
        if k >= 36 and k % 2 == 0: astamp(f"B:{k}")
    def pack4(nb, d, e, sets):
        F(nb, "v", f"v_cvt_pk_bf16_f32 v{d}, v{d}, v{d+1}", sets); F(nb, "v", f"v_cvt_pk_bf16_f32 v{d+1}, v{d+2}, v{d+3}", sets)
        F(nb, "v", f"v_cvt_pk_bf16_f32 v{d+2}, v{e}, v{e+1}", sets); F(nb, "v", f"v_cvt_pk_bf16_f32 v{d+3}, v{e+2}, v{e+3}", sets)
    def flag_store(voff_txts, soff, offs=0):
        for t in voff_txts: a.i(t)
        a.i(f"v_mov_b32 v{q1}, s{sTag}")
        a.vm(f"buffer_store_dword v{q1}, v{q0}, {WS}, {soff} offen offset:{offs} sc1")
    def do_post(p, nb):
        if p[0] == "g" or (p[0] == "h" and len(p[2]) == 1):
            g = p[2] if p[0] == "g" else p[2][0][0]
            for tau in range(p[3] if p[0] == "g" else 2):
                for t in range(2):
                    for r in range(4): F(nb, "v", f"v_mul_f32 v{g+8*tau+4*t+r}, v{RS2[t]}, v{g+8*tau+4*t+r}", p[1])
        if p[0] == "h":
            sets = p[1]
            for (g, u_, ks) in p[2]:
                F(nb, "s", f"s_add_u32 s{sPst}, s{sHst}, {2048*ks}", sets)
                for t in range(2):
                    for c in range(2):
                        for r in range(4):
                            o = 8*c + 4*t + r
                            F(nb, "v", f"v_mul_f32 v{g+o}, v{g+o}, v{u_+o}", sets)
                    pack4(nb, g + 4*t, g + 8 + 4*t, sets)
                    for r in range(4):
                        F(nb, "v", f"v_accvgpr_write_b32 a{H+8*ks+4*t+r}, v{g+4*t+r}", sets)
                    Fm(nb, "h1st" if (ks, t) == (3, 1) else "hst", f"buffer_store_dwordx4 v[{g+4*t}:{g+4*t+3}], v{vL16}, {WS}, s{sPst} offen offset:{1024*t} sc1", sets, 3)
            if p[2][-1][2] == 3:
                pubs.append(("h1st", lambda: flag_store([f"v_accvgpr_read_b32 v{q0}, a{st('hfo')}"], "0", 8), [None, 110], False))
        elif p[0] == "q":
            sets = p[1]
            F(nb, "v", f"v_accvgpr_read_b32 v{q0}, a{st('stq')}", sets)
            for tau in range(7):
                sets = [ACC[tau // 4]]
                if tau == 6: F(nb, "v", f"v_accvgpr_read_b32 v{q0}, a{st('stq2')}", sets)
                F(nb, "s", f"s_add_u32 s{sPst}, s{sQst}, {4096*tau}", sets)
                for t in range(2):
                    b = QACC + 8*tau + 4*t
                    for r in range(4): F(nb, "v", f"v_mul_f32 v{b+r}, v{QSC[t]}, v{b+r}", sets)
                    F(nb, "v", f"v_cvt_pk_bf16_f32 v{b}, v{b}, v{b+1}", sets); F(nb, "v", f"v_cvt_pk_bf16_f32 v{b+1}, v{b+2}, v{b+3}", sets)
                    Fm(nb, "qdone" if (tau, t) == (6, 1) else "qst", f"buffer_store_dwordx2 v[{b}:{b+1}], v{q0}, {WS}, s{sPst} offen offset:{128*t} sc1", sets, 3)
            def pubq():
                a.i(f"s_lshl_b32 s{sT0}, s{sR}, 4"); a.i(f"s_add_u32 s{sT0}, s{sT0}, s{sS}")
                a.i(f"s_lshl_b32 s{sT0}, s{sT0}, 7"); a.i(f"s_add_u32 s{sT0}, s{sT0}, {QF_BASE}")
                flag_store([f"v_mov_b32 v{q0}, 0"], f"s{sT0}")
            pubs.append(("qdone", pubq, [None, 0], True))

    def hook7(cur): toks["tag"] = a.vm(f"buffer_load_dword v207, off, s[{SDBG}:{SDBG+3}], 0 sc1")
    hooks[7] = hook7
    def hook10(cur):
        a.wait(vm=toks["tag"])
        a.label("L_tagchk")
        a.i(f"v_readfirstlane_b32 s{sTag}, v207")
        a.i("s_nop 0")
        a.i(f"s_cmp_eq_u32 s{sTag}, 0")
        a.i("s_cbranch_scc1 L_tagspin")
        a.label("L_tagok")
    hooks[10] = hook10
    DUM = f"a[{HP+76}:{HP+79}]"
    nw = 8 << lg_rpx
    def wid_code():
        return [("s", f"s_and_b32 s{sT3}, s{sR}, {(1 << lg_rpx) - 1}"), ("s", f"s_lshl_b32 s{sT3}, s{sT3}, 1"),
                ("s", f"s_and_b32 s{sT1}, s{sS}, 1"), ("s", f"s_add_u32 s{sT3}, s{sT3}, s{sT1}"),
                ("s", f"s_lshl_b32 s{sT3}, s{sT3}, 2"), ("s", f"s_add_u32 s{sT3}, s{sT3}, s{sW}")]
    def pf1_items():
        L = wid_code()
        L += [("v", f"v_accvgpr_read_b32 v{q2}, a{st('pt')}"), ("m", f"buffer_load_dword a{HP+75}, v{q2}, {WS}, 0 offen sc1")]
        if gupf is True: return L
        per = (18 * 4 + nw - 1) // nw
        L += [("s", f"s_lshr_b32 s{sT0}, s{sT3}, 2"), ("s", f"s_and_b32 s{sT1}, s{sSing}, 0xffffff80")]
        for j in range(per):
            L += [("s", f"s_add_u32 s{sT2}, s{sT0}, {j * (nw // 4)}"), ("s", f"s_mul_i32 s{sT2}, s{sT2}, {32*9216}"),
                  ("s", f"s_add_u32 s{sT2}, s{sT2}, s{sT1}"),
                  ("m", f"buffer_load_dwordx4 {DUM}, v{vA[0]}, s[{SG}:{SG+3}], s{sT2} offen"),
                  ("m", f"buffer_load_dwordx4 {DUM}, v{vA[0]}, s[{SU}:{SU+3}], s{sT2} offen")]
        return L
    def xr_items(q0=q0, q1=q1, q2=q2):
        L = [("v", f"v_bfe_u32 v{q1}, v{vL16}, 4, 4"), ("v", f"v_mul_u32_u24 v{q1}, 1152, v{q1}"), ("v", f"v_lshrrev_b32 v{q0}, 8, v{vL16}"),
             ("v", f"v_lshl_add_u32 v{q2}, v{q0}, 3, v{q1}"),
             ("s", f"s_and_b32 s{sT2}, s{sS}, 1"), ("s", f"s_mul_i32 s{sT0}, s{sT2}, 640"), ("s", f"s_lshl_b32 s{sT1}, s{sI}, 6"),
             ("s", f"s_add_u32 s{sT0}, s{sT0}, s{sT1}"), ("s", f"s_add_u32 s{sT0}, s{sT0}, s{sXrow}")]
        for t in range(2):
            if t: L.append(("s", f"s_add_u32 s{sT0}, s{sT0}, {16*1152}"))
            for c in range(2):
                L.append(("m", f"buffer_load_dwordx2 a[{XR+4*t+2*c}:{XR+4*t+2*c+1}], v{q2}, s[{SX}:{SX+3}], s{sT0} offen offset:{32*c}"))
        L += [("v", f"v_and_b32 v{q0}, 1, v{q0}"), ("v", f"v_lshl_add_u32 v{q2}, v{q0}, 5, v{q1}"),
              ("s", f"s_lshr_b32 s{sT0}, s{sI}, 2"), ("s", f"s_mul_i32 s{sT0}, s{sT0}, {16*1152}"), ("s", f"s_and_b32 s{sT1}, s{sI}, 3"),
              ("s", f"s_lshl_b32 s{sT1}, s{sT1}, 3"), ("s", f"s_add_u32 s{sT0}, s{sT0}, s{sT1}"), ("s", f"s_lshl_b32 s{sT2}, s{sT2}, 6"),
              ("s", f"s_add_u32 s{sT0}, s{sT0}, s{sT2}"), ("s", f"s_add_u32 s{sT0}, s{sT0}, s{sXrow}"),
              ("m", f"buffer_load_dwordx2 a[{XR+8}:{XR+9}], v{q2}, s[{SX}:{SX+3}], s{sT0} offen offset:512")]
        return L
    def gu_items():
        assert lg_rpx == 4
        L = [("s", f"s_and_b32 s{sT1}, s{sS}, 1"), ("s", f"s_mul_i32 s{sT2}, s{sI}, 1152"),
             ("s", f"s_mul_i32 s{sT0}, s{sR}, {32*9216}"), ("s", f"s_add_u32 s{sT0}, s{sT0}, s{sT2}"),
             ("s", f"s_lshl_b32 s{sT3}, s{sT1}, 7"), ("s", f"s_add_u32 s{sT0}, s{sT0}, s{sT3}")]
        for j in range(5):
            for sr in ((SU,) if gupf == 'U' else (SG, SU)):
                L.append(("m", f"buffer_load_dwordx4 {DUM}, v{vA[0]}, s[{sr}:{sr+3}], s{sT0} offen offset:{256*j}"))
        L += [("s", f"s_add_u32 s{sT1}, s{sT1}, 16"), ("s", f"s_mul_i32 s{sT1}, s{sT1}, {32*9216}"), ("s", f"s_add_u32 s{sT1}, s{sT1}, s{sT2}"),
              ("s", f"s_min_u32 s{sT3}, s{sR}, 8"), ("s", f"s_lshl_b32 s{sT3}, s{sT3}, 7"), ("s", f"s_add_u32 s{sT1}, s{sT1}, s{sT3}")]
        for sr in ((SU,) if gupf == 'U' else (SG, SU)):
            L.append(("m", f"buffer_load_dwordx4 {DUM}, v{vA[0]}, s[{sr}:{sr+3}], s{sT1} offen"))
        return L
    def pf2_items():
        L = []
        for j in range((81 + nw - 1) // nw):
            L += [("s", f"s_add_u32 s{sT2}, s{sT3}, {j * nw + 2}"), ("s", f"s_min_u32 s{sT2}, s{sT2}, 82"),
                  ("s", f"s_lshl_b32 s{sT2}, s{sT2}, 10"), ("s", f"s_mul_i32 s{sT1}, s{sI}, {72*1152}"), ("s", f"s_add_u32 s{sT2}, s{sT2}, s{sT1}"),
                  ("m", f"buffer_load_dwordx4 {DUM}, v{vL16}, s[{SO}:{SO+3}], s{sT2} offen")]
        per_wave = 576 * 1152 // nw
        L += [("s", f"s_mul_i32 s{sT0}, s{sT3}, {per_wave}"), ("s", f"s_mul_i32 s{sT1}, s{sI}, {576*1152}"),
              ("s", f"s_add_u32 s{sT0}, s{sT0}, s{sT1}"), ("s", f"s_add_u32 s{sT0}, s{sT0}, 2048")]
        for j in range((per_wave + 1023) // 1024):
            if j % 4 == 0 and j: L.append(("s", f"s_add_u32 s{sT0}, s{sT0}, 4096"))
            L.append(("m", f"buffer_load_dwordx4 {DUM}, v{vL16}, s[{SD}:{SD+3}], s{sT0} offen offset:{1024*(j%4)}"))
        return L
    def hook_poll_issue(cur):
        assert not any(kk == "z" and it[0] != "h" for kk, it in dmaq)
        a.i(f"v_accvgpr_read_b32 v{q0}, a{st('qf')}")
        toks["kv"] = a.vm(f"buffer_load_dword v{q1}, v{q0}, {WS}, 0 offen sc1")
    def hook_poll_check(cur):
        poll_check("kv", q0, q1)
        for hd, nm in enumerate(("qA", "qB")):
            G(cur, "v", f"v_accvgpr_read_b32 v{q2}, a{st(nm)}")
            for t in range(2):
                for hf in range(2):
                    d = aQ + 8*hd + 4*t + 2*hf
                    Gm(cur, "qld", f"buffer_load_dwordx2 a[{d}:{d+1}], v{q2}, {WS}, s{sQld} offen offset:{128*t + 1024*hf} sc1", 3)
    def poison(j0):
        def f(cur):
            if j0 == 0:
                for r in range(4): G(cur, "v", f"v_accvgpr_write_b32 a{HP+40+r}, -1")
            G(cur, "s", f"s_add_u32 s{sT3}, s{sHst}, {21504 + 1024*j0}")
            for j in range(3): G(cur + psp*j, "m", f"buffer_store_dwordx4 a[{HP+40}:{HP+43}], v{vL16}, {WS}, s{sT3} offen offset:{1024*j} sc1", 2)
        return f
    hooks[poi[0]] = poison(0); hooks[poi[1]] = poison(3)
    hooks[19] = hook_poll_issue
    hooks[21] = hook_poll_check
    def h1_issue(cur):
        assert not any(p[0] == "h1st" for p in pubs) and not fill2
        a.i(f"v_accvgpr_read_b32 v{q0}, a{st('hfp')}")
        toks["h1"] = a.vm(f"buffer_load_dword v{q1}, v{q0}, {WS}, 0 offen offset:8 sc1")
    def h1_check(cur):
        poll_check("h1", q0, q1, "0", 8)
        for ks in range(4):
            for t in range(2):
                o = 2048*ks + 1024*t; d = HP + 8*ks + 4*t
                if o % 4096 == 0: G(cur, "s", f"s_add_u32 s{sT3}, s{sHld}, {o}")
                G(cur, "m", f"buffer_load_dwordx4 a[{d}:{d+3}], v{vL16}, {WS}, s{sT3} offen offset:{o % 4096} sc1", 5)
    hooks[26] = h1_issue
    hooks[28] = h1_check
    def hook_pf(cur):
        assert not any(p[0] == "qdone" for p in pubs) and not fill2
        L = [("z", it) for it in pf1_items() + pf2_items() + (xr_items() if xrat == 'A' else [])] + [("z", ("h", hold))]
        for it in reversed(L): dmaq.appendleft(it)
    hooks[pfk] = hook_pf
    def kv_dma(cur, mat):
        base = TBASE + mat*10*GS; go = mat*144*1024
        L = []
        L.append(("s", f"s_mul_i32 s{sT2}, s{sW}, {GS}"))
        L.append(("s", f"s_add_u32 m0, s{sT2}, {base}"))
        for r2 in range(3):
            L.append(("s", f"s_add_u32 s{sT0}, s{sKV[r2]}, {go}"))
            L.append(("m", f"buffer_load_dwordx4 v{vL16}, {WS}, s{sT0} offen offset:{1024*r2} sc1 lds"))
        L.append(("s", f"s_min_u32 s{sT1}, s{sT2}, {GS}"))
        L.append(("s", f"s_add_u32 s{sT1}, s{sT1}, s{sT2}"))
        L.append(("s", f"s_add_u32 m0, s{sT1}, {base + 4*GS}"))
        for r2 in range(3):
            L.append(("s", f"s_add_u32 s{sT0}, s{sKV[r2]}, {go + 4096}"))
            L.append(("m", f"buffer_load_dwordx4 v{vL16}, {WS}, s{sT0} offen offset:{1024*r2} sc1 lds"))
        L.append(("s", f"s_cmp_eq_u32 s{sW}, 1")); L.append(("s", f"s_cselect_b32 s{sT0}, s{sKV[1]}, s{sKV[2]}"))
        L.append(("s", f"s_cmp_eq_u32 s{sW}, 0")); L.append(("s", f"s_cselect_b32 s{sT0}, s{sKV[0]}, s{sT0}"))
        L.append(("s", f"s_min_u32 s{sT1}, s{sW}, 2")); L.append(("s", f"s_sub_u32 s{sT2}, s{sT1}, s{sW}"))
        L.append(("s", f"s_lshl_b32 s{sT2}, s{sT2}, 10")); L.append(("s", f"s_add_u32 s{sT0}, s{sT0}, s{sT2}"))
        L.append(("s", f"s_lshl_b32 s{sT1}, s{sT1}, 10"))
        L.append(("s", f"s_add_u32 m0, s{sT1}, {base + 9*GS}"))
        L.append(("s", f"s_add_u32 s{sT0}, s{sT0}, {go + 8192}"))
        L.append(("m", f"buffer_load_dwordx4 v{vL16}, {WS}, s{sT0} offen sc1 lds"))
        L.append(("v", f"v_add_u32 v{q2}, s{sT1}, v{vL16}"))
        d = KVS + 4*mat
        if mat == 0:
            L.append(("s", f"s_cmp_ge_u32 s{sT0}, {OOB}")); L.append(("s", f"s_cselect_b32 s{sT0}, 0xf149, 0"))
            L += [("v", f"v_accvgpr_write_b32 a{d}, s{sT0}"), ("v", f"v_accvgpr_write_b32 a{d+1}, 0"),
                  ("v", f"v_accvgpr_write_b32 a{d+2}, s{sT0}"), ("v", f"v_accvgpr_write_b32 a{d+3}, 0")]
        else:
            L += [("v", f"v_accvgpr_write_b32 a{d+r}, s{sC0}") for r in range(4)]
        L.append(("v", f"v_add_u32 v{q2}, {base + 5*GS}, v{q2}"))
        L.append(("d", f"ds_write_b128 v{q2}, a[{d}:{d+3}]"))
        return L
    stages[34] = dict(dma=kv_dma(0, 0), fr=[]); stages[35] = dict(dma=kv_dma(0, 1), fr=[])
    assert nraw == 0
    a.i(f"s_mov_b32 s{sC0}, 0x3f803f80"); a.i(f"s_mov_b32 s{sC1}, 0x3f80")
    RS2 = [vT0, vT1]; QSC = [q1, q2]
    SA = [234, 235, 236, 237]
    PR = [230, 238]; u = [160, 161]; TP = [164 + 2*i for i in range(4)]
    nx = [x0]; xrd = {}
    def xnext():
        if nx[0] < 18:
            if nx[0] >= NXU:
                if (nx[0] - NXU) not in xrd: return
                a.wait(lg=xrd[nx[0] - NXU])
            xdma(nx[0]); nx[0] += 1
    NHOP = 4
    def hop(h):
        def fn():
            if not iwarm: return
            a.i("s_mov_b64 exec, 0")
            for w in range(3):
                a.i(f"s_cmp_eq_u32 s{sW}, {w}"); a.i(f"s_cbranch_scc1 L_w{4*h+w}")
            a.i(f"s_branch L_w{4*h+3}")
            a.label(f"L_wret{h}")
            a.i("s_mov_b64 exec, -1")
        return fn
    def xread(n):
        t, ch = n // 9, n % 9
        while nx[0] <= n: xnext()
        tr(f"x{n}")
        a.wait(vm=dma_tok[("x", n)])
        tr(f"y{n}")
        for Sb in range(2):
            xrd[n] = a.ds(f"ds_read_b128 {X(2*ch + Sb, t)}, v{vXr[Sb]} offset:{2048*(n % NXU)}")
    def stats(n):
        t, ch = n // 9, n % 9
        a.wait(lg=xrd[n])
        for Sb in range(2):
            for i in range(4):
                x = XN + 8*(2*ch + Sb) + 4*t + i
                c1 = "0" if (ch == 0 and Sb == 0 and i < 2) else f"v{SA[i%2]}"
                c2 = "0" if (ch == 0 and Sb == 0 and i < 2) else f"v{SA[2+i%2]}"
                a.i(f"v_dot2_f32_bf16 v{SA[i%2]}, v{x}, s{sC0}, {c1}")
                a.i(f"v_dot2_f32_bf16 v{SA[2+i%2]}, v{x}, v{x}, {c2}")
    inv = 1.0/576.0
    def finstats(t):
        m, q = SA[0], SA[2]; rs, nm = PR[t], PR[t] + 1
        a.i("s_nop 2")
        a.i(f"v_add_f32 v{m}, v{m}, v{SA[1]}"); a.i(f"v_add_f32 v{q}, v{q}, v{SA[3]}")
        for sw in ("v_permlane32_swap_b32", "v_permlane16_swap_b32"):
            a.i(f"v_mov_b32 v{u[0]}, v{m}"); a.i(f"v_mov_b32 v{u[1]}, v{q}")
            a.i("s_nop 1")
            a.i(f"{sw} v{m}, v{u[0]}"); a.i(f"{sw} v{q}, v{u[1]}")
            a.i("s_nop 0")
            a.i(f"v_add_f32 v{m}, v{m}, v{u[0]}"); a.i(f"v_add_f32 v{q}, v{q}, v{u[1]}")
        def rb(r): a.i(f"v_cvt_pk_bf16_f32 v{r}, v{r}, v{r}"); a.i(f"v_lshlrev_b32 v{r}, 16, v{r}")
        a.i(f"v_mul_f32 v{m}, {f2u(inv)}, v{m}"); a.i(f"v_mul_f32 v{q}, {f2u(inv)}, v{q}")
        a.i(f"v_fma_f32 v{q}, -v{m}, v{m}, v{q}"); a.i(f"v_max_f32 v{q}, 0, v{q}")
        rb(q); a.i(f"v_add_f32 v{q}, {f2u(1e-5)}, v{q}"); rb(q)
        a.i(f"v_sqrt_f32 v{q}, v{q}"); rb(m); rb(q)
        a.i(f"v_rcp_f32 v{rs}, v{q}"); a.i(f"v_sub_f32 v{nm}, 0, v{m}")
        a.i(f"v_mul_f32 v{RS2[t]}, v{rs}, v{rs}"); a.i(f"v_mul_f32 v{QSC[t]}, {f2u(QG)}, v{rs}")
    def norm(S, t):
        for i in range(4):
            x = XN + 8*S + 4*t + i; tp = TP[i]
            a.i(f"v_dot2_f32_bf16 v{tp}, v{x}, s{sC1}, v{PR[t]+1}"); a.i(f"v_dot2_f32_bf16 v{tp+1}, v{x}, s{sHi}, v{PR[t]+1}")
        for i in range(4):
            x = XN + 8*S + 4*t + i; tp = TP[i]
            if i == 2: pass
            a.i(f"v_cvt_pk_bf16_f32 v{x}, v{tp}, v{tp+1}")
    sHi = 47
    a.i(f"s_mov_b32 s{sHi}, 0x3f800000")
    tr.stage = -1
    if trace and trace[0] < 0: a.i("s_mov_b32 s48, s53")
    su_early()
    if trace and trace[0] < 0:
        a.i("s_waitcnt lgkmcnt(0)"); a.i(f"v_writelane_b32 v{vLane}, s48, 0"); a.i(f"v_writelane_b32 v{vLane}, s54, 1"); trl.extend(["entry", "karg"])
    work = {hopat[h]: hop(h) for h in range(NHOP)}
    for n in range(9):
        if n in work: work.pop(n)()
        xread(n)
        xnext()
        if n < xfast: xnext()
        if n: stats(n - 1)
    pre = list(range(lnpre))
    vq_ = deque([(kk, it) for kk in pre for it in stages[kk]["dma"]] + ([("z", it) for it in gu_items()] if gupf else []))
    if gupf: dmaq.append(("z", ("h", hold0)))
    def vside():
        while vq_:
            kk, it = vq_.popleft(); emit_dma_item(kk, it)
            if it[0] == "m": break
    su_cas()
    stats(8); finstats(0)
    for n in range(9, 18):
        if n in work: work.pop(n)()
        xread(n)
        xnext()
        if n >= w0at: vside(); vside()
        norm(2*(n-9), 0); norm(2*(n-9)+1, 0)
        stats(n)
    assert not work
    astamp("P:stats")
    finstats(1)
    for S in range(18):
        norm(S, 1)
        if vq_ and (vq_[0][0] != "z" or S >= gu_at): vside()
    while vq_: vside()
    astamp("P:ln")
    if nraw == 6: do_post(("q", [ACC[0], ACC[1]]), 0)
    else: post[5] = ("q", [ACC[0], ACC[1]])
    defer(d_q(208) + d_h(208) + d_B(208), 208)
    def addhook(k, fn):
        old = hooks.get(k)
        hooks[k] = (lambda cur: (old(cur), fn(cur))) if old else fn
    def at_stage(k, L, accset):
        def f(i):
            assert not fill or True
            defer(L, accset)
        ihooks[("S", k)] = f
    at_stage(9, d_flags(200), ACC[1])
    at_stage(12, d_rows(0), -100)
    at_stage(15, d_T1(ACC[0]), ACC[0])
    at_stage(21, d_T2(ACC[2]), ACC[2])
    at_stage(24, d_col(0), -100)
    QO = 0; MFi = 16; MLa = 20; aKA, aKB, aV0, aV1 = 24, 25, 26, 27; w0, w1, w2, w3 = 28, 29, 30, 31
    def d_Tsetup():
        L = [f"v_accvgpr_read_b32 v{r}, a{st(nm)}" for nm, r in (("KA", aKA), ("KB", aKB), ("V0", aV0), ("V1", aV1))]
        for r in range(4): L += [f"v_accvgpr_read_b32 v{MFi+r}, a{st('mf')+r}", f"v_accvgpr_read_b32 v{MLa+r}, a{st('ml')+r}"]
        L += [f"v_lshrrev_b32 v{w0}, 8, v{vL16}", f"v_add_u32 v{w1}, -2, v{w0}", f"v_ashrrev_i32 v{w1}, 31, v{w1}",
              f"v_add_u32 v{w2}, -3, v{w0}", f"v_ashrrev_i32 v{w2}, 31, v{w2}", f"v_xor_b32 v{w3}, v{w1}, v{w2}", f"v_and_b32 v{w3}, 0x3f80, v{w3}"]
        for hd in range(2):
            for t in range(2):
                b = QO + 8*hd + 4*t
                L += [f"v_accvgpr_read_b32 v{b+r}, a{aQ+8*hd+4*t+r}" for r in range(4)]
                L += [f"v_and_b32 v{b}, v{w1 if hd else w2}, v{b}", f"v_and_b32 v{b+1}, v{w2 if hd else w1}, v{b+1}",
                      f"v_and_or_b32 v{b+2}, v{b+2}, v{w1}, v{w3}", f"v_and_b32 v{b+3}, v{w1}, v{b+3}"]
        return L
    def f31(i):
        assert not fill3
        assert toks["qld"] <= a.vm_done
        defer(d_Tsetup(), -100)
    ihooks[("S", 31)] = f31
    todo = [kk for kk in range(nraw, 33) if kk not in dma_tok]
    def dma_after_A(k):
        out = []
        while todo and todo[0] <= k + 4:
            kk = todo[0]
            prev = [x for x in range(nraw, kk) if slot_of(x) == slot_of(kk)]
            if prev and max(prev) > k - 2: break
            out.append(todo.pop(0))
        if k == kvat[0]: out.append(34)
        if k == kvat[1]: out.append(35)
        if k == 31: out.append(36)
        if k == 32: out.append(37)
        return out
    stream([(k,) + f for k in range(nraw, 33) for f in stages[k]["fr"]], dma_after_A)
    assert not todo
    astamp("P:aend"); astamp("A:end"); astamp("T:0")

    tr.stage = 200; tr("aend")
    a.wait(vm=max(dma_tok[34], dma_tok[35]), lg=a.lg_issued)
    a.i("s_barrier")
    SS = 32; OA = 208
    mx = [176, 178]; nmx = [180, 182]
    def Sr(t, kt): return SS + 72*t + 4*kt
    side = deque()
    def side_group(kk, items):
        cur = []
        for it in items:
            cur.append(it)
            if it[0] == "m":
                side.append(lambda kk=kk, cur=cur: [emit_dma_item(kk, x) for x in cur]); cur = []
        assert not cur
    side_group(38, stages[38]["dma"])
    if xrat == 'T': side_group("z", xr_items(196, 197, 198))
    side_group(39, stages[39]["dma"])
    fbn = [0]; NFB = [8]
    def nextfb():
        fb = FR + 4*(fbn[0] % NFB[0]); fbn[0] += 1; return fb
    def rd_k(hd, kt, lazy=None):
        fb = nextfb(); v = aKB if hd else aKA
        o = [f"ds_read_b64 a[{fb}:{fb+1}], v{v} offset:{128*kt}", f"ds_read_b64 a[{fb+2}:{fb+3}], v{v} offset:{128*kt + GS}"]
        if lazy is not None: lazy += o; return fb, None
        a.ds(o[0]); return fb, a.ds(o[1])
    def rd_v(hd, kap, tile, lazy):
        fb = nextfb(); v = aV1 if tile else aV0; o = 256*kap + (6*GS if (hd and not tile) else 0)
        lazy += [f"ds_read_b64_tr_b16 a[{fb}:{fb+1}], v{v} offset:{o}", f"ds_read_b64_tr_b16 a[{fb+2}:{fb+3}], v{v} offset:{o+128}"]
        return fb, None
    def qk_ops(hd, kt, fr):
        fb, tk = fr; o = []
        for t in range(2):
            j = kt - t
            if not 0 <= j <= 16: continue
            c = f"v[{MFi}:{MFi+3}]" if j == 0 else (f"v[{MLa}:{MLa+3}]" if j == 16 else "0")
            d = Sr(t, kt); b = QO + 8*hd + 4*t
            o.append((tk, f"{MF} v[{d}:{d+3}], a[{fb}:{fb+3}], v[{b}:{b+3}], {c}"))
        return o
    def max_ops(kt):
        o = []
        for t in range(2):
            j = kt - t
            if not 0 <= j <= 16: continue
            b = Sr(t, kt); m = mx[t]
            if j == 0:
                o.append(f"v_max_f32 v{m}, v{b}, v{b+1}"); o.append(f"v_max_f32 v{m+1}, v{b+2}, v{b+3}")
            else:
                o.append(f"v_max3_f32 v{m}, v{b}, v{b+1}, v{m}"); o.append(f"v_max3_f32 v{m+1}, v{b+2}, v{b+3}, v{m+1}")
        return o
    def finmax():
        for t in range(2): a.i(f"v_max_f32 v{mx[t]}, v{mx[t]}, v{mx[t]+1}")
        for sw in ("v_permlane32_swap_b32", "v_permlane16_swap_b32"):
            for t in range(2): a.i(f"v_mov_b32 v{mx[t]+1}, v{mx[t]}")
            a.i("s_nop 1")
            for t in range(2): a.i(f"{sw} v{mx[t]}, v{mx[t]+1}")
            a.i("s_nop 0")
            for t in range(2): a.i(f"v_max_f32 v{mx[t]}, v{mx[t]}, v{mx[t]+1}")
        for t in range(2): a.i(f"v_mul_f32 v{nmx[t]+1}, -1.0, v{mx[t]}")
    def exp_ops(kap):
        o1, o2, o3 = [], [], []
        for t in range(2):
            d = Sr(t, 2*kap)
            for hf in range(2):
                kt = 2*kap + hf; b = Sr(t, kt)
                if 0 <= kt - t <= 16:
                    for r in (0, 2): o1.append(f"v_pk_fma_f32 v[{b+r}:{b+r+1}], v[{b+r}:{b+r+1}], v[{nmx[t]}:{nmx[t]+1}], v[{nmx[t]}:{nmx[t]+1}] op_sel:[0,0,1] op_sel_hi:[1,0,1]")
                    for r in range(4): o2.append(f"v_exp_f32 v{b+r}, v{b+r}")
                    o3.append(f"v_cvt_pk_bf16_f32 v{d+2*hf}, v{b}, v{b+1}"); o3.append(f"v_cvt_pk_bf16_f32 v{d+2*hf+1}, v{b+2}, v{b+3}")
                else:
                    o3.append(f"v_mov_b32 v{d+2*hf}, 0"); o3.append(f"v_mov_b32 v{d+2*hf+1}, 0")
        return o1, o2 + o3
    def pv_ops(hd, kap, frs):
        o = []
        for tile in range(2):
            fb, tk = frs[tile]
            for t in range(2):
                d = OA + 16*hd + 8*t + 4*tile; b = Sr(t, 2*kap)
                o.append((tk, f"{MF} v[{d}:{d+3}], a[{fb}:{fb+3}], v[{b}:{b+3}], {'0' if kap == 0 else f'v[{d}:{d+3}]'}"))
        return o
    fbtok = {}
    def dsr(txt):
        tk = a.ds(txt); fbtok[int(re.search(r"a\[(\d+):", txt).group(1)) & ~3] = tk
    def merge(valu, mfs, lead=2, tailgap=1, reads=(), nside=3, lazywait=False):
        n = len(valu); m = len(mfs); pos = {}; reads = list(reads)
        if not lazywait: a.wait(lg=a.lg_issued)
        need = {txt: fbtok.get(int(re.search(r", a\[(\d+):", txt).group(1)), 0) for _, txt in mfs}
        order = [txt for _, txt in mfs]
        while len(reads) > m: dsr(reads.pop(0))
        for j in range(m): pos.setdefault(lead + (j * max(n - lead - tailgap, 1)) // max(m, 1), []).append(mfs[j])
        cnt = 0
        def one(txt):
            nonlocal cnt
            if lazywait and need[txt] > a.lg_done:
                j = order.index(txt); a.wait(lg=max(need[x] for x in order[j:j+4]))
            a.i(txt)
            if reads: dsr(reads.pop(0))
            cnt += 1
            if side and cnt % nside == 0: side.popleft()()
        for i, v in enumerate(valu):
            for (tk, txt) in pos.pop(i, []): one(txt)
            a.i(v)
        for kq in sorted(pos):
            for (tk, txt) in pos[kq]: one(txt)
    def slowT():
        for t in range(2): a.i(f"v_mov_b32 v{nmx[t]}, 1.0")
        for hd in range(2):
            kf = {}
            for kt in range(6): kf[kt] = rd_k(hd, kt)
            for kt in range(18):
                lz = []
                if kt + 6 < 18: fbx, _ = rd_k(hd, kt+6, lz)
                mo = max_ops(kt-3) if kt >= 3 else []
                for (tk, txt) in qk_ops(hd, kt, kf[kt]):
                    a.wait(lg=tk); a.i(txt)
                    if lz: tkx = a.ds(lz.pop(0))
                while lz: tkx = a.ds(lz.pop(0))
                if kt + 6 < 18: kf[kt+6] = (fbx, tkx)
                a.i("s_nop 1")
                for t in mo: a.i(t)
            a.i("s_nop 7")
            for kt in (15, 16, 17):
                for t in max_ops(kt): a.i(t)
            finmax()
            pend = []
            for kap in range(9):
                lz = []
                vf = [rd_v(hd, kap, 0, lz), rd_v(hd, kap, 1, lz)]
                o1, v = exp_ops(kap)
                for t in o1: a.i(t)
                merge(v, pend, lead=0, tailgap=5, reads=lz)
                pend = pv_ops(hd, kap, vf)
            a.i("s_nop 1")
            merge([], pend)
        a.i("s_nop 7")
    def hp_loads():
        for ks in range(4, 9):
            for t in range(2):
                def ld(ks=ks, t=t):
                    o = 2048*ks + 1024*t
                    if o % 4096 == 0: a.i(f"s_add_u32 s{sPst}, s{sHld}, {o}")
                    d = HP + 8*ks + 4*t
                    toks["hld"] = a.vm(f"buffer_load_dwordx4 a[{d}:{d+3}], v{vL16}, {WS}, s{sPst} offen offset:{o % 4096} sc1")
                side.append(ld)
    seq = [(hd, kap) for kap in range(9) for hd in range(2)]
    cur_n = [None]
    Sr_slow = Sr
    def Sr(t, kt):
        if cur_n[0] is None: return Sr_slow(t, kt)
        return SS + 16*(cur_n[0] % 3) + 8*t + 4*(kt % 2)
    def kreads(n, lz):
        hd, kap = seq[n]; return [rd_k(hd, 2*kap, lz), rd_k(hd, 2*kap+1, lz)]
    def qks(n, kf):
        hd, kap = seq[n]; cur_n[0] = n
        r = qk_ops(hd, 2*kap, kf[0]) + qk_ops(hd, 2*kap+1, kf[1]); cur_n[0] = None
        return r
    NFB[0] = 6; V1B = [FR + 24, FR + 28]
    lz = []; k0 = kreads(0, lz); nextfb(); nextfb(); k1 = kreads(1, lz)
    for t in lz: dsr(t)
    a.wait(lg=a.lg_issued - 4)
    for (_, txt) in qks(0, k0): a.i(txt)
    a.i("s_nop 5")
    knext = k1; pv = []
    for n in range(18):
        hd, kap = seq[n]
        tr.stage = 200; tr(f"t{n}")
        mf = (qks(n+1, knext) if n + 1 < 18 else []) + pv
        lz = []; lz2 = []
        v0f = rd_v(hd, kap, 0, lz2)
        if hd == 0:
            v1f = (V1B[kap % 2], None)
            lz2 += [f"ds_read_b64_tr_b16 a[{v1f[0]}:{v1f[0]+1}], v{aV1} offset:{256*kap}", f"ds_read_b64_tr_b16 a[{v1f[0]+2}:{v1f[0]+3}], v{aV1} offset:{256*kap+128}"]
        if n + 2 < 18: knext = kreads(n + 2, lz)
        cur_n[0] = n
        _, v = exp_ops(kap)
        pvn = pv_ops(hd, kap, [v0f, v1f])
        cur_n[0] = None
        merge(v, mf, lead=0, tailgap=tg, reads=lz + lz2, nside=4, lazywait=True)
        pv = pvn
        if n == th[0]:
            a.wait(vm=toks["hst"])
            flag_store([f"v_accvgpr_read_b32 v{q0}, a{st('hfo')}"], "0", 0)
        if n == th[1]:
            a.i(f"v_accvgpr_read_b32 v{q0}, a{st('hfp')}")
            toks["hp"] = a.vm(f"buffer_load_dword v{q1}, v{q0}, {WS}, 0 offen sc1")
        if n == th[2]:
            poll_check("hp", q0, q1); hp_loads()
    a.i("s_nop 1")
    merge([], pv)
    tr("tl")
    nleft = len(side)
    while side: side.popleft()()
    print("T side left", nleft, file=sys.stderr)
    a.i("s_nop 7")
    L = [0, 1, 2, 3] if False else [84, 85, 86, 87]; L2 = [88, 89, 90, 91]; BT = 92
    idx = [(hd, t) for hd in range(2) for t in range(2)]
    def getl():
        for n, (hd, t) in enumerate(idx):
            d = OA + 16*hd + 8*t + 4
            a.i(f"v_mov_b32 v{L[n]}, v{d}"); a.i(f"v_mov_b32 v{L2[n]}, v{d}")
        a.i("s_nop 1")
        for n in range(4): a.i(f"v_permlane16_swap_b32 v{L2[n]}, v{L[n]}")
        a.i("s_nop 0")
    getl()
    a.i(f"v_min3_f32 v{L2[0]}, v{L[0]}, v{L[1]}, v{L[2]}"); a.i(f"v_add_f32 v{L2[1]}, v{L[0]}, v{L[1]}"); a.i(f"v_add_f32 v{L2[2]}, v{L[2]}, v{L[3]}")
    a.i(f"v_min_f32 v{L2[0]}, v{L2[0]}, v{L[3]}"); a.i(f"v_add_f32 v{L2[1]}, v{L2[1]}, v{L2[2]}")
    a.i(f"v_cmp_nle_f32 vcc, {f2u(2.0**-40)}, v{L2[0]}")
    a.i(f"s_mov_b64 s[{sT1}:{sT1+1}], vcc")
    a.i(f"v_cmp_nge_f32 vcc, {f2u(2.0**40 if not forceslow else 0.0)}, v{L2[1]}")
    a.i("s_nop 0")
    a.i(f"s_or_b64 vcc, vcc, s[{sT1}:{sT1+1}]")
    a.i("s_cbranch_scc1 L_Tslow")
    a.label("L_Tnorm")
    main_lines = a.lines; a.lines = []
    assert a.lg_done == a.lg_issued
    NFB[0] = 8
    a.label("L_Tslow"); slowT(); getl(); a.i("s_branch L_Tnorm")
    assert a.lg_done == a.lg_issued
    slow_lines = a.lines; a.lines = main_lines
    E = []; osets = [OA]
    for n in range(4): E.append(f"v_mul_f32 v{L[n]}, {f2u(QG)}, v{L[n]}")
    for n in range(4): E.append(f"v_rcp_f32 v{L[n]}, v{L[n]}")
    E.append(f"v_add_u32 v{w1}, -1, v{w0}"); E.append(f"v_ashrrev_i32 v{w1}, 31, v{w1}")
    E.append(f"s_add_u32 s{sPst}, s{sHst}, {18*1024}")
    for t in range(2):
        for hd in range(2):
            d = OA + 16*hd + 8*t; n = 2*hd + t
            for r in list(range(4)) + ([6, 7] if hd else [4, 5]): E.append(f"v_mul_f32 v{d+r}, v{L[n]}, v{d+r}")
        d = OA + 8*t; e = OA + 16 + 8*t
        E += [f"v_cvt_pk_bf16_f32 v{BT+2*t}, v{d+4}, v{d+5}", f"v_cvt_pk_bf16_f32 v{BT+2*t+1}, v{e+6}, v{e+7}",
              f"v_cvt_pk_bf16_f32 v{d}, v{d}, v{d+1}", f"v_cvt_pk_bf16_f32 v{d+1}, v{d+2}, v{d+3}",
              f"v_cvt_pk_bf16_f32 v{d+2}, v{e}, v{e+1}", f"v_cvt_pk_bf16_f32 v{d+3}, v{e+2}, v{e+3}",
              f"v_and_b32 v{BT+2*t}, v{w1}, v{BT+2*t}", f"v_and_b32 v{BT+2*t+1}, v{w1}, v{BT+2*t+1}",
              f"buffer_store_dwordx4 v[{d}:{d+3}], v{vL16}, {WS}, s{sPst} offen offset:{1024*t} sc1"]
    E.append(f"buffer_store_dwordx4 v[{BT}:{BT+3}], v{vL16}, {WS}, s{sPst} offen offset:2048 sc1")
    for t in range(2):
        d = OA + 8*t
        E += [f"v_accvgpr_write_b32 a{H+72+4*t+r}, v{d+r}" for r in range(4)]
        E += [f"v_accvgpr_write_b32 a{HB+4*t}, v{BT+2*t}", f"v_accvgpr_write_b32 a{HB+4*t+1}, v{BT+2*t+1}"]
    for n_, t in enumerate(E):
        if n_ < oinl:
            if t.startswith("buffer"): toks["ost" if "2048" in t else "ostx"] = a.vm(t)
            else: a.i(t)
        elif t.startswith("buffer"): Fm(0, "ost" if "offset:2048" in t else "ostx", t, osets)
        else: F(0, "v", t, osets)
    def own_alpha(i):
        nd = 0
        while fill: emit_fill(fill.popleft()); nd += 1
        if nd: print("own alpha drain", nd, file=sys.stderr); a.i("s_nop 1")
    ihooks[("B", 1, 9, 0)] = own_alpha
    pubs.append(("ost", lambda: flag_store([f"v_accvgpr_read_b32 v{q0}, a{st('hfo')}"], "0", 4), [None, od], False))
    tr("tend")
    astamp("P:tend"); astamp("T:end")

    PL = 0
    SQ = 96
    def pstore(p, halves):
        def fn(nb):
            assert not any("buffer_store" in str(it[2]) for it in fill2)
            acc = BACC[p]; sets = [(acc, acc + 16*len(halves))]
            for hf in halves:
                if p == 0:
                    F(nb, "s", f"s_add_u32 s{sPst}, s{sHld}, {8*2048}", sets)
                else:
                    F(nb, "s", f"s_lshl_b32 s{sPst}, s{sCol[p]}, 5", sets); F(nb, "s", f"s_add_u32 s{sPst}, s{sPst}, s{sPo[hf]}", sets)
                for t in range(2):
                    d = acc + 16*hf + 4*t
                    pack4(nb, d, d + 8, sets)
                    last = (hf == halves[-1] and t == 1)
                    Fm(nb, f"pst{p}" if last else "pstx", f"buffer_store_dwordx4 v[{d}:{d+3}], v{vL16}, {WS}, s{sPst} offen offset:{1024*t} sc1", sets, 2)
            def pub():
                if p == 0: a.i(f"s_add_u32 s{sT0}, s{sPF}, 1024")
                else:
                    a.i(f"s_lshr_b32 s{sT0}, s{sI}, 1"); a.i(f"s_xor_b32 s{sT0}, s{sT0}, {4-p}")
                    a.i(f"s_lshl_b32 s{sT0}, s{sT0}, 8"); a.i(f"s_add_u32 s{sT0}, s{sT0}, s{sPF}")
                a.i(f"s_lshl_b32 s{sT1}, s{sI}, 2")
                flag_store([f"v_mov_b32 v{q0}, s{sT1}"], f"s{sT0}")
            pubs.append((f"pst{p}", pub, [None, pd if p < 3 else pd3], False))
        return fn
    def late_store(acc, x, taus):
        def fn(nb):
            assert not fill, len(fill)
            for c in taus:
                d = acc + 8*c; sets = [(d, d + 8)]
                pack4(nb, d, d + 4, sets)
                F(nb, "m", f"buffer_store_dwordx4 v[{d}:{d+3}], v{vL16}, {WS}, s{sLS[x]} offen offset:{1024*c} sc1", sets)
        return fn
    bpost[("B", 0, 20, 1)] = pstore(0, [0])
    for p in (1, 2): bpost[("B", p, 20, 3)] = pstore(p, [0, 1])
    vP0, vP1 = 80, 81
    def h_wait(i):
        a.wait(vm=toks["hld"])
    ihooks[("B", 1, 14, 0)] = h_wait
    def o_poll(i):
        a.i(f"v_accvgpr_read_b32 v{vP0}, a{st('hfp')}")
        toks["op"] = a.vm(f"buffer_load_dword v{vP1}, v{vP0}, {WS}, 0 offen offset:4 sc1")
    ihooks[("B",) + op[0] + (0,)] = o_poll
    def o_check(i):
        assert not any("v_cndmask" in str(it[2]) for it in fill2)
        poll_check("op", vP0, vP1, "0", 4)
        a.i(f"s_add_u32 s{sT0}, s{sHld}, {18*1024}")
        for t in range(2):
            a.vm(f"buffer_load_dwordx4 a[{HP+72+4*t}:{HP+75+4*t}], v{vL16}, {WS}, s{sT0} offen offset:{1024*t} sc1")
        for t in range(2):
            toks["old"] = a.vm(f"buffer_load_dwordx2 a[{HB+4*t+2}:{HB+4*t+3}], v{vL16}, {WS}, s{sT0} offen offset:{2048+8*t} sc1")
    ihooks[("B",) + op[1] + (0,)] = o_check
    ihooks[("B", 1, 19, 0)] = lambda i: a.wait(vm=toks["old"])
    sOwn = sQst
    sLS = {1: sQld, 2: 60, 3: 61}; sLL = {1: 62, 2: 63, 3: sQcol}
    sPFo = sKV[0]; sXo = [sKV[1], sKV[2]]; sMf, sMo, sMl = 45, sE, sM4x
    def polladdr(minx):
        a.i(f"v_bfe_u32 v{vP0}, v{vL16}, 4, 3"); a.i(f"v_max_u32 v{vP0}, {minx}, v{vP0}")
        a.i(f"v_xor_b32 v{vP0}, s{sI}, v{vP0}"); a.i(f"v_lshlrev_b32 v{vP0}, 2, v{vP0}")
    MA, MB, MX, MD, vM0, vM1 = 120, 124, 132, 136, 134, 135
    def m_prep(i):
        L = [f"v_bfe_u32 v{MD}, v{vL16}, 4, 4", f"v_lshrrev_b32 v{MD+1}, 8, v{vL16}",
             f"v_mul_u32_u24 v{vM0}, {8*HXS}, v{MD+1}", f"v_lshl_add_u32 v{vM0}, v{MD}, 4, v{vM0}",
             f"s_lshl_b32 s{sMl}, s{sI}, 8", f"s_add_u32 s{sMl}, s{sMl}, s{sPbase}", f"s_add_u32 s{sMl}, s{sMl}, {8*2048}",
             f"v_mul_u32_u24 v{vM1}, 1152, v{MD}", f"v_lshl_add_u32 v{vM1}, v{MD+1}, 5, v{vM1}",
             f"v_lshrrev_b32 v{MD+2}, 1, v{MD+1}", f"v_lshl_add_u32 v{vM1}, v{MD+2}, 29, v{vM1}",
             f"s_lshr_b32 s{sT2}, s{sI}, 2", f"s_mul_i32 s{sMo}, s{sT2}, {16*1152}", f"s_and_b32 s{sT2}, s{sI}, 3", f"s_lshl_b32 s{sT2}, s{sT2}, 3",
             f"s_add_u32 s{sMo}, s{sMo}, s{sT2}", f"s_add_u32 s{sMo}, s{sMo}, s{sCol[0]}", f"s_add_u32 s{sMo}, s{sMo}, s{sXrow}",
             f"s_add_u32 s{sMf}, s{sPF}, 1024",
             f"v_and_b32 v{MD+2}, 1, v{MD}", f"v_lshlrev_b32 v{MD+2}, 4, v{MD+2}", f"v_mov_b32 v{MD+3}, 0x3f80",
             f"v_lshlrev_b32 v{MD+3}, v{MD+2}, v{MD+3}", f"v_lshrrev_b32 v{MD+2}, 1, v{MD}"]
        for t in L: G(i, "v", t)
        for r in range(4):
            G(i, "v", f"v_cmp_eq_u32 vcc, {r}, v{MD+2}"); G(i, "v", f"v_cndmask_b32 v{MA+r}, 0, v{MD+3}, vcc")
        G(i, "v", f"v_accvgpr_read_b32 v{MX}, a{XR+8}"); G(i, "v", f"v_accvgpr_read_b32 v{MX+1}, a{XR+9}")
    ihooks[("B", 1, 1, 0)] = m_prep
    def m_poll(i):
        assert not fill2, len(fill2)
        for t in (f"v_bfe_u32 v{vP0}, v{vL16}, 4, 3", f"v_bfe_u32 v{vP1}, v{vL16}, 7, 1", f"v_mul_u32_u24 v{vP0+2}, 6, v{vP1}",
                  f"v_or_b32 v{vP0}, v{vP0}, v{vP0+2}", f"v_xor_b32 v{vP0}, s{sI}, v{vP0}", f"v_lshlrev_b32 v{vP0}, 2, v{vP0}",
                  f"s_sub_u32 s{sT2}, s{sMf}, s{sPFo}", f"v_xor_b32 v{vP1}, 1, v{vP1}", f"v_mad_u32_u24 v{vP0}, v{vP1}, s{sT2}, v{vP0}"):
            G(i, "v", t)
        Gm(i, "mp", f"buffer_load_dword v{vP1}, v{vP0}, {WS}, s{sPFo} offen sc1")
    def m_check(i):
        poll_check("mp", vP0, vP1, f"s{sPFo}", 0)
        a.vm(f"buffer_load_dwordx4 v[{MB}:{MB+3}], v{vM0}, {WS}, s{sMl} offen sc1")
        a.i(f"s_add_u32 s{sMl}, s{sMl}, {32*HXS}")
        toks["ml"] = a.vm(f"buffer_load_dwordx4 v[{MB+4}:{MB+7}], v{vM0}, {WS}, s{sMl} offen sc1")
        for t in (f"v_lshlrev_b32 v{MD}, 16, v{MX}", f"v_and_b32 v{MD+1}, 0xffff0000, v{MX}", f"v_lshlrev_b32 v{MD+2}, 16, v{MX+1}", f"v_and_b32 v{MD+3}, 0xffff0000, v{MX+1}"):
            G(i, "v", t)
        for x in (6, 7): G(i, "f", (lambda x=x: pload(x, sOwn, PL + 8*x, "pl")), 6)
    def m_fin(i):
        assert not any(f"v{MD+3}," in str(it[2]) for it in fill2)
        a.wait(vm=toks["ml"])
        for j in range(2): a.i(f"{MF} v[{MD}:{MD+3}], v[{MA}:{MA+3}], v[{MB+4*j}:{MB+4*j+3}], v[{MD}:{MD+3}]")
        G(i + 3, "v", f"v_cvt_pk_bf16_f32 v{MD}, v{MD}, v{MD+1}"); G(i + 3, "v", f"v_cvt_pk_bf16_f32 v{MD+1}, v{MD+2}, v{MD+3}")
        G(i + 3, "m", f"buffer_store_dwordx2 v[{MD}:{MD+1}], v{vM1}, s[{SOUT}:{SOUT+3}], s{sMo} offen{outsc}")
    def e_poll(i):
        for t in (f"v_bfe_u32 v{vP0}, v{vL16}, 4, 1", f"v_or_b32 v{vP0}, 4, v{vP0}", f"v_xor_b32 v{vP0}, s{sI}, v{vP0}", f"v_lshlrev_b32 v{vP0}, 2, v{vP0}"):
            a.i(t)
        toks["ep"] = a.vm(f"buffer_load_dword v{vP1}, v{vP0}, {WS}, s{sPFo} offen sc1")
    def prep_own(i):
        L = [f"v_accvgpr_read_b32 v{vT0}, a{st('ov')}",
             f"s_lshl_b32 s{sOwn}, s{sI}, 11", f"s_add_u32 s{sOwn}, s{sOwn}, s{sPbase}",
             f"s_and_b32 s{sT2}, s{sS}, 1", f"s_mul_i32 s{sT2}, s{sT2}, 640", f"s_lshl_b32 s{sT3}, s{sI}, 6",
             f"s_add_u32 s{sT2}, s{sT2}, s{sT3}", f"s_add_u32 s{sXo[0]}, s{sT2}, s{sXrow}", f"s_add_u32 s{sXo[1]}, s{sXo[0]}, {16*1152}",
             f"s_lshr_b32 s{sPFo}, s{sI}, 1", f"s_lshl_b32 s{sPFo}, s{sPFo}, 8", f"s_add_u32 s{sPFo}, s{sPFo}, s{sPF}"]
        for x in (1, 2, 3):
            L += [f"s_add_u32 s{sLS[x]}, s{sHst}, {21504 + 2048*(x-1)}", f"s_xor_b32 s{sT3}, s{sI}, {x}", f"s_sub_u32 s{sT3}, s{sT3}, s{sI}",
                  f"s_mul_i32 s{sT3}, s{sT3}, {8*HXS}", f"s_add_u32 s{sLL[x]}, s{sT3}, s{sLS[x]}"]
        for t in L: G(i, "v", t)
    ihooks[("B", 1, 2, 0)] = prep_own
    def pload(x, base, dst, name):
        a.i(f"s_xor_b32 s{sT0}, s{sI}, {x}"); a.i(f"s_mul_i32 s{sT0}, s{sT0}, {8*HXS}"); a.i(f"s_add_u32 s{sT0}, s{sT0}, s{base}")
        for t in range(2):
            toks[name] = a.vm(f"buffer_load_dwordx4 v[{dst+4*t}:{dst+4*t+3}], v{vL16}, {WS}, s{sT0} offen offset:{1024*t} sc1")
    def e_check(i):
        poll_check("ep", vP0, vP1, f"s{sPFo}", 0)
        for x in (4, 5): G(i, "f", (lambda x=x: pload(x, sOwn, PL + 8*x, "pl")), 4)
    def lload(x, c): return f"buffer_load_dwordx4 v[{PL+8*x+4*c}:{PL+8*x+4*c+3}], v{vL16}, {WS}, s{sLL[x]} offen offset:{1024*c} sc1"
    frsB = [(k,) + f for k in range(KB0, 50) for f in stages[k]["fr"]]
    def addpass(p, taus, order):
        n0 = len(frsB); first = True
        for k in order:
            for j in range(len(late[(p, taus[0])][k])):
                for tau in taus:
                    f = list(late[(p, tau)][k][j]); f[5] = first; f[6] = None; frsB.append(tuple(f))
                first = False
        return n0, len(frsB) - 1
    eC3a = len(frsB) - 1
    b3, e3_ = addpass(3, (2, 3), (47, 48, 49, 46))
    c4o = (50, 51, 53, 52)
    b40, e40 = addpass(4, (0,), c4o); b41, e41 = addpass(4, (1,), c4o); b42, e42 = addpass(4, (2, 3), c4o)
    print("B frag map", eC3a, b3, e3_, b40, e40, e41, e42, file=sys.stderr)
    ipost[eC3a] = late_store(BACC[3], 3, (0, 1)); ipost[e3_] = late_store(BACC[3] + 16, 2, (0, 1))
    ipost[e40] = late_store(BACC[4], 1, (0,)); ipost[e41] = late_store(BACC[4], 1, (1,))
    def rel47(i):
        a.i("s_barrier")
        for it in stages[52]["dma"]: dmaq.append((52, it))
    ihooks[b3 + 12] = rel47
    ihooks[mp[0]] = m_poll; ihooks[mp[1]] = m_check; ihooks[mp[2]] = m_fin
    ihooks[ep[0]] = e_poll; ihooks[ep[1]] = e_check
    def mkl(items, name):
        def f(i):
            for x, c in items: Gm(i, name, lload(x, c), 2)
        return f
    ihooks[ll[0]] = mkl([(3, 0), (3, 1)], "l3"); ihooks[ll[1]] = mkl([(2, 0), (2, 1)], "l2")
    if ll[2] is not None: ihooks[ll[2]] = mkl([(1, 0)], "l10")
    if ll[3] is not None: ihooks[ll[3]] = mkl([(1, 1)], "l11")
    def dma_after_B(k):
        if k == 36: return [40, 41]
        if k == 37: return []
        if k == 48: return [53]
        return [k + 4] if k + 4 <= 51 else []
    stream(frsB, dma_after_B, tailnop=False)
    assert not pubs
    astamp("P:bend"); astamp("B:end")
    def accum(acc, src, f="v"):
        for c in range(2):
            for t in range(2):
                d = acc + 8*c + 4*t; s0 = SEL + (0 if c else 2)
                a.i(f"{MF} v[{d}:{d+3}], a[{s0}:{s0+3}], {f}[{src+4*t}:{src+4*t+3}], v[{d}:{d+3}]")
    OWN = BACC[4] + 16
    if ll[2] is None: toks["l10"] = a.vm(lload(1, 0))
    if ll[3] is None and not l11late: toks["l11"] = a.vm(lload(1, 1))
    tr.stage = 100; tr("end")
    a.wait(vm=toks["pl"])
    tr("pl")
    accum(OWN, XR, "a")
    for x in range(4, 8): accum(OWN, PL + 8*x)
    tr("acc")
    if l11late: toks["l11"] = a.vm(lload(1, 1))
    CK = 0
    groups = [("l3", [(3, 0), (3, 1)]), ("l2", [(2, 0), (2, 1)]), ("l10", [(1, 0)]), ("l11", [(1, 1)])]
    for n, (tk, items) in enumerate(groups):
        a.wait(vm=toks[tk])
        tr(tk)
        a.label(f"L_tchk{n}")
        regs = [PL + 8*x + 4*c + r for x, c in items for r in range(4)]
        a.i(f"v_max_u32 v{CK}, v{regs[0]}, v{regs[1]}")
        for j in range(2, len(regs), 2): a.i(f"v_max3_u32 v{CK}, v{regs[j]}, v{regs[j+1]}, v{CK}")
        a.i(f"v_cmp_eq_u32 vcc, -1, v{CK}")
        a.i("s_nop 0")
        a.i("s_cmp_lg_u64 vcc, 0")
        a.i(f"s_cbranch_scc1 L_tretry{n}")
        a.label(f"L_tok{n}")
        for x, c in items:
            for t in range(2):
                d = OWN + 8*c + 4*t; s0 = SEL + (0 if t else 2); q_ = PL + 8*x + 4*c
                a.i(f"{MF} v[{d}:{d+3}], a[{s0}:{s0+3}], v[{q_}:{q_+3}], v[{d}:{d+3}]")
    a.i("s_nop 1")
    for c in range(2):
        if c: a.i("s_nop 1")
        for t in range(2):
            d = OWN + 8*c + 4*t
            a.i(f"v_cvt_pk_bf16_f32 v{d}, v{d}, v{d+1}"); a.i(f"v_cvt_pk_bf16_f32 v{d+1}, v{d+2}, v{d+3}")
            a.vm(f"buffer_store_dwordx2 v[{d}:{d+1}], v{vT0}, s[{SOUT}:{SOUT+3}], s{sXo[t]} offen offset:{32*c}{outsc}")
    tr("st")
    if trace: a.i("s_waitcnt vmcnt(0)"); tr("fin")
    astamp("P:done")
    if trace:
        a.i("s_waitcnt lgkmcnt(0)")
        for n0, p0 in trp: a.i(f"v_writelane_b32 v{vLane}, s{p0}, {n0}")
        a.i(f"s_lshl_b32 s{sT0}, s2, 2"); a.i(f"s_add_u32 s{sT0}, s{sT0}, s{sW}"); a.i(f"s_lshl_b32 s{sT0}, s{sT0}, 8")
        a.i(f"s_add_u32 s{sT0}, s{sT0}, {STAMP_OFF}")
        a.i(f"v_lshrrev_b32 v1, 2, v{vL16}")
        a.i(f"buffer_store_dword v{vLane}, v1, {WS}, s{sT0} offen")
        print("trace:", len(trl), " ".join(trl), file=sys.stderr)
    if stamps:
        a.i(f"s_lshl_b32 s{sT0}, s2, 2"); a.i(f"s_add_u32 s{sT0}, s{sT0}, s{sW}"); a.i(f"s_lshl_b32 s{sT0}, s{sT0}, 6")
        a.i(f"s_add_u32 s{sT0}, s{sT0}, {STAMP_OFF}")
        a.i(f"v_mov_b32 v1, 0")
        for n in range(len(stl)):
            a.i(f"buffer_store_dword a{244+n}, v1, {WS}, s{sT0} offen offset:{4*n}")
        a.i("s_waitcnt vmcnt(0)")
        a.i("s_memrealtime s[80:81]"); a.i("s_waitcnt lgkmcnt(0)"); a.i("v_accvgpr_write_b32 a255, s80")
        a.i(f"buffer_store_dword a254, v1, {WS}, s{sT0} offen offset:56")
        a.i(f"buffer_store_dword a255, v1, {WS}, s{sT0} offen offset:60")
        print("stamps:", stl, file=sys.stderr)
        if probe is not None:
            a.i(f"v_accvgpr_read_b32 v3, a{254 if probe < 0 else 244 + probe}"); a.i("s_nop 1")
            a.i(f"v_readfirstlane_b32 s{sT1}, v3"); a.i("s_nop 3"); a.i(f"s_add_u32 s{sT1}, s{sT1}, 6000")
            if probewg is not None:
                a.i(f"s_cmp_lg_u32 s2, {probewg}"); a.i("s_cbranch_scc1 L_end")
            a.label("L_probe")
            a.i("s_memrealtime s[80:81]"); a.i("s_waitcnt lgkmcnt(0)")
            a.i(f"s_sub_u32 s{sT2}, s80, s{sT1}"); a.i(f"s_cmp_lt_i32 s{sT2}, 0"); a.i("s_cbranch_scc1 L_probe")
        if dbgout:
            a.i(f"s_cmp_lg_u32 s{sW}, 1"); a.i("s_cbranch_scc1 L_end")
            a.i("s_cmp_lt_u32 s2, 248"); a.i("s_cbranch_scc1 L_end")
            a.i("v_accvgpr_read_b32 v3, a254"); a.i("v_accvgpr_read_b32 v4, a255")
            a.i("v_sub_u32 v4, v4, v3"); a.i("v_mul_u32_u24 v4, 100000, v4"); a.i("v_and_b32 v5, 0xffff, v3"); a.i("v_add_u32 v4, v4, v5")
            a.i(f"s_and_b32 s{sT1}, s2, 7"); a.i(f"s_lshl_b32 s{sT1}, s{sT1}, 2")
            a.i(f"buffer_store_dword v4, v1, s[{SDBG}:{SDBG+3}], s{sT1} offen offset:32")
            a.i("s_cmp_lg_u32 s2, 253"); a.i("s_cbranch_scc1 L_end")
            for n in range(1, 8):
                a.i(f"v_accvgpr_read_b32 v2, a{244+n}"); a.i("v_sub_u32 v2, v2, v3")
                a.i(f"buffer_store_dword v2, v1, s[{SDBG}:{SDBG+3}], 0 offen offset:{4*n}")
    a.label("L_end")
    a.i("s_endpgm")
    for n, (tk, items) in enumerate(groups):
        a.label(f"L_tretry{n}")
        a.i(f"s_cmp_eq_u32 s{sBound}, 0"); a.i(f"s_cbranch_scc1 L_tok{n}")
        a.i(f"s_sub_u32 s{sBound}, s{sBound}, 1"); a.i("s_sleep 1")
        for x, c in items: a.i(lload(x, c))
        a.i("s_waitcnt vmcnt(0)")
        a.i(f"s_branch L_tchk{n}")
    a.lines += slow_lines
    a.label("L_tagspin")
    a.i(f"s_cmp_eq_u32 s{sBound}, 0"); a.i("s_cbranch_scc1 L_tagok")
    a.i(f"s_sub_u32 s{sBound}, s{sBound}, 1"); a.i("s_sleep 1")
    a.i(f"buffer_load_dword v207, off, s[{SDBG}:{SDBG+3}], 0 sc1"); a.i("s_waitcnt vmcnt(0)")
    a.i("s_branch L_tagchk")
    for (name, va, vf, soff, offs) in spin_blocks:
        a.label(f"L_spin_{name}")
        a.i(f"s_cmp_eq_u32 s{sBound}, 0")
        a.i(f"s_cbranch_scc1 L_back_{name}")
        a.i(f"s_sub_u32 s{sBound}, s{sBound}, 1")
        a.i("s_sleep 1")
        a.i(f"buffer_load_dword v{vf}, v{va}, {WS}, {soff} offen offset:{offs} sc1")
        a.i("s_waitcnt vmcnt(0)")
        a.i(f"v_cmp_ne_u32 vcc, s{sTag}, v{vf}")
        a.i("s_nop 0")
        a.i("s_cmp_lg_u64 vcc, 0")
        a.i(f"s_cbranch_scc1 L_spin_{name}")
        a.i(f"s_branch L_back_{name}")
    assert not ihooks, ihooks.keys()
    body = [l.replace("CODE_LAST", "0x1000") for l in a.lines]
    if iwarm:
        tmp = [l for l in body] + [f"L_w{w}:" for w in range(4*NHOP)] + ["    s_endpgm"]
        tmp, _, _, _ = align8(tmp, nops=False)
        tmp = tmp[:-(4*NHOP+1)]
        sz = sizes_of(tmp + [f"L_w{w}:" for w in range(4*NHOP)])
        out = []; off = 0; n = 0; j = 0; nextp = 8192; done = False
        for l in tmp:
            if l.startswith("L_end:"): done = True
            if is_instr(l):
                prev = out[-1].strip() if out else ""
                if off >= nextp and not done and not prev.startswith("v_mfma") and not prev.startswith("s_cmp"):
                    out.append(f"L_w{n}:"); out.append(f"    s_cbranch_execz L_wret{n//4}"); n += 1; off += 4; nextp += 4096
                off += sz[j]; j += 1
            out.append(l)
        assert n <= 4*NHOP
        for nn in range(n, 4*NHOP):
            out.insert(out.index(f"L_wret{nn//4}:"), f"L_w{nn}:")
        body = out; size = off
        print("warm stubs", n, file=sys.stderr)
    else:
        body, nf, nn, size = align8(body, nops=False)
    body = [l.replace("v_min_u32 v%d, 0x1000," % vT0, "v_min_u32 v%d, %d," % (vT0, (size - 64) & ~15)) for l in body]
    print(f"main: code {size} bytes, stash {st.next}", file=sys.stderr)
    return body

from gen1 import kd
def whole(**kw):
    m = gen(**kw)
    hdr = [l for l in open("parallel_sum__sliding_block__glu_gated_bilinear__prompt.s.ref").read().split("\n")[:11]]
    s = "\n".join(hdr) + "\n"
    s += f"; @launch grid=(256,1,1) block=(256,1,1) lds={LDS_BYTES}\n"
    s += '.amdgcn_target "amdgcn-amd-amdhsa--gfx950"\n.text\n'
    s += f".globl {KN}\n.p2align 12\n.type {KN},@function\n{KN}:\n" + "\n".join(m) + "\n"
    s += '.section .rodata,"a"\n.p2align 6\n' + kd(KN, 512, 256)
    return s

if __name__ == "__main__":
    kw = {}
    for x in sys.argv[2:]:
        k, v = x.split("="); kw[k] = eval(v)
    open(sys.argv[1], "w").write(whole(**kw))
```

```python
import sys, struct, math, re
from asmlib import *
from collections import deque

KN = "parallel_sum__sliding_block__glu_gated_bilinear__prompt_kernel"
QS = 6176; SLOT = 4 * QS; NS = 6
LDS_BYTES = 163840
TAG_LDS = NS * SLOT + 64
QKV_BASE = 0x2400000
QF_BASE = 0x2C00000; HF_BASE = 0x2C10000; PF_BASE = 0x2C40000
EPOCH_OFF = 0x2D00000
EP2_BASE = 0x2D01000; ST_BASE = 0x2D10000
HX_BASE = 0x3000000; HXS = 27648
STAMP_OFF = 0x6000000
WS_BYTES = 268435456
OOB = 0x20000000
GS = 3136; TBASE = 163840 - 20 * GS
TAGC = 0x9E3779B8
def f2u(f): return "0x%08x" % struct.unpack("<I", struct.pack("<f", f))[0]
QC = 18 ** -0.5 * math.log2(math.e)
QG = QC ** 0.5
MF = "v_mfma_f32_16x16x32_bf16"

def gen(D=7, wev=3, stamps=None, rt=False, gap=6, lg_rpx=4, krot=True, normil=True, l2pf=True, pfs=6, pd3=24, ep=(292, 320), mp=(240, 272, 322), ll=(330, 348, 362, None), trace=None, nraw=0, iwarm=True, pd=30, lead=70, hold=90, pfk=16, lnpre=3, od=40, warmat=1, gupf="U", hold0=40, gu_at=12, dbgout=False, probe=None, probewg=None, x0=2, w0at=13, hopat=(2, 4, 6, 8), xfast=0, odef=6, op=((1, 13), (1, 18)), c3tag=False, e3=(10, None), xrat='T', kvat=(25, 27), fastT=True, forceslow=False, outsc='', tg=1, th=(3, 8, 12), oinl=60, psp=10, poi=(11, 23), l11late=False, xahead=2, qgap=3, front='W0 q x x H B r r x x h0 F c h1 x r r g W1 h2 x x h3'):
    a = Asm()
    XS = 4 * SLOT; NXU = 7
    SX, SG, SU, SD, SWS, SQKV, SO, SDBG, SOUT = 4, 8, 12, 16, 20, 24, 28, 32, 36
    sPF = 3
    sCol = [40, 41, 42, 43, 44]
    sSc = [45, 46, 47]; sKV = [48, 49, 50]
    sTag, sE, sBound, sQst, sQld = 51, 52, 53, 54, 55
    sW, sS, sR = 56, 57, 58
    sPair = [59, 60, 61, 62]; sSing = 63
    sMq, sI = 64, 65
    sOff, sT0, sT1, sT2, sT3 = 66, 67, 68, 69, 70
    sXrow, sPst, sM4 = 71, 72, 73
    sOff2 = 73
    sM4x = 59
    sPC = 74; sHst, sHld = 74, 75
    sC0, sC1, sQcol, sPbase = 76, 77, 78, 79
    sStamp = 80; sPo = [82, 83]
    KA = 84
    sKo = [84, 85, 86, 87, 88]; sKp = [89, 90, 91, 92, 93]; sAo, sAp = 94, 95
    sKr9 = [96, 97, 98]; sKr3 = [99, 100, 101]
    sKo2 = [24, 25, 26, 27]; sKp2 = [99, 100, 101, 77]
    XN = 0; ACC = [144, 176, 208]
    vRd = [240, 241, 242]; vA = [243, 244, 245]; vS = [246, 247, 248]
    q0, q1, q2 = 249, 250, 251
    vT0, vT1, vL16, vLane = 252, 253, 254, 255
    H, HP, HB, FR = 0, 80, 160, 168
    KVS, aQ = 128, 136
    NB = 8; assert D <= 7
    stash = {}
    def st(name, n=1):
        if name not in stash:
            stash[name] = st.next; st.next += n; assert st.next <= 228
        return stash[name]
    st.next = 200; stash['pt'] = 236; stash['stq'] = 228; stash['stq2'] = 229
    XR = 228
    SEL = 238
    stl = []
    def astamp(name):
        if stamps is None or name.split(":")[0] not in stamps: return
        n = len(stl); assert n < 10
        a.i("s_waitcnt lgkmcnt(0)"); a.lg_done = a.lg_issued
        a.i(f"{'s_memrealtime' if rt else 's_memtime'} s[{sStamp}:{sStamp+1}]")
        a.i("s_waitcnt lgkmcnt(0)")
        a.i(f"v_accvgpr_write_b32 a{244+n}, s{sStamp}")
        stl.append(name)
    trl = []; trp = []
    TRS = [94, 80, 0] if (trace and trace[0] < 6) else [46, 80, 0]
    def tr(name):
        if trace is None or not (trace[0] <= tr.stage < trace[1]) or len(trl) >= 64: return
        if len(trp) >= 2:
            n0, p0 = trp.pop(0); a.i(f"v_writelane_b32 v{vLane}, s{p0}, {n0}")
        p = TRS[len(trl) % 3]
        a.i(f"s_memtime s[{p}:{p+1}]")
        trp.append((len(trl), p)); trl.append(name)
    tr.stage = 0
    def srd(d, p, nbytes, back=0):
        if back:
            a.i(f"s_sub_u32 s{d}, s{p}, {back}"); a.i(f"s_subb_u32 s{d+1}, s{p+1}, 0")
        else:
            a.i(f"s_mov_b32 s{d}, s{p}"); a.i(f"s_mov_b32 s{d+1}, s{p+1}")
        a.i(f"s_mov_b32 s{d+2}, {nbytes + back}"); a.i(f"s_mov_b32 s{d+3}, 0x00020000")
    WS = f"s[{SWS}:{SWS+3}]"

    a.i("s_cmp_ge_u32 s2, 256")
    a.i("s_cbranch_scc1 L_end")
    if stamps: a.i("s_memrealtime s[36:37]")
    if trace and trace[0] < 0: a.i("s_memtime s[36:37]")
    a.i(f"s_load_dwordx16 s[{KA}:{KA+15}], s[0:1], 0")
    a.i(f"s_load_dwordx4 s[80:83], s[0:1], 64")
    a.i(f"s_getpc_b64 s[{sPC}:{sPC+1}]")
    a.i(f"s_lshr_b32 s{sT0}, s2, 3")
    a.i(f"s_lshl_b32 s{sT0}, s{sT0}, 12")
    a.i(f"v_lshlrev_b32 v{vT0}, 4, v0")
    a.i(f"v_add_u32 v{vT0}, s{sT0}, v{vT0}")
    a.i(f"v_min_u32 v{vT0}, CODE_LAST, v{vT0}")
    a.vm(f"global_load_dwordx4 a[{HP+76}:{HP+79}], v{vT0}, s[{sPC}:{sPC+1}]")
    a.i(f"v_lshrrev_b32 v{vT1}, 6, v0")
    a.i(f"v_and_b32 v{vLane}, 63, v0")
    a.i(f"v_readfirstlane_b32 s{sW}, v{vT1}")
    lg = lg_rpx; nsl = 32 >> lg
    a.i(f"s_and_b32 s{sR}, s2, {(16 >> lg) - 1}"); a.i(f"s_lshl_b32 s{sR}, s{sR}, {lg}")
    a.i(f"s_lshr_b32 s{sT0}, s2, {8 - lg}"); a.i(f"s_add_u32 s{sR}, s{sR}, s{sT0}")
    a.i(f"s_bfe_u32 s{sS}, s2, {hex(((lg - 1) << 16) | (4 - lg))}"); a.i(f"s_lshl_b32 s{sS}, s{sS}, {5 - lg}")
    a.i(f"s_bfe_u32 s{sT0}, s2, {hex(((5 - lg) << 16) | 3)}"); a.i(f"s_add_u32 s{sS}, s{sS}, s{sT0}")
    sRot = sT3
    if krot:
        a.i(f"s_lshr_b32 s{sT0}, s{sR}, 2"); a.i(f"s_add_u32 s{sT0}, s{sT0}, s{sS}")
        a.i(f"s_mul_hi_u32 s{sT1}, s{sT0}, 0x55555556"); a.i(f"s_mul_i32 s{sT1}, s{sT1}, 3"); a.i(f"s_sub_u32 s{sRot}, s{sT0}, s{sT1}")
    else: a.i(f"s_mov_b32 s{sRot}, 0")
    sRk = [45, 46, 47]
    for stg in range(3):
        a.i(f"s_add_u32 s{sRk[stg]}, s{sRot}, {stg}")
        a.i(f"s_cmp_ge_u32 s{sRk[stg]}, 3"); a.i(f"s_cselect_b32 s{sT0}, 3, 0"); a.i(f"s_sub_u32 s{sRk[stg]}, s{sRk[stg]}, s{sT0}")
    QACC = 144; D2 = 200
    vX = [228, 229, 230, 231]; vXr = [232, 233]
    S1 = [234, 235]; S2 = [236, 237]; vCs = 238
    t0, t1, t2, t3 = 144, 145, 146, 147
    ONES = 128
    a.i(f"v_lshrrev_b32 v{t0}, 3, v{vLane}")
    a.i(f"v_and_b32 v{t1}, 7, v{vLane}")
    for j in range(2):
        a.i(f"v_add_u32 v{t2}, {8*j}, v{t0}")
        a.i(f"v_bfe_u32 v{t3}, v{t2}, 1, 3")
        a.i(f"v_xor_b32 v{t3}, v{t3}, v{t1}")
        a.i(f"v_mul_u32_u24 v{t2}, 1152, v{t2}")
        a.i(f"v_lshl_add_u32 v{vX[j]}, v{t3}, 4, v{t2}")
        if j: a.i(f"v_subrev_u32 v{vX[j]}, {1024*j}, v{vX[j]}")
    a.i(f"s_lshl_b32 s{sXrow}, s{sR}, 2")
    a.i(f"s_add_u32 s{sXrow}, s{sXrow}, s{sW}")
    a.i(f"s_mul_i32 s{sXrow}, s{sXrow}, {32*1152}")
    sXk = [40, 41, 42]
    for stg in range(3):
        a.i(f"s_mul_i32 s{sXk[stg]}, s{sRk[stg]}, 384"); a.i(f"s_add_u32 s{sXk[stg]}, s{sXk[stg]}, s{sXrow}")
    a.i(f"s_mul_i32 s{sM4}, s{sW}, {2048*NXU}")
    RW = 160; vE = 172; vR0, vR1 = 173, 174
    a.i(f"v_and_b32 v{t0}, 31, v{vLane}"); a.i(f"v_lshrrev_b32 v{t1}, 5, v{vLane}")
    a.i(f"v_mul_u32_u24 v{vR0}, 1152, v{t1}"); a.i(f"v_lshl_add_u32 v{vR0}, v{t0}, 4, v{vR0}")
    a.i(f"v_add_u32 v{t2}, 24, v{t0}"); a.i(f"v_lshrrev_b32 v{t2}, 5, v{t2}"); a.i(f"v_lshl_add_u32 v{vR1}, v{t2}, 29, v{vR0}")
    sRow = sT2
    a.i(f"s_lshl_b32 s{sRow}, s{sR}, 4"); a.i(f"s_add_u32 s{sRow}, s{sRow}, s{sS}"); a.i(f"s_lshl_b32 s{sRow}, s{sRow}, 2")
    a.i(f"s_add_u32 s{sRow}, s{sRow}, s{sW}"); a.i(f"s_lshl_b32 s{sPst}, s{sRow}, 5"); a.i(f"s_mul_i32 s{sRow}, s{sRow}, 2304")
    a.i(f"s_lshl_b32 s{sT1}, s{sR}, 7"); a.i(f"s_add_u32 s{sT1}, s{sT1}, {EP2_BASE}")
    a.i("s_waitcnt lgkmcnt(0)")
    if stamps: a.i("v_accvgpr_write_b32 a254, s36")
    if trace and trace[0] < 0: a.i("s_mov_b32 s53, s36"); a.i("s_memtime s[54:55]")
    srd(SX, KA+0, 2048*1152)
    xtok = {}
    def xdma_items(n):
        t, ch = n % 2, n // 2
        o = [("s", f"s_add_u32 m0, s{sM4}, {XS + 2048*(n % NXU)}"), ("s", f"s_add_u32 s{sOff}, s{sXk[ch//3]}, {128*(ch%3) + 16*1152*t}")]
        return o + [("m", f"buffer_load_dwordx4 v{vX[j]}, s[{SX}:{SX+3}], s{sOff} offen offset:{1024*j} lds") for j in range(2)]
    dma_tok = {}
    def emit_dma_item(k, it):
        if it[0] == "m": dma_tok[k] = a.vm(it[1])
        elif it[0] == "d": a.ds(it[1])
        elif it[0] == "h": pass
        elif it[0] == "w": a.wait(lg=xrd[it[1]])
        else: a.i(it[1])
    def xdma(ch):
        for it in xdma_items(ch): emit_dma_item(("x", ch), it)
    for j in range(3):
        rowtok = a.vm(f"buffer_load_dwordx4 v[{RW+4*j}:{RW+4*j+3}], v{vR1 if j == 2 else vR0}, s[{SX}:{SX+3}], s{sRow} offen offset:{512*j}")
    srd(SWS, 82, WS_BYTES)
    rowtok = a.vm(f"buffer_load_dword v{vE}, off, {WS}, s{sT1} sc1")
    for n in range(x0): xdma(n)
    srd(SQKV, KA+2, 576*3456); srd(SO, KA+4, 576*1152, back=2048)
    srd(SG, KA+8, 576*9216); srd(SU, KA+10, 576*9216); srd(SD, KA+12, 4608*1152, back=2048)
    srd(SOUT, KA+14, 2048*1152)
    srd(SDBG, 80, 256)
    a.i(f"s_or_b32 s{sT0}, s2, s{sW}")
    a.i("s_cbranch_scc1 L_noep")
    a.i(f"s_add_u32 s82, s82, {EPOCH_OFF}"); a.i("s_addc_u32 s83, s83, 0")
    a.i(f"s_load_dword s{sE}, s[82:83], 0")
    a.label("L_noep")
    astamp("P:start")
    vn, vq, rho, tt, pc = 148, 149, 150, 151, 152
    a.i(f"v_and_b32 v{vn}, 15, v{vLane}"); a.i(f"v_lshrrev_b32 v{vq}, 4, v{vLane}")
    a.i(f"v_bfe_u32 v{rho}, v{vLane}, 2, 3"); a.i(f"v_lshrrev_b32 v{tt}, 5, v{vLane}")
    a.i(f"v_and_b32 v{pc}, 3, v{vLane}"); a.i(f"v_lshlrev_b32 v{pc}, 4, v{pc}")
    a.i(f"v_lshlrev_b32 v{vL16}, 4, v{vLane}")
    a.i(f"v_lshrrev_b32 v{t1}, 1, v{vn}"); a.i(f"v_xor_b32 v{t1}, v{t1}, v{vq}")
    a.i(f"v_lshlrev_b32 v{t0}, 7, v{vn}")
    a.i(f"s_add_u32 s{sT0}, s{sM4}, {XS}"); a.i(f"v_add_u32 v{t0}, s{sT0}, v{t0}")
    a.i(f"v_lshl_add_u32 v{vXr[0]}, v{t1}, 4, v{t0}")
    a.i(f"v_xor_b32 v{t1}, 4, v{t1}"); a.i(f"v_lshl_add_u32 v{vXr[1]}, v{t1}, 4, v{t0}")
    for stg in range(3):
        a.i(f"s_mul_i32 s{sKr9[stg]}, s{sRk[stg]}, {192*9216}"); a.i(f"s_mul_i32 s{sKr3[stg]}, s{sRk[stg]}, {192*3456}")
    a.i(f"s_mul_i32 s{sQcol}, s{sS}, 216")
    for stg in range(3): a.i(f"s_add_u32 s{sKr3[stg]}, s{sKr3[stg]}, s{sQcol}")
    a.i(f"s_mul_i32 s{sMq}, s{sW}, {QS}")
    a.i(f"s_lshr_b32 s{sI}, s{sS}, 1")
    a.i(f"s_lshl_b32 s{sT0}, s{sW}, 3"); a.i(f"v_add_u32 v{t2}, s{sT0}, v{rho}")
    a.i(f"v_lshl_add_u32 v{t3}, v{tt}, 6, v{pc}")
    a.i(f"v_mul_u32_u24 v{vS[0]}, 3456, v{t2}"); a.i(f"v_add_u32 v{vS[0]}, v{vS[0]}, v{t3}")
    a.i(f"v_add_u32 v{vS[1]}, {32*3456-1024}, v{vS[0]}"); a.i(f"v_add_u32 v{vS[2]}, {64*3456-2048}, v{vS[0]}")
    a.i(f"v_mul_u32_u24 v{t0}, 9216, v{t2}"); a.i(f"v_add_u32 v{vA[0]}, v{t0}, v{t3}")
    a.i(f"v_add_u32 v{vA[1]}, {32*9216-1024}, v{vA[0]}"); a.i(f"v_add_u32 v{vA[2]}, {64*9216-2048}, v{vA[0]}")
    def su_cas():
        a.i(f"s_or_b32 s{sT0}, s2, s{sW}")
        a.i("s_cbranch_scc1 L_nocas")
        a.i("s_waitcnt lgkmcnt(0)")
        a.i(f"s_add_u32 s{sE}, s{sE}, {TAGC}"); a.i(f"s_or_b32 s{sE}, s{sE}, 1")
        a.i(f"v_mov_b32 v{vCs}, s{sE}"); a.i(f"v_mov_b32 v{vCs+1}, {EPOCH_OFF}")
        a.i(f"buffer_store_dword v{vCs}, off, s[{SDBG}:{SDBG+3}], 0 sc1")
        a.i(f"buffer_store_dword v{vCs}, v{vCs+1}, {WS}, 0 offen sc1")
        a.label("L_nocas")

    def su_early():
        a.i(f"v_bfe_u32 v{t0}, v{vLane}, 2, 2"); a.i(f"v_lshlrev_b32 v{t1}, 6, v{t0}")
        a.i(f"v_and_b32 v{t0}, 3, v{vLane}"); a.i(f"v_lshl_add_u32 v{t1}, v{t0}, 3, v{t1}")
        a.i(f"v_mul_u32_u24 v{t0}, {QS}, v{vq}"); a.i(f"v_add_u32 v{vRd[0]}, v{t0}, v{t1}")
        a.i(f"v_add_u32 v{vRd[1]}, {2*SLOT}, v{vRd[0]}"); a.i(f"v_add_u32 v{vRd[2]}, {4*SLOT}, v{vRd[0]}")
        a.i(f"s_mul_i32 s{sT1}, s{sS}, 576"); a.i(f"s_and_b32 s{sT2}, s{sS}, 1")
        a.i(f"s_lshl_b32 s{sT3}, s{sT2}, 6"); a.i(f"s_add_u32 s{sT3}, s{sT3}, s{sT1}")
        for j in range(4):
            a.i(f"s_add_u32 s{sPair[j]}, s{sR}, {j}"); a.i(f"s_and_b32 s{sPair[j]}, s{sPair[j]}, 3")
            a.i(f"s_lshl_b32 s{sPair[j]}, s{sPair[j]}, 7"); a.i(f"s_add_u32 s{sPair[j]}, s{sPair[j]}, s{sT3}")
        a.i(f"s_xor_b32 s{sT2}, s{sT2}, 1"); a.i(f"s_lshl_b32 s{sT2}, s{sT2}, 9"); a.i(f"s_add_u32 s{sSing}, s{sT2}, s{sT1}")
        a.i(f"s_mov_b32 s{sBound}, 0x40000")
    U0, U1, U2, U3 = 45, 52, 78, 73
    MK = "s[40:41]"
    def d_q(tb):
        x0_, x1, x2, n, q = tb, tb+1, tb+2, tb+3, tb+4
        return [f"v_bfe_u32 v{n}, v{vL16}, 4, 4", f"v_lshrrev_b32 v{q}, 8, v{vL16}",
            f"s_lshl_b32 s{U0}, s{sW}, 8", f"v_lshlrev_b32 v{x0_}, 3, v{n}", f"v_add_u32 v{x0_}, s{U0}, v{x0_}",
            f"v_lshl_add_u32 v{x1}, v{q}, 10, v{x0_}", f"v_accvgpr_write_b32 a{st('stq')}, v{x1}",
            f"v_add_u32 v{x2}, 1, v{q}", f"v_lshrrev_b32 v{x2}, 2, v{x2}", f"v_lshl_add_u32 v{x1}, v{x2}, 29, v{x1}",
            f"v_accvgpr_write_b32 a{st('stq2')}, v{x1}",
            f"s_mul_i32 s{U0}, s{sR}, 432", f"s_mul_i32 s{U1}, s{sS}, 27", f"s_add_u32 s{U1}, s{U1}, s{U0}",
            f"s_lshl_b32 s{U1}, s{U1}, 10", f"s_add_u32 s{sQst}, s{U1}, {QKV_BASE}",
            f"v_lshl_add_u32 v{x1}, v{q}, 11, v{x0_}", f"v_accvgpr_write_b32 a{st('qA')}, v{x1}",
            f"v_lshl_add_u32 v{x1}, v{q}, 1, 5", f"v_cmp_gt_u32 {MK}, 2, v{q}", "?s_nop 1",
            f"v_cndmask_b32 v{x1}, 4, v{x1}, {MK}", f"v_lshl_add_u32 v{x1}, v{x1}, 10, v{x0_}", f"v_accvgpr_write_b32 a{st('qB')}, v{x1}",
            f"s_mul_i32 s{U1}, s{sS}, 9", f"s_add_u32 s{U1}, s{U1}, s{U0}", f"s_lshl_b32 s{U1}, s{U1}, 10", f"s_add_u32 s{sQld}, s{U1}, {QKV_BASE}",
            f"s_add_u32 s{U2}, s{sW}, 144", f"s_lshl_b32 s{U2}, s{U2}, 10", f"s_add_u32 s{sKV[2]}, s{U2}, s{sQld}",
            f"s_sub_u32 s{sKV[0]}, s{sKV[2]}, {2*432*1024}", f"s_cmp_ge_u32 s{sR}, 2", f"s_cselect_b32 s{sKV[0]}, s{sKV[0]}, {OOB}",
            f"s_sub_u32 s{sKV[1]}, s{sKV[2]}, {432*1024 + 1024}", f"s_cmp_ge_u32 s{sR}, 1", f"s_cselect_b32 s{sKV[1]}, s{sKV[1]}, {OOB}",
            f"s_sub_u32 s{sKV[2]}, s{sKV[2]}, 2048"]
    def d_h(tb):
        x2 = tb
        return [f"s_and_b32 s{U2}, s{sS}, 1", f"s_lshl_b32 s{U1}, s{sR}, 1", f"s_add_u32 s{U1}, s{U1}, s{U2}",
            f"s_mul_i32 s{sPF}, s{U1}, 20", f"s_add_u32 s{sPF}, s{sPF}, s{sW}", f"s_lshl_b32 s{sPF}, s{sPF}, 6", f"s_add_u32 s{sPF}, s{sPF}, {PF_BASE}",
            f"s_lshl_b32 s{U1}, s{sR}, 4", f"s_add_u32 s{U1}, s{U1}, s{sS}", f"s_lshl_b32 s{U3}, s{U1}, 2", f"s_add_u32 s{U3}, s{U3}, s{sW}",
            f"s_mul_i32 s{sHst}, s{U3}, {HXS}", f"s_add_u32 s{sHst}, s{sHst}, {HX_BASE}",
            f"s_lshl_b32 s{U1}, s{U3}, 6", f"s_add_u32 s{U1}, s{U1}, {HF_BASE}", f"v_accvgpr_write_b32 a{st('hfo')}, s{U1}",
            f"v_min_u32 v{x2}, 64, v{vL16}", f"v_lshlrev_b32 v{x2}, 4, v{x2}", f"v_add_u32 v{x2}, s{sPF}, v{x2}",
            f"v_writelane_b32 v{x2}, s{U1}, 7", f"v_accvgpr_write_b32 a{st('pt')}, v{x2}",
            f"s_xor_b32 s{U1}, s{U1}, 256", f"v_accvgpr_write_b32 a{st('hfp')}, s{U1}",
            f"s_xor_b32 s{U3}, s{U3}, 4", f"s_mul_i32 s{sHld}, s{U3}, {HXS}", f"s_add_u32 s{sHld}, s{sHld}, {HX_BASE}",
            f"s_and_b32 s{U0}, s{sI}, 1", f"s_xor_b32 s{U0}, s{U0}, 1",
            f"s_mul_i32 s{U3}, s{U2}, {640 << 5}", f"s_sub_u32 s{U1}, s{sHld}, s{U3}",
            f"s_lshl_b32 s{U3}, s{U0}, 11", f"s_add_u32 s{sPo[0]}, s{U1}, s{U3}", f"s_xor_b32 s{U3}, s{U3}, 0x800", f"s_add_u32 s{sPo[1]}, s{U1}, s{U3}",
            f"s_mul_i32 s{U3}, s{sI}, {8*HXS}", f"s_sub_u32 s{sPbase}, s{sHld}, s{U3}"]
    def d_flags(tb):
        m, d, x = tb, tb+1, tb+2
        return [f"v_bfe_u32 v{m}, v{vL16}, 6, 2", f"v_min_u32 v{m}, 2, v{m}", f"v_bfe_u32 v{d}, v{vL16}, 4, 2", f"v_min_u32 v{d}, 2, v{d}",
            f"v_min_u32 v{x}, 1, v{m}", f"v_mul_u32_u24 v{d}, v{d}, v{x}", f"v_sub_u32 v{d}, s{sR}, v{d}", f"v_max_i32 v{d}, 0, v{d}",
            f"v_lshl_add_u32 v{m}, v{m}, 4, s{sS}", f"v_mul_u32_u24 v{m}, 0x5556, v{m}", f"v_lshrrev_b32 v{m}, 16, v{m}",
            f"v_lshl_add_u32 v{m}, v{d}, 4, v{m}", f"v_lshlrev_b32 v{m}, 7, v{m}", f"v_add_u32 v{m}, {QF_BASE}, v{m}",
            f"v_accvgpr_write_b32 a{st('qf')}, v{m}"]
    def d_B(tb):
        x0_, x1, x2, x3, pc_, tt_ = tb, tb+1, tb+2, tb+3, tb+4, tb+5
        L = [f"v_and_b32 v{pc_}, 48, v{vL16}", f"v_lshrrev_b32 v{tt_}, 9, v{vL16}",
            f"v_mul_u32_u24 v{x1}, {32*9216 - 64}, v{tt_}", f"v_add_u32 v{x1}, v{x1}, v{vA[0]}"]
        for i in range(3):
            if i: L.append(f"v_add_u32 v{x1}, {64*9216-1024}, v{x1}")
            L.append(f"v_accvgpr_write_b32 a{st('sing',3)+i}, v{x1}")
        L += [f"s_and_b32 s{U0}, s{sI}, 1", f"s_xor_b32 s{U0}, s{U0}, 1",
            f"v_xor_b32 v{x3}, s{U0}, v{tt_}", f"v_lshlrev_b32 v{x3}, 6, v{x3}",
            f"v_bfe_u32 v{x0_}, v{vL16}, 6, 2", f"v_bfe_u32 v{x1}, v{vL16}, 8, 1",
            f"v_xor_b32 v{x2}, s{sS}, v{x1}", f"v_mul_u32_u24 v{x2}, 36, v{x2}", f"v_add3_u32 v{x2}, v{x2}, v{x0_}, 16",
            f"v_mul_u32_u24 v{x2}, 1152, v{x2}", f"v_add_u32 v{x2}, v{x2}, v{pc_}", f"v_accvgpr_write_b32 a{st('Obm')}, v{x2}",
            f"v_add_u32 v{x2}, v{x2}, v{x3}", f"v_accvgpr_write_b32 a{st('Ob')}, v{x2}",
            f"s_lshl_b32 s{U1}, s{sW}, 2", f"v_add_u32 v{x0_}, s{U1}, v{x0_}"]
        for name, hi in (("D", 16), ("Oa", 20)):
            L += [f"v_mad_u32_u24 v{x2}, v{x1}, {hi}, v{x0_}", f"v_mul_u32_u24 v{x2}, 1152, v{x2}", f"v_add_u32 v{x2}, v{x2}, v{pc_}",
                  f"v_accvgpr_write_b32 a{st(name+'m')}, v{x2}", f"v_add_u32 v{x2}, v{x2}, v{x3}", f"v_accvgpr_write_b32 a{st(name)}, v{x2}"]
        return L
    def d_rows(tb):
        L = [f"s_mul_i32 s{sKo[j]}, s{sPair[j]}, 576" for j in range(4)] + [f"s_mul_i32 s{sKo[4]}, s{sSing}, 576"]
        L += [f"s_and_b32 s{U0}, s{sS}, 1", f"s_lshl_b32 s{U0}, s{U0}, 1", f"s_sub_u32 s{U0}, 1, s{U0}",
              f"s_mul_i32 s{U1}, s{U0}, {320*1152}"]
        L += [f"s_add_u32 s{sKp[j]}, s{sKo[j]}, s{U1}" for j in range(4)]
        L += [f"s_mul_i32 s{U1}, s{U0}, {32*1152}", f"s_add_u32 s{sKp[4]}, s{sKo[4]}, s{U1}",
              f"s_mul_i32 s{sAo}, s{sS}, {36*1152}", f"s_mul_i32 s{U1}, s{U0}, {36*1152}", f"s_add_u32 s{sAp}, s{sAo}, s{U1}"]
        L += [f"s_add_u32 s{sKo2[j]}, s{sKo[j]}, {32*1152}" for j in range(4)] + [f"s_add_u32 s{sKp2[j]}, s{sKp[j]}, {32*1152}" for j in range(4)]
        return L
    def d_T1(tb):
        x0_, x1, x2, n, q = tb, tb+1, tb+2, tb+3, tb+4
        return [f"v_bfe_u32 v{n}, v{vL16}, 4, 4", f"v_lshrrev_b32 v{q}, 8, v{vL16}",
            f"s_lshl_b32 s{U0}, s{sW}, 8", f"s_add_u32 s{U0}, s{U0}, {TBASE}",
            f"v_lshlrev_b32 v{x0_}, 3, v{n}", f"v_add_u32 v{x0_}, s{U0}, v{x0_}",
            f"v_mul_u32_u24 v{x1}, {2*GS}, v{q}", f"v_add_u32 v{x1}, v{x1}, v{x0_}", f"v_accvgpr_write_b32 a{st('KA')}, v{x1}",
            f"v_lshl_add_u32 v{x1}, v{q}, 1, 6", f"v_cmp_gt_u32 {MK}, 2, v{q}", "?s_nop 1", f"v_cndmask_b32 v{x1}, 4, v{x1}, {MK}",
            f"v_mul_u32_u24 v{x1}, {GS}, v{x1}", f"v_add_u32 v{x1}, v{x1}, v{x0_}", f"v_accvgpr_write_b32 a{st('KB')}, v{x1}",
            f"v_lshrrev_b32 v{x0_}, 6, v{vL16}", f"v_lshlrev_b32 v{x0_}, 3, v{x0_}", f"s_add_u32 s{U0}, s{U0}, {10*GS}", f"v_add_u32 v{x0_}, s{U0}, v{x0_}",
            f"v_bfe_u32 v{x1}, v{vL16}, 4, 2", f"v_mul_u32_u24 v{x2}, {GS}, v{x1}", f"v_add_u32 v{x2}, v{x2}, v{x0_}", f"v_accvgpr_write_b32 a{st('V0')}, v{x2}",
            f"v_min_u32 v{x1}, 1, v{x1}", f"v_add_u32 v{x1}, 4, v{x1}", f"v_mul_u32_u24 v{x2}, {GS}, v{x1}", f"v_add_u32 v{x2}, v{x2}, v{x0_}",
            f"v_accvgpr_write_b32 a{st('V1')}, v{x2}",
            f"v_mul_u32_u24 v{x0_}, 1152, v{n}", f"v_lshl_add_u32 v{x0_}, v{q}, 3, v{x0_}", f"v_accvgpr_write_b32 a{st('ov')}, v{x0_}"]
    def d_T2(tb):
        x0_, x1, x2, x3 = tb, tb+1, tb+2, tb+3
        L = [f"v_bfe_u32 v{x1}, v{vL16}, 4, 4", f"v_lshrrev_b32 v{x0_}, 8, v{vL16}", f"v_lshlrev_b32 v{x0_}, 2, v{x0_}", f"v_sub_u32 v{x0_}, v{x1}, v{x0_}",
             f"v_mov_b32 v{x1}, {f2u(-1e30)}"]
        for r in range(4):
            L += [f"v_cmp_le_i32 {MK}, {r}, v{x0_}", "?s_nop 1", f"v_cndmask_b32 v{x2}, 0, v{x1}, {MK}", f"v_accvgpr_write_b32 a{st('mf',4)+r}, v{x2}",
                  f"v_xor_b32 v{x2}, v{x2}, v{x1}", f"v_accvgpr_write_b32 a{st('ml',4)+r}, v{x2}"]
        L += [f"v_and_b32 v{x2}, 1, v{x0_}", f"v_lshlrev_b32 v{x2}, 4, v{x2}", f"v_mov_b32 v{x1}, 0x3f80", f"v_lshlrev_b32 v{x1}, v{x2}, v{x1}",
              f"v_ashrrev_i32 v{x0_}, 1, v{x0_}"]
        for hf in range(2):
            L += [f"v_cmp_eq_u32 {MK}, {hf}, v{x0_}", "?s_nop 1", f"v_cndmask_b32 v{x3}, 0, v{x1}, {MK}", f"v_accvgpr_write_b32 a{SEL+2+hf}, v{x3}"]
        L += [f"v_accvgpr_write_b32 a{SEL+r}, 0" for r in (0, 1, 4, 5)]
        return L
    def d_col(tb):
        L = [f"s_and_b32 s{U2}, s{sS}, 1", f"s_lshl_b32 s{U0}, s{U2}, 6", f"s_add_u32 s{sCol[0]}, s{U0}, 512",
             f"s_mul_i32 s{U2}, s{U2}, 640", f"s_lshr_b32 s{U1}, s{sI}, 1"]
        for p in range(1, 5):
            L += [f"s_xor_b32 s{U0}, s{U1}, {4-p}", f"s_lshl_b32 s{U0}, s{U0}, 7", f"s_add_u32 s{sCol[p]}, s{U0}, s{U2}"]
        return L

    stages = {}
    post = {}
    def X(S, t): return f"v[{XN+8*S+4*t}:{XN+8*S+4*t+3}]"
    def slot_of(k):
        if k < 6: return (k + 2) % 4
        if k < 28: return k % NS
        if k < 33: return k % 4
        if k in (52, 53): k = 105 - k
        return [1, 2, 3, 0, 4, 5][(k - 36) % 6]
    def grp(k, g, srdreg, soffs, vregs):
        slot = slot_of(k) * SLOT
        out = [("s", f"s_add_u32 m0, s{sMq}, {slot + 3072*g}")]
        out += [("s", t) for t in soffs]
        for i, v in enumerate(vregs):
            out.append(("m", f"buffer_load_dwordx4 v{v}, s[{srdreg}:{srdreg+3}], s{sOff} offen offset:{1024*i} lds"))
        return out
    k = 0
    for stg in range(6):
        dma = []
        for P in range(2):
            dma += grp(k, P, SQKV, [f"s_add_u32 s{sOff}, s{sKr3[stg//2]}, {(stg%2)*96*3456 + 128*P}"], vS)
        fr = []
        for uu in range(3):
            S = 3*stg + uu
            for tau in range(7):
                P = tau // 4; off = 1024*(3*P + uu) + 512*((tau % 4)//2) + 32*(tau % 2)
                fr.append((off, QACC + 8*tau, X(S, 0), X(S, 1), S == 0, ("Q", S, tau)) + ((D2 + 4*tau,) if stg < nraw else ()))
        stages[k] = dict(dma=dma, fr=fr); k += 1
    rot = 2
    for j in range(4):
        ag = ACC[rot % 3]; au = ACC[(rot + 1) % 3]; rot += 2
        for (srdreg, acc) in ((SG, ag), (SU, au)):
            for stg in range(3):
                dma = grp(k, 0, srdreg, [f"s_add_u32 s{sOff}, s{sPair[j]}, s{sKr9[stg]}"], vA)
                dma += grp(k, 1, srdreg, [f"s_add_u32 s{sOff}, s{sOff}, {96*9216}"], vA)
                fr = []
                for uu in range(6):
                    S = 6*stg + uu
                    for tau in range(4):
                        fr.append((1024*uu + 512*(tau//2) + 32*(tau%2), acc + 8*tau, X(S, 0), X(S, 1), S == 0, None))
                stages[k] = dict(dma=dma, fr=fr); k += 1
            if srdreg == SG: post[k-1] = ("g", [ag], ag, 4)
        post[k-1] = ("h", [ag, au], [(ag, au, 2*j), (ag+16, au+16, 2*j+1)])
    ag = ACC[rot % 3]
    for stg in range(3):
        dma = grp(k, 0, SG, [f"s_add_u32 s{sOff}, s{sSing}, s{sKr9[stg]}"], vS) + [x if x[1] != "s_nop 0" else ("n", "s_nop 0") for x in grp(k, 1, SU, ["s_nop 0"], vS)]
        if stg == 0: dma = [("v", f"v_accvgpr_read_b32 v{vS[i]}, a{st('sing',3)+i}") for i in range(3)] + dma
        fr = []
        for uu in range(6):
            S = 6*stg + uu
            for m in range(2):
                for c in range(2):
                    fr.append((3072*m + 1024*(uu//2) + 512*(uu%2) + 32*c, ag + 16*m + 8*c, X(S, 0), X(S, 1), S == 0, None))
        stages[k] = dict(dma=dma, fr=fr); k += 1
    post[k-1] = ("h", [ag], [(ag, ag+16, 8)])
    assert k == 33
    KB0 = 36
    ent = [(p, ks) for ks in range(19) for p in (1, 0)] + [(2, ks) for ks in range(odef)] + [(p, ks) for ks in (19, 20) for p in (1, 0)]
    ent += [(2, ks) for ks in range(odef, 21)]
    for p in (3, 4): ent += [(p, ks) for ks in range(21)]
    BACC = {0: 144, 1: 176, 2: 208, 3: 144, 4: 176}
    def Hop(ks, t):
        if ks < 10: b = H + 8*ks + 4*t
        elif ks < 20: b = HP + 8*(ks-10) + 4*t
        else: b = HB + 4*t
        return f"a[{b}:{b+3}]"
    nBst = (len(ent) + 5) // 6
    late = {}
    bpost = {}
    for sb in range(nBst):
        k = KB0 + sb; slot = slot_of(k) * SLOT
        dma = []; fr = []
        for u, (p, ks) in enumerate(ent[6*sb:6*sb+6]):
            i = u % 3
            if i == 0: dma.append(("s", f"s_add_u32 m0, s{sMq}, {slot + 3072*(u//3)}"))
            kk = ks % 10
            if ks == 20:
                dma.append(("v", f"v_accvgpr_read_b32 v{vT1}, a{st('Obm' if p == 0 else 'Ob')}"))
                dma.append(("v", f"v_add_u32 v{vT1}, {2048-1024*i}, v{vT1}"))
                dma.append(("m", f"buffer_load_dwordx4 v{vT1}, s[{SO}:{SO+3}], s{sCol[p]} offen offset:{1024*i} lds"))
            elif kk == 9:
                dma.append(("v", f"v_accvgpr_read_b32 v{vT1}, a{st('Oam' if p == 0 else 'Oa')}"))
                dma.append(("v", f"v_add_u32 v{vT1}, {2048-1024*i}, v{vT1}"))
                dma.append(("s", f"s_add_u32 s{sOff}, s{sAo if ks < 10 else sAp}, s{sCol[p]}"))
                dma.append(("m", f"buffer_load_dwordx4 v{vT1}, s[{SO}:{SO+3}], s{sOff} offen offset:{1024*i} lds"))
            else:
                if ks == 0:
                    regs = vA if p == 0 else vS
                    dma.append(("v", f"v_accvgpr_read_b32 v{regs[2]}, a{st('Dm' if p == 0 else 'D')}"))
                    dma.append(("v", f"v_add_u32 v{regs[2]}, s{sCol[p]}, v{regs[2]}"))
                    dma += [("v", f"v_add_u32 v{regs[j]}, {2048-1024*j}, v{regs[2]}") for j in range(2)]
                elif i == 0: dma.append(("n", "s_nop 0"))
                tab = ((sKo, sKo2) if ks < 10 else (sKp, sKp2))[kk % 2]
                v = (vA if p == 0 else vS)[i]
                dma.append(("m", f"buffer_load_dwordx4 v{v}, s[{SD}:{SD+3}], s{tab[kk//2]} offen offset:{1024*i} lds"))
            for tau in range(2 if p == 0 else 4):
                f = (1024*u + 512*(tau//2) + 32*(tau%2), BACC[p] + 8*tau, Hop(ks, 0), Hop(ks, 1), ks == 0, ("B", p, ks, tau))
                if p == 4 or (p == 3 and tau >= 2): late.setdefault((p, tau), {}).setdefault(k, []).append((k,) + f)
                else: fr.append(f)
        stages[k] = dict(dma=dma, fr=fr)
    KEND = KB0 + nBst

    def emit_dma(k):
        for it in stages[k]["dma"]: emit_dma_item(k, it)

    fill = deque(); fill2 = deque(); fill3 = deque(); dmaq = deque(); extq = []; spin_blocks = []; pubs = []; toks = {}
    hooks = {}; ihooks = {}; ipost = {}
    def emit_fill(it):
        kind, txt = it[1], it[2]
        if kind == "m": return a.vm(txt)
        if kind == "d": return a.ds(txt)
        if kind == "f": return txt()
        a.i(txt)
    def F(nb, kind, txt, sets=(), space=0): fill.append((nb, kind, txt, list(sets), space))
    def Fm(nb, name, txt, sets=(), space=0):
        def fn(): toks[name] = a.vm(txt)
        fill.append((nb, "f", fn, list(sets), space))
    def defer(L, accset):
        i = 0
        while i < len(L):
            g = [L[i]]; i += 1
            if g[0].startswith("s_cmp") or (i < len(L) and L[i].startswith("?")): g.append(L[i]); i += 1
            fill3.append((g, accset))
    def emit3(drain=False):
        g, _ = fill3.popleft()
        for t in g:
            if t.startswith("?"):
                if drain: a.i(t[1:])
            else: a.i(t)
    def G(nb, kind, txt, space=0): fill2.append((nb, kind, txt, [], space))
    def Gm(nb, name, txt, space=0):
        def fn(): toks[name] = a.vm(txt)
        fill2.append((nb, "f", fn, [], space))
    def poll_check(name, va, vf, soff="0", offs=0):
        a.wait(vm=toks[name])
        a.i(f"v_cmp_ne_u32 vcc, s{sTag}, v{vf}")
        a.i("s_nop 0")
        a.i("s_cmp_lg_u64 vcc, 0")
        a.i(f"s_cbranch_scc1 L_spin_{name}")
        a.label(f"L_back_{name}")
        spin_blocks.append((name, va, vf, soff, offs))
    def stream(frs, dma_after, flush=True, gap=gap, tailnop=True):
        N = len(frs); first_of = {}
        for i, f in enumerate(frs): first_of.setdefault(f[0], i)
        rd = {}; nextbar = [0]; hold_until = [0]; lastd = [-100]; gpf = 3 if len(frs[0]) > 7 else 2
        def rd_half(i, hf):
            k, off = frs[i][0], frs[i][1]
            o = slot_of(k) * SLOT + off; base = vRd[o // (2*SLOT)]; oo = o % (2*SLOT)
            fb = FR + 4*(i % NB) + 2*hf
            rd[i] = a.ds(f"ds_read_b64_tr_b16 a[{fb}:{fb+1}], v{base} offset:{oo + 256*hf}")
        def pre_read(i, cur):
            k = frs[i][0]
            if first_of[k] == i:
                nfl = 0
                while any(kk == k for kk, _ in dmaq):
                    kk, it = dmaq.popleft(); emit_dma_item(kk, it); nfl += 1
                if nfl: print("late flush", nfl, "at", k, file=sys.stderr)
                tr.stage = k; tr(f"w{k}")
                a.wait(vm=dma_tok[k])
                a.i("s_barrier")
                tr(f"b{k}")
                for p in list(pubs):
                    if p[3] and toks.get(p[0]) is not None and toks[p[0]] <= a.vm_done:
                        p[1](); pubs.remove(p); print("pub", p[0], "at barrier", k, file=sys.stderr)
                for kk in dma_after(k):
                    for it in stages[kk]["dma"]: dmaq.append((kk, it))
                if k in hooks: hooks[k](cur)
                nextbar[0] = first_of.get(k + 1, N + D) - D
                return True
            return False
        for i in range(min(D, N)):
            pre_read(i, 0); rd_half(i, 0); rd_half(i, 1)
        a.wait(lg=rd[1])
        gi = 0; lastm = -100
        def other(i):
            nonlocal lastm
            for p in list(pubs):
                if not p[3] and toks.get(p[0]) is not None:
                    if toks[p[0]] <= a.vm_done or (p[2][0] is not None and i >= p[2][0]):
                        print("pub", p[0], "at frag", i, "stage", frs[i][0], "forced" if toks[p[0]] > a.vm_done else "", file=sys.stderr); a.wait(vm=toks[p[0]]); p[1](); pubs.remove(p); return
                    if p[2][0] is None: p[2][0] = i + p[2][1]
            if dmaq:
                kk, it = dmaq[0]
                ok = True
                if it[0] == "n":
                    dmaq.popleft(); kk, it = dmaq[0]
                if it[0] == "h":
                    dmaq.popleft(); hold_until[0] = gi + it[1]; ok = False
                elif it[0] == "m":
                    if kk == "z": ok = gi - lastm >= 2
                    else:
                        g_eff = qgap if frs[i][0] < 6 else gap; urgent = False; cnt = 0
                        for k2, it2 in dmaq:
                            if it2[0] != "m": continue
                            cnt += 1
                            if k2 in first_of:
                                dl = gpf * (first_of[k2] - D) - lead
                                if gi + cnt * gap > dl: g_eff = min(g_eff, max(2, (dl - gi) // cnt)); urgent = True
                        ok = gi - lastd[0] >= g_eff and gi - lastm >= 2 and (gi >= hold_until[0] or urgent)
                if ok:
                    dmaq.popleft(); emit_dma_item(kk, it)
                    if isinstance(it[1], str) and it[1].startswith("s_cmp"):
                        kk, it = dmaq.popleft(); emit_dma_item(kk, it)
                    if it[0] == "m": lastm = gi; lastd[0] = gi
                    return
            for q_ in (fill, fill2):
                if q_ and q_[0][0] <= i and (q_[0][4] == 0 or gi - lastm >= q_[0][4]):
                    it = q_.popleft(); emit_fill(it)
                    if it[4]: lastm = gi
                    return
            if fill3: emit3()
        for i in range(N):
            k, off, acc, b0, b1, first, tag = frs[i][:7]
            if first_of[k] == i: astamp_stage(k)
            if trace == (200, 201) and 24 <= k < 33 and i % 8 == 6: tr.stage = 200; tr(f"a{k}"); tr.stage = k
            if trace == (100, 101) and k >= 36 and i % 8 == 2: tr.stage = 100; tr(f"f{i}"); tr.stage = k
            if i in ihooks: ihooks.pop(i)(i)
            if tag in ihooks: ihooks.pop(tag)(i)
            while extq: dmaq.append(extq.pop(0))
            assert rd[i] <= a.lg_done
            fb = FR + 4*(i % NB)
            if first_of[k] + 1 == i and ("S", k) in ihooks: ihooks.pop(("S", k))(i)
            if first:
                nd = 0
                while any(any((x <= acc < x + 32) if isinstance(x, int) else (x[0] != 'c' and x[0] <= acc < x[1]) for x in it[3]) for it in fill):
                    emit_fill(fill.popleft()); nd += 1
                while any(x <= acc < x + 32 for _, x in fill3):
                    emit3(True); nd += 1
                if nd: print("drained", nd, "at stage", k, file=sys.stderr); a.i("s_nop 1")
            for t, b in enumerate((b0, b1)):
                d = f"v[{acc+4*t}:{acc+4*t+3}]"
                a.i(f"{MF} {d}, a[{fb}:{fb+3}], {b}, {'0' if first else d}")
                used = False
                if i + D < N:
                    if t == 0: used = pre_read(i + D, i)
                    rd_half(i + D, t)
                if t == 1 and i + 1 < N and rd[i+1] > a.lg_done:
                    a.wait(lg=rd[min(i+wev, N-1)]); used = True
                if not used: other(i)
                gi += 1
            if len(frs[i]) > 7:
                d = f"v[{frs[i][7]}:{frs[i][7]+3}]"
                a.i(f"{MF} {d}, a[{fb}:{fb+3}], a[{ONES}:{ONES+3}], {'0' if first else d}")
                other(i); other(i); gi += 1
            if tag in bpost: bpost[tag](i + 3)
            if k >= 36 and i in ipost: ipost.pop(i)(i + 3)
            if (i + 1 == N or frs[i+1][0] != k) and k in post: do_post(post.pop(k), i + 3)
        while dmaq:
            kk, it = dmaq.popleft(); emit_dma_item(kk, it)
        if tailnop or fill: a.i("s_nop 7")
        while fill: emit_fill(fill.popleft())
        while fill2: emit_fill(fill2.popleft())
        if fill3: print("fill3 left", len(fill3), file=sys.stderr)
        while fill3: emit3(True)
    def astamp_stage(k):
        if k == 6: astamp("P:qend")
        if 6 <= k < 33 and k % 3 == 0: astamp(f"A:{k}")
        if k < 6: astamp(f"Q:{k}")
        if k >= 36 and k % 2 == 0: astamp(f"B:{k}")
    def pack4(nb, d, e, sets):
        F(nb, "v", f"v_cvt_pk_bf16_f32 v{d}, v{d}, v{d+1}", sets); F(nb, "v", f"v_cvt_pk_bf16_f32 v{d+1}, v{d+2}, v{d+3}", sets)
        F(nb, "v", f"v_cvt_pk_bf16_f32 v{d+2}, v{e}, v{e+1}", sets); F(nb, "v", f"v_cvt_pk_bf16_f32 v{d+3}, v{e+2}, v{e+3}", sets)
    def flag_store(voff_txts, soff, offs=0):
        for t in voff_txts: a.i(t)
        a.i(f"v_mov_b32 v{q1}, s{sTag}")
        a.vm(f"buffer_store_dword v{q1}, v{q0}, {WS}, {soff} offen offset:{offs} sc1")
    def do_post(p, nb):
        if p[0] == "g" or (p[0] == "h" and len(p[2]) == 1):
            g = p[2] if p[0] == "g" else p[2][0][0]
            for tau in range(p[3] if p[0] == "g" else 2):
                for t in range(2):
                    for r in range(4): F(nb, "v", f"v_mul_f32 v{g+8*tau+4*t+r}, v{RS2[t]}, v{g+8*tau+4*t+r}", p[1])
        if p[0] == "h":
            sets = p[1]
            for (g, u_, ks) in p[2]:
                F(nb, "s", f"s_add_u32 s{sPst}, s{sHst}, {2048*ks}", sets)
                for t in range(2):
                    for c in range(2):
                        for r in range(4):
                            o = 8*c + 4*t + r
                            F(nb, "v", f"v_mul_f32 v{g+o}, v{g+o}, v{u_+o}", sets)
                    pack4(nb, g + 4*t, g + 8 + 4*t, sets)
                    for r in range(4):
                        F(nb, "v", f"v_accvgpr_write_b32 a{H+8*ks+4*t+r}, v{g+4*t+r}", sets)
                    Fm(nb, "h1st" if (ks, t) == (3, 1) else "hst", f"buffer_store_dwordx4 v[{g+4*t}:{g+4*t+3}], v{vL16}, {WS}, s{sPst} offen offset:{1024*t} sc1", sets, 3)
            if p[2][-1][2] == 3:
                pubs.append(("h1st", lambda: flag_store([f"v_accvgpr_read_b32 v{q0}, a{st('hfo')}"], "0", 8), [None, 110], False))
        elif p[0] == "q":
            sets = p[1]
            F(nb, "v", f"v_accvgpr_read_b32 v{q0}, a{st('stq')}", sets)
            for tau in range(7):
                sets = [ACC[tau // 4]]
                if tau == 6: F(nb, "v", f"v_accvgpr_read_b32 v{q0}, a{st('stq2')}", sets)
                F(nb, "s", f"s_add_u32 s{sPst}, s{sQst}, {4096*tau}", sets)
                for t in range(2):
                    b = QACC + 8*tau + 4*t
                    for r in range(4): F(nb, "v", f"v_mul_f32 v{b+r}, v{QSC[t]}, v{b+r}", sets)
                    F(nb, "v", f"v_cvt_pk_bf16_f32 v{b}, v{b}, v{b+1}", sets); F(nb, "v", f"v_cvt_pk_bf16_f32 v{b+1}, v{b+2}, v{b+3}", sets)
                    Fm(nb, "qdone" if (tau, t) == (6, 1) else "qst", f"buffer_store_dwordx2 v[{b}:{b+1}], v{q0}, {WS}, s{sPst} offen offset:{128*t} sc1", sets, 3)
            def pubq():
                a.i(f"s_lshl_b32 s{sT0}, s{sR}, 4"); a.i(f"s_add_u32 s{sT0}, s{sT0}, s{sS}")
                a.i(f"s_lshl_b32 s{sT0}, s{sT0}, 7"); a.i(f"s_add_u32 s{sT0}, s{sT0}, {QF_BASE}")
                flag_store([f"v_mov_b32 v{q0}, 0"], f"s{sT0}")
            pubs.append(("qdone", pubq, [None, 0], True))

    def hook7(cur): toks["tag"] = a.vm(f"buffer_load_dword v207, off, s[{SDBG}:{SDBG+3}], 0 sc1")
    hooks[7] = hook7
    def hook10(cur):
        a.wait(vm=toks["tag"])
        a.label("L_tagchk")
        a.i(f"v_readfirstlane_b32 s{sTag}, v207")
        a.i("s_nop 0")
        a.i(f"s_cmp_eq_u32 s{sTag}, 0")
        a.i("s_cbranch_scc1 L_tagspin")
        a.label("L_tagok")
    hooks[10] = hook10
    DUM = f"a[{HP+76}:{HP+79}]"
    nw = 8 << lg_rpx
    def wid_code():
        return [("s", f"s_and_b32 s{sT3}, s{sR}, {(1 << lg_rpx) - 1}"), ("s", f"s_lshl_b32 s{sT3}, s{sT3}, 1"),
                ("s", f"s_and_b32 s{sT1}, s{sS}, 1"), ("s", f"s_add_u32 s{sT3}, s{sT3}, s{sT1}"),
                ("s", f"s_lshl_b32 s{sT3}, s{sT3}, 2"), ("s", f"s_add_u32 s{sT3}, s{sT3}, s{sW}")]
    def pf1_items():
        L = wid_code()
        L += [("v", f"v_accvgpr_read_b32 v{q2}, a{st('pt')}"), ("m", f"buffer_load_dword a{HP+75}, v{q2}, {WS}, 0 offen sc1")]
        if gupf is True: return L
        per = (18 * 4 + nw - 1) // nw
        L += [("s", f"s_lshr_b32 s{sT0}, s{sT3}, 2"), ("s", f"s_and_b32 s{sT1}, s{sSing}, 0xffffff80")]
        for j in range(per):
            L += [("s", f"s_add_u32 s{sT2}, s{sT0}, {j * (nw // 4)}"), ("s", f"s_mul_i32 s{sT2}, s{sT2}, {32*9216}"),
                  ("s", f"s_add_u32 s{sT2}, s{sT2}, s{sT1}"),
                  ("m", f"buffer_load_dwordx4 {DUM}, v{vA[0]}, s[{SG}:{SG+3}], s{sT2} offen"),
                  ("m", f"buffer_load_dwordx4 {DUM}, v{vA[0]}, s[{SU}:{SU+3}], s{sT2} offen")]
        return L
    def xr_items(q0=q0, q1=q1, q2=q2):
        L = [("v", f"v_bfe_u32 v{q1}, v{vL16}, 4, 4"), ("v", f"v_mul_u32_u24 v{q1}, 1152, v{q1}"), ("v", f"v_lshrrev_b32 v{q0}, 8, v{vL16}"),
             ("v", f"v_lshl_add_u32 v{q2}, v{q0}, 3, v{q1}"),
             ("s", f"s_and_b32 s{sT2}, s{sS}, 1"), ("s", f"s_mul_i32 s{sT0}, s{sT2}, 640"), ("s", f"s_lshl_b32 s{sT1}, s{sI}, 6"),
             ("s", f"s_add_u32 s{sT0}, s{sT0}, s{sT1}"), ("s", f"s_add_u32 s{sT0}, s{sT0}, s{sXrow}")]
        for t in range(2):
            if t: L.append(("s", f"s_add_u32 s{sT0}, s{sT0}, {16*1152}"))
            for c in range(2):
                L.append(("m", f"buffer_load_dwordx2 a[{XR+4*t+2*c}:{XR+4*t+2*c+1}], v{q2}, s[{SX}:{SX+3}], s{sT0} offen offset:{32*c}"))
        L += [("v", f"v_and_b32 v{q0}, 1, v{q0}"), ("v", f"v_lshl_add_u32 v{q2}, v{q0}, 5, v{q1}"),
              ("s", f"s_lshr_b32 s{sT0}, s{sI}, 2"), ("s", f"s_mul_i32 s{sT0}, s{sT0}, {16*1152}"), ("s", f"s_and_b32 s{sT1}, s{sI}, 3"),
              ("s", f"s_lshl_b32 s{sT1}, s{sT1}, 3"), ("s", f"s_add_u32 s{sT0}, s{sT0}, s{sT1}"), ("s", f"s_lshl_b32 s{sT2}, s{sT2}, 6"),
              ("s", f"s_add_u32 s{sT0}, s{sT0}, s{sT2}"), ("s", f"s_add_u32 s{sT0}, s{sT0}, s{sXrow}"),
              ("m", f"buffer_load_dwordx2 a[{XR+8}:{XR+9}], v{q2}, s[{SX}:{SX+3}], s{sT0} offen offset:512")]
        return L
    def gu_items():
        assert lg_rpx == 4
        L = [("s", f"s_and_b32 s{sT1}, s{sS}, 1"), ("s", f"s_mul_i32 s{sT2}, s{sI}, 1152"),
             ("s", f"s_mul_i32 s{sT0}, s{sR}, {32*9216}"), ("s", f"s_add_u32 s{sT0}, s{sT0}, s{sT2}"),
             ("s", f"s_lshl_b32 s{sT3}, s{sT1}, 7"), ("s", f"s_add_u32 s{sT0}, s{sT0}, s{sT3}")]
        for j in range(5):
            for sr in ((SU,) if gupf == 'U' else (SG, SU)):
                L.append(("m", f"buffer_load_dwordx4 {DUM}, v{vA[0]}, s[{sr}:{sr+3}], s{sT0} offen offset:{256*j}"))
        L += [("s", f"s_add_u32 s{sT1}, s{sT1}, 16"), ("s", f"s_mul_i32 s{sT1}, s{sT1}, {32*9216}"), ("s", f"s_add_u32 s{sT1}, s{sT1}, s{sT2}"),
              ("s", f"s_min_u32 s{sT3}, s{sR}, 8"), ("s", f"s_lshl_b32 s{sT3}, s{sT3}, 7"), ("s", f"s_add_u32 s{sT1}, s{sT1}, s{sT3}")]
        for sr in ((SU,) if gupf == 'U' else (SG, SU)):
            L.append(("m", f"buffer_load_dwordx4 {DUM}, v{vA[0]}, s[{sr}:{sr+3}], s{sT1} offen"))
        return L
    def pf2_items():
        L = []
        for j in range((81 + nw - 1) // nw):
            L += [("s", f"s_add_u32 s{sT2}, s{sT3}, {j * nw + 2}"), ("s", f"s_min_u32 s{sT2}, s{sT2}, 82"),
                  ("s", f"s_lshl_b32 s{sT2}, s{sT2}, 10"), ("s", f"s_mul_i32 s{sT1}, s{sI}, {72*1152}"), ("s", f"s_add_u32 s{sT2}, s{sT2}, s{sT1}"),
                  ("m", f"buffer_load_dwordx4 {DUM}, v{vL16}, s[{SO}:{SO+3}], s{sT2} offen")]
        per_wave = 576 * 1152 // nw
        L += [("s", f"s_mul_i32 s{sT0}, s{sT3}, {per_wave}"), ("s", f"s_mul_i32 s{sT1}, s{sI}, {576*1152}"),
              ("s", f"s_add_u32 s{sT0}, s{sT0}, s{sT1}"), ("s", f"s_add_u32 s{sT0}, s{sT0}, 2048")]
        for j in range((per_wave + 1023) // 1024):
            if j % 4 == 0 and j: L.append(("s", f"s_add_u32 s{sT0}, s{sT0}, 4096"))
            L.append(("m", f"buffer_load_dwordx4 {DUM}, v{vL16}, s[{SD}:{SD+3}], s{sT0} offen offset:{1024*(j%4)}"))
        return L
    def hook_poll_issue(cur):
        assert not any(kk == "z" and it[0] != "h" for kk, it in dmaq)
        a.i(f"v_accvgpr_read_b32 v{q0}, a{st('qf')}")
        toks["kv"] = a.vm(f"buffer_load_dword v{q1}, v{q0}, {WS}, 0 offen sc1")
    def hook_poll_check(cur):
        poll_check("kv", q0, q1)
        for hd, nm in enumerate(("qA", "qB")):
            G(cur, "v", f"v_accvgpr_read_b32 v{q2}, a{st(nm)}")
            for t in range(2):
                for hf in range(2):
                    d = aQ + 8*hd + 4*t + 2*hf
                    Gm(cur, "qld", f"buffer_load_dwordx2 a[{d}:{d+1}], v{q2}, {WS}, s{sQld} offen offset:{128*t + 1024*hf} sc1", 3)
    def poison(j0):
        def f(cur):
            if j0 == 0:
                for r in range(4): G(cur, "v", f"v_accvgpr_write_b32 a{HP+40+r}, -1")
            G(cur, "s", f"s_add_u32 s{sT3}, s{sHst}, {21504 + 1024*j0}")
            for j in range(3): G(cur + psp*j, "m", f"buffer_store_dwordx4 a[{HP+40}:{HP+43}], v{vL16}, {WS}, s{sT3} offen offset:{1024*j} sc1", 2)
        return f
    hooks[poi[0]] = poison(0); hooks[poi[1]] = poison(3)
    hooks[19] = hook_poll_issue
    hooks[21] = hook_poll_check
    def h1_issue(cur):
        assert not any(p[0] == "h1st" for p in pubs) and not fill2
        a.i(f"v_accvgpr_read_b32 v{q0}, a{st('hfp')}")
        toks["h1"] = a.vm(f"buffer_load_dword v{q1}, v{q0}, {WS}, 0 offen offset:8 sc1")
    def h1_check(cur):
        poll_check("h1", q0, q1, "0", 8)
        for ks in range(4):
            for t in range(2):
                o = 2048*ks + 1024*t; d = HP + 8*ks + 4*t
                if o % 4096 == 0: G(cur, "s", f"s_add_u32 s{sT3}, s{sHld}, {o}")
                G(cur, "m", f"buffer_load_dwordx4 a[{d}:{d+3}], v{vL16}, {WS}, s{sT3} offen offset:{o % 4096} sc1", 5)
    hooks[26] = h1_issue
    hooks[28] = h1_check
    def hook_pf(cur):
        assert not any(p[0] == "qdone" for p in pubs) and not fill2
        L = [("z", it) for it in pf1_items() + pf2_items() + (xr_items() if xrat == 'A' else [])] + [("z", ("h", hold))]
        for it in reversed(L): dmaq.appendleft(it)
    hooks[pfk] = hook_pf
    def kv_dma(cur, mat):
        base = TBASE + mat*10*GS; go = mat*144*1024
        L = []
        L.append(("s", f"s_mul_i32 s{sT2}, s{sW}, {GS}"))
        L.append(("s", f"s_add_u32 m0, s{sT2}, {base}"))
        for r2 in range(3):
            L.append(("s", f"s_add_u32 s{sT0}, s{sKV[r2]}, {go}"))
            L.append(("m", f"buffer_load_dwordx4 v{vL16}, {WS}, s{sT0} offen offset:{1024*r2} sc1 lds"))
        L.append(("s", f"s_min_u32 s{sT1}, s{sT2}, {GS}"))
        L.append(("s", f"s_add_u32 s{sT1}, s{sT1}, s{sT2}"))
        L.append(("s", f"s_add_u32 m0, s{sT1}, {base + 4*GS}"))
        for r2 in range(3):
            L.append(("s", f"s_add_u32 s{sT0}, s{sKV[r2]}, {go + 4096}"))
            L.append(("m", f"buffer_load_dwordx4 v{vL16}, {WS}, s{sT0} offen offset:{1024*r2} sc1 lds"))
        L.append(("s", f"s_cmp_eq_u32 s{sW}, 1")); L.append(("s", f"s_cselect_b32 s{sT0}, s{sKV[1]}, s{sKV[2]}"))
        L.append(("s", f"s_cmp_eq_u32 s{sW}, 0")); L.append(("s", f"s_cselect_b32 s{sT0}, s{sKV[0]}, s{sT0}"))
        L.append(("s", f"s_min_u32 s{sT1}, s{sW}, 2")); L.append(("s", f"s_sub_u32 s{sT2}, s{sT1}, s{sW}"))
        L.append(("s", f"s_lshl_b32 s{sT2}, s{sT2}, 10")); L.append(("s", f"s_add_u32 s{sT0}, s{sT0}, s{sT2}"))
        L.append(("s", f"s_lshl_b32 s{sT1}, s{sT1}, 10"))
        L.append(("s", f"s_add_u32 m0, s{sT1}, {base + 9*GS}"))
        L.append(("s", f"s_add_u32 s{sT0}, s{sT0}, {go + 8192}"))
        L.append(("m", f"buffer_load_dwordx4 v{vL16}, {WS}, s{sT0} offen sc1 lds"))
        L.append(("v", f"v_add_u32 v{q2}, s{sT1}, v{vL16}"))
        d = KVS + 4*mat
        if mat == 0:
            L.append(("s", f"s_cmp_ge_u32 s{sT0}, {OOB}")); L.append(("s", f"s_cselect_b32 s{sT0}, 0xf149, 0"))
            L += [("v", f"v_accvgpr_write_b32 a{d}, s{sT0}"), ("v", f"v_accvgpr_write_b32 a{d+1}, 0"),
                  ("v", f"v_accvgpr_write_b32 a{d+2}, s{sT0}"), ("v", f"v_accvgpr_write_b32 a{d+3}, 0")]
        else:
            L += [("v", f"v_accvgpr_write_b32 a{d+r}, s{sC0}") for r in range(4)]
        L.append(("v", f"v_add_u32 v{q2}, {base + 5*GS}, v{q2}"))
        L.append(("d", f"ds_write_b128 v{q2}, a[{d}:{d+3}]"))
        return L
    stages[34] = dict(dma=kv_dma(0, 0), fr=[]); stages[35] = dict(dma=kv_dma(0, 1), fr=[])
    assert nraw == 0
    a.i(f"s_mov_b32 s{sC0}, 0x3f803f80"); a.i(f"s_mov_b32 s{sC1}, 0x3f80")
    RS2 = [vT0, vT1]; QSC = [q1, q2]
    GR = [216, 220]; TP = 200; vGr = 224
    nx = [x0]; xrd = {}
    def xitems_next():
        n = nx[0]; nx[0] += 1
        L = [(("x", n), it) for it in xdma_items(n)]
        if n >= NXU: L.insert(0, (("x", n), ("w", n - NXU)))
        return L
    def xnext():
        for kk, it in xitems_next(): emit_dma_item(kk, it)
    NHOP = 4
    def hop(h):
        def fn():
            if not iwarm: return
            a.i("s_mov_b64 exec, 0")
            for w in range(3):
                a.i(f"s_cmp_eq_u32 s{sW}, {w}"); a.i(f"s_cbranch_scc1 L_w{4*h+w}")
            a.i(f"s_branch L_w{4*h+3}")
            a.label(f"L_wret{h}")
            a.i("s_mov_b64 exec, -1")
        return fn
    def xread(n):
        t, ch = n % 2, n // 2
        assert nx[0] > n and not extq
        while any(kk == ("x", n) for kk, _ in dmaq):
            kk, it = dmaq.popleft(); emit_dma_item(kk, it)
        a.wait(vm=dma_tok[("x", n)])
        for Sb in range(2):
            xrd[n] = a.ds(f"ds_read_b128 {X(2*ch + Sb, t)}, v{vXr[Sb]} offset:{2048*(n % NXU)}")
    inv = 1.0/576.0
    sHi = 47
    def inl(L):
        mp_ = {U0: sT0, U1: sT1, U2: sT2, U3: sT3}
        for t in L:
            t = t.lstrip("?").replace(MK, "vcc")
            t = re.sub(r"\bs(\d+)\b", lambda m: f"s{mp_.get(int(m.group(1)), int(m.group(1)))}", t)
            if "v_cndmask_b32 " in t: t = t.replace("v_cndmask_b32 ", "v_cndmask_b32_e64 ")
            a.i(t)
    def rowstats():
        m, q, m2, q2_ = 176, 177, 178, 179
        a.wait(vm=rowtok)
        tr("rows")
        for j in range(12):
            x = RW + j; c1 = "0" if j < 2 else f"v{(m, m2)[j%2]}"; c2 = "0" if j < 2 else f"v{(q, q2_)[j%2]}"
            a.i(f"v_dot2_f32_bf16 v{(m, m2)[j%2]}, v{x}, s{sC0}, {c1}"); a.i(f"v_dot2_f32_bf16 v{(q, q2_)[j%2]}, v{x}, v{x}, {c2}")
        a.i(f"v_add_u32 v181, {TAGC}, v{vE}"); a.i("v_mov_b32 v183, v181"); a.i("s_nop 0")
        a.i(f"v_add_f32 v{m}, v{m}, v{m2}"); a.i(f"v_add_f32 v{q}, v{q}, v{q2_}")
        for sh in (8, 4, 2, 1):
            a.i("s_nop 0")
            a.i(f"v_add_f32_dpp v{m}, v{m}, v{m} row_ror:{sh} row_mask:0xf bank_mask:0xf")
            a.i(f"v_add_f32_dpp v{q}, v{q}, v{q} row_ror:{sh} row_mask:0xf bank_mask:0xf")
        a.i(f"v_mov_b32 v{m2}, v{m}"); a.i(f"v_mov_b32 v{q2_}, v{q}"); a.i("s_nop 1")
        a.i(f"v_permlane16_swap_b32 v{m}, v{m2}"); a.i(f"v_permlane16_swap_b32 v{q}, v{q2_}"); a.i("s_nop 0")
        a.i(f"v_add_f32 v{m}, v{m}, v{m2}"); a.i(f"v_add_f32 v{q}, v{q}, v{q2_}")
        def rb(r): a.i(f"v_cvt_pk_bf16_f32 v{r}, v{r}, v{r}"); a.i(f"v_lshlrev_b32 v{r}, 16, v{r}")
        a.i(f"v_mul_f32 v{m}, {f2u(inv)}, v{m}"); a.i(f"v_mul_f32 v{q}, {f2u(inv)}, v{q}")
        a.i(f"v_fma_f32 v{q}, -v{m}, v{m}, v{q}"); a.i(f"v_max_f32 v{q}, 0, v{q}")
        rb(q); a.i(f"v_add_f32 v{q}, {f2u(1e-5)}, v{q}"); rb(q)
        a.i(f"v_sqrt_f32 v{q}, v{q}"); rb(m); rb(q)
        a.i(f"v_rcp_f32 v182, v{q}"); a.i(f"v_sub_f32 v180, 0, v{m}")
        a.i(f"v_readfirstlane_b32 s{sTr}, v181")
        a.vm(f"buffer_store_dwordx4 v[180:183], v{vR0}, {WS}, s{sPst} offen sc1")
    def gload():
        for t in range(2):
            toks["gr"] = a.vm(f"buffer_load_dwordx4 v[{GR[t]}:{GR[t]+3}], v{vGr}, {WS}, s{sGr} offen offset:{256*t} sc1")
    def cdot(S):
        a.wait(lg=xrd[2*(S//2) + 1])
        for t in range(2):
            for i in range(4):
                x = XN + 8*S + 4*t + i; tp = TP + 8*t + 2*i
                a.i(f"v_dot2_f32_bf16 v{tp}, v{x}, s{sC1}, v{GR[t]}"); a.i(f"v_dot2_f32_bf16 v{tp+1}, v{x}, s{sHi}, v{GR[t]}")
    def ccvt(S): return [f"v_cvt_pk_bf16_f32 v{XN+8*S+j}, v{TP+2*j}, v{TP+2*j+1}" for j in range(8)]
    sTr, sGr = 46, 43
    tr.stage = -1
    if trace and trace[0] < 0: a.i("s_mov_b32 s50, s53")
    su_early()
    a.i(f"v_and_b32 v{t0}, 31, v{vLane}"); a.i(f"v_min_u32 v{t0}, 1, v{t0}"); a.i(f"v_lshlrev_b32 v{vR0}, 4, v{tt}")
    a.i(f"v_lshl_add_u32 v{vR0}, v{t0}, 29, v{vR0}"); a.i(f"s_add_u32 s{sPst}, s{sPst}, {ST_BASE}")
    a.i(f"v_lshlrev_b32 v{vGr}, 4, v{vn}")
    a.i(f"s_lshl_b32 s{sGr}, s{sR}, 2"); a.i(f"s_add_u32 s{sGr}, s{sGr}, s{sW}"); a.i(f"s_lshl_b32 s{sGr}, s{sGr}, 9"); a.i(f"s_add_u32 s{sGr}, s{sGr}, {ST_BASE}")
    a.i(f"s_mov_b32 s{sHi}, 0x3f800000")
    if trace and trace[0] < 0:
        a.i("s_waitcnt lgkmcnt(0)"); a.i(f"v_writelane_b32 v{vLane}, s50, 0"); a.i(f"v_writelane_b32 v{vLane}, s54, 1"); trl.extend(["entry", "karg"])
    tr("su")
    rowstats()
    tr("st")
    nrd = [0]
    for op_ in front.split():
        if op_ == "x": xnext()
        elif op_ == "r": xread(nrd[0]); nrd[0] += 1
        elif op_[0] == "W": emit_dma(int(op_[1:]))
        elif op_[0] == "h": hop(int(op_[1:]))()
        elif op_ == "q": inl(d_q(144))
        elif op_ == "H": inl(d_h(144))
        elif op_ == "B": inl(d_B(144))
        elif op_ == "F": inl(d_flags(144))
        elif op_ == "T": inl(d_T1(144))
        elif op_ == "S": inl(d_T2(144))
        elif op_ == "c": su_cas()
        elif op_ == "g": gload()
        elif op_ == "U":
            for it in gu_items(): emit_dma_item("z", it)
        tr(op_)
    a.wait(vm=toks["gr"])
    a.label("L_gchk")
    for j, r in enumerate((GR[0]+1, GR[0]+3, GR[1]+1, GR[1]+3)): a.i(f"v_xor_b32 v{TP+j}, s{sTr}, v{r}")
    a.i(f"v_or3_b32 v{TP}, v{TP}, v{TP+1}, v{TP+2}"); a.i(f"v_or_b32 v{TP}, v{TP}, v{TP+3}")
    a.i(f"v_cmp_ne_u32 vcc, 0, v{TP}"); a.i("s_nop 0"); a.i("s_cmp_lg_u64 vcc, 0"); a.i("s_cbranch_scc1 L_gretry")
    a.label("L_gok")
    tr("gok")
    astamp("P:stats")
    for t in range(2):
        a.i(f"v_mul_f32 v{RS2[t]}, v{GR[t]+2}, v{GR[t]+2}"); a.i(f"v_mul_f32 v{QSC[t]}, {f2u(QG)}, v{GR[t]+2}")
    a.i(f"v_accvgpr_write_b32 a{st('tr')}, s{sTr}")
    cdot(0)
    for t in ccvt(0): a.i(t)
    astamp("P:ln")
    def mkq(S):
        def f(i):
            want = min(18, 2*((S + 1)//2) + 2 + xahead)
            while nrd[0] < want and nrd[0] < nx[0]:
                xread(nrd[0]); nrd[0] += 1
                if nx[0] < 18: dmaq.extend(xitems_next())
            if S + 1 < 18:
                cdot(S + 1)
                for t in ccvt(S + 1): F(i, "v", t, [("c", S + 1)])
        return f
    def mkd(S):
        def f(i):
            nd = 0
            while any(("c", S) in it[3] for it in fill): emit_fill(fill.popleft()); nd += 1
            if nd: a.i("s_nop 1")
        return f
    for S in range(18):
        ihooks[("Q", S, 1)] = mkq(S)
        if S: ihooks[("Q", S, 0)] = mkd(S)
    if nraw == 6: do_post(("q", [ACC[0], ACC[1]]), 0)
    else: post[5] = ("q", [ACC[0], ACC[1]])
    def addhook(k, fn):
        old = hooks.get(k)
        hooks[k] = (lambda cur: (old(cur), fn(cur))) if old else fn
    def at_stage(k, L, accset):
        def f(i):
            assert not fill or True
            defer(L, accset)
        ihooks[("S", k)] = f
    if 'F' not in front.split(): at_stage(9, d_flags(200), ACC[1])
    at_stage(12, d_rows(0), -100)
    if 'T' not in front.split(): at_stage(15, d_T1(ACC[0]), ACC[0])
    if 'S' not in front.split(): at_stage(21, d_T2(ACC[2]), ACC[2])
    at_stage(24, d_col(0), -100)
    QO = 0; MFi = 16; MLa = 20; aKA, aKB, aV0, aV1 = 24, 25, 26, 27; w0, w1, w2, w3 = 28, 29, 30, 31
    def d_Tsetup():
        L = [f"v_accvgpr_read_b32 v{r}, a{st(nm)}" for nm, r in (("KA", aKA), ("KB", aKB), ("V0", aV0), ("V1", aV1))]
        for r in range(4): L += [f"v_accvgpr_read_b32 v{MFi+r}, a{st('mf')+r}", f"v_accvgpr_read_b32 v{MLa+r}, a{st('ml')+r}"]
        L += [f"v_lshrrev_b32 v{w0}, 8, v{vL16}", f"v_add_u32 v{w1}, -2, v{w0}", f"v_ashrrev_i32 v{w1}, 31, v{w1}",
              f"v_add_u32 v{w2}, -3, v{w0}", f"v_ashrrev_i32 v{w2}, 31, v{w2}", f"v_xor_b32 v{w3}, v{w1}, v{w2}", f"v_and_b32 v{w3}, 0x3f80, v{w3}"]
        for hd in range(2):
            for t in range(2):
                b = QO + 8*hd + 4*t
                L += [f"v_accvgpr_read_b32 v{b+r}, a{aQ+8*hd+4*t+r}" for r in range(4)]
                L += [f"v_and_b32 v{b}, v{w1 if hd else w2}, v{b}", f"v_and_b32 v{b+1}, v{w2 if hd else w1}, v{b+1}",
                      f"v_and_or_b32 v{b+2}, v{b+2}, v{w1}, v{w3}", f"v_and_b32 v{b+3}, v{w1}, v{b+3}"]
        return L
    def f31(i):
        assert not fill3
        assert toks["qld"] <= a.vm_done
        defer(d_Tsetup(), -100)
    ihooks[("S", 31)] = f31
    todo = [kk for kk in range(nraw, 33) if kk not in dma_tok]
    def dma_after_A(k):
        out = []
        while todo and todo[0] <= k + 4:
            kk = todo[0]
            prev = [x for x in range(nraw, kk) if slot_of(x) == slot_of(kk)]
            if prev and max(prev) > k - 2: break
            if not prev and slot_of(kk) >= 4 and k < 6: break
            out.append(todo.pop(0))
        if k == kvat[0]: out.append(34)
        if k == kvat[1]: out.append(35)
        if k == 31: out.append(36)
        if k == 32: out.append(37)
        return out
    stream([(k,) + f for k in range(nraw, 33) for f in stages[k]["fr"]], dma_after_A)
    assert not todo
    astamp("P:aend"); astamp("A:end"); astamp("T:0")

    tr.stage = 200; tr("aend")
    a.wait(vm=max(dma_tok[34], dma_tok[35]), lg=a.lg_issued)
    a.i("s_barrier")
    SS = 32; OA = 208
    mx = [176, 178]; nmx = [180, 182]
    def Sr(t, kt): return SS + 72*t + 4*kt
    side = deque()
    def side_group(kk, items):
        cur = []
        for it in items:
            cur.append(it)
            if it[0] == "m":
                side.append(lambda kk=kk, cur=cur: [emit_dma_item(kk, x) for x in cur]); cur = []
        assert not cur
    side_group(38, stages[38]["dma"])
    if xrat == 'T': side_group("z", xr_items(196, 197, 198))
    side_group(39, stages[39]["dma"])
    fbn = [0]; NFB = [8]
    def nextfb():
        fb = FR + 4*(fbn[0] % NFB[0]); fbn[0] += 1; return fb
    def rd_k(hd, kt, lazy=None):
        fb = nextfb(); v = aKB if hd else aKA
        o = [f"ds_read_b64 a[{fb}:{fb+1}], v{v} offset:{128*kt}", f"ds_read_b64 a[{fb+2}:{fb+3}], v{v} offset:{128*kt + GS}"]
        if lazy is not None: lazy += o; return fb, None
        a.ds(o[0]); return fb, a.ds(o[1])
    def rd_v(hd, kap, tile, lazy):
        fb = nextfb(); v = aV1 if tile else aV0; o = 256*kap + (6*GS if (hd and not tile) else 0)
        lazy += [f"ds_read_b64_tr_b16 a[{fb}:{fb+1}], v{v} offset:{o}", f"ds_read_b64_tr_b16 a[{fb+2}:{fb+3}], v{v} offset:{o+128}"]
        return fb, None
    def qk_ops(hd, kt, fr):
        fb, tk = fr; o = []
        for t in range(2):
            j = kt - t
            if not 0 <= j <= 16: continue
            c = f"v[{MFi}:{MFi+3}]" if j == 0 else (f"v[{MLa}:{MLa+3}]" if j == 16 else "0")
            d = Sr(t, kt); b = QO + 8*hd + 4*t
            o.append((tk, f"{MF} v[{d}:{d+3}], a[{fb}:{fb+3}], v[{b}:{b+3}], {c}"))
        return o
    def max_ops(kt):
        o = []
        for t in range(2):
            j = kt - t
            if not 0 <= j <= 16: continue
            b = Sr(t, kt); m = mx[t]
            if j == 0:
                o.append(f"v_max_f32 v{m}, v{b}, v{b+1}"); o.append(f"v_max_f32 v{m+1}, v{b+2}, v{b+3}")
            else:
                o.append(f"v_max3_f32 v{m}, v{b}, v{b+1}, v{m}"); o.append(f"v_max3_f32 v{m+1}, v{b+2}, v{b+3}, v{m+1}")
        return o
    def finmax():
        for t in range(2): a.i(f"v_max_f32 v{mx[t]}, v{mx[t]}, v{mx[t]+1}")
        for sw in ("v_permlane32_swap_b32", "v_permlane16_swap_b32"):
            for t in range(2): a.i(f"v_mov_b32 v{mx[t]+1}, v{mx[t]}")
            a.i("s_nop 1")
            for t in range(2): a.i(f"{sw} v{mx[t]}, v{mx[t]+1}")
            a.i("s_nop 0")
            for t in range(2): a.i(f"v_max_f32 v{mx[t]}, v{mx[t]}, v{mx[t]+1}")
        for t in range(2): a.i(f"v_mul_f32 v{nmx[t]+1}, -1.0, v{mx[t]}")
    def exp_ops(kap):
        o1, o2, o3 = [], [], []
        for t in range(2):
            d = Sr(t, 2*kap)
            for hf in range(2):
                kt = 2*kap + hf; b = Sr(t, kt)
                if 0 <= kt - t <= 16:
                    for r in (0, 2): o1.append(f"v_pk_fma_f32 v[{b+r}:{b+r+1}], v[{b+r}:{b+r+1}], v[{nmx[t]}:{nmx[t]+1}], v[{nmx[t]}:{nmx[t]+1}] op_sel:[0,0,1] op_sel_hi:[1,0,1]")
                    for r in range(4): o2.append(f"v_exp_f32 v{b+r}, v{b+r}")
                    o3.append(f"v_cvt_pk_bf16_f32 v{d+2*hf}, v{b}, v{b+1}"); o3.append(f"v_cvt_pk_bf16_f32 v{d+2*hf+1}, v{b+2}, v{b+3}")
                else:
                    o3.append(f"v_mov_b32 v{d+2*hf}, 0"); o3.append(f"v_mov_b32 v{d+2*hf+1}, 0")
        return o1, o2 + o3
    def pv_ops(hd, kap, frs):
        o = []
        for tile in range(2):
            fb, tk = frs[tile]
            for t in range(2):
                d = OA + 16*hd + 8*t + 4*tile; b = Sr(t, 2*kap)
                o.append((tk, f"{MF} v[{d}:{d+3}], a[{fb}:{fb+3}], v[{b}:{b+3}], {'0' if kap == 0 else f'v[{d}:{d+3}]'}"))
        return o
    fbtok = {}
    def dsr(txt):
        tk = a.ds(txt); fbtok[int(re.search(r"a\[(\d+):", txt).group(1)) & ~3] = tk
    def merge(valu, mfs, lead=2, tailgap=1, reads=(), nside=3, lazywait=False):
        n = len(valu); m = len(mfs); pos = {}; reads = list(reads)
        if not lazywait: a.wait(lg=a.lg_issued)
        need = {txt: fbtok.get(int(re.search(r", a\[(\d+):", txt).group(1)), 0) for _, txt in mfs}
        order = [txt for _, txt in mfs]
        while len(reads) > m: dsr(reads.pop(0))
        for j in range(m): pos.setdefault(lead + (j * max(n - lead - tailgap, 1)) // max(m, 1), []).append(mfs[j])
        cnt = 0
        def one(txt):
            nonlocal cnt
            if lazywait and need[txt] > a.lg_done:
                j = order.index(txt); a.wait(lg=max(need[x] for x in order[j:j+4]))
            a.i(txt)
            if reads: dsr(reads.pop(0))
            cnt += 1
            if side and cnt % nside == 0: side.popleft()()
        for i, v in enumerate(valu):
            for (tk, txt) in pos.pop(i, []): one(txt)
            a.i(v)
        for kq in sorted(pos):
            for (tk, txt) in pos[kq]: one(txt)
    def slowT():
        for t in range(2): a.i(f"v_mov_b32 v{nmx[t]}, 1.0")
        for hd in range(2):
            kf = {}
            for kt in range(6): kf[kt] = rd_k(hd, kt)
            for kt in range(18):
                lz = []
                if kt + 6 < 18: fbx, _ = rd_k(hd, kt+6, lz)
                mo = max_ops(kt-3) if kt >= 3 else []
                for (tk, txt) in qk_ops(hd, kt, kf[kt]):
                    a.wait(lg=tk); a.i(txt)
                    if lz: tkx = a.ds(lz.pop(0))
                while lz: tkx = a.ds(lz.pop(0))
                if kt + 6 < 18: kf[kt+6] = (fbx, tkx)
                a.i("s_nop 1")
                for t in mo: a.i(t)
            a.i("s_nop 7")
            for kt in (15, 16, 17):
                for t in max_ops(kt): a.i(t)
            finmax()
            pend = []
            for kap in range(9):
                lz = []
                vf = [rd_v(hd, kap, 0, lz), rd_v(hd, kap, 1, lz)]
                o1, v = exp_ops(kap)
                for t in o1: a.i(t)
                merge(v, pend, lead=0, tailgap=5, reads=lz)
                pend = pv_ops(hd, kap, vf)
            a.i("s_nop 1")
            merge([], pend)
        a.i("s_nop 7")
    def hp_loads():
        for ks in range(4, 9):
            for t in range(2):
                def ld(ks=ks, t=t):
                    o = 2048*ks + 1024*t
                    if o % 4096 == 0: a.i(f"s_add_u32 s{sPst}, s{sHld}, {o}")
                    d = HP + 8*ks + 4*t
                    toks["hld"] = a.vm(f"buffer_load_dwordx4 a[{d}:{d+3}], v{vL16}, {WS}, s{sPst} offen offset:{o % 4096} sc1")
                side.append(ld)
    seq = [(hd, kap) for kap in range(9) for hd in range(2)]
    cur_n = [None]
    Sr_slow = Sr
    def Sr(t, kt):
        if cur_n[0] is None: return Sr_slow(t, kt)
        return SS + 16*(cur_n[0] % 3) + 8*t + 4*(kt % 2)
    def kreads(n, lz):
        hd, kap = seq[n]; return [rd_k(hd, 2*kap, lz), rd_k(hd, 2*kap+1, lz)]
    def qks(n, kf):
        hd, kap = seq[n]; cur_n[0] = n
        r = qk_ops(hd, 2*kap, kf[0]) + qk_ops(hd, 2*kap+1, kf[1]); cur_n[0] = None
        return r
    NFB[0] = 6; V1B = [FR + 24, FR + 28]
    lz = []; k0 = kreads(0, lz); nextfb(); nextfb(); k1 = kreads(1, lz)
    for t in lz: dsr(t)
    a.wait(lg=a.lg_issued - 4)
    for (_, txt) in qks(0, k0): a.i(txt)
    a.i("s_nop 5")
    knext = k1; pv = []
    for n in range(18):
        hd, kap = seq[n]
        tr.stage = 200; tr(f"t{n}")
        mf = (qks(n+1, knext) if n + 1 < 18 else []) + pv
        lz = []; lz2 = []
        v0f = rd_v(hd, kap, 0, lz2)
        if hd == 0:
            v1f = (V1B[kap % 2], None)
            lz2 += [f"ds_read_b64_tr_b16 a[{v1f[0]}:{v1f[0]+1}], v{aV1} offset:{256*kap}", f"ds_read_b64_tr_b16 a[{v1f[0]+2}:{v1f[0]+3}], v{aV1} offset:{256*kap+128}"]
        if n + 2 < 18: knext = kreads(n + 2, lz)
        cur_n[0] = n
        _, v = exp_ops(kap)
        pvn = pv_ops(hd, kap, [v0f, v1f])
        cur_n[0] = None
        merge(v, mf, lead=0, tailgap=tg, reads=lz + lz2, nside=4, lazywait=True)
        pv = pvn
        if n == th[0]:
            a.wait(vm=toks["hst"])
            flag_store([f"v_accvgpr_read_b32 v{q0}, a{st('hfo')}"], "0", 0)
        if n == th[1]:
            a.i(f"v_accvgpr_read_b32 v{q0}, a{st('hfp')}")
            toks["hp"] = a.vm(f"buffer_load_dword v{q1}, v{q0}, {WS}, 0 offen sc1")
        if n == th[2]:
            poll_check("hp", q0, q1); hp_loads()
    a.i("s_nop 1")
    merge([], pv)
    tr("tl")
    nleft = len(side)
    while side: side.popleft()()
    print("T side left", nleft, file=sys.stderr)
    a.i("s_nop 7")
    L = [0, 1, 2, 3] if False else [84, 85, 86, 87]; L2 = [88, 89, 90, 91]; BT = 92
    idx = [(hd, t) for hd in range(2) for t in range(2)]
    def getl():
        for n, (hd, t) in enumerate(idx):
            d = OA + 16*hd + 8*t + 4
            a.i(f"v_mov_b32 v{L[n]}, v{d}"); a.i(f"v_mov_b32 v{L2[n]}, v{d}")
        a.i("s_nop 1")
        for n in range(4): a.i(f"v_permlane16_swap_b32 v{L2[n]}, v{L[n]}")
        a.i("s_nop 0")
    getl()
    a.i(f"v_min3_f32 v{L2[0]}, v{L[0]}, v{L[1]}, v{L[2]}"); a.i(f"v_add_f32 v{L2[1]}, v{L[0]}, v{L[1]}"); a.i(f"v_add_f32 v{L2[2]}, v{L[2]}, v{L[3]}")
    a.i(f"v_min_f32 v{L2[0]}, v{L2[0]}, v{L[3]}"); a.i(f"v_add_f32 v{L2[1]}, v{L2[1]}, v{L2[2]}")
    a.i(f"v_cmp_nle_f32 vcc, {f2u(2.0**-40)}, v{L2[0]}")
    a.i(f"s_mov_b64 s[{sT1}:{sT1+1}], vcc")
    a.i(f"v_cmp_nge_f32 vcc, {f2u(2.0**40 if not forceslow else 0.0)}, v{L2[1]}")
    a.i("s_nop 0")
    a.i(f"s_or_b64 vcc, vcc, s[{sT1}:{sT1+1}]")
    a.i("s_cbranch_scc1 L_Tslow")
    a.label("L_Tnorm")
    main_lines = a.lines; a.lines = []
    assert a.lg_done == a.lg_issued
    NFB[0] = 8
    a.label("L_Tslow"); slowT(); getl(); a.i("s_branch L_Tnorm")
    assert a.lg_done == a.lg_issued
    slow_lines = a.lines; a.lines = main_lines
    E = []; osets = [OA]
    for n in range(4): E.append(f"v_mul_f32 v{L[n]}, {f2u(QG)}, v{L[n]}")
    for n in range(4): E.append(f"v_rcp_f32 v{L[n]}, v{L[n]}")
    E.append(f"v_add_u32 v{w1}, -1, v{w0}"); E.append(f"v_ashrrev_i32 v{w1}, 31, v{w1}")
    E.append(f"s_add_u32 s{sPst}, s{sHst}, {18*1024}")
    for t in range(2):
        for hd in range(2):
            d = OA + 16*hd + 8*t; n = 2*hd + t
            for r in list(range(4)) + ([6, 7] if hd else [4, 5]): E.append(f"v_mul_f32 v{d+r}, v{L[n]}, v{d+r}")
        d = OA + 8*t; e = OA + 16 + 8*t
        E += [f"v_cvt_pk_bf16_f32 v{BT+2*t}, v{d+4}, v{d+5}", f"v_cvt_pk_bf16_f32 v{BT+2*t+1}, v{e+6}, v{e+7}",
              f"v_cvt_pk_bf16_f32 v{d}, v{d}, v{d+1}", f"v_cvt_pk_bf16_f32 v{d+1}, v{d+2}, v{d+3}",
              f"v_cvt_pk_bf16_f32 v{d+2}, v{e}, v{e+1}", f"v_cvt_pk_bf16_f32 v{d+3}, v{e+2}, v{e+3}",
              f"v_and_b32 v{BT+2*t}, v{w1}, v{BT+2*t}", f"v_and_b32 v{BT+2*t+1}, v{w1}, v{BT+2*t+1}",
              f"buffer_store_dwordx4 v[{d}:{d+3}], v{vL16}, {WS}, s{sPst} offen offset:{1024*t} sc1"]
    E.append(f"buffer_store_dwordx4 v[{BT}:{BT+3}], v{vL16}, {WS}, s{sPst} offen offset:2048 sc1")
    for t in range(2):
        d = OA + 8*t
        E += [f"v_accvgpr_write_b32 a{H+72+4*t+r}, v{d+r}" for r in range(4)]
        E += [f"v_accvgpr_write_b32 a{HB+4*t}, v{BT+2*t}", f"v_accvgpr_write_b32 a{HB+4*t+1}, v{BT+2*t+1}"]
    for n_, t in enumerate(E):
        if n_ < oinl:
            if t.startswith("buffer"): toks["ost" if "2048" in t else "ostx"] = a.vm(t)
            else: a.i(t)
        elif t.startswith("buffer"): Fm(0, "ost" if "offset:2048" in t else "ostx", t, osets)
        else: F(0, "v", t, osets)
    def own_alpha(i):
        nd = 0
        while fill: emit_fill(fill.popleft()); nd += 1
        if nd: print("own alpha drain", nd, file=sys.stderr); a.i("s_nop 1")
    ihooks[("B", 1, 9, 0)] = own_alpha
    pubs.append(("ost", lambda: flag_store([f"v_accvgpr_read_b32 v{q0}, a{st('hfo')}"], "0", 4), [None, od], False))
    tr("tend")
    astamp("P:tend"); astamp("T:end")

    PL = 0
    SQ = 96
    def pstore(p, halves):
        def fn(nb):
            assert not any("buffer_store" in str(it[2]) for it in fill2)
            acc = BACC[p]; sets = [(acc, acc + 16*len(halves))]
            for hf in halves:
                if p == 0:
                    F(nb, "s", f"s_add_u32 s{sPst}, s{sHld}, {8*2048}", sets)
                else:
                    F(nb, "s", f"s_lshl_b32 s{sPst}, s{sCol[p]}, 5", sets); F(nb, "s", f"s_add_u32 s{sPst}, s{sPst}, s{sPo[hf]}", sets)
                for t in range(2):
                    d = acc + 16*hf + 4*t
                    pack4(nb, d, d + 8, sets)
                    last = (hf == halves[-1] and t == 1)
                    Fm(nb, f"pst{p}" if last else "pstx", f"buffer_store_dwordx4 v[{d}:{d+3}], v{vL16}, {WS}, s{sPst} offen offset:{1024*t} sc1", sets, 2)
            def pub():
                if p == 0: a.i(f"s_add_u32 s{sT0}, s{sPF}, 1024")
                else:
                    a.i(f"s_lshr_b32 s{sT0}, s{sI}, 1"); a.i(f"s_xor_b32 s{sT0}, s{sT0}, {4-p}")
                    a.i(f"s_lshl_b32 s{sT0}, s{sT0}, 8"); a.i(f"s_add_u32 s{sT0}, s{sT0}, s{sPF}")
                a.i(f"s_lshl_b32 s{sT1}, s{sI}, 2")
                flag_store([f"v_mov_b32 v{q0}, s{sT1}"], f"s{sT0}")
            pubs.append((f"pst{p}", pub, [None, pd if p < 3 else pd3], False))
        return fn
    def late_store(acc, x, taus):
        def fn(nb):
            assert not fill, len(fill)
            for c in taus:
                d = acc + 8*c; sets = [(d, d + 8)]
                pack4(nb, d, d + 4, sets)
                F(nb, "m", f"buffer_store_dwordx4 v[{d}:{d+3}], v{vL16}, {WS}, s{sLS[x]} offen offset:{1024*c} sc1", sets)
        return fn
    bpost[("B", 0, 20, 1)] = pstore(0, [0])
    for p in (1, 2): bpost[("B", p, 20, 3)] = pstore(p, [0, 1])
    vP0, vP1 = 80, 81
    def h_wait(i):
        a.wait(vm=toks["hld"])
    ihooks[("B", 1, 14, 0)] = h_wait
    def o_poll(i):
        a.i(f"v_accvgpr_read_b32 v{vP0}, a{st('hfp')}")
        toks["op"] = a.vm(f"buffer_load_dword v{vP1}, v{vP0}, {WS}, 0 offen offset:4 sc1")
    ihooks[("B",) + op[0] + (0,)] = o_poll
    def o_check(i):
        assert not any("v_cndmask" in str(it[2]) for it in fill2)
        poll_check("op", vP0, vP1, "0", 4)
        a.i(f"s_add_u32 s{sT0}, s{sHld}, {18*1024}")
        for t in range(2):
            a.vm(f"buffer_load_dwordx4 a[{HP+72+4*t}:{HP+75+4*t}], v{vL16}, {WS}, s{sT0} offen offset:{1024*t} sc1")
        for t in range(2):
            toks["old"] = a.vm(f"buffer_load_dwordx2 a[{HB+4*t+2}:{HB+4*t+3}], v{vL16}, {WS}, s{sT0} offen offset:{2048+8*t} sc1")
    ihooks[("B",) + op[1] + (0,)] = o_check
    ihooks[("B", 1, 19, 0)] = lambda i: a.wait(vm=toks["old"])
    sOwn = sQst
    sLS = {1: sQld, 2: 60, 3: 61}; sLL = {1: 62, 2: 63, 3: sQcol}
    sPFo = sKV[0]; sXo = [sKV[1], sKV[2]]; sMf, sMo, sMl = 45, sE, sM4x
    def polladdr(minx):
        a.i(f"v_bfe_u32 v{vP0}, v{vL16}, 4, 3"); a.i(f"v_max_u32 v{vP0}, {minx}, v{vP0}")
        a.i(f"v_xor_b32 v{vP0}, s{sI}, v{vP0}"); a.i(f"v_lshlrev_b32 v{vP0}, 2, v{vP0}")
    MA, MB, MX, MD, vM0, vM1 = 120, 124, 132, 136, 134, 135
    def m_prep(i):
        L = [f"v_bfe_u32 v{MD}, v{vL16}, 4, 4", f"v_lshrrev_b32 v{MD+1}, 8, v{vL16}",
             f"v_mul_u32_u24 v{vM0}, {8*HXS}, v{MD+1}", f"v_lshl_add_u32 v{vM0}, v{MD}, 4, v{vM0}",
             f"s_lshl_b32 s{sMl}, s{sI}, 8", f"s_add_u32 s{sMl}, s{sMl}, s{sPbase}", f"s_add_u32 s{sMl}, s{sMl}, {8*2048}",
             f"v_mul_u32_u24 v{vM1}, 1152, v{MD}", f"v_lshl_add_u32 v{vM1}, v{MD+1}, 5, v{vM1}",
             f"v_lshrrev_b32 v{MD+2}, 1, v{MD+1}", f"v_lshl_add_u32 v{vM1}, v{MD+2}, 29, v{vM1}",
             f"s_lshr_b32 s{sT2}, s{sI}, 2", f"s_mul_i32 s{sMo}, s{sT2}, {16*1152}", f"s_and_b32 s{sT2}, s{sI}, 3", f"s_lshl_b32 s{sT2}, s{sT2}, 3",
             f"s_add_u32 s{sMo}, s{sMo}, s{sT2}", f"s_add_u32 s{sMo}, s{sMo}, s{sCol[0]}", f"s_add_u32 s{sMo}, s{sMo}, s{sXrow}",
             f"s_add_u32 s{sMf}, s{sPF}, 1024",
             f"v_and_b32 v{MD+2}, 1, v{MD}", f"v_lshlrev_b32 v{MD+2}, 4, v{MD+2}", f"v_mov_b32 v{MD+3}, 0x3f80",
             f"v_lshlrev_b32 v{MD+3}, v{MD+2}, v{MD+3}", f"v_lshrrev_b32 v{MD+2}, 1, v{MD}"]
        for t in L: G(i, "v", t)
        for r in range(4):
            G(i, "v", f"v_cmp_eq_u32 vcc, {r}, v{MD+2}"); G(i, "v", f"v_cndmask_b32 v{MA+r}, 0, v{MD+3}, vcc")
        G(i, "v", f"v_accvgpr_read_b32 v{MX}, a{XR+8}"); G(i, "v", f"v_accvgpr_read_b32 v{MX+1}, a{XR+9}")
    ihooks[("B", 1, 1, 0)] = m_prep
    def m_poll(i):
        assert not fill2, len(fill2)
        for t in (f"v_bfe_u32 v{vP0}, v{vL16}, 4, 3", f"v_bfe_u32 v{vP1}, v{vL16}, 7, 1", f"v_mul_u32_u24 v{vP0+2}, 6, v{vP1}",
                  f"v_or_b32 v{vP0}, v{vP0}, v{vP0+2}", f"v_xor_b32 v{vP0}, s{sI}, v{vP0}", f"v_lshlrev_b32 v{vP0}, 2, v{vP0}",
                  f"s_sub_u32 s{sT2}, s{sMf}, s{sPFo}", f"v_xor_b32 v{vP1}, 1, v{vP1}", f"v_mad_u32_u24 v{vP0}, v{vP1}, s{sT2}, v{vP0}"):
            G(i, "v", t)
        Gm(i, "mp", f"buffer_load_dword v{vP1}, v{vP0}, {WS}, s{sPFo} offen sc1")
    def m_check(i):
        poll_check("mp", vP0, vP1, f"s{sPFo}", 0)
        a.vm(f"buffer_load_dwordx4 v[{MB}:{MB+3}], v{vM0}, {WS}, s{sMl} offen sc1")
        a.i(f"s_add_u32 s{sMl}, s{sMl}, {32*HXS}")
        toks["ml"] = a.vm(f"buffer_load_dwordx4 v[{MB+4}:{MB+7}], v{vM0}, {WS}, s{sMl} offen sc1")
        for t in (f"v_lshlrev_b32 v{MD}, 16, v{MX}", f"v_and_b32 v{MD+1}, 0xffff0000, v{MX}", f"v_lshlrev_b32 v{MD+2}, 16, v{MX+1}", f"v_and_b32 v{MD+3}, 0xffff0000, v{MX+1}"):
            G(i, "v", t)
        for x in (6, 7): G(i, "f", (lambda x=x: pload(x, sOwn, PL + 8*x, "pl")), 6)
    def m_fin(i):
        assert not any(f"v{MD+3}," in str(it[2]) for it in fill2)
        a.wait(vm=toks["ml"])
        for j in range(2): a.i(f"{MF} v[{MD}:{MD+3}], v[{MA}:{MA+3}], v[{MB+4*j}:{MB+4*j+3}], v[{MD}:{MD+3}]")
        G(i + 3, "v", f"v_cvt_pk_bf16_f32 v{MD}, v{MD}, v{MD+1}"); G(i + 3, "v", f"v_cvt_pk_bf16_f32 v{MD+1}, v{MD+2}, v{MD+3}")
        G(i + 3, "m", f"buffer_store_dwordx2 v[{MD}:{MD+1}], v{vM1}, s[{SOUT}:{SOUT+3}], s{sMo} offen{outsc}")
    def e_poll(i):
        for t in (f"v_bfe_u32 v{vP0}, v{vL16}, 4, 1", f"v_or_b32 v{vP0}, 4, v{vP0}", f"v_xor_b32 v{vP0}, s{sI}, v{vP0}", f"v_lshlrev_b32 v{vP0}, 2, v{vP0}"):
            a.i(t)
        toks["ep"] = a.vm(f"buffer_load_dword v{vP1}, v{vP0}, {WS}, s{sPFo} offen sc1")
    def prep_own(i):
        L = [f"v_accvgpr_read_b32 v{vT0}, a{st('ov')}",
             f"s_lshl_b32 s{sOwn}, s{sI}, 11", f"s_add_u32 s{sOwn}, s{sOwn}, s{sPbase}",
             f"s_and_b32 s{sT2}, s{sS}, 1", f"s_mul_i32 s{sT2}, s{sT2}, 640", f"s_lshl_b32 s{sT3}, s{sI}, 6",
             f"s_add_u32 s{sT2}, s{sT2}, s{sT3}", f"s_add_u32 s{sXo[0]}, s{sT2}, s{sXrow}", f"s_add_u32 s{sXo[1]}, s{sXo[0]}, {16*1152}",
             f"s_lshr_b32 s{sPFo}, s{sI}, 1", f"s_lshl_b32 s{sPFo}, s{sPFo}, 8", f"s_add_u32 s{sPFo}, s{sPFo}, s{sPF}"]
        for x in (1, 2, 3):
            L += [f"s_add_u32 s{sLS[x]}, s{sHst}, {21504 + 2048*(x-1)}", f"s_xor_b32 s{sT3}, s{sI}, {x}", f"s_sub_u32 s{sT3}, s{sT3}, s{sI}",
                  f"s_mul_i32 s{sT3}, s{sT3}, {8*HXS}", f"s_add_u32 s{sLL[x]}, s{sT3}, s{sLS[x]}"]
        for t in L: G(i, "v", t)
    ihooks[("B", 1, 2, 0)] = prep_own
    def pload(x, base, dst, name):
        a.i(f"s_xor_b32 s{sT0}, s{sI}, {x}"); a.i(f"s_mul_i32 s{sT0}, s{sT0}, {8*HXS}"); a.i(f"s_add_u32 s{sT0}, s{sT0}, s{base}")
        for t in range(2):
            toks[name] = a.vm(f"buffer_load_dwordx4 v[{dst+4*t}:{dst+4*t+3}], v{vL16}, {WS}, s{sT0} offen offset:{1024*t} sc1")
    def e_check(i):
        poll_check("ep", vP0, vP1, f"s{sPFo}", 0)
        for x in (4, 5): G(i, "f", (lambda x=x: pload(x, sOwn, PL + 8*x, "pl")), 4)
    def lload(x, c): return f"buffer_load_dwordx4 v[{PL+8*x+4*c}:{PL+8*x+4*c+3}], v{vL16}, {WS}, s{sLL[x]} offen offset:{1024*c} sc1"
    frsB = [(k,) + f for k in range(KB0, 50) for f in stages[k]["fr"]]
    def addpass(p, taus, order):
        n0 = len(frsB); first = True
        for k in order:
            for j in range(len(late[(p, taus[0])][k])):
                for tau in taus:
                    f = list(late[(p, tau)][k][j]); f[5] = first; f[6] = None; frsB.append(tuple(f))
                first = False
        return n0, len(frsB) - 1
    eC3a = len(frsB) - 1
    b3, e3_ = addpass(3, (2, 3), (47, 48, 49, 46))
    c4o = (50, 51, 53, 52)
    b40, e40 = addpass(4, (0,), c4o); b41, e41 = addpass(4, (1,), c4o); b42, e42 = addpass(4, (2, 3), c4o)
    print("B frag map", eC3a, b3, e3_, b40, e40, e41, e42, file=sys.stderr)
    ipost[eC3a] = late_store(BACC[3], 3, (0, 1)); ipost[e3_] = late_store(BACC[3] + 16, 2, (0, 1))
    ipost[e40] = late_store(BACC[4], 1, (0,)); ipost[e41] = late_store(BACC[4], 1, (1,))
    def rel47(i):
        a.i("s_barrier")
        for it in stages[52]["dma"]: dmaq.append((52, it))
    ihooks[b3 + 12] = rel47
    ihooks[mp[0]] = m_poll; ihooks[mp[1]] = m_check; ihooks[mp[2]] = m_fin
    ihooks[ep[0]] = e_poll; ihooks[ep[1]] = e_check
    def mkl(items, name):
        def f(i):
            for x, c in items: Gm(i, name, lload(x, c), 2)
        return f
    ihooks[ll[0]] = mkl([(3, 0), (3, 1)], "l3"); ihooks[ll[1]] = mkl([(2, 0), (2, 1)], "l2")
    if ll[2] is not None: ihooks[ll[2]] = mkl([(1, 0)], "l10")
    if ll[3] is not None: ihooks[ll[3]] = mkl([(1, 1)], "l11")
    def dma_after_B(k):
        if k == 36: return [40, 41]
        if k == 37: return []
        if k == 48: return [53]
        return [k + 4] if k + 4 <= 51 else []
    stream(frsB, dma_after_B, tailnop=False)
    assert not pubs
    astamp("P:bend"); astamp("B:end")
    def accum(acc, src, f="v"):
        for c in range(2):
            for t in range(2):
                d = acc + 8*c + 4*t; s0 = SEL + (0 if c else 2)
                a.i(f"{MF} v[{d}:{d+3}], a[{s0}:{s0+3}], {f}[{src+4*t}:{src+4*t+3}], v[{d}:{d+3}]")
    OWN = BACC[4] + 16
    if ll[2] is None: toks["l10"] = a.vm(lload(1, 0))
    if ll[3] is None and not l11late: toks["l11"] = a.vm(lload(1, 1))
    tr.stage = 100; tr("end")
    a.wait(vm=toks["pl"])
    tr("pl")
    accum(OWN, XR, "a")
    for x in range(4, 8): accum(OWN, PL + 8*x)
    tr("acc")
    if l11late: toks["l11"] = a.vm(lload(1, 1))
    CK = 0
    groups = [("l3", [(3, 0), (3, 1)]), ("l2", [(2, 0), (2, 1)]), ("l10", [(1, 0)]), ("l11", [(1, 1)])]
    for n, (tk, items) in enumerate(groups):
        a.wait(vm=toks[tk])
        tr(tk)
        a.label(f"L_tchk{n}")
        regs = [PL + 8*x + 4*c + r for x, c in items for r in range(4)]
        a.i(f"v_max_u32 v{CK}, v{regs[0]}, v{regs[1]}")
        for j in range(2, len(regs), 2): a.i(f"v_max3_u32 v{CK}, v{regs[j]}, v{regs[j+1]}, v{CK}")
        a.i(f"v_cmp_eq_u32 vcc, -1, v{CK}")
        a.i("s_nop 0")
        a.i("s_cmp_lg_u64 vcc, 0")
        a.i(f"s_cbranch_scc1 L_tretry{n}")
        a.label(f"L_tok{n}")
        for x, c in items:
            for t in range(2):
                d = OWN + 8*c + 4*t; s0 = SEL + (0 if t else 2); q_ = PL + 8*x + 4*c
                a.i(f"{MF} v[{d}:{d+3}], a[{s0}:{s0+3}], v[{q_}:{q_+3}], v[{d}:{d+3}]")
    a.i("s_nop 1")
    for c in range(2):
        if c: a.i("s_nop 1")
        for t in range(2):
            d = OWN + 8*c + 4*t
            a.i(f"v_cvt_pk_bf16_f32 v{d}, v{d}, v{d+1}"); a.i(f"v_cvt_pk_bf16_f32 v{d+1}, v{d+2}, v{d+3}")
            a.vm(f"buffer_store_dwordx2 v[{d}:{d+1}], v{vT0}, s[{SOUT}:{SOUT+3}], s{sXo[t]} offen offset:{32*c}{outsc}")
    a.i(f"s_or_b32 s{sT0}, s{sS}, s{sW}"); a.i("s_cbranch_scc1 L_noadv")
    a.i(f"s_lshl_b32 s{sT1}, s{sR}, 7"); a.i(f"s_add_u32 s{sT1}, s{sT1}, {EP2_BASE}")
    a.i(f"buffer_store_dword a{st('tr')}, off, {WS}, s{sT1} sc1")
    a.label("L_noadv")
    tr("st")
    if trace: a.i("s_waitcnt vmcnt(0)"); tr("fin")
    astamp("P:done")
    if trace:
        a.i("s_waitcnt lgkmcnt(0)")
        for n0, p0 in trp: a.i(f"v_writelane_b32 v{vLane}, s{p0}, {n0}")
        a.i(f"s_lshl_b32 s{sT0}, s2, 2"); a.i(f"s_add_u32 s{sT0}, s{sT0}, s{sW}"); a.i(f"s_lshl_b32 s{sT0}, s{sT0}, 8")
        a.i(f"s_add_u32 s{sT0}, s{sT0}, {STAMP_OFF}")
        a.i(f"v_lshrrev_b32 v1, 2, v{vL16}")
        a.i(f"buffer_store_dword v{vLane}, v1, {WS}, s{sT0} offen")
        print("trace:", len(trl), " ".join(trl), file=sys.stderr)
    if stamps:
        a.i(f"s_lshl_b32 s{sT0}, s2, 2"); a.i(f"s_add_u32 s{sT0}, s{sT0}, s{sW}"); a.i(f"s_lshl_b32 s{sT0}, s{sT0}, 6")
        a.i(f"s_add_u32 s{sT0}, s{sT0}, {STAMP_OFF}")
        a.i(f"v_mov_b32 v1, 0")
        for n in range(len(stl)):
            a.i(f"buffer_store_dword a{244+n}, v1, {WS}, s{sT0} offen offset:{4*n}")
        a.i("s_waitcnt vmcnt(0)")
        a.i("s_memrealtime s[80:81]"); a.i("s_waitcnt lgkmcnt(0)"); a.i("v_accvgpr_write_b32 a255, s80")
        a.i(f"buffer_store_dword a254, v1, {WS}, s{sT0} offen offset:56")
        a.i(f"buffer_store_dword a255, v1, {WS}, s{sT0} offen offset:60")
        print("stamps:", stl, file=sys.stderr)
        if probe is not None:
            a.i(f"v_accvgpr_read_b32 v3, a{254 if probe < 0 else 244 + probe}"); a.i("s_nop 1")
            a.i(f"v_readfirstlane_b32 s{sT1}, v3"); a.i("s_nop 3"); a.i(f"s_add_u32 s{sT1}, s{sT1}, 6000")
            if probewg is not None:
                a.i(f"s_cmp_lg_u32 s2, {probewg}"); a.i("s_cbranch_scc1 L_end")
            a.label("L_probe")
            a.i("s_memrealtime s[80:81]"); a.i("s_waitcnt lgkmcnt(0)")
            a.i(f"s_sub_u32 s{sT2}, s80, s{sT1}"); a.i(f"s_cmp_lt_i32 s{sT2}, 0"); a.i("s_cbranch_scc1 L_probe")
        if dbgout:
            a.i(f"s_cmp_lg_u32 s{sW}, 1"); a.i("s_cbranch_scc1 L_end")
            a.i("s_cmp_lt_u32 s2, 248"); a.i("s_cbranch_scc1 L_end")
            a.i("v_accvgpr_read_b32 v3, a254"); a.i("v_accvgpr_read_b32 v4, a255")
            a.i("v_sub_u32 v4, v4, v3"); a.i("v_mul_u32_u24 v4, 100000, v4"); a.i("v_and_b32 v5, 0xffff, v3"); a.i("v_add_u32 v4, v4, v5")
            a.i(f"s_and_b32 s{sT1}, s2, 7"); a.i(f"s_lshl_b32 s{sT1}, s{sT1}, 2")
            a.i(f"buffer_store_dword v4, v1, s[{SDBG}:{SDBG+3}], s{sT1} offen offset:32")
            a.i("s_cmp_lg_u32 s2, 253"); a.i("s_cbranch_scc1 L_end")
            for n in range(1, 8):
                a.i(f"v_accvgpr_read_b32 v2, a{244+n}"); a.i("v_sub_u32 v2, v2, v3")
                a.i(f"buffer_store_dword v2, v1, s[{SDBG}:{SDBG+3}], 0 offen offset:{4*n}")
    a.label("L_end")
    a.i("s_endpgm")
    for n, (tk, items) in enumerate(groups):
        a.label(f"L_tretry{n}")
        a.i(f"s_cmp_eq_u32 s{sBound}, 0"); a.i(f"s_cbranch_scc1 L_tok{n}")
        a.i(f"s_sub_u32 s{sBound}, s{sBound}, 1"); a.i("s_sleep 1")
        for x, c in items: a.i(lload(x, c))
        a.i("s_waitcnt vmcnt(0)")
        a.i(f"s_branch L_tchk{n}")
    a.label("L_gretry")
    a.i(f"s_cmp_eq_u32 s{sBound}, 0"); a.i("s_cbranch_scc1 L_gok")
    a.i(f"s_sub_u32 s{sBound}, s{sBound}, 1"); a.i("s_sleep 1")
    gload(); a.i("s_waitcnt vmcnt(0)"); a.i("s_branch L_gchk")
    a.lines += slow_lines
    a.label("L_tagspin")
    a.i(f"s_cmp_eq_u32 s{sBound}, 0"); a.i("s_cbranch_scc1 L_tagok")
    a.i(f"s_sub_u32 s{sBound}, s{sBound}, 1"); a.i("s_sleep 1")
    a.i(f"buffer_load_dword v207, off, s[{SDBG}:{SDBG+3}], 0 sc1"); a.i("s_waitcnt vmcnt(0)")
    a.i("s_branch L_tagchk")
    for (name, va, vf, soff, offs) in spin_blocks:
        a.label(f"L_spin_{name}")
        a.i(f"s_cmp_eq_u32 s{sBound}, 0")
        a.i(f"s_cbranch_scc1 L_back_{name}")
        a.i(f"s_sub_u32 s{sBound}, s{sBound}, 1")
        a.i("s_sleep 1")
        a.i(f"buffer_load_dword v{vf}, v{va}, {WS}, {soff} offen offset:{offs} sc1")
        a.i("s_waitcnt vmcnt(0)")
        a.i(f"v_cmp_ne_u32 vcc, s{sTag}, v{vf}")
        a.i("s_nop 0")
        a.i("s_cmp_lg_u64 vcc, 0")
        a.i(f"s_cbranch_scc1 L_spin_{name}")
        a.i(f"s_branch L_back_{name}")
    assert not ihooks, ihooks.keys()
    body = [l.replace("CODE_LAST", "0x1000") for l in a.lines]
    if iwarm:
        tmp = [l for l in body] + [f"L_w{w}:" for w in range(4*NHOP)] + ["    s_endpgm"]
        tmp, _, _, _ = align8(tmp, nops=False)
        tmp = tmp[:-(4*NHOP+1)]
        sz = sizes_of(tmp + [f"L_w{w}:" for w in range(4*NHOP)])
        out = []; off = 0; n = 0; j = 0; nextp = 8192; done = False
        for l in tmp:
            if l.startswith("L_end:"): done = True
            if is_instr(l):
                prev = out[-1].strip() if out else ""
                if off >= nextp and not done and not prev.startswith("v_mfma") and not prev.startswith("s_cmp"):
                    out.append(f"L_w{n}:"); out.append(f"    s_cbranch_execz L_wret{n//4}"); n += 1; off += 4; nextp += 4096
                off += sz[j]; j += 1
            out.append(l)
        assert n <= 4*NHOP
        for nn in range(n, 4*NHOP):
            out.insert(out.index(f"L_wret{nn//4}:"), f"L_w{nn}:")
        body = out; size = off
        print("warm stubs", n, file=sys.stderr)
    else:
        body, nf, nn, size = align8(body, nops=False)
    body = [l.replace("v_min_u32 v%d, 0x1000," % vT0, "v_min_u32 v%d, %d," % (vT0, (size - 64) & ~15)) for l in body]
    print(f"main: code {size} bytes, stash {st.next}", file=sys.stderr)
    return body

from gen1 import kd
def whole(**kw):
    m = gen(**kw)
    hdr = [l for l in open("parallel_sum__sliding_block__glu_gated_bilinear__prompt.s.ref").read().split("\n")[:11]]
    s = "\n".join(hdr) + "\n"
    s += f"; @launch grid=(256,1,1) block=(256,1,1) lds={LDS_BYTES}\n"
    s += '.amdgcn_target "amdgcn-amd-amdhsa--gfx950"\n.text\n'
    s += f".globl {KN}\n.p2align 12\n.type {KN},@function\n{KN}:\n" + "\n".join(m) + "\n"
    s += '.section .rodata,"a"\n.p2align 6\n' + kd(KN, 512, 256)
    return s

if __name__ == "__main__":
    kw = {}
    for x in sys.argv[2:]:
        k, v = x.split("="); kw[k] = eval(v)
    open(sys.argv[1], "w").write(whole(**kw))
```
